```python
import torch

def _softmax(x, axis=-1):
    return torch.softmax(x, dim=axis)
def _gelu(x):
    return torch.nn.functional.gelu(x, approximate="tanh")
def _silu(x):
    return torch.nn.functional.silu(x)
def _sigmoid(x):
    return torch.sigmoid(x)
def _layernorm(x, axis=-1, eps=1e-5):
    m = x.mean(dim=axis, keepdim=True)
    v = x.var(dim=axis, keepdim=True, unbiased=False)
    return (x - m) / torch.sqrt(v + eps)
def _scatter_add(tgt, idx, src, axis=0):
    return tgt.clone().index_add_(axis, idx, src)
def _segment_sum(src, seg, n):
    out = torch.zeros((n,) + src.shape[1:], dtype=src.dtype)
    return out.index_add_(0, seg, src)
def _pad(x, pw):
    flat = tuple(v for pair in reversed(pw) for v in pair)
    return torch.nn.functional.pad(x, flat)

kernel_name = 'recurrent_scan__sliding_block_cached__dense_activation_relu__decode'

def setup_inputs():

    _w = (lambda a: (lambda t: t.to(torch.bfloat16) if t.is_floating_point() else t)(torch.as_tensor(a)))
    def _A_setup():
        B, Sq, D = 1, 1, 512
        Hq, Hkv, Sk, Dh = 32, 8, 65536, 128
        assert Hq % Hkv == 0, (Hq, Hkv)
        return {
            "x": _w((lambda *s: torch.randn(*s, dtype=torch.bfloat16) * 0.05)(B, Sq, D)),
            "k_cache": _w((lambda *s: torch.randn(*s, dtype=torch.bfloat16) * 1.6)(B, Hkv, Sk, Dh)),
            "v_cache": _w((lambda *s: torch.randn(*s, dtype=torch.bfloat16) * 0.2)(B, Hkv, Sk, Dh)),
            "wq": _w((lambda *s: torch.randn(*s, dtype=torch.bfloat16) * 1.6)(D, Hq * Dh) * (D ** -0.5)),
            "wo": _w((lambda *s: torch.randn(*s, dtype=torch.bfloat16) * 0.2)(Hq * Dh, D) * ((Hq * Dh) ** -0.5)),
        }
    _A_in = _A_setup()

    def _B_setup():
        B, S, D, Dff = 1, 1, 512, 1792
        return {
            "x": _w((lambda *s: torch.randn(*s, dtype=torch.bfloat16) * 0.05)(B, S, D)),
            "w1": _w((lambda *s: torch.randn(*s, dtype=torch.bfloat16) * 0.1)(D, Dff)),
            "w2": _w((lambda *s: torch.randn(*s, dtype=torch.bfloat16) * 0.1)(Dff, D)),
        }
    _B_in = _B_setup()

    return {
        "A_x": _A_in["x"],
        "A_k_cache": _A_in["k_cache"],
        "A_v_cache": _A_in["v_cache"],
        "A_wq": _A_in["wq"],
        "A_wo": _A_in["wo"],
        "B_x": _B_in["x"],
        "B_w1": _B_in["w1"],
        "B_w2": _B_in["w2"],
    }

def reference(A_x, A_k_cache, A_v_cache, A_wq, A_wo, B_x, B_w1, B_w2):
    def _A_ref(x, k_cache, v_cache, wq, wo):
        B, Sq, D = x.shape
        Hq, Dh = 32, 128
        Hkv, Sk = k_cache.shape[1], k_cache.shape[2]
        W = min(4096, max(256, Sk // 4))
        rep = Hq // Hkv
        q = (lambda x, *d: x.permute(*d))((x @ wq).reshape(B, Sq, Hq, Dh), 0, 2, 1, 3)
        k = (lambda x, n, axis: torch.repeat_interleave(x, n, dim=axis))(k_cache[:, :, Sk - W:, :], rep, axis=1)
        v = (lambda x, n, axis: torch.repeat_interleave(x, n, dim=axis))(v_cache[:, :, Sk - W:, :], rep, axis=1)
        scores = torch.einsum("bhqd,bhkd->bhqk", q, k) * (Dh ** -0.5)
        p = _softmax(scores, axis=-1)
        o = torch.einsum("bhqk,bhkd->bhqd", p, v)
        return (lambda x, *d: x.permute(*d))(o, 0, 2, 1, 3).reshape(B, Sq, Hq * Dh) @ wo

    def _B_ref(x, w1, w2):
        h = torch.einsum("bsd,df->bsf", x, w1)
        zero = torch.zeros_like(h)
        h = torch.maximum(h, zero)
        return torch.einsum("bsf,fd->bsd", h, w2)

    x = A_x
    xn = _layernorm(x, axis=-1)
    s = _A_ref(xn, A_k_cache, A_v_cache, A_wq, A_wo)
    g = _silu(_B_ref(xn, B_w1, B_w2))
    return x + s * g
```

```python
NAME = "recurrent_scan__sliding_block_cached__dense_activation_relu__decode"

HEADER = """; Kernarg layout (88 bytes, pointers only, base s[0:1]):
;
; Workgroups exchange data through d_ws in tagged 16-byte granules: {value, value, tag, tag}, or four values whose ten
"""


class Asm:
    def __init__(self):
        self.l = []
        self.uid = 0

    def __call__(self, s):
        for line in s.strip("\n").split("\n"):
            line = line.strip()
            if not line:
                continue
            if line.endswith(":") or line.startswith("."):
                self.l.append(line)
            else:
                self.l.append("    " + line)

    def c(self, s):
        self.l.append("    ; " + s)

    def newlabel(self, p="L"):
        self.uid += 1
        return "%s_%d" % (p, self.uid)

    def text(self):
        return "\n".join(self.l) + "\n"


def wrap(body, grid, block, lds, vgpr, sgpr=96, accum=None, kname=NAME + "_kernel", header=HEADER):
    if accum is None:
        accum = (vgpr + 3) // 4 * 4
    return (header +
            "; @launch grid=(%d,1,1) block=(%d,1,1) lds=%d\n" % (grid, block, lds) +
            '.amdgcn_target "amdgcn-amd-amdhsa--gfx950"\n.text\n.globl %s\n.p2align 8\n.type %s,@function\n%s:\n' % (kname, kname, kname) +
            body +
            '.section .rodata,"a"\n.p2align 6\n.amdhsa_kernel %s\n' % kname +
            "  .amdhsa_next_free_vgpr %d\n  .amdhsa_next_free_sgpr %d\n  .amdhsa_accum_offset %d\n" % (vgpr, sgpr, accum) +
            "  .amdhsa_group_segment_fixed_size 0\n  .amdhsa_kernarg_size 88\n  .amdhsa_user_sgpr_count 2\n"
            "  .amdhsa_user_sgpr_kernarg_segment_ptr 1\n  .amdhsa_system_sgpr_workgroup_id_x 1\n"
            "  .amdhsa_float_denorm_mode_32 3\n"
            ".end_amdhsa_kernel\n")
```

```python
import sys
from asmgen import Asm, wrap, NAME

REGB = 0x400000
EPOCH = 0x0
H1 = 0x10000
ST = 0x50000
H3B = 0x70000
HB = 0x80000
H2 = 0x100000
H3S = 0x200000
H3G = 0x300000
STAMP_OFF = 256 << 20

L_Q = 0x0000
L_P = 0x0800
L_MX = 0x1800
L_O = 0x1840
L_XQ = 0x1880
L_XH = 0x1980
L_F = 0x1A80
L_K = 0x2000
L_V = 0xA000
L_WO = 0x12000
L_W2 = 0x16000
L_W1 = 0x1A000
F_INIT, F_QPUB, F_Q, F_REM, F_K, F_MAX, F_P, F_ST, F_V, F_OPUB, F_O, F_W1, F_SPUB, F_WO, F_W2, F_GPUB = [L_F + 4 * i for i in range(16)]
LDS_BYTES = 0x1E000

S_X, S_K, S_V, S_WQ, S_WO, S_W1, S_W2, S_OUT, S_WS = 4, 6, 8, 10, 12, 16, 18, 20, 24
S_G, S_C, S_W = 26, 27, 28
S_T = 30
S_XCC = 32
S_MODE = 33
S_MB = 34
S_T1X = 36
S_ISB = 38
S_CNT = 39
S_TMP = 40
S_STAMP = 60

LOG2E = 0x3fb8aa3b
SCALE = 0x3db504f3
A_TIMEOUT = 64
SPIN_MAX = 1 << 20
POLL_MAX = 1 << 16


def sp(n):
    return "s[%d:%d]" % (n, n + 1)


def vr(n, k=1):
    return "v%d" % n if k == 1 else "v[%d:%d]" % (n, n + k - 1)


class Gen:
    def __init__(self, stamps=False, nt_kv="nt", nt_w="nt", force_global=False, mimic=True, window=16, nb_lo=28, nb_hi=0, order="k1o2v", code_pf=0):
        self.a = Asm()
        self.window = int(window)
        self.nb_lo = int(nb_lo)
        self.nb_hi = int(nb_hi)
        self.order = order
        self.code_pf = int(code_pf)
        assert 4 * self.nb_lo + 4 * self.nb_hi == 112 and self.nb_lo % 4 == 0 and self.nb_hi % 4 == 0
        self.stamps = stamps
        self.nt_kv = nt_kv
        self.nt_w = nt_w
        self.force_global = force_global
        self.mimic = mimic
        self.nstamp = 0

    def stamp(self, idx):
        if self.stamps:
            self.a("s_memrealtime %s" % sp(S_STAMP + 2 * idx))

    def flag_add(self, flag, vz, vone):
        a = self.a
        a("s_mov_b64 exec, 1")
        a("ds_add_u32 %s, %s offset:%d" % (vr(vz), vr(vone), flag))
        a("s_mov_b64 exec, -1")

    def flag_wait(self, flag, n, vz, vt, sleep=0):
        a = self.a
        L = a.newlabel("W")
        a("s_mov_b32 s%d, 0" % S_CNT)
        a(L + ":")
        a("ds_read_b32 %s, %s offset:%d" % (vr(vt), vr(vz), flag))
        a("s_add_u32 s%d, s%d, 1" % (S_CNT, S_CNT))
        a("s_cmp_gt_u32 s%d, %d" % (S_CNT, SPIN_MAX))
        a("s_cbranch_scc1 L_end")
        a("s_waitcnt lgkmcnt(0)")
        a("v_readfirstlane_b32 s%d, %s" % (S_TMP, vr(vt)))
        if sleep:
            L2 = a.newlabel("W")
            a("s_cmp_ge_u32 s%d, %d" % (S_TMP, n))
            a("s_cbranch_scc1 %s" % L2)
            a("s_sleep %d" % sleep)
            a("s_branch %s" % L)
            a(L2 + ":")
        else:
            a("s_cmp_lt_u32 s%d, %d" % (S_TMP, n))
            a("s_cbranch_scc1 %s" % L)

    def store_mode(self, vaddr, vdata, n=4):
        a = self.a
        L1, L2 = a.newlabel("S"), a.newlabel("S")
        op = "global_store_dwordx%d" % n
        a("s_cmp_lg_u32 s%d, 0" % S_MODE)
        a("s_cbranch_scc1 %s" % L1)
        a("%s %s, %s, %s" % (op, vr(vaddr), vr(vdata, n), sp(S_MB)))
        a("s_branch %s" % L2)
        a(L1 + ":")
        a("%s %s, %s, %s sc1" % (op, vr(vaddr), vr(vdata, n), sp(S_MB)))
        a(L2 + ":")

    def poll(self, loads, base, tag=S_T, limit=POLL_MAX, on_timeout="L_end", pre=None):
        a = self.a
        L = a.newlabel("P")
        a("s_mov_b32 s%d, 0" % S_CNT)
        a(L + ":")
        for (vd, va, off) in loads:
            a("global_load_dwordx4 %s, %s, %s offset:%d sc1" % (vr(vd, 4), vr(va), sp(base), off))
        a("s_add_u32 s%d, s%d, 1" % (S_CNT, S_CNT))
        a("s_cmp_gt_u32 s%d, %d" % (S_CNT, limit))
        a("s_cbranch_scc1 %s" % on_timeout)
        n = len(loads)
        for i, (vd, va, off) in enumerate(loads):
            a("s_waitcnt vmcnt(%d)" % (n - 1 - i))
            dst = "vcc" if i == 0 else sp(S_TMP)
            a("v_cmp_ne_u64 %s, %s, %s" % (dst, vr(vd + 2, 2), sp(tag)))
            if i:
                a("s_or_b64 vcc, vcc, %s" % sp(S_TMP))
        a("s_cbranch_vccnz %s" % L)

    def xor_reduce(self, op, regs, steps, tmp):
        a = self.a
        for st in steps:
            if st in (16, 32):
                ins = "v_permlane16_swap_b32" if st == 16 else "v_permlane32_swap_b32"
                for i, r in enumerate(regs):
                    a("v_mov_b32 %s, %s" % (vr(tmp + i), vr(r)))
                a("s_nop 1")
                for i, r in enumerate(regs):
                    a("%s %s, %s" % (ins, vr(r), vr(tmp + i)))
                a("s_nop 1")
                for i, r in enumerate(regs):
                    a("%s %s, %s, %s" % (op, vr(r), vr(r), vr(tmp + i)))
            else:
                ctl = {1: "quad_perm:[1,0,3,2]", 2: "quad_perm:[2,3,0,1]", "hm": "row_half_mirror", "m": "row_mirror", 8: "row_ror:8"}[st]
                a("s_nop 1")
                for r in regs:
                    a("%s_dpp %s, %s, %s %s row_mask:0xf bank_mask:0xf" % (op, vr(r), vr(r), vr(r), ctl))

    def read_mode(self, vz, vt):
        a = self.a
        a("ds_read_b32 %s, %s offset:%d" % (vr(vt), vr(vz), F_REM))
        a("s_waitcnt lgkmcnt(0)")
        a("v_readfirstlane_b32 s%d, %s" % (S_MODE, vr(vt)))
        if self.force_global:
            a("s_mov_b32 s%d, 1" % S_MODE)
        a("s_min_u32 s%d, s%d, 1" % (S_MODE, S_MODE))
        a("s_mul_i32 s%d, s%d, %d" % (S_TMP, S_MODE, REGB))
        a("s_add_u32 s%d, s%d, s%d" % (S_MB, S_WS, S_TMP))
        a("s_addc_u32 s%d, s%d, 0" % (S_MB + 1, S_WS + 1))

    def tags(self):
        a = self.a
        a("s_waitcnt lgkmcnt(0)")
        a("s_add_u32 s%d, s%d, 0x9E3779B9" % (S_T, S_T))
        a("s_add_u32 s%d, s%d, 0x7F4A7C00" % (S_T + 1, S_T + 1))
        a("s_and_b32 s%d, s%d, 0xFFFFFFE0" % (S_T + 1, S_T + 1))
        a("s_or_b32 s%d, s%d, 0x10" % (S_T + 1, S_T + 1))
        a("s_mov_b32 s%d, s%d" % (S_T1X, S_T))
        a("s_or_b32 s%d, s%d, s%d" % (S_T1X + 1, S_T + 1, S_XCC))

    def dump_stamps(self, vt):
        if not self.stamps:
            return
        a = self.a
        a("s_waitcnt lgkmcnt(0)")
        a("s_lshl_b32 s%d, s2, 3" % S_TMP)
        a("s_add_u32 s%d, s%d, s%d" % (S_TMP, S_TMP, S_W))
        a("s_lshl_b32 s%d, s%d, 6" % (S_TMP, S_TMP))
        a("s_add_u32 s%d, s%d, %d" % (S_TMP, S_TMP, STAMP_OFF))
        a("s_mov_b64 exec, 1")
        a("v_mov_b32 %s, s%d" % (vr(vt), S_TMP))
        for i in range(16):
            a("v_mov_b32 %s, s%d" % (vr(vt + 1), S_STAMP + 2 * i))
            a("global_store_dword %s, %s, %s offset:%d" % (vr(vt), vr(vt + 1), sp(S_WS), 4 * i))

    def end(self, vt):
        self.dump_stamps(vt)
        self.a("s_endpgm")

    def layernorm_rows(self, base, lds_x, VZ):
        a = self.a
        xs, xp = base, base + 4
        f = base + 16
        t = base + 24
        for i in range(4):
            a("v_lshlrev_b32 %s, 16, %s" % (vr(f + 2 * i), vr(xs + i)))
            a("v_and_b32 %s, 0xffff0000, %s" % (vr(f + 2 * i + 1), vr(xs + i)))
        a("v_add_f32 %s, %s, %s" % (vr(t), vr(f), vr(f + 1)))
        a("v_add_f32 %s, %s, %s" % (vr(t + 1), vr(f + 2), vr(f + 3)))
        a("v_add_f32 %s, %s, %s" % (vr(t + 2), vr(f + 4), vr(f + 5)))
        a("v_add_f32 %s, %s, %s" % (vr(t + 3), vr(f + 6), vr(f + 7)))
        a("v_add_f32 %s, %s, %s" % (vr(t), vr(t), vr(t + 1)))
        a("v_add_f32 %s, %s, %s" % (vr(t + 2), vr(t + 2), vr(t + 3)))
        a("v_add_f32 %s, %s, %s" % (vr(t), vr(t), vr(t + 2)))
        self.xor_reduce("v_add_f32", [t], [1, 2, "hm", "m", 16, 32], t + 4)
        a("v_mul_f32 %s, 0x3b000000, %s" % (vr(t), vr(t)))
        for i in range(8):
            a("v_sub_f32 %s, %s, %s" % (vr(f + i), vr(f + i), vr(t)))
        a("v_mul_f32 %s, %s, %s" % (vr(t + 1), vr(f), vr(f)))
        a("v_mul_f32 %s, %s, %s" % (vr(t + 2), vr(f + 1), vr(f + 1)))
        for i in range(2, 8, 2):
            a("v_fmac_f32 %s, %s, %s" % (vr(t + 1), vr(f + i), vr(f + i)))
            a("v_fmac_f32 %s, %s, %s" % (vr(t + 2), vr(f + i + 1), vr(f + i + 1)))
        a("v_add_f32 %s, %s, %s" % (vr(t + 1), vr(t + 1), vr(t + 2)))
        self.xor_reduce("v_add_f32", [t + 1], [1, 2, "hm", "m", 16, 32], t + 4)
        a("v_mul_f32 %s, 0x3b000000, %s" % (vr(t + 1), vr(t + 1)))
        a("v_cvt_pk_bf16_f32 %s, %s, %s" % (vr(t + 2), vr(t), vr(t + 1)))
        a("v_lshlrev_b32 %s, 16, %s" % (vr(t), vr(t + 2)))
        a("v_and_b32 %s, 0xffff0000, %s" % (vr(t + 1), vr(t + 2)))
        a("v_add_f32 %s, 0x3727c5ac, %s" % (vr(t + 1), vr(t + 1)))
        a("v_cvt_pk_bf16_f32 %s, %s, %s" % (vr(t + 1), vr(t + 1), vr(t + 1)))
        a("v_and_b32 %s, 0xffff0000, %s" % (vr(t + 1), vr(t + 1)))
        a("v_sqrt_f32 %s, %s" % (vr(t + 1), vr(t + 1)))
        a("s_nop 0")
        a("v_cvt_pk_bf16_f32 %s, %s, %s" % (vr(t + 1), vr(t + 1), vr(t + 1)))
        a("v_and_b32 %s, 0xffff0000, %s" % (vr(t + 1), vr(t + 1)))
        a("v_rcp_f32 %s, %s" % (vr(t + 2), vr(t + 1)))
        a("v_lshlrev_b32 %s, 16, %s" % (vr(f), vr(xp)))
        a("v_and_b32 %s, 0xffff0000, %s" % (vr(f + 1), vr(xp)))
        a("v_sub_f32 %s, %s, %s" % (vr(f), vr(f), vr(t)))
        a("v_sub_f32 %s, %s, %s" % (vr(f + 1), vr(f + 1), vr(t)))
        a("v_cvt_pk_bf16_f32 %s, %s, %s" % (vr(f), vr(f), vr(f + 1)))
        a("v_and_b32 %s, 0xffff0000, %s" % (vr(f + 1), vr(f)))
        a("v_lshlrev_b32 %s, 16, %s" % (vr(f), vr(f)))
        for i in range(2):
            a("v_mul_f32 %s, %s, %s" % (vr(f + 2 + i), vr(f + i), vr(t + 2)))
        for i in range(2):
            a("v_fma_f32 %s, -%s, %s, %s" % (vr(f + 4 + i), vr(f + 2 + i), vr(t + 1), vr(f + i)))
        for i in range(2):
            a("v_fmac_f32 %s, %s, %s" % (vr(f + 2 + i), vr(f + 4 + i), vr(t + 2)))
        a("v_cvt_pk_bf16_f32 %s, %s, %s" % (vr(f), vr(f + 2), vr(f + 3)))
        a("v_lshlrev_b32 %s, 2, v0" % vr(t))
        a("ds_write_b32 %s, %s offset:%d" % (vr(t), vr(f), lds_x))
        a("v_lshrrev_b32 %s, 3, v0" % vr(t))
        a("v_lshlrev_b32 %s, 5, %s" % (vr(t), vr(t)))
        a("ds_read_b128 %s, %s offset:%d" % (vr(base + 8, 4), vr(t), lds_x))
        a("ds_read_b128 %s, %s offset:%d" % (vr(base + 12, 4), vr(t), lds_x + 16))

    def selectors(self, sel, tmp, both_parities):
        a = self.a
        a("v_and_b32 %s, 15, v0" % vr(tmp))
        a("v_and_b32 %s, 1, %s" % (vr(tmp + 1), vr(tmp)))
        a("v_bfe_u32 %s, %s, 1, 2" % (vr(tmp + 2), vr(tmp)))
        if not both_parities:
            a("v_lshrrev_b32 %s, 3, %s" % (vr(tmp + 3), vr(tmp)))
            a("v_lshl_add_u32 %s, %s, 2, %s" % (vr(tmp + 2), vr(tmp + 3), vr(tmp + 2)))
        a("v_cmp_eq_u32 vcc, 1, %s" % vr(tmp + 1))
        a("v_mov_b32 %s, 0x0c0c0100" % vr(tmp + 3))
        a("v_mov_b32 %s, 0x01000c0c" % vr(tmp + 4))
        a("v_cndmask_b32 %s, %s, %s, vcc" % (vr(tmp + 5), vr(tmp + 3), vr(tmp + 4)))
        a("v_mov_b32 %s, 0x0c0c0302" % vr(tmp + 3))
        a("v_mov_b32 %s, 0x03020c0c" % vr(tmp + 4))
        a("v_cndmask_b32 %s, %s, %s, vcc" % (vr(tmp + 6), vr(tmp + 3), vr(tmp + 4)))
        a("v_mov_b32 %s, 0x0c0c0c0c" % vr(tmp + 3))
        for t in range(4):
            a("v_cmp_eq_u32 vcc, %d, %s" % (t, vr(tmp + 2)))
            a("s_nop 1")
            a("v_cndmask_b32 %s, %s, %s, vcc" % (vr(sel + t), vr(tmp + 3), vr(tmp + 5)))
            a("v_cndmask_b32 %s, %s, %s, vcc" % (vr(sel + 4 + t), vr(tmp + 3), vr(tmp + 6)))

    def tile_gemv(self, W, XN, SEL, AF, ACC, nafter):
        a = self.a
        for i in range(16):
            for t in range(4):
                a("v_perm_b32 %s, %s, %s, %s" % (vr(AF + 4 * i + t), vr(XN + (i >> 1)), vr(XN + (i >> 1)), vr(SEL + 4 * (i & 1) + t)))
        for i in range(16):
            a("s_waitcnt vmcnt(%d)" % (15 - i + nafter))
            a("v_mfma_f32_16x16x32_bf16 %s, %s, %s, %s" % (vr(ACC, 4), vr(AF + 4 * i, 4), vr(W + 4 * i, 4), "0" if i == 0 else vr(ACC, 4)))
        a("s_nop 7")
        a("v_permlane32_swap_b32 %s, %s" % (vr(ACC), vr(ACC + 2)))
        a("v_permlane32_swap_b32 %s, %s" % (vr(ACC + 1), vr(ACC + 3)))
        a("s_nop 1")
        a("v_add_f32_dpp %s, %s, %s row_ror:8 row_mask:0xf bank_mask:0xf" % (vr(ACC), vr(ACC + 2), vr(ACC)))
        a("v_add_f32_dpp %s, %s, %s row_ror:8 row_mask:0xf bank_mask:0xf" % (vr(ACC + 1), vr(ACC + 3), vr(ACC + 1)))


    def prologue(self):
        a = self.a
        a("""
        s_cmp_ge_u32 s2, 256
        s_cbranch_scc1 L_end
        """)
        self.stamp(0)
        if self.code_pf:
            a("s_getpc_b64 s[52:53]")
            a("L_pc:")
            a("v_lshlrev_b32 v3, 4, v0")
            for i in range(self.code_pf):
                a("v_min_u32 v4, L_code_end-L_pc-16, v3")
                a("global_load_dwordx4 v[188:191], v4, s[52:53]")
                a("v_add_u32 v3, 0x2000, v3")
        a("""
        s_load_dwordx16 s[4:19], s[0:1], 0
        s_load_dwordx2 s[20:21], s[0:1], 64
        s_load_dwordx2 s[24:25], s[0:1], 80
        v_lshrrev_b32 v1, 6, v0
        v_and_b32 v0, 63, v0
        s_and_b32 s26, s2, 7
        s_lshr_b32 s27, s2, 3
        v_readfirstlane_b32 s28, v1
        s_getreg_b32 s32, hwreg(HW_REG_XCC_ID, 0, 4)
        s_cmp_lt_u32 s26, 4
        s_cselect_b32 s49, %d, %d             ; MLP workgroups in this group
        s_cmp_lt_u32 s27, s49
        s_cselect_b32 s38, 1, 0
        s_mul_i32 s50, s26, %d
        s_sub_u32 s51, s26, 4
        s_mul_i32 s51, s51, %d
        s_add_u32 s51, s51, %d
        s_cmp_lt_u32 s26, 4
        s_cselect_b32 s50, s50, s51
        s_lshr_b32 s51, s27, 2
        s_add_u32 s50, s50, s51               ; global column block of W1
        v_mov_b32 v1, 0
        v_mov_b32 v2, 1
        s_waitcnt lgkmcnt(0)
        s_load_dwordx2 s[30:31], s[24:25], %d
        s_cmp_lt_u32 s28, 4
        s_cbranch_scc1 L_A
        s_cmp_eq_u32 s28, 4
        s_cbranch_scc1 L_C0
        s_cmp_eq_u32 s28, 5
        s_cbranch_scc1 L_C1
        s_cmp_eq_u32 s28, 6
        s_cbranch_scc1 L_C2
        s_branch L_L
        """ % (self.nb_lo, self.nb_hi, self.nb_lo // 4, self.nb_hi // 4, self.nb_lo, EPOCH))

    def role_l(self):
        a = self.a
        VZ, V1 = 1, 2
        a("L_L:")
        KO, VO = 8, 12
        WOA, WOB, W2A, W2B, W1A = 16, 17, 18, 19, 20
        a("""
        s_lshl_b32 s40, s26, 24
        s_add_u32 s40, s40, 0xF00000
        s_lshl_b32 s41, s27, 15
        s_add_u32 s40, s40, s41
        v_lshrrev_b32 v3, 4, v0               ; q4
        v_and_b32 v4, 15, v0                  ; pos
        v_xor_b32 v5, v4, v3
        v_lshl_add_u32 v6, v3, 8, s40
        """)
        for q in range(4):
            a("v_xor_b32 v7, %d, v5" % (4 * q))
            a("v_lshl_add_u32 v7, v7, 4, v6")
            a("v_add_u32 %s, %d, v7" % (vr(KO + q), 2048 * q))
        a("v_lshlrev_b32 v7, 1, v3")
        a("v_xor_b32 v7, v7, v4")
        a("v_lshl_add_u32 %s, v7, 4, v6" % vr(VO))
        a("v_xor_b32 v7, 8, v7")
        a("v_lshl_add_u32 %s, v7, 4, v6" % vr(VO + 1))
        a("v_add_u32 %s, 0x1000, %s" % (vr(VO + 2), vr(VO)))
        a("v_add_u32 %s, 0x1000, %s" % (vr(VO + 3), vr(VO + 1)))
        a("""
        s_lshl_b32 s42, s26, 9                ; 512 g
        s_lshr_b32 s43, s27, 3
        s_lshl_b32 s43, s43, 7                ; 128 h
        s_add_u32 s42, s42, s43
        s_bfe_u32 s43, s27, 0x20001
        s_lshl_b32 s43, s43, 5
        s_add_u32 s42, s42, s43
        s_and_b32 s43, s27, 1
        s_lshl_b32 s43, s43, 3
        s_add_u32 s42, s42, s43               ; first Wo row
        s_lshl_b32 s42, s42, 10
        v_lshlrev_b32 v6, 4, v4               ; 16 n
        v_lshl_add_u32 v7, v3, 11, v6
        v_add_u32 %s, s42, v7
        v_add_u32 %s, 0x4000, %s
        s_lshl_b32 s42, s50, 6
        s_and_b32 s43, s27, 1
        s_lshl_b32 s43, s43, 2
        s_add_u32 s42, s42, s43
        s_bfe_u32 s43, s27, 0x10001
        s_lshl_b32 s43, s43, 1
        s_add_u32 s42, s42, s43               ; first W2 row
        s_lshl_b32 s42, s42, 10
        v_lshl_add_u32 v7, v3, 14, v6
        v_add_u32 %s, s42, v7
        v_add_u32 %s, 0x2000, %s
        s_lshl_b32 s42, s50, 7
        s_and_b32 s43, s27, 3
        s_mul_i32 s43, s43, %d
        s_add_u32 s42, s42, s43
        v_lshrrev_b32 v6, 3, v0
        v_mul_u32_u24 v6, %d, v6
        v_and_b32 v7, 7, v0
        v_lshl_add_u32 v6, v7, 4, v6
        v_add_u32 %s, s42, v6
        """ % (vr(WOA), vr(WOB), vr(WOA), vr(W2A), vr(W2B), vr(W2A), 128 * 3584, 16 * 3584, vr(W1A)))
        a("s_barrier")
        self.stamp(1)

        def seq(isb):
            ops = []
            flags = []
            for grp in self.order:
                if grp == "k":
                    for w in range(4):
                        for q in range(4):
                            for t in range(2):
                                pre = ""
                                if t == 0:
                                    if w and q == 0:
                                        pre += "".join("v_add_u32 %s, 0x2000, %s\n" % (vr(KO + z), vr(KO + z)) for z in range(4))
                                    pre += "s_movk_i32 m0, 0x%x\n" % (L_K + 8192 * w + 2048 * q) if L_K + 8192 * w + 2048 * q < 0x8000 else "s_mov_b32 m0, 0x%x\n" % (L_K + 8192 * w + 2048 * q)
                                ops.append((pre, "global_load_lds_dwordx4 %s, %s offset:%d %s" % (vr(KO + q), sp(S_K), 1024 * t, self.nt_kv)))
                    flags.append((len(ops), F_K))
                elif grp == "v":
                    for w in range(4):
                        for half in range(2):
                            for i in range(4):
                                pre = ""
                                if i == 0:
                                    if w and half == 0:
                                        pre += "".join("v_add_u32 %s, 0x2000, %s\n" % (vr(VO + z), vr(VO + z)) for z in range(4))
                                    pre += "s_mov_b32 m0, 0x%x\n" % (L_V + 8192 * w + 4096 * half)
                                b = (i >> 1) & 1
                                ops.append((pre, "global_load_lds_dwordx4 %s, %s offset:%d %s" % (vr(VO + 2 * half + b), sp(S_V), 1024 * i, self.nt_kv)))
                        flags.append((len(ops), F_V))
                elif grp == "o":
                    for w in range(4):
                        for i in range(4):
                            off = 256 * w + 1024 * (i >> 1)
                            ops.append(("s_mov_b32 m0, 0x%x\n" % (L_WO + (4 * w + i) * 1024 - off),
                                        "global_load_lds_dwordx4 %s, %s offset:%d %s" % (vr(WOA if (i & 1) == 0 else WOB), sp(S_WO), off, self.nt_w)))
                    flags.append((len(ops), F_WO))
                elif grp == "2" and isb:
                    for w in range(4):
                        for i in range(4):
                            off = 256 * w + 1024 * (i & 1)
                            ops.append(("s_mov_b32 m0, 0x%x\n" % (L_W2 + (4 * w + i) * 1024 - off),
                                        "global_load_lds_dwordx4 %s, %s offset:%d %s" % (vr(W2A if (i >> 1) == 0 else W2B), sp(S_W2), off, self.nt_w)))
                    flags.append((len(ops), F_W2))
                elif grp == "1" and isb:
                    for i in range(16):
                        pre = "s_mov_b32 m0, 0x%x\n" % (L_W1 + 1024 * i)
                        if i:
                            pre += "v_add_u32 %s, 3584, %s\n" % (vr(W1A), vr(W1A))
                        ops.append((pre, "global_load_lds_dwordx4 %s, %s %s" % (vr(W1A), sp(S_W1), self.nt_w)))
                    flags.append((len(ops), F_W1))
            return ops, flags

        def emit(isb):
            ops, flags = seq(isb)
            W = self.window
            n = len(ops)
            pend = list(flags)
            for j, (pre, ld) in enumerate(ops):
                if pre:
                    a(pre)
                if j >= W:
                    a("s_waitcnt vmcnt(%d)" % (W - 1))
                    landed = j - (W - 1)
                    while pend and pend[0][0] <= landed:
                        self.flag_add(pend.pop(0)[1], VZ, V1)
                elif pre:
                    a("s_nop 0")
                a(ld)
            self.stamp(2)
            for (e, f) in pend:
                a("s_waitcnt vmcnt(%d)" % (n - e))
                self.flag_add(f, VZ, V1)
            self.stamp(3)
            self.end(3)

        Lb = a.newlabel("LB")
        a("s_cmp_lg_u32 s%d, 0" % S_ISB)
        a("s_cbranch_scc1 %s" % Lb)
        emit(False)
        a(Lb + ":")
        emit(True)

    def role_a(self):
        a = self.a
        VZ, V1 = 1, 2
        T = 5
        a("L_A:")
        a("s_barrier")
        a("s_setprio 1")
        KO, VO, QA = 16, 20, 24
        a("""
        v_lshrrev_b32 v3, 4, v0               ; gg
        v_and_b32 v4, 15, v0                  ; m
        s_lshl_b32 s41, s28, 13
        v_and_b32 v5, 3, v4                   ; b = m & 3
        v_lshrrev_b32 v6, 2, v4               ; a = m >> 2
        v_lshlrev_b32 v7, 11, v6
        v_lshl_add_u32 v7, v5, 8, v7
        v_xor_b32 v8, v3, v5
        v_lshl_add_u32 v7, v8, 4, v7
        v_add_u32 v7, s41, v7
        """)
        for s in range(4):
            a("v_xor_b32 v8, %d, v6" % s)
            a("v_lshl_add_u32 %s, v8, 6, v7" % vr(KO + s))
        a("v_mul_u32_u24 v8, 320, v6")
        a("v_lshl_add_u32 %s, v3, 4, v8" % vr(QA))
        a("""
        v_lshrrev_b32 v8, 2, v4               ; r
        v_and_b32 v9, 3, v4                   ; cq
        v_and_b32 v10, 1, v3
        v_lshl_or_b32 v10, v10, 2, v8         ; sigma
        v_lshl_add_u32 v11, v3, 3, v8         ; 8 gg + r
        v_lshlrev_b32 v11, 8, v11
        v_lshl_add_u32 v11, v9, 3, v11
        v_add_u32 v11, %d, v11
        s_lshl_b32 s42, s28, 1
        """ % L_V)
        for u in range(2):
            a("s_add_u32 s43, s42, %d" % u)
            a("v_xor_b32 v12, s43, v10")
            a("v_lshl_add_u32 %s, v12, 5, v11" % vr(VO + u))
        WOA = 22
        a("s_lshl_b32 s42, s28, 12")
        a("s_add_u32 s42, s42, %d" % L_WO)
        a("v_lshl_add_u32 %s, v0, 4, s42" % vr(WOA))
        SEL = 28
        self.selectors(SEL, T, both_parities=False)
        self.tags()
        TG = 36
        a("v_mov_b32 %s, s%d" % (vr(TG + 2), S_T))
        a("v_mov_b32 %s, s%d" % (vr(TG + 3), S_T + 1))
        OA, SA, STA = 40, 41, 43
        a("""
        s_lshl_b32 s42, s26, 17               ; g * 131072
        s_lshl_b32 s43, s27, 7                ; c * 128
        s_add_u32 s42, s42, s43
        v_and_b32 v12, 7, v0
        v_lshlrev_b32 v12, 4, v12             ; slot * 16
        v_bfe_u32 v13, v0, 3, 1               ; b
        v_lshl_add_u32 v13, v3, 3, v13        ; 8 h + b
        s_lshl_b32 s43, s28, 1
        v_add_u32 v13, s43, v13               ; + 2 w
        v_lshl_add_u32 v13, v13, 12, v12
        s_add_u32 s43, s42, %d
        v_add_u32 %s, s43, v13
        v_lshrrev_b32 v13, 3, v0
        s_lshl_b32 s43, s28, 3
        v_add_u32 v13, s43, v13               ; 8 w + (l >> 3)
        v_lshl_add_u32 v14, v13, 12, v12
        s_add_u32 s43, s42, %d
        v_add_u32 %s, s43, v14
        s_lshl_b32 s42, s26, 11
        s_lshl_b32 s43, s27, 4
        s_add_u32 s42, s42, s43
        s_add_u32 s42, s42, %d
        v_lshl_add_u32 %s, v3, 9, s42
        """ % (H2, vr(OA), H3S, vr(SA), ST, vr(STA)))
        KF = 48
        QF = 80
        WO = 96
        self.flag_wait(F_K, 1, VZ, T, sleep=2)
        self.stamp(1)
        for t in range(2):
            for s in range(4):
                a("ds_read_b128 %s, %s offset:%d" % (vr(KF + 16 * t + 4 * s, 4), vr(KO + s), L_K + 1024 * t))
        self.flag_wait(F_Q, 1, VZ, T, sleep=1)
        self.stamp(2)
        for s in range(4):
            a("ds_read_b128 %s, %s offset:%d" % (vr(QF + 4 * s, 4), vr(QA), L_Q + 64 * s))
        self.read_mode(VZ, T)
        SC = 112
        for s in range(4):
            for t in range(2):
                a("v_mfma_f32_16x16x32_bf16 %s, %s, %s, %s" % (vr(SC + 4 * t, 4), vr(KF + 16 * t + 4 * s, 4), vr(QF + 4 * s, 4), "0" if s == 0 else vr(SC + 4 * t, 4)))
        a("s_nop 7")
        if self.mimic:
            for i in range(4):
                a("v_cvt_pk_bf16_f32 %s, %s, %s" % (vr(T + i), vr(SC + 2 * i), vr(SC + 2 * i + 1)))
            for i in range(4):
                a("v_lshlrev_b32 %s, 16, %s" % (vr(SC + 2 * i), vr(T + i)))
                a("v_and_b32 %s, 0xffff0000, %s" % (vr(SC + 2 * i + 1), vr(T + i)))
        for i in range(8):
            a("v_mul_f32 %s, 0x%x, %s" % (vr(SC + i), SCALE, vr(SC + i)))
        if self.mimic:
            for i in range(4):
                a("v_cvt_pk_bf16_f32 %s, %s, %s" % (vr(T + i), vr(SC + 2 * i), vr(SC + 2 * i + 1)))
            for i in range(4):
                a("v_lshlrev_b32 %s, 16, %s" % (vr(SC + 2 * i), vr(T + i)))
                a("v_and_b32 %s, 0xffff0000, %s" % (vr(SC + 2 * i + 1), vr(T + i)))
        MX = 44
        a("v_max3_f32 %s, %s, %s, %s" % (vr(T), vr(SC), vr(SC + 1), vr(SC + 2)))
        a("v_max3_f32 %s, %s, %s, %s" % (vr(T + 1), vr(SC + 3), vr(SC + 4), vr(SC + 5)))
        a("v_max3_f32 %s, %s, %s, %s" % (vr(T), vr(T), vr(SC + 6), vr(SC + 7)))
        a("v_max_f32 %s, %s, %s" % (vr(MX), vr(T), vr(T + 1)))
        self.xor_reduce("v_max_f32", [MX], [16, 32], T)
        a("v_lshrrev_b32 %s, 2, v4" % vr(T))
        a("v_lshlrev_b32 %s, 4, %s" % (vr(T), vr(T)))
        a("s_lshl_b32 s42, s28, 2")
        a("v_add_u32 %s, s42, %s" % (vr(T + 1), vr(T)))
        a("s_mov_b64 exec, 0x1111")
        a("ds_write_b32 %s, %s offset:%d" % (vr(T + 1), vr(MX), L_MX))
        a("s_mov_b64 exec, -1")
        self.flag_add(F_MAX, VZ, V1)
        self.flag_wait(F_MAX, 4, VZ, T + 2)
        a("ds_read_b128 %s, %s offset:%d" % (vr(T + 5, 4), vr(T), L_MX))
        a("s_waitcnt lgkmcnt(0)")
        a("v_max3_f32 %s, %s, %s, %s" % (vr(MX), vr(T + 5), vr(T + 6), vr(T + 7)))
        a("v_max_f32 %s, %s, %s" % (vr(MX), vr(MX), vr(T + 8)))
        for i in range(8):
            a("v_sub_f32 %s, %s, %s" % (vr(SC + i), vr(SC + i), vr(MX)))
        for i in range(8):
            a("v_mul_f32 %s, 0x%x, %s" % (vr(SC + i), LOG2E, vr(SC + i)))
        for i in range(8):
            a("v_exp_f32 %s, %s" % (vr(SC + i), vr(SC + i)))
        PF = 48
        a("s_nop 0")
        for i in range(4):
            a("v_cvt_pk_bf16_f32 %s, %s, %s" % (vr(T + 1 + i), vr(SC + 2 * i), vr(SC + 2 * i + 1)))
        a("v_lshlrev_b32 %s, 4, v0" % vr(T))
        a("s_lshl_b32 s42, s28, 10")
        a("v_add_u32 %s, s42, %s" % (vr(T + 5), vr(T)))
        a("ds_write_b128 %s, %s offset:%d" % (vr(T + 5), vr(T + 1, 4), L_P))
        self.flag_add(F_P, VZ, V1)
        self.flag_wait(F_P, 4, VZ, T + 6)
        for ks in range(4):
            a("ds_read_b128 %s, %s offset:%d" % (vr(PF + 4 * ks, 4), vr(T), L_P + 1024 * ks))
        self.stamp(3)
        Lns = a.newlabel("NS")
        a("s_cmp_lg_u32 s28, 0")
        a("s_cbranch_scc1 %s" % Lns)
        ON = 64
        for t in range(4):
            a("v_mov_b32 %s, 0x3f803f80" % vr(ON + t))
        a("s_waitcnt lgkmcnt(0)")
        a("s_nop 0")
        for ks in range(4):
            a("v_mfma_f32_16x16x32_bf16 %s, %s, %s, %s" % (vr(SC, 4), vr(PF + 4 * ks, 4), vr(ON, 4), "0" if ks == 0 else vr(SC, 4)))
        a("s_nop 7")
        a("v_mov_b32 %s, %s" % (vr(TG), vr(MX)))
        a("v_mov_b32 %s, %s" % (vr(TG + 1), vr(SC)))
        a("s_mov_b32 s42, 0x00100001")
        a("s_mov_b32 s43, 0x10000100")
        a("s_mov_b64 exec, s[42:43]")
        self.store_mode(STA, TG)
        a("s_mov_b64 exec, -1")
        self.flag_add(F_ST, VZ, V1)
        a(Lns + ":")
        wo_first = self.order.index("o") < self.order.index("v")

        def read_wo():
            self.flag_wait(F_WO, 1, VZ, T, sleep=0 if not wo_first else 1)
            for i in range(4):
                a("ds_read_b128 %s, %s offset:%d" % (vr(WO + 4 * i, 4), vr(WOA), 1024 * i))
        if wo_first:
            read_wo()
        self.stamp(4)
        VF = 64
        OD = 112
        for ks in range(4):
            self.flag_wait(F_V, ks + 1, VZ, T)
            if ks == 3:
                self.stamp(5)
            base = VF + 8 * (ks & 1)
            for u in range(2):
                for jh in range(2):
                    a("ds_read_b64_tr_b16 %s, %s offset:%d" % (vr(base + 4 * u + 2 * jh, 2), vr(VO + u), 8192 * ks + 1024 * jh))
            for u in range(2):
                a("s_waitcnt lgkmcnt(%d)" % (2 - 2 * u))
                a("v_mfma_f32_16x16x32_bf16 %s, %s, %s, %s" % (vr(OD + 4 * u, 4), vr(PF + 4 * ks, 4), vr(base + 4 * u, 4), "0" if ks == 0 else vr(OD + 4 * u, 4)))
        a("s_nop 7")
        a("v_mov_b32 %s, %s" % (vr(TG), vr(OD)))
        a("v_mov_b32 %s, %s" % (vr(TG + 1), vr(OD + 4)))
        self.store_mode(OA, TG)
        self.flag_add(F_OPUB, VZ, V1)
        self.stamp(6)
        if not wo_first:
            read_wo()
        AF = 64
        a("v_lshlrev_b32 %s, 3, v3" % vr(T + 3))
        self.flag_wait(F_O, 1, VZ, T)
        a("ds_read_b64 %s, %s offset:%d" % (vr(T + 1, 2), vr(T + 3), L_O))
        a("s_waitcnt lgkmcnt(0)")
        for i in range(4):
            for t in range(4):
                a("v_perm_b32 %s, %s, %s, %s" % (vr(AF + 4 * i + t), vr(T + 1 + (i >> 1)), vr(T + 1 + (i >> 1)), vr(SEL + 4 * (i & 1) + t)))
            if i:
                a("v_mfma_f32_16x16x32_bf16 %s, %s, %s, %s" % (vr(OD, 4), vr(AF + 4 * (i - 1), 4), vr(WO + 4 * (i - 1), 4), "0" if i == 1 else vr(OD, 4)))
        a("s_nop 1")
        a("v_mfma_f32_16x16x32_bf16 %s, %s, %s, %s" % (vr(OD, 4), vr(AF + 12, 4), vr(WO + 12, 4), vr(OD, 4)))
        a("s_nop 7")
        a("v_permlane32_swap_b32 %s, %s" % (vr(OD), vr(OD + 2)))
        a("v_permlane32_swap_b32 %s, %s" % (vr(OD + 1), vr(OD + 3)))
        a("s_nop 0")
        a("v_mov_b32 %s, %s" % (vr(TG), vr(OD)))
        a("v_mov_b32 %s, %s" % (vr(TG + 1), vr(OD + 1)))
        self.store_mode(SA, TG)
        self.flag_add(F_SPUB, VZ, V1)
        self.stamp(7)
        self.end(T)

    def role_c0(self):
        a = self.a
        VZ, V1 = 1, 2
        X = 4
        W = 40
        AF = 104
        SEL = 168
        ACC = 176
        T = 180
        a("L_C0:")
        a("s_setprio 3")
        a("""
        v_lshlrev_b32 v3, 4, v0
        global_load_dwordx4 %s, v3, %s
        s_lshr_b32 s40, s27, 3                ; rb
        s_lshl_b32 s41, s40, 8
        v_lshl_add_u32 v3, v0, 2, s41
        global_load_dword %s, v3, %s
        s_lshl_b32 s41, s40, 20               ; rb * 128 * 8192
        s_lshl_b32 s42, s26, 10               ; g * 512 * 2
        s_add_u32 s41, s41, s42
        s_and_b32 s42, s27, 7
        s_lshl_b32 s42, s42, 7                ; cb * 128
        s_add_u32 s41, s41, s42
        v_lshrrev_b32 v3, 3, v0
        v_lshlrev_b32 v3, 17, v3              ; 16 rows * 8192
        v_and_b32 v36, 7, v0
        v_lshl_add_u32 v3, v36, 4, v3
        v_add_u32 v3, s41, v3
        """ % (vr(X, 4), sp(S_X), vr(X + 4), sp(S_X)))
        for i in range(16):
            a("global_load_dwordx4 %s, v3, %s %s" % (vr(W + 4 * i, 4), sp(S_WQ), self.nt_w))
            if i < 15:
                a("v_add_u32 v3, 0x2000, v3")
        a("s_barrier")
        self.stamp(1)
        self.selectors(SEL, T, both_parities=True)
        a("s_waitcnt vmcnt(16)")
        self.stamp(2)
        self.layernorm_rows(X, L_XQ, VZ)
        self.tags()
        a("s_waitcnt lgkmcnt(0)")
        self.stamp(3)
        self.tile_gemv(W, X + 8, SEL, AF, ACC, 0)
        self.stamp(4)
        a("v_mov_b32 %s, s%d" % (vr(ACC + 2), S_T1X))
        a("v_mov_b32 %s, s%d" % (vr(ACC + 3), S_T1X + 1))
        a("""
        s_lshl_b32 s41, s26, 14               ; g * 16384
        s_lshr_b32 s42, s27, 3
        s_lshl_b32 s42, s42, 12               ; rb * 4096
        s_add_u32 s41, s41, s42
        s_and_b32 s42, s27, 7
        s_lshl_b32 s42, s42, 9                ; cb * 512
        s_add_u32 s41, s41, s42
        s_add_u32 s41, s41, %d
        v_lshrrev_b32 v3, 4, v0               ; 2 hi + g'
        v_lshlrev_b32 v3, 3, v3
        v_and_b32 v36, 7, v0
        v_add_u32 v3, v3, v36                 ; pos = 16 hi + 8 g' + n
        v_lshl_add_u32 v3, v3, 4, s41
        v_add_u32 v37, %d, v3
        """ % (H1, REGB))
        self.flag_wait(F_INIT, 1, VZ, T)
        a("s_mov_b32 s42, 0x00ff00ff")
        a("s_mov_b32 s43, 0x00ff00ff")
        a("s_mov_b64 exec, s[42:43]")
        a("global_store_dwordx4 v3, %s, %s" % (vr(ACC, 4), sp(S_WS)))
        a("global_store_dwordx4 v37, %s, %s sc1" % (vr(ACC, 4), sp(S_WS)))
        a("s_mov_b64 exec, -1")
        self.flag_add(F_QPUB, VZ, V1)
        self.stamp(5)
        SA, OA = 4, 5
        G = 8
        a("""
        s_lshl_b32 s41, s26, 11               ; g * 2048
        s_lshr_b32 s42, s27, 3
        s_lshl_b32 s42, s42, 9                ; head * 512
        s_add_u32 s41, s41, s42
        s_add_u32 s41, s41, %d
        v_lshrrev_b32 v3, 3, v0
        v_lshl_add_u32 %s, v3, 4, s41
        s_lshl_b32 s41, s26, 17
        s_lshl_b32 s42, s27, 12
        s_add_u32 s41, s41, s42
        s_add_u32 s41, s41, %d
        v_lshl_add_u32 %s, v0, 4, s41
        """ % (ST, vr(SA), H2, vr(OA)))
        self.flag_wait(F_Q, 1, VZ, T, sleep=2)
        self.read_mode(VZ, T)
        self.flag_wait(F_ST, 1, VZ, T, sleep=1)
        self.poll([(G + 4 * i, SA, 128 * i) for i in range(4)], S_MB)
        self.stamp(6)
        MX = 24
        a("v_max3_f32 %s, %s, %s, %s" % (vr(MX), vr(G), vr(G + 4), vr(G + 8)))
        a("v_max_f32 %s, %s, %s" % (vr(MX), vr(MX), vr(G + 12)))
        self.xor_reduce("v_max_f32", [MX], [8, 16, 32], T)
        WT = 26
        for i in range(4):
            a("v_sub_f32 %s, %s, %s" % (vr(WT + i), vr(G + 4 * i), vr(MX)))
        for i in range(4):
            a("v_mul_f32 %s, 0x%x, %s" % (vr(WT + i), LOG2E, vr(WT + i)))
        for i in range(4):
            a("v_exp_f32 %s, %s" % (vr(WT + i), vr(WT + i)))
        a("s_nop 0")
        LS = 25
        a("v_mul_f32 %s, %s, %s" % (vr(LS), vr(WT), vr(G + 1)))
        for i in range(1, 4):
            a("v_fmac_f32 %s, %s, %s" % (vr(LS), vr(WT + i), vr(G + 4 * i + 1)))
        self.xor_reduce("v_add_f32", [LS], [8, 16, 32], T)
        a("v_rcp_f32 %s, %s" % (vr(T), vr(LS)))
        a("s_nop 0")
        a("v_fma_f32 %s, -%s, %s, 1.0" % (vr(T + 1), vr(T), vr(LS)))
        a("v_fmac_f32 %s, %s, %s" % (vr(T), vr(T + 1), vr(T)))
        for i in range(4):
            a("v_mul_f32 %s, %s, %s" % (vr(WT + i), vr(WT + i), vr(T)))
        self.flag_wait(F_OPUB, 4, VZ, T)
        self.stamp(7)
        self.poll([(G + 4 * i, OA, 1024 * i) for i in range(4)], S_MB)
        self.stamp(8)
        A0, A1 = 30, 31
        a("v_mul_f32 %s, %s, %s" % (vr(A0), vr(WT), vr(G)))
        a("v_mul_f32 %s, %s, %s" % (vr(A1), vr(WT), vr(G + 1)))
        for i in range(1, 4):
            a("v_fmac_f32 %s, %s, %s" % (vr(A0), vr(WT + i), vr(G + 4 * i)))
            a("v_fmac_f32 %s, %s, %s" % (vr(A1), vr(WT + i), vr(G + 4 * i + 1)))
        self.xor_reduce("v_add_f32", [A0, A1], [8, 16, 32], T)
        a("v_cvt_pk_bf16_f32 %s, %s, %s" % (vr(A0), vr(A0), vr(A1)))
        a("v_lshlrev_b32 %s, 2, v0" % vr(T))
        a("s_mov_b64 exec, 0xff")
        a("ds_write_b32 %s, %s offset:%d" % (vr(T), vr(A0), L_O))
        a("s_mov_b64 exec, -1")
        self.flag_add(F_O, VZ, V1)
        self.stamp(9)
        self.end(T)

    def role_c1(self):
        a = self.a
        VZ, V1 = 1, 2
        X = 4
        W = 40
        AF = 104
        SEL = 168
        ACC = 176
        T = 180
        a("L_C1:")
        a("s_setprio 3")
        Z = 36
        for i in range(4):
            a("v_mov_b32 %s, 0" % vr(Z + i))
        a("""
        s_lshl_b32 s41, s26, 17
        s_lshl_b32 s42, s27, 12
        s_add_u32 s41, s41, s42
        v_lshl_add_u32 v3, v0, 4, s41
        v_add_u32 v4, %d, v3
        v_add_u32 v5, %d, v3
        v_add_u32 v3, %d, v3
        """ % (H3S, H3G, H2))
        for r in (3, 4):
            for i in range(4):
                a("global_store_dwordx4 v%d, %s, %s offset:%d" % (r, vr(Z, 4), sp(S_WS), 1024 * i))
        Ls = a.newlabel("I")
        a("s_cmp_eq_u32 s49, 0")
        a("s_cbranch_scc1 %s" % Ls)
        for i in range(4):
            a("global_store_dwordx4 v5, %s, %s offset:%d" % (vr(Z, 4), sp(S_WS), 1024 * i))
        a(Ls + ":")
        a("""
        s_lshl_b32 s41, s26, 14
        s_lshr_b32 s42, s27, 3
        s_lshl_b32 s42, s42, 12
        s_add_u32 s41, s41, s42
        s_and_b32 s42, s27, 7
        s_lshl_b32 s42, s42, 9
        s_add_u32 s41, s41, s42
        s_add_u32 s41, s41, %d
        v_lshl_add_u32 v3, v0, 4, s41
        s_lshl_b32 s41, s26, 11
        s_lshr_b32 s42, s27, 3
        s_lshl_b32 s42, s42, 9
        s_add_u32 s41, s41, s42
        s_add_u32 s41, s41, %d
        v_lshl_add_u32 v4, v0, 4, s41
        s_lshl_b32 s41, s26, 14
        s_lshl_b32 s42, s27, 9
        s_add_u32 s44, s41, s42
        s_add_u32 s44, s44, %d
        v_lshl_add_u32 v5, v0, 4, s44
        s_mov_b32 exec_lo, -1
        s_mov_b32 exec_hi, 0
        global_store_dwordx4 v3, %s, %s
        """ % (H1, ST, HB, vr(Z, 4), sp(S_WS)))
        Ls = a.newlabel("I")
        a("""
        s_and_b32 s41, s27, 7
        s_cmp_lg_u32 s41, 0
        s_cbranch_scc1 %s
        global_store_dwordx4 v4, %s, %s
        %s:
        """ % (Ls, vr(Z, 4), sp(S_WS), Ls))
        Ls = a.newlabel("I")
        a("""
        s_cmp_eq_u32 s%d, 0
        s_cbranch_scc1 %s
        global_store_dwordx4 v5, %s, %s
        %s:
        s_mov_b64 exec, -1
        """ % (S_ISB, Ls, vr(Z, 4), sp(S_WS), Ls))
        a("""
        v_lshlrev_b32 v3, 4, v0
        global_load_dwordx4 %s, v3, %s
        s_and_b32 s40, s27, 3                 ; rb
        s_lshl_b32 s41, s40, 8
        v_lshl_add_u32 v3, v0, 2, s41
        global_load_dword %s, v3, %s
        """ % (vr(X, 4), sp(S_X), vr(X + 4), sp(S_X)))
        a("s_barrier")
        a("s_waitcnt vmcnt(0)")
        self.flag_add(F_INIT, VZ, V1)
        self.stamp(1)
        Lb = a.newlabel("B")
        a("s_cmp_lg_u32 s%d, 0" % S_ISB)
        a("s_cbranch_scc1 %s" % Lb)
        self.end(T)
        a(Lb + ":")
        self.selectors(SEL, T, both_parities=True)
        self.layernorm_rows(X, L_XH, VZ)
        self.tags()
        a("v_lshlrev_b32 v3, 4, v0")
        a("v_add_u32 v37, %d, v3" % L_W1)
        a("v_add_u32 v38, %d, v3" % L_W2)
        XN = X + 8
        for i in range(16):
            for t in range(4):
                a("v_perm_b32 %s, %s, %s, %s" % (vr(AF + 4 * i + t), vr(XN + (i >> 1)), vr(XN + (i >> 1)), vr(SEL + 4 * (i & 1) + t)))
        self.flag_wait(F_W1, 1, VZ, T, sleep=2)
        self.stamp(2)
        for i in range(16):
            a("ds_read_b128 %s, v37 offset:%d" % (vr(W + 4 * i, 4), 1024 * i))
        for i in range(16):
            a("s_waitcnt lgkmcnt(%d)" % min(15, 15 - i))
            a("v_mfma_f32_16x16x32_bf16 %s, %s, %s, %s" % (vr(ACC, 4), vr(AF + 4 * i, 4), vr(W + 4 * i, 4), "0" if i == 0 else vr(ACC, 4)))
        a("s_nop 7")
        a("v_permlane32_swap_b32 %s, %s" % (vr(ACC), vr(ACC + 2)))
        a("v_permlane32_swap_b32 %s, %s" % (vr(ACC + 1), vr(ACC + 3)))
        a("s_nop 1")
        a("v_add_f32_dpp %s, %s, %s row_ror:8 row_mask:0xf bank_mask:0xf" % (vr(ACC), vr(ACC + 2), vr(ACC)))
        a("v_add_f32_dpp %s, %s, %s row_ror:8 row_mask:0xf bank_mask:0xf" % (vr(ACC + 1), vr(ACC + 3), vr(ACC + 1)))
        self.stamp(3)
        a("v_mov_b32 %s, s%d" % (vr(ACC + 2), S_T))
        a("v_mov_b32 %s, s%d" % (vr(ACC + 3), S_T + 1))
        a("""
        v_lshrrev_b32 v3, 4, v0
        v_lshlrev_b32 v3, 3, v3
        v_and_b32 v36, 7, v0
        v_add_u32 v3, v3, v36
        v_lshl_add_u32 v3, v3, 4, s44
        s_lshr_b32 s41, s27, 2
        s_lshl_b32 s41, s41, 11               ; cbl * 2048
        s_lshl_b32 s42, s26, 14
        s_add_u32 s41, s41, s42
        s_and_b32 s42, s27, 3
        s_lshl_b32 s42, s42, 7
        s_add_u32 s41, s41, s42
        s_add_u32 s41, s41, %d
        v_bfe_u32 v4, v0, 3, 2
        v_lshlrev_b32 v4, 9, v4
        v_lshl_add_u32 v4, v36, 4, v4
        v_add_u32 v4, s41, v4
        """ % HB)
        self.flag_wait(F_Q, 1, VZ, T, sleep=1)
        self.read_mode(VZ, T)
        a("s_mov_b32 s42, 0x00ff00ff")
        a("s_mov_b32 s43, 0x00ff00ff")
        a("s_mov_b64 exec, s[42:43]")
        self.store_mode(3, ACC)
        a("s_mov_b64 exec, -1")
        G = 8
        self.poll([(G, 4, 0)], S_MB)
        self.stamp(4)
        self.xor_reduce("v_add_f32", [G, G + 1], [8, 16], T)
        a("v_max_f32 %s, 0, %s" % (vr(G), vr(G)))
        a("v_max_f32 %s, 0, %s" % (vr(G + 1), vr(G + 1)))
        a("v_cvt_pk_bf16_f32 %s, %s, %s" % (vr(G), vr(G), vr(G + 1)))
        a("v_lshrrev_b32 %s, 4, v0" % vr(T))
        a("v_lshlrev_b32 %s, 3, %s" % (vr(T), vr(T)))
        a("v_add_u32 %s, 4, %s" % (vr(T + 1), vr(T)))
        a("ds_bpermute_b32 %s, %s, %s" % (vr(G + 4), vr(T), vr(G)))
        a("ds_bpermute_b32 %s, %s, %s" % (vr(G + 5), vr(T + 1), vr(G)))
        self.selectors(SEL, T, both_parities=False)
        a("""
        s_lshl_b32 s42, s26, 17
        s_lshl_b32 s43, s27, 7
        s_add_u32 s42, s42, s43
        s_add_u32 s42, s42, %d
        v_lshrrev_b32 v3, 3, v0
        v_lshlrev_b32 v3, 12, v3
        v_lshl_add_u32 v3, v36, 4, v3
        v_add_u32 v3, s42, v3
        s_waitcnt lgkmcnt(0)
        """ % H3G)
        for i in range(4):
            for t in range(4):
                a("v_perm_b32 %s, %s, %s, %s" % (vr(AF + 4 * i + t), vr(G + 4 + (i >> 1)), vr(G + 4 + (i >> 1)), vr(SEL + 4 * (i & 1) + t)))
        self.flag_wait(F_W2, 1, VZ, T, sleep=1)
        for i in range(16):
            a("ds_read_b128 %s, v38 offset:%d" % (vr(W + 4 * i, 4), 1024 * i))
        for w in range(4):
            for i in range(4):
                a("s_waitcnt lgkmcnt(%d)" % min(15, 15 - (4 * w + i)))
                a("v_mfma_f32_16x16x32_bf16 %s, %s, %s, %s" % (vr(AF + 16 + 4 * w, 4), vr(AF + 4 * i, 4), vr(W + 16 * w + 4 * i, 4), "0" if i == 0 else vr(AF + 16 + 4 * w, 4)))
        a("s_nop 7")
        for w in range(4):
            d = AF + 16 + 4 * w
            a("v_permlane32_swap_b32 %s, %s" % (vr(d), vr(d + 2)))
            a("v_permlane32_swap_b32 %s, %s" % (vr(d + 1), vr(d + 3)))
        a("s_nop 0")
        for w in range(4):
            d = AF + 16 + 4 * w
            a("v_mov_b32 %s, s%d" % (vr(d + 2), S_T))
            a("v_mov_b32 %s, s%d" % (vr(d + 3), S_T + 1))
        for w in range(4):
            self.store_mode(3, AF + 16 + 4 * w)
            if w < 3:
                a("v_add_u32 v3, 0x8000, v3")
        self.stamp(5)
        self.end(T)

    def role_c2(self):
        a = self.a
        VZ, V1 = 1, 2
        T = 100
        G = 8
        a("L_C2:")
        a("s_setprio 3")
        a("v_lshlrev_b32 v3, 2, v0")
        a("s_mov_b64 exec, 0xffff")
        a("ds_write_b32 v3, v1 offset:%d" % L_F)
        a("s_mov_b64 exec, -1")
        XF, FA, OUTA = 80, 81, 82
        a("""
        s_max_u32 s45, s27, 28
        s_sub_u32 s45, s45, 28
        s_lshl_b32 s45, s45, 3
        s_add_u32 s45, s45, s26               ; column set c'
        s_lshr_b32 s41, s45, 3
        s_lshl_b32 s41, s41, 7                ; 128 (c' >> 3)
        s_and_b32 s42, s45, 1
        s_lshl_b32 s42, s42, 6                ; 64 (c' & 1)
        s_add_u32 s41, s41, s42
        s_bfe_u32 s42, s45, 0x10001
        s_lshl_b32 s42, s42, 2
        s_add_u32 s41, s41, s42
        s_bfe_u32 s42, s45, 0x10002
        s_lshl_b32 s42, s42, 1
        s_add_u32 s41, s41, s42
        v_and_b32 v3, 7, v0
        v_lshlrev_b32 v3, 3, v3
        v_add_u32 v3, s41, v3                 ; first column of the pair
        v_lshlrev_b32 %s, 1, v3               ; byte offset in x / out
        s_lshl_b32 s41, s45, 11
        s_add_u32 s41, s41, %d
        v_lshrrev_b32 v3, 3, v0
        v_lshlrev_b32 v3, 8, v3
        v_and_b32 v83, 7, v0
        v_lshl_add_u32 v3, v83, 4, v3
        v_add_u32 %s, s41, v3
        """ % (vr(OUTA), H3B, vr(FA)))
        Lnf = a.newlabel("NF")
        a("s_cmp_lt_u32 s27, 28")
        a("s_cbranch_scc1 %s" % Lnf)
        a("global_load_dword %s, %s, %s" % (vr(XF), vr(OUTA), sp(S_X)))
        a("global_load_dwordx4 v[84:87], %s, %s sc1" % (vr(FA), sp(S_WS)))
        a("global_load_dwordx4 v[88:91], %s, %s offset:128 sc1" % (vr(FA), sp(S_WS)))
        a(Lnf + ":")
        a("s_waitcnt lgkmcnt(0)")
        a("s_barrier")
        a("""
        s_lshl_b32 s41, s26, 14
        s_add_u32 s41, s41, %d
        v_lshl_add_u32 v4, v0, 4, s41
        v_add_u32 v5, 0x1000, v4
        v_add_u32 v6, 0x2000, v4
        v_add_u32 v7, 0x3000, v4
        """ % H1)
        qloads = [(G + 16 * hd + 4 * rb, 4 + rb, 1024 * hd) for hd in range(4) for rb in range(4)]
        self.tags()
        self.stamp(1)
        self.flag_wait(F_QPUB, 1, VZ, T, sleep=1)
        self.stamp(2)
        Lslow, Lgot = a.newlabel("Q"), a.newlabel("Q")
        if not self.force_global:
            self.poll(qloads, S_WS, tag=S_T1X, limit=A_TIMEOUT, on_timeout=Lslow)
            a("s_branch %s" % Lgot)
        a(Lslow + ":")
        a("s_waitcnt vmcnt(0)")
        a("s_add_u32 s46, s%d, %d" % (S_WS, REGB))
        a("s_addc_u32 s47, s%d, 0" % (S_WS + 1))
        L = a.newlabel("P")
        a("s_mov_b32 s%d, 0" % S_CNT)
        a(L + ":")
        for (vd, va, off) in qloads:
            a("global_load_dwordx4 %s, %s, s[46:47] offset:%d sc1" % (vr(vd, 4), vr(va), off))
        a("s_add_u32 s%d, s%d, 1" % (S_CNT, S_CNT))
        a("s_cmp_gt_u32 s%d, %d" % (S_CNT, POLL_MAX))
        a("s_cbranch_scc1 L_end")
        a("s_waitcnt vmcnt(0)")
        a("v_mov_b32 %s, 0" % vr(T))
        a("v_mov_b32 %s, 0" % vr(T + 1))
        for (vd, va, off) in qloads:
            a("v_xor_b32 %s, s%d, %s" % (vr(T + 2), S_T, vr(vd + 2)))
            a("v_xor_b32 %s, s%d, %s" % (vr(T + 3), S_T + 1, vr(vd + 3)))
            a("v_and_b32 %s, 0xfffffff0, %s" % (vr(T + 3), vr(T + 3)))
            a("v_or3_b32 %s, %s, %s, %s" % (vr(T), vr(T), vr(T + 2), vr(T + 3)))
            a("v_xor_b32 %s, s%d, %s" % (vr(T + 3), S_T1X + 1, vr(vd + 3)))
            a("v_or_b32 %s, %s, %s" % (vr(T + 1), vr(T + 1), vr(T + 3)))
        a("v_cmp_ne_u32 vcc, 0, %s" % vr(T))
        a("s_cbranch_vccnz %s" % L)
        a("v_cmp_ne_u32 vcc, 0, %s" % vr(T + 1))
        a("s_cbranch_vccz %s" % Lgot)
        self.flag_add(F_REM, VZ, V1)
        a(Lgot + ":")
        self.stamp(3)
        for hd in range(4):
            b = G + 16 * hd
            for e in range(2):
                a("v_add_f32 %s, %s, %s" % (vr(b + e), vr(b + e), vr(b + 4 + e)))
                a("v_add_f32 %s, %s, %s" % (vr(b + 8 + e), vr(b + 8 + e), vr(b + 12 + e)))
            for e in range(2):
                a("v_add_f32 %s, %s, %s" % (vr(b + e), vr(b + e), vr(b + 8 + e)))
            a("v_cvt_pk_bf16_f32 %s, %s, %s" % (vr(b), vr(b), vr(b + 1)))
        a("""
        v_lshrrev_b32 v72, 5, v0              ; cb_local
        v_lshlrev_b32 v72, 7, v72             ; 64 columns * 2 B
        v_and_b32 v73, 7, v0
        v_lshl_add_u32 v72, v73, 4, v72       ; 8 n * 2 B
        v_bfe_u32 v73, v0, 3, 1
        v_lshl_add_u32 v72, v73, 3, v72       ; 4 g' * 2 B
        v_bfe_u32 v73, v0, 4, 1
        v_lshl_add_u32 v72, v73, 2, v72       ; 2 s * 2 B
        """)
        for hd in range(4):
            a("ds_write_b32 v72, %s offset:%d" % (vr(G + 16 * hd), L_Q + 320 * hd))
        self.flag_add(F_Q, VZ, V1)
        self.stamp(4)
        SA, GA, BA = 4, 5, 6
        a("""
        s_lshl_b32 s41, s26, 17
        s_lshl_b32 s42, s27, 12
        s_add_u32 s41, s41, s42
        v_lshl_add_u32 v3, v0, 4, s41
        v_add_u32 %s, %d, v3
        v_add_u32 %s, %d, v3
        s_lshl_b32 s41, s27, 11
        s_lshl_b32 s42, s26, 8
        s_add_u32 s41, s41, s42
        s_add_u32 s41, s41, %d
        v_lshl_add_u32 %s, v0, 4, s41
        """ % (vr(SA), H3S, vr(GA), H3G, H3B, vr(BA)))
        self.read_mode(VZ, T)
        GS = 40
        GG, GAD, GW = 24, 44, 48
        a("v_mov_b32 %s, 0" % vr(GS))
        a("v_mov_b32 %s, 0" % vr(GS + 1))
        Lng = a.newlabel("NG")
        a("s_cmp_eq_u32 s49, 0")
        a("s_cbranch_scc1 %s" % Lng)
        a("v_lshrrev_b32 v3, 3, v0")
        for i in range(4):
            a("v_add_u32 v52, %d, v3" % (8 * i))
            a("v_cmp_gt_u32 vcc, s49, v52")
            a("v_add_u32 v53, %d, %s" % (1024 * i, vr(GA)))
            a("v_mov_b32 v54, 1.0")
            a("v_cndmask_b32 %s, %s, v53, vcc" % (vr(GAD + i), vr(GA)))
            a("v_cndmask_b32 %s, v1, v54, vcc" % vr(GW + i))
        self.flag_wait(F_OPUB, 4, VZ, T, sleep=1)
        self.poll([(GG + 4 * i, GAD + i, 0) for i in range(4)], S_MB)
        for i in range(4):
            for e in range(2):
                a("v_fmac_f32 %s, %s, %s" % (vr(GS + e), vr(GW + i), vr(GG + 4 * i + e)))
        a(Lng + ":")
        self.stamp(5)
        self.flag_wait(F_SPUB, 4, VZ, T)
        self.stamp(6)
        self.poll([(G + 4 * i, SA, 1024 * i) for i in range(4)], S_MB)
        self.stamp(7)
        for e in range(2):
            a("v_add_f32 %s, %s, %s" % (vr(G + e), vr(G + e), vr(G + 4 + e)))
            a("v_add_f32 %s, %s, %s" % (vr(G + 8 + e), vr(G + 8 + e), vr(G + 12 + e)))
        for e in range(2):
            a("v_add_f32 %s, %s, %s" % (vr(G + e), vr(G + e), vr(G + 8 + e)))
        self.xor_reduce("v_add_f32", [G, G + 1, GS, GS + 1], [8, 16, 32], T)
        a("""
        v_bfe_u32 v3, v0, 3, 1
        v_cmp_eq_u32 vcc, 1, v3
        v_mov_b32 %s, s%d
        v_mov_b32 %s, s%d
        v_cndmask_b32 %s, %s, %s, vcc
        v_cndmask_b32 %s, %s, %s, vcc
        s_mov_b64 exec, 0xffff
        global_store_dwordx4 %s, %s, %s sc1
        s_mov_b64 exec, -1
        """ % (vr(G + 2), S_T, vr(G + 3), S_T + 1, vr(G), vr(G), vr(GS), vr(G + 1), vr(G + 1), vr(GS + 1), vr(BA), vr(G, 4), sp(S_WS)))
        self.stamp(8)
        Lf = a.newlabel("F")
        a("s_cmp_ge_u32 s27, 28")
        a("s_cbranch_scc1 %s" % Lf)
        self.end(T)
        a(Lf + ":")
        G = 12
        self.poll([(G, FA, 0), (G + 4, FA, 128)], S_WS)
        self.stamp(9)
        self.xor_reduce("v_add_f32", [G, G + 1, G + 4, G + 5], [8, 16, 32], T)
        a("v_cvt_pk_bf16_f32 %s, %s, %s" % (vr(G), vr(G), vr(G + 1)))
        a("v_cvt_pk_bf16_f32 %s, %s, %s" % (vr(G + 4), vr(G + 4), vr(G + 5)))
        a("v_and_b32 %s, 0xffff0000, %s" % (vr(G + 1), vr(G)))
        a("v_lshlrev_b32 %s, 16, %s" % (vr(G), vr(G)))
        a("v_and_b32 %s, 0xffff0000, %s" % (vr(G + 5), vr(G + 4)))
        a("v_lshlrev_b32 %s, 16, %s" % (vr(G + 4), vr(G + 4)))
        for e in range(2):
            a("v_mul_f32 %s, 0x%x, %s" % (vr(G + 8 + e), LOG2E ^ 0x80000000, vr(G + 4 + e)))
        for e in range(2):
            a("v_exp_f32 %s, %s" % (vr(G + 8 + e), vr(G + 8 + e)))
        a("s_nop 0")
        for e in range(2):
            a("v_add_f32 %s, 1.0, %s" % (vr(G + 8 + e), vr(G + 8 + e)))
        for e in range(2):
            a("v_rcp_f32 %s, %s" % (vr(G + 8 + e), vr(G + 8 + e)))
        a("s_nop 0")
        for e in range(2):
            a("v_mul_f32 %s, %s, %s" % (vr(G + 4 + e), vr(G + 4 + e), vr(G + 8 + e)))
        a("v_cvt_pk_bf16_f32 %s, %s, %s" % (vr(G + 4), vr(G + 4), vr(G + 5)))
        a("v_and_b32 %s, 0xffff0000, %s" % (vr(G + 5), vr(G + 4)))
        a("v_lshlrev_b32 %s, 16, %s" % (vr(G + 4), vr(G + 4)))
        for e in range(2):
            a("v_mul_f32 %s, %s, %s" % (vr(G + e), vr(G + e), vr(G + 4 + e)))
        a("v_cvt_pk_bf16_f32 %s, %s, %s" % (vr(G), vr(G), vr(G + 1)))
        a("v_and_b32 %s, 0xffff0000, %s" % (vr(G + 1), vr(G)))
        a("v_lshlrev_b32 %s, 16, %s" % (vr(G), vr(G)))
        a("v_and_b32 %s, 0xffff0000, %s" % (vr(G + 5), vr(XF)))
        a("v_lshlrev_b32 %s, 16, %s" % (vr(G + 4), vr(XF)))
        for e in range(2):
            a("v_add_f32 %s, %s, %s" % (vr(G + e), vr(G + e), vr(G + 4 + e)))
        a("v_cvt_pk_bf16_f32 %s, %s, %s" % (vr(G), vr(G), vr(G + 1)))
        a("s_mov_b64 exec, 0xff")
        a("global_store_dword %s, %s, %s" % (vr(OUTA), vr(G), sp(S_OUT)))
        Le = a.newlabel("E")
        a("s_cmp_lg_u32 s45, 0")
        a("s_cbranch_scc1 %s" % Le)
        a("s_mov_b64 exec, 1")
        a("v_mov_b32 %s, s%d" % (vr(G + 2), S_T))
        a("v_mov_b32 %s, s%d" % (vr(G + 3), S_T + 1))
        a("global_store_dwordx2 v1, %s, %s offset:%d sc1" % (vr(G + 2, 2), sp(S_WS), EPOCH))
        a(Le + ":")
        a("s_mov_b64 exec, -1")
        self.stamp(10)
        self.end(T)

    def build(self):
        self.prologue()
        self.role_a()
        self.role_c0()
        self.role_c1()
        self.role_c2()
        self.role_l()
        self.a("L_end:\ns_endpgm\nL_code_end:")
        return wrap(self.a.text(), 256, 512, LDS_BYTES, 192, sgpr=96)


def generate(**kw):
    return Gen(**kw).build()


if __name__ == "__main__":
    out = sys.argv[1] if len(sys.argv) > 1 else "cdna_kernels/%s.s" % NAME
    kw = {}
    for arg in sys.argv[2:]:
        k, v = arg.split("=")
        kw[k] = {"True": True, "False": False}.get(v, v)
    open(out, "w").write(generate(**kw))
    print("wrote", out)
```

```python
import sys
from asmgen import Asm, wrap, NAME

REGB = 0x400000
EPOCH = 0x0
H1 = 0x10000
ST = 0x50000
H3B = 0x70000
HB = 0x80000
H2 = 0x100000
H3S = 0x200000
H3G = 0x300000
STAMP_OFF = 256 << 20

L_Q = 0x0000
L_P = 0x0800
L_MX = 0x1800
L_O = 0x1840
L_XQ = 0x1880
L_XH = 0x1980
L_F = 0x1A80
L_K = 0x2000
L_V = 0xA000
L_WO = 0x12000
L_W2 = 0x16000
L_W1 = 0x1A000
F_INIT, F_QPUB, F_Q, F_REM, F_K, F_MAX, F_P, F_ST, F_V, F_OPUB, F_O, F_W1, F_SPUB, F_WO, F_W2, F_GPUB = [L_F + 4 * i for i in range(16)]
LDS_BYTES = 0x1E000

S_X, S_K, S_V, S_WQ, S_WO, S_W1, S_W2, S_OUT, S_WS = 4, 6, 8, 10, 12, 16, 18, 20, 24
S_G, S_C, S_W = 26, 27, 28
S_T = 30
S_XCC = 32
S_MODE = 33
S_MB = 34
S_T1X = 36
S_ISB = 38
S_CNT = 39
S_TMP = 40
S_STAMP = 60

LOG2E = 0x3fb8aa3b
SCALE = 0x3db504f3
A_TIMEOUT = 64
SPIN_MAX = 1 << 20
POLL_MAX = 1 << 16


def sp(n):
    return "s[%d:%d]" % (n, n + 1)


def vr(n, k=1):
    return "v%d" % n if k == 1 else "v[%d:%d]" % (n, n + k - 1)


class Gen:
    def __init__(self, stamps=False, nt_kv="nt", nt_w="nt", force_global=False, mimic=True, window=16, nb_lo=28, nb_hi=0, order="k1o2v", code_pf=0, dbg=0):
        self.a = Asm()
        self.window = int(window)
        self.nb_lo = int(nb_lo)
        self.nb_hi = int(nb_hi)
        self.order = order
        self.code_pf = int(code_pf)
        self.dbg = int(dbg)
        self.role = None
        if self.dbg:
            self.stamps = stamps = True
        assert 4 * self.nb_lo + 4 * self.nb_hi == 112 and self.nb_lo % 4 == 0 and self.nb_hi % 4 == 0
        self.stamps = stamps
        self.nt_kv = nt_kv
        self.nt_w = nt_w
        self.force_global = force_global
        self.mimic = mimic
        self.nstamp = 0

    def stamp(self, idx):
        if self.stamps:
            self.a("s_memrealtime %s" % sp(S_STAMP + 2 * idx))

    def flag_add(self, flag, vz, vone):
        a = self.a
        a("s_mov_b64 exec, 1")
        a("ds_add_u32 %s, %s offset:%d" % (vr(vz), vr(vone), flag))
        a("s_mov_b64 exec, -1")

    def flag_wait(self, flag, n, vz, vt, sleep=0):
        a = self.a
        L = a.newlabel("W")
        a("s_mov_b32 s%d, 0" % S_CNT)
        a(L + ":")
        a("ds_read_b32 %s, %s offset:%d" % (vr(vt), vr(vz), flag))
        a("s_add_u32 s%d, s%d, 1" % (S_CNT, S_CNT))
        a("s_cmp_gt_u32 s%d, %d" % (S_CNT, SPIN_MAX))
        a("s_cbranch_scc1 L_end")
        a("s_waitcnt lgkmcnt(0)")
        a("v_readfirstlane_b32 s%d, %s" % (S_TMP, vr(vt)))
        if sleep:
            L2 = a.newlabel("W")
            a("s_cmp_ge_u32 s%d, %d" % (S_TMP, n))
            a("s_cbranch_scc1 %s" % L2)
            a("s_sleep %d" % sleep)
            a("s_branch %s" % L)
            a(L2 + ":")
        else:
            a("s_cmp_lt_u32 s%d, %d" % (S_TMP, n))
            a("s_cbranch_scc1 %s" % L)

    def store_mode(self, vaddr, vdata, n=4):
        a = self.a
        L1, L2 = a.newlabel("S"), a.newlabel("S")
        op = "global_store_dwordx%d" % n
        a("s_cmp_lg_u32 s%d, 0" % S_MODE)
        a("s_cbranch_scc1 %s" % L1)
        a("%s %s, %s, %s" % (op, vr(vaddr), vr(vdata, n), sp(S_MB)))
        a("s_branch %s" % L2)
        a(L1 + ":")
        a("%s %s, %s, %s sc1" % (op, vr(vaddr), vr(vdata, n), sp(S_MB)))
        a(L2 + ":")

    def poll(self, loads, base, tag=S_T, limit=POLL_MAX, on_timeout="L_end", pre=None):
        a = self.a
        L = a.newlabel("P")
        a("s_mov_b32 s%d, 0" % S_CNT)
        a(L + ":")
        for (vd, va, off) in loads:
            a("global_load_dwordx4 %s, %s, %s offset:%d sc1" % (vr(vd, 4), vr(va), sp(base), off))
        a("s_add_u32 s%d, s%d, 1" % (S_CNT, S_CNT))
        a("s_cmp_gt_u32 s%d, %d" % (S_CNT, limit))
        a("s_cbranch_scc1 %s" % on_timeout)
        n = len(loads)
        for i, (vd, va, off) in enumerate(loads):
            a("s_waitcnt vmcnt(%d)" % (n - 1 - i))
            dst = "vcc" if i == 0 else sp(S_TMP)
            a("v_cmp_ne_u64 %s, %s, %s" % (dst, vr(vd + 2, 2), sp(tag)))
            if i:
                a("s_or_b64 vcc, vcc, %s" % sp(S_TMP))
        a("s_cbranch_vccnz %s" % L)

    def xor_reduce(self, op, regs, steps, tmp):
        a = self.a
        for st in steps:
            if st in (16, 32):
                ins = "v_permlane16_swap_b32" if st == 16 else "v_permlane32_swap_b32"
                for i, r in enumerate(regs):
                    a("v_mov_b32 %s, %s" % (vr(tmp + i), vr(r)))
                a("s_nop 1")
                for i, r in enumerate(regs):
                    a("%s %s, %s" % (ins, vr(r), vr(tmp + i)))
                a("s_nop 1")
                for i, r in enumerate(regs):
                    a("%s %s, %s, %s" % (op, vr(r), vr(r), vr(tmp + i)))
            else:
                ctl = {1: "quad_perm:[1,0,3,2]", 2: "quad_perm:[2,3,0,1]", "hm": "row_half_mirror", "m": "row_mirror", 8: "row_ror:8"}[st]
                a("s_nop 1")
                for r in regs:
                    a("%s_dpp %s, %s, %s %s row_mask:0xf bank_mask:0xf" % (op, vr(r), vr(r), vr(r), ctl))

    def read_mode(self, vz, vt):
        a = self.a
        a("ds_read_b32 %s, %s offset:%d" % (vr(vt), vr(vz), F_REM))
        a("s_waitcnt lgkmcnt(0)")
        a("v_readfirstlane_b32 s%d, %s" % (S_MODE, vr(vt)))
        if self.force_global:
            a("s_mov_b32 s%d, 1" % S_MODE)
        a("s_min_u32 s%d, s%d, 1" % (S_MODE, S_MODE))
        a("s_mul_i32 s%d, s%d, %d" % (S_TMP, S_MODE, REGB))
        a("s_add_u32 s%d, s%d, s%d" % (S_MB, S_WS, S_TMP))
        a("s_addc_u32 s%d, s%d, 0" % (S_MB + 1, S_WS + 1))

    def tags(self):
        a = self.a
        a("s_waitcnt lgkmcnt(0)")
        a("s_add_u32 s%d, s%d, 0x9E3779B9" % (S_T, S_T))
        a("s_add_u32 s%d, s%d, 0x7F4A7C00" % (S_T + 1, S_T + 1))
        a("s_and_b32 s%d, s%d, 0xFFFFFFE0" % (S_T + 1, S_T + 1))
        a("s_or_b32 s%d, s%d, 0x10" % (S_T + 1, S_T + 1))
        a("s_mov_b32 s%d, s%d" % (S_T1X, S_T))
        a("s_or_b32 s%d, s%d, s%d" % (S_T1X + 1, S_T + 1, S_XCC))

    DBG_MAP = {"A": {0: [(0, True), (1, False)], 1: [(12, False)], 3: [(5, False)], 6: [(7, False)], 7: [(9, False)]},
               "C0": {2: [(14, False)], 4: [(15, False)], 5: [(3, False)], 9: [(8, False)]},
               "C1B": {5: [(13, False)]},
               "C2": {4: [(4, False)], 8: [(10, False)]},
               "C2F": {4: [(4, False)], 8: [(10, False)], 10: [(11, False)]},
               "L": {1: [(2, False)], 3: [(6, False)]}}

    def dump_stamps(self, vt):
        if not self.stamps:
            return
        a = self.a
        if self.dbg:
            a("s_waitcnt lgkmcnt(0)")
            a("s_mov_b64 exec, 1")
            a("v_mov_b32 %s, 0" % vr(vt))
            for st, outs in self.DBG_MAP.get(self.role, {}).items():
                for slot, inv in outs:
                    a("v_mov_b32 %s, s%d" % (vr(vt + 1), S_STAMP + 2 * st))
                    if inv:
                        a("v_not_b32 %s, %s" % (vr(vt + 1), vr(vt + 1)))
                    a("global_atomic_umax %s, %s, s[22:23] offset:%d" % (vr(vt), vr(vt + 1), 4 * slot))
            return
        a("s_waitcnt lgkmcnt(0)")
        a("s_lshl_b32 s%d, s2, 3" % S_TMP)
        a("s_add_u32 s%d, s%d, s%d" % (S_TMP, S_TMP, S_W))
        a("s_lshl_b32 s%d, s%d, 6" % (S_TMP, S_TMP))
        a("s_add_u32 s%d, s%d, %d" % (S_TMP, S_TMP, STAMP_OFF))
        a("s_mov_b64 exec, 1")
        a("v_mov_b32 %s, s%d" % (vr(vt), S_TMP))
        for i in range(16):
            a("v_mov_b32 %s, s%d" % (vr(vt + 1), S_STAMP + 2 * i))
            a("global_store_dword %s, %s, %s offset:%d" % (vr(vt), vr(vt + 1), sp(S_WS), 4 * i))

    def end(self, vt):
        self.dump_stamps(vt)
        self.a("s_endpgm")

    def layernorm_rows(self, base, lds_x, VZ):
        a = self.a
        xs, xp = base, base + 4
        f = base + 16
        t = base + 24
        for i in range(4):
            a("v_lshlrev_b32 %s, 16, %s" % (vr(f + 2 * i), vr(xs + i)))
            a("v_and_b32 %s, 0xffff0000, %s" % (vr(f + 2 * i + 1), vr(xs + i)))
        a("v_add_f32 %s, %s, %s" % (vr(t), vr(f), vr(f + 1)))
        a("v_add_f32 %s, %s, %s" % (vr(t + 1), vr(f + 2), vr(f + 3)))
        a("v_add_f32 %s, %s, %s" % (vr(t + 2), vr(f + 4), vr(f + 5)))
        a("v_add_f32 %s, %s, %s" % (vr(t + 3), vr(f + 6), vr(f + 7)))
        a("v_add_f32 %s, %s, %s" % (vr(t), vr(t), vr(t + 1)))
        a("v_add_f32 %s, %s, %s" % (vr(t + 2), vr(t + 2), vr(t + 3)))
        a("v_add_f32 %s, %s, %s" % (vr(t), vr(t), vr(t + 2)))
        self.xor_reduce("v_add_f32", [t], [1, 2, "hm", "m", 16, 32], t + 4)
        a("v_mul_f32 %s, 0x3b000000, %s" % (vr(t), vr(t)))
        for i in range(8):
            a("v_sub_f32 %s, %s, %s" % (vr(f + i), vr(f + i), vr(t)))
        a("v_mul_f32 %s, %s, %s" % (vr(t + 1), vr(f), vr(f)))
        a("v_mul_f32 %s, %s, %s" % (vr(t + 2), vr(f + 1), vr(f + 1)))
        for i in range(2, 8, 2):
            a("v_fmac_f32 %s, %s, %s" % (vr(t + 1), vr(f + i), vr(f + i)))
            a("v_fmac_f32 %s, %s, %s" % (vr(t + 2), vr(f + i + 1), vr(f + i + 1)))
        a("v_add_f32 %s, %s, %s" % (vr(t + 1), vr(t + 1), vr(t + 2)))
        self.xor_reduce("v_add_f32", [t + 1], [1, 2, "hm", "m", 16, 32], t + 4)
        a("v_mul_f32 %s, 0x3b000000, %s" % (vr(t + 1), vr(t + 1)))
        a("v_cvt_pk_bf16_f32 %s, %s, %s" % (vr(t + 2), vr(t), vr(t + 1)))
        a("v_lshlrev_b32 %s, 16, %s" % (vr(t), vr(t + 2)))
        a("v_and_b32 %s, 0xffff0000, %s" % (vr(t + 1), vr(t + 2)))
        a("v_add_f32 %s, 0x3727c5ac, %s" % (vr(t + 1), vr(t + 1)))
        a("v_cvt_pk_bf16_f32 %s, %s, %s" % (vr(t + 1), vr(t + 1), vr(t + 1)))
        a("v_and_b32 %s, 0xffff0000, %s" % (vr(t + 1), vr(t + 1)))
        a("v_sqrt_f32 %s, %s" % (vr(t + 1), vr(t + 1)))
        a("s_nop 0")
        a("v_cvt_pk_bf16_f32 %s, %s, %s" % (vr(t + 1), vr(t + 1), vr(t + 1)))
        a("v_and_b32 %s, 0xffff0000, %s" % (vr(t + 1), vr(t + 1)))
        a("v_rcp_f32 %s, %s" % (vr(t + 2), vr(t + 1)))
        a("v_lshlrev_b32 %s, 16, %s" % (vr(f), vr(xp)))
        a("v_and_b32 %s, 0xffff0000, %s" % (vr(f + 1), vr(xp)))
        a("v_sub_f32 %s, %s, %s" % (vr(f), vr(f), vr(t)))
        a("v_sub_f32 %s, %s, %s" % (vr(f + 1), vr(f + 1), vr(t)))
        a("v_cvt_pk_bf16_f32 %s, %s, %s" % (vr(f), vr(f), vr(f + 1)))
        a("v_and_b32 %s, 0xffff0000, %s" % (vr(f + 1), vr(f)))
        a("v_lshlrev_b32 %s, 16, %s" % (vr(f), vr(f)))
        for i in range(2):
            a("v_mul_f32 %s, %s, %s" % (vr(f + 2 + i), vr(f + i), vr(t + 2)))
        for i in range(2):
            a("v_fma_f32 %s, -%s, %s, %s" % (vr(f + 4 + i), vr(f + 2 + i), vr(t + 1), vr(f + i)))
        for i in range(2):
            a("v_fmac_f32 %s, %s, %s" % (vr(f + 2 + i), vr(f + 4 + i), vr(t + 2)))
        a("v_cvt_pk_bf16_f32 %s, %s, %s" % (vr(f), vr(f + 2), vr(f + 3)))
        a("v_lshlrev_b32 %s, 2, v0" % vr(t))
        a("ds_write_b32 %s, %s offset:%d" % (vr(t), vr(f), lds_x))
        a("v_lshrrev_b32 %s, 3, v0" % vr(t))
        a("v_lshlrev_b32 %s, 5, %s" % (vr(t), vr(t)))
        a("ds_read_b128 %s, %s offset:%d" % (vr(base + 8, 4), vr(t), lds_x))
        a("ds_read_b128 %s, %s offset:%d" % (vr(base + 12, 4), vr(t), lds_x + 16))

    def selectors(self, sel, tmp, both_parities):
        a = self.a
        a("v_and_b32 %s, 15, v0" % vr(tmp))
        a("v_and_b32 %s, 1, %s" % (vr(tmp + 1), vr(tmp)))
        a("v_bfe_u32 %s, %s, 1, 2" % (vr(tmp + 2), vr(tmp)))
        if not both_parities:
            a("v_lshrrev_b32 %s, 3, %s" % (vr(tmp + 3), vr(tmp)))
            a("v_lshl_add_u32 %s, %s, 2, %s" % (vr(tmp + 2), vr(tmp + 3), vr(tmp + 2)))
        a("v_cmp_eq_u32 vcc, 1, %s" % vr(tmp + 1))
        a("v_mov_b32 %s, 0x0c0c0100" % vr(tmp + 3))
        a("v_mov_b32 %s, 0x01000c0c" % vr(tmp + 4))
        a("v_cndmask_b32 %s, %s, %s, vcc" % (vr(tmp + 5), vr(tmp + 3), vr(tmp + 4)))
        a("v_mov_b32 %s, 0x0c0c0302" % vr(tmp + 3))
        a("v_mov_b32 %s, 0x03020c0c" % vr(tmp + 4))
        a("v_cndmask_b32 %s, %s, %s, vcc" % (vr(tmp + 6), vr(tmp + 3), vr(tmp + 4)))
        a("v_mov_b32 %s, 0x0c0c0c0c" % vr(tmp + 3))
        for t in range(4):
            a("v_cmp_eq_u32 vcc, %d, %s" % (t, vr(tmp + 2)))
            a("s_nop 1")
            a("v_cndmask_b32 %s, %s, %s, vcc" % (vr(sel + t), vr(tmp + 3), vr(tmp + 5)))
            a("v_cndmask_b32 %s, %s, %s, vcc" % (vr(sel + 4 + t), vr(tmp + 3), vr(tmp + 6)))

    def tile_gemv(self, W, XN, SEL, AF, ACC, nafter):
        a = self.a
        for i in range(16):
            for t in range(4):
                a("v_perm_b32 %s, %s, %s, %s" % (vr(AF + 4 * i + t), vr(XN + (i >> 1)), vr(XN + (i >> 1)), vr(SEL + 4 * (i & 1) + t)))
        for i in range(16):
            a("s_waitcnt vmcnt(%d)" % (15 - i + nafter))
            a("v_mfma_f32_16x16x32_bf16 %s, %s, %s, %s" % (vr(ACC, 4), vr(AF + 4 * i, 4), vr(W + 4 * i, 4), "0" if i == 0 else vr(ACC, 4)))
        a("s_nop 7")
        a("v_permlane32_swap_b32 %s, %s" % (vr(ACC), vr(ACC + 2)))
        a("v_permlane32_swap_b32 %s, %s" % (vr(ACC + 1), vr(ACC + 3)))
        a("s_nop 1")
        a("v_add_f32_dpp %s, %s, %s row_ror:8 row_mask:0xf bank_mask:0xf" % (vr(ACC), vr(ACC + 2), vr(ACC)))
        a("v_add_f32_dpp %s, %s, %s row_ror:8 row_mask:0xf bank_mask:0xf" % (vr(ACC + 1), vr(ACC + 3), vr(ACC + 1)))


    def prologue(self):
        a = self.a
        a("""
        s_cmp_ge_u32 s2, 256
        s_cbranch_scc1 L_end
        """)
        self.stamp(0)
        if self.code_pf:
            a("s_getpc_b64 s[52:53]")
            a("L_pc:")
            a("v_lshlrev_b32 v3, 4, v0")
            for i in range(self.code_pf):
                a("v_min_u32 v4, L_code_end-L_pc-16, v3")
                a("global_load_dwordx4 v[188:191], v4, s[52:53]")
                a("v_add_u32 v3, 0x2000, v3")
        a("""
        s_load_dwordx16 s[4:19], s[0:1], 0
        s_load_dwordx4 s[20:23], s[0:1], 64
        s_load_dwordx2 s[24:25], s[0:1], 80
        v_lshrrev_b32 v1, 6, v0
        v_and_b32 v0, 63, v0
        s_and_b32 s26, s2, 7
        s_lshr_b32 s27, s2, 3
        v_readfirstlane_b32 s28, v1
        s_getreg_b32 s32, hwreg(HW_REG_XCC_ID, 0, 4)
        s_cmp_lt_u32 s26, 4
        s_cselect_b32 s49, %d, %d             ; MLP workgroups in this group
        s_cmp_lt_u32 s27, s49
        s_cselect_b32 s38, 1, 0
        s_mul_i32 s50, s26, %d
        s_sub_u32 s51, s26, 4
        s_mul_i32 s51, s51, %d
        s_add_u32 s51, s51, %d
        s_cmp_lt_u32 s26, 4
        s_cselect_b32 s50, s50, s51
        s_lshr_b32 s51, s27, 2
        s_add_u32 s50, s50, s51               ; global column block of W1
        v_mov_b32 v1, 0
        v_mov_b32 v2, 1
        s_waitcnt lgkmcnt(0)
        s_load_dwordx2 s[30:31], s[24:25], %d
        s_cmp_lt_u32 s28, 4
        s_cbranch_scc1 L_A
        s_cmp_eq_u32 s28, 4
        s_cbranch_scc1 L_C0
        s_cmp_eq_u32 s28, 5
        s_cbranch_scc1 L_C1
        s_cmp_eq_u32 s28, 6
        s_cbranch_scc1 L_C2
        s_branch L_L
        """ % (self.nb_lo, self.nb_hi, self.nb_lo // 4, self.nb_hi // 4, self.nb_lo, EPOCH))

    def role_l(self):
        a = self.a
        VZ, V1 = 1, 2
        a("L_L:")
        self.role = "L"
        KO, VO = 8, 12
        WOA, WOB, W2A, W2B, W1A = 16, 17, 18, 19, 20
        a("""
        s_lshl_b32 s40, s26, 24
        s_add_u32 s40, s40, 0xF00000
        s_lshl_b32 s41, s27, 15
        s_add_u32 s40, s40, s41
        v_lshrrev_b32 v3, 4, v0               ; q4
        v_and_b32 v4, 15, v0                  ; pos
        v_xor_b32 v5, v4, v3
        v_lshl_add_u32 v6, v3, 8, s40
        """)
        for q in range(4):
            a("v_xor_b32 v7, %d, v5" % (4 * q))
            a("v_lshl_add_u32 v7, v7, 4, v6")
            a("v_add_u32 %s, %d, v7" % (vr(KO + q), 2048 * q))
        a("v_lshlrev_b32 v7, 1, v3")
        a("v_xor_b32 v7, v7, v4")
        a("v_lshl_add_u32 %s, v7, 4, v6" % vr(VO))
        a("v_xor_b32 v7, 8, v7")
        a("v_lshl_add_u32 %s, v7, 4, v6" % vr(VO + 1))
        a("v_add_u32 %s, 0x1000, %s" % (vr(VO + 2), vr(VO)))
        a("v_add_u32 %s, 0x1000, %s" % (vr(VO + 3), vr(VO + 1)))
        a("""
        s_lshl_b32 s42, s26, 9                ; 512 g
        s_lshr_b32 s43, s27, 3
        s_lshl_b32 s43, s43, 7                ; 128 h
        s_add_u32 s42, s42, s43
        s_bfe_u32 s43, s27, 0x20001
        s_lshl_b32 s43, s43, 5
        s_add_u32 s42, s42, s43
        s_and_b32 s43, s27, 1
        s_lshl_b32 s43, s43, 3
        s_add_u32 s42, s42, s43               ; first Wo row
        s_lshl_b32 s42, s42, 10
        v_lshlrev_b32 v6, 4, v4               ; 16 n
        v_lshl_add_u32 v7, v3, 11, v6
        v_add_u32 %s, s42, v7
        v_add_u32 %s, 0x4000, %s
        s_lshl_b32 s42, s50, 6
        s_and_b32 s43, s27, 1
        s_lshl_b32 s43, s43, 2
        s_add_u32 s42, s42, s43
        s_bfe_u32 s43, s27, 0x10001
        s_lshl_b32 s43, s43, 1
        s_add_u32 s42, s42, s43               ; first W2 row
        s_lshl_b32 s42, s42, 10
        v_lshl_add_u32 v7, v3, 14, v6
        v_add_u32 %s, s42, v7
        v_add_u32 %s, 0x2000, %s
        s_lshl_b32 s42, s50, 7
        s_and_b32 s43, s27, 3
        s_mul_i32 s43, s43, %d
        s_add_u32 s42, s42, s43
        v_lshrrev_b32 v6, 3, v0
        v_mul_u32_u24 v6, %d, v6
        v_and_b32 v7, 7, v0
        v_lshl_add_u32 v6, v7, 4, v6
        v_add_u32 %s, s42, v6
        """ % (vr(WOA), vr(WOB), vr(WOA), vr(W2A), vr(W2B), vr(W2A), 128 * 3584, 16 * 3584, vr(W1A)))
        a("s_barrier")
        self.stamp(1)

        def seq(isb):
            ops = []
            flags = []
            for grp in self.order:
                if grp == "k":
                    for w in range(4):
                        for q in range(4):
                            for t in range(2):
                                pre = ""
                                if t == 0:
                                    if w and q == 0:
                                        pre += "".join("v_add_u32 %s, 0x2000, %s\n" % (vr(KO + z), vr(KO + z)) for z in range(4))
                                    pre += "s_movk_i32 m0, 0x%x\n" % (L_K + 8192 * w + 2048 * q) if L_K + 8192 * w + 2048 * q < 0x8000 else "s_mov_b32 m0, 0x%x\n" % (L_K + 8192 * w + 2048 * q)
                                ops.append((pre, "global_load_lds_dwordx4 %s, %s offset:%d %s" % (vr(KO + q), sp(S_K), 1024 * t, self.nt_kv)))
                    flags.append((len(ops), F_K))
                elif grp == "v":
                    for w in range(4):
                        for half in range(2):
                            for i in range(4):
                                pre = ""
                                if i == 0:
                                    if w and half == 0:
                                        pre += "".join("v_add_u32 %s, 0x2000, %s\n" % (vr(VO + z), vr(VO + z)) for z in range(4))
                                    pre += "s_mov_b32 m0, 0x%x\n" % (L_V + 8192 * w + 4096 * half)
                                b = (i >> 1) & 1
                                ops.append((pre, "global_load_lds_dwordx4 %s, %s offset:%d %s" % (vr(VO + 2 * half + b), sp(S_V), 1024 * i, self.nt_kv)))
                        flags.append((len(ops), F_V))
                elif grp == "o":
                    for w in range(4):
                        for i in range(4):
                            off = 256 * w + 1024 * (i >> 1)
                            ops.append(("s_mov_b32 m0, 0x%x\n" % (L_WO + (4 * w + i) * 1024 - off),
                                        "global_load_lds_dwordx4 %s, %s offset:%d %s" % (vr(WOA if (i & 1) == 0 else WOB), sp(S_WO), off, self.nt_w)))
                    flags.append((len(ops), F_WO))
                elif grp == "2" and isb:
                    for w in range(4):
                        for i in range(4):
                            off = 256 * w + 1024 * (i & 1)
                            ops.append(("s_mov_b32 m0, 0x%x\n" % (L_W2 + (4 * w + i) * 1024 - off),
                                        "global_load_lds_dwordx4 %s, %s offset:%d %s" % (vr(W2A if (i >> 1) == 0 else W2B), sp(S_W2), off, self.nt_w)))
                    flags.append((len(ops), F_W2))
                elif grp == "1" and isb:
                    for i in range(16):
                        pre = "s_mov_b32 m0, 0x%x\n" % (L_W1 + 1024 * i)
                        if i:
                            pre += "v_add_u32 %s, 3584, %s\n" % (vr(W1A), vr(W1A))
                        ops.append((pre, "global_load_lds_dwordx4 %s, %s %s" % (vr(W1A), sp(S_W1), self.nt_w)))
                    flags.append((len(ops), F_W1))
            return ops, flags

        def emit(isb):
            ops, flags = seq(isb)
            W = self.window
            n = len(ops)
            pend = list(flags)
            for j, (pre, ld) in enumerate(ops):
                if pre:
                    a(pre)
                if j >= W:
                    a("s_waitcnt vmcnt(%d)" % (W - 1))
                    landed = j - (W - 1)
                    while pend and pend[0][0] <= landed:
                        self.flag_add(pend.pop(0)[1], VZ, V1)
                elif pre:
                    a("s_nop 0")
                a(ld)
            self.stamp(2)
            for (e, f) in pend:
                a("s_waitcnt vmcnt(%d)" % (n - e))
                self.flag_add(f, VZ, V1)
            self.stamp(3)
            self.end(3)

        Lb = a.newlabel("LB")
        a("s_cmp_lg_u32 s%d, 0" % S_ISB)
        a("s_cbranch_scc1 %s" % Lb)
        emit(False)
        a(Lb + ":")
        emit(True)

    def role_a(self):
        a = self.a
        VZ, V1 = 1, 2
        T = 5
        a("L_A:")
        self.role = "A"
        a("s_barrier")
        a("s_setprio 1")
        KO, VO, QA = 16, 20, 24
        a("""
        v_lshrrev_b32 v3, 4, v0               ; gg
        v_and_b32 v4, 15, v0                  ; m
        s_lshl_b32 s41, s28, 13
        v_and_b32 v5, 3, v4                   ; b = m & 3
        v_lshrrev_b32 v6, 2, v4               ; a = m >> 2
        v_lshlrev_b32 v7, 11, v6
        v_lshl_add_u32 v7, v5, 8, v7
        v_xor_b32 v8, v3, v5
        v_lshl_add_u32 v7, v8, 4, v7
        v_add_u32 v7, s41, v7
        """)
        for s in range(4):
            a("v_xor_b32 v8, %d, v6" % s)
            a("v_lshl_add_u32 %s, v8, 6, v7" % vr(KO + s))
        a("v_mul_u32_u24 v8, 320, v6")
        a("v_lshl_add_u32 %s, v3, 4, v8" % vr(QA))
        a("""
        v_lshrrev_b32 v8, 2, v4               ; r
        v_and_b32 v9, 3, v4                   ; cq
        v_and_b32 v10, 1, v3
        v_lshl_or_b32 v10, v10, 2, v8         ; sigma
        v_lshl_add_u32 v11, v3, 3, v8         ; 8 gg + r
        v_lshlrev_b32 v11, 8, v11
        v_lshl_add_u32 v11, v9, 3, v11
        v_add_u32 v11, %d, v11
        s_lshl_b32 s42, s28, 1
        """ % L_V)
        for u in range(2):
            a("s_add_u32 s43, s42, %d" % u)
            a("v_xor_b32 v12, s43, v10")
            a("v_lshl_add_u32 %s, v12, 5, v11" % vr(VO + u))
        WOA = 22
        a("s_lshl_b32 s42, s28, 12")
        a("s_add_u32 s42, s42, %d" % L_WO)
        a("v_lshl_add_u32 %s, v0, 4, s42" % vr(WOA))
        SEL = 28
        self.selectors(SEL, T, both_parities=False)
        self.tags()
        TG = 36
        a("v_mov_b32 %s, s%d" % (vr(TG + 2), S_T))
        a("v_mov_b32 %s, s%d" % (vr(TG + 3), S_T + 1))
        OA, SA, STA = 40, 41, 43
        a("""
        s_lshl_b32 s42, s26, 17               ; g * 131072
        s_lshl_b32 s43, s27, 7                ; c * 128
        s_add_u32 s42, s42, s43
        v_and_b32 v12, 7, v0
        v_lshlrev_b32 v12, 4, v12             ; slot * 16
        v_bfe_u32 v13, v0, 3, 1               ; b
        v_lshl_add_u32 v13, v3, 3, v13        ; 8 h + b
        s_lshl_b32 s43, s28, 1
        v_add_u32 v13, s43, v13               ; + 2 w
        v_lshl_add_u32 v13, v13, 12, v12
        s_add_u32 s43, s42, %d
        v_add_u32 %s, s43, v13
        v_lshrrev_b32 v13, 3, v0
        s_lshl_b32 s43, s28, 3
        v_add_u32 v13, s43, v13               ; 8 w + (l >> 3)
        v_lshl_add_u32 v14, v13, 12, v12
        s_add_u32 s43, s42, %d
        v_add_u32 %s, s43, v14
        s_lshl_b32 s42, s26, 11
        s_lshl_b32 s43, s27, 4
        s_add_u32 s42, s42, s43
        s_add_u32 s42, s42, %d
        v_lshl_add_u32 %s, v3, 9, s42
        """ % (H2, vr(OA), H3S, vr(SA), ST, vr(STA)))
        KF = 48
        QF = 80
        WO = 96
        self.flag_wait(F_K, 1, VZ, T, sleep=2)
        self.stamp(1)
        for t in range(2):
            for s in range(4):
                a("ds_read_b128 %s, %s offset:%d" % (vr(KF + 16 * t + 4 * s, 4), vr(KO + s), L_K + 1024 * t))
        self.flag_wait(F_Q, 1, VZ, T, sleep=1)
        self.stamp(2)
        for s in range(4):
            a("ds_read_b128 %s, %s offset:%d" % (vr(QF + 4 * s, 4), vr(QA), L_Q + 64 * s))
        self.read_mode(VZ, T)
        SC = 112
        for s in range(4):
            for t in range(2):
                a("v_mfma_f32_16x16x32_bf16 %s, %s, %s, %s" % (vr(SC + 4 * t, 4), vr(KF + 16 * t + 4 * s, 4), vr(QF + 4 * s, 4), "0" if s == 0 else vr(SC + 4 * t, 4)))
        a("s_nop 7")
        if self.mimic:
            for i in range(4):
                a("v_cvt_pk_bf16_f32 %s, %s, %s" % (vr(T + i), vr(SC + 2 * i), vr(SC + 2 * i + 1)))
            for i in range(4):
                a("v_lshlrev_b32 %s, 16, %s" % (vr(SC + 2 * i), vr(T + i)))
                a("v_and_b32 %s, 0xffff0000, %s" % (vr(SC + 2 * i + 1), vr(T + i)))
        for i in range(8):
            a("v_mul_f32 %s, 0x%x, %s" % (vr(SC + i), SCALE, vr(SC + i)))
        if self.mimic:
            for i in range(4):
                a("v_cvt_pk_bf16_f32 %s, %s, %s" % (vr(T + i), vr(SC + 2 * i), vr(SC + 2 * i + 1)))
            for i in range(4):
                a("v_lshlrev_b32 %s, 16, %s" % (vr(SC + 2 * i), vr(T + i)))
                a("v_and_b32 %s, 0xffff0000, %s" % (vr(SC + 2 * i + 1), vr(T + i)))
        MX = 44
        a("v_max3_f32 %s, %s, %s, %s" % (vr(T), vr(SC), vr(SC + 1), vr(SC + 2)))
        a("v_max3_f32 %s, %s, %s, %s" % (vr(T + 1), vr(SC + 3), vr(SC + 4), vr(SC + 5)))
        a("v_max3_f32 %s, %s, %s, %s" % (vr(T), vr(T), vr(SC + 6), vr(SC + 7)))
        a("v_max_f32 %s, %s, %s" % (vr(MX), vr(T), vr(T + 1)))
        self.xor_reduce("v_max_f32", [MX], [16, 32], T)
        a("v_lshrrev_b32 %s, 2, v4" % vr(T))
        a("v_lshlrev_b32 %s, 4, %s" % (vr(T), vr(T)))
        a("s_lshl_b32 s42, s28, 2")
        a("v_add_u32 %s, s42, %s" % (vr(T + 1), vr(T)))
        a("s_mov_b64 exec, 0x1111")
        a("ds_write_b32 %s, %s offset:%d" % (vr(T + 1), vr(MX), L_MX))
        a("s_mov_b64 exec, -1")
        self.flag_add(F_MAX, VZ, V1)
        self.flag_wait(F_MAX, 4, VZ, T + 2)
        a("ds_read_b128 %s, %s offset:%d" % (vr(T + 5, 4), vr(T), L_MX))
        a("s_waitcnt lgkmcnt(0)")
        a("v_max3_f32 %s, %s, %s, %s" % (vr(MX), vr(T + 5), vr(T + 6), vr(T + 7)))
        a("v_max_f32 %s, %s, %s" % (vr(MX), vr(MX), vr(T + 8)))
        for i in range(8):
            a("v_sub_f32 %s, %s, %s" % (vr(SC + i), vr(SC + i), vr(MX)))
        for i in range(8):
            a("v_mul_f32 %s, 0x%x, %s" % (vr(SC + i), LOG2E, vr(SC + i)))
        for i in range(8):
            a("v_exp_f32 %s, %s" % (vr(SC + i), vr(SC + i)))
        PF = 48
        a("s_nop 0")
        for i in range(4):
            a("v_cvt_pk_bf16_f32 %s, %s, %s" % (vr(T + 1 + i), vr(SC + 2 * i), vr(SC + 2 * i + 1)))
        a("v_lshlrev_b32 %s, 4, v0" % vr(T))
        a("s_lshl_b32 s42, s28, 10")
        a("v_add_u32 %s, s42, %s" % (vr(T + 5), vr(T)))
        a("ds_write_b128 %s, %s offset:%d" % (vr(T + 5), vr(T + 1, 4), L_P))
        self.flag_add(F_P, VZ, V1)
        self.flag_wait(F_P, 4, VZ, T + 6)
        for ks in range(4):
            a("ds_read_b128 %s, %s offset:%d" % (vr(PF + 4 * ks, 4), vr(T), L_P + 1024 * ks))
        self.stamp(3)
        Lns = a.newlabel("NS")
        a("s_cmp_lg_u32 s28, 0")
        a("s_cbranch_scc1 %s" % Lns)
        ON = 64
        for t in range(4):
            a("v_mov_b32 %s, 0x3f803f80" % vr(ON + t))
        a("s_waitcnt lgkmcnt(0)")
        a("s_nop 0")
        for ks in range(4):
            a("v_mfma_f32_16x16x32_bf16 %s, %s, %s, %s" % (vr(SC, 4), vr(PF + 4 * ks, 4), vr(ON, 4), "0" if ks == 0 else vr(SC, 4)))
        a("s_nop 7")
        a("v_mov_b32 %s, %s" % (vr(TG), vr(MX)))
        a("v_mov_b32 %s, %s" % (vr(TG + 1), vr(SC)))
        a("s_mov_b32 s42, 0x00100001")
        a("s_mov_b32 s43, 0x10000100")
        a("s_mov_b64 exec, s[42:43]")
        self.store_mode(STA, TG)
        a("s_mov_b64 exec, -1")
        self.flag_add(F_ST, VZ, V1)
        a(Lns + ":")
        wo_first = self.order.index("o") < self.order.index("v")

        def read_wo():
            self.flag_wait(F_WO, 1, VZ, T, sleep=0 if not wo_first else 1)
            for i in range(4):
                a("ds_read_b128 %s, %s offset:%d" % (vr(WO + 4 * i, 4), vr(WOA), 1024 * i))
        if wo_first:
            read_wo()
        self.stamp(4)
        VF = 64
        OD = 112
        for ks in range(4):
            self.flag_wait(F_V, ks + 1, VZ, T)
            if ks == 3:
                self.stamp(5)
            base = VF + 8 * (ks & 1)
            for u in range(2):
                for jh in range(2):
                    a("ds_read_b64_tr_b16 %s, %s offset:%d" % (vr(base + 4 * u + 2 * jh, 2), vr(VO + u), 8192 * ks + 1024 * jh))
            for u in range(2):
                a("s_waitcnt lgkmcnt(%d)" % (2 - 2 * u))
                a("v_mfma_f32_16x16x32_bf16 %s, %s, %s, %s" % (vr(OD + 4 * u, 4), vr(PF + 4 * ks, 4), vr(base + 4 * u, 4), "0" if ks == 0 else vr(OD + 4 * u, 4)))
        a("s_nop 7")
        a("v_mov_b32 %s, %s" % (vr(TG), vr(OD)))
        a("v_mov_b32 %s, %s" % (vr(TG + 1), vr(OD + 4)))
        self.store_mode(OA, TG)
        self.flag_add(F_OPUB, VZ, V1)
        self.stamp(6)
        if not wo_first:
            read_wo()
        AF = 64
        a("v_lshlrev_b32 %s, 3, v3" % vr(T + 3))
        self.flag_wait(F_O, 1, VZ, T)
        a("ds_read_b64 %s, %s offset:%d" % (vr(T + 1, 2), vr(T + 3), L_O))
        a("s_waitcnt lgkmcnt(0)")
        for i in range(4):
            for t in range(4):
                a("v_perm_b32 %s, %s, %s, %s" % (vr(AF + 4 * i + t), vr(T + 1 + (i >> 1)), vr(T + 1 + (i >> 1)), vr(SEL + 4 * (i & 1) + t)))
            if i:
                a("v_mfma_f32_16x16x32_bf16 %s, %s, %s, %s" % (vr(OD, 4), vr(AF + 4 * (i - 1), 4), vr(WO + 4 * (i - 1), 4), "0" if i == 1 else vr(OD, 4)))
        a("s_nop 1")
        a("v_mfma_f32_16x16x32_bf16 %s, %s, %s, %s" % (vr(OD, 4), vr(AF + 12, 4), vr(WO + 12, 4), vr(OD, 4)))
        a("s_nop 7")
        a("v_permlane32_swap_b32 %s, %s" % (vr(OD), vr(OD + 2)))
        a("v_permlane32_swap_b32 %s, %s" % (vr(OD + 1), vr(OD + 3)))
        a("s_nop 0")
        a("v_mov_b32 %s, %s" % (vr(TG), vr(OD)))
        a("v_mov_b32 %s, %s" % (vr(TG + 1), vr(OD + 1)))
        self.store_mode(SA, TG)
        self.flag_add(F_SPUB, VZ, V1)
        self.stamp(7)
        self.end(T)

    def role_c0(self):
        a = self.a
        VZ, V1 = 1, 2
        X = 4
        W = 40
        AF = 104
        SEL = 168
        ACC = 176
        T = 180
        a("L_C0:")
        self.role = "C0"
        a("s_setprio 3")
        a("""
        v_lshlrev_b32 v3, 4, v0
        global_load_dwordx4 %s, v3, %s
        s_lshr_b32 s40, s27, 3                ; rb
        s_lshl_b32 s41, s40, 8
        v_lshl_add_u32 v3, v0, 2, s41
        global_load_dword %s, v3, %s
        s_lshl_b32 s41, s40, 20               ; rb * 128 * 8192
        s_lshl_b32 s42, s26, 10               ; g * 512 * 2
        s_add_u32 s41, s41, s42
        s_and_b32 s42, s27, 7
        s_lshl_b32 s42, s42, 7                ; cb * 128
        s_add_u32 s41, s41, s42
        v_lshrrev_b32 v3, 3, v0
        v_lshlrev_b32 v3, 17, v3              ; 16 rows * 8192
        v_and_b32 v36, 7, v0
        v_lshl_add_u32 v3, v36, 4, v3
        v_add_u32 v3, s41, v3
        """ % (vr(X, 4), sp(S_X), vr(X + 4), sp(S_X)))
        for i in range(16):
            a("global_load_dwordx4 %s, v3, %s %s" % (vr(W + 4 * i, 4), sp(S_WQ), self.nt_w))
            if i < 15:
                a("v_add_u32 v3, 0x2000, v3")
        a("s_barrier")
        self.stamp(1)
        self.selectors(SEL, T, both_parities=True)
        a("s_waitcnt vmcnt(16)")
        self.stamp(2)
        self.layernorm_rows(X, L_XQ, VZ)
        self.tags()
        a("s_waitcnt lgkmcnt(0)")
        self.stamp(3)
        self.tile_gemv(W, X + 8, SEL, AF, ACC, 0)
        self.stamp(4)
        a("v_mov_b32 %s, s%d" % (vr(ACC + 2), S_T1X))
        a("v_mov_b32 %s, s%d" % (vr(ACC + 3), S_T1X + 1))
        a("""
        s_lshl_b32 s41, s26, 14               ; g * 16384
        s_lshr_b32 s42, s27, 3
        s_lshl_b32 s42, s42, 12               ; rb * 4096
        s_add_u32 s41, s41, s42
        s_and_b32 s42, s27, 7
        s_lshl_b32 s42, s42, 9                ; cb * 512
        s_add_u32 s41, s41, s42
        s_add_u32 s41, s41, %d
        v_lshrrev_b32 v3, 4, v0               ; 2 hi + g'
        v_lshlrev_b32 v3, 3, v3
        v_and_b32 v36, 7, v0
        v_add_u32 v3, v3, v36                 ; pos = 16 hi + 8 g' + n
        v_lshl_add_u32 v3, v3, 4, s41
        v_add_u32 v37, %d, v3
        """ % (H1, REGB))
        self.flag_wait(F_INIT, 1, VZ, T)
        a("s_mov_b32 s42, 0x00ff00ff")
        a("s_mov_b32 s43, 0x00ff00ff")
        a("s_mov_b64 exec, s[42:43]")
        a("global_store_dwordx4 v3, %s, %s" % (vr(ACC, 4), sp(S_WS)))
        a("global_store_dwordx4 v37, %s, %s sc1" % (vr(ACC, 4), sp(S_WS)))
        a("s_mov_b64 exec, -1")
        self.flag_add(F_QPUB, VZ, V1)
        self.stamp(5)
        SA, OA = 4, 5
        G = 8
        a("""
        s_lshl_b32 s41, s26, 11               ; g * 2048
        s_lshr_b32 s42, s27, 3
        s_lshl_b32 s42, s42, 9                ; head * 512
        s_add_u32 s41, s41, s42
        s_add_u32 s41, s41, %d
        v_lshrrev_b32 v3, 3, v0
        v_lshl_add_u32 %s, v3, 4, s41
        s_lshl_b32 s41, s26, 17
        s_lshl_b32 s42, s27, 12
        s_add_u32 s41, s41, s42
        s_add_u32 s41, s41, %d
        v_lshl_add_u32 %s, v0, 4, s41
        """ % (ST, vr(SA), H2, vr(OA)))
        self.flag_wait(F_Q, 1, VZ, T, sleep=2)
        self.read_mode(VZ, T)
        self.flag_wait(F_ST, 1, VZ, T, sleep=1)
        self.poll([(G + 4 * i, SA, 128 * i) for i in range(4)], S_MB)
        self.stamp(6)
        MX = 24
        a("v_max3_f32 %s, %s, %s, %s" % (vr(MX), vr(G), vr(G + 4), vr(G + 8)))
        a("v_max_f32 %s, %s, %s" % (vr(MX), vr(MX), vr(G + 12)))
        self.xor_reduce("v_max_f32", [MX], [8, 16, 32], T)
        WT = 26
        for i in range(4):
            a("v_sub_f32 %s, %s, %s" % (vr(WT + i), vr(G + 4 * i), vr(MX)))
        for i in range(4):
            a("v_mul_f32 %s, 0x%x, %s" % (vr(WT + i), LOG2E, vr(WT + i)))
        for i in range(4):
            a("v_exp_f32 %s, %s" % (vr(WT + i), vr(WT + i)))
        a("s_nop 0")
        LS = 25
        a("v_mul_f32 %s, %s, %s" % (vr(LS), vr(WT), vr(G + 1)))
        for i in range(1, 4):
            a("v_fmac_f32 %s, %s, %s" % (vr(LS), vr(WT + i), vr(G + 4 * i + 1)))
        self.xor_reduce("v_add_f32", [LS], [8, 16, 32], T)
        a("v_rcp_f32 %s, %s" % (vr(T), vr(LS)))
        a("s_nop 0")
        a("v_fma_f32 %s, -%s, %s, 1.0" % (vr(T + 1), vr(T), vr(LS)))
        a("v_fmac_f32 %s, %s, %s" % (vr(T), vr(T + 1), vr(T)))
        for i in range(4):
            a("v_mul_f32 %s, %s, %s" % (vr(WT + i), vr(WT + i), vr(T)))
        self.flag_wait(F_OPUB, 4, VZ, T)
        self.stamp(7)
        self.poll([(G + 4 * i, OA, 1024 * i) for i in range(4)], S_MB)
        self.stamp(8)
        A0, A1 = 30, 31
        a("v_mul_f32 %s, %s, %s" % (vr(A0), vr(WT), vr(G)))
        a("v_mul_f32 %s, %s, %s" % (vr(A1), vr(WT), vr(G + 1)))
        for i in range(1, 4):
            a("v_fmac_f32 %s, %s, %s" % (vr(A0), vr(WT + i), vr(G + 4 * i)))
            a("v_fmac_f32 %s, %s, %s" % (vr(A1), vr(WT + i), vr(G + 4 * i + 1)))
        self.xor_reduce("v_add_f32", [A0, A1], [8, 16, 32], T)
        a("v_cvt_pk_bf16_f32 %s, %s, %s" % (vr(A0), vr(A0), vr(A1)))
        a("v_lshlrev_b32 %s, 2, v0" % vr(T))
        a("s_mov_b64 exec, 0xff")
        a("ds_write_b32 %s, %s offset:%d" % (vr(T), vr(A0), L_O))
        a("s_mov_b64 exec, -1")
        self.flag_add(F_O, VZ, V1)
        self.stamp(9)
        self.end(T)

    def role_c1(self):
        a = self.a
        VZ, V1 = 1, 2
        X = 4
        W = 40
        AF = 104
        SEL = 168
        ACC = 176
        T = 180
        a("L_C1:")
        self.role = "C1"
        a("s_setprio 3")
        Z = 36
        for i in range(4):
            a("v_mov_b32 %s, 0" % vr(Z + i))
        a("""
        s_lshl_b32 s41, s26, 17
        s_lshl_b32 s42, s27, 12
        s_add_u32 s41, s41, s42
        v_lshl_add_u32 v3, v0, 4, s41
        v_add_u32 v4, %d, v3
        v_add_u32 v5, %d, v3
        v_add_u32 v3, %d, v3
        """ % (H3S, H3G, H2))
        for r in (3, 4):
            for i in range(4):
                a("global_store_dwordx4 v%d, %s, %s offset:%d" % (r, vr(Z, 4), sp(S_WS), 1024 * i))
        Ls = a.newlabel("I")
        a("s_cmp_eq_u32 s49, 0")
        a("s_cbranch_scc1 %s" % Ls)
        for i in range(4):
            a("global_store_dwordx4 v5, %s, %s offset:%d" % (vr(Z, 4), sp(S_WS), 1024 * i))
        a(Ls + ":")
        a("""
        s_lshl_b32 s41, s26, 14
        s_lshr_b32 s42, s27, 3
        s_lshl_b32 s42, s42, 12
        s_add_u32 s41, s41, s42
        s_and_b32 s42, s27, 7
        s_lshl_b32 s42, s42, 9
        s_add_u32 s41, s41, s42
        s_add_u32 s41, s41, %d
        v_lshl_add_u32 v3, v0, 4, s41
        s_lshl_b32 s41, s26, 11
        s_lshr_b32 s42, s27, 3
        s_lshl_b32 s42, s42, 9
        s_add_u32 s41, s41, s42
        s_add_u32 s41, s41, %d
        v_lshl_add_u32 v4, v0, 4, s41
        s_lshl_b32 s41, s26, 14
        s_lshl_b32 s42, s27, 9
        s_add_u32 s44, s41, s42
        s_add_u32 s44, s44, %d
        v_lshl_add_u32 v5, v0, 4, s44
        s_mov_b32 exec_lo, -1
        s_mov_b32 exec_hi, 0
        global_store_dwordx4 v3, %s, %s
        """ % (H1, ST, HB, vr(Z, 4), sp(S_WS)))
        Ls = a.newlabel("I")
        a("""
        s_and_b32 s41, s27, 7
        s_cmp_lg_u32 s41, 0
        s_cbranch_scc1 %s
        global_store_dwordx4 v4, %s, %s
        %s:
        """ % (Ls, vr(Z, 4), sp(S_WS), Ls))
        Ls = a.newlabel("I")
        a("""
        s_cmp_eq_u32 s%d, 0
        s_cbranch_scc1 %s
        global_store_dwordx4 v5, %s, %s
        %s:
        s_mov_b64 exec, -1
        """ % (S_ISB, Ls, vr(Z, 4), sp(S_WS), Ls))
        a("""
        v_lshlrev_b32 v3, 4, v0
        global_load_dwordx4 %s, v3, %s
        s_and_b32 s40, s27, 3                 ; rb
        s_lshl_b32 s41, s40, 8
        v_lshl_add_u32 v3, v0, 2, s41
        global_load_dword %s, v3, %s
        """ % (vr(X, 4), sp(S_X), vr(X + 4), sp(S_X)))
        a("s_barrier")
        a("s_waitcnt vmcnt(0)")
        self.flag_add(F_INIT, VZ, V1)
        self.stamp(1)
        Lb = a.newlabel("B")
        a("s_cmp_lg_u32 s%d, 0" % S_ISB)
        a("s_cbranch_scc1 %s" % Lb)
        self.end(T)
        a(Lb + ":")
        self.role = "C1B"
        self.selectors(SEL, T, both_parities=True)
        self.layernorm_rows(X, L_XH, VZ)
        self.tags()
        a("v_lshlrev_b32 v3, 4, v0")
        a("v_add_u32 v37, %d, v3" % L_W1)
        a("v_add_u32 v38, %d, v3" % L_W2)
        XN = X + 8
        for i in range(16):
            for t in range(4):
                a("v_perm_b32 %s, %s, %s, %s" % (vr(AF + 4 * i + t), vr(XN + (i >> 1)), vr(XN + (i >> 1)), vr(SEL + 4 * (i & 1) + t)))
        self.flag_wait(F_W1, 1, VZ, T, sleep=2)
        self.stamp(2)
        for i in range(16):
            a("ds_read_b128 %s, v37 offset:%d" % (vr(W + 4 * i, 4), 1024 * i))
        for i in range(16):
            a("s_waitcnt lgkmcnt(%d)" % min(15, 15 - i))
            a("v_mfma_f32_16x16x32_bf16 %s, %s, %s, %s" % (vr(ACC, 4), vr(AF + 4 * i, 4), vr(W + 4 * i, 4), "0" if i == 0 else vr(ACC, 4)))
        a("s_nop 7")
        a("v_permlane32_swap_b32 %s, %s" % (vr(ACC), vr(ACC + 2)))
        a("v_permlane32_swap_b32 %s, %s" % (vr(ACC + 1), vr(ACC + 3)))
        a("s_nop 1")
        a("v_add_f32_dpp %s, %s, %s row_ror:8 row_mask:0xf bank_mask:0xf" % (vr(ACC), vr(ACC + 2), vr(ACC)))
        a("v_add_f32_dpp %s, %s, %s row_ror:8 row_mask:0xf bank_mask:0xf" % (vr(ACC + 1), vr(ACC + 3), vr(ACC + 1)))
        self.stamp(3)
        a("v_mov_b32 %s, s%d" % (vr(ACC + 2), S_T))
        a("v_mov_b32 %s, s%d" % (vr(ACC + 3), S_T + 1))
        a("""
        v_lshrrev_b32 v3, 4, v0
        v_lshlrev_b32 v3, 3, v3
        v_and_b32 v36, 7, v0
        v_add_u32 v3, v3, v36
        v_lshl_add_u32 v3, v3, 4, s44
        s_lshr_b32 s41, s27, 2
        s_lshl_b32 s41, s41, 11               ; cbl * 2048
        s_lshl_b32 s42, s26, 14
        s_add_u32 s41, s41, s42
        s_and_b32 s42, s27, 3
        s_lshl_b32 s42, s42, 7
        s_add_u32 s41, s41, s42
        s_add_u32 s41, s41, %d
        v_bfe_u32 v4, v0, 3, 2
        v_lshlrev_b32 v4, 9, v4
        v_lshl_add_u32 v4, v36, 4, v4
        v_add_u32 v4, s41, v4
        """ % HB)
        self.flag_wait(F_Q, 1, VZ, T, sleep=1)
        self.read_mode(VZ, T)
        a("s_mov_b32 s42, 0x00ff00ff")
        a("s_mov_b32 s43, 0x00ff00ff")
        a("s_mov_b64 exec, s[42:43]")
        self.store_mode(3, ACC)
        a("s_mov_b64 exec, -1")
        G = 8
        self.poll([(G, 4, 0)], S_MB)
        self.stamp(4)
        self.xor_reduce("v_add_f32", [G, G + 1], [8, 16], T)
        a("v_max_f32 %s, 0, %s" % (vr(G), vr(G)))
        a("v_max_f32 %s, 0, %s" % (vr(G + 1), vr(G + 1)))
        a("v_cvt_pk_bf16_f32 %s, %s, %s" % (vr(G), vr(G), vr(G + 1)))
        a("v_lshrrev_b32 %s, 4, v0" % vr(T))
        a("v_lshlrev_b32 %s, 3, %s" % (vr(T), vr(T)))
        a("v_add_u32 %s, 4, %s" % (vr(T + 1), vr(T)))
        a("ds_bpermute_b32 %s, %s, %s" % (vr(G + 4), vr(T), vr(G)))
        a("ds_bpermute_b32 %s, %s, %s" % (vr(G + 5), vr(T + 1), vr(G)))
        self.selectors(SEL, T, both_parities=False)
        a("""
        s_lshl_b32 s42, s26, 17
        s_lshl_b32 s43, s27, 7
        s_add_u32 s42, s42, s43
        s_add_u32 s42, s42, %d
        v_lshrrev_b32 v3, 3, v0
        v_lshlrev_b32 v3, 12, v3
        v_lshl_add_u32 v3, v36, 4, v3
        v_add_u32 v3, s42, v3
        s_waitcnt lgkmcnt(0)
        """ % H3G)
        for i in range(4):
            for t in range(4):
                a("v_perm_b32 %s, %s, %s, %s" % (vr(AF + 4 * i + t), vr(G + 4 + (i >> 1)), vr(G + 4 + (i >> 1)), vr(SEL + 4 * (i & 1) + t)))
        self.flag_wait(F_W2, 1, VZ, T, sleep=1)
        for i in range(16):
            a("ds_read_b128 %s, v38 offset:%d" % (vr(W + 4 * i, 4), 1024 * i))
        for w in range(4):
            for i in range(4):
                a("s_waitcnt lgkmcnt(%d)" % min(15, 15 - (4 * w + i)))
                a("v_mfma_f32_16x16x32_bf16 %s, %s, %s, %s" % (vr(AF + 16 + 4 * w, 4), vr(AF + 4 * i, 4), vr(W + 16 * w + 4 * i, 4), "0" if i == 0 else vr(AF + 16 + 4 * w, 4)))
        a("s_nop 7")
        for w in range(4):
            d = AF + 16 + 4 * w
            a("v_permlane32_swap_b32 %s, %s" % (vr(d), vr(d + 2)))
            a("v_permlane32_swap_b32 %s, %s" % (vr(d + 1), vr(d + 3)))
        a("s_nop 0")
        for w in range(4):
            d = AF + 16 + 4 * w
            a("v_mov_b32 %s, s%d" % (vr(d + 2), S_T))
            a("v_mov_b32 %s, s%d" % (vr(d + 3), S_T + 1))
        for w in range(4):
            self.store_mode(3, AF + 16 + 4 * w)
            if w < 3:
                a("v_add_u32 v3, 0x8000, v3")
        self.stamp(5)
        self.end(T)

    def role_c2(self):
        a = self.a
        VZ, V1 = 1, 2
        T = 100
        G = 8
        a("L_C2:")
        self.role = "C2"
        a("s_setprio 3")
        a("v_lshlrev_b32 v3, 2, v0")
        a("s_mov_b64 exec, 0xffff")
        a("ds_write_b32 v3, v1 offset:%d" % L_F)
        a("s_mov_b64 exec, -1")
        XF, FA, OUTA = 80, 81, 82
        a("""
        s_max_u32 s45, s27, 28
        s_sub_u32 s45, s45, 28
        s_lshl_b32 s45, s45, 3
        s_add_u32 s45, s45, s26               ; column set c'
        s_lshr_b32 s41, s45, 3
        s_lshl_b32 s41, s41, 7                ; 128 (c' >> 3)
        s_and_b32 s42, s45, 1
        s_lshl_b32 s42, s42, 6                ; 64 (c' & 1)
        s_add_u32 s41, s41, s42
        s_bfe_u32 s42, s45, 0x10001
        s_lshl_b32 s42, s42, 2
        s_add_u32 s41, s41, s42
        s_bfe_u32 s42, s45, 0x10002
        s_lshl_b32 s42, s42, 1
        s_add_u32 s41, s41, s42
        v_and_b32 v3, 7, v0
        v_lshlrev_b32 v3, 3, v3
        v_add_u32 v3, s41, v3                 ; first column of the pair
        v_lshlrev_b32 %s, 1, v3               ; byte offset in x / out
        s_lshl_b32 s41, s45, 11
        s_add_u32 s41, s41, %d
        v_lshrrev_b32 v3, 3, v0
        v_lshlrev_b32 v3, 8, v3
        v_and_b32 v83, 7, v0
        v_lshl_add_u32 v3, v83, 4, v3
        v_add_u32 %s, s41, v3
        """ % (vr(OUTA), H3B, vr(FA)))
        Lnf = a.newlabel("NF")
        a("s_cmp_lt_u32 s27, 28")
        a("s_cbranch_scc1 %s" % Lnf)
        a("global_load_dword %s, %s, %s" % (vr(XF), vr(OUTA), sp(S_X)))
        a("global_load_dwordx4 v[84:87], %s, %s sc1" % (vr(FA), sp(S_WS)))
        a("global_load_dwordx4 v[88:91], %s, %s offset:128 sc1" % (vr(FA), sp(S_WS)))
        a(Lnf + ":")
        a("s_waitcnt lgkmcnt(0)")
        a("s_barrier")
        a("""
        s_lshl_b32 s41, s26, 14
        s_add_u32 s41, s41, %d
        v_lshl_add_u32 v4, v0, 4, s41
        v_add_u32 v5, 0x1000, v4
        v_add_u32 v6, 0x2000, v4
        v_add_u32 v7, 0x3000, v4
        """ % H1)
        qloads = [(G + 16 * hd + 4 * rb, 4 + rb, 1024 * hd) for hd in range(4) for rb in range(4)]
        self.tags()
        self.stamp(1)
        self.flag_wait(F_QPUB, 1, VZ, T, sleep=1)
        self.stamp(2)
        Lslow, Lgot = a.newlabel("Q"), a.newlabel("Q")
        if not self.force_global:
            self.poll(qloads, S_WS, tag=S_T1X, limit=A_TIMEOUT, on_timeout=Lslow)
            a("s_branch %s" % Lgot)
        a(Lslow + ":")
        a("s_waitcnt vmcnt(0)")
        a("s_add_u32 s46, s%d, %d" % (S_WS, REGB))
        a("s_addc_u32 s47, s%d, 0" % (S_WS + 1))
        L = a.newlabel("P")
        a("s_mov_b32 s%d, 0" % S_CNT)
        a(L + ":")
        for (vd, va, off) in qloads:
            a("global_load_dwordx4 %s, %s, s[46:47] offset:%d sc1" % (vr(vd, 4), vr(va), off))
        a("s_add_u32 s%d, s%d, 1" % (S_CNT, S_CNT))
        a("s_cmp_gt_u32 s%d, %d" % (S_CNT, POLL_MAX))
        a("s_cbranch_scc1 L_end")
        a("s_waitcnt vmcnt(0)")
        a("v_mov_b32 %s, 0" % vr(T))
        a("v_mov_b32 %s, 0" % vr(T + 1))
        for (vd, va, off) in qloads:
            a("v_xor_b32 %s, s%d, %s" % (vr(T + 2), S_T, vr(vd + 2)))
            a("v_xor_b32 %s, s%d, %s" % (vr(T + 3), S_T + 1, vr(vd + 3)))
            a("v_and_b32 %s, 0xfffffff0, %s" % (vr(T + 3), vr(T + 3)))
            a("v_or3_b32 %s, %s, %s, %s" % (vr(T), vr(T), vr(T + 2), vr(T + 3)))
            a("v_xor_b32 %s, s%d, %s" % (vr(T + 3), S_T1X + 1, vr(vd + 3)))
            a("v_or_b32 %s, %s, %s" % (vr(T + 1), vr(T + 1), vr(T + 3)))
        a("v_cmp_ne_u32 vcc, 0, %s" % vr(T))
        a("s_cbranch_vccnz %s" % L)
        a("v_cmp_ne_u32 vcc, 0, %s" % vr(T + 1))
        a("s_cbranch_vccz %s" % Lgot)
        self.flag_add(F_REM, VZ, V1)
        a(Lgot + ":")
        self.stamp(3)
        for hd in range(4):
            b = G + 16 * hd
            for e in range(2):
                a("v_add_f32 %s, %s, %s" % (vr(b + e), vr(b + e), vr(b + 4 + e)))
                a("v_add_f32 %s, %s, %s" % (vr(b + 8 + e), vr(b + 8 + e), vr(b + 12 + e)))
            for e in range(2):
                a("v_add_f32 %s, %s, %s" % (vr(b + e), vr(b + e), vr(b + 8 + e)))
            a("v_cvt_pk_bf16_f32 %s, %s, %s" % (vr(b), vr(b), vr(b + 1)))
        a("""
        v_lshrrev_b32 v72, 5, v0              ; cb_local
        v_lshlrev_b32 v72, 7, v72             ; 64 columns * 2 B
        v_and_b32 v73, 7, v0
        v_lshl_add_u32 v72, v73, 4, v72       ; 8 n * 2 B
        v_bfe_u32 v73, v0, 3, 1
        v_lshl_add_u32 v72, v73, 3, v72       ; 4 g' * 2 B
        v_bfe_u32 v73, v0, 4, 1
        v_lshl_add_u32 v72, v73, 2, v72       ; 2 s * 2 B
        """)
        for hd in range(4):
            a("ds_write_b32 v72, %s offset:%d" % (vr(G + 16 * hd), L_Q + 320 * hd))
        self.flag_add(F_Q, VZ, V1)
        self.stamp(4)
        SA, GA, BA = 4, 5, 6
        a("""
        s_lshl_b32 s41, s26, 17
        s_lshl_b32 s42, s27, 12
        s_add_u32 s41, s41, s42
        v_lshl_add_u32 v3, v0, 4, s41
        v_add_u32 %s, %d, v3
        v_add_u32 %s, %d, v3
        s_lshl_b32 s41, s27, 11
        s_lshl_b32 s42, s26, 8
        s_add_u32 s41, s41, s42
        s_add_u32 s41, s41, %d
        v_lshl_add_u32 %s, v0, 4, s41
        """ % (vr(SA), H3S, vr(GA), H3G, H3B, vr(BA)))
        self.read_mode(VZ, T)
        GS = 40
        GG, GAD, GW = 24, 44, 48
        a("v_mov_b32 %s, 0" % vr(GS))
        a("v_mov_b32 %s, 0" % vr(GS + 1))
        Lng = a.newlabel("NG")
        a("s_cmp_eq_u32 s49, 0")
        a("s_cbranch_scc1 %s" % Lng)
        a("v_lshrrev_b32 v3, 3, v0")
        for i in range(4):
            a("v_add_u32 v52, %d, v3" % (8 * i))
            a("v_cmp_gt_u32 vcc, s49, v52")
            a("v_add_u32 v53, %d, %s" % (1024 * i, vr(GA)))
            a("v_mov_b32 v54, 1.0")
            a("v_cndmask_b32 %s, %s, v53, vcc" % (vr(GAD + i), vr(GA)))
            a("v_cndmask_b32 %s, v1, v54, vcc" % vr(GW + i))
        self.flag_wait(F_OPUB, 4, VZ, T, sleep=1)
        self.poll([(GG + 4 * i, GAD + i, 0) for i in range(4)], S_MB)
        for i in range(4):
            for e in range(2):
                a("v_fmac_f32 %s, %s, %s" % (vr(GS + e), vr(GW + i), vr(GG + 4 * i + e)))
        a(Lng + ":")
        self.stamp(5)
        self.flag_wait(F_SPUB, 4, VZ, T)
        self.stamp(6)
        self.poll([(G + 4 * i, SA, 1024 * i) for i in range(4)], S_MB)
        self.stamp(7)
        for e in range(2):
            a("v_add_f32 %s, %s, %s" % (vr(G + e), vr(G + e), vr(G + 4 + e)))
            a("v_add_f32 %s, %s, %s" % (vr(G + 8 + e), vr(G + 8 + e), vr(G + 12 + e)))
        for e in range(2):
            a("v_add_f32 %s, %s, %s" % (vr(G + e), vr(G + e), vr(G + 8 + e)))
        self.xor_reduce("v_add_f32", [G, G + 1, GS, GS + 1], [8, 16, 32], T)
        a("""
        v_bfe_u32 v3, v0, 3, 1
        v_cmp_eq_u32 vcc, 1, v3
        v_mov_b32 %s, s%d
        v_mov_b32 %s, s%d
        v_cndmask_b32 %s, %s, %s, vcc
        v_cndmask_b32 %s, %s, %s, vcc
        s_mov_b64 exec, 0xffff
        global_store_dwordx4 %s, %s, %s sc1
        s_mov_b64 exec, -1
        """ % (vr(G + 2), S_T, vr(G + 3), S_T + 1, vr(G), vr(G), vr(GS), vr(G + 1), vr(G + 1), vr(GS + 1), vr(BA), vr(G, 4), sp(S_WS)))
        self.stamp(8)
        Lf = a.newlabel("F")
        a("s_cmp_ge_u32 s27, 28")
        a("s_cbranch_scc1 %s" % Lf)
        self.end(T)
        a(Lf + ":")
        self.role = "C2F"
        G = 12
        self.poll([(G, FA, 0), (G + 4, FA, 128)], S_WS)
        self.stamp(9)
        self.xor_reduce("v_add_f32", [G, G + 1, G + 4, G + 5], [8, 16, 32], T)
        a("v_cvt_pk_bf16_f32 %s, %s, %s" % (vr(G), vr(G), vr(G + 1)))
        a("v_cvt_pk_bf16_f32 %s, %s, %s" % (vr(G + 4), vr(G + 4), vr(G + 5)))
        a("v_and_b32 %s, 0xffff0000, %s" % (vr(G + 1), vr(G)))
        a("v_lshlrev_b32 %s, 16, %s" % (vr(G), vr(G)))
        a("v_and_b32 %s, 0xffff0000, %s" % (vr(G + 5), vr(G + 4)))
        a("v_lshlrev_b32 %s, 16, %s" % (vr(G + 4), vr(G + 4)))
        for e in range(2):
            a("v_mul_f32 %s, 0x%x, %s" % (vr(G + 8 + e), LOG2E ^ 0x80000000, vr(G + 4 + e)))
        for e in range(2):
            a("v_exp_f32 %s, %s" % (vr(G + 8 + e), vr(G + 8 + e)))
        a("s_nop 0")
        for e in range(2):
            a("v_add_f32 %s, 1.0, %s" % (vr(G + 8 + e), vr(G + 8 + e)))
        for e in range(2):
            a("v_rcp_f32 %s, %s" % (vr(G + 8 + e), vr(G + 8 + e)))
        a("s_nop 0")
        for e in range(2):
            a("v_mul_f32 %s, %s, %s" % (vr(G + 4 + e), vr(G + 4 + e), vr(G + 8 + e)))
        a("v_cvt_pk_bf16_f32 %s, %s, %s" % (vr(G + 4), vr(G + 4), vr(G + 5)))
        a("v_and_b32 %s, 0xffff0000, %s" % (vr(G + 5), vr(G + 4)))
        a("v_lshlrev_b32 %s, 16, %s" % (vr(G + 4), vr(G + 4)))
        for e in range(2):
            a("v_mul_f32 %s, %s, %s" % (vr(G + e), vr(G + e), vr(G + 4 + e)))
        a("v_cvt_pk_bf16_f32 %s, %s, %s" % (vr(G), vr(G), vr(G + 1)))
        a("v_and_b32 %s, 0xffff0000, %s" % (vr(G + 1), vr(G)))
        a("v_lshlrev_b32 %s, 16, %s" % (vr(G), vr(G)))
        a("v_and_b32 %s, 0xffff0000, %s" % (vr(G + 5), vr(XF)))
        a("v_lshlrev_b32 %s, 16, %s" % (vr(G + 4), vr(XF)))
        for e in range(2):
            a("v_add_f32 %s, %s, %s" % (vr(G + e), vr(G + e), vr(G + 4 + e)))
        a("v_cvt_pk_bf16_f32 %s, %s, %s" % (vr(G), vr(G), vr(G + 1)))
        a("s_mov_b64 exec, 0xff")
        a("global_store_dword %s, %s, %s" % (vr(OUTA), vr(G), sp(S_OUT)))
        Le = a.newlabel("E")
        a("s_cmp_lg_u32 s45, 0")
        a("s_cbranch_scc1 %s" % Le)
        a("s_mov_b64 exec, 1")
        a("v_mov_b32 %s, s%d" % (vr(G + 2), S_T))
        a("v_mov_b32 %s, s%d" % (vr(G + 3), S_T + 1))
        a("global_store_dwordx2 v1, %s, %s offset:%d sc1" % (vr(G + 2, 2), sp(S_WS), EPOCH))
        a(Le + ":")
        a("s_mov_b64 exec, -1")
        self.stamp(10)
        self.end(T)

    def build(self):
        self.prologue()
        self.role_a()
        self.role_c0()
        self.role_c1()
        self.role_c2()
        self.role_l()
        self.a("L_end:\ns_endpgm\nL_code_end:")
        return wrap(self.a.text(), 256, 512, LDS_BYTES, 192, sgpr=96)


def generate(**kw):
    return Gen(**kw).build()


if __name__ == "__main__":
    out = sys.argv[1] if len(sys.argv) > 1 else "cdna_kernels/%s.s" % NAME
    kw = {}
    for arg in sys.argv[2:]:
        k, v = arg.split("=")
        kw[k] = {"True": True, "False": False}.get(v, v)
    open(out, "w").write(generate(**kw))
    print("wrote", out)
```

```python
import sys
from asmgen import Asm, wrap, NAME

REGB = 0x400000
EPOCH = 0x0
H1 = 0x10000
ST = 0x50000
H3B = 0x70000
HB = 0x80000
H2 = 0x100000
H3S = 0x200000
H3G = 0x300000
STAMP_OFF = 256 << 20

L_Q = 0x0000
L_P = 0x0800
L_MX = 0x1800
L_O = 0x1840
L_XQ = 0x1880
L_XH = 0x1980
L_F = 0x1A80
L_K = 0x2000
L_V = 0xA000
L_WO = 0x12000
L_W2 = 0x16000
L_W1 = 0x1A000
F_INIT, F_QPUB, F_Q, F_REM, F_K, F_MAX, F_P, F_ST, F_V, F_OPUB, F_O, F_W1, F_SPUB, F_WO, F_W2, F_HPUB = [L_F + 4 * i for i in range(16)]
LDS_BYTES = 0x1E000

S_X, S_K, S_V, S_WQ, S_WO, S_W1, S_W2, S_OUT, S_WS = 4, 6, 8, 10, 12, 16, 18, 20, 24
S_G, S_C, S_W = 26, 27, 28
S_T = 30
S_XCC = 32
S_MODE = 33
S_MB = 34
S_T1X = 36
S_ISB = 38
S_CNT = 39
S_TMP = 40
S_STAMP = 60

LOG2E = 0x3fb8aa3b
SCALE = 0x3db504f3
A_TIMEOUT = 64
SPIN_MAX = 1 << 20
POLL_MAX = 1 << 16


def sp(n):
    return "s[%d:%d]" % (n, n + 1)


def vr(n, k=1):
    return "v%d" % n if k == 1 else "v[%d:%d]" % (n, n + k - 1)


class Gen:
    def __init__(self, stamps=False, nt_kv="nt", nt_w="nt", force_global=False, mimic=True, window=16, nb_lo=32, nb_hi=24, order="1k2ov", code_pf=0, dbg=0, ileave=1, hold=8, init=3):
        self.a = Asm()
        self.window = int(window)
        self.nb_lo = int(nb_lo)
        self.nb_hi = int(nb_hi)
        self.order = order
        self.code_pf = int(code_pf)
        self.dbg = int(dbg)
        self.role = None
        if self.dbg:
            self.stamps = stamps = True
        self.ileave = int(ileave)
        self.hold = int(hold)
        self.init = int(init)
        assert 4 * self.nb_lo + 4 * self.nb_hi == 224 and self.nb_lo % 8 == 0 and self.nb_hi % 8 == 0
        self.stamps = stamps
        self.nt_kv = nt_kv
        self.nt_w = nt_w
        self.force_global = force_global
        self.mimic = mimic
        self.nstamp = 0

    def stamp(self, idx):
        if self.stamps:
            self.a("s_memrealtime %s" % sp(S_STAMP + 2 * idx))

    def flag_add(self, flag, vz, vone):
        a = self.a
        a("s_mov_b64 exec, 1")
        a("ds_add_u32 %s, %s offset:%d" % (vr(vz), vr(vone), flag))
        a("s_mov_b64 exec, -1")

    def flag_wait(self, flag, n, vz, vt, sleep=0):
        a = self.a
        L, Lgo = a.newlabel("W"), a.newlabel("W")
        a("s_mov_b32 s%d, 0" % S_CNT)
        a(L + ":")
        a("ds_read_b32 %s, %s offset:%d" % (vr(vt), vr(vz), flag))
        a("s_waitcnt lgkmcnt(0)")
        a("v_readfirstlane_b32 s%d, %s" % (S_TMP, vr(vt)))
        a("s_cmp_ge_u32 s%d, %d" % (S_TMP, n))
        a("s_cbranch_scc1 %s" % Lgo)
        if sleep:
            a("s_sleep %d" % sleep)
        a("s_add_u32 s%d, s%d, 1" % (S_CNT, S_CNT))
        a("s_cmp_lt_u32 s%d, %d" % (S_CNT, SPIN_MAX))
        a("s_cbranch_scc1 %s" % L)
        a("s_branch L_end")
        a(Lgo + ":")

    def store_mode(self, vaddr, vdata, n=4):
        a = self.a
        L1, L2 = a.newlabel("S"), a.newlabel("S")
        op = "global_store_dwordx%d" % n
        a("s_cmp_lg_u32 s%d, 0" % S_MODE)
        a("s_cbranch_scc1 %s" % L1)
        a("%s %s, %s, %s" % (op, vr(vaddr), vr(vdata, n), sp(S_MB)))
        a("s_branch %s" % L2)
        a(L1 + ":")
        a("%s %s, %s, %s sc1" % (op, vr(vaddr), vr(vdata, n), sp(S_MB)))
        a(L2 + ":")

    def poll(self, loads, base, tag=S_T, limit=POLL_MAX, on_timeout="L_end", pre=None):
        a = self.a
        L, Lok = a.newlabel("P"), a.newlabel("P")
        a("s_mov_b32 s%d, 0" % S_CNT)
        a(L + ":")
        for (vd, va, off) in loads:
            a("global_load_dwordx4 %s, %s, %s offset:%d sc1" % (vr(vd, 4), vr(va), sp(base), off))
        n = len(loads)
        for i, (vd, va, off) in enumerate(loads):
            a("s_waitcnt vmcnt(%d)" % (n - 1 - i))
            dst = "vcc" if i == 0 else sp(S_TMP)
            a("v_cmp_ne_u64 %s, %s, %s" % (dst, vr(vd + 2, 2), sp(tag)))
            if i:
                a("s_or_b64 vcc, vcc, %s" % sp(S_TMP))
        a("s_cbranch_vccz %s" % Lok)
        a("s_add_u32 s%d, s%d, 1" % (S_CNT, S_CNT))
        a("s_cmp_le_u32 s%d, %d" % (S_CNT, limit))
        a("s_cbranch_scc1 %s" % L)
        a("s_branch %s" % on_timeout)
        a(Lok + ":")

    def xor_reduce(self, op, regs, steps, tmp):
        a = self.a
        for st in steps:
            if st in (16, 32):
                ins = "v_permlane16_swap_b32" if st == 16 else "v_permlane32_swap_b32"
                for i, r in enumerate(regs):
                    a("v_mov_b32 %s, %s" % (vr(tmp + i), vr(r)))
                a("s_nop 1")
                for i, r in enumerate(regs):
                    a("%s %s, %s" % (ins, vr(r), vr(tmp + i)))
                a("s_nop 1")
                for i, r in enumerate(regs):
                    a("%s %s, %s, %s" % (op, vr(r), vr(r), vr(tmp + i)))
            else:
                ctl = {1: "quad_perm:[1,0,3,2]", 2: "quad_perm:[2,3,0,1]", "hm": "row_half_mirror", "m": "row_mirror", 8: "row_ror:8", "r4": "row_ror:4"}[st]
                a("s_nop 1")
                for r in regs:
                    a("%s_dpp %s, %s, %s %s row_mask:0xf bank_mask:0xf" % (op, vr(r), vr(r), vr(r), ctl))

    def read_mode(self, vz, vt):
        a = self.a
        a("ds_read_b32 %s, %s offset:%d" % (vr(vt), vr(vz), F_REM))
        a("s_waitcnt lgkmcnt(0)")
        a("v_readfirstlane_b32 s%d, %s" % (S_MODE, vr(vt)))
        if self.force_global:
            a("s_mov_b32 s%d, 1" % S_MODE)
        a("s_min_u32 s%d, s%d, 1" % (S_MODE, S_MODE))
        a("s_mul_i32 s%d, s%d, %d" % (S_TMP, S_MODE, REGB))
        a("s_add_u32 s%d, s%d, s%d" % (S_MB, S_WS, S_TMP))
        a("s_addc_u32 s%d, s%d, 0" % (S_MB + 1, S_WS + 1))

    def tags(self):
        a = self.a
        a("s_waitcnt lgkmcnt(0)")
        a("s_add_u32 s%d, s%d, 0x9E3779B9" % (S_T, S_T))
        a("s_add_u32 s%d, s%d, 0x7F4A7C00" % (S_T + 1, S_T + 1))
        a("s_and_b32 s%d, s%d, 0xFFFFFFE0" % (S_T + 1, S_T + 1))
        a("s_or_b32 s%d, s%d, 0x10" % (S_T + 1, S_T + 1))
        a("s_mov_b32 s%d, s%d" % (S_T1X, S_T))
        a("s_or_b32 s%d, s%d, s%d" % (S_T1X + 1, S_T + 1, S_XCC))

    DBG_MAP = {"A": {0: [(0, True), (1, False)], 1: [(12, False)], 3: [(5, False)], 6: [(7, False)], 7: [(9, False)]},
               "C0": {2: [(14, False)], 4: [(15, False)], 5: [(3, False)], 9: [(8, False)]},
               "C1B": {5: [(13, False)]},
               "C2": {4: [(4, False)], 8: [(10, False)]},
               "C2F": {4: [(4, False)], 8: [(10, False)], 10: [(11, False)]},
               "L": {1: [(2, False)], 3: [(6, False)]}}

    def dump_stamps(self, vt):
        if not self.stamps:
            return
        a = self.a
        if self.dbg:
            a("s_waitcnt lgkmcnt(0)")
            a("s_mov_b64 exec, 1")
            a("v_mov_b32 %s, 0" % vr(vt))
            for st, outs in self.DBG_MAP.get(self.role, {}).items():
                for slot, inv in outs:
                    a("v_mov_b32 %s, s%d" % (vr(vt + 1), S_STAMP + 2 * st))
                    if inv:
                        a("v_not_b32 %s, %s" % (vr(vt + 1), vr(vt + 1)))
                    a("global_atomic_umax %s, %s, s[22:23] offset:%d" % (vr(vt), vr(vt + 1), 4 * slot))
            return
        a("s_waitcnt lgkmcnt(0)")
        a("s_lshl_b32 s%d, s2, 3" % S_TMP)
        a("s_add_u32 s%d, s%d, s%d" % (S_TMP, S_TMP, S_W))
        a("s_lshl_b32 s%d, s%d, 6" % (S_TMP, S_TMP))
        a("s_add_u32 s%d, s%d, %d" % (S_TMP, S_TMP, STAMP_OFF))
        a("s_mov_b64 exec, 1")
        a("v_mov_b32 %s, s%d" % (vr(vt), S_TMP))
        for i in range(16):
            a("v_mov_b32 %s, s%d" % (vr(vt + 1), S_STAMP + 2 * i))
            a("global_store_dword %s, %s, %s offset:%d" % (vr(vt), vr(vt + 1), sp(S_WS), 4 * i))

    def end(self, vt):
        self.dump_stamps(vt)
        self.a("s_endpgm")

    def layernorm_rows(self, base, lds_x, VZ, rows=128):
        a = self.a
        xs, xp = base, base + 4
        f = base + 16
        t = base + 24
        for i in range(4):
            a("v_lshlrev_b32 %s, 16, %s" % (vr(f + 2 * i), vr(xs + i)))
            a("v_and_b32 %s, 0xffff0000, %s" % (vr(f + 2 * i + 1), vr(xs + i)))
        a("v_add_f32 %s, %s, %s" % (vr(t), vr(f), vr(f + 1)))
        a("v_add_f32 %s, %s, %s" % (vr(t + 1), vr(f + 2), vr(f + 3)))
        a("v_add_f32 %s, %s, %s" % (vr(t + 2), vr(f + 4), vr(f + 5)))
        a("v_add_f32 %s, %s, %s" % (vr(t + 3), vr(f + 6), vr(f + 7)))
        a("v_add_f32 %s, %s, %s" % (vr(t), vr(t), vr(t + 1)))
        a("v_add_f32 %s, %s, %s" % (vr(t + 2), vr(t + 2), vr(t + 3)))
        a("v_add_f32 %s, %s, %s" % (vr(t), vr(t), vr(t + 2)))
        self.xor_reduce("v_add_f32", [t], [1, 2, "hm", "m", 16, 32], t + 4)
        a("v_mul_f32 %s, 0x3b000000, %s" % (vr(t), vr(t)))
        for i in range(8):
            a("v_sub_f32 %s, %s, %s" % (vr(f + i), vr(f + i), vr(t)))
        a("v_mul_f32 %s, %s, %s" % (vr(t + 1), vr(f), vr(f)))
        a("v_mul_f32 %s, %s, %s" % (vr(t + 2), vr(f + 1), vr(f + 1)))
        for i in range(2, 8, 2):
            a("v_fmac_f32 %s, %s, %s" % (vr(t + 1), vr(f + i), vr(f + i)))
            a("v_fmac_f32 %s, %s, %s" % (vr(t + 2), vr(f + i + 1), vr(f + i + 1)))
        a("v_add_f32 %s, %s, %s" % (vr(t + 1), vr(t + 1), vr(t + 2)))
        self.xor_reduce("v_add_f32", [t + 1], [1, 2, "hm", "m", 16, 32], t + 4)
        a("v_mul_f32 %s, 0x3b000000, %s" % (vr(t + 1), vr(t + 1)))
        a("v_cvt_pk_bf16_f32 %s, %s, %s" % (vr(t + 2), vr(t), vr(t + 1)))
        a("v_lshlrev_b32 %s, 16, %s" % (vr(t), vr(t + 2)))
        a("v_and_b32 %s, 0xffff0000, %s" % (vr(t + 1), vr(t + 2)))
        a("v_add_f32 %s, 0x3727c5ac, %s" % (vr(t + 1), vr(t + 1)))
        a("v_cvt_pk_bf16_f32 %s, %s, %s" % (vr(t + 1), vr(t + 1), vr(t + 1)))
        a("v_and_b32 %s, 0xffff0000, %s" % (vr(t + 1), vr(t + 1)))
        a("v_sqrt_f32 %s, %s" % (vr(t + 1), vr(t + 1)))
        a("s_nop 0")
        a("v_cvt_pk_bf16_f32 %s, %s, %s" % (vr(t + 1), vr(t + 1), vr(t + 1)))
        a("v_and_b32 %s, 0xffff0000, %s" % (vr(t + 1), vr(t + 1)))
        a("v_rcp_f32 %s, %s" % (vr(t + 2), vr(t + 1)))
        a("v_lshlrev_b32 %s, 16, %s" % (vr(f), vr(xp)))
        a("v_and_b32 %s, 0xffff0000, %s" % (vr(f + 1), vr(xp)))
        a("v_sub_f32 %s, %s, %s" % (vr(f), vr(f), vr(t)))
        a("v_sub_f32 %s, %s, %s" % (vr(f + 1), vr(f + 1), vr(t)))
        a("v_cvt_pk_bf16_f32 %s, %s, %s" % (vr(f), vr(f), vr(f + 1)))
        a("v_and_b32 %s, 0xffff0000, %s" % (vr(f + 1), vr(f)))
        a("v_lshlrev_b32 %s, 16, %s" % (vr(f), vr(f)))
        for i in range(2):
            a("v_mul_f32 %s, %s, %s" % (vr(f + 2 + i), vr(f + i), vr(t + 2)))
        for i in range(2):
            a("v_fma_f32 %s, -%s, %s, %s" % (vr(f + 4 + i), vr(f + 2 + i), vr(t + 1), vr(f + i)))
        for i in range(2):
            a("v_fmac_f32 %s, %s, %s" % (vr(f + 2 + i), vr(f + 4 + i), vr(t + 2)))
        a("v_cvt_pk_bf16_f32 %s, %s, %s" % (vr(f), vr(f + 2), vr(f + 3)))
        if rows == 128:
            a("v_lshlrev_b32 %s, 2, v0" % vr(t))
        else:
            a("v_and_b32 %s, 31, v0" % vr(t))
            a("v_lshlrev_b32 %s, 2, %s" % (vr(t), vr(t)))
        a("ds_write_b32 %s, %s offset:%d" % (vr(t), vr(f), lds_x))
        a("v_lshrrev_b32 %s, 3, v0" % vr(t))
        a("v_lshlrev_b32 %s, %d, %s" % (vr(t), 5 if rows == 128 else 4, vr(t)))
        a("ds_read_b128 %s, %s offset:%d" % (vr(base + 8, 4), vr(t), lds_x))
        if rows == 128:
            a("ds_read_b128 %s, %s offset:%d" % (vr(base + 12, 4), vr(t), lds_x + 16))

    def selectors(self, sel, tmp, both_parities):
        a = self.a
        a("v_and_b32 %s, 15, v0" % vr(tmp))
        a("v_and_b32 %s, 1, %s" % (vr(tmp + 1), vr(tmp)))
        a("v_bfe_u32 %s, %s, 1, 2" % (vr(tmp + 2), vr(tmp)))
        if not both_parities:
            a("v_lshrrev_b32 %s, 3, %s" % (vr(tmp + 3), vr(tmp)))
            a("v_lshl_add_u32 %s, %s, 2, %s" % (vr(tmp + 2), vr(tmp + 3), vr(tmp + 2)))
        a("v_cmp_eq_u32 vcc, 1, %s" % vr(tmp + 1))
        a("v_mov_b32 %s, 0x0c0c0100" % vr(tmp + 3))
        a("v_mov_b32 %s, 0x01000c0c" % vr(tmp + 4))
        a("v_cndmask_b32 %s, %s, %s, vcc" % (vr(tmp + 5), vr(tmp + 3), vr(tmp + 4)))
        a("v_mov_b32 %s, 0x0c0c0302" % vr(tmp + 3))
        a("v_mov_b32 %s, 0x03020c0c" % vr(tmp + 4))
        a("v_cndmask_b32 %s, %s, %s, vcc" % (vr(tmp + 6), vr(tmp + 3), vr(tmp + 4)))
        a("v_mov_b32 %s, 0x0c0c0c0c" % vr(tmp + 3))
        for t in range(4):
            a("v_cmp_eq_u32 vcc, %d, %s" % (t, vr(tmp + 2)))
            a("s_nop 1")
            a("v_cndmask_b32 %s, %s, %s, vcc" % (vr(sel + t), vr(tmp + 3), vr(tmp + 5)))
            a("v_cndmask_b32 %s, %s, %s, vcc" % (vr(sel + 4 + t), vr(tmp + 3), vr(tmp + 6)))

    def tile_gemv(self, W, XN, SEL, AF, ACC, nafter):
        a = self.a
        for i in range(16):
            for t in range(4):
                a("v_perm_b32 %s, %s, %s, %s" % (vr(AF + 4 * i + t), vr(XN + (i >> 1)), vr(XN + (i >> 1)), vr(SEL + 4 * (i & 1) + t)))
        for i in range(16):
            a("s_waitcnt vmcnt(%d)" % (15 - i + nafter))
            a("v_mfma_f32_16x16x32_bf16 %s, %s, %s, %s" % (vr(ACC, 4), vr(AF + 4 * i, 4), vr(W + 4 * i, 4), "0" if i == 0 else vr(ACC, 4)))
        a("s_nop 7")
        a("v_permlane32_swap_b32 %s, %s" % (vr(ACC), vr(ACC + 2)))
        a("v_permlane32_swap_b32 %s, %s" % (vr(ACC + 1), vr(ACC + 3)))
        a("s_nop 1")
        a("v_add_f32_dpp %s, %s, %s row_ror:8 row_mask:0xf bank_mask:0xf" % (vr(ACC), vr(ACC + 2), vr(ACC)))
        a("v_add_f32_dpp %s, %s, %s row_ror:8 row_mask:0xf bank_mask:0xf" % (vr(ACC + 1), vr(ACC + 3), vr(ACC + 1)))


    def prologue(self):
        a = self.a
        a("""
        s_cmp_ge_u32 s2, 256
        s_cbranch_scc1 L_end
        """)
        self.stamp(0)
        if self.code_pf == 1:
            a("s_getpc_b64 s[52:53]")
            a("L_pc:")
            a("s_lshr_b32 s54, s2, 3")
            a("s_lshl_b32 s54, s54, 10")
            a("v_lshl_add_u32 v3, v0, 4, s54")
            a("v_cmp_gt_u32 vcc, 64, v0")
            a("v_min_u32 v3, L_code_end-L_pc-16, v3")
            a("s_cbranch_vccz L_nopf")
            a("global_load_dwordx4 v[188:191], v3, s[52:53]")
            a("L_nopf:")
        elif self.code_pf:
            a("s_getpc_b64 s[52:53]")
            a("L_pc:")
            a("v_lshlrev_b32 v3, 4, v0")
            for i in range(self.code_pf):
                a("v_min_u32 v4, L_code_end-L_pc-16, v3")
                a("global_load_dwordx4 v[188:191], v4, s[52:53]")
                a("v_add_u32 v3, 0x2000, v3")
        a("""
        s_load_dwordx16 s[4:19], s[0:1], 0
        s_load_dwordx4 s[20:23], s[0:1], 64
        s_load_dwordx2 s[24:25], s[0:1], 80
        v_lshrrev_b32 v1, 6, v0
        v_and_b32 v0, 63, v0
        s_and_b32 s26, s2, 7
        s_lshr_b32 s27, s2, 3
        v_readfirstlane_b32 s28, v1
        s_getreg_b32 s32, hwreg(HW_REG_XCC_ID, 0, 4)
        s_cmp_lt_u32 s26, 4
        s_cselect_b32 s49, %d, %d             ; MLP workgroups in this group
        s_cmp_lt_u32 s27, s49
        s_cselect_b32 s38, 1, 0
        s_mul_i32 s50, s26, %d
        s_sub_u32 s51, s26, 4
        s_mul_i32 s51, s51, %d
        s_add_u32 s51, s51, %d
        s_cmp_lt_u32 s26, 4
        s_cselect_b32 s50, s50, s51
        s_lshr_b32 s51, s27, 3
        s_add_u32 s50, s50, s51               ; global column block of W1
        v_mov_b32 v1, 0
        v_mov_b32 v2, 1
        s_cmp_lg_u32 s28, 6
        s_cbranch_scc1 L_noclear
        v_lshlrev_b32 v3, 2, v0
        s_mov_b64 exec, 0xffff
        ds_write_b32 v3, v1 offset:%d
        s_mov_b64 exec, -1
        L_noclear:
        s_waitcnt lgkmcnt(0)
        s_barrier
        s_load_dwordx2 s[30:31], s[24:25], %d
        s_cmp_lt_u32 s28, 4
        s_cbranch_scc1 L_A
        s_cmp_eq_u32 s28, 4
        s_cbranch_scc1 L_C0
        s_cmp_eq_u32 s28, 5
        s_cbranch_scc1 L_C1
        s_cmp_eq_u32 s28, 6
        s_cbranch_scc1 L_C2
        s_branch L_L
        """ % (self.nb_lo, self.nb_hi, self.nb_lo // 8, self.nb_hi // 8, self.nb_lo // 2, L_F, EPOCH))

    def role_l(self):
        a = self.a
        VZ, V1 = 1, 2
        a("L_L:")
        self.role = "L"
        KO, VO = 8, 12
        WOA, WOB, W2A, W1A = 16, 17, 18, 20
        piece = 0x8000 if self.ileave else 0x400
        a("""
        s_lshl_b32 s40, s26, 24
        s_add_u32 s40, s40, 0xF00000
        s_lshl_b32 s41, s27, %d
        s_add_u32 s40, s40, s41               ; first piece of this chunk
        v_lshrrev_b32 v3, 4, v0               ; q4
        v_and_b32 v4, 15, v0                  ; pos
        v_xor_b32 v5, v4, v3
        v_lshl_add_u32 v6, v3, 8, s40
        """ % (10 if self.ileave else 15))
        for q in range(4):
            a("v_xor_b32 v7, %d, v5" % (4 * q))
            a("v_lshl_add_u32 v7, v7, 4, v6")
            a("v_add_u32 %s, %d, v7" % (vr(KO + q), 2 * q * piece))

        def rest_addresses():
            a("v_lshlrev_b32 v7, 1, v3")
            a("v_xor_b32 v7, v7, v4")
            a("v_lshl_add_u32 %s, v7, 4, v6" % vr(VO))
            a("v_xor_b32 v7, 8, v7")
            a("v_lshl_add_u32 v7, v7, 4, v6")
            a("v_add_u32 %s, %d, v7" % (vr(VO + 1), 2 * piece))
            a("""
            s_lshl_b32 s42, s26, 9                ; 512 g
            s_lshr_b32 s43, s27, 3
            s_lshl_b32 s43, s43, 7                ; 128 h
            s_add_u32 s42, s42, s43
            s_bfe_u32 s43, s27, 0x20001
            s_lshl_b32 s43, s43, 5
            s_add_u32 s42, s42, s43
            s_and_b32 s43, s27, 1
            s_lshl_b32 s43, s43, 3
            s_add_u32 s42, s42, s43               ; first Wo row
            s_lshl_b32 s42, s42, 10
            v_lshlrev_b32 v6, 4, v4               ; 16 n
            v_lshl_add_u32 v7, v3, 11, v6
            v_add_u32 %s, s42, v7
            v_add_u32 %s, 0x4000, %s
            s_lshl_b32 s42, s50, 6
            s_and_b32 s43, s27, 7
            s_lshl_b32 s43, s43, 3
            s_add_u32 s42, s42, s43               ; first W2 row = 64 cbg + 8 j
            s_lshl_b32 s42, s42, 10
            v_lshl_add_u32 v7, v3, 11, v6         ; + 2 gg rows
            v_add_u32 %s, s42, v7
            s_lshl_b32 s42, s50, 7
            s_and_b32 s43, s27, 7
            s_mul_i32 s43, s43, %d
            s_add_u32 s42, s42, s43
            v_lshrrev_b32 v6, 3, v0
            v_mul_u32_u24 v6, %d, v6
            v_and_b32 v7, 7, v0
            v_lshl_add_u32 v6, v7, 4, v6
            v_add_u32 %s, s42, v6
            """ % (vr(WOA), vr(WOB), vr(WOA), vr(W2A), 64 * 3584, 8 * 3584, vr(W1A)))

        def m0(x):
            return "s_movk_i32 m0, 0x%x\n" % x if x < 0x8000 else "s_mov_b32 m0, 0x%x\n" % x

        def seq(isb):
            ops, flags, gates = [], [], []
            for grp in self.order:
                if grp == "|":
                    gates.append(len(ops))
                elif grp == "k":
                    for w in range(4):
                        for q in range(4):
                            for t in range(2):
                                p = 8 * w + 2 * q + t
                                ops.append((m0(L_K + 1024 * p), "global_load_lds_dwordx4 %s, %s %s" % (vr(KO + q), sp(S_K), self.nt_kv),
                                            "v_add_u32 %s, 0x%x, %s" % (vr(KO + q), (1 if t == 0 else 7) * piece, vr(KO + q))))
                    flags.append((len(ops), F_K))
                elif grp == "v":
                    for w in range(4):
                        for i in range(8):
                            b = (i >> 1) & 1
                            ops.append((m0(L_V + 1024 * (8 * w + i)), "global_load_lds_dwordx4 %s, %s %s" % (vr(VO + b), sp(S_V), self.nt_kv),
                                        "v_add_u32 %s, 0x%x, %s" % (vr(VO + b), (1 if (i & 1) == 0 else 3) * piece, vr(VO + b))))
                        flags.append((len(ops), F_V))
                elif grp == "o":
                    for w in range(4):
                        for i in range(4):
                            off = 256 * w + 1024 * (i >> 1)
                            ops.append((m0(L_WO + (4 * w + i) * 1024 - off),
                                        "global_load_lds_dwordx4 %s, %s offset:%d %s" % (vr(WOA if (i & 1) == 0 else WOB), sp(S_WO), off, self.nt_w), ""))
                    flags.append((len(ops), F_WO))
                elif grp == "2" and isb:
                    for w in range(4):
                        for i in range(2):
                            off = 256 * w + 1024 * i
                            ops.append((m0(L_W2 + (2 * w + i) * 1024 - off),
                                        "global_load_lds_dwordx4 %s, %s offset:%d %s" % (vr(W2A), sp(S_W2), off, self.nt_w), ""))
                    flags.append((len(ops), F_W2))
                elif grp == "1" and isb:
                    for i in range(8):
                        ops.append((m0(L_W1 + 1024 * i), "global_load_lds_dwordx4 %s, %s %s" % (vr(W1A), sp(S_W1), self.nt_w),
                                    "v_add_u32 %s, 3584, %s" % (vr(W1A), vr(W1A))))
                    flags.append((len(ops), F_W1))
            return ops, flags, gates

        W = self.window
        rest_addresses()
        self.stamp(1)

        def emit(isb):
            ops, flags, gates = seq(isb)
            n = len(ops)
            pend = list(flags)
            hold = self.hold
            for j in range(n):
                pre, ld, post = ops[j]
                if hold and j == hold:
                    while pend and pend[0][0] <= j:
                        e, f = pend.pop(0)
                        a("s_waitcnt vmcnt(%d)" % (j - e))
                        self.flag_add(f, VZ, V1)
                    self.flag_wait(F_QPUB, 1, VZ, 21)
                    if isb and self.order[0] == "1":
                        self.flag_wait(F_HPUB, 1, VZ, 21)
                    self.stamp(4)
                if j in gates:
                    while pend and pend[0][0] <= j:
                        e, f = pend.pop(0)
                        a("s_waitcnt vmcnt(%d)" % (j - e))
                        self.flag_add(f, VZ, V1)
                    self.flag_wait(F_OPUB, 4, VZ, 21)
                a(pre)
                if j >= W and not any(g <= j < g + W for g in gates):
                    a("s_waitcnt vmcnt(%d)" % (W - 1))
                    landed = j - (W - 1)
                    while pend and pend[0][0] <= landed:
                        self.flag_add(pend.pop(0)[1], VZ, V1)
                else:
                    a("s_nop 0")
                a(ld)
                if post:
                    a(post)
            self.stamp(2)
            for (e, f) in pend:
                a("s_waitcnt vmcnt(%d)" % (n - e))
                self.flag_add(f, VZ, V1)
            self.stamp(3)
            self.end(3)

        Lb = a.newlabel("LB")
        a("s_cmp_lg_u32 s%d, 0" % S_ISB)
        a("s_cbranch_scc1 %s" % Lb)
        emit(False)
        a(Lb + ":")
        emit(True)

    def role_a(self):
        a = self.a
        VZ, V1 = 1, 2
        T = 5
        a("L_A:")
        self.role = "A"
        a("s_setprio 1")
        KO, VO, QA = 16, 20, 24
        a("""
        v_lshrrev_b32 v3, 4, v0               ; gg
        v_and_b32 v4, 15, v0                  ; m
        s_lshl_b32 s41, s28, 13
        v_and_b32 v5, 3, v4                   ; b = m & 3
        v_lshrrev_b32 v6, 2, v4               ; a = m >> 2
        v_lshlrev_b32 v7, 11, v6
        v_lshl_add_u32 v7, v5, 8, v7
        v_xor_b32 v8, v3, v5
        v_lshl_add_u32 v7, v8, 4, v7
        v_add_u32 v7, s41, v7
        """)
        for s in range(4):
            a("v_xor_b32 v8, %d, v6" % s)
            a("v_lshl_add_u32 %s, v8, 6, v7" % vr(KO + s))
        a("v_mul_u32_u24 v8, 320, v6")
        a("v_lshl_add_u32 %s, v3, 4, v8" % vr(QA))
        a("""
        v_lshrrev_b32 v8, 2, v4               ; r
        v_and_b32 v9, 3, v4                   ; cq
        v_and_b32 v10, 1, v3
        v_lshl_or_b32 v10, v10, 2, v8         ; sigma
        v_lshl_add_u32 v11, v3, 3, v8         ; 8 gg + r
        v_lshlrev_b32 v11, 8, v11
        v_lshl_add_u32 v11, v9, 3, v11
        v_add_u32 v11, %d, v11
        s_lshl_b32 s42, s28, 1
        """ % L_V)
        for u in range(2):
            a("s_add_u32 s43, s42, %d" % u)
            a("v_xor_b32 v12, s43, v10")
            a("v_lshl_add_u32 %s, v12, 5, v11" % vr(VO + u))
        WOA = 22
        a("s_lshl_b32 s42, s28, 12")
        a("s_add_u32 s42, s42, %d" % L_WO)
        a("v_lshl_add_u32 %s, v0, 4, s42" % vr(WOA))
        SEL = 28
        self.selectors(SEL, T, both_parities=False)
        self.tags()
        TG = 36
        a("v_mov_b32 %s, s%d" % (vr(TG + 2), S_T))
        a("v_mov_b32 %s, s%d" % (vr(TG + 3), S_T + 1))
        OA, SA, STA = 40, 41, 43
        a("""
        s_lshl_b32 s42, s26, 17               ; g * 131072
        s_lshl_b32 s43, s27, 7                ; c * 128
        s_add_u32 s42, s42, s43
        v_and_b32 v12, 7, v0
        v_lshlrev_b32 v12, 4, v12             ; slot * 16
        v_bfe_u32 v13, v0, 3, 1               ; b
        v_lshl_add_u32 v13, v3, 3, v13        ; 8 h + b
        s_lshl_b32 s43, s28, 1
        v_add_u32 v13, s43, v13               ; + 2 w
        v_lshl_add_u32 v13, v13, 12, v12
        s_add_u32 s43, s42, %d
        v_add_u32 %s, s43, v13
        v_lshrrev_b32 v13, 3, v0
        s_lshl_b32 s43, s28, 3
        v_add_u32 v13, s43, v13               ; 8 w + (l >> 3)
        v_lshl_add_u32 v14, v13, 12, v12
        s_add_u32 s43, s42, %d
        v_add_u32 %s, s43, v14
        s_lshl_b32 s42, s26, 11
        s_lshl_b32 s43, s27, 4
        s_add_u32 s42, s42, s43
        s_add_u32 s42, s42, %d
        v_lshl_add_u32 %s, v3, 9, s42
        """ % (H2, vr(OA), H3S, vr(SA), ST, vr(STA)))
        KF = 48
        QF = 80
        WO = 96
        self.flag_wait(F_K, 1, VZ, T, sleep=2)
        self.stamp(1)
        for t in range(2):
            for s in range(4):
                a("ds_read_b128 %s, %s offset:%d" % (vr(KF + 16 * t + 4 * s, 4), vr(KO + s), L_K + 1024 * t))
        self.flag_wait(F_Q, 1, VZ, T, sleep=1)
        self.stamp(2)
        for s in range(4):
            a("ds_read_b128 %s, %s offset:%d" % (vr(QF + 4 * s, 4), vr(QA), L_Q + 64 * s))
        self.read_mode(VZ, T)
        SC = 112
        for s in range(4):
            for t in range(2):
                a("v_mfma_f32_16x16x32_bf16 %s, %s, %s, %s" % (vr(SC + 4 * t, 4), vr(KF + 16 * t + 4 * s, 4), vr(QF + 4 * s, 4), "0" if s == 0 else vr(SC + 4 * t, 4)))
        a("s_nop 7")
        if self.mimic:
            for i in range(4):
                a("v_cvt_pk_bf16_f32 %s, %s, %s" % (vr(T + i), vr(SC + 2 * i), vr(SC + 2 * i + 1)))
            for i in range(4):
                a("v_lshlrev_b32 %s, 16, %s" % (vr(SC + 2 * i), vr(T + i)))
                a("v_and_b32 %s, 0xffff0000, %s" % (vr(SC + 2 * i + 1), vr(T + i)))
        for i in range(8):
            a("v_mul_f32 %s, 0x%x, %s" % (vr(SC + i), SCALE, vr(SC + i)))
        if self.mimic:
            for i in range(4):
                a("v_cvt_pk_bf16_f32 %s, %s, %s" % (vr(T + i), vr(SC + 2 * i), vr(SC + 2 * i + 1)))
            for i in range(4):
                a("v_lshlrev_b32 %s, 16, %s" % (vr(SC + 2 * i), vr(T + i)))
                a("v_and_b32 %s, 0xffff0000, %s" % (vr(SC + 2 * i + 1), vr(T + i)))
        MX = 44
        a("v_max3_f32 %s, %s, %s, %s" % (vr(T), vr(SC), vr(SC + 1), vr(SC + 2)))
        a("v_max3_f32 %s, %s, %s, %s" % (vr(T + 1), vr(SC + 3), vr(SC + 4), vr(SC + 5)))
        a("v_max3_f32 %s, %s, %s, %s" % (vr(T), vr(T), vr(SC + 6), vr(SC + 7)))
        a("v_max_f32 %s, %s, %s" % (vr(MX), vr(T), vr(T + 1)))
        self.xor_reduce("v_max_f32", [MX], [16, 32], T)
        a("v_lshrrev_b32 %s, 2, v4" % vr(T))
        a("v_lshlrev_b32 %s, 4, %s" % (vr(T), vr(T)))
        a("s_lshl_b32 s42, s28, 2")
        a("v_add_u32 %s, s42, %s" % (vr(T + 1), vr(T)))
        a("s_mov_b64 exec, 0x1111")
        a("ds_write_b32 %s, %s offset:%d" % (vr(T + 1), vr(MX), L_MX))
        a("s_mov_b64 exec, -1")
        self.flag_add(F_MAX, VZ, V1)
        self.flag_wait(F_MAX, 4, VZ, T + 2)
        a("ds_read_b128 %s, %s offset:%d" % (vr(T + 5, 4), vr(T), L_MX))
        a("s_waitcnt lgkmcnt(0)")
        a("v_max3_f32 %s, %s, %s, %s" % (vr(MX), vr(T + 5), vr(T + 6), vr(T + 7)))
        a("v_max_f32 %s, %s, %s" % (vr(MX), vr(MX), vr(T + 8)))
        for i in range(8):
            a("v_sub_f32 %s, %s, %s" % (vr(SC + i), vr(SC + i), vr(MX)))
        for i in range(8):
            a("v_mul_f32 %s, 0x%x, %s" % (vr(SC + i), LOG2E, vr(SC + i)))
        for i in range(8):
            a("v_exp_f32 %s, %s" % (vr(SC + i), vr(SC + i)))
        PF = 48
        a("s_nop 0")
        for i in range(4):
            a("v_cvt_pk_bf16_f32 %s, %s, %s" % (vr(T + 1 + i), vr(SC + 2 * i), vr(SC + 2 * i + 1)))
        a("v_lshlrev_b32 %s, 4, v0" % vr(T))
        a("s_lshl_b32 s42, s28, 10")
        a("v_add_u32 %s, s42, %s" % (vr(T + 5), vr(T)))
        a("ds_write_b128 %s, %s offset:%d" % (vr(T + 5), vr(T + 1, 4), L_P))
        self.flag_add(F_P, VZ, V1)
        self.flag_wait(F_P, 4, VZ, T + 6)
        for ks in range(4):
            a("ds_read_b128 %s, %s offset:%d" % (vr(PF + 4 * ks, 4), vr(T), L_P + 1024 * ks))
        self.stamp(3)
        Lns = a.newlabel("NS")
        a("s_cmp_lg_u32 s28, 0")
        a("s_cbranch_scc1 %s" % Lns)
        ON = 64
        for t in range(4):
            a("v_mov_b32 %s, 0x3f803f80" % vr(ON + t))
        a("s_waitcnt lgkmcnt(0)")
        a("s_nop 0")
        for ks in range(4):
            a("v_mfma_f32_16x16x32_bf16 %s, %s, %s, %s" % (vr(SC, 4), vr(PF + 4 * ks, 4), vr(ON, 4), "0" if ks == 0 else vr(SC, 4)))
        a("s_nop 7")
        TS = 120
        a("v_mov_b32 %s, %s" % (vr(TS), vr(MX)))
        a("v_mov_b32 %s, %s" % (vr(TS + 1), vr(SC)))
        a("v_mov_b32 %s, %s" % (vr(TS + 2), vr(TG + 2)))
        a("v_mov_b32 %s, %s" % (vr(TS + 3), vr(TG + 3)))
        a(Lns + ":")
        wo_first = self.order.index("o") < self.order.index("v")
        assert wo_first or True

        def read_wo():
            self.flag_wait(F_WO, 1, VZ, T, sleep=0 if not wo_first else 1)
            for i in range(4):
                a("ds_read_b128 %s, %s offset:%d" % (vr(WO + 4 * i, 4), vr(WOA), 1024 * i))
        if wo_first:
            read_wo()
        self.stamp(4)
        VF = 64
        OD = 112
        for ks in range(4):
            self.flag_wait(F_V, ks + 1, VZ, T)
            if ks == 3:
                self.stamp(5)
            base = VF + 8 * (ks & 1)
            for u in range(2):
                for jh in range(2):
                    a("ds_read_b64_tr_b16 %s, %s offset:%d" % (vr(base + 4 * u + 2 * jh, 2), vr(VO + u), 8192 * ks + 1024 * jh))
            for u in range(2):
                a("s_waitcnt lgkmcnt(%d)" % (2 - 2 * u))
                a("v_mfma_f32_16x16x32_bf16 %s, %s, %s, %s" % (vr(OD + 4 * u, 4), vr(PF + 4 * ks, 4), vr(base + 4 * u, 4), "0" if ks == 0 else vr(OD + 4 * u, 4)))
        a("s_nop 7")
        a("v_mov_b32 %s, %s" % (vr(TG), vr(OD)))
        a("v_mov_b32 %s, %s" % (vr(TG + 1), vr(OD + 4)))
        self.store_mode(OA, TG)
        Lns = a.newlabel("NS")
        a("s_cmp_lg_u32 s28, 0")
        a("s_cbranch_scc1 %s" % Lns)
        a("s_mov_b32 s42, 0x00100001")
        a("s_mov_b32 s43, 0x10000100")
        a("s_mov_b64 exec, s[42:43]")
        self.store_mode(STA, TS)
        a("s_mov_b64 exec, -1")
        a(Lns + ":")
        self.flag_add(F_OPUB, VZ, V1)
        self.stamp(6)
        if not wo_first:
            read_wo()
        AF = 64
        a("v_lshlrev_b32 %s, 3, v3" % vr(T + 3))
        self.flag_wait(F_O, 1, VZ, T)
        a("ds_read_b64 %s, %s offset:%d" % (vr(T + 1, 2), vr(T + 3), L_O))
        a("s_waitcnt lgkmcnt(0)")
        for i in range(4):
            for t in range(4):
                a("v_perm_b32 %s, %s, %s, %s" % (vr(AF + 4 * i + t), vr(T + 1 + (i >> 1)), vr(T + 1 + (i >> 1)), vr(SEL + 4 * (i & 1) + t)))
            if i:
                a("v_mfma_f32_16x16x32_bf16 %s, %s, %s, %s" % (vr(OD, 4), vr(AF + 4 * (i - 1), 4), vr(WO + 4 * (i - 1), 4), "0" if i == 1 else vr(OD, 4)))
        a("s_nop 1")
        a("v_mfma_f32_16x16x32_bf16 %s, %s, %s, %s" % (vr(OD, 4), vr(AF + 12, 4), vr(WO + 12, 4), vr(OD, 4)))
        a("s_nop 7")
        a("v_permlane32_swap_b32 %s, %s" % (vr(OD), vr(OD + 2)))
        a("v_permlane32_swap_b32 %s, %s" % (vr(OD + 1), vr(OD + 3)))
        a("s_nop 0")
        a("v_mov_b32 %s, %s" % (vr(TG), vr(OD)))
        a("v_mov_b32 %s, %s" % (vr(TG + 1), vr(OD + 1)))
        self.store_mode(SA, TG)
        self.flag_add(F_SPUB, VZ, V1)
        self.stamp(7)
        self.end(T)

    def role_c0(self):
        a = self.a
        VZ, V1 = 1, 2
        X = 4
        W = 40
        AF = 104
        SEL = 168
        ACC = 176
        T = 180
        a("L_C0:")
        self.role = "C0"
        a("s_setprio 3")
        a("""
        v_lshlrev_b32 v3, 4, v0
        global_load_dwordx4 %s, v3, %s
        s_lshr_b32 s40, s27, 3                ; rb
        s_lshl_b32 s41, s40, 8
        v_lshl_add_u32 v3, v0, 2, s41
        global_load_dword %s, v3, %s
        s_lshl_b32 s41, s40, 20               ; rb * 128 * 8192
        s_lshl_b32 s42, s26, 10               ; g * 512 * 2
        s_add_u32 s41, s41, s42
        s_and_b32 s42, s27, 7
        s_lshl_b32 s42, s42, 7                ; cb * 128
        s_add_u32 s41, s41, s42
        v_lshrrev_b32 v3, 3, v0
        v_lshlrev_b32 v3, 17, v3              ; 16 rows * 8192
        v_and_b32 v36, 7, v0
        v_lshl_add_u32 v3, v36, 4, v3
        v_add_u32 v3, s41, v3
        """ % (vr(X, 4), sp(S_X), vr(X + 4), sp(S_X)))
        for i in range(16):
            a("global_load_dwordx4 %s, v3, %s %s" % (vr(W + 4 * i, 4), sp(S_WQ), self.nt_w))
            if i < 15:
                a("v_add_u32 v3, 0x2000, v3")
        self.stamp(1)
        self.selectors(SEL, T, both_parities=True)
        a("s_waitcnt vmcnt(16)")
        self.stamp(2)
        self.layernorm_rows(X, L_XQ, VZ)
        self.tags()
        a("s_waitcnt lgkmcnt(0)")
        self.stamp(3)
        self.tile_gemv(W, X + 8, SEL, AF, ACC, 0)
        self.stamp(4)
        a("v_mov_b32 %s, s%d" % (vr(ACC + 2), S_T1X))
        a("v_mov_b32 %s, s%d" % (vr(ACC + 3), S_T1X + 1))
        a("""
        s_lshl_b32 s41, s26, 14               ; g * 16384
        s_lshr_b32 s42, s27, 3
        s_lshl_b32 s42, s42, 12               ; rb * 4096
        s_add_u32 s41, s41, s42
        s_and_b32 s42, s27, 7
        s_lshl_b32 s42, s42, 9                ; cb * 512
        s_add_u32 s41, s41, s42
        s_add_u32 s41, s41, %d
        v_lshrrev_b32 v3, 4, v0               ; 2 hi + g'
        v_lshlrev_b32 v3, 3, v3
        v_and_b32 v36, 7, v0
        v_add_u32 v3, v3, v36                 ; pos = 16 hi + 8 g' + n
        v_lshl_add_u32 v3, v3, 4, s41
        v_add_u32 v37, %d, v3
        """ % (H1, REGB))
        self.flag_wait(F_INIT, 1, VZ, T)
        a("s_mov_b32 s42, 0x00ff00ff")
        a("s_mov_b32 s43, 0x00ff00ff")
        a("s_mov_b64 exec, s[42:43]")
        a("global_store_dwordx4 v3, %s, %s" % (vr(ACC, 4), sp(S_WS)))
        a("s_mov_b64 exec, -1")
        self.flag_add(F_QPUB, VZ, V1)
        a("s_mov_b64 exec, s[42:43]")
        a("global_store_dwordx4 v37, %s, %s sc1" % (vr(ACC, 4), sp(S_WS)))
        a("s_mov_b64 exec, -1")
        self.stamp(5)
        SA, OA = 4, 5
        G = 8
        a("""
        s_lshl_b32 s41, s26, 11               ; g * 2048
        s_lshr_b32 s42, s27, 3
        s_lshl_b32 s42, s42, 9                ; head * 512
        s_add_u32 s41, s41, s42
        s_add_u32 s41, s41, %d
        v_lshrrev_b32 v3, 3, v0
        v_lshl_add_u32 %s, v3, 4, s41
        s_lshl_b32 s41, s26, 17
        s_lshl_b32 s42, s27, 12
        s_add_u32 s41, s41, s42
        s_add_u32 s41, s41, %d
        v_lshl_add_u32 %s, v0, 4, s41
        """ % (ST, vr(SA), H2, vr(OA)))
        self.flag_wait(F_Q, 1, VZ, T, sleep=2)
        self.read_mode(VZ, T)
        self.stamp(6)
        GO = 40
        self.flag_wait(F_OPUB, 4, VZ, T, sleep=1)
        self.stamp(7)
        self.poll([(G + 4 * i, SA, 128 * i) for i in range(4)] + [(GO + 4 * i, OA, 1024 * i) for i in range(4)], S_MB)
        self.stamp(8)
        MX = 24
        a("v_max3_f32 %s, %s, %s, %s" % (vr(MX), vr(G), vr(G + 4), vr(G + 8)))
        a("v_max_f32 %s, %s, %s" % (vr(MX), vr(MX), vr(G + 12)))
        self.xor_reduce("v_max_f32", [MX], [8, 16, 32], T)
        WT = 26
        for i in range(4):
            a("v_sub_f32 %s, %s, %s" % (vr(WT + i), vr(G + 4 * i), vr(MX)))
        for i in range(4):
            a("v_mul_f32 %s, 0x%x, %s" % (vr(WT + i), LOG2E, vr(WT + i)))
        for i in range(4):
            a("v_exp_f32 %s, %s" % (vr(WT + i), vr(WT + i)))
        LS, A0, A1 = 25, 30, 31
        a("s_nop 0")
        a("v_mul_f32 %s, %s, %s" % (vr(A0), vr(WT), vr(GO)))
        a("v_mul_f32 %s, %s, %s" % (vr(A1), vr(WT), vr(GO + 1)))
        a("v_mul_f32 %s, %s, %s" % (vr(LS), vr(WT), vr(G + 1)))
        for i in range(1, 4):
            a("v_fmac_f32 %s, %s, %s" % (vr(A0), vr(WT + i), vr(GO + 4 * i)))
            a("v_fmac_f32 %s, %s, %s" % (vr(A1), vr(WT + i), vr(GO + 4 * i + 1)))
            a("v_fmac_f32 %s, %s, %s" % (vr(LS), vr(WT + i), vr(G + 4 * i + 1)))
        self.xor_reduce("v_add_f32", [LS, A0, A1], [8, 16, 32], T)
        a("v_rcp_f32 %s, %s" % (vr(T), vr(LS)))
        a("s_nop 0")
        a("v_fma_f32 %s, -%s, %s, 1.0" % (vr(T + 1), vr(T), vr(LS)))
        a("v_fmac_f32 %s, %s, %s" % (vr(T), vr(T + 1), vr(T)))
        a("v_mul_f32 %s, %s, %s" % (vr(A0), vr(A0), vr(T)))
        a("v_mul_f32 %s, %s, %s" % (vr(A1), vr(A1), vr(T)))
        a("v_cvt_pk_bf16_f32 %s, %s, %s" % (vr(A0), vr(A0), vr(A1)))
        a("v_lshlrev_b32 %s, 2, v0" % vr(T))
        a("s_mov_b64 exec, 0xff")
        a("ds_write_b32 %s, %s offset:%d" % (vr(T), vr(A0), L_O))
        a("s_mov_b64 exec, -1")
        self.flag_add(F_O, VZ, V1)
        self.stamp(9)
        self.end(T)

    def role_c1(self):
        a = self.a
        VZ, V1 = 1, 2
        X = 4
        W = 40
        AF = 104
        SEL = 168
        ACC = 176
        T = 180
        a("L_C1:")
        self.role = "C1"
        a("s_setprio 3")
        a("""
        v_lshlrev_b32 v3, 4, v0
        global_load_dwordx4 %s, v3, %s
        s_and_b32 s40, s27, 7                 ; row block of W1
        s_lshl_b32 s41, s40, 7
        v_and_b32 v3, 31, v0
        v_lshl_add_u32 v3, v3, 2, s41
        global_load_dword %s, v3, %s
        """ % (vr(X, 4), sp(S_X), vr(X + 4), sp(S_X)))
        Z = 36
        for i in range(4):
            a("v_mov_b32 %s, 0" % vr(Z + i))
        a("""
        s_lshl_b32 s41, s26, 17
        s_lshl_b32 s42, s27, 12
        s_add_u32 s41, s41, s42
        v_lshl_add_u32 v3, v0, 4, s41
        v_add_u32 v40, %d, v3
        v_add_u32 v41, %d, v3
        v_add_u32 v3, %d, v3
        """ % (H3S, H3G, H2))
        for r in (3, 40, 41):
            for i in range(4 if self.init & 1 else 0):
                a("global_store_dwordx4 v%d, %s, %s offset:%d" % (r, vr(Z, 4), sp(S_WS), 1024 * i))
        a("""
        s_lshl_b32 s41, s26, 14
        s_lshr_b32 s42, s27, 3
        s_lshl_b32 s42, s42, 12
        s_add_u32 s41, s41, s42
        s_and_b32 s42, s27, 7
        s_lshl_b32 s42, s42, 9
        s_add_u32 s41, s41, s42
        s_add_u32 s41, s41, %d
        v_lshl_add_u32 v3, v0, 4, s41
        s_lshl_b32 s41, s26, 11
        s_lshr_b32 s42, s27, 3
        s_lshl_b32 s42, s42, 9
        s_add_u32 s41, s41, s42
        s_add_u32 s41, s41, %d
        v_lshl_add_u32 v40, v0, 4, s41
        s_lshl_b32 s41, s26, 14
        s_lshl_b32 s42, s27, 9
        s_add_u32 s44, s41, s42
        s_add_u32 s44, s44, %d
        v_lshl_add_u32 v41, v0, 4, s44
        s_mov_b32 exec_lo, -1
        s_mov_b32 exec_hi, 0
        """ % (H1, ST, HB))
        if self.init & 2:
            a("global_store_dwordx4 v3, %s, %s" % (vr(Z, 4), sp(S_WS)))
            a("global_store_dwordx4 v41, %s, %s" % (vr(Z, 4), sp(S_WS)))
        Ls = a.newlabel("I")
        a("""
        s_and_b32 s41, s27, 7
        s_cmp_lg_u32 s41, 0
        s_cbranch_scc1 %s
        %s
        %s:
        s_mov_b64 exec, -1
        """ % (Ls, "global_store_dwordx4 v40, %s, %s" % (vr(Z, 4), sp(S_WS)) if self.init & 2 else "s_nop 0", Ls))
        a("s_waitcnt vmcnt(0)")
        self.flag_add(F_INIT, VZ, V1)
        self.stamp(1)
        Lb = a.newlabel("B")
        a("s_cmp_lg_u32 s%d, 0" % S_ISB)
        a("s_cbranch_scc1 %s" % Lb)
        self.end(T)
        a(Lb + ":")
        self.role = "C1B"
        self.selectors(SEL, T, both_parities=True)
        self.layernorm_rows(X, L_XH, VZ, rows=64)
        self.tags()
        a("v_lshlrev_b32 v3, 4, v0")
        a("v_add_u32 v37, %d, v3" % L_W1)
        a("v_add_u32 v38, %d, v3" % L_W2)
        XN = X + 8
        for i in range(8):
            for t in range(4):
                a("v_perm_b32 %s, %s, %s, %s" % (vr(AF + 4 * i + t), vr(XN + (i >> 1)), vr(XN + (i >> 1)), vr(SEL + 4 * (i & 1) + t)))
        a("""
        v_lshrrev_b32 v3, 4, v0
        v_lshlrev_b32 v3, 3, v3
        v_and_b32 v36, 7, v0
        v_add_u32 v3, v3, v36
        v_lshl_add_u32 v3, v3, 4, s44
        s_lshr_b32 s41, s27, 3
        s_lshl_b32 s41, s41, 12               ; cbl * 4096
        s_lshl_b32 s42, s26, 14
        s_add_u32 s41, s41, s42
        s_and_b32 s42, s27, 7
        s_lshl_b32 s42, s42, 4                ; j * 16
        s_add_u32 s41, s41, s42
        s_add_u32 s41, s41, %d
        v_bfe_u32 v4, v0, 2, 3
        v_lshlrev_b32 v4, 9, v4               ; producer * 512
        v_and_b32 v5, 1, v0
        v_lshl_add_u32 v4, v5, 8, v4          ; 16 (q & 1) * 16
        v_bfe_u32 v5, v0, 1, 1
        v_lshl_add_u32 v4, v5, 7, v4          ; 8 (q >> 1) * 16
        v_add_u32 v4, s41, v4
        """ % HB)
        self.flag_wait(F_W1, 1, VZ, T, sleep=2)
        self.stamp(2)
        for i in range(8):
            a("ds_read_b128 %s, v37 offset:%d" % (vr(W + 4 * i, 4), 1024 * i))
        for i in range(8):
            a("s_waitcnt lgkmcnt(%d)" % (7 - i))
            a("v_mfma_f32_16x16x32_bf16 %s, %s, %s, %s" % (vr(ACC, 4), vr(AF + 4 * i, 4), vr(W + 4 * i, 4), "0" if i == 0 else vr(ACC, 4)))
        a("s_nop 7")
        a("v_permlane32_swap_b32 %s, %s" % (vr(ACC), vr(ACC + 2)))
        a("v_permlane32_swap_b32 %s, %s" % (vr(ACC + 1), vr(ACC + 3)))
        a("s_nop 1")
        a("v_add_f32_dpp %s, %s, %s row_ror:8 row_mask:0xf bank_mask:0xf" % (vr(ACC), vr(ACC + 2), vr(ACC)))
        a("v_add_f32_dpp %s, %s, %s row_ror:8 row_mask:0xf bank_mask:0xf" % (vr(ACC + 1), vr(ACC + 3), vr(ACC + 1)))
        self.stamp(3)
        a("v_mov_b32 %s, s%d" % (vr(ACC + 2), S_T))
        a("v_mov_b32 %s, s%d" % (vr(ACC + 3), S_T + 1))
        a("v_add_u32 v5, %d, v3" % REGB)
        a("s_mov_b32 s42, 0x00ff00ff")
        a("s_mov_b32 s43, 0x00ff00ff")
        a("s_mov_b64 exec, s[42:43]")
        a("global_store_dwordx4 v3, %s, %s" % (vr(ACC, 4), sp(S_WS)))
        a("s_mov_b64 exec, -1")
        self.flag_add(F_HPUB, VZ, V1)
        a("s_mov_b64 exec, s[42:43]")
        a("global_store_dwordx4 v5, %s, %s sc1" % (vr(ACC, 4), sp(S_WS)))
        a("s_mov_b64 exec, -1")
        G = 8
        self.selectors(SEL, T, both_parities=False)
        self.flag_wait(F_Q, 1, VZ, T, sleep=1)
        self.read_mode(VZ, T)
        self.poll([(G, 4, 0)], S_MB)
        self.stamp(4)
        self.xor_reduce("v_add_f32", [G, G + 1], ["r4", 8, 16], T)
        a("v_max_f32 %s, 0, %s" % (vr(G), vr(G)))
        a("v_max_f32 %s, 0, %s" % (vr(G + 1), vr(G + 1)))
        a("v_cvt_pk_bf16_f32 %s, %s, %s" % (vr(G), vr(G), vr(G + 1)))
        a("s_nop 1")
        for r in range(4):
            a("v_mov_b32_dpp %s, %s quad_perm:[%d,%d,%d,%d] row_mask:0x%x bank_mask:0xf" % (vr(G + 4), vr(G), r, r, r, r, 1 << r))
        a("""
        s_lshl_b32 s42, s26, 17
        s_lshl_b32 s43, s27, 7
        s_add_u32 s42, s42, s43
        s_add_u32 s42, s42, %d
        v_lshrrev_b32 v3, 3, v0
        v_lshlrev_b32 v3, 12, v3
        v_lshl_add_u32 v3, v36, 4, v3
        v_add_u32 v3, s42, v3
        """ % H3G)
        for i in range(2):
            for t in range(4):
                a("v_perm_b32 %s, %s, %s, %s" % (vr(AF + 4 * i + t), vr(G + 4), vr(G + 4), vr(SEL + 4 * i + t)))
        self.flag_wait(F_W2, 1, VZ, T, sleep=1)
        for i in range(8):
            a("ds_read_b128 %s, v38 offset:%d" % (vr(W + 4 * i, 4), 1024 * i))
        for w in range(4):
            for i in range(2):
                a("s_waitcnt lgkmcnt(%d)" % (7 - (2 * w + i)))
                a("v_mfma_f32_16x16x32_bf16 %s, %s, %s, %s" % (vr(AF + 16 + 4 * w, 4), vr(AF + 4 * i, 4), vr(W + 8 * w + 4 * i, 4), "0" if i == 0 else vr(AF + 16 + 4 * w, 4)))
        a("s_nop 7")
        for w in range(4):
            d = AF + 16 + 4 * w
            a("v_permlane32_swap_b32 %s, %s" % (vr(d), vr(d + 2)))
            a("v_permlane32_swap_b32 %s, %s" % (vr(d + 1), vr(d + 3)))
        a("s_nop 0")
        for w in range(4):
            d = AF + 16 + 4 * w
            a("v_mov_b32 %s, s%d" % (vr(d + 2), S_T))
            a("v_mov_b32 %s, s%d" % (vr(d + 3), S_T + 1))
        for w in range(4):
            self.store_mode(3, AF + 16 + 4 * w)
            if w < 3:
                a("v_add_u32 v3, 0x8000, v3")
        self.stamp(5)
        self.end(T)

    def role_c2(self):
        a = self.a
        VZ, V1 = 1, 2
        T = 100
        G = 8
        a("L_C2:")
        self.role = "C2"
        a("s_setprio 3")
        XF, FA, OUTA = 80, 81, 82
        a("""
        s_max_u32 s45, s27, 28
        s_sub_u32 s45, s45, 28
        s_lshl_b32 s45, s45, 3
        s_add_u32 s45, s45, s26               ; column set c'
        s_lshr_b32 s41, s45, 3
        s_lshl_b32 s41, s41, 7                ; 128 (c' >> 3)
        s_and_b32 s42, s45, 1
        s_lshl_b32 s42, s42, 6                ; 64 (c' & 1)
        s_add_u32 s41, s41, s42
        s_bfe_u32 s42, s45, 0x10001
        s_lshl_b32 s42, s42, 2
        s_add_u32 s41, s41, s42
        s_bfe_u32 s42, s45, 0x10002
        s_lshl_b32 s42, s42, 1
        s_add_u32 s41, s41, s42
        v_and_b32 v3, 7, v0
        v_lshlrev_b32 v3, 3, v3
        v_add_u32 v3, s41, v3                 ; first column of the pair
        v_lshlrev_b32 %s, 1, v3               ; byte offset in x / out
        s_lshl_b32 s41, s45, 11
        s_add_u32 s41, s41, %d
        v_lshrrev_b32 v3, 3, v0
        v_lshlrev_b32 v3, 8, v3
        v_and_b32 v83, 7, v0
        v_lshl_add_u32 v3, v83, 4, v3
        v_add_u32 %s, s41, v3
        """ % (vr(OUTA), H3B, vr(FA)))
        Lnf = a.newlabel("NF")
        a("s_cmp_lt_u32 s27, 28")
        a("s_cbranch_scc1 %s" % Lnf)
        a("global_load_dword %s, %s, %s" % (vr(XF), vr(OUTA), sp(S_X)))
        a("global_load_dwordx4 v[84:87], %s, %s sc1" % (vr(FA), sp(S_WS)))
        a("global_load_dwordx4 v[88:91], %s, %s offset:128 sc1" % (vr(FA), sp(S_WS)))
        a(Lnf + ":")
        a("""
        s_lshl_b32 s41, s26, 14
        s_add_u32 s41, s41, %d
        v_lshl_add_u32 v4, v0, 4, s41
        v_add_u32 v5, 0x1000, v4
        v_add_u32 v6, 0x2000, v4
        v_add_u32 v7, 0x3000, v4
        """ % H1)
        qloads = [(G + 16 * hd + 4 * rb, 4 + rb, 1024 * hd) for hd in range(4) for rb in range(4)]
        self.tags()
        self.stamp(1)
        self.flag_wait(F_QPUB, 1, VZ, T, sleep=1)
        self.stamp(2)
        Lslow, Lgot = a.newlabel("Q"), a.newlabel("Q")
        if not self.force_global:
            self.poll(qloads, S_WS, tag=S_T1X, limit=A_TIMEOUT, on_timeout=Lslow)
            a("s_branch %s" % Lgot)
        a(Lslow + ":")
        a("s_waitcnt vmcnt(0)")
        a("s_add_u32 s46, s%d, %d" % (S_WS, REGB))
        a("s_addc_u32 s47, s%d, 0" % (S_WS + 1))
        L = a.newlabel("P")
        a("s_mov_b32 s%d, 0" % S_CNT)
        a(L + ":")
        for (vd, va, off) in qloads:
            a("global_load_dwordx4 %s, %s, s[46:47] offset:%d sc1" % (vr(vd, 4), vr(va), off))
        a("s_add_u32 s%d, s%d, 1" % (S_CNT, S_CNT))
        a("s_cmp_gt_u32 s%d, %d" % (S_CNT, POLL_MAX))
        a("s_cbranch_scc1 L_end")
        a("s_waitcnt vmcnt(0)")
        a("v_mov_b32 %s, 0" % vr(T))
        a("v_mov_b32 %s, 0" % vr(T + 1))
        for (vd, va, off) in qloads:
            a("v_xor_b32 %s, s%d, %s" % (vr(T + 2), S_T, vr(vd + 2)))
            a("v_xor_b32 %s, s%d, %s" % (vr(T + 3), S_T + 1, vr(vd + 3)))
            a("v_and_b32 %s, 0xfffffff0, %s" % (vr(T + 3), vr(T + 3)))
            a("v_or3_b32 %s, %s, %s, %s" % (vr(T), vr(T), vr(T + 2), vr(T + 3)))
            a("v_xor_b32 %s, s%d, %s" % (vr(T + 3), S_T1X + 1, vr(vd + 3)))
            a("v_or_b32 %s, %s, %s" % (vr(T + 1), vr(T + 1), vr(T + 3)))
        a("v_cmp_ne_u32 vcc, 0, %s" % vr(T))
        a("s_cbranch_vccnz %s" % L)
        a("v_cmp_ne_u32 vcc, 0, %s" % vr(T + 1))
        a("s_cbranch_vccz %s" % Lgot)
        self.flag_add(F_REM, VZ, V1)
        a(Lgot + ":")
        self.stamp(3)
        for hd in range(4):
            b = G + 16 * hd
            for e in range(2):
                a("v_add_f32 %s, %s, %s" % (vr(b + e), vr(b + e), vr(b + 4 + e)))
                a("v_add_f32 %s, %s, %s" % (vr(b + 8 + e), vr(b + 8 + e), vr(b + 12 + e)))
            for e in range(2):
                a("v_add_f32 %s, %s, %s" % (vr(b + e), vr(b + e), vr(b + 8 + e)))
            a("v_cvt_pk_bf16_f32 %s, %s, %s" % (vr(b), vr(b), vr(b + 1)))
        a("""
        v_lshrrev_b32 v72, 5, v0              ; cb_local
        v_lshlrev_b32 v72, 7, v72             ; 64 columns * 2 B
        v_and_b32 v73, 7, v0
        v_lshl_add_u32 v72, v73, 4, v72       ; 8 n * 2 B
        v_bfe_u32 v73, v0, 3, 1
        v_lshl_add_u32 v72, v73, 3, v72       ; 4 g' * 2 B
        v_bfe_u32 v73, v0, 4, 1
        v_lshl_add_u32 v72, v73, 2, v72       ; 2 s * 2 B
        """)
        for hd in range(4):
            a("ds_write_b32 v72, %s offset:%d" % (vr(G + 16 * hd), L_Q + 320 * hd))
        self.flag_add(F_Q, VZ, V1)
        self.stamp(4)
        SA, GA, BA = 4, 5, 6
        a("""
        s_lshl_b32 s41, s26, 17
        s_lshl_b32 s42, s27, 12
        s_add_u32 s41, s41, s42
        v_lshl_add_u32 v3, v0, 4, s41
        v_add_u32 %s, %d, v3
        v_add_u32 %s, %d, v3
        s_lshl_b32 s41, s27, 11
        s_lshl_b32 s42, s26, 8
        s_add_u32 s41, s41, s42
        s_add_u32 s41, s41, %d
        v_lshl_add_u32 %s, v0, 4, s41
        """ % (vr(SA), H3S, vr(GA), H3G, H3B, vr(BA)))
        self.read_mode(VZ, T)
        GS = 40
        GG, GAD, GW = 24, 44, 48
        a("v_mov_b32 %s, 0" % vr(GS))
        a("v_mov_b32 %s, 0" % vr(GS + 1))
        Lng = a.newlabel("NG")
        a("s_cmp_eq_u32 s49, 0")
        a("s_cbranch_scc1 %s" % Lng)
        a("v_lshrrev_b32 v3, 3, v0")
        for i in range(4):
            a("v_add_u32 v52, %d, v3" % (8 * i))
            a("v_cmp_gt_u32 vcc, s49, v52")
            a("v_add_u32 v53, %d, %s" % (1024 * i, vr(GA)))
            a("v_mov_b32 v54, 1.0")
            a("v_cndmask_b32 %s, %s, v53, vcc" % (vr(GAD + i), vr(GA)))
            a("v_cndmask_b32 %s, v1, v54, vcc" % vr(GW + i))
        self.flag_wait(F_OPUB, 4, VZ, T, sleep=1)
        self.poll([(GG + 4 * i, GAD + i, 0) for i in range(4)], S_MB)
        for i in range(4):
            for e in range(2):
                a("v_fmac_f32 %s, %s, %s" % (vr(GS + e), vr(GW + i), vr(GG + 4 * i + e)))
        a(Lng + ":")
        self.stamp(5)
        self.flag_wait(F_SPUB, 4, VZ, T)
        self.stamp(6)
        self.poll([(G + 4 * i, SA, 1024 * i) for i in range(4)], S_MB)
        self.stamp(7)
        for e in range(2):
            a("v_add_f32 %s, %s, %s" % (vr(G + e), vr(G + e), vr(G + 4 + e)))
            a("v_add_f32 %s, %s, %s" % (vr(G + 8 + e), vr(G + 8 + e), vr(G + 12 + e)))
        for e in range(2):
            a("v_add_f32 %s, %s, %s" % (vr(G + e), vr(G + e), vr(G + 8 + e)))
        self.xor_reduce("v_add_f32", [G, G + 1, GS, GS + 1], [8, 16, 32], T)
        a("""
        v_bfe_u32 v3, v0, 3, 1
        v_cmp_eq_u32 vcc, 1, v3
        v_mov_b32 %s, s%d
        v_mov_b32 %s, s%d
        v_cndmask_b32 %s, %s, %s, vcc
        v_cndmask_b32 %s, %s, %s, vcc
        s_mov_b64 exec, 0xffff
        global_store_dwordx4 %s, %s, %s sc1
        s_mov_b64 exec, -1
        """ % (vr(G + 2), S_T, vr(G + 3), S_T + 1, vr(G), vr(G), vr(GS), vr(G + 1), vr(G + 1), vr(GS + 1), vr(BA), vr(G, 4), sp(S_WS)))
        self.stamp(8)
        Lf = a.newlabel("F")
        a("s_cmp_ge_u32 s27, 28")
        a("s_cbranch_scc1 %s" % Lf)
        self.end(T)
        a(Lf + ":")
        self.role = "C2F"
        G = 12
        self.poll([(G, FA, 0), (G + 4, FA, 128)], S_WS)
        self.stamp(9)
        self.xor_reduce("v_add_f32", [G, G + 1, G + 4, G + 5], [8, 16, 32], T)
        a("v_cvt_pk_bf16_f32 %s, %s, %s" % (vr(G), vr(G), vr(G + 1)))
        a("v_cvt_pk_bf16_f32 %s, %s, %s" % (vr(G + 4), vr(G + 4), vr(G + 5)))
        a("v_and_b32 %s, 0xffff0000, %s" % (vr(G + 1), vr(G)))
        a("v_lshlrev_b32 %s, 16, %s" % (vr(G), vr(G)))
        a("v_and_b32 %s, 0xffff0000, %s" % (vr(G + 5), vr(G + 4)))
        a("v_lshlrev_b32 %s, 16, %s" % (vr(G + 4), vr(G + 4)))
        for e in range(2):
            a("v_mul_f32 %s, 0x%x, %s" % (vr(G + 8 + e), LOG2E ^ 0x80000000, vr(G + 4 + e)))
        for e in range(2):
            a("v_exp_f32 %s, %s" % (vr(G + 8 + e), vr(G + 8 + e)))
        a("s_nop 0")
        for e in range(2):
            a("v_add_f32 %s, 1.0, %s" % (vr(G + 8 + e), vr(G + 8 + e)))
        for e in range(2):
            a("v_rcp_f32 %s, %s" % (vr(G + 8 + e), vr(G + 8 + e)))
        a("s_nop 0")
        for e in range(2):
            a("v_mul_f32 %s, %s, %s" % (vr(G + 4 + e), vr(G + 4 + e), vr(G + 8 + e)))
        a("v_cvt_pk_bf16_f32 %s, %s, %s" % (vr(G + 4), vr(G + 4), vr(G + 5)))
        a("v_and_b32 %s, 0xffff0000, %s" % (vr(G + 5), vr(G + 4)))
        a("v_lshlrev_b32 %s, 16, %s" % (vr(G + 4), vr(G + 4)))
        for e in range(2):
            a("v_mul_f32 %s, %s, %s" % (vr(G + e), vr(G + e), vr(G + 4 + e)))
        a("v_cvt_pk_bf16_f32 %s, %s, %s" % (vr(G), vr(G), vr(G + 1)))
        a("v_and_b32 %s, 0xffff0000, %s" % (vr(G + 1), vr(G)))
        a("v_lshlrev_b32 %s, 16, %s" % (vr(G), vr(G)))
        a("v_and_b32 %s, 0xffff0000, %s" % (vr(G + 5), vr(XF)))
        a("v_lshlrev_b32 %s, 16, %s" % (vr(G + 4), vr(XF)))
        for e in range(2):
            a("v_add_f32 %s, %s, %s" % (vr(G + e), vr(G + e), vr(G + 4 + e)))
        a("v_cvt_pk_bf16_f32 %s, %s, %s" % (vr(G), vr(G), vr(G + 1)))
        a("s_mov_b64 exec, 0xff")
        a("global_store_dword %s, %s, %s" % (vr(OUTA), vr(G), sp(S_OUT)))
        Le = a.newlabel("E")
        a("s_cmp_lg_u32 s45, 0")
        a("s_cbranch_scc1 %s" % Le)
        a("s_mov_b64 exec, 1")
        a("v_mov_b32 %s, s%d" % (vr(G + 2), S_T))
        a("v_mov_b32 %s, s%d" % (vr(G + 3), S_T + 1))
        a("global_store_dwordx2 v1, %s, %s offset:%d sc1" % (vr(G + 2, 2), sp(S_WS), EPOCH))
        a(Le + ":")
        a("s_mov_b64 exec, -1")
        self.stamp(10)
        self.end(T)

    def build(self):
        self.prologue()
        self.role_a()
        self.role_c0()
        self.role_c1()
        self.role_c2()
        self.role_l()
        self.a("L_end:\ns_endpgm\nL_code_end:")
        return wrap(self.a.text(), 256, 512, LDS_BYTES, 192, sgpr=96)


def generate(**kw):
    return Gen(**kw).build()


if __name__ == "__main__":
    out = sys.argv[1] if len(sys.argv) > 1 else "cdna_kernels/%s.s" % NAME
    kw = {}
    for arg in sys.argv[2:]:
        k, v = arg.split("=")
        kw[k] = {"True": True, "False": False}.get(v, v)
    open(out, "w").write(generate(**kw))
    print("wrote", out)
```

```python
import sys
from asmgen import Asm, wrap, NAME

REGB = 0x400000
EPOCH = 0x0
H1 = 0x10000
ST = 0x50000
H3B = 0x70000
HB = 0x80000
H2 = 0x100000
H3S = 0x200000
H3G = 0x300000
STAMP_OFF = 256 << 20

L_Q = 0x0000
L_P = 0x0800
L_MX = 0x1800
L_O = 0x1AC0
L_XQ = 0x1880
L_XH = 0x1980
L_F = 0x1A80
L_K = 0x2000
L_V = 0xA000
L_WO = 0x12000
L_W2 = 0x16000
L_W1 = 0x1A000
F_INIT, F_QPUB, F_Q, F_REM, F_K, F_MAX, F_P, F_ST, F_V, F_OPUB, F_O, F_W1, F_SPUB, F_WO, F_W2, F_HPUB = [L_F + 4 * i for i in range(16)]
LDS_BYTES = 0x1E000

S_X, S_K, S_V, S_WQ, S_WO, S_W1, S_W2, S_OUT, S_WS = 4, 6, 8, 10, 12, 16, 18, 20, 24
S_G, S_C, S_W = 26, 27, 28
S_T = 30
S_XCC = 32
S_MODE = 33
S_MB = 34
S_T1X = 36
S_ISB = 38
S_CNT = 39
S_TMP = 40
S_STAMP = 60

LOG2E = 0x3fb8aa3b
SCALE = 0x3db504f3
A_TIMEOUT = 64
SPIN_MAX = 1 << 20
POLL_MAX = 1 << 16


def sp(n):
    return "s[%d:%d]" % (n, n + 1)


def vr(n, k=1):
    return "v%d" % n if k == 1 else "v[%d:%d]" % (n, n + k - 1)


class Gen:
    def __init__(self, stamps=False, nt_kv="nt", nt_w="nt", force_global=False, mimic=True, window=16, nb_lo=32, nb_hi=24, order="1k2ov", code_pf=0, dbg=0, ileave=1, hold=0, init=2, w2=0, chk=4, init_late=0, ogate=4, sdelay=0):
        self.a = Asm()
        self.window = int(window)
        self.nb_lo = int(nb_lo)
        self.nb_hi = int(nb_hi)
        self.order = order
        self.code_pf = int(code_pf)
        self.dbg = int(dbg)
        self.role = None
        if self.dbg:
            self.stamps = stamps = True
        self.ileave = int(ileave)
        self.hold = int(hold)
        self.init = int(init)
        self.w2 = int(w2)
        self.chk = int(chk)
        self.init_late = int(init_late)
        self.ogate = int(ogate)
        self.sdelay = int(sdelay)
        assert 4 * self.nb_lo + 4 * self.nb_hi == 224 and self.nb_lo % 8 == 0 and self.nb_hi % 8 == 0
        self.stamps = stamps
        self.nt_kv = nt_kv
        self.nt_w = nt_w
        self.force_global = force_global
        self.mimic = mimic
        self.nstamp = 0

    def stamp(self, idx):
        if self.stamps:
            self.a("s_memrealtime %s" % sp(S_STAMP + 2 * idx))

    def flag_add(self, flag, vz, vone):
        a = self.a
        a("s_mov_b64 exec, 1")
        a("ds_add_u32 %s, %s offset:%d" % (vr(vz), vr(vone), flag))
        a("s_mov_b64 exec, -1")

    def flag_set(self, flag, val, vz, vt):
        a = self.a
        a("v_mov_b32 %s, %d" % (vr(vt), val))
        a("s_mov_b64 exec, 1")
        a("ds_write_b32 %s, %s offset:%d" % (vr(vz), vr(vt), flag))
        a("s_mov_b64 exec, -1")

    def flag_wait(self, flag, n, vz, vt, sleep=0):
        a = self.a
        L, Lgo = a.newlabel("W"), a.newlabel("W")
        a("s_mov_b32 s%d, 0" % S_CNT)
        a(L + ":")
        a("ds_read_b32 %s, %s offset:%d" % (vr(vt), vr(vz), flag))
        a("s_waitcnt lgkmcnt(0)")
        a("v_readfirstlane_b32 s%d, %s" % (S_TMP, vr(vt)))
        a("s_cmp_ge_u32 s%d, %d" % (S_TMP, n))
        a("s_cbranch_scc1 %s" % Lgo)
        if sleep:
            a("s_sleep %d" % sleep)
        a("s_add_u32 s%d, s%d, 1" % (S_CNT, S_CNT))
        a("s_cmp_lt_u32 s%d, %d" % (S_CNT, SPIN_MAX))
        a("s_cbranch_scc1 %s" % L)
        a("s_branch L_end")
        a(Lgo + ":")

    def store_mode(self, vaddr, vdata, n=4):
        a = self.a
        L1, L2 = a.newlabel("S"), a.newlabel("S")
        op = "global_store_dwordx%d" % n
        a("s_cmp_lg_u32 s%d, 0" % S_MODE)
        a("s_cbranch_scc1 %s" % L1)
        a("%s %s, %s, %s" % (op, vr(vaddr), vr(vdata, n), sp(S_MB)))
        a("s_branch %s" % L2)
        a(L1 + ":")
        a("%s %s, %s, %s sc1" % (op, vr(vaddr), vr(vdata, n), sp(S_MB)))
        a(L2 + ":")

    def poll(self, loads, base, tag=S_T, limit=POLL_MAX, on_timeout="L_end", cnt=None):
        a = self.a
        L, Lok = a.newlabel("P"), a.newlabel("P")
        a("s_mov_b32 s%d, 0" % S_CNT)
        a(L + ":")
        for (vd, va, off) in loads:
            a("global_load_dwordx4 %s, %s, %s offset:%d sc1" % (vr(vd, 4), vr(va), sp(base), off))
        n = len(loads)
        for i, (vd, va, off) in enumerate(loads):
            a("s_waitcnt vmcnt(%d)" % (n - 1 - i))
            dst = "vcc" if i == 0 else sp(S_TMP)
            a("v_cmp_ne_u64 %s, %s, %s" % (dst, vr(vd + 2, 2), sp(tag)))
            if i:
                a("s_or_b64 vcc, vcc, %s" % sp(S_TMP))
        a("s_cbranch_vccz %s" % Lok)
        a("s_add_u32 s%d, s%d, 1" % (S_CNT, S_CNT))
        a("s_cmp_le_u32 s%d, %d" % (S_CNT, limit))
        a("s_cbranch_scc1 %s" % L)
        a("s_branch %s" % on_timeout)
        a(Lok + ":")
        if cnt is not None and self.stamps:
            a("s_mov_b32 s%d, s%d" % (S_STAMP + 2 * cnt, S_CNT))

    def xor_reduce(self, op, regs, steps, tmp):
        a = self.a
        for st in steps:
            if st in (16, 32):
                ins = "v_permlane16_swap_b32" if st == 16 else "v_permlane32_swap_b32"
                for i, r in enumerate(regs):
                    a("v_mov_b32 %s, %s" % (vr(tmp + i), vr(r)))
                a("s_nop 1")
                for i, r in enumerate(regs):
                    a("%s %s, %s" % (ins, vr(r), vr(tmp + i)))
                a("s_nop 1")
                for i, r in enumerate(regs):
                    a("%s %s, %s, %s" % (op, vr(r), vr(r), vr(tmp + i)))
            else:
                ctl = {1: "quad_perm:[1,0,3,2]", 2: "quad_perm:[2,3,0,1]", "hm": "row_half_mirror", "m": "row_mirror", 8: "row_ror:8", "r4": "row_ror:4"}[st]
                a("s_nop 1")
                for r in regs:
                    a("%s_dpp %s, %s, %s %s row_mask:0xf bank_mask:0xf" % (op, vr(r), vr(r), vr(r), ctl))

    def read_mode(self, vz, vt):
        a = self.a
        a("ds_read_b32 %s, %s offset:%d" % (vr(vt), vr(vz), F_REM))
        a("s_waitcnt lgkmcnt(0)")
        a("v_readfirstlane_b32 s%d, %s" % (S_MODE, vr(vt)))
        if self.force_global:
            a("s_mov_b32 s%d, 1" % S_MODE)
        a("s_min_u32 s%d, s%d, 1" % (S_MODE, S_MODE))
        a("s_mul_i32 s%d, s%d, %d" % (S_TMP, S_MODE, REGB))
        a("s_add_u32 s%d, s%d, s%d" % (S_MB, S_WS, S_TMP))
        a("s_addc_u32 s%d, s%d, 0" % (S_MB + 1, S_WS + 1))

    def tags(self):
        a = self.a
        a("s_waitcnt lgkmcnt(0)")
        a("s_add_u32 s%d, s%d, 0x9E3779B9" % (S_T, S_T))
        a("s_add_u32 s%d, s%d, 0x7F4A7C00" % (S_T + 1, S_T + 1))
        a("s_and_b32 s%d, s%d, 0xFFFFFFE0" % (S_T + 1, S_T + 1))
        a("s_or_b32 s%d, s%d, 0x10" % (S_T + 1, S_T + 1))
        a("s_mov_b32 s%d, s%d" % (S_T1X, S_T))
        a("s_or_b32 s%d, s%d, s%d" % (S_T1X + 1, S_T + 1, S_XCC))

    DBG_MAP = {"A": {0: [(0, True), (1, False)], 1: [(12, False)], 3: [(5, False)], 6: [(7, False)], 7: [(9, False)]},
               "C0": {2: [(14, False)], 4: [(15, False)], 5: [(3, False)], 9: [(8, False)]},
               "C1B": {5: [(13, False)]},
               "C2": {4: [(4, False)], 8: [(10, False)]},
               "C2F": {4: [(4, False)], 8: [(10, False)], 10: [(11, False)]},
               "L": {1: [(2, False)], 3: [(6, False)]}}

    def dump_stamps(self, vt):
        if not self.stamps:
            return
        a = self.a
        if self.dbg:
            a("s_waitcnt lgkmcnt(0)")
            a("s_mov_b64 exec, 1")
            a("v_mov_b32 %s, 0" % vr(vt))
            for st, outs in self.DBG_MAP.get(self.role, {}).items():
                for slot, inv in outs:
                    a("v_mov_b32 %s, s%d" % (vr(vt + 1), S_STAMP + 2 * st))
                    if inv:
                        a("v_not_b32 %s, %s" % (vr(vt + 1), vr(vt + 1)))
                    a("global_atomic_umax %s, %s, s[22:23] offset:%d" % (vr(vt), vr(vt + 1), 4 * slot))
            return
        a("s_waitcnt lgkmcnt(0)")
        a("s_lshl_b32 s%d, s2, 3" % S_TMP)
        a("s_add_u32 s%d, s%d, s%d" % (S_TMP, S_TMP, S_W))
        a("s_lshl_b32 s%d, s%d, 6" % (S_TMP, S_TMP))
        a("s_add_u32 s%d, s%d, %d" % (S_TMP, S_TMP, STAMP_OFF))
        a("s_mov_b64 exec, 1")
        a("v_mov_b32 %s, s%d" % (vr(vt), S_TMP))
        for i in range(16):
            a("v_mov_b32 %s, s%d" % (vr(vt + 1), S_STAMP + 2 * i))
            a("global_store_dword %s, %s, %s offset:%d" % (vr(vt), vr(vt + 1), sp(S_WS), 4 * i))

    def end(self, vt):
        self.dump_stamps(vt)
        self.a("s_endpgm")

    def layernorm_rows(self, base, lds_x, VZ, rows=128):
        a = self.a
        xs, xp = base, base + 4
        f = base + 16
        t = base + 24
        for i in range(4):
            a("v_lshlrev_b32 %s, 16, %s" % (vr(f + 2 * i), vr(xs + i)))
            a("v_and_b32 %s, 0xffff0000, %s" % (vr(f + 2 * i + 1), vr(xs + i)))
        a("v_add_f32 %s, %s, %s" % (vr(t), vr(f), vr(f + 1)))
        a("v_add_f32 %s, %s, %s" % (vr(t + 1), vr(f + 2), vr(f + 3)))
        a("v_add_f32 %s, %s, %s" % (vr(t + 2), vr(f + 4), vr(f + 5)))
        a("v_add_f32 %s, %s, %s" % (vr(t + 3), vr(f + 6), vr(f + 7)))
        a("v_add_f32 %s, %s, %s" % (vr(t), vr(t), vr(t + 1)))
        a("v_add_f32 %s, %s, %s" % (vr(t + 2), vr(t + 2), vr(t + 3)))
        a("v_add_f32 %s, %s, %s" % (vr(t), vr(t), vr(t + 2)))
        self.xor_reduce("v_add_f32", [t], [1, 2, "hm", "m", 16, 32], t + 4)
        a("v_mul_f32 %s, 0x3b000000, %s" % (vr(t), vr(t)))
        for i in range(8):
            a("v_sub_f32 %s, %s, %s" % (vr(f + i), vr(f + i), vr(t)))
        a("v_mul_f32 %s, %s, %s" % (vr(t + 1), vr(f), vr(f)))
        a("v_mul_f32 %s, %s, %s" % (vr(t + 2), vr(f + 1), vr(f + 1)))
        for i in range(2, 8, 2):
            a("v_fmac_f32 %s, %s, %s" % (vr(t + 1), vr(f + i), vr(f + i)))
            a("v_fmac_f32 %s, %s, %s" % (vr(t + 2), vr(f + i + 1), vr(f + i + 1)))
        a("v_add_f32 %s, %s, %s" % (vr(t + 1), vr(t + 1), vr(t + 2)))
        self.xor_reduce("v_add_f32", [t + 1], [1, 2, "hm", "m", 16, 32], t + 4)
        a("v_mul_f32 %s, 0x3b000000, %s" % (vr(t + 1), vr(t + 1)))
        a("v_cvt_pk_bf16_f32 %s, %s, %s" % (vr(t + 2), vr(t), vr(t + 1)))
        a("v_lshlrev_b32 %s, 16, %s" % (vr(t), vr(t + 2)))
        a("v_and_b32 %s, 0xffff0000, %s" % (vr(t + 1), vr(t + 2)))
        a("v_add_f32 %s, 0x3727c5ac, %s" % (vr(t + 1), vr(t + 1)))
        a("v_cvt_pk_bf16_f32 %s, %s, %s" % (vr(t + 1), vr(t + 1), vr(t + 1)))
        a("v_and_b32 %s, 0xffff0000, %s" % (vr(t + 1), vr(t + 1)))
        a("v_sqrt_f32 %s, %s" % (vr(t + 1), vr(t + 1)))
        a("s_nop 0")
        a("v_cvt_pk_bf16_f32 %s, %s, %s" % (vr(t + 1), vr(t + 1), vr(t + 1)))
        a("v_and_b32 %s, 0xffff0000, %s" % (vr(t + 1), vr(t + 1)))
        a("v_rcp_f32 %s, %s" % (vr(t + 2), vr(t + 1)))
        a("v_lshlrev_b32 %s, 16, %s" % (vr(f), vr(xp)))
        a("v_and_b32 %s, 0xffff0000, %s" % (vr(f + 1), vr(xp)))
        a("v_sub_f32 %s, %s, %s" % (vr(f), vr(f), vr(t)))
        a("v_sub_f32 %s, %s, %s" % (vr(f + 1), vr(f + 1), vr(t)))
        a("v_cvt_pk_bf16_f32 %s, %s, %s" % (vr(f), vr(f), vr(f + 1)))
        a("v_and_b32 %s, 0xffff0000, %s" % (vr(f + 1), vr(f)))
        a("v_lshlrev_b32 %s, 16, %s" % (vr(f), vr(f)))
        for i in range(2):
            a("v_mul_f32 %s, %s, %s" % (vr(f + 2 + i), vr(f + i), vr(t + 2)))
        for i in range(2):
            a("v_fma_f32 %s, -%s, %s, %s" % (vr(f + 4 + i), vr(f + 2 + i), vr(t + 1), vr(f + i)))
        for i in range(2):
            a("v_fmac_f32 %s, %s, %s" % (vr(f + 2 + i), vr(f + 4 + i), vr(t + 2)))
        a("v_cvt_pk_bf16_f32 %s, %s, %s" % (vr(f), vr(f + 2), vr(f + 3)))
        if rows == 128:
            a("v_lshlrev_b32 %s, 2, v0" % vr(t))
        else:
            a("v_and_b32 %s, 31, v0" % vr(t))
            a("v_lshlrev_b32 %s, 2, %s" % (vr(t), vr(t)))
        a("ds_write_b32 %s, %s offset:%d" % (vr(t), vr(f), lds_x))
        a("v_lshrrev_b32 %s, 3, v0" % vr(t))
        a("v_lshlrev_b32 %s, %d, %s" % (vr(t), 5 if rows == 128 else 4, vr(t)))
        a("ds_read_b128 %s, %s offset:%d" % (vr(base + 8, 4), vr(t), lds_x))
        if rows == 128:
            a("ds_read_b128 %s, %s offset:%d" % (vr(base + 12, 4), vr(t), lds_x + 16))

    def selectors(self, sel, tmp, both_parities):
        a = self.a
        a("v_and_b32 %s, 15, v0" % vr(tmp))
        a("v_and_b32 %s, 1, %s" % (vr(tmp + 1), vr(tmp)))
        a("v_bfe_u32 %s, %s, 1, 2" % (vr(tmp + 2), vr(tmp)))
        if not both_parities:
            a("v_lshrrev_b32 %s, 3, %s" % (vr(tmp + 3), vr(tmp)))
            a("v_lshl_add_u32 %s, %s, 2, %s" % (vr(tmp + 2), vr(tmp + 3), vr(tmp + 2)))
        a("v_cmp_eq_u32 vcc, 1, %s" % vr(tmp + 1))
        a("v_mov_b32 %s, 0x0c0c0100" % vr(tmp + 3))
        a("v_mov_b32 %s, 0x01000c0c" % vr(tmp + 4))
        a("v_cndmask_b32 %s, %s, %s, vcc" % (vr(tmp + 5), vr(tmp + 3), vr(tmp + 4)))
        a("v_mov_b32 %s, 0x0c0c0302" % vr(tmp + 3))
        a("v_mov_b32 %s, 0x03020c0c" % vr(tmp + 4))
        a("v_cndmask_b32 %s, %s, %s, vcc" % (vr(tmp + 6), vr(tmp + 3), vr(tmp + 4)))
        a("v_mov_b32 %s, 0x0c0c0c0c" % vr(tmp + 3))
        for t in range(4):
            a("v_cmp_eq_u32 vcc, %d, %s" % (t, vr(tmp + 2)))
            a("s_nop 1")
            a("v_cndmask_b32 %s, %s, %s, vcc" % (vr(sel + t), vr(tmp + 3), vr(tmp + 5)))
            a("v_cndmask_b32 %s, %s, %s, vcc" % (vr(sel + 4 + t), vr(tmp + 3), vr(tmp + 6)))

    def tile_gemv(self, W, XN, SEL, AF, ACC, nafter):
        a = self.a
        for i in range(16):
            for t in range(4):
                a("v_perm_b32 %s, %s, %s, %s" % (vr(AF + 4 * i + t), vr(XN + (i >> 1)), vr(XN + (i >> 1)), vr(SEL + 4 * (i & 1) + t)))
        for i in range(16):
            a("s_waitcnt vmcnt(%d)" % (15 - i + nafter))
            a("v_mfma_f32_16x16x32_bf16 %s, %s, %s, %s" % (vr(ACC, 4), vr(AF + 4 * i, 4), vr(W + 4 * i, 4), "0" if i == 0 else vr(ACC, 4)))
        a("s_nop 7")
        a("v_permlane32_swap_b32 %s, %s" % (vr(ACC), vr(ACC + 2)))
        a("v_permlane32_swap_b32 %s, %s" % (vr(ACC + 1), vr(ACC + 3)))
        a("s_nop 1")
        a("v_add_f32_dpp %s, %s, %s row_ror:8 row_mask:0xf bank_mask:0xf" % (vr(ACC), vr(ACC + 2), vr(ACC)))
        a("v_add_f32_dpp %s, %s, %s row_ror:8 row_mask:0xf bank_mask:0xf" % (vr(ACC + 1), vr(ACC + 3), vr(ACC + 1)))


    def prologue(self):
        a = self.a
        a("""
        s_cmp_ge_u32 s2, 256
        s_cbranch_scc1 L_end
        """)
        self.stamp(0)
        if self.code_pf == 1:
            a("s_getpc_b64 s[52:53]")
            a("L_pc:")
            a("s_lshr_b32 s54, s2, 3")
            a("s_lshl_b32 s54, s54, 10")
            a("v_lshl_add_u32 v3, v0, 4, s54")
            a("v_cmp_gt_u32 vcc, 64, v0")
            a("v_min_u32 v3, L_code_end-L_pc-16, v3")
            a("s_cbranch_vccz L_nopf")
            a("global_load_dwordx4 v[188:191], v3, s[52:53]")
            a("L_nopf:")
        elif self.code_pf:
            a("s_getpc_b64 s[52:53]")
            a("L_pc:")
            a("v_lshlrev_b32 v3, 4, v0")
            for i in range(self.code_pf):
                a("v_min_u32 v4, L_code_end-L_pc-16, v3")
                a("global_load_dwordx4 v[188:191], v4, s[52:53]")
                a("v_add_u32 v3, 0x2000, v3")
        a("""
        s_load_dwordx16 s[4:19], s[0:1], 0
        s_load_dwordx4 s[20:23], s[0:1], 64
        s_load_dwordx2 s[24:25], s[0:1], 80
        v_lshrrev_b32 v1, 6, v0
        v_and_b32 v0, 63, v0
        s_and_b32 s26, s2, 7
        s_lshr_b32 s27, s2, 3
        v_readfirstlane_b32 s28, v1
        s_getreg_b32 s32, hwreg(HW_REG_XCC_ID, 0, 4)
        s_cmp_lt_u32 s26, 4
        s_cselect_b32 s49, %d, %d             ; MLP workgroups in this group
        s_cmp_lt_u32 s27, s49
        s_cselect_b32 s38, 1, 0
        s_mul_i32 s50, s26, %d
        s_sub_u32 s51, s26, 4
        s_mul_i32 s51, s51, %d
        s_add_u32 s51, s51, %d
        s_cmp_lt_u32 s26, 4
        s_cselect_b32 s50, s50, s51
        s_lshr_b32 s51, s27, 3
        s_add_u32 s50, s50, s51               ; global column block of W1
        v_mov_b32 v1, 0
        v_mov_b32 v2, 1
        s_cmp_lg_u32 s28, 6
        s_cbranch_scc1 L_noclear
        v_lshlrev_b32 v3, 2, v0
        s_mov_b32 exec_hi, 0
        ds_write_b32 v3, v1 offset:%d
        s_mov_b64 exec, -1
        L_noclear:
        s_waitcnt lgkmcnt(0)
        s_barrier
        s_load_dwordx2 s[30:31], s[24:25], %d
        s_cmp_lt_u32 s28, 4
        s_cbranch_scc1 L_A
        s_cmp_eq_u32 s28, 4
        s_cbranch_scc1 L_C0
        s_cmp_eq_u32 s28, 5
        s_cbranch_scc1 L_C1
        s_cmp_eq_u32 s28, 6
        s_cbranch_scc1 L_C2
        s_branch L_L
        """ % (self.nb_lo, self.nb_hi, self.nb_lo // 8, self.nb_hi // 8, self.nb_lo // 2, L_F, EPOCH))

    def role_l(self):
        a = self.a
        VZ, V1 = 1, 2
        a("L_L:")
        self.role = "L"
        KO, VO = 8, 12
        WOA, WOB, W2A, W1A = 16, 17, 18, 20
        piece = 0x8000 if self.ileave else 0x400
        a("""
        s_lshl_b32 s40, s26, 24
        s_add_u32 s40, s40, 0xF00000
        s_lshl_b32 s41, s27, %d
        s_add_u32 s40, s40, s41               ; first piece of this chunk
        v_lshrrev_b32 v3, 4, v0               ; q4
        v_and_b32 v4, 15, v0                  ; pos
        v_xor_b32 v5, v4, v3
        v_lshl_add_u32 v6, v3, 8, s40
        """ % (10 if self.ileave else 15))
        for q in range(4):
            a("v_xor_b32 v7, %d, v5" % (4 * q))
            a("v_lshl_add_u32 v7, v7, 4, v6")
            a("v_add_u32 %s, %d, v7" % (vr(KO + q), 2 * q * piece))

        def rest_addresses():
            a("v_lshlrev_b32 v7, 1, v3")
            a("v_xor_b32 v7, v7, v4")
            a("v_lshl_add_u32 %s, v7, 4, v6" % vr(VO))
            a("v_xor_b32 v7, 8, v7")
            a("v_lshl_add_u32 v7, v7, 4, v6")
            a("v_add_u32 %s, %d, v7" % (vr(VO + 1), 2 * piece))
            a("""
            s_lshl_b32 s42, s26, 9                ; 512 g
            s_lshr_b32 s43, s27, 3
            s_lshl_b32 s43, s43, 7                ; 128 h
            s_add_u32 s42, s42, s43
            s_bfe_u32 s43, s27, 0x20001
            s_lshl_b32 s43, s43, 5
            s_add_u32 s42, s42, s43
            s_and_b32 s43, s27, 1
            s_lshl_b32 s43, s43, 3
            s_add_u32 s42, s42, s43               ; first Wo row
            s_lshl_b32 s42, s42, 10
            v_lshlrev_b32 v6, 4, v4               ; 16 n
            v_lshl_add_u32 v7, v3, 11, v6
            v_add_u32 %s, s42, v7
            v_add_u32 %s, 0x4000, %s
            s_lshl_b32 s42, s50, 6
            s_and_b32 s43, s27, 7
            s_lshl_b32 s43, s43, 3
            s_add_u32 s42, s42, s43               ; first W2 row = 64 cbg + 8 j
            s_lshl_b32 s42, s42, 10
            v_lshl_add_u32 v7, v3, 11, v6         ; + 2 gg rows
            v_add_u32 %s, s42, v7
            s_lshl_b32 s42, s50, 7
            s_and_b32 s43, s27, 7
            s_mul_i32 s43, s43, %d
            s_add_u32 s42, s42, s43
            v_lshrrev_b32 v6, 3, v0
            v_mul_u32_u24 v6, %d, v6
            v_and_b32 v7, 7, v0
            v_lshl_add_u32 v6, v7, 4, v6
            v_add_u32 %s, s42, v6
            """ % (vr(WOA), vr(WOB), vr(WOA), vr(W2A), 64 * 3584, 8 * 3584, vr(W1A)))

        def m0(x):
            return "s_movk_i32 m0, 0x%x\n" % x if x < 0x8000 else "s_mov_b32 m0, 0x%x\n" % x

        def seq(isb):
            ops, flags, gates = [], [], []
            for grp in self.order:
                if grp == "|":
                    gates.append(len(ops))
                elif grp == "k":
                    for w in range(4):
                        for q in range(4):
                            for t in range(2):
                                p = 8 * w + 2 * q + t
                                ops.append((m0(L_K + 1024 * p), "global_load_lds_dwordx4 %s, %s %s" % (vr(KO + q), sp(S_K), self.nt_kv),
                                            "v_add_u32 %s, 0x%x, %s" % (vr(KO + q), (1 if t == 0 else 7) * piece, vr(KO + q))))
                    flags.append((len(ops), F_K))
                elif grp == "v":
                    for w in range(4):
                        for i in range(8):
                            b = (i >> 1) & 1
                            ops.append((m0(L_V + 1024 * (8 * w + i)), "global_load_lds_dwordx4 %s, %s %s" % (vr(VO + b), sp(S_V), self.nt_kv),
                                        "v_add_u32 %s, 0x%x, %s" % (vr(VO + b), (1 if (i & 1) == 0 else 3) * piece, vr(VO + b))))
                        flags.append((len(ops), F_V))
                elif grp == "o":
                    for w in range(4):
                        for i in range(4):
                            off = 256 * w + 1024 * (i >> 1)
                            ops.append((m0(L_WO + (4 * w + i) * 1024 - off),
                                        "global_load_lds_dwordx4 %s, %s offset:%d %s" % (vr(WOA if (i & 1) == 0 else WOB), sp(S_WO), off, self.nt_w), ""))
                    flags.append((len(ops), F_WO))
                elif grp == "2" and isb:
                    for w in range(4):
                        for i in range(2):
                            off = 256 * w + 1024 * i
                            ops.append((m0(L_W2 + (2 * w + i) * 1024 - off),
                                        "global_load_lds_dwordx4 %s, %s offset:%d %s" % (vr(W2A), sp(S_W2), off, self.nt_w), ""))
                    flags.append((len(ops), F_W2))
                elif grp == "1" and isb:
                    for i in range(8):
                        ops.append((m0(L_W1 + 1024 * i), "global_load_lds_dwordx4 %s, %s %s" % (vr(W1A), sp(S_W1), self.nt_w),
                                    "v_add_u32 %s, 3584, %s" % (vr(W1A), vr(W1A))))
                    flags.append((len(ops), F_W1))
            return ops, flags, gates

        W = self.window
        rest_addresses()
        self.stamp(1)

        def with_values(flags):
            out, nv = [], 0
            for (e, f) in flags:
                if f == F_V:
                    nv += 1
                    out.append((e, f, nv))
                else:
                    out.append((e, f, 1))
            return out

        def run(ops, flags, gates, W, start, labels=None, check_to=None):
            n = len(ops)
            pend = [f for f in flags if f[0] > max(0, start - (W - 1)) or start == 0]
            hold = self.hold
            for j in range(start, n):
                pre, ld, post = ops[j]
                if labels and j in labels:
                    a(labels[j] + ":")
                if hold and j == hold:
                    while pend and pend[0][0] <= j:
                        e, f, val = pend.pop(0)
                        a("s_waitcnt vmcnt(%d)" % (j - e))
                        self.flag_set(f, val, VZ, 22)
                    self.flag_wait(F_QPUB, 1, VZ, 21)
                    if isb_cur[0] and self.order[0] == "1":
                        self.flag_wait(F_HPUB, 1, VZ, 21)
                    self.stamp(4)
                if j in gates:
                    while pend and pend[0][0] <= j:
                        e, f, val = pend.pop(0)
                        a("s_waitcnt vmcnt(%d)" % (j - e))
                        self.flag_set(f, val, VZ, 22)
                    self.flag_wait(F_OPUB, 4, VZ, 21)
                chk = check_to is not None and j in check_to
                if chk:
                    a("ds_read_b32 v21, %s offset:%d" % (vr(VZ), F_Q))
                if j >= W and not any(g <= j < g + W for g in gates):
                    a("s_waitcnt vmcnt(%d)" % (W - 1))
                    landed = j - (W - 1)
                    while pend and pend[0][0] <= landed:
                        e, f, val = pend.pop(0)
                        self.flag_set(f, val, VZ, 22)
                if chk:
                    a("s_waitcnt lgkmcnt(0)")
                    a("v_readfirstlane_b32 s%d, v21" % S_TMP)
                    a("s_cmp_lg_u32 s%d, 0" % S_TMP)
                    a("s_cbranch_scc1 %s" % check_to[j])
                a(pre)
                a("s_nop 0")
                a(ld)
                if post:
                    a(post)
            self.stamp(2)
            for (e, f, val) in pend:
                a("s_waitcnt vmcnt(%d)" % (n - e))
                self.flag_set(f, val, VZ, 22)
            self.stamp(3)
            self.end(3)

        isb_cur = [False]

        def emit(isb):
            isb_cur[0] = isb
            ops, flags, gates = seq(isb)
            flags = with_values(flags)
            n = len(ops)
            if not self.w2:
                run(ops, flags, gates, W, 0)
                return
            points = [j for j in range(W, n - 8) if (j - W) % self.chk == 0]
            labels = {j: a.newlabel("FAST") for j in points}
            run(ops, flags, gates, W, 0, check_to=labels)
            run(ops, flags, gates, self.w2, points[0], labels=labels)

        Lb = a.newlabel("LB")
        a("s_cmp_lg_u32 s%d, 0" % S_ISB)
        a("s_cbranch_scc1 %s" % Lb)
        emit(False)
        a(Lb + ":")
        emit(True)

    def role_a(self):
        a = self.a
        VZ, V1 = 1, 2
        T = 5
        a("L_A:")
        self.role = "A"
        a("s_setprio 1")
        KO, VO, QA = 16, 20, 24
        a("""
        v_lshrrev_b32 v3, 4, v0               ; gg
        v_and_b32 v4, 15, v0                  ; m
        s_lshl_b32 s41, s28, 13
        v_and_b32 v5, 3, v4                   ; b = m & 3
        v_lshrrev_b32 v6, 2, v4               ; a = m >> 2
        v_lshlrev_b32 v7, 11, v6
        v_lshl_add_u32 v7, v5, 8, v7
        v_xor_b32 v8, v3, v5
        v_lshl_add_u32 v7, v8, 4, v7
        v_add_u32 v7, s41, v7
        """)
        for s in range(4):
            a("v_xor_b32 v8, %d, v6" % s)
            a("v_lshl_add_u32 %s, v8, 6, v7" % vr(KO + s))
        a("v_mul_u32_u24 v8, 320, v6")
        a("v_lshl_add_u32 %s, v3, 4, v8" % vr(QA))
        a("""
        v_lshrrev_b32 v8, 2, v4               ; r
        v_and_b32 v9, 3, v4                   ; cq
        v_and_b32 v10, 1, v3
        v_lshl_or_b32 v10, v10, 2, v8         ; sigma
        v_lshl_add_u32 v11, v3, 3, v8         ; 8 gg + r
        v_lshlrev_b32 v11, 8, v11
        v_lshl_add_u32 v11, v9, 3, v11
        v_add_u32 v11, %d, v11
        s_lshl_b32 s42, s28, 1
        """ % L_V)
        for u in range(2):
            a("s_add_u32 s43, s42, %d" % u)
            a("v_xor_b32 v12, s43, v10")
            a("v_lshl_add_u32 %s, v12, 5, v11" % vr(VO + u))
        WOA = 22
        a("s_lshl_b32 s42, s28, 12")
        a("s_add_u32 s42, s42, %d" % L_WO)
        a("v_lshl_add_u32 %s, v0, 4, s42" % vr(WOA))
        SEL = 28
        self.selectors(SEL, T, both_parities=False)
        self.tags()
        TG = 36
        a("v_mov_b32 %s, s%d" % (vr(TG + 2), S_T))
        a("v_mov_b32 %s, s%d" % (vr(TG + 3), S_T + 1))
        OA, SA, STA = 40, 41, 43
        a("""
        s_lshl_b32 s42, s26, 17               ; g * 131072
        s_lshl_b32 s43, s27, 7                ; c * 128
        s_add_u32 s42, s42, s43
        v_and_b32 v12, 7, v0
        v_lshlrev_b32 v12, 4, v12             ; slot * 16
        v_bfe_u32 v13, v0, 3, 1               ; b
        v_lshl_add_u32 v13, v3, 3, v13        ; 8 h + b
        s_lshl_b32 s43, s28, 1
        v_add_u32 v13, s43, v13               ; + 2 w
        v_lshl_add_u32 v13, v13, 12, v12
        s_add_u32 s43, s42, %d
        v_add_u32 %s, s43, v13
        v_lshrrev_b32 v13, 3, v0
        s_lshl_b32 s43, s28, 3
        v_add_u32 v13, s43, v13               ; 8 w + (l >> 3)
        v_lshl_add_u32 v14, v13, 12, v12
        s_add_u32 s43, s42, %d
        v_add_u32 %s, s43, v14
        s_lshl_b32 s42, s26, 11
        s_lshl_b32 s43, s27, 4
        s_add_u32 s42, s42, s43
        s_add_u32 s42, s42, %d
        v_lshl_add_u32 %s, v3, 9, s42
        """ % (H2, vr(OA), H3S, vr(SA), ST, vr(STA)))
        MXW, PWA, PRA, MRA, ORA = 25, 26, 27, 45, 46
        a("""
        v_lshrrev_b32 v12, 2, v4
        v_lshlrev_b32 v12, 4, v12             ; head (l & 15) >> 2, * 16
        s_lshl_b32 s42, s28, 2
        v_add_u32 %s, s42, v12                ; + wave * 4
        v_lshlrev_b32 %s, 4, v0
        s_lshl_b32 s42, s28, 10
        v_add_u32 %s, s42, %s
        v_lshlrev_b32 %s, 4, v3
        v_lshlrev_b32 %s, 4, v3
        """ % (vr(MXW), vr(PRA), vr(PWA), vr(PRA), vr(MRA), vr(ORA)))
        OD = 112
        KF = 48
        QF = 80
        WO = 96
        self.flag_wait(F_K, 1, VZ, T, sleep=2)
        self.stamp(1)
        for t in range(2):
            for s in range(4):
                a("ds_read_b128 %s, %s offset:%d" % (vr(KF + 16 * t + 4 * s, 4), vr(KO + s), L_K + 1024 * t))
        self.flag_wait(F_Q, 1, VZ, T, sleep=1)
        self.stamp(2)
        for s in range(4):
            a("ds_read_b128 %s, %s offset:%d" % (vr(QF + 4 * s, 4), vr(QA), L_Q + 64 * s))
        self.read_mode(VZ, T)
        SC = 112
        for s in range(4):
            for t in range(2):
                a("v_mfma_f32_16x16x32_bf16 %s, %s, %s, %s" % (vr(SC + 4 * t, 4), vr(KF + 16 * t + 4 * s, 4), vr(QF + 4 * s, 4), "0" if s == 0 else vr(SC + 4 * t, 4)))
        a("s_nop 7")
        if self.mimic:
            for i in range(4):
                a("v_cvt_pk_bf16_f32 %s, %s, %s" % (vr(T + i), vr(SC + 2 * i), vr(SC + 2 * i + 1)))
            for i in range(4):
                a("v_lshlrev_b32 %s, 16, %s" % (vr(SC + 2 * i), vr(T + i)))
                a("v_and_b32 %s, 0xffff0000, %s" % (vr(SC + 2 * i + 1), vr(T + i)))
        for i in range(8):
            a("v_mul_f32 %s, 0x%x, %s" % (vr(SC + i), SCALE, vr(SC + i)))
        if self.mimic:
            for i in range(4):
                a("v_cvt_pk_bf16_f32 %s, %s, %s" % (vr(T + i), vr(SC + 2 * i), vr(SC + 2 * i + 1)))
            for i in range(4):
                a("v_lshlrev_b32 %s, 16, %s" % (vr(SC + 2 * i), vr(T + i)))
                a("v_and_b32 %s, 0xffff0000, %s" % (vr(SC + 2 * i + 1), vr(T + i)))
        MX = 44
        a("v_max3_f32 %s, %s, %s, %s" % (vr(T), vr(SC), vr(SC + 1), vr(SC + 2)))
        a("v_max3_f32 %s, %s, %s, %s" % (vr(T + 1), vr(SC + 3), vr(SC + 4), vr(SC + 5)))
        a("v_max3_f32 %s, %s, %s, %s" % (vr(T), vr(T), vr(SC + 6), vr(SC + 7)))
        a("v_max_f32 %s, %s, %s" % (vr(MX), vr(T), vr(T + 1)))
        self.xor_reduce("v_max_f32", [MX], [16, 32], T)
        a("v_mov_b32 %s, 0x%x" % (vr(T + 8), LOG2E))
        a("v_mul_f32 %s, %s, %s" % (vr(T + 9), vr(MX), vr(T + 8)))
        a("s_mov_b64 exec, 0x1111")
        a("ds_write_b32 %s, %s offset:%d" % (vr(MXW), vr(MX), L_MX))
        a("s_mov_b64 exec, -1")
        for i in range(8):
            a("v_fma_f32 %s, %s, %s, -%s" % (vr(SC + i), vr(SC + i), vr(T + 8), vr(T + 9)))
        for i in range(8):
            a("v_exp_f32 %s, %s" % (vr(SC + i), vr(SC + i)))
        PF = 48
        a("s_nop 0")
        for i in range(4):
            a("v_cvt_pk_bf16_f32 %s, %s, %s" % (vr(T + 1 + i), vr(SC + 2 * i), vr(SC + 2 * i + 1)))
        a("ds_write_b128 %s, %s offset:%d" % (vr(PWA), vr(T + 1, 4), L_P))
        self.flag_add(F_P, VZ, V1)
        self.flag_wait(F_P, 4, VZ, T + 6)
        for ks in range(4):
            a("ds_read_b128 %s, %s offset:%d" % (vr(PF + 4 * ks, 4), vr(PRA), L_P + 1024 * ks))
        FW = 120
        a("ds_read_b128 %s, %s offset:%d" % (vr(FW, 4), vr(MRA), L_MX))
        self.stamp(3)
        a("s_waitcnt lgkmcnt(0)")
        a("v_max3_f32 %s, %s, %s, %s" % (vr(MX), vr(FW), vr(FW + 1), vr(FW + 2)))
        a("v_max_f32 %s, %s, %s" % (vr(MX), vr(MX), vr(FW + 3)))
        a("v_mul_f32 %s, %s, %s" % (vr(T + 9), vr(MX), vr(T + 8)))
        for i in range(4):
            a("v_fma_f32 %s, %s, %s, -%s" % (vr(FW + i), vr(FW + i), vr(T + 8), vr(T + 9)))
        for i in range(4):
            a("v_exp_f32 %s, %s" % (vr(FW + i), vr(FW + i)))
        D = 128
        TS = 124
        Lns = a.newlabel("NS")
        a("s_cmp_lg_u32 s28, 0")
        a("s_cbranch_scc1 %s" % Lns)
        ON = 64
        for t in range(4):
            a("v_mov_b32 %s, 0x3f803f80" % vr(ON + t))
        a("s_nop 1")
        for ks in range(4):
            a("v_mfma_f32_16x16x32_bf16 %s, %s, %s, 0" % (vr(D + 4 * ks, 4), vr(PF + 4 * ks, 4), vr(ON, 4)))
        a("v_mov_b32 %s, %s" % (vr(TS), vr(MX)))
        a("v_mov_b32 %s, %s" % (vr(TS + 2), vr(TG + 2)))
        a("v_mov_b32 %s, %s" % (vr(TS + 3), vr(TG + 3)))
        a("s_nop 4")
        a("v_mul_f32 %s, %s, %s" % (vr(TS + 1), vr(FW), vr(D)))
        for ks in range(1, 4):
            a("v_fmac_f32 %s, %s, %s" % (vr(TS + 1), vr(FW + ks), vr(D + 4 * ks)))
        a(Lns + ":")
        wo_first = self.order.index("o") < self.order.index("v")

        def read_wo():
            self.flag_wait(F_WO, 1, VZ, T, sleep=0 if not wo_first else 1)
            for i in range(4):
                a("ds_read_b128 %s, %s offset:%d" % (vr(WO + 4 * i, 4), vr(WOA), 1024 * i))
        if wo_first:
            read_wo()
        self.stamp(4)
        VF = 64
        S_V = 44
        a("s_mov_b32 s%d, 0" % S_V)
        for ks in range(4):
            Lgo, Lsp = a.newlabel("V"), a.newlabel("V")
            a("s_cmp_ge_u32 s%d, %d" % (S_V, ks + 1))
            a("s_cbranch_scc1 %s" % Lgo)
            a("s_mov_b32 s%d, 0" % S_CNT)
            a(Lsp + ":")
            a("ds_read_b32 %s, %s offset:%d" % (vr(T), vr(VZ), F_V))
            a("s_add_u32 s%d, s%d, 1" % (S_CNT, S_CNT))
            a("s_cmp_gt_u32 s%d, %d" % (S_CNT, SPIN_MAX))
            a("s_cbranch_scc1 L_end")
            a("s_waitcnt lgkmcnt(0)")
            a("v_readfirstlane_b32 s%d, %s" % (S_V, vr(T)))
            a("s_cmp_lt_u32 s%d, %d" % (S_V, ks + 1))
            a("s_cbranch_scc1 %s" % Lsp)
            a(Lgo + ":")
            if ks == 3:
                self.stamp(5)
            for u in range(2):
                for jh in range(2):
                    a("ds_read_b64_tr_b16 %s, %s offset:%d" % (vr(VF + 8 * ks + 4 * u + 2 * jh, 2), vr(VO + u), 8192 * ks + 1024 * jh))
            if ks:
                a("s_waitcnt lgkmcnt(4)")
                for u in range(2):
                    a("v_mfma_f32_16x16x32_bf16 %s, %s, %s, 0" % (vr(D + 8 * (ks - 1) + 4 * u, 4), vr(PF + 4 * (ks - 1), 4), vr(VF + 8 * (ks - 1) + 4 * u, 4)))
        for u in range(2):
            a("s_waitcnt lgkmcnt(%d)" % (2 - 2 * u))
            a("v_mfma_f32_16x16x32_bf16 %s, %s, %s, 0" % (vr(D + 24 + 4 * u, 4), vr(PF + 12, 4), vr(VF + 24 + 4 * u, 4)))
        a("v_mul_f32 %s, %s, %s" % (vr(TG), vr(FW), vr(D)))
        a("v_mul_f32 %s, %s, %s" % (vr(TG + 1), vr(FW), vr(D + 4)))
        for ks in range(1, 3):
            a("v_fmac_f32 %s, %s, %s" % (vr(TG), vr(FW + ks), vr(D + 8 * ks)))
            a("v_fmac_f32 %s, %s, %s" % (vr(TG + 1), vr(FW + ks), vr(D + 8 * ks + 4)))
        a("s_nop 1")
        a("v_fmac_f32 %s, %s, %s" % (vr(TG), vr(FW + 3), vr(D + 24)))
        a("v_fmac_f32 %s, %s, %s" % (vr(TG + 1), vr(FW + 3), vr(D + 28)))
        self.store_mode(OA, TG)
        Lns = a.newlabel("NS")
        a("s_cmp_lg_u32 s28, 0")
        a("s_cbranch_scc1 %s" % Lns)
        a("s_mov_b32 s42, 0x00010001")
        a("s_mov_b32 s43, 0x00010001")
        a("s_mov_b64 exec, s[42:43]")
        self.store_mode(STA, TS)
        a("s_mov_b64 exec, -1")
        a(Lns + ":")
        self.flag_add(F_OPUB, VZ, V1)
        self.stamp(6)
        if not wo_first:
            read_wo()
        AF = 64
        OG = 8
        Lsp = a.newlabel("O")
        a("s_mov_b32 s%d, 0" % S_CNT)
        a(Lsp + ":")
        a("ds_read_b128 %s, %s offset:%d" % (vr(OG, 4), vr(ORA), L_O))
        a("s_add_u32 s%d, s%d, 1" % (S_CNT, S_CNT))
        a("s_cmp_gt_u32 s%d, %d" % (S_CNT, SPIN_MAX))
        a("s_cbranch_scc1 L_end")
        a("s_waitcnt lgkmcnt(0)")
        a("v_and_b32 %s, %s, %s" % (vr(OG + 1), vr(OG + 1), vr(OG + 3)))
        a("v_cmp_ne_u32 vcc, 1, %s" % vr(OG + 1))
        a("s_cbranch_vccnz %s" % Lsp)
        for i in range(4):
            src = OG + 2 * (i >> 1)
            for t in range(4):
                a("v_perm_b32 %s, %s, %s, %s" % (vr(AF + 4 * i + t), vr(src), vr(src), vr(SEL + 4 * (i & 1) + t)))
            if i:
                a("v_mfma_f32_16x16x32_bf16 %s, %s, %s, %s" % (vr(OD, 4), vr(AF + 4 * (i - 1), 4), vr(WO + 4 * (i - 1), 4), "0" if i == 1 else vr(OD, 4)))
        a("s_nop 1")
        a("v_mfma_f32_16x16x32_bf16 %s, %s, %s, %s" % (vr(OD, 4), vr(AF + 12, 4), vr(WO + 12, 4), vr(OD, 4)))
        a("s_nop 7")
        a("v_permlane32_swap_b32 %s, %s" % (vr(OD), vr(OD + 2)))
        a("v_permlane32_swap_b32 %s, %s" % (vr(OD + 1), vr(OD + 3)))
        a("v_mov_b32 %s, %s" % (vr(TG), vr(OD)))
        a("v_mov_b32 %s, %s" % (vr(TG + 1), vr(OD + 1)))
        self.store_mode(SA, TG)
        self.stamp(7)
        self.end(T)

    def role_c0(self):
        a = self.a
        VZ, V1 = 1, 2
        X = 4
        W = 40
        AF = 104
        SEL = 168
        ACC = 176
        T = 180
        a("L_C0:")
        self.role = "C0"
        a("s_setprio 3")
        a("""
        v_lshlrev_b32 v3, 4, v0
        global_load_dwordx4 %s, v3, %s
        s_lshr_b32 s40, s27, 3                ; rb
        s_lshl_b32 s41, s40, 8
        v_lshl_add_u32 v3, v0, 2, s41
        global_load_dword %s, v3, %s
        s_lshl_b32 s41, s40, 20               ; rb * 128 * 8192
        s_lshl_b32 s42, s26, 10               ; g * 512 * 2
        s_add_u32 s41, s41, s42
        s_and_b32 s42, s27, 7
        s_lshl_b32 s42, s42, 7                ; cb * 128
        s_add_u32 s41, s41, s42
        v_lshrrev_b32 v3, 3, v0
        v_lshlrev_b32 v3, 17, v3              ; 16 rows * 8192
        v_and_b32 v36, 7, v0
        v_lshl_add_u32 v3, v36, 4, v3
        v_add_u32 v3, s41, v3
        """ % (vr(X, 4), sp(S_X), vr(X + 4), sp(S_X)))
        for i in range(16):
            a("global_load_dwordx4 %s, v3, %s %s" % (vr(W + 4 * i, 4), sp(S_WQ), self.nt_w))
            if i < 15:
                a("v_add_u32 v3, 0x2000, v3")
        if self.init_late:
            self.flag_add(F_ST, VZ, V1)
        self.stamp(1)
        self.selectors(SEL, T, both_parities=True)
        a("s_waitcnt vmcnt(16)")
        self.stamp(2)
        self.layernorm_rows(X, L_XQ, VZ)
        self.tags()
        a("s_waitcnt lgkmcnt(0)")
        self.stamp(3)
        self.tile_gemv(W, X + 8, SEL, AF, ACC, 0)
        self.stamp(4)
        a("v_mov_b32 %s, s%d" % (vr(ACC + 2), S_T1X))
        a("v_mov_b32 %s, s%d" % (vr(ACC + 3), S_T1X + 1))
        a("""
        s_lshl_b32 s41, s26, 14               ; g * 16384
        s_lshr_b32 s42, s27, 3
        s_lshl_b32 s42, s42, 12               ; rb * 4096
        s_add_u32 s41, s41, s42
        s_and_b32 s42, s27, 7
        s_lshl_b32 s42, s42, 9                ; cb * 512
        s_add_u32 s41, s41, s42
        s_add_u32 s41, s41, %d
        v_lshrrev_b32 v3, 4, v0               ; 2 hi + g'
        v_lshlrev_b32 v3, 3, v3
        v_and_b32 v36, 7, v0
        v_add_u32 v3, v3, v36                 ; pos = 16 hi + 8 g' + n
        v_lshl_add_u32 v3, v3, 4, s41
        v_add_u32 v37, %d, v3
        """ % (H1, REGB))
        self.flag_wait(F_INIT, 1, VZ, T)
        a("s_mov_b32 s42, 0x00ff00ff")
        a("s_mov_b32 s43, 0x00ff00ff")
        a("s_mov_b64 exec, s[42:43]")
        a("global_store_dwordx4 v3, %s, %s" % (vr(ACC, 4), sp(S_WS)))
        a("s_mov_b64 exec, -1")
        self.flag_add(F_QPUB, VZ, V1)
        a("s_mov_b64 exec, s[42:43]")
        a("global_store_dwordx4 v37, %s, %s sc1" % (vr(ACC, 4), sp(S_WS)))
        a("s_mov_b64 exec, -1")
        self.stamp(5)
        SA, OA = 4, 5
        G = 8
        a("""
        s_lshl_b32 s41, s26, 11               ; g * 2048
        s_lshr_b32 s42, s27, 3
        s_lshl_b32 s42, s42, 9                ; head * 512
        s_add_u32 s41, s41, s42
        s_add_u32 s41, s41, %d
        v_lshrrev_b32 v3, 3, v0
        v_lshl_add_u32 %s, v3, 4, s41
        s_lshl_b32 s41, s26, 17
        s_lshl_b32 s42, s27, 12
        s_add_u32 s41, s41, s42
        s_add_u32 s41, s41, %d
        v_lshl_add_u32 %s, v0, 4, s41
        """ % (ST, vr(SA), H2, vr(OA)))
        a("v_lshlrev_b32 v6, 3, v0")
        self.flag_wait(F_Q, 1, VZ, T, sleep=2)
        self.read_mode(VZ, T)
        self.stamp(6)
        GO = 40
        self.flag_wait(F_OPUB, self.ogate, VZ, T, sleep=1)
        self.stamp(7)
        self.poll([(G + 4 * i, SA, 128 * i) for i in range(4)] + [(GO + 4 * i, OA, 1024 * i) for i in range(4)], S_MB, cnt=12)
        self.stamp(8)
        MX = 24
        a("v_max3_f32 %s, %s, %s, %s" % (vr(MX), vr(G), vr(G + 4), vr(G + 8)))
        a("v_max_f32 %s, %s, %s" % (vr(MX), vr(MX), vr(G + 12)))
        self.xor_reduce("v_max_f32", [MX], [8, 16, 32], T)
        WT = 26
        for i in range(4):
            a("v_sub_f32 %s, %s, %s" % (vr(WT + i), vr(G + 4 * i), vr(MX)))
        for i in range(4):
            a("v_mul_f32 %s, 0x%x, %s" % (vr(WT + i), LOG2E, vr(WT + i)))
        for i in range(4):
            a("v_exp_f32 %s, %s" % (vr(WT + i), vr(WT + i)))
        LS, A0, A1 = 25, 30, 31
        a("s_nop 0")
        a("v_mul_f32 %s, %s, %s" % (vr(A0), vr(WT), vr(GO)))
        a("v_mul_f32 %s, %s, %s" % (vr(A1), vr(WT), vr(GO + 1)))
        a("v_mul_f32 %s, %s, %s" % (vr(LS), vr(WT), vr(G + 1)))
        for i in range(1, 4):
            a("v_fmac_f32 %s, %s, %s" % (vr(A0), vr(WT + i), vr(GO + 4 * i)))
            a("v_fmac_f32 %s, %s, %s" % (vr(A1), vr(WT + i), vr(GO + 4 * i + 1)))
            a("v_fmac_f32 %s, %s, %s" % (vr(LS), vr(WT + i), vr(G + 4 * i + 1)))
        self.xor_reduce("v_add_f32", [LS, A0, A1], [8, 16, 32], T)
        a("v_rcp_f32 %s, %s" % (vr(T), vr(LS)))
        a("s_nop 0")
        a("v_fma_f32 %s, -%s, %s, 1.0" % (vr(T + 1), vr(T), vr(LS)))
        a("v_fmac_f32 %s, %s, %s" % (vr(T), vr(T + 1), vr(T)))
        a("v_mul_f32 %s, %s, %s" % (vr(A0), vr(A0), vr(T)))
        a("v_mul_f32 %s, %s, %s" % (vr(A1), vr(A1), vr(T)))
        a("v_cvt_pk_bf16_f32 %s, %s, %s" % (vr(A0), vr(A0), vr(A1)))
        a("v_mov_b32 %s, 1" % vr(A1))
        a("s_mov_b64 exec, 0xff")
        a("ds_write_b64 %s, %s offset:%d" % (vr(6), vr(A0, 2), L_O))
        a("s_mov_b64 exec, -1")
        self.stamp(9)
        self.end(T)

    def role_c1(self):
        a = self.a
        VZ, V1 = 1, 2
        X = 4
        W = 40
        AF = 104
        SEL = 168
        ACC = 176
        T = 180
        a("L_C1:")
        self.role = "C1"
        a("s_setprio 3")
        a("""
        v_lshlrev_b32 v3, 4, v0
        global_load_dwordx4 %s, v3, %s
        s_and_b32 s40, s27, 7                 ; row block of W1
        s_lshl_b32 s41, s40, 7
        v_and_b32 v3, 31, v0
        v_lshl_add_u32 v3, v3, 2, s41
        global_load_dword %s, v3, %s
        """ % (vr(X, 4), sp(S_X), vr(X + 4), sp(S_X)))
        if self.init_late:
            self.flag_wait(F_ST, 1, VZ, T)
        Z = 36
        for i in range(4):
            a("v_mov_b32 %s, 0" % vr(Z + i))
        a("""
        s_lshl_b32 s41, s26, 17
        s_lshl_b32 s42, s27, 12
        s_add_u32 s41, s41, s42
        v_lshl_add_u32 v3, v0, 4, s41
        v_add_u32 v40, %d, v3
        v_add_u32 v41, %d, v3
        v_add_u32 v3, %d, v3
        """ % (H3S, H3G, H2))
        for r in (3, 40, 41):
            for i in range(4 if self.init & 1 else 0):
                a("global_store_dwordx4 v%d, %s, %s offset:%d" % (r, vr(Z, 4), sp(S_WS), 1024 * i))
        a("""
        s_lshl_b32 s41, s26, 14
        s_lshr_b32 s42, s27, 3
        s_lshl_b32 s42, s42, 12
        s_add_u32 s41, s41, s42
        s_and_b32 s42, s27, 7
        s_lshl_b32 s42, s42, 9
        s_add_u32 s41, s41, s42
        s_add_u32 s41, s41, %d
        v_lshl_add_u32 v3, v0, 4, s41
        s_lshl_b32 s41, s26, 11
        s_lshr_b32 s42, s27, 3
        s_lshl_b32 s42, s42, 9
        s_add_u32 s41, s41, s42
        s_add_u32 s41, s41, %d
        v_lshl_add_u32 v40, v0, 4, s41
        s_lshl_b32 s41, s26, 14
        s_lshl_b32 s42, s27, 9
        s_add_u32 s44, s41, s42
        s_add_u32 s44, s44, %d
        v_lshl_add_u32 v41, v0, 4, s44
        s_mov_b32 exec_lo, -1
        s_mov_b32 exec_hi, 0
        """ % (H1, ST, HB))
        if self.init & 2:
            a("global_store_dwordx4 v3, %s, %s" % (vr(Z, 4), sp(S_WS)))
            a("global_store_dwordx4 v41, %s, %s" % (vr(Z, 4), sp(S_WS)))
        Ls = a.newlabel("I")
        a("""
        s_and_b32 s41, s27, 7
        s_cmp_lg_u32 s41, 0
        s_cbranch_scc1 %s
        %s
        %s:
        s_mov_b64 exec, -1
        """ % (Ls, "global_store_dwordx4 v40, %s, %s" % (vr(Z, 4), sp(S_WS)) if self.init & 2 else "s_nop 0", Ls))
        a("s_waitcnt vmcnt(0)")
        self.flag_add(F_INIT, VZ, V1)
        self.stamp(1)
        Lb = a.newlabel("B")
        a("s_cmp_lg_u32 s%d, 0" % S_ISB)
        a("s_cbranch_scc1 %s" % Lb)
        self.end(T)
        a(Lb + ":")
        self.role = "C1B"
        self.selectors(SEL, T, both_parities=True)
        self.layernorm_rows(X, L_XH, VZ, rows=64)
        self.tags()
        a("v_lshlrev_b32 v3, 4, v0")
        a("v_add_u32 v37, %d, v3" % L_W1)
        a("v_add_u32 v38, %d, v3" % L_W2)
        XN = X + 8
        for i in range(8):
            for t in range(4):
                a("v_perm_b32 %s, %s, %s, %s" % (vr(AF + 4 * i + t), vr(XN + (i >> 1)), vr(XN + (i >> 1)), vr(SEL + 4 * (i & 1) + t)))
        a("""
        v_lshrrev_b32 v3, 4, v0
        v_lshlrev_b32 v3, 3, v3
        v_and_b32 v36, 7, v0
        v_add_u32 v3, v3, v36
        v_lshl_add_u32 v3, v3, 4, s44
        s_lshr_b32 s41, s27, 3
        s_lshl_b32 s41, s41, 12               ; cbl * 4096
        s_lshl_b32 s42, s26, 14
        s_add_u32 s41, s41, s42
        s_and_b32 s42, s27, 7
        s_lshl_b32 s42, s42, 4                ; j * 16
        s_add_u32 s41, s41, s42
        s_add_u32 s41, s41, %d
        v_bfe_u32 v4, v0, 2, 3
        v_lshlrev_b32 v4, 9, v4               ; producer * 512
        v_and_b32 v5, 1, v0
        v_lshl_add_u32 v4, v5, 8, v4          ; 16 (q & 1) * 16
        v_bfe_u32 v5, v0, 1, 1
        v_lshl_add_u32 v4, v5, 7, v4          ; 8 (q >> 1) * 16
        v_add_u32 v4, s41, v4
        """ % HB)
        self.flag_wait(F_W1, 1, VZ, T, sleep=2)
        self.stamp(2)
        for i in range(8):
            a("ds_read_b128 %s, v37 offset:%d" % (vr(W + 4 * i, 4), 1024 * i))
        for i in range(8):
            a("s_waitcnt lgkmcnt(%d)" % (7 - i))
            a("v_mfma_f32_16x16x32_bf16 %s, %s, %s, %s" % (vr(ACC, 4), vr(AF + 4 * i, 4), vr(W + 4 * i, 4), "0" if i == 0 else vr(ACC, 4)))
        a("s_nop 7")
        a("v_permlane32_swap_b32 %s, %s" % (vr(ACC), vr(ACC + 2)))
        a("v_permlane32_swap_b32 %s, %s" % (vr(ACC + 1), vr(ACC + 3)))
        a("s_nop 1")
        a("v_add_f32_dpp %s, %s, %s row_ror:8 row_mask:0xf bank_mask:0xf" % (vr(ACC), vr(ACC + 2), vr(ACC)))
        a("v_add_f32_dpp %s, %s, %s row_ror:8 row_mask:0xf bank_mask:0xf" % (vr(ACC + 1), vr(ACC + 3), vr(ACC + 1)))
        self.stamp(3)
        a("v_mov_b32 %s, s%d" % (vr(ACC + 2), S_T))
        a("v_mov_b32 %s, s%d" % (vr(ACC + 3), S_T + 1))
        a("v_add_u32 v5, %d, v3" % REGB)
        a("s_mov_b32 s42, 0x00ff00ff")
        a("s_mov_b32 s43, 0x00ff00ff")
        a("s_mov_b64 exec, s[42:43]")
        a("global_store_dwordx4 v3, %s, %s" % (vr(ACC, 4), sp(S_WS)))
        a("s_mov_b64 exec, -1")
        self.flag_add(F_HPUB, VZ, V1)
        a("s_mov_b64 exec, s[42:43]")
        a("global_store_dwordx4 v5, %s, %s sc1" % (vr(ACC, 4), sp(S_WS)))
        a("s_mov_b64 exec, -1")
        G = 8
        self.selectors(SEL, T, both_parities=False)
        self.flag_wait(F_Q, 1, VZ, T, sleep=1)
        self.read_mode(VZ, T)
        self.poll([(G, 4, 0)], S_MB)
        self.stamp(4)
        self.xor_reduce("v_add_f32", [G, G + 1], ["r4", 8, 16], T)
        a("v_max_f32 %s, 0, %s" % (vr(G), vr(G)))
        a("v_max_f32 %s, 0, %s" % (vr(G + 1), vr(G + 1)))
        a("v_cvt_pk_bf16_f32 %s, %s, %s" % (vr(G), vr(G), vr(G + 1)))
        a("s_nop 1")
        for r in range(4):
            a("v_mov_b32_dpp %s, %s quad_perm:[%d,%d,%d,%d] row_mask:0x%x bank_mask:0xf" % (vr(G + 4), vr(G), r, r, r, r, 1 << r))
        a("""
        s_lshl_b32 s42, s26, 17
        s_lshl_b32 s43, s27, 7
        s_add_u32 s42, s42, s43
        s_add_u32 s42, s42, %d
        v_lshrrev_b32 v3, 3, v0
        v_lshlrev_b32 v3, 12, v3
        v_lshl_add_u32 v3, v36, 4, v3
        v_add_u32 v3, s42, v3
        """ % H3G)
        for i in range(2):
            for t in range(4):
                a("v_perm_b32 %s, %s, %s, %s" % (vr(AF + 4 * i + t), vr(G + 4), vr(G + 4), vr(SEL + 4 * i + t)))
        self.flag_wait(F_W2, 1, VZ, T, sleep=1)
        for i in range(8):
            a("ds_read_b128 %s, v38 offset:%d" % (vr(W + 4 * i, 4), 1024 * i))
        for w in range(4):
            for i in range(2):
                a("s_waitcnt lgkmcnt(%d)" % (7 - (2 * w + i)))
                a("v_mfma_f32_16x16x32_bf16 %s, %s, %s, %s" % (vr(AF + 16 + 4 * w, 4), vr(AF + 4 * i, 4), vr(W + 8 * w + 4 * i, 4), "0" if i == 0 else vr(AF + 16 + 4 * w, 4)))
        a("s_nop 7")
        for w in range(4):
            d = AF + 16 + 4 * w
            a("v_permlane32_swap_b32 %s, %s" % (vr(d), vr(d + 2)))
            a("v_permlane32_swap_b32 %s, %s" % (vr(d + 1), vr(d + 3)))
        a("s_nop 0")
        for w in range(4):
            d = AF + 16 + 4 * w
            a("v_mov_b32 %s, s%d" % (vr(d + 2), S_T))
            a("v_mov_b32 %s, s%d" % (vr(d + 3), S_T + 1))
        for w in range(4):
            self.store_mode(3, AF + 16 + 4 * w)
            if w < 3:
                a("v_add_u32 v3, 0x8000, v3")
        self.stamp(5)
        self.end(T)

    def role_c2(self):
        a = self.a
        VZ, V1 = 1, 2
        T = 100
        G = 8
        a("L_C2:")
        self.role = "C2"
        a("s_setprio 3")
        XF, FA, OUTA = 80, 81, 82
        a("""
        s_max_u32 s45, s27, 28
        s_sub_u32 s45, s45, 28
        s_lshl_b32 s45, s45, 3
        s_add_u32 s45, s45, s26               ; column set c'
        s_lshr_b32 s41, s45, 3
        s_lshl_b32 s41, s41, 7                ; 128 (c' >> 3)
        s_and_b32 s42, s45, 1
        s_lshl_b32 s42, s42, 6                ; 64 (c' & 1)
        s_add_u32 s41, s41, s42
        s_bfe_u32 s42, s45, 0x10001
        s_lshl_b32 s42, s42, 2
        s_add_u32 s41, s41, s42
        s_bfe_u32 s42, s45, 0x10002
        s_lshl_b32 s42, s42, 1
        s_add_u32 s41, s41, s42
        v_and_b32 v3, 7, v0
        v_lshlrev_b32 v3, 3, v3
        v_add_u32 v3, s41, v3                 ; first column of the pair
        v_lshlrev_b32 %s, 1, v3               ; byte offset in x / out
        s_lshl_b32 s41, s45, 11
        s_add_u32 s41, s41, %d
        v_lshrrev_b32 v3, 3, v0
        v_lshlrev_b32 v3, 8, v3
        v_and_b32 v83, 7, v0
        v_lshl_add_u32 v3, v83, 4, v3
        v_add_u32 %s, s41, v3
        """ % (vr(OUTA), H3B, vr(FA)))
        Lnf = a.newlabel("NF")
        a("s_cmp_lt_u32 s27, 28")
        a("s_cbranch_scc1 %s" % Lnf)
        a("global_load_dword %s, %s, %s" % (vr(XF), vr(OUTA), sp(S_X)))
        a("global_load_dwordx4 v[84:87], %s, %s sc1" % (vr(FA), sp(S_WS)))
        a("global_load_dwordx4 v[88:91], %s, %s offset:128 sc1" % (vr(FA), sp(S_WS)))
        a(Lnf + ":")
        a("""
        s_lshl_b32 s41, s26, 14
        s_add_u32 s41, s41, %d
        v_lshl_add_u32 v4, v0, 4, s41
        v_add_u32 v5, 0x1000, v4
        v_add_u32 v6, 0x2000, v4
        v_add_u32 v7, 0x3000, v4
        """ % H1)
        qloads = [(G + 16 * hd + 4 * rb, 4 + rb, 1024 * hd) for hd in range(4) for rb in range(4)]
        self.tags()
        self.stamp(1)
        self.flag_wait(F_QPUB, 1, VZ, T, sleep=1)
        self.stamp(2)
        Lslow, Lgot = a.newlabel("Q"), a.newlabel("Q")
        if not self.force_global:
            self.poll(qloads, S_WS, tag=S_T1X, limit=A_TIMEOUT, on_timeout=Lslow, cnt=12)
            a("s_branch %s" % Lgot)
        a(Lslow + ":")
        a("s_waitcnt vmcnt(0)")
        a("s_add_u32 s46, s%d, %d" % (S_WS, REGB))
        a("s_addc_u32 s47, s%d, 0" % (S_WS + 1))
        L = a.newlabel("P")
        a("s_mov_b32 s%d, 0" % S_CNT)
        a(L + ":")
        for (vd, va, off) in qloads:
            a("global_load_dwordx4 %s, %s, s[46:47] offset:%d sc1" % (vr(vd, 4), vr(va), off))
        a("s_add_u32 s%d, s%d, 1" % (S_CNT, S_CNT))
        a("s_cmp_gt_u32 s%d, %d" % (S_CNT, POLL_MAX))
        a("s_cbranch_scc1 L_end")
        a("s_waitcnt vmcnt(0)")
        a("v_mov_b32 %s, 0" % vr(T))
        a("v_mov_b32 %s, 0" % vr(T + 1))
        for (vd, va, off) in qloads:
            a("v_xor_b32 %s, s%d, %s" % (vr(T + 2), S_T, vr(vd + 2)))
            a("v_xor_b32 %s, s%d, %s" % (vr(T + 3), S_T + 1, vr(vd + 3)))
            a("v_and_b32 %s, 0xfffffff0, %s" % (vr(T + 3), vr(T + 3)))
            a("v_or3_b32 %s, %s, %s, %s" % (vr(T), vr(T), vr(T + 2), vr(T + 3)))
            a("v_xor_b32 %s, s%d, %s" % (vr(T + 3), S_T1X + 1, vr(vd + 3)))
            a("v_or_b32 %s, %s, %s" % (vr(T + 1), vr(T + 1), vr(T + 3)))
        a("v_cmp_ne_u32 vcc, 0, %s" % vr(T))
        a("s_cbranch_vccnz %s" % L)
        a("v_cmp_ne_u32 vcc, 0, %s" % vr(T + 1))
        a("s_cbranch_vccz %s" % Lgot)
        self.flag_add(F_REM, VZ, V1)
        a(Lgot + ":")
        self.stamp(3)
        for hd in range(4):
            b = G + 16 * hd
            for e in range(2):
                a("v_add_f32 %s, %s, %s" % (vr(b + e), vr(b + e), vr(b + 4 + e)))
                a("v_add_f32 %s, %s, %s" % (vr(b + 8 + e), vr(b + 8 + e), vr(b + 12 + e)))
            for e in range(2):
                a("v_add_f32 %s, %s, %s" % (vr(b + e), vr(b + e), vr(b + 8 + e)))
            a("v_cvt_pk_bf16_f32 %s, %s, %s" % (vr(b), vr(b), vr(b + 1)))
        a("""
        v_lshrrev_b32 v72, 5, v0              ; cb_local
        v_lshlrev_b32 v72, 7, v72             ; 64 columns * 2 B
        v_and_b32 v73, 7, v0
        v_lshl_add_u32 v72, v73, 4, v72       ; 8 n * 2 B
        v_bfe_u32 v73, v0, 3, 1
        v_lshl_add_u32 v72, v73, 3, v72       ; 4 g' * 2 B
        v_bfe_u32 v73, v0, 4, 1
        v_lshl_add_u32 v72, v73, 2, v72       ; 2 s * 2 B
        """)
        for hd in range(4):
            a("ds_write_b32 v72, %s offset:%d" % (vr(G + 16 * hd), L_Q + 320 * hd))
        self.flag_add(F_Q, VZ, V1)
        self.stamp(4)
        SA, GA, BA = 4, 5, 6
        a("""
        s_lshl_b32 s41, s26, 17
        s_lshl_b32 s42, s27, 12
        s_add_u32 s41, s41, s42
        v_lshl_add_u32 v3, v0, 4, s41
        v_add_u32 %s, %d, v3
        v_add_u32 %s, %d, v3
        s_lshl_b32 s41, s27, 11
        s_lshl_b32 s42, s26, 8
        s_add_u32 s41, s41, s42
        s_add_u32 s41, s41, %d
        v_lshl_add_u32 %s, v0, 4, s41
        """ % (vr(SA), H3S, vr(GA), H3G, H3B, vr(BA)))
        self.read_mode(VZ, T)
        GS = 40
        GG, GAD, GW = 24, 44, 48
        a("v_mov_b32 %s, 0" % vr(GS))
        a("v_mov_b32 %s, 0" % vr(GS + 1))
        Lng = a.newlabel("NG")
        a("s_cmp_eq_u32 s49, 0")
        a("s_cbranch_scc1 %s" % Lng)
        a("v_lshrrev_b32 v3, 3, v0")
        for i in range(4):
            a("v_add_u32 v52, %d, v3" % (8 * i))
            a("v_cmp_gt_u32 vcc, s49, v52")
            a("v_add_u32 v53, %d, %s" % (1024 * i, vr(GA)))
            a("v_mov_b32 v54, 1.0")
            a("v_cndmask_b32 %s, %s, v53, vcc" % (vr(GAD + i), vr(GA)))
            a("v_cndmask_b32 %s, v1, v54, vcc" % vr(GW + i))
        self.flag_wait(F_OPUB, 4, VZ, T, sleep=1)
        self.poll([(GG + 4 * i, GAD + i, 0) for i in range(4)], S_MB, cnt=15)
        for i in range(4):
            for e in range(2):
                a("v_fmac_f32 %s, %s, %s" % (vr(GS + e), vr(GW + i), vr(GG + 4 * i + e)))
        a(Lng + ":")
        self.stamp(5)
        L = a.newlabel("O")
        a("s_mov_b32 s%d, 0" % S_CNT)
        a(L + ":")
        a("ds_read_b32 %s, %s offset:%d" % (vr(T), vr(VZ), L_O + 4))
        a("s_add_u32 s%d, s%d, 1" % (S_CNT, S_CNT))
        a("s_cmp_gt_u32 s%d, %d" % (S_CNT, SPIN_MAX))
        a("s_cbranch_scc1 L_end")
        a("s_waitcnt lgkmcnt(0)")
        a("v_readfirstlane_b32 s%d, %s" % (S_TMP, vr(T)))
        a("s_cmp_lg_u32 s%d, 1" % S_TMP)
        a("s_cbranch_scc1 %s" % L)
        if self.sdelay:
            a("s_sleep %d" % self.sdelay)
        self.stamp(6)
        self.poll([(G + 4 * i, SA, 1024 * i) for i in range(4)], S_MB, cnt=13)
        self.stamp(7)
        for e in range(2):
            a("v_add_f32 %s, %s, %s" % (vr(G + e), vr(G + e), vr(G + 4 + e)))
            a("v_add_f32 %s, %s, %s" % (vr(G + 8 + e), vr(G + 8 + e), vr(G + 12 + e)))
        for e in range(2):
            a("v_add_f32 %s, %s, %s" % (vr(G + e), vr(G + e), vr(G + 8 + e)))
        self.xor_reduce("v_add_f32", [G, G + 1, GS, GS + 1], [8, 16, 32], T)
        a("""
        v_bfe_u32 v3, v0, 3, 1
        v_cmp_eq_u32 vcc, 1, v3
        v_mov_b32 %s, s%d
        v_mov_b32 %s, s%d
        v_cndmask_b32 %s, %s, %s, vcc
        v_cndmask_b32 %s, %s, %s, vcc
        s_mov_b64 exec, 0xffff
        global_store_dwordx4 %s, %s, %s sc1
        s_mov_b64 exec, -1
        """ % (vr(G + 2), S_T, vr(G + 3), S_T + 1, vr(G), vr(G), vr(GS), vr(G + 1), vr(G + 1), vr(GS + 1), vr(BA), vr(G, 4), sp(S_WS)))
        self.stamp(8)
        Lf = a.newlabel("F")
        a("s_cmp_ge_u32 s27, 28")
        a("s_cbranch_scc1 %s" % Lf)
        self.end(T)
        a(Lf + ":")
        self.role = "C2F"
        G = 12
        self.poll([(G, FA, 0), (G + 4, FA, 128)], S_WS, cnt=14)
        self.stamp(9)
        self.xor_reduce("v_add_f32", [G, G + 1, G + 4, G + 5], [8, 16, 32], T)
        a("v_cvt_pk_bf16_f32 %s, %s, %s" % (vr(G), vr(G), vr(G + 1)))
        a("v_cvt_pk_bf16_f32 %s, %s, %s" % (vr(G + 4), vr(G + 4), vr(G + 5)))
        a("v_and_b32 %s, 0xffff0000, %s" % (vr(G + 1), vr(G)))
        a("v_lshlrev_b32 %s, 16, %s" % (vr(G), vr(G)))
        a("v_and_b32 %s, 0xffff0000, %s" % (vr(G + 5), vr(G + 4)))
        a("v_lshlrev_b32 %s, 16, %s" % (vr(G + 4), vr(G + 4)))
        for e in range(2):
            a("v_mul_f32 %s, 0x%x, %s" % (vr(G + 8 + e), LOG2E ^ 0x80000000, vr(G + 4 + e)))
        for e in range(2):
            a("v_exp_f32 %s, %s" % (vr(G + 8 + e), vr(G + 8 + e)))
        a("s_nop 0")
        for e in range(2):
            a("v_add_f32 %s, 1.0, %s" % (vr(G + 8 + e), vr(G + 8 + e)))
        for e in range(2):
            a("v_rcp_f32 %s, %s" % (vr(G + 8 + e), vr(G + 8 + e)))
        a("s_nop 0")
        for e in range(2):
            a("v_mul_f32 %s, %s, %s" % (vr(G + 4 + e), vr(G + 4 + e), vr(G + 8 + e)))
        a("v_cvt_pk_bf16_f32 %s, %s, %s" % (vr(G + 4), vr(G + 4), vr(G + 5)))
        a("v_and_b32 %s, 0xffff0000, %s" % (vr(G + 5), vr(G + 4)))
        a("v_lshlrev_b32 %s, 16, %s" % (vr(G + 4), vr(G + 4)))
        for e in range(2):
            a("v_mul_f32 %s, %s, %s" % (vr(G + e), vr(G + e), vr(G + 4 + e)))
        a("v_cvt_pk_bf16_f32 %s, %s, %s" % (vr(G), vr(G), vr(G + 1)))
        a("v_and_b32 %s, 0xffff0000, %s" % (vr(G + 1), vr(G)))
        a("v_lshlrev_b32 %s, 16, %s" % (vr(G), vr(G)))
        a("v_and_b32 %s, 0xffff0000, %s" % (vr(G + 5), vr(XF)))
        a("v_lshlrev_b32 %s, 16, %s" % (vr(G + 4), vr(XF)))
        for e in range(2):
            a("v_add_f32 %s, %s, %s" % (vr(G + e), vr(G + e), vr(G + 4 + e)))
        a("v_cvt_pk_bf16_f32 %s, %s, %s" % (vr(G), vr(G), vr(G + 1)))
        a("s_mov_b64 exec, 0xff")
        a("global_store_dword %s, %s, %s" % (vr(OUTA), vr(G), sp(S_OUT)))
        Le = a.newlabel("E")
        a("s_cmp_lg_u32 s45, 0")
        a("s_cbranch_scc1 %s" % Le)
        a("s_mov_b64 exec, 1")
        a("v_mov_b32 %s, s%d" % (vr(G + 2), S_T))
        a("v_mov_b32 %s, s%d" % (vr(G + 3), S_T + 1))
        a("global_store_dwordx2 v1, %s, %s offset:%d sc1" % (vr(G + 2, 2), sp(S_WS), EPOCH))
        a(Le + ":")
        a("s_mov_b64 exec, -1")
        self.stamp(10)
        self.end(T)

    def build(self):
        self.prologue()
        self.role_a()
        self.role_c0()
        self.role_c1()
        self.role_c2()
        self.role_l()
        self.a("L_end:\ns_endpgm\nL_code_end:")
        return wrap(self.a.text(), 256, 512, LDS_BYTES, 192, sgpr=96)


def generate(**kw):
    return Gen(**kw).build()


if __name__ == "__main__":
    out = sys.argv[1] if len(sys.argv) > 1 else "cdna_kernels/%s.s" % NAME
    kw = {}
    for arg in sys.argv[2:]:
        k, v = arg.split("=")
        kw[k] = {"True": True, "False": False}.get(v, v)
    open(out, "w").write(generate(**kw))
    print("wrote", out)
```

```python
import sys
from asmgen import Asm, wrap, NAME

REGB = 0x400000
EPOCH = 0x0
H1 = 0x10000
ST = 0x50000
H3B = 0x70000
HB = 0x80000
H2 = 0x100000
H3S = 0x200000
H3G = 0x300000
STAMP_OFF = 256 << 20

L_Q = 0x0000
L_P = 0x0800
L_MX = 0x1800
L_O = 0x1AC0
L_XQ = 0x1880
L_XH = 0x1980
L_F = 0x1A80
L_K = 0x2000
L_V = 0xA000
L_WO = 0x12000
L_W2 = 0x16000
L_W1 = 0x1A000
F_V, F_INIT, F_Q, F_REM, F_K, F_MAX, F_P, F_ST, F_QPUB, F_OPUB, F_O, F_W1, F_SPUB, F_WO, F_W2, F_HPUB = [L_F + 4 * i for i in range(16)]
LDS_BYTES = 0x1E000

S_X, S_K, S_V, S_WQ, S_WO, S_W1, S_W2, S_OUT, S_WS = 4, 6, 8, 10, 12, 16, 18, 20, 24
S_G, S_C, S_W = 26, 27, 28
S_T = 30
S_XCC = 32
S_MODE = 33
S_MB = 34
S_T1X = 36
S_ISB = 38
S_CNT = 39
S_TMP = 40
S_STAMP = 60

LOG2E = 0x3fb8aa3b
SCALE = 0x3db504f3
A_TIMEOUT = 64
SPIN_MAX = 1 << 20
POLL_MAX = 1 << 16


def sp(n):
    return "s[%d:%d]" % (n, n + 1)


def vr(n, k=1):
    return "v%d" % n if k == 1 else "v[%d:%d]" % (n, n + k - 1)


class Gen:
    def __init__(self, stamps=False, nt_kv="nt", nt_w="nt", force_global=False, mimic=True, window=16, nb_lo=32, nb_hi=24, order="k2ov", code_pf=0, dbg=0, ileave=1, hold=0, init=2, w2=0, chk=4, init_late=0, ogate=4, sdelay=0, trace=0, sinit=0, sgate=1, spf=1, ofill=0):
        self.a = Asm()
        self.window = int(window)
        self.nb_lo = int(nb_lo)
        self.nb_hi = int(nb_hi)
        self.order = order
        self.code_pf = int(code_pf)
        self.dbg = int(dbg)
        self.role = None
        if self.dbg:
            self.stamps = stamps = True
        self.ileave = int(ileave)
        self.hold = int(hold)
        self.init = int(init)
        self.w2 = int(w2)
        self.chk = int(chk)
        self.init_late = int(init_late)
        self.ogate = int(ogate)
        self.sdelay = int(sdelay)
        self.trace = int(trace)
        self.sinit = int(sinit)
        self.sgate = int(sgate)
        self.spf = int(spf)
        self.ofill = int(ofill)
        assert 4 * self.nb_lo + 4 * self.nb_hi == 224 and self.nb_lo % 8 == 0 and self.nb_hi % 8 == 0
        self.stamps = stamps
        self.nt_kv = nt_kv
        self.nt_w = nt_w
        self.force_global = force_global
        self.mimic = mimic
        self.nstamp = 0

    def stamp(self, idx):
        if self.stamps:
            self.a("s_memrealtime %s" % sp(S_STAMP + 2 * idx))

    def flag_add(self, flag, vz, vone):
        a = self.a
        a("s_mov_b64 exec, 1")
        a("ds_add_u32 %s, %s offset:%d" % (vr(vz), vr(vone), flag))
        a("s_mov_b64 exec, -1")

    def flag_set(self, flag, val, vz, vt):
        a = self.a
        a("v_mov_b32 %s, %d" % (vr(vt), val))
        a("s_mov_b64 exec, 1")
        a("ds_write_b32 %s, %s offset:%d" % (vr(vz), vr(vt), flag))
        a("s_mov_b64 exec, -1")

    def flag_wait(self, flag, n, vz, vt, sleep=0):
        a = self.a
        L, Lgo = a.newlabel("W"), a.newlabel("W")
        a("s_mov_b32 s%d, 0" % S_CNT)
        a(L + ":")
        a("ds_read_b32 %s, %s offset:%d" % (vr(vt), vr(vz), flag))
        a("s_waitcnt lgkmcnt(0)")
        a("v_readfirstlane_b32 s%d, %s" % (S_TMP, vr(vt)))
        a("s_cmp_ge_u32 s%d, %d" % (S_TMP, n))
        a("s_cbranch_scc1 %s" % Lgo)
        if sleep:
            a("s_sleep %d" % sleep)
        a("s_add_u32 s%d, s%d, 1" % (S_CNT, S_CNT))
        a("s_cmp_lt_u32 s%d, %d" % (S_CNT, SPIN_MAX))
        a("s_cbranch_scc1 %s" % L)
        a("s_branch L_end")
        a(Lgo + ":")

    def store_mode(self, vaddr, vdata, n=4):
        a = self.a
        L1, L2 = a.newlabel("S"), a.newlabel("S")
        op = "global_store_dwordx%d" % n
        a("s_cmp_lg_u32 s%d, 0" % S_MODE)
        a("s_cbranch_scc1 %s" % L1)
        a("%s %s, %s, %s" % (op, vr(vaddr), vr(vdata, n), sp(S_MB)))
        a("s_branch %s" % L2)
        a(L1 + ":")
        a("%s %s, %s, %s sc1" % (op, vr(vaddr), vr(vdata, n), sp(S_MB)))
        a(L2 + ":")

    def poll_traced(self, loads, base, first_stamp, npass=4):
        a = self.a
        Lok = a.newlabel("PT")
        n = len(loads)
        for k in range(npass):
            a("s_memrealtime %s" % sp(S_STAMP + 2 * (first_stamp + k)))
            for (vd, va, off) in loads:
                a("global_load_dwordx4 %s, %s, %s offset:%d sc1" % (vr(vd, 4), vr(va), sp(base), off))
            for i, (vd, va, off) in enumerate(loads):
                a("s_waitcnt vmcnt(%d)" % (n - 1 - i))
                dst = "vcc" if i == 0 else sp(S_TMP)
                a("v_cmp_ne_u64 %s, %s, %s" % (dst, vr(vd + 2, 2), sp(S_T)))
                if i:
                    a("s_or_b64 vcc, vcc, %s" % sp(S_TMP))
            a("s_cbranch_vccz %s" % Lok)
        self.poll(loads, base)
        a(Lok + ":")

    def poll(self, loads, base, tag=S_T, limit=POLL_MAX, on_timeout="L_end", cnt=None):
        a = self.a
        L, Lok = a.newlabel("P"), a.newlabel("P")
        a("s_mov_b32 s%d, 0" % S_CNT)
        a(L + ":")
        for (vd, va, off) in loads:
            a("global_load_dwordx4 %s, %s, %s offset:%d sc1" % (vr(vd, 4), vr(va), sp(base), off))
        n = len(loads)
        for i, (vd, va, off) in enumerate(loads):
            a("s_waitcnt vmcnt(%d)" % (n - 1 - i))
            dst = "vcc" if i == 0 else sp(S_TMP)
            a("v_cmp_ne_u64 %s, %s, %s" % (dst, vr(vd + 2, 2), sp(tag)))
            if i:
                a("s_or_b64 vcc, vcc, %s" % sp(S_TMP))
        a("s_cbranch_vccz %s" % Lok)
        a("s_add_u32 s%d, s%d, 1" % (S_CNT, S_CNT))
        a("s_cmp_le_u32 s%d, %d" % (S_CNT, limit))
        a("s_cbranch_scc1 %s" % L)
        a("s_branch %s" % on_timeout)
        a(Lok + ":")
        if cnt is not None and self.stamps:
            a("s_mov_b32 s%d, s%d" % (S_STAMP + 2 * cnt, S_CNT))

    def xor_reduce(self, op, regs, steps, tmp):
        a = self.a
        for st in steps:
            if st in (16, 32):
                ins = "v_permlane16_swap_b32" if st == 16 else "v_permlane32_swap_b32"
                for i, r in enumerate(regs):
                    a("v_mov_b32 %s, %s" % (vr(tmp + i), vr(r)))
                a("s_nop 1")
                for i, r in enumerate(regs):
                    a("%s %s, %s" % (ins, vr(r), vr(tmp + i)))
                a("s_nop 1")
                for i, r in enumerate(regs):
                    a("%s %s, %s, %s" % (op, vr(r), vr(r), vr(tmp + i)))
            else:
                ctl = {1: "quad_perm:[1,0,3,2]", 2: "quad_perm:[2,3,0,1]", "hm": "row_half_mirror", "m": "row_mirror", 8: "row_ror:8", "r4": "row_ror:4"}[st]
                a("s_nop 1")
                for r in regs:
                    a("%s_dpp %s, %s, %s %s row_mask:0xf bank_mask:0xf" % (op, vr(r), vr(r), vr(r), ctl))

    def read_mode(self, vz, vt):
        a = self.a
        a("ds_read_b32 %s, %s offset:%d" % (vr(vt), vr(vz), F_REM))
        a("s_waitcnt lgkmcnt(0)")
        a("v_readfirstlane_b32 s%d, %s" % (S_MODE, vr(vt)))
        if self.force_global:
            a("s_mov_b32 s%d, 1" % S_MODE)
        a("s_min_u32 s%d, s%d, 1" % (S_MODE, S_MODE))
        a("s_mul_i32 s%d, s%d, %d" % (S_TMP, S_MODE, REGB))
        a("s_add_u32 s%d, s%d, s%d" % (S_MB, S_WS, S_TMP))
        a("s_addc_u32 s%d, s%d, 0" % (S_MB + 1, S_WS + 1))

    def tags(self):
        a = self.a
        a("s_getreg_b32 s32, hwreg(HW_REG_XCC_ID, 0, 4)")
        a("s_waitcnt lgkmcnt(0)")
        a("s_add_u32 s%d, s%d, 0x9E3779B9" % (S_T, S_T))
        a("s_add_u32 s%d, s%d, 0x7F4A7C00" % (S_T + 1, S_T + 1))
        a("s_and_b32 s%d, s%d, 0xFFFFFFE0" % (S_T + 1, S_T + 1))
        a("s_or_b32 s%d, s%d, 0x10" % (S_T + 1, S_T + 1))
        a("s_mov_b32 s%d, s%d" % (S_T1X, S_T))
        a("s_or_b32 s%d, s%d, s%d" % (S_T1X + 1, S_T + 1, S_XCC))

    DBG_MAP = {"A": {0: [(0, True), (1, False)], 1: [(12, False)], 3: [(5, False)], 6: [(7, False)], 7: [(9, False)]},
               "C0": {2: [(14, False)], 4: [(15, False)], 5: [(3, False)], 9: [(8, False)]},
               "C1B": {5: [(13, False)]},
               "C2": {4: [(4, False)], 8: [(10, False)]},
               "C2F": {4: [(4, False)], 8: [(10, False)], 10: [(11, False)]},
               "L": {1: [(2, False)], 3: [(6, False)]}}

    def dump_stamps(self, vt):
        if not self.stamps:
            return
        a = self.a
        if self.dbg:
            a("s_waitcnt lgkmcnt(0)")
            a("s_mov_b64 exec, 1")
            a("v_mov_b32 %s, 0" % vr(vt))
            for st, outs in self.DBG_MAP.get(self.role, {}).items():
                for slot, inv in outs:
                    a("v_mov_b32 %s, s%d" % (vr(vt + 1), S_STAMP + 2 * st))
                    if inv:
                        a("v_not_b32 %s, %s" % (vr(vt + 1), vr(vt + 1)))
                    a("global_atomic_umax %s, %s, s[22:23] offset:%d" % (vr(vt), vr(vt + 1), 4 * slot))
            return
        a("s_waitcnt lgkmcnt(0)")
        a("s_lshl_b32 s%d, s2, 3" % S_TMP)
        a("s_add_u32 s%d, s%d, s%d" % (S_TMP, S_TMP, S_W))
        a("s_lshl_b32 s%d, s%d, 6" % (S_TMP, S_TMP))
        a("s_add_u32 s%d, s%d, %d" % (S_TMP, S_TMP, STAMP_OFF))
        a("s_mov_b64 exec, 1")
        a("v_mov_b32 %s, s%d" % (vr(vt), S_TMP))
        for i in range(16):
            a("v_mov_b32 %s, s%d" % (vr(vt + 1), S_STAMP + 2 * i))
            a("global_store_dword %s, %s, %s offset:%d" % (vr(vt), vr(vt + 1), sp(S_WS), 4 * i))

    def end(self, vt):
        self.dump_stamps(vt)
        self.a("s_endpgm")

    def layernorm_rows(self, base, lds_x, VZ, rows=128):
        a = self.a
        xs, xp = base, base + 4
        f = base + 16
        t = base + 24
        for i in range(4):
            a("v_lshlrev_b32 %s, 16, %s" % (vr(f + 2 * i), vr(xs + i)))
            a("v_and_b32 %s, 0xffff0000, %s" % (vr(f + 2 * i + 1), vr(xs + i)))
        a("v_add_f32 %s, %s, %s" % (vr(t), vr(f), vr(f + 1)))
        a("v_add_f32 %s, %s, %s" % (vr(t + 1), vr(f + 2), vr(f + 3)))
        a("v_add_f32 %s, %s, %s" % (vr(t + 2), vr(f + 4), vr(f + 5)))
        a("v_add_f32 %s, %s, %s" % (vr(t + 3), vr(f + 6), vr(f + 7)))
        a("v_add_f32 %s, %s, %s" % (vr(t), vr(t), vr(t + 1)))
        a("v_add_f32 %s, %s, %s" % (vr(t + 2), vr(t + 2), vr(t + 3)))
        a("v_add_f32 %s, %s, %s" % (vr(t), vr(t), vr(t + 2)))
        self.xor_reduce("v_add_f32", [t], [1, 2, "hm", "m", 16, 32], t + 4)
        a("v_mul_f32 %s, 0x3b000000, %s" % (vr(t), vr(t)))
        for i in range(8):
            a("v_sub_f32 %s, %s, %s" % (vr(f + i), vr(f + i), vr(t)))
        a("v_mul_f32 %s, %s, %s" % (vr(t + 1), vr(f), vr(f)))
        a("v_mul_f32 %s, %s, %s" % (vr(t + 2), vr(f + 1), vr(f + 1)))
        for i in range(2, 8, 2):
            a("v_fmac_f32 %s, %s, %s" % (vr(t + 1), vr(f + i), vr(f + i)))
            a("v_fmac_f32 %s, %s, %s" % (vr(t + 2), vr(f + i + 1), vr(f + i + 1)))
        a("v_add_f32 %s, %s, %s" % (vr(t + 1), vr(t + 1), vr(t + 2)))
        self.xor_reduce("v_add_f32", [t + 1], [1, 2, "hm", "m", 16, 32], t + 4)
        a("v_mul_f32 %s, 0x3b000000, %s" % (vr(t + 1), vr(t + 1)))
        a("v_cvt_pk_bf16_f32 %s, %s, %s" % (vr(t + 2), vr(t), vr(t + 1)))
        a("v_lshlrev_b32 %s, 16, %s" % (vr(t), vr(t + 2)))
        a("v_and_b32 %s, 0xffff0000, %s" % (vr(t + 1), vr(t + 2)))
        a("v_add_f32 %s, 0x3727c5ac, %s" % (vr(t + 1), vr(t + 1)))
        a("v_cvt_pk_bf16_f32 %s, %s, %s" % (vr(t + 1), vr(t + 1), vr(t + 1)))
        a("v_and_b32 %s, 0xffff0000, %s" % (vr(t + 1), vr(t + 1)))
        a("v_sqrt_f32 %s, %s" % (vr(t + 1), vr(t + 1)))
        a("s_nop 0")
        a("v_cvt_pk_bf16_f32 %s, %s, %s" % (vr(t + 1), vr(t + 1), vr(t + 1)))
        a("v_and_b32 %s, 0xffff0000, %s" % (vr(t + 1), vr(t + 1)))
        a("v_rcp_f32 %s, %s" % (vr(t + 2), vr(t + 1)))
        a("v_lshlrev_b32 %s, 16, %s" % (vr(f), vr(xp)))
        a("v_and_b32 %s, 0xffff0000, %s" % (vr(f + 1), vr(xp)))
        a("v_sub_f32 %s, %s, %s" % (vr(f), vr(f), vr(t)))
        a("v_sub_f32 %s, %s, %s" % (vr(f + 1), vr(f + 1), vr(t)))
        a("v_cvt_pk_bf16_f32 %s, %s, %s" % (vr(f), vr(f), vr(f + 1)))
        a("v_and_b32 %s, 0xffff0000, %s" % (vr(f + 1), vr(f)))
        a("v_lshlrev_b32 %s, 16, %s" % (vr(f), vr(f)))
        for i in range(2):
            a("v_mul_f32 %s, %s, %s" % (vr(f + 2 + i), vr(f + i), vr(t + 2)))
        for i in range(2):
            a("v_fma_f32 %s, -%s, %s, %s" % (vr(f + 4 + i), vr(f + 2 + i), vr(t + 1), vr(f + i)))
        for i in range(2):
            a("v_fmac_f32 %s, %s, %s" % (vr(f + 2 + i), vr(f + 4 + i), vr(t + 2)))
        a("v_cvt_pk_bf16_f32 %s, %s, %s" % (vr(f), vr(f + 2), vr(f + 3)))
        if rows == 128:
            a("v_lshlrev_b32 %s, 2, v0" % vr(t))
        else:
            a("v_and_b32 %s, 31, v0" % vr(t))
            a("v_lshlrev_b32 %s, 2, %s" % (vr(t), vr(t)))
        a("ds_write_b32 %s, %s offset:%d" % (vr(t), vr(f), lds_x))
        a("v_lshrrev_b32 %s, 3, v0" % vr(t))
        a("v_lshlrev_b32 %s, %d, %s" % (vr(t), 5 if rows == 128 else 4, vr(t)))
        a("ds_read_b128 %s, %s offset:%d" % (vr(base + 8, 4), vr(t), lds_x))
        if rows == 128:
            a("ds_read_b128 %s, %s offset:%d" % (vr(base + 12, 4), vr(t), lds_x + 16))

    def selectors(self, sel, tmp, both_parities):
        a = self.a
        a("v_and_b32 %s, 15, v0" % vr(tmp))
        a("v_and_b32 %s, 1, %s" % (vr(tmp + 1), vr(tmp)))
        a("v_bfe_u32 %s, %s, 1, 2" % (vr(tmp + 2), vr(tmp)))
        if not both_parities:
            a("v_lshrrev_b32 %s, 3, %s" % (vr(tmp + 3), vr(tmp)))
            a("v_lshl_add_u32 %s, %s, 2, %s" % (vr(tmp + 2), vr(tmp + 3), vr(tmp + 2)))
        a("v_cmp_eq_u32 vcc, 1, %s" % vr(tmp + 1))
        a("v_mov_b32 %s, 0x0c0c0100" % vr(tmp + 3))
        a("v_mov_b32 %s, 0x01000c0c" % vr(tmp + 4))
        a("v_cndmask_b32 %s, %s, %s, vcc" % (vr(tmp + 5), vr(tmp + 3), vr(tmp + 4)))
        a("v_mov_b32 %s, 0x0c0c0302" % vr(tmp + 3))
        a("v_mov_b32 %s, 0x03020c0c" % vr(tmp + 4))
        a("v_cndmask_b32 %s, %s, %s, vcc" % (vr(tmp + 6), vr(tmp + 3), vr(tmp + 4)))
        a("v_mov_b32 %s, 0x0c0c0c0c" % vr(tmp + 3))
        for t in range(4):
            a("v_cmp_eq_u32 vcc, %d, %s" % (t, vr(tmp + 2)))
            a("s_nop 1")
            a("v_cndmask_b32 %s, %s, %s, vcc" % (vr(sel + t), vr(tmp + 3), vr(tmp + 5)))
            a("v_cndmask_b32 %s, %s, %s, vcc" % (vr(sel + 4 + t), vr(tmp + 3), vr(tmp + 6)))

    def tile_gemv(self, W, XN, SEL, AF, ACC, nafter):
        a = self.a
        for i in range(16):
            for t in range(4):
                a("v_perm_b32 %s, %s, %s, %s" % (vr(AF + 4 * i + t), vr(XN + (i >> 1)), vr(XN + (i >> 1)), vr(SEL + 4 * (i & 1) + t)))
        for i in range(16):
            a("s_waitcnt vmcnt(%d)" % (15 - i + nafter))
            a("v_mfma_f32_16x16x32_bf16 %s, %s, %s, %s" % (vr(ACC, 4), vr(AF + 4 * i, 4), vr(W + 4 * i, 4), "0" if i == 0 else vr(ACC, 4)))
        a("s_nop 7")
        a("v_permlane32_swap_b32 %s, %s" % (vr(ACC), vr(ACC + 2)))
        a("v_permlane32_swap_b32 %s, %s" % (vr(ACC + 1), vr(ACC + 3)))
        a("s_nop 1")
        a("v_add_f32_dpp %s, %s, %s row_ror:8 row_mask:0xf bank_mask:0xf" % (vr(ACC), vr(ACC + 2), vr(ACC)))
        a("v_add_f32_dpp %s, %s, %s row_ror:8 row_mask:0xf bank_mask:0xf" % (vr(ACC + 1), vr(ACC + 3), vr(ACC + 1)))


    def prologue(self):
        a = self.a
        a("""
        s_cmp_ge_u32 s2, 256
        s_cbranch_scc1 L_end
        """)
        self.stamp(0)
        a("""
        s_load_dwordx16 s[4:19], s[0:1], 0
        s_load_dwordx4 s[20:23], s[0:1], 64
        s_load_dwordx2 s[24:25], s[0:1], 80
        v_lshrrev_b32 v1, 6, v0
        v_and_b32 v0, 63, v0
        s_and_b32 s26, s2, 7
        s_lshr_b32 s27, s2, 3
        v_readfirstlane_b32 s28, v1
        v_lshlrev_b32 v37, 4, v0
        s_lshr_b32 s40, s27, 3
        s_cmp_eq_u32 s28, 7
        s_cbranch_scc1 L_L
        s_cmp_eq_u32 s28, 5
        s_cbranch_scc1 L_C1
        s_cmp_eq_u32 s28, 6
        s_cbranch_scc1 L_C2
        s_cmp_lt_u32 s28, 4
        s_cbranch_scc1 L_A
        """)

    def dispatch_others(self):
        self.a("""
        L_other:
        v_mov_b32 v1, 0
        v_mov_b32 v2, 1
        s_cmp_eq_u32 s28, 7
        s_cbranch_scc1 L_L
        s_cmp_eq_u32 s28, 5
        s_cbranch_scc1 L_C1
        s_cmp_eq_u32 s28, 6
        s_cbranch_scc1 L_C2
        s_branch L_A
        """)

    def mlp_scalars(self):
        self.a("""
        s_cmp_lt_u32 s26, 4
        s_cselect_b32 s49, %d, %d
        s_cmp_lt_u32 s27, s49
        s_cselect_b32 s38, 1, 0
        s_mul_i32 s50, s26, %d
        s_sub_u32 s51, s26, 4
        s_mul_i32 s51, s51, %d
        s_add_u32 s51, s51, %d
        s_cmp_lt_u32 s26, 4
        s_cselect_b32 s50, s50, s51
        s_lshr_b32 s51, s27, 3
        s_add_u32 s50, s50, s51
        """ % (self.nb_lo, self.nb_hi, self.nb_lo // 8, self.nb_hi // 8, self.nb_lo // 2))

    def args_ready(self):
        self.a("s_waitcnt lgkmcnt(0)")
        self.a("s_load_dwordx2 s[30:31], s[24:25], %d" % EPOCH)

    def role_l(self):
        a = self.a
        VZ, V1 = 1, 2
        a(".p2align 8")
        a("L_L:")
        a("v_mov_b32 v1, 0\nv_mov_b32 v2, 1")
        self.role = "L"
        KO, VO = 8, 12
        WOA, WOB, W2A, W1A = 16, 17, 18, 20
        piece = 0x8000 if self.ileave else 0x400
        a("""
        s_lshl_b32 s40, s26, 24
        s_add_u32 s40, s40, 0xF00000
        s_lshl_b32 s41, s27, %d
        s_add_u32 s40, s40, s41               ; first piece of this chunk
        v_lshrrev_b32 v3, 4, v0               ; q4
        v_and_b32 v4, 15, v0                  ; pos
        v_xor_b32 v5, v4, v3
        v_lshl_add_u32 v6, v3, 8, s40
        """ % (10 if self.ileave else 15))
        for q in range(4):
            a("v_xor_b32 v7, %d, v5" % (4 * q))
            a("v_lshl_add_u32 v7, v7, 4, v6")
            a("v_add_u32 %s, %d, v7" % (vr(KO + q), 2 * q * piece))

        def rest_addresses():
            a("v_lshlrev_b32 v7, 1, v3")
            a("v_xor_b32 v7, v7, v4")
            a("v_lshl_add_u32 %s, v7, 4, v6" % vr(VO))
            a("v_xor_b32 v7, 8, v7")
            a("v_lshl_add_u32 v7, v7, 4, v6")
            a("v_add_u32 %s, %d, v7" % (vr(VO + 1), 2 * piece))
            a("""
            s_lshl_b32 s42, s26, 9                ; 512 g
            s_lshr_b32 s43, s27, 3
            s_lshl_b32 s43, s43, 7                ; 128 h
            s_add_u32 s42, s42, s43
            s_bfe_u32 s43, s27, 0x20001
            s_lshl_b32 s43, s43, 5
            s_add_u32 s42, s42, s43
            s_and_b32 s43, s27, 1
            s_lshl_b32 s43, s43, 3
            s_add_u32 s42, s42, s43               ; first Wo row
            s_lshl_b32 s42, s42, 10
            v_lshlrev_b32 v6, 4, v4               ; 16 n
            v_lshl_add_u32 v7, v3, 11, v6
            v_add_u32 %s, s42, v7
            v_add_u32 %s, 0x4000, %s
            s_lshl_b32 s42, s50, 6
            s_and_b32 s43, s27, 7
            s_lshl_b32 s43, s43, 3
            s_add_u32 s42, s42, s43               ; first W2 row = 64 cbg + 8 j
            s_lshl_b32 s42, s42, 10
            v_lshl_add_u32 v7, v3, 11, v6         ; + 2 gg rows
            v_add_u32 %s, s42, v7
            """ % (vr(WOA), vr(WOB), vr(WOA), vr(W2A)))

        def m0(x):
            return "s_movk_i32 m0, 0x%x\n" % x if x < 0x8000 else "s_mov_b32 m0, 0x%x\n" % x

        def seq(isb):
            ops, flags, gates = [], [], []
            for grp in self.order:
                if grp == "|":
                    gates.append(len(ops))
                elif grp == "k":
                    for w in range(4):
                        for q in range(4):
                            for t in range(2):
                                p = 8 * w + 2 * q + t
                                ops.append((m0(L_K + 1024 * p), "global_load_lds_dwordx4 %s, %s %s" % (vr(KO + q), sp(S_K), self.nt_kv),
                                            "v_add_u32 %s, 0x%x, %s" % (vr(KO + q), (1 if t == 0 else 7) * piece, vr(KO + q))))
                    flags.append((len(ops), F_K))
                elif grp == "v":
                    for w in range(4):
                        for i in range(8):
                            b = (i >> 1) & 1
                            ops.append((m0(L_V + 1024 * (8 * w + i)), "global_load_lds_dwordx4 %s, %s %s" % (vr(VO + b), sp(S_V), self.nt_kv),
                                        "v_add_u32 %s, 0x%x, %s" % (vr(VO + b), (1 if (i & 1) == 0 else 3) * piece, vr(VO + b))))
                        flags.append((len(ops), F_V))
                elif grp == "f":
                    for i in range(4):
                        ops.append(("", "global_load_dwordx4 v[24:27], v23, %s offset:%d sc1" % (sp(S_WS), 1024 * i), ""))
                    ops.append(("", "global_load_dwordx4 v[24:27], v28, %s sc1" % sp(S_WS), ""))
                elif grp == "o":
                    for w in range(4):
                        for i in range(4):
                            off = 256 * w + 1024 * (i >> 1)
                            ops.append((m0(L_WO + (4 * w + i) * 1024 - off),
                                        "global_load_lds_dwordx4 %s, %s offset:%d %s" % (vr(WOA if (i & 1) == 0 else WOB), sp(S_WO), off, self.nt_w), ""))
                    flags.append((len(ops), F_WO))
                elif grp == "2" and isb:
                    for w in range(4):
                        for i in range(2):
                            off = 256 * w + 1024 * i
                            ops.append((m0(L_W2 + (2 * w + i) * 1024 - off),
                                        "global_load_lds_dwordx4 %s, %s offset:%d %s" % (vr(W2A), sp(S_W2), off, self.nt_w), ""))
                    flags.append((len(ops), F_W2))
                elif grp == "1" and isb:
                    for i in range(8):
                        ops.append((m0(L_W1 + 1024 * i), "global_load_lds_dwordx4 %s, %s %s" % (vr(W1A), sp(S_W1), self.nt_w),
                                    "v_add_u32 %s, 3584, %s" % (vr(W1A), vr(W1A))))
                    flags.append((len(ops), F_W1))
            return ops, flags, gates

        W = self.window
        self.args_ready()
        self.stamp(1)
        assert self.order[0] == "k"
        ops0, _, _ = seq(False)
        NE = min(W, 5)
        for j in range(NE):
            pre, ld, post = ops0[j]
            a(pre)
            a("s_nop 0")
            a(ld)
            a(post)
        a("s_barrier")
        self.mlp_scalars()
        rest_addresses()
        if "f" in self.order:
            a("""
            s_lshl_b32 s41, s26, 17
            s_lshl_b32 s42, s27, 12
            s_add_u32 s41, s41, s42
            s_add_u32 s41, s41, %d
            v_lshl_add_u32 v23, v0, 4, s41
            s_lshl_b32 s41, s26, 11
            s_lshr_b32 s42, s27, 3
            s_lshl_b32 s42, s42, 9
            s_add_u32 s41, s41, s42
            s_add_u32 s41, s41, %d
            v_and_b32 v28, 31, v0
            v_lshl_add_u32 v28, v28, 4, s41
            """ % (H2, ST))

        def with_values(flags):
            out, nv = [], 0
            for (e, f) in flags:
                if f == F_V:
                    nv += 1
                    out.append((e, f, nv))
                else:
                    out.append((e, f, 1))
            return out

        def run(ops, flags, gates, W, start, labels=None, check_to=None, first=False):
            n = len(ops)
            pend = [f for f in flags if f[0] > max(0, start - (W - 1)) or first]
            hold = self.hold
            for j in range(start, n):
                pre, ld, post = ops[j]
                if labels and j in labels:
                    a(labels[j] + ":")
                if hold and j == hold:
                    while pend and pend[0][0] <= j:
                        e, f, val = pend.pop(0)
                        a("s_waitcnt vmcnt(%d)" % (j - e))
                        self.flag_set(f, val, VZ, 22)
                    self.flag_wait(F_QPUB, 1, VZ, 21)
                    if isb_cur[0] and self.order[0] == "1":
                        self.flag_wait(F_HPUB, 1, VZ, 21)
                    self.stamp(4)
                if j in gates:
                    while pend and pend[0][0] <= j:
                        e, f, val = pend.pop(0)
                        a("s_waitcnt vmcnt(%d)" % (j - e))
                        self.flag_set(f, val, VZ, 22)
                    self.flag_wait(F_OPUB, 4, VZ, 21)
                chk = check_to is not None and j in check_to
                if chk:
                    a("ds_read_b32 v21, %s offset:%d" % (vr(VZ), F_Q))
                if j >= W and not any(g <= j < g + W for g in gates):
                    a("s_waitcnt vmcnt(%d)" % (W - 1))
                    landed = j - (W - 1)
                    while pend and pend[0][0] <= landed:
                        e, f, val = pend.pop(0)
                        self.flag_set(f, val, VZ, 22)
                if chk:
                    a("s_waitcnt lgkmcnt(0)")
                    a("v_readfirstlane_b32 s%d, v21" % S_TMP)
                    a("s_cmp_lg_u32 s%d, 0" % S_TMP)
                    a("s_cbranch_scc1 %s" % check_to[j])
                a(pre)
                a("s_nop 0")
                a(ld)
                if post:
                    a(post)
            self.stamp(2)
            for (e, f, val) in pend:
                a("s_waitcnt vmcnt(%d)" % (n - e))
                self.flag_set(f, val, VZ, 22)
            self.stamp(3)
            self.end(3)

        isb_cur = [False]

        def emit(isb):
            isb_cur[0] = isb
            ops, flags, gates = seq(isb)
            flags = with_values(flags)
            n = len(ops)
            if not self.w2:
                run(ops, flags, gates, W, NE, first=True)
                return
            points = [j for j in range(W, n - 8) if (j - W) % self.chk == 0]
            labels = {j: a.newlabel("FAST") for j in points}
            run(ops, flags, gates, W, NE, check_to=labels, first=True)
            run(ops, flags, gates, self.w2, points[0], labels=labels)

        Lb = a.newlabel("LB")
        a("s_cmp_lg_u32 s%d, 0" % S_ISB)
        a("s_cbranch_scc1 %s" % Lb)
        emit(False)
        a(Lb + ":")
        emit(True)

    def role_a(self):
        a = self.a
        VZ, V1 = 1, 2
        T = 5
        a("L_A:")
        a("v_mov_b32 v1, 0\nv_mov_b32 v2, 1")
        self.role = "A"
        a("s_barrier")
        self.args_ready()
        a("s_setprio 1")
        KO, VO, QA = 16, 20, 24
        a("""
        v_lshrrev_b32 v3, 4, v0               ; gg
        v_and_b32 v4, 15, v0                  ; m
        s_lshl_b32 s41, s28, 13
        v_and_b32 v5, 3, v4                   ; b = m & 3
        v_lshrrev_b32 v6, 2, v4               ; a = m >> 2
        v_lshlrev_b32 v7, 11, v6
        v_lshl_add_u32 v7, v5, 8, v7
        v_xor_b32 v8, v3, v5
        v_lshl_add_u32 v7, v8, 4, v7
        v_add_u32 v7, s41, v7
        """)
        for s in range(4):
            a("v_xor_b32 v8, %d, v6" % s)
            a("v_lshl_add_u32 %s, v8, 6, v7" % vr(KO + s))
        a("v_mul_u32_u24 v8, 320, v6")
        a("v_lshl_add_u32 %s, v3, 4, v8" % vr(QA))
        a("""
        v_lshrrev_b32 v8, 2, v4               ; r
        v_and_b32 v9, 3, v4                   ; cq
        v_and_b32 v10, 1, v3
        v_lshl_or_b32 v10, v10, 2, v8         ; sigma
        v_lshl_add_u32 v11, v3, 3, v8         ; 8 gg + r
        v_lshlrev_b32 v11, 8, v11
        v_lshl_add_u32 v11, v9, 3, v11
        v_add_u32 v11, %d, v11
        s_lshl_b32 s42, s28, 1
        """ % L_V)
        for u in range(2):
            a("s_add_u32 s43, s42, %d" % u)
            a("v_xor_b32 v12, s43, v10")
            a("v_lshl_add_u32 %s, v12, 5, v11" % vr(VO + u))
        WOA = 22
        a("s_lshl_b32 s42, s28, 12")
        a("s_add_u32 s42, s42, %d" % L_WO)
        a("v_lshl_add_u32 %s, v0, 4, s42" % vr(WOA))
        SEL = 28
        self.selectors(SEL, T, both_parities=False)
        self.tags()
        TG = 36
        a("v_mov_b32 %s, s%d" % (vr(TG + 2), S_T))
        a("v_mov_b32 %s, s%d" % (vr(TG + 3), S_T + 1))
        OA, SA, STA = 40, 41, 43
        a("""
        s_lshl_b32 s42, s26, 17               ; g * 131072
        s_lshl_b32 s43, s27, 7                ; c * 128
        s_add_u32 s42, s42, s43
        v_and_b32 v12, 7, v0
        v_lshlrev_b32 v12, 4, v12             ; slot * 16
        v_bfe_u32 v13, v0, 3, 1               ; b
        v_lshl_add_u32 v13, v3, 3, v13        ; 8 h + b
        s_lshl_b32 s43, s28, 1
        v_add_u32 v13, s43, v13               ; + 2 w
        v_lshl_add_u32 v13, v13, 12, v12
        s_add_u32 s43, s42, %d
        v_add_u32 %s, s43, v13
        v_lshrrev_b32 v13, 3, v0
        s_lshl_b32 s43, s28, 3
        v_add_u32 v13, s43, v13               ; 8 w + (l >> 3)
        v_lshl_add_u32 v14, v13, 12, v12
        s_add_u32 s43, s42, %d
        v_add_u32 %s, s43, v14
        s_lshl_b32 s42, s26, 11
        s_lshl_b32 s43, s27, 4
        s_add_u32 s42, s42, s43
        s_add_u32 s42, s42, %d
        v_lshl_add_u32 %s, v3, 9, s42
        """ % (H2, vr(OA), H3S, vr(SA), ST, vr(STA)))
        MXW, PWA, PRA, MRA, ORA = 25, 26, 27, 45, 46
        a("""
        v_lshrrev_b32 v12, 2, v4
        v_lshlrev_b32 v12, 4, v12             ; head (l & 15) >> 2, * 16
        s_lshl_b32 s42, s28, 2
        v_add_u32 %s, s42, v12                ; + wave * 4
        v_lshlrev_b32 %s, 4, v0
        s_lshl_b32 s42, s28, 10
        v_add_u32 %s, s42, %s
        v_lshlrev_b32 %s, 4, v3
        v_lshlrev_b32 %s, 4, v3
        """ % (vr(MXW), vr(PRA), vr(PWA), vr(PRA), vr(MRA), vr(ORA)))
        OD = 112
        KF = 48
        QF = 80
        WO = 96
        self.flag_wait(F_K, 1, VZ, T, sleep=2)
        self.stamp(1)
        for t in range(2):
            for s in range(4):
                a("ds_read_b128 %s, %s offset:%d" % (vr(KF + 16 * t + 4 * s, 4), vr(KO + s), L_K + 1024 * t))
        self.flag_wait(F_Q, 1, VZ, T, sleep=1)
        self.stamp(2)
        for s in range(4):
            a("ds_read_b128 %s, %s offset:%d" % (vr(QF + 4 * s, 4), vr(QA), L_Q + 64 * s))
        self.read_mode(VZ, T)
        SC = 112
        for s in range(4):
            for t in range(2):
                a("v_mfma_f32_16x16x32_bf16 %s, %s, %s, %s" % (vr(SC + 4 * t, 4), vr(KF + 16 * t + 4 * s, 4), vr(QF + 4 * s, 4), "0" if s == 0 else vr(SC + 4 * t, 4)))
        a("s_nop 7")
        if self.mimic:
            for i in range(4):
                a("v_cvt_pk_bf16_f32 %s, %s, %s" % (vr(T + i), vr(SC + 2 * i), vr(SC + 2 * i + 1)))
            for i in range(4):
                a("v_lshlrev_b32 %s, 16, %s" % (vr(SC + 2 * i), vr(T + i)))
                a("v_and_b32 %s, 0xffff0000, %s" % (vr(SC + 2 * i + 1), vr(T + i)))
        for i in range(8):
            a("v_mul_f32 %s, 0x%x, %s" % (vr(SC + i), SCALE, vr(SC + i)))
        if self.mimic:
            for i in range(4):
                a("v_cvt_pk_bf16_f32 %s, %s, %s" % (vr(T + i), vr(SC + 2 * i), vr(SC + 2 * i + 1)))
            for i in range(4):
                a("v_lshlrev_b32 %s, 16, %s" % (vr(SC + 2 * i), vr(T + i)))
                a("v_and_b32 %s, 0xffff0000, %s" % (vr(SC + 2 * i + 1), vr(T + i)))
        MX = 44
        a("v_max3_f32 %s, %s, %s, %s" % (vr(T), vr(SC), vr(SC + 1), vr(SC + 2)))
        a("v_max3_f32 %s, %s, %s, %s" % (vr(T + 1), vr(SC + 3), vr(SC + 4), vr(SC + 5)))
        a("v_max3_f32 %s, %s, %s, %s" % (vr(T), vr(T), vr(SC + 6), vr(SC + 7)))
        a("v_max_f32 %s, %s, %s" % (vr(MX), vr(T), vr(T + 1)))
        self.xor_reduce("v_max_f32", [MX], [16, 32], T)
        a("v_mov_b32 %s, 0x%x" % (vr(T + 8), LOG2E))
        a("v_mul_f32 %s, %s, %s" % (vr(T + 9), vr(MX), vr(T + 8)))
        a("s_mov_b64 exec, 0x1111")
        a("ds_write_b32 %s, %s offset:%d" % (vr(MXW), vr(MX), L_MX))
        a("s_mov_b64 exec, -1")
        for i in range(8):
            a("v_fma_f32 %s, %s, %s, -%s" % (vr(SC + i), vr(SC + i), vr(T + 8), vr(T + 9)))
        for i in range(8):
            a("v_exp_f32 %s, %s" % (vr(SC + i), vr(SC + i)))
        PF = 48
        a("s_nop 0")
        for i in range(4):
            a("v_cvt_pk_bf16_f32 %s, %s, %s" % (vr(T + 1 + i), vr(SC + 2 * i), vr(SC + 2 * i + 1)))
        a("ds_write_b128 %s, %s offset:%d" % (vr(PWA), vr(T + 1, 4), L_P))
        self.flag_add(F_P, VZ, V1)
        self.flag_wait(F_P, 4, VZ, T + 6)
        for ks in range(4):
            a("ds_read_b128 %s, %s offset:%d" % (vr(PF + 4 * ks, 4), vr(PRA), L_P + 1024 * ks))
        FW = 120
        a("ds_read_b128 %s, %s offset:%d" % (vr(FW, 4), vr(MRA), L_MX))
        self.stamp(3)
        a("s_waitcnt lgkmcnt(0)")
        a("v_max3_f32 %s, %s, %s, %s" % (vr(MX), vr(FW), vr(FW + 1), vr(FW + 2)))
        a("v_max_f32 %s, %s, %s" % (vr(MX), vr(MX), vr(FW + 3)))
        a("v_mul_f32 %s, %s, %s" % (vr(T + 9), vr(MX), vr(T + 8)))
        for i in range(4):
            a("v_fma_f32 %s, %s, %s, -%s" % (vr(FW + i), vr(FW + i), vr(T + 8), vr(T + 9)))
        for i in range(4):
            a("v_exp_f32 %s, %s" % (vr(FW + i), vr(FW + i)))
        D = 128
        TS = 124
        Lns = a.newlabel("NS")
        a("s_cmp_lg_u32 s28, 0")
        a("s_cbranch_scc1 %s" % Lns)
        ON = 64
        for t in range(4):
            a("v_mov_b32 %s, 0x3f803f80" % vr(ON + t))
        a("s_nop 1")
        for ks in range(4):
            a("v_mfma_f32_16x16x32_bf16 %s, %s, %s, 0" % (vr(D + 4 * ks, 4), vr(PF + 4 * ks, 4), vr(ON, 4)))
        a("v_mov_b32 %s, %s" % (vr(TS), vr(MX)))
        a("v_mov_b32 %s, %s" % (vr(TS + 2), vr(TG + 2)))
        a("v_mov_b32 %s, %s" % (vr(TS + 3), vr(TG + 3)))
        a("s_nop 4")
        a("v_mul_f32 %s, %s, %s" % (vr(TS + 1), vr(FW), vr(D)))
        for ks in range(1, 4):
            a("v_fmac_f32 %s, %s, %s" % (vr(TS + 1), vr(FW + ks), vr(D + 4 * ks)))
        a(Lns + ":")
        wo_first = self.order.index("o") < self.order.index("v")

        def read_wo():
            self.flag_wait(F_WO, 1, VZ, T, sleep=0 if not wo_first else 1)
            for i in range(4):
                a("ds_read_b128 %s, %s offset:%d" % (vr(WO + 4 * i, 4), vr(WOA), 1024 * i))
        if wo_first:
            read_wo()
        self.stamp(4)
        VF = 64
        S_V, S_I = 44, 45
        a("s_mov_b32 s%d, 0" % S_V)
        a("s_mov_b32 s%d, 0" % S_I)
        for ks in range(4):
            Lgo, Lsp = a.newlabel("V"), a.newlabel("V")
            a("s_cmp_ge_u32 s%d, %d" % (S_V, ks + 1))
            a("s_cbranch_scc1 %s" % Lgo)
            a("s_mov_b32 s%d, 0" % S_CNT)
            a(Lsp + ":")
            a("ds_read_b64 %s, %s offset:%d" % (vr(T + 1, 2), vr(VZ), F_V))
            a("s_add_u32 s%d, s%d, 1" % (S_CNT, S_CNT))
            a("s_cmp_gt_u32 s%d, %d" % (S_CNT, SPIN_MAX))
            a("s_cbranch_scc1 L_end")
            a("s_waitcnt lgkmcnt(0)")
            a("v_readfirstlane_b32 s%d, %s" % (S_V, vr(T + 1)))
            a("v_readfirstlane_b32 s%d, %s" % (S_I, vr(T + 2)))
            a("s_cmp_lt_u32 s%d, %d" % (S_V, ks + 1))
            a("s_cbranch_scc1 %s" % Lsp)
            a(Lgo + ":")
            if ks == 3:
                self.stamp(5)
            for u in range(2):
                for jh in range(2):
                    a("ds_read_b64_tr_b16 %s, %s offset:%d" % (vr(VF + 8 * ks + 4 * u + 2 * jh, 2), vr(VO + u), 8192 * ks + 1024 * jh))
            if ks:
                a("s_waitcnt lgkmcnt(4)")
                for u in range(2):
                    a("v_mfma_f32_16x16x32_bf16 %s, %s, %s, 0" % (vr(D + 8 * (ks - 1) + 4 * u, 4), vr(PF + 4 * (ks - 1), 4), vr(VF + 8 * (ks - 1) + 4 * u, 4)))
        for u in range(2):
            a("s_waitcnt lgkmcnt(%d)" % (2 - 2 * u))
            a("v_mfma_f32_16x16x32_bf16 %s, %s, %s, 0" % (vr(D + 24 + 4 * u, 4), vr(PF + 12, 4), vr(VF + 24 + 4 * u, 4)))
        a("v_mul_f32 %s, %s, %s" % (vr(TG), vr(FW), vr(D)))
        a("v_mul_f32 %s, %s, %s" % (vr(TG + 1), vr(FW), vr(D + 4)))
        for ks in range(1, 3):
            a("v_fmac_f32 %s, %s, %s" % (vr(TG), vr(FW + ks), vr(D + 8 * ks)))
            a("v_fmac_f32 %s, %s, %s" % (vr(TG + 1), vr(FW + ks), vr(D + 8 * ks + 4)))
        a("s_nop 1")
        a("v_fmac_f32 %s, %s, %s" % (vr(TG), vr(FW + 3), vr(D + 24)))
        a("v_fmac_f32 %s, %s, %s" % (vr(TG + 1), vr(FW + 3), vr(D + 28)))
        if self.sinit:
            Li = a.newlabel("I")
            a("s_cmp_ge_u32 s%d, 2" % S_I)
            a("s_cbranch_scc1 %s" % Li)
            self.flag_wait(F_INIT, 2, VZ, T)
            a(Li + ":")
        self.store_mode(OA, TG)
        Lns = a.newlabel("NS")
        a("s_cmp_lg_u32 s28, 0")
        a("s_cbranch_scc1 %s" % Lns)
        a("s_mov_b32 s42, 0x00010001")
        a("s_mov_b32 s43, 0x00010001")
        a("s_mov_b64 exec, s[42:43]")
        self.store_mode(STA, TS)
        a("s_mov_b64 exec, -1")
        a(Lns + ":")
        self.flag_add(F_OPUB, VZ, V1)
        self.stamp(6)
        if not wo_first:
            read_wo()
        AF = 64
        OG = 8
        Lsp = a.newlabel("O")
        a("s_mov_b32 s%d, 0" % S_CNT)
        a(Lsp + ":")
        a("ds_read_b128 %s, %s offset:%d" % (vr(OG, 4), vr(ORA), L_O))
        a("s_add_u32 s%d, s%d, 1" % (S_CNT, S_CNT))
        a("s_cmp_gt_u32 s%d, %d" % (S_CNT, SPIN_MAX))
        a("s_cbranch_scc1 L_end")
        a("s_waitcnt lgkmcnt(0)")
        a("v_and_b32 %s, %s, %s" % (vr(OG + 1), vr(OG + 1), vr(OG + 3)))
        a("v_cmp_ne_u32 vcc, 1, %s" % vr(OG + 1))
        a("s_cbranch_vccnz %s" % Lsp)
        for i in range(4):
            src = OG + 2 * (i >> 1)
            for t in range(4):
                a("v_perm_b32 %s, %s, %s, %s" % (vr(AF + 4 * i + t), vr(src), vr(src), vr(SEL + 4 * (i & 1) + t)))
            if i:
                a("v_mfma_f32_16x16x32_bf16 %s, %s, %s, %s" % (vr(OD, 4), vr(AF + 4 * (i - 1), 4), vr(WO + 4 * (i - 1), 4), "0" if i == 1 else vr(OD, 4)))
        a("s_nop 1")
        a("v_mfma_f32_16x16x32_bf16 %s, %s, %s, %s" % (vr(OD, 4), vr(AF + 12, 4), vr(WO + 12, 4), vr(OD, 4)))
        a("s_nop 7")
        a("v_permlane32_swap_b32 %s, %s" % (vr(OD), vr(OD + 2)))
        a("v_permlane32_swap_b32 %s, %s" % (vr(OD + 1), vr(OD + 3)))
        a("v_mov_b32 %s, %s" % (vr(TG), vr(OD)))
        a("v_mov_b32 %s, %s" % (vr(TG + 1), vr(OD + 1)))
        self.store_mode(SA, TG)
        if self.sgate:
            self.flag_add(F_SPUB, VZ, V1)
        self.stamp(7)
        self.end(T)

    def role_c0(self):
        a = self.a
        VZ, V1 = 1, 2
        X = 4
        W = 40
        AF = 104
        SEL = 168
        ACC = 176
        T = 180
        self.role = "C0"
        if self.code_pf:
            a("s_getpc_b64 s[52:53]")
            a("L_pc:")
            a("s_lshl_b32 s54, s27, 10")
            a("v_add_u32 v3, s54, v37")
            a("v_min_u32 v3, L_code_end-L_pc-16, v3")
            a("global_load_dwordx4 v[188:191], v3, s[52:53]")
        a("""
        s_lshl_b32 s41, s40, 8
        v_lshl_add_u32 v38, v0, 2, s41
        s_lshl_b32 s41, s40, 20               ; rb * 128 * 8192
        s_lshl_b32 s42, s26, 10               ; g * 512 * 2
        s_add_u32 s41, s41, s42
        s_and_b32 s42, s27, 7
        s_lshl_b32 s42, s42, 7                ; cb * 128
        s_add_u32 s41, s41, s42
        v_lshrrev_b32 v3, 3, v0
        v_lshlrev_b32 v3, 17, v3              ; 16 rows * 8192
        v_and_b32 v36, 7, v0
        v_lshl_add_u32 v3, v36, 4, v3
        v_add_u32 v3, s41, v3
        s_mov_b32 m0, %d
        s_movk_i32 s41, 15
        s_waitcnt lgkmcnt(0)
        global_load_dwordx4 %s, v37, %s
        global_load_dword %s, v38, %s
        L_wq:
        global_load_lds_dwordx4 v3, %s %s
        v_add_u32 v3, 0x2000, v3
        s_addk_i32 m0, 0x400
        s_sub_u32 s41, s41, 1
        s_cbranch_scc0 L_wq
        s_barrier
        L_C0_rest:
        s_setprio 3
        s_load_dwordx2 s[30:31], s[24:25], %d
        v_mov_b32 v1, 0
        v_mov_b32 v2, 1
        """ % (L_W1, vr(X, 4), sp(S_X), vr(X + 4), sp(S_X), sp(S_WQ), self.nt_w, EPOCH))
        self.stamp(1)
        self.selectors(SEL, T, both_parities=True)
        a("s_waitcnt vmcnt(16)")
        self.stamp(2)
        self.layernorm_rows(X, L_XQ, VZ)
        self.tags()
        a("s_waitcnt lgkmcnt(0)")
        self.stamp(3)
        XN = X + 8
        a("v_add_u32 v37, %d, v37" % L_W1)
        for i in range(16):
            for t in range(4):
                a("v_perm_b32 %s, %s, %s, %s" % (vr(AF + 4 * i + t), vr(XN + (i >> 1)), vr(XN + (i >> 1)), vr(SEL + 4 * (i & 1) + t)))
        for q in range(4):
            a("s_waitcnt vmcnt(%d)" % (12 - 4 * q))
            for i in range(4 * q, 4 * q + 4):
                a("ds_read_b128 %s, v37 offset:%d" % (vr(W + 4 * i, 4), 1024 * i))
            if q:
                for i in range(4 * q - 4, 4 * q):
                    a("s_waitcnt lgkmcnt(%d)" % (4 + (4 * q - 1 - i)))
                    a("v_mfma_f32_16x16x32_bf16 %s, %s, %s, %s" % (vr(ACC, 4), vr(AF + 4 * i, 4), vr(W + 4 * i, 4), "0" if i == 0 else vr(ACC, 4)))
        for i in range(12, 16):
            a("s_waitcnt lgkmcnt(%d)" % (15 - i))
            a("v_mfma_f32_16x16x32_bf16 %s, %s, %s, %s" % (vr(ACC, 4), vr(AF + 4 * i, 4), vr(W + 4 * i, 4), vr(ACC, 4)))
        a("s_nop 7")
        a("v_permlane32_swap_b32 %s, %s" % (vr(ACC), vr(ACC + 2)))
        a("v_permlane32_swap_b32 %s, %s" % (vr(ACC + 1), vr(ACC + 3)))
        a("s_nop 1")
        a("v_add_f32_dpp %s, %s, %s row_ror:8 row_mask:0xf bank_mask:0xf" % (vr(ACC), vr(ACC + 2), vr(ACC)))
        a("v_add_f32_dpp %s, %s, %s row_ror:8 row_mask:0xf bank_mask:0xf" % (vr(ACC + 1), vr(ACC + 3), vr(ACC + 1)))
        self.stamp(4)
        a("v_mov_b32 %s, s%d" % (vr(ACC + 2), S_T1X))
        a("v_mov_b32 %s, s%d" % (vr(ACC + 3), S_T1X + 1))
        a("""
        s_lshl_b32 s41, s26, 14               ; g * 16384
        s_lshr_b32 s42, s27, 3
        s_lshl_b32 s42, s42, 12               ; rb * 4096
        s_add_u32 s41, s41, s42
        s_and_b32 s42, s27, 7
        s_lshl_b32 s42, s42, 9                ; cb * 512
        s_add_u32 s41, s41, s42
        s_add_u32 s41, s41, %d
        v_lshrrev_b32 v3, 4, v0               ; 2 hi + g'
        v_lshlrev_b32 v3, 3, v3
        v_and_b32 v36, 7, v0
        v_add_u32 v3, v3, v36                 ; pos = 16 hi + 8 g' + n
        v_lshl_add_u32 v3, v3, 4, s41
        v_add_u32 v37, %d, v3
        """ % (H1, REGB))
        self.flag_wait(F_INIT, 1, VZ, T)
        a("s_mov_b32 s42, 0x00ff00ff")
        a("s_mov_b32 s43, 0x00ff00ff")
        a("s_mov_b64 exec, s[42:43]")
        a("global_store_dwordx4 v3, %s, %s" % (vr(ACC, 4), sp(S_WS)))
        a("s_mov_b64 exec, -1")
        self.flag_add(F_QPUB, VZ, V1)
        a("s_mov_b64 exec, s[42:43]")
        a("global_store_dwordx4 v37, %s, %s sc1" % (vr(ACC, 4), sp(S_WS)))
        a("s_mov_b64 exec, -1")
        self.stamp(5)
        SA, OA = 4, 5
        G = 8
        a("""
        s_lshl_b32 s41, s26, 11               ; g * 2048
        s_lshr_b32 s42, s27, 3
        s_lshl_b32 s42, s42, 9                ; head * 512
        s_add_u32 s41, s41, s42
        s_add_u32 s41, s41, %d
        v_lshrrev_b32 v3, 3, v0
        v_lshl_add_u32 %s, v3, 4, s41
        s_lshl_b32 s41, s26, 17
        s_lshl_b32 s42, s27, 12
        s_add_u32 s41, s41, s42
        s_add_u32 s41, s41, %d
        v_lshl_add_u32 %s, v0, 4, s41
        """ % (ST, vr(SA), H2, vr(OA)))
        a("v_lshlrev_b32 v6, 3, v0")
        self.flag_wait(F_Q, 1, VZ, T, sleep=2)
        self.read_mode(VZ, T)
        self.stamp(6)
        GO = 40
        self.flag_wait(F_OPUB, self.ogate, VZ, T, sleep=1)
        self.stamp(7)
        self.poll([(G + 4 * i, SA, 128 * i) for i in range(4)] + [(GO + 4 * i, OA, 1024 * i) for i in range(4)], S_MB, cnt=12)
        self.stamp(8)
        MX = 24
        a("v_max3_f32 %s, %s, %s, %s" % (vr(MX), vr(G), vr(G + 4), vr(G + 8)))
        a("v_max_f32 %s, %s, %s" % (vr(MX), vr(MX), vr(G + 12)))
        self.xor_reduce("v_max_f32", [MX], [8, 16, 32], T)
        WT = 26
        for i in range(4):
            a("v_sub_f32 %s, %s, %s" % (vr(WT + i), vr(G + 4 * i), vr(MX)))
        for i in range(4):
            a("v_mul_f32 %s, 0x%x, %s" % (vr(WT + i), LOG2E, vr(WT + i)))
        for i in range(4):
            a("v_exp_f32 %s, %s" % (vr(WT + i), vr(WT + i)))
        LS, A0, A1 = 25, 30, 31
        a("s_nop 0")
        a("v_mul_f32 %s, %s, %s" % (vr(A0), vr(WT), vr(GO)))
        a("v_mul_f32 %s, %s, %s" % (vr(A1), vr(WT), vr(GO + 1)))
        a("v_mul_f32 %s, %s, %s" % (vr(LS), vr(WT), vr(G + 1)))
        for i in range(1, 4):
            a("v_fmac_f32 %s, %s, %s" % (vr(A0), vr(WT + i), vr(GO + 4 * i)))
            a("v_fmac_f32 %s, %s, %s" % (vr(A1), vr(WT + i), vr(GO + 4 * i + 1)))
            a("v_fmac_f32 %s, %s, %s" % (vr(LS), vr(WT + i), vr(G + 4 * i + 1)))
        self.xor_reduce("v_add_f32", [LS, A0, A1], [8, 16, 32], T)
        a("v_rcp_f32 %s, %s" % (vr(T), vr(LS)))
        a("s_nop 0")
        a("v_fma_f32 %s, -%s, %s, 1.0" % (vr(T + 1), vr(T), vr(LS)))
        a("v_fmac_f32 %s, %s, %s" % (vr(T), vr(T + 1), vr(T)))
        a("v_mul_f32 %s, %s, %s" % (vr(A0), vr(A0), vr(T)))
        a("v_mul_f32 %s, %s, %s" % (vr(A1), vr(A1), vr(T)))
        a("v_cvt_pk_bf16_f32 %s, %s, %s" % (vr(A0), vr(A0), vr(A1)))
        a("v_mov_b32 %s, 1" % vr(A1))
        a("s_mov_b64 exec, 0xff")
        a("ds_write_b64 %s, %s offset:%d" % (vr(6), vr(A0, 2), L_O))
        a("s_mov_b64 exec, -1")
        self.stamp(9)
        self.end(T)

    def role_c1(self):
        a = self.a
        VZ, V1 = 1, 2
        X = 4
        W = 40
        AF = 104
        SEL = 168
        ACC = 176
        T = 180
        a("L_C1:")
        a("v_mov_b32 v1, 0\nv_mov_b32 v2, 1")
        self.role = "C1"
        a("s_barrier")
        a("s_setprio 3")
        self.mlp_scalars()
        a("""
        v_lshlrev_b32 v42, 4, v0
        s_and_b32 s40, s27, 7
        s_lshl_b32 s41, s40, 7
        v_and_b32 v3, 31, v0
        v_lshl_add_u32 v43, v3, 2, s41
        """)
        a("""
        s_lshl_b32 s42, s50, 7
        s_and_b32 s43, s27, 7
        s_mul_i32 s43, s43, %d
        s_add_u32 s42, s42, s43
        v_lshrrev_b32 v6, 3, v0
        v_mul_u32_u24 v6, %d, v6
        v_and_b32 v7, 7, v0
        v_lshl_add_u32 v6, v7, 4, v6
        v_add_u32 v44, s42, v6
        """ % (64 * 3584, 8 * 3584))
        self.args_ready()
        a("global_load_dwordx4 %s, v42, %s" % (vr(X, 4), sp(S_X)))
        a("global_load_dword %s, v43, %s" % (vr(X + 4), sp(S_X)))
        Z = 36
        for i in range(4):
            a("v_mov_b32 %s, 0" % vr(Z + i))
        a("""
        s_lshl_b32 s41, s26, 17
        s_lshl_b32 s42, s27, 12
        s_add_u32 s41, s41, s42
        v_lshl_add_u32 v3, v0, 4, s41
        v_add_u32 v40, %d, v3
        v_add_u32 v41, %d, v3
        v_add_u32 v3, %d, v3
        """ % (H3S, H3G, H2))
        for r in (3, 40, 41):
            for i in range(4 if self.init & 1 else 0):
                a("global_store_dwordx4 v%d, %s, %s offset:%d" % (r, vr(Z, 4), sp(S_WS), 1024 * i))
        a("""
        s_lshl_b32 s41, s26, 14
        s_lshr_b32 s42, s27, 3
        s_lshl_b32 s42, s42, 12
        s_add_u32 s41, s41, s42
        s_and_b32 s42, s27, 7
        s_lshl_b32 s42, s42, 9
        s_add_u32 s41, s41, s42
        s_add_u32 s41, s41, %d
        v_lshl_add_u32 v3, v0, 4, s41
        s_lshl_b32 s41, s26, 11
        s_lshr_b32 s42, s27, 3
        s_lshl_b32 s42, s42, 9
        s_add_u32 s41, s41, s42
        s_add_u32 s41, s41, %d
        v_lshl_add_u32 v40, v0, 4, s41
        s_lshl_b32 s41, s26, 14
        s_lshl_b32 s42, s27, 9
        s_add_u32 s44, s41, s42
        s_add_u32 s44, s44, %d
        v_lshl_add_u32 v41, v0, 4, s44
        s_mov_b32 exec_lo, -1
        s_mov_b32 exec_hi, 0
        """ % (H1, ST, HB))
        if self.init & 2:
            a("global_store_dwordx4 v3, %s, %s" % (vr(Z, 4), sp(S_WS)))
            a("global_store_dwordx4 v41, %s, %s" % (vr(Z, 4), sp(S_WS)))
        Ls = a.newlabel("I")
        a("""
        s_and_b32 s41, s27, 7
        s_cmp_lg_u32 s41, 0
        s_cbranch_scc1 %s
        %s
        %s:
        s_mov_b64 exec, -1
        """ % (Ls, "global_store_dwordx4 v40, %s, %s" % (vr(Z, 4), sp(S_WS)) if self.init & 2 else "s_nop 0", Ls))
        W1R = 48
        Lb = a.newlabel("B")
        a("s_cmp_lg_u32 s%d, 0" % S_ISB)
        a("s_cbranch_scc1 %s" % Lb)
        a("s_waitcnt vmcnt(0)")
        self.flag_add(F_INIT, VZ, V1)
        self.stamp(1)
        self.end(T)
        a(Lb + ":")
        for i in range(8):
            a("global_load_dwordx4 %s, v44, %s %s" % (vr(W1R + 4 * i, 4), sp(S_W1), self.nt_w))
            if i < 7:
                a("v_add_u32 v44, 3584, v44")
        a("s_waitcnt vmcnt(8)")
        self.flag_add(F_INIT, VZ, V1)
        self.stamp(1)
        self.role = "C1B"
        self.selectors(SEL, T, both_parities=True)
        self.layernorm_rows(X, L_XH, VZ, rows=64)
        self.tags()
        a("v_lshlrev_b32 v3, 4, v0")
        a("v_add_u32 v38, %d, v3" % L_W2)
        XN = X + 8
        for i in range(8):
            for t in range(4):
                a("v_perm_b32 %s, %s, %s, %s" % (vr(AF + 4 * i + t), vr(XN + (i >> 1)), vr(XN + (i >> 1)), vr(SEL + 4 * (i & 1) + t)))
        a("""
        v_lshrrev_b32 v3, 4, v0
        v_lshlrev_b32 v3, 3, v3
        v_and_b32 v36, 7, v0
        v_add_u32 v3, v3, v36
        v_lshl_add_u32 v3, v3, 4, s44
        s_lshr_b32 s41, s27, 3
        s_lshl_b32 s41, s41, 12               ; cbl * 4096
        s_lshl_b32 s42, s26, 14
        s_add_u32 s41, s41, s42
        s_and_b32 s42, s27, 7
        s_lshl_b32 s42, s42, 4                ; j * 16
        s_add_u32 s41, s41, s42
        s_add_u32 s41, s41, %d
        v_bfe_u32 v4, v0, 2, 3
        v_lshlrev_b32 v4, 9, v4               ; producer * 512
        v_and_b32 v5, 1, v0
        v_lshl_add_u32 v4, v5, 8, v4          ; 16 (q & 1) * 16
        v_bfe_u32 v5, v0, 1, 1
        v_lshl_add_u32 v4, v5, 7, v4          ; 8 (q >> 1) * 16
        v_add_u32 v4, s41, v4
        """ % HB)
        a("s_waitcnt vmcnt(0)")
        self.stamp(2)
        for i in range(8):
            a("v_mfma_f32_16x16x32_bf16 %s, %s, %s, %s" % (vr(ACC, 4), vr(AF + 4 * i, 4), vr(W1R + 4 * i, 4), "0" if i == 0 else vr(ACC, 4)))
        a("s_nop 7")
        a("v_permlane32_swap_b32 %s, %s" % (vr(ACC), vr(ACC + 2)))
        a("v_permlane32_swap_b32 %s, %s" % (vr(ACC + 1), vr(ACC + 3)))
        a("s_nop 1")
        a("v_add_f32_dpp %s, %s, %s row_ror:8 row_mask:0xf bank_mask:0xf" % (vr(ACC), vr(ACC + 2), vr(ACC)))
        a("v_add_f32_dpp %s, %s, %s row_ror:8 row_mask:0xf bank_mask:0xf" % (vr(ACC + 1), vr(ACC + 3), vr(ACC + 1)))
        self.stamp(3)
        a("v_mov_b32 %s, s%d" % (vr(ACC + 2), S_T))
        a("v_mov_b32 %s, s%d" % (vr(ACC + 3), S_T + 1))
        a("v_add_u32 v5, %d, v3" % REGB)
        a("s_mov_b32 s42, 0x00ff00ff")
        a("s_mov_b32 s43, 0x00ff00ff")
        a("s_mov_b64 exec, s[42:43]")
        a("global_store_dwordx4 v3, %s, %s" % (vr(ACC, 4), sp(S_WS)))
        a("s_mov_b64 exec, -1")
        self.flag_add(F_HPUB, VZ, V1)
        a("s_mov_b64 exec, s[42:43]")
        a("global_store_dwordx4 v5, %s, %s sc1" % (vr(ACC, 4), sp(S_WS)))
        a("s_mov_b64 exec, -1")
        G = 8
        self.selectors(SEL, T, both_parities=False)
        self.flag_wait(F_Q, 1, VZ, T, sleep=1)
        self.read_mode(VZ, T)
        self.poll([(G, 4, 0)], S_MB)
        self.stamp(4)
        self.xor_reduce("v_add_f32", [G, G + 1], ["r4", 8, 16], T)
        a("v_max_f32 %s, 0, %s" % (vr(G), vr(G)))
        a("v_max_f32 %s, 0, %s" % (vr(G + 1), vr(G + 1)))
        a("v_cvt_pk_bf16_f32 %s, %s, %s" % (vr(G), vr(G), vr(G + 1)))
        a("s_nop 1")
        for r in range(4):
            a("v_mov_b32_dpp %s, %s quad_perm:[%d,%d,%d,%d] row_mask:0x%x bank_mask:0xf" % (vr(G + 4), vr(G), r, r, r, r, 1 << r))
        a("""
        s_lshl_b32 s42, s26, 17
        s_lshl_b32 s43, s27, 7
        s_add_u32 s42, s42, s43
        s_add_u32 s42, s42, %d
        v_lshrrev_b32 v3, 3, v0
        v_lshlrev_b32 v3, 12, v3
        v_lshl_add_u32 v3, v36, 4, v3
        v_add_u32 v3, s42, v3
        """ % H3G)
        for i in range(2):
            for t in range(4):
                a("v_perm_b32 %s, %s, %s, %s" % (vr(AF + 4 * i + t), vr(G + 4), vr(G + 4), vr(SEL + 4 * i + t)))
        self.flag_wait(F_W2, 1, VZ, T, sleep=1)
        for i in range(8):
            a("ds_read_b128 %s, v38 offset:%d" % (vr(W + 4 * i, 4), 1024 * i))
        for w in range(4):
            for i in range(2):
                a("s_waitcnt lgkmcnt(%d)" % (7 - (2 * w + i)))
                a("v_mfma_f32_16x16x32_bf16 %s, %s, %s, %s" % (vr(AF + 16 + 4 * w, 4), vr(AF + 4 * i, 4), vr(W + 8 * w + 4 * i, 4), "0" if i == 0 else vr(AF + 16 + 4 * w, 4)))
        a("s_nop 7")
        for w in range(4):
            d = AF + 16 + 4 * w
            a("v_permlane32_swap_b32 %s, %s" % (vr(d), vr(d + 2)))
            a("v_permlane32_swap_b32 %s, %s" % (vr(d + 1), vr(d + 3)))
        a("s_nop 0")
        for w in range(4):
            d = AF + 16 + 4 * w
            a("v_mov_b32 %s, s%d" % (vr(d + 2), S_T))
            a("v_mov_b32 %s, s%d" % (vr(d + 3), S_T + 1))
        for w in range(4):
            self.store_mode(3, AF + 16 + 4 * w)
            if w < 3:
                a("v_add_u32 v3, 0x8000, v3")
        self.stamp(5)
        self.end(T)

    def role_c2(self):
        a = self.a
        VZ, V1 = 1, 2
        T = 100
        G = 8
        a("L_C2:")
        a("v_mov_b32 v1, 0\nv_mov_b32 v2, 1")
        self.role = "C2"
        a("s_setprio 3")
        a("v_lshlrev_b32 v3, 2, v0")
        a("s_mov_b32 exec_hi, 0")
        a("ds_write_b32 v3, v1 offset:%d" % L_F)
        a("s_mov_b64 exec, -1")
        self.args_ready()
        a("s_barrier")
        self.mlp_scalars()
        XF, FA, OUTA = 80, 81, 82
        a("""
        s_max_u32 s45, s27, 28
        s_sub_u32 s45, s45, 28
        s_lshl_b32 s45, s45, 3
        s_add_u32 s45, s45, s26               ; column set c'
        s_lshr_b32 s41, s45, 3
        s_lshl_b32 s41, s41, 7                ; 128 (c' >> 3)
        s_and_b32 s42, s45, 1
        s_lshl_b32 s42, s42, 6                ; 64 (c' & 1)
        s_add_u32 s41, s41, s42
        s_bfe_u32 s42, s45, 0x10001
        s_lshl_b32 s42, s42, 2
        s_add_u32 s41, s41, s42
        s_bfe_u32 s42, s45, 0x10002
        s_lshl_b32 s42, s42, 1
        s_add_u32 s41, s41, s42
        v_and_b32 v3, 7, v0
        v_lshlrev_b32 v3, 3, v3
        v_add_u32 v3, s41, v3                 ; first column of the pair
        v_lshlrev_b32 %s, 1, v3               ; byte offset in x / out
        s_lshl_b32 s41, s45, 11
        s_add_u32 s41, s41, %d
        v_lshrrev_b32 v3, 3, v0
        v_lshlrev_b32 v3, 8, v3
        v_and_b32 v83, 7, v0
        v_lshl_add_u32 v3, v83, 4, v3
        v_add_u32 %s, s41, v3
        """ % (vr(OUTA), H3B, vr(FA)))
        Lnf = a.newlabel("NF")
        a("s_cmp_lt_u32 s27, 28")
        a("s_cbranch_scc1 %s" % Lnf)
        a("global_load_dword %s, %s, %s" % (vr(XF), vr(OUTA), sp(S_X)))
        a("global_load_dwordx4 v[84:87], %s, %s sc1" % (vr(FA), sp(S_WS)))
        a("global_load_dwordx4 v[88:91], %s, %s offset:128 sc1" % (vr(FA), sp(S_WS)))
        a(Lnf + ":")
        a("""
        s_lshl_b32 s41, s26, 14
        s_add_u32 s41, s41, %d
        v_lshl_add_u32 v4, v0, 4, s41
        v_add_u32 v5, 0x1000, v4
        v_add_u32 v6, 0x2000, v4
        v_add_u32 v7, 0x3000, v4
        """ % H1)
        qloads = [(G + 16 * hd + 4 * rb, 4 + rb, 1024 * hd) for hd in range(4) for rb in range(4)]
        self.tags()
        self.stamp(1)
        self.flag_wait(F_QPUB, 1, VZ, T, sleep=1)
        self.stamp(2)
        Lslow, Lgot = a.newlabel("Q"), a.newlabel("Q")
        if not self.force_global:
            self.poll(qloads, S_WS, tag=S_T1X, limit=A_TIMEOUT, on_timeout=Lslow, cnt=12)
            a("s_branch %s" % Lgot)
        a(Lslow + ":")
        a("s_waitcnt vmcnt(0)")
        a("s_add_u32 s46, s%d, %d" % (S_WS, REGB))
        a("s_addc_u32 s47, s%d, 0" % (S_WS + 1))
        L = a.newlabel("P")
        a("s_mov_b32 s%d, 0" % S_CNT)
        a(L + ":")
        for (vd, va, off) in qloads:
            a("global_load_dwordx4 %s, %s, s[46:47] offset:%d sc1" % (vr(vd, 4), vr(va), off))
        a("s_add_u32 s%d, s%d, 1" % (S_CNT, S_CNT))
        a("s_cmp_gt_u32 s%d, %d" % (S_CNT, POLL_MAX))
        a("s_cbranch_scc1 L_end")
        a("s_waitcnt vmcnt(0)")
        a("v_mov_b32 %s, 0" % vr(T))
        a("v_mov_b32 %s, 0" % vr(T + 1))
        for (vd, va, off) in qloads:
            a("v_xor_b32 %s, s%d, %s" % (vr(T + 2), S_T, vr(vd + 2)))
            a("v_xor_b32 %s, s%d, %s" % (vr(T + 3), S_T + 1, vr(vd + 3)))
            a("v_and_b32 %s, 0xfffffff0, %s" % (vr(T + 3), vr(T + 3)))
            a("v_or3_b32 %s, %s, %s, %s" % (vr(T), vr(T), vr(T + 2), vr(T + 3)))
            a("v_xor_b32 %s, s%d, %s" % (vr(T + 3), S_T1X + 1, vr(vd + 3)))
            a("v_or_b32 %s, %s, %s" % (vr(T + 1), vr(T + 1), vr(T + 3)))
        a("v_cmp_ne_u32 vcc, 0, %s" % vr(T))
        a("s_cbranch_vccnz %s" % L)
        a("v_cmp_ne_u32 vcc, 0, %s" % vr(T + 1))
        a("s_cbranch_vccz %s" % Lgot)
        self.flag_add(F_REM, VZ, V1)
        a(Lgot + ":")
        self.stamp(3)
        for hd in range(4):
            b = G + 16 * hd
            for e in range(2):
                a("v_add_f32 %s, %s, %s" % (vr(b + e), vr(b + e), vr(b + 4 + e)))
                a("v_add_f32 %s, %s, %s" % (vr(b + 8 + e), vr(b + 8 + e), vr(b + 12 + e)))
            for e in range(2):
                a("v_add_f32 %s, %s, %s" % (vr(b + e), vr(b + e), vr(b + 8 + e)))
            a("v_cvt_pk_bf16_f32 %s, %s, %s" % (vr(b), vr(b), vr(b + 1)))
        a("""
        v_lshrrev_b32 v72, 5, v0              ; cb_local
        v_lshlrev_b32 v72, 7, v72             ; 64 columns * 2 B
        v_and_b32 v73, 7, v0
        v_lshl_add_u32 v72, v73, 4, v72       ; 8 n * 2 B
        v_bfe_u32 v73, v0, 3, 1
        v_lshl_add_u32 v72, v73, 3, v72       ; 4 g' * 2 B
        v_bfe_u32 v73, v0, 4, 1
        v_lshl_add_u32 v72, v73, 2, v72       ; 2 s * 2 B
        """)
        for hd in range(4):
            a("ds_write_b32 v72, %s offset:%d" % (vr(G + 16 * hd), L_Q + 320 * hd))
        self.flag_add(F_Q, VZ, V1)
        self.stamp(4)
        SA, GA, BA = 4, 5, 6
        a("""
        s_lshl_b32 s41, s26, 17
        s_lshl_b32 s42, s27, 12
        s_add_u32 s41, s41, s42
        v_lshl_add_u32 v3, v0, 4, s41
        v_add_u32 %s, %d, v3
        v_add_u32 %s, %d, v3
        s_lshl_b32 s41, s27, 11
        s_lshl_b32 s42, s26, 8
        s_add_u32 s41, s41, s42
        s_add_u32 s41, s41, %d
        v_lshl_add_u32 %s, v0, 4, s41
        """ % (vr(SA), H3S, vr(GA), H3G, H3B, vr(BA)))
        self.read_mode(VZ, T)
        if self.sinit:
            for i in range(4):
                a("v_mov_b32 %s, 0" % vr(56 + i))
            for i in range(4):
                a("global_store_dwordx4 %s, v[56:59], %s offset:%d" % (vr(SA), sp(S_WS), 1024 * i))
            a("s_waitcnt vmcnt(0)")
            self.flag_add(F_INIT, VZ, V1)
        GS = 40
        GG, GAD, GW = 24, 44, 48
        a("v_mov_b32 %s, 0" % vr(GS))
        a("v_mov_b32 %s, 0" % vr(GS + 1))
        Lng = a.newlabel("NG")
        a("s_cmp_eq_u32 s49, 0")
        a("s_cbranch_scc1 %s" % Lng)
        a("v_lshrrev_b32 v3, 3, v0")
        for i in range(4):
            a("v_add_u32 v52, %d, v3" % (8 * i))
            a("v_cmp_gt_u32 vcc, s49, v52")
            a("v_add_u32 v53, %d, %s" % (1024 * i, vr(GA)))
            a("v_mov_b32 v54, 1.0")
            a("v_cndmask_b32 %s, %s, v53, vcc" % (vr(GAD + i), vr(GA)))
            a("v_cndmask_b32 %s, v1, v54, vcc" % vr(GW + i))
        self.flag_wait(F_OPUB, 4, VZ, T, sleep=1)
        if self.spf == 1:
            for i in range(4):
                a("global_load_dwordx4 %s, %s, %s offset:%d sc1" % (vr(60 + 4 * i, 4), vr(SA), sp(S_MB), 1024 * i))
        self.poll([(GG + 4 * i, GAD + i, 0) for i in range(4)], S_MB, cnt=15)
        if self.spf == 3:
            for i in range(4):
                a("global_load_dwordx4 %s, %s, %s offset:%d sc1" % (vr(60 + 4 * i, 4), vr(SA), sp(S_MB), 1024 * i))
        for i in range(4):
            for e in range(2):
                a("v_fmac_f32 %s, %s, %s" % (vr(GS + e), vr(GW + i), vr(GG + 4 * i + e)))
        a(Lng + ":")
        self.stamp(5)
        if self.sgate:
            self.flag_wait(F_SPUB, 4, VZ, T)
        else:
            L = a.newlabel("O")
            a("s_mov_b32 s%d, 0" % S_CNT)
            a(L + ":")
            a("ds_read_b32 %s, %s offset:%d" % (vr(T), vr(VZ), L_O + 4))
            a("s_add_u32 s%d, s%d, 1" % (S_CNT, S_CNT))
            a("s_cmp_gt_u32 s%d, %d" % (S_CNT, SPIN_MAX))
            a("s_cbranch_scc1 L_end")
            a("s_waitcnt lgkmcnt(0)")
            a("v_readfirstlane_b32 s%d, %s" % (S_TMP, vr(T)))
            a("s_cmp_lg_u32 s%d, 1" % S_TMP)
            a("s_cbranch_scc1 %s" % L)
        if self.sdelay:
            a("s_sleep %d" % self.sdelay)
        self.stamp(6)
        if self.trace:
            for k in range(11, 16):
                a("s_mov_b32 s%d, 0" % (S_STAMP + 2 * k))
            self.poll_traced([(G + 4 * i, SA, 1024 * i) for i in range(4)], S_MB, 11, 5)
        else:
            self.poll([(G + 4 * i, SA, 1024 * i) for i in range(4)], S_MB, cnt=13)
        self.stamp(7)
        for e in range(2):
            a("v_add_f32 %s, %s, %s" % (vr(G + e), vr(G + e), vr(G + 4 + e)))
            a("v_add_f32 %s, %s, %s" % (vr(G + 8 + e), vr(G + 8 + e), vr(G + 12 + e)))
        for e in range(2):
            a("v_add_f32 %s, %s, %s" % (vr(G + e), vr(G + e), vr(G + 8 + e)))
        self.xor_reduce("v_add_f32", [G, G + 1, GS, GS + 1], [8, 16, 32], T)
        a("""
        v_bfe_u32 v3, v0, 3, 1
        v_cmp_eq_u32 vcc, 1, v3
        v_mov_b32 %s, s%d
        v_mov_b32 %s, s%d
        v_cndmask_b32 %s, %s, %s, vcc
        v_cndmask_b32 %s, %s, %s, vcc
        s_mov_b64 exec, 0xffff
        global_store_dwordx4 %s, %s, %s sc1
        s_mov_b64 exec, -1
        """ % (vr(G + 2), S_T, vr(G + 3), S_T + 1, vr(G), vr(G), vr(GS), vr(G + 1), vr(G + 1), vr(GS + 1), vr(BA), vr(G, 4), sp(S_WS)))
        self.stamp(8)
        Lf = a.newlabel("F")
        a("s_cmp_ge_u32 s27, 28")
        a("s_cbranch_scc1 %s" % Lf)
        self.end(T)
        a(Lf + ":")
        self.role = "C2F"
        G = 12
        self.poll([(G, FA, 0), (G + 4, FA, 128)], S_WS, cnt=14)
        self.stamp(9)
        self.xor_reduce("v_add_f32", [G, G + 1, G + 4, G + 5], [8, 16, 32], T)
        a("v_cvt_pk_bf16_f32 %s, %s, %s" % (vr(G), vr(G), vr(G + 1)))
        a("v_cvt_pk_bf16_f32 %s, %s, %s" % (vr(G + 4), vr(G + 4), vr(G + 5)))
        a("v_and_b32 %s, 0xffff0000, %s" % (vr(G + 1), vr(G)))
        a("v_lshlrev_b32 %s, 16, %s" % (vr(G), vr(G)))
        a("v_and_b32 %s, 0xffff0000, %s" % (vr(G + 5), vr(G + 4)))
        a("v_lshlrev_b32 %s, 16, %s" % (vr(G + 4), vr(G + 4)))
        for e in range(2):
            a("v_mul_f32 %s, 0x%x, %s" % (vr(G + 8 + e), LOG2E ^ 0x80000000, vr(G + 4 + e)))
        for e in range(2):
            a("v_exp_f32 %s, %s" % (vr(G + 8 + e), vr(G + 8 + e)))
        a("s_nop 0")
        for e in range(2):
            a("v_add_f32 %s, 1.0, %s" % (vr(G + 8 + e), vr(G + 8 + e)))
        for e in range(2):
            a("v_rcp_f32 %s, %s" % (vr(G + 8 + e), vr(G + 8 + e)))
        a("s_nop 0")
        for e in range(2):
            a("v_mul_f32 %s, %s, %s" % (vr(G + 4 + e), vr(G + 4 + e), vr(G + 8 + e)))
        a("v_cvt_pk_bf16_f32 %s, %s, %s" % (vr(G + 4), vr(G + 4), vr(G + 5)))
        a("v_and_b32 %s, 0xffff0000, %s" % (vr(G + 5), vr(G + 4)))
        a("v_lshlrev_b32 %s, 16, %s" % (vr(G + 4), vr(G + 4)))
        for e in range(2):
            a("v_mul_f32 %s, %s, %s" % (vr(G + e), vr(G + e), vr(G + 4 + e)))
        a("v_cvt_pk_bf16_f32 %s, %s, %s" % (vr(G), vr(G), vr(G + 1)))
        a("v_and_b32 %s, 0xffff0000, %s" % (vr(G + 1), vr(G)))
        a("v_lshlrev_b32 %s, 16, %s" % (vr(G), vr(G)))
        a("v_and_b32 %s, 0xffff0000, %s" % (vr(G + 5), vr(XF)))
        a("v_lshlrev_b32 %s, 16, %s" % (vr(G + 4), vr(XF)))
        for e in range(2):
            a("v_add_f32 %s, %s, %s" % (vr(G + e), vr(G + e), vr(G + 4 + e)))
        a("v_cvt_pk_bf16_f32 %s, %s, %s" % (vr(G), vr(G), vr(G + 1)))
        a("s_mov_b64 exec, 0xff")
        a("global_store_dword %s, %s, %s" % (vr(OUTA), vr(G), sp(S_OUT)))
        Le = a.newlabel("E")
        a("s_cmp_lg_u32 s45, 0")
        a("s_cbranch_scc1 %s" % Le)
        a("s_mov_b64 exec, 1")
        a("v_mov_b32 %s, s%d" % (vr(G + 2), S_T))
        a("v_mov_b32 %s, s%d" % (vr(G + 3), S_T + 1))
        a("global_store_dwordx2 v1, %s, %s offset:%d sc1" % (vr(G + 2, 2), sp(S_WS), EPOCH))
        a(Le + ":")
        a("s_mov_b64 exec, -1")
        self.stamp(10)
        self.end(T)

    def build(self):
        self.prologue()
        self.role_c0()
        self.role_c1()
        self.role_c2()
        self.role_a()
        self.role_l()
        self.a("L_end:\ns_endpgm\nL_code_end:")
        return wrap(self.a.text(), 256, 512, LDS_BYTES, 192, sgpr=96)


def generate(**kw):
    return Gen(**kw).build()


if __name__ == "__main__":
    out = sys.argv[1] if len(sys.argv) > 1 else "cdna_kernels/%s.s" % NAME
    kw = {}
    for arg in sys.argv[2:]:
        k, v = arg.split("=")
        kw[k] = {"True": True, "False": False}.get(v, v)
    open(out, "w").write(generate(**kw))
    print("wrote", out)
```

```python
import sys
from asmgen import Asm, wrap, NAME

REGB = 0x400000
EPOCH = 0x0
H1 = 0x10000
ST = 0x50000
H3B = 0x70000
HB = 0x80000
H2 = 0x100000
H3S = 0x200000
H3G = 0x300000
STAMP_OFF = 256 << 20

L_Q = 0x0000
L_P = 0x0800
L_MX = 0x1800
L_O = 0x1AC0
L_XQ = 0x1880
L_XH = 0x1980
L_F = 0x1A80
L_K = 0x2000
L_V = 0xA000
L_WO = 0x12000
L_W2 = 0x16000
L_W1 = 0x1A000
F_V, F_INIT, F_Q, F_REM, F_K, F_MAX, F_P, F_ST, F_QPUB, F_OPUB, F_O, F_W1, F_SPUB, F_WO, F_W2, F_HPUB = [L_F + 4 * i for i in range(16)]
LDS_BYTES = 0x1E000

S_X, S_K, S_V, S_WQ, S_WO, S_W1, S_W2, S_OUT, S_WS = 4, 6, 8, 10, 12, 16, 18, 20, 24
S_G, S_C, S_W = 26, 27, 28
S_T = 30
S_XCC = 32
S_MODE = 33
S_MB = 34
S_T1X = 36
S_ISB = 38
S_CNT = 39
S_TMP = 40
S_STAMP = 60

LOG2E = 0x3fb8aa3b
SCALE = 0x3db504f3
A_TIMEOUT = 64
SPIN_MAX = 1 << 20
POLL_MAX = 1 << 16


def sp(n):
    return "s[%d:%d]" % (n, n + 1)


def vr(n, k=1):
    return "v%d" % n if k == 1 else "v[%d:%d]" % (n, n + k - 1)


class Gen:
    def __init__(self, stamps=False, nt_kv="nt", nt_w="nt", force_global=False, mimic=True, window=16, nb_lo=32, nb_hi=24, order="k2v|o", code_pf=1, dbg=0, ileave=1, hold=0, init=2, w2=40, chk=4, init_late=0, ogate=4, sdelay=0, trace=0, sinit=0, sgate=1, spf=1, ofill=0, scramble=0):
        self.a = Asm()
        self.window = int(window)
        self.nb_lo = int(nb_lo)
        self.nb_hi = int(nb_hi)
        self.order = order
        self.code_pf = int(code_pf)
        self.dbg = int(dbg)
        self.role = None
        if self.dbg:
            self.stamps = stamps = True
        self.ileave = int(ileave)
        self.hold = int(hold)
        self.init = int(init)
        self.w2 = int(w2)
        self.chk = int(chk)
        self.init_late = int(init_late)
        self.ogate = int(ogate)
        self.sdelay = int(sdelay)
        self.trace = int(trace)
        self.sinit = int(sinit)
        self.sgate = int(sgate)
        self.spf = int(spf)
        self.ofill = int(ofill)
        self.scramble = int(scramble)
        assert 4 * self.nb_lo + 4 * self.nb_hi == 224 and self.nb_lo % 8 == 0 and self.nb_hi % 8 == 0
        self.stamps = stamps
        self.nt_kv = nt_kv
        self.nt_w = nt_w
        self.force_global = force_global
        self.mimic = mimic
        self.nstamp = 0

    def stamp(self, idx):
        if self.stamps:
            self.a("s_memrealtime %s" % sp(S_STAMP + 2 * idx))

    def flag_add(self, flag, vz, vone):
        a = self.a
        a("s_mov_b64 exec, 1")
        a("ds_add_u32 %s, %s offset:%d" % (vr(vz), vr(vone), flag))
        a("s_mov_b64 exec, -1")

    def flag_set(self, flag, val, vz, vt):
        a = self.a
        a("v_mov_b32 %s, %d" % (vr(vt), val))
        a("s_mov_b64 exec, 1")
        a("ds_write_b32 %s, %s offset:%d" % (vr(vz), vr(vt), flag))
        a("s_mov_b64 exec, -1")

    def flag_wait(self, flag, n, vz, vt, sleep=0):
        a = self.a
        L, Lgo = a.newlabel("W"), a.newlabel("W")
        a("s_mov_b32 s%d, 0" % S_CNT)
        a(L + ":")
        a("ds_read_b32 %s, %s offset:%d" % (vr(vt), vr(vz), flag))
        a("s_waitcnt lgkmcnt(0)")
        a("v_readfirstlane_b32 s%d, %s" % (S_TMP, vr(vt)))
        a("s_cmp_ge_u32 s%d, %d" % (S_TMP, n))
        a("s_cbranch_scc1 %s" % Lgo)
        if sleep:
            a("s_sleep %d" % sleep)
        a("s_add_u32 s%d, s%d, 1" % (S_CNT, S_CNT))
        a("s_cmp_lt_u32 s%d, %d" % (S_CNT, SPIN_MAX))
        a("s_cbranch_scc1 %s" % L)
        a("s_branch L_end")
        a(Lgo + ":")

    def store_mode(self, vaddr, vdata, n=4):
        a = self.a
        L1, L2 = a.newlabel("S"), a.newlabel("S")
        op = "global_store_dwordx%d" % n
        a("s_cmp_lg_u32 s%d, 0" % S_MODE)
        a("s_cbranch_scc1 %s" % L1)
        a("%s %s, %s, %s" % (op, vr(vaddr), vr(vdata, n), sp(S_MB)))
        a("s_branch %s" % L2)
        a(L1 + ":")
        a("%s %s, %s, %s sc1" % (op, vr(vaddr), vr(vdata, n), sp(S_MB)))
        a(L2 + ":")

    def poll_traced(self, loads, base, first_stamp, npass=4):
        a = self.a
        Lok = a.newlabel("PT")
        n = len(loads)
        for k in range(npass):
            a("s_memrealtime %s" % sp(S_STAMP + 2 * (first_stamp + k)))
            for (vd, va, off) in loads:
                a("global_load_dwordx4 %s, %s, %s offset:%d sc1" % (vr(vd, 4), vr(va), sp(base), off))
            for i, (vd, va, off) in enumerate(loads):
                a("s_waitcnt vmcnt(%d)" % (n - 1 - i))
                dst = "vcc" if i == 0 else sp(S_TMP)
                a("v_cmp_ne_u64 %s, %s, %s" % (dst, vr(vd + 2, 2), sp(S_T)))
                if i:
                    a("s_or_b64 vcc, vcc, %s" % sp(S_TMP))
            a("s_cbranch_vccz %s" % Lok)
        self.poll(loads, base)
        a(Lok + ":")

    def poll(self, loads, base, tag=S_T, limit=POLL_MAX, on_timeout="L_end", cnt=None):
        a = self.a
        L, Lok = a.newlabel("P"), a.newlabel("P")
        a("s_mov_b32 s%d, 0" % S_CNT)
        a(L + ":")
        for (vd, va, off) in loads:
            a("global_load_dwordx4 %s, %s, %s offset:%d sc1" % (vr(vd, 4), vr(va), sp(base), off))
        n = len(loads)
        for i, (vd, va, off) in enumerate(loads):
            a("s_waitcnt vmcnt(%d)" % (n - 1 - i))
            dst = "vcc" if i == 0 else sp(S_TMP)
            a("v_cmp_ne_u64 %s, %s, %s" % (dst, vr(vd + 2, 2), sp(tag)))
            if i:
                a("s_or_b64 vcc, vcc, %s" % sp(S_TMP))
        a("s_cbranch_vccz %s" % Lok)
        a("s_add_u32 s%d, s%d, 1" % (S_CNT, S_CNT))
        a("s_cmp_le_u32 s%d, %d" % (S_CNT, limit))
        a("s_cbranch_scc1 %s" % L)
        a("s_branch %s" % on_timeout)
        a(Lok + ":")
        if cnt is not None and self.stamps:
            a("s_mov_b32 s%d, s%d" % (S_STAMP + 2 * cnt, S_CNT))

    def xor_reduce(self, op, regs, steps, tmp):
        a = self.a
        for st in steps:
            if st in (16, 32):
                ins = "v_permlane16_swap_b32" if st == 16 else "v_permlane32_swap_b32"
                for i, r in enumerate(regs):
                    a("v_mov_b32 %s, %s" % (vr(tmp + i), vr(r)))
                a("s_nop 1")
                for i, r in enumerate(regs):
                    a("%s %s, %s" % (ins, vr(r), vr(tmp + i)))
                a("s_nop 1")
                for i, r in enumerate(regs):
                    a("%s %s, %s, %s" % (op, vr(r), vr(r), vr(tmp + i)))
            else:
                ctl = {1: "quad_perm:[1,0,3,2]", 2: "quad_perm:[2,3,0,1]", "hm": "row_half_mirror", "m": "row_mirror", 8: "row_ror:8", "r4": "row_ror:4"}[st]
                a("s_nop 1")
                for r in regs:
                    a("%s_dpp %s, %s, %s %s row_mask:0xf bank_mask:0xf" % (op, vr(r), vr(r), vr(r), ctl))

    def read_mode(self, vz, vt):
        a = self.a
        a("ds_read_b32 %s, %s offset:%d" % (vr(vt), vr(vz), F_REM))
        a("s_waitcnt lgkmcnt(0)")
        a("v_readfirstlane_b32 s%d, %s" % (S_MODE, vr(vt)))
        if self.force_global:
            a("s_mov_b32 s%d, 1" % S_MODE)
        a("s_min_u32 s%d, s%d, 1" % (S_MODE, S_MODE))
        a("s_mul_i32 s%d, s%d, %d" % (S_TMP, S_MODE, REGB))
        a("s_add_u32 s%d, s%d, s%d" % (S_MB, S_WS, S_TMP))
        a("s_addc_u32 s%d, s%d, 0" % (S_MB + 1, S_WS + 1))

    def tags(self):
        a = self.a
        a("s_getreg_b32 s32, hwreg(HW_REG_XCC_ID, 0, 4)")
        a("s_waitcnt lgkmcnt(0)")
        a("s_add_u32 s%d, s%d, 0x9E3779B9" % (S_T, S_T))
        a("s_add_u32 s%d, s%d, 0x7F4A7C00" % (S_T + 1, S_T + 1))
        a("s_and_b32 s%d, s%d, 0xFFFFFFE0" % (S_T + 1, S_T + 1))
        a("s_or_b32 s%d, s%d, 0x10" % (S_T + 1, S_T + 1))
        a("s_mov_b32 s%d, s%d" % (S_T1X, S_T))
        a("s_or_b32 s%d, s%d, s%d" % (S_T1X + 1, S_T + 1, S_XCC))

    DBG_MAP = {"A": {0: [(0, True), (1, False)], 1: [(12, False)], 3: [(5, False)], 6: [(7, False)], 7: [(9, False)]},
               "C0": {2: [(14, False)], 4: [(15, False)], 5: [(3, False)], 9: [(8, False)]},
               "C1B": {5: [(13, False)]},
               "C2": {4: [(4, False)], 8: [(10, False)]},
               "C2F": {4: [(4, False)], 8: [(10, False)], 10: [(11, False)]},
               "L": {1: [(2, False)], 3: [(6, False)]}}

    def dump_stamps(self, vt):
        if not self.stamps:
            return
        a = self.a
        if self.dbg:
            a("s_waitcnt lgkmcnt(0)")
            a("s_mov_b64 exec, 1")
            a("v_mov_b32 %s, 0" % vr(vt))
            for st, outs in self.DBG_MAP.get(self.role, {}).items():
                for slot, inv in outs:
                    a("v_mov_b32 %s, s%d" % (vr(vt + 1), S_STAMP + 2 * st))
                    if inv:
                        a("v_not_b32 %s, %s" % (vr(vt + 1), vr(vt + 1)))
                    a("global_atomic_umax %s, %s, s[22:23] offset:%d" % (vr(vt), vr(vt + 1), 4 * slot))
            return
        a("s_waitcnt lgkmcnt(0)")
        a("s_lshl_b32 s%d, s2, 3" % S_TMP)
        a("s_add_u32 s%d, s%d, s%d" % (S_TMP, S_TMP, S_W))
        a("s_lshl_b32 s%d, s%d, 6" % (S_TMP, S_TMP))
        a("s_add_u32 s%d, s%d, %d" % (S_TMP, S_TMP, STAMP_OFF))
        a("s_mov_b64 exec, 1")
        a("v_mov_b32 %s, s%d" % (vr(vt), S_TMP))
        for i in range(16):
            a("v_mov_b32 %s, s%d" % (vr(vt + 1), S_STAMP + 2 * i))
            a("global_store_dword %s, %s, %s offset:%d" % (vr(vt), vr(vt + 1), sp(S_WS), 4 * i))

    def end(self, vt):
        self.dump_stamps(vt)
        self.a("s_endpgm")

    def layernorm_rows(self, base, lds_x, VZ, rows=128):
        a = self.a
        xs, xp = base, base + 4
        f = base + 16
        t = base + 24
        for i in range(4):
            a("v_lshlrev_b32 %s, 16, %s" % (vr(f + 2 * i), vr(xs + i)))
            a("v_and_b32 %s, 0xffff0000, %s" % (vr(f + 2 * i + 1), vr(xs + i)))
        a("v_add_f32 %s, %s, %s" % (vr(t), vr(f), vr(f + 1)))
        a("v_add_f32 %s, %s, %s" % (vr(t + 1), vr(f + 2), vr(f + 3)))
        a("v_add_f32 %s, %s, %s" % (vr(t + 2), vr(f + 4), vr(f + 5)))
        a("v_add_f32 %s, %s, %s" % (vr(t + 3), vr(f + 6), vr(f + 7)))
        a("v_add_f32 %s, %s, %s" % (vr(t), vr(t), vr(t + 1)))
        a("v_add_f32 %s, %s, %s" % (vr(t + 2), vr(t + 2), vr(t + 3)))
        a("v_add_f32 %s, %s, %s" % (vr(t), vr(t), vr(t + 2)))
        self.xor_reduce("v_add_f32", [t], [1, 2, "hm", "m", 16, 32], t + 4)
        a("v_mul_f32 %s, 0x3b000000, %s" % (vr(t), vr(t)))
        for i in range(8):
            a("v_sub_f32 %s, %s, %s" % (vr(f + i), vr(f + i), vr(t)))
        a("v_mul_f32 %s, %s, %s" % (vr(t + 1), vr(f), vr(f)))
        a("v_mul_f32 %s, %s, %s" % (vr(t + 2), vr(f + 1), vr(f + 1)))
        for i in range(2, 8, 2):
            a("v_fmac_f32 %s, %s, %s" % (vr(t + 1), vr(f + i), vr(f + i)))
            a("v_fmac_f32 %s, %s, %s" % (vr(t + 2), vr(f + i + 1), vr(f + i + 1)))
        a("v_add_f32 %s, %s, %s" % (vr(t + 1), vr(t + 1), vr(t + 2)))
        self.xor_reduce("v_add_f32", [t + 1], [1, 2, "hm", "m", 16, 32], t + 4)
        a("v_mul_f32 %s, 0x3b000000, %s" % (vr(t + 1), vr(t + 1)))
        a("v_cvt_pk_bf16_f32 %s, %s, %s" % (vr(t + 2), vr(t), vr(t + 1)))
        a("v_lshlrev_b32 %s, 16, %s" % (vr(t), vr(t + 2)))
        a("v_and_b32 %s, 0xffff0000, %s" % (vr(t + 1), vr(t + 2)))
        a("v_add_f32 %s, 0x3727c5ac, %s" % (vr(t + 1), vr(t + 1)))
        a("v_cvt_pk_bf16_f32 %s, %s, %s" % (vr(t + 1), vr(t + 1), vr(t + 1)))
        a("v_and_b32 %s, 0xffff0000, %s" % (vr(t + 1), vr(t + 1)))
        a("v_sqrt_f32 %s, %s" % (vr(t + 1), vr(t + 1)))
        a("s_nop 0")
        a("v_cvt_pk_bf16_f32 %s, %s, %s" % (vr(t + 1), vr(t + 1), vr(t + 1)))
        a("v_and_b32 %s, 0xffff0000, %s" % (vr(t + 1), vr(t + 1)))
        a("v_rcp_f32 %s, %s" % (vr(t + 2), vr(t + 1)))
        a("v_lshlrev_b32 %s, 16, %s" % (vr(f), vr(xp)))
        a("v_and_b32 %s, 0xffff0000, %s" % (vr(f + 1), vr(xp)))
        a("v_sub_f32 %s, %s, %s" % (vr(f), vr(f), vr(t)))
        a("v_sub_f32 %s, %s, %s" % (vr(f + 1), vr(f + 1), vr(t)))
        a("v_cvt_pk_bf16_f32 %s, %s, %s" % (vr(f), vr(f), vr(f + 1)))
        a("v_and_b32 %s, 0xffff0000, %s" % (vr(f + 1), vr(f)))
        a("v_lshlrev_b32 %s, 16, %s" % (vr(f), vr(f)))
        for i in range(2):
            a("v_mul_f32 %s, %s, %s" % (vr(f + 2 + i), vr(f + i), vr(t + 2)))
        for i in range(2):
            a("v_fma_f32 %s, -%s, %s, %s" % (vr(f + 4 + i), vr(f + 2 + i), vr(t + 1), vr(f + i)))
        for i in range(2):
            a("v_fmac_f32 %s, %s, %s" % (vr(f + 2 + i), vr(f + 4 + i), vr(t + 2)))
        a("v_cvt_pk_bf16_f32 %s, %s, %s" % (vr(f), vr(f + 2), vr(f + 3)))
        if rows == 128:
            a("v_lshlrev_b32 %s, 2, v0" % vr(t))
        else:
            a("v_and_b32 %s, 31, v0" % vr(t))
            a("v_lshlrev_b32 %s, 2, %s" % (vr(t), vr(t)))
        a("ds_write_b32 %s, %s offset:%d" % (vr(t), vr(f), lds_x))
        a("v_lshrrev_b32 %s, 3, v0" % vr(t))
        a("v_lshlrev_b32 %s, %d, %s" % (vr(t), 5 if rows == 128 else 4, vr(t)))
        a("ds_read_b128 %s, %s offset:%d" % (vr(base + 8, 4), vr(t), lds_x))
        if rows == 128:
            a("ds_read_b128 %s, %s offset:%d" % (vr(base + 12, 4), vr(t), lds_x + 16))

    def selectors(self, sel, tmp, both_parities):
        a = self.a
        a("v_and_b32 %s, 15, v0" % vr(tmp))
        a("v_and_b32 %s, 1, %s" % (vr(tmp + 1), vr(tmp)))
        a("v_bfe_u32 %s, %s, 1, 2" % (vr(tmp + 2), vr(tmp)))
        if not both_parities:
            a("v_lshrrev_b32 %s, 3, %s" % (vr(tmp + 3), vr(tmp)))
            a("v_lshl_add_u32 %s, %s, 2, %s" % (vr(tmp + 2), vr(tmp + 3), vr(tmp + 2)))
        a("v_cmp_eq_u32 vcc, 1, %s" % vr(tmp + 1))
        a("v_mov_b32 %s, 0x0c0c0100" % vr(tmp + 3))
        a("v_mov_b32 %s, 0x01000c0c" % vr(tmp + 4))
        a("v_cndmask_b32 %s, %s, %s, vcc" % (vr(tmp + 5), vr(tmp + 3), vr(tmp + 4)))
        a("v_mov_b32 %s, 0x0c0c0302" % vr(tmp + 3))
        a("v_mov_b32 %s, 0x03020c0c" % vr(tmp + 4))
        a("v_cndmask_b32 %s, %s, %s, vcc" % (vr(tmp + 6), vr(tmp + 3), vr(tmp + 4)))
        a("v_mov_b32 %s, 0x0c0c0c0c" % vr(tmp + 3))
        for t in range(4):
            a("v_cmp_eq_u32 vcc, %d, %s" % (t, vr(tmp + 2)))
            a("s_nop 1")
            a("v_cndmask_b32 %s, %s, %s, vcc" % (vr(sel + t), vr(tmp + 3), vr(tmp + 5)))
            a("v_cndmask_b32 %s, %s, %s, vcc" % (vr(sel + 4 + t), vr(tmp + 3), vr(tmp + 6)))

    def tile_gemv(self, W, XN, SEL, AF, ACC, nafter):
        a = self.a
        for i in range(16):
            for t in range(4):
                a("v_perm_b32 %s, %s, %s, %s" % (vr(AF + 4 * i + t), vr(XN + (i >> 1)), vr(XN + (i >> 1)), vr(SEL + 4 * (i & 1) + t)))
        for i in range(16):
            a("s_waitcnt vmcnt(%d)" % (15 - i + nafter))
            a("v_mfma_f32_16x16x32_bf16 %s, %s, %s, %s" % (vr(ACC, 4), vr(AF + 4 * i, 4), vr(W + 4 * i, 4), "0" if i == 0 else vr(ACC, 4)))
        a("s_nop 7")
        a("v_permlane32_swap_b32 %s, %s" % (vr(ACC), vr(ACC + 2)))
        a("v_permlane32_swap_b32 %s, %s" % (vr(ACC + 1), vr(ACC + 3)))
        a("s_nop 1")
        a("v_add_f32_dpp %s, %s, %s row_ror:8 row_mask:0xf bank_mask:0xf" % (vr(ACC), vr(ACC + 2), vr(ACC)))
        a("v_add_f32_dpp %s, %s, %s row_ror:8 row_mask:0xf bank_mask:0xf" % (vr(ACC + 1), vr(ACC + 3), vr(ACC + 1)))


    def prologue(self):
        a = self.a
        a("""
        s_cmp_ge_u32 s2, 256
        s_cbranch_scc1 L_end
        """)
        self.stamp(0)
        a("""
        s_load_dwordx16 s[4:19], s[0:1], 0
        s_load_dwordx4 s[20:23], s[0:1], 64
        s_load_dwordx2 s[24:25], s[0:1], 80
        v_lshrrev_b32 v1, 6, v0
        v_and_b32 v0, 63, v0
        %s
        v_readfirstlane_b32 s28, v1
        v_lshlrev_b32 v37, 4, v0
        s_lshr_b32 s40, s27, 3                ; row block of the Wq tile
        s_cmp_eq_u32 s28, 7
        s_cbranch_scc1 L_L
        s_cmp_eq_u32 s28, 5
        s_cbranch_scc1 L_C1
        s_cmp_eq_u32 s28, 6
        s_cbranch_scc1 L_C2
        s_cmp_lt_u32 s28, 4
        s_cbranch_scc1 L_A
        """ % ("s_lshr_b32 s26, s2, 5\ns_and_b32 s27, s2, 31" if self.scramble else "s_and_b32 s26, s2, 7\ns_lshr_b32 s27, s2, 3"))

    def dispatch_others(self):
        self.a("""
        L_other:
        v_mov_b32 v1, 0
        v_mov_b32 v2, 1
        s_cmp_eq_u32 s28, 7
        s_cbranch_scc1 L_L
        s_cmp_eq_u32 s28, 5
        s_cbranch_scc1 L_C1
        s_cmp_eq_u32 s28, 6
        s_cbranch_scc1 L_C2
        s_branch L_A
        """)

    def mlp_scalars(self):
        self.a("""
        s_cmp_lt_u32 s26, 4
        s_cselect_b32 s49, %d, %d
        s_cmp_lt_u32 s27, s49
        s_cselect_b32 s38, 1, 0
        s_mul_i32 s50, s26, %d
        s_sub_u32 s51, s26, 4
        s_mul_i32 s51, s51, %d
        s_add_u32 s51, s51, %d
        s_cmp_lt_u32 s26, 4
        s_cselect_b32 s50, s50, s51
        s_lshr_b32 s51, s27, 3
        s_add_u32 s50, s50, s51
        """ % (self.nb_lo, self.nb_hi, self.nb_lo // 8, self.nb_hi // 8, self.nb_lo // 2))

    def args_ready(self):
        self.a("s_waitcnt lgkmcnt(0)")
        self.a("s_load_dwordx2 s[30:31], s[24:25], %d" % EPOCH)

    def role_l(self):
        a = self.a
        VZ, V1 = 1, 2
        a(".p2align 8")
        a("L_L:")
        a("v_mov_b32 v1, 0\nv_mov_b32 v2, 1")
        self.role = "L"
        KO, VO = 8, 12
        WOA, WOB, W2A, W1A = 16, 17, 18, 20
        piece = 0x8000 if self.ileave else 0x400
        a("""
        s_lshl_b32 s40, s26, 24
        s_add_u32 s40, s40, 0xF00000
        s_lshl_b32 s41, s27, %d
        s_add_u32 s40, s40, s41               ; first piece of this chunk
        v_lshrrev_b32 v3, 4, v0               ; q4
        v_and_b32 v4, 15, v0                  ; pos
        v_xor_b32 v5, v4, v3
        v_lshl_add_u32 v6, v3, 8, s40
        """ % (10 if self.ileave else 15))
        for q in range(4):
            a("v_xor_b32 v7, %d, v5" % (4 * q))
            a("v_lshl_add_u32 v7, v7, 4, v6")
            a("v_add_u32 %s, %d, v7" % (vr(KO + q), 2 * q * piece))

        def rest_addresses():
            a("v_lshlrev_b32 v7, 1, v3")
            a("v_xor_b32 v7, v7, v4")
            a("v_lshl_add_u32 %s, v7, 4, v6" % vr(VO))
            a("v_xor_b32 v7, 8, v7")
            a("v_lshl_add_u32 v7, v7, 4, v6")
            a("v_add_u32 %s, %d, v7" % (vr(VO + 1), 2 * piece))
            a("""
            s_lshl_b32 s42, s26, 9                ; 512 g
            s_lshr_b32 s43, s27, 3
            s_lshl_b32 s43, s43, 7                ; 128 h
            s_add_u32 s42, s42, s43
            s_bfe_u32 s43, s27, 0x20001
            s_lshl_b32 s43, s43, 5
            s_add_u32 s42, s42, s43
            s_and_b32 s43, s27, 1
            s_lshl_b32 s43, s43, 3
            s_add_u32 s42, s42, s43               ; first Wo row
            s_lshl_b32 s42, s42, 10
            v_lshlrev_b32 v6, 4, v4               ; 16 n
            v_lshl_add_u32 v7, v3, 11, v6
            v_add_u32 %s, s42, v7
            v_add_u32 %s, 0x4000, %s
            s_lshl_b32 s42, s50, 6
            s_and_b32 s43, s27, 7
            s_lshl_b32 s43, s43, 3
            s_add_u32 s42, s42, s43               ; first W2 row = 64 cbg + 8 j
            s_lshl_b32 s42, s42, 10
            v_lshl_add_u32 v7, v3, 11, v6         ; + 2 gg rows
            v_add_u32 %s, s42, v7
            """ % (vr(WOA), vr(WOB), vr(WOA), vr(W2A)))

        def m0(x):
            return "s_movk_i32 m0, 0x%x\n" % x if x < 0x8000 else "s_mov_b32 m0, 0x%x\n" % x

        def seq(isb):
            ops, flags, gates = [], [], []
            for grp in self.order:
                if grp == "|":
                    gates.append(len(ops))
                elif grp == "k":
                    for w in range(4):
                        for q in range(4):
                            for t in range(2):
                                p = 8 * w + 2 * q + t
                                ops.append((m0(L_K + 1024 * p), "global_load_lds_dwordx4 %s, %s %s" % (vr(KO + q), sp(S_K), self.nt_kv),
                                            "v_add_u32 %s, 0x%x, %s" % (vr(KO + q), (1 if t == 0 else 7) * piece, vr(KO + q))))
                    flags.append((len(ops), F_K))
                elif grp == "v":
                    for w in range(4):
                        for i in range(8):
                            b = (i >> 1) & 1
                            ops.append((m0(L_V + 1024 * (8 * w + i)), "global_load_lds_dwordx4 %s, %s %s" % (vr(VO + b), sp(S_V), self.nt_kv),
                                        "v_add_u32 %s, 0x%x, %s" % (vr(VO + b), (1 if (i & 1) == 0 else 3) * piece, vr(VO + b))))
                        flags.append((len(ops), F_V))
                elif grp == "f":
                    for i in range(4):
                        ops.append(("", "global_load_dwordx4 v[24:27], v23, %s offset:%d sc1" % (sp(S_WS), 1024 * i), ""))
                    ops.append(("", "global_load_dwordx4 v[24:27], v28, %s sc1" % sp(S_WS), ""))
                elif grp == "o":
                    for w in range(4):
                        for i in range(4):
                            off = 256 * w + 1024 * (i >> 1)
                            ops.append((m0(L_WO + (4 * w + i) * 1024 - off),
                                        "global_load_lds_dwordx4 %s, %s offset:%d %s" % (vr(WOA if (i & 1) == 0 else WOB), sp(S_WO), off, self.nt_w), ""))
                    flags.append((len(ops), F_WO))
                elif grp == "2" and isb:
                    for w in range(4):
                        for i in range(2):
                            off = 256 * w + 1024 * i
                            ops.append((m0(L_W2 + (2 * w + i) * 1024 - off),
                                        "global_load_lds_dwordx4 %s, %s offset:%d %s" % (vr(W2A), sp(S_W2), off, self.nt_w), ""))
                    flags.append((len(ops), F_W2))
                elif grp == "1" and isb:
                    for i in range(8):
                        ops.append((m0(L_W1 + 1024 * i), "global_load_lds_dwordx4 %s, %s %s" % (vr(W1A), sp(S_W1), self.nt_w),
                                    "v_add_u32 %s, 3584, %s" % (vr(W1A), vr(W1A))))
                    flags.append((len(ops), F_W1))
            return ops, flags, gates

        W = self.window
        self.args_ready()
        self.stamp(1)
        assert self.order[0] == "k"
        ops0, _, _ = seq(False)
        NE = min(W, 5)
        for j in range(NE):
            pre, ld, post = ops0[j]
            a(pre)
            a("s_nop 0")
            a(ld)
            a(post)
        a("s_barrier")
        self.mlp_scalars()
        rest_addresses()
        if "f" in self.order:
            a("""
            s_lshl_b32 s41, s26, 17
            s_lshl_b32 s42, s27, 12
            s_add_u32 s41, s41, s42
            s_add_u32 s41, s41, %d
            v_lshl_add_u32 v23, v0, 4, s41
            s_lshl_b32 s41, s26, 11
            s_lshr_b32 s42, s27, 3
            s_lshl_b32 s42, s42, 9
            s_add_u32 s41, s41, s42
            s_add_u32 s41, s41, %d
            v_and_b32 v28, 31, v0
            v_lshl_add_u32 v28, v28, 4, s41
            """ % (H2, ST))

        def with_values(flags):
            out, nv = [], 0
            for (e, f) in flags:
                if f == F_V:
                    nv += 1
                    out.append((e, f, nv))
                else:
                    out.append((e, f, 1))
            return out

        def run(ops, flags, gates, W, start, labels=None, check_to=None, first=False):
            n = len(ops)
            pend = [f for f in flags if f[0] > max(0, start - (W - 1)) or first]
            hold = self.hold
            for j in range(start, n):
                pre, ld, post = ops[j]
                if labels and j in labels:
                    a(labels[j] + ":")
                if hold and j == hold:
                    while pend and pend[0][0] <= j:
                        e, f, val = pend.pop(0)
                        a("s_waitcnt vmcnt(%d)" % (j - e))
                        self.flag_set(f, val, VZ, 22)
                    self.flag_wait(F_QPUB, 1, VZ, 21)
                    if isb_cur[0] and self.order[0] == "1":
                        self.flag_wait(F_HPUB, 1, VZ, 21)
                    self.stamp(4)
                if j in gates:
                    while pend and pend[0][0] <= j:
                        e, f, val = pend.pop(0)
                        a("s_waitcnt vmcnt(%d)" % (j - e))
                        self.flag_set(f, val, VZ, 22)
                    self.flag_wait(F_OPUB, 4, VZ, 21)
                chk = check_to is not None and j in check_to
                if chk:
                    a("ds_read_b32 v21, %s offset:%d" % (vr(VZ), F_Q))
                if j >= W and not any(g <= j < g + W for g in gates):
                    a("s_waitcnt vmcnt(%d)" % (W - 1))
                    landed = j - (W - 1)
                    while pend and pend[0][0] <= landed:
                        e, f, val = pend.pop(0)
                        self.flag_set(f, val, VZ, 22)
                if chk:
                    a("s_waitcnt lgkmcnt(0)")
                    a("v_readfirstlane_b32 s%d, v21" % S_TMP)
                    a("s_cmp_lg_u32 s%d, 0" % S_TMP)
                    a("s_cbranch_scc1 %s" % check_to[j])
                a(pre)
                a("s_nop 0")
                a(ld)
                if post:
                    a(post)
            self.stamp(2)
            for (e, f, val) in pend:
                a("s_waitcnt vmcnt(%d)" % (n - e))
                self.flag_set(f, val, VZ, 22)
            self.stamp(3)
            self.end(3)

        isb_cur = [False]

        def emit(isb):
            isb_cur[0] = isb
            ops, flags, gates = seq(isb)
            flags = with_values(flags)
            n = len(ops)
            if not self.w2:
                run(ops, flags, gates, W, NE, first=True)
                return
            points = [j for j in range(W, n - 8) if (j - W) % self.chk == 0]
            labels = {j: a.newlabel("FAST") for j in points}
            run(ops, flags, gates, W, NE, check_to=labels, first=True)
            run(ops, flags, gates, self.w2, points[0], labels=labels)

        Lb = a.newlabel("LB")
        a("s_cmp_lg_u32 s%d, 0" % S_ISB)
        a("s_cbranch_scc1 %s" % Lb)
        emit(False)
        a(Lb + ":")
        emit(True)

    def role_a(self):
        a = self.a
        VZ, V1 = 1, 2
        T = 5
        a("L_A:")
        a("v_mov_b32 v1, 0\nv_mov_b32 v2, 1")
        self.role = "A"
        a("s_barrier")
        self.args_ready()
        a("s_setprio 1")
        KO, VO, QA = 16, 20, 24
        a("""
        v_lshrrev_b32 v3, 4, v0               ; gg
        v_and_b32 v4, 15, v0                  ; m
        s_lshl_b32 s41, s28, 13
        v_and_b32 v5, 3, v4                   ; b = m & 3
        v_lshrrev_b32 v6, 2, v4               ; a = m >> 2
        v_lshlrev_b32 v7, 11, v6
        v_lshl_add_u32 v7, v5, 8, v7
        v_xor_b32 v8, v3, v5
        v_lshl_add_u32 v7, v8, 4, v7
        v_add_u32 v7, s41, v7
        """)
        for s in range(4):
            a("v_xor_b32 v8, %d, v6" % s)
            a("v_lshl_add_u32 %s, v8, 6, v7" % vr(KO + s))
        a("v_mul_u32_u24 v8, 320, v6")
        a("v_lshl_add_u32 %s, v3, 4, v8" % vr(QA))
        a("""
        v_lshrrev_b32 v8, 2, v4               ; r
        v_and_b32 v9, 3, v4                   ; cq
        v_and_b32 v10, 1, v3
        v_lshl_or_b32 v10, v10, 2, v8         ; sigma
        v_lshl_add_u32 v11, v3, 3, v8         ; 8 gg + r
        v_lshlrev_b32 v11, 8, v11
        v_lshl_add_u32 v11, v9, 3, v11
        v_add_u32 v11, %d, v11
        s_lshl_b32 s42, s28, 1
        """ % L_V)
        for u in range(2):
            a("s_add_u32 s43, s42, %d" % u)
            a("v_xor_b32 v12, s43, v10")
            a("v_lshl_add_u32 %s, v12, 5, v11" % vr(VO + u))
        WOA = 22
        a("s_lshl_b32 s42, s28, 12")
        a("s_add_u32 s42, s42, %d" % L_WO)
        a("v_lshl_add_u32 %s, v0, 4, s42" % vr(WOA))
        SEL = 28
        self.selectors(SEL, T, both_parities=False)
        self.tags()
        TG = 36
        a("v_mov_b32 %s, s%d" % (vr(TG + 2), S_T))
        a("v_mov_b32 %s, s%d" % (vr(TG + 3), S_T + 1))
        OA, SA, STA = 40, 41, 43
        a("""
        s_lshl_b32 s42, s26, 17               ; g * 131072
        s_lshl_b32 s43, s27, 7                ; c * 128
        s_add_u32 s42, s42, s43
        v_and_b32 v12, 7, v0
        v_lshlrev_b32 v12, 4, v12             ; slot * 16
        v_bfe_u32 v13, v0, 3, 1               ; b
        v_lshl_add_u32 v13, v3, 3, v13        ; 8 h + b
        s_lshl_b32 s43, s28, 1
        v_add_u32 v13, s43, v13               ; + 2 w
        v_lshl_add_u32 v13, v13, 12, v12
        s_add_u32 s43, s42, %d
        v_add_u32 %s, s43, v13
        v_lshrrev_b32 v13, 3, v0
        s_lshl_b32 s43, s28, 3
        v_add_u32 v13, s43, v13               ; 8 w + (l >> 3)
        v_lshl_add_u32 v14, v13, 12, v12
        s_add_u32 s43, s42, %d
        v_add_u32 %s, s43, v14
        s_lshl_b32 s42, s26, 11
        s_lshl_b32 s43, s27, 4
        s_add_u32 s42, s42, s43
        s_add_u32 s42, s42, %d
        v_lshl_add_u32 %s, v3, 9, s42
        """ % (H2, vr(OA), H3S, vr(SA), ST, vr(STA)))
        MXW, PWA, PRA, MRA, ORA = 25, 26, 27, 45, 46
        a("""
        v_lshrrev_b32 v12, 2, v4
        v_lshlrev_b32 v12, 4, v12             ; head (l & 15) >> 2, * 16
        s_lshl_b32 s42, s28, 2
        v_add_u32 %s, s42, v12                ; + wave * 4
        v_lshlrev_b32 %s, 4, v0
        s_lshl_b32 s42, s28, 10
        v_add_u32 %s, s42, %s
        v_lshlrev_b32 %s, 4, v3
        v_lshlrev_b32 %s, 4, v3
        """ % (vr(MXW), vr(PRA), vr(PWA), vr(PRA), vr(MRA), vr(ORA)))
        OD = 112
        KF = 48
        QF = 80
        WO = 96
        self.flag_wait(F_K, 1, VZ, T, sleep=2)
        self.stamp(1)
        for t in range(2):
            for s in range(4):
                a("ds_read_b128 %s, %s offset:%d" % (vr(KF + 16 * t + 4 * s, 4), vr(KO + s), L_K + 1024 * t))
        self.flag_wait(F_Q, 1, VZ, T, sleep=1)
        self.stamp(2)
        for s in range(4):
            a("ds_read_b128 %s, %s offset:%d" % (vr(QF + 4 * s, 4), vr(QA), L_Q + 64 * s))
        self.read_mode(VZ, T)
        SC = 112
        for s in range(4):
            for t in range(2):
                a("v_mfma_f32_16x16x32_bf16 %s, %s, %s, %s" % (vr(SC + 4 * t, 4), vr(KF + 16 * t + 4 * s, 4), vr(QF + 4 * s, 4), "0" if s == 0 else vr(SC + 4 * t, 4)))
        a("s_nop 7")
        if self.mimic:
            for i in range(4):
                a("v_cvt_pk_bf16_f32 %s, %s, %s" % (vr(T + i), vr(SC + 2 * i), vr(SC + 2 * i + 1)))
            for i in range(4):
                a("v_lshlrev_b32 %s, 16, %s" % (vr(SC + 2 * i), vr(T + i)))
                a("v_and_b32 %s, 0xffff0000, %s" % (vr(SC + 2 * i + 1), vr(T + i)))
        for i in range(8):
            a("v_mul_f32 %s, 0x%x, %s" % (vr(SC + i), SCALE, vr(SC + i)))
        if self.mimic:
            for i in range(4):
                a("v_cvt_pk_bf16_f32 %s, %s, %s" % (vr(T + i), vr(SC + 2 * i), vr(SC + 2 * i + 1)))
            for i in range(4):
                a("v_lshlrev_b32 %s, 16, %s" % (vr(SC + 2 * i), vr(T + i)))
                a("v_and_b32 %s, 0xffff0000, %s" % (vr(SC + 2 * i + 1), vr(T + i)))
        MX = 44
        a("v_max3_f32 %s, %s, %s, %s" % (vr(T), vr(SC), vr(SC + 1), vr(SC + 2)))
        a("v_max3_f32 %s, %s, %s, %s" % (vr(T + 1), vr(SC + 3), vr(SC + 4), vr(SC + 5)))
        a("v_max3_f32 %s, %s, %s, %s" % (vr(T), vr(T), vr(SC + 6), vr(SC + 7)))
        a("v_max_f32 %s, %s, %s" % (vr(MX), vr(T), vr(T + 1)))
        self.xor_reduce("v_max_f32", [MX], [16, 32], T)
        a("v_mov_b32 %s, 0x%x" % (vr(T + 8), LOG2E))
        a("v_mul_f32 %s, %s, %s" % (vr(T + 9), vr(MX), vr(T + 8)))
        a("s_mov_b64 exec, 0x1111")
        a("ds_write_b32 %s, %s offset:%d" % (vr(MXW), vr(MX), L_MX))
        a("s_mov_b64 exec, -1")
        for i in range(8):
            a("v_fma_f32 %s, %s, %s, -%s" % (vr(SC + i), vr(SC + i), vr(T + 8), vr(T + 9)))
        for i in range(8):
            a("v_exp_f32 %s, %s" % (vr(SC + i), vr(SC + i)))
        PF = 48
        a("s_nop 0")
        for i in range(4):
            a("v_cvt_pk_bf16_f32 %s, %s, %s" % (vr(T + 1 + i), vr(SC + 2 * i), vr(SC + 2 * i + 1)))
        a("ds_write_b128 %s, %s offset:%d" % (vr(PWA), vr(T + 1, 4), L_P))
        self.flag_add(F_P, VZ, V1)
        self.flag_wait(F_P, 4, VZ, T + 6)
        for ks in range(4):
            a("ds_read_b128 %s, %s offset:%d" % (vr(PF + 4 * ks, 4), vr(PRA), L_P + 1024 * ks))
        FW = 120
        a("ds_read_b128 %s, %s offset:%d" % (vr(FW, 4), vr(MRA), L_MX))
        self.stamp(3)
        a("s_waitcnt lgkmcnt(0)")
        a("v_max3_f32 %s, %s, %s, %s" % (vr(MX), vr(FW), vr(FW + 1), vr(FW + 2)))
        a("v_max_f32 %s, %s, %s" % (vr(MX), vr(MX), vr(FW + 3)))
        a("v_mul_f32 %s, %s, %s" % (vr(T + 9), vr(MX), vr(T + 8)))
        for i in range(4):
            a("v_fma_f32 %s, %s, %s, -%s" % (vr(FW + i), vr(FW + i), vr(T + 8), vr(T + 9)))
        for i in range(4):
            a("v_exp_f32 %s, %s" % (vr(FW + i), vr(FW + i)))
        D = 128
        TS = 124
        Lns = a.newlabel("NS")
        a("s_cmp_lg_u32 s28, 0")
        a("s_cbranch_scc1 %s" % Lns)
        ON = 64
        for t in range(4):
            a("v_mov_b32 %s, 0x3f803f80" % vr(ON + t))
        a("s_nop 1")
        for ks in range(4):
            a("v_mfma_f32_16x16x32_bf16 %s, %s, %s, 0" % (vr(D + 4 * ks, 4), vr(PF + 4 * ks, 4), vr(ON, 4)))
        a("v_mov_b32 %s, %s" % (vr(TS), vr(MX)))
        a("v_mov_b32 %s, %s" % (vr(TS + 2), vr(TG + 2)))
        a("v_mov_b32 %s, %s" % (vr(TS + 3), vr(TG + 3)))
        a("s_nop 4")
        a("v_mul_f32 %s, %s, %s" % (vr(TS + 1), vr(FW), vr(D)))
        for ks in range(1, 4):
            a("v_fmac_f32 %s, %s, %s" % (vr(TS + 1), vr(FW + ks), vr(D + 4 * ks)))
        a(Lns + ":")
        wo_first = self.order.index("o") < self.order.index("v")

        def read_wo():
            self.flag_wait(F_WO, 1, VZ, T, sleep=0 if not wo_first else 1)
            for i in range(4):
                a("ds_read_b128 %s, %s offset:%d" % (vr(WO + 4 * i, 4), vr(WOA), 1024 * i))
        if wo_first:
            read_wo()
        self.stamp(4)
        VF = 64
        S_V, S_I = 44, 45
        a("s_mov_b32 s%d, 0" % S_V)
        a("s_mov_b32 s%d, 0" % S_I)
        for ks in range(4):
            Lgo, Lsp = a.newlabel("V"), a.newlabel("V")
            a("s_cmp_ge_u32 s%d, %d" % (S_V, ks + 1))
            a("s_cbranch_scc1 %s" % Lgo)
            a("s_mov_b32 s%d, 0" % S_CNT)
            a(Lsp + ":")
            a("ds_read_b64 %s, %s offset:%d" % (vr(T + 1, 2), vr(VZ), F_V))
            a("s_add_u32 s%d, s%d, 1" % (S_CNT, S_CNT))
            a("s_cmp_gt_u32 s%d, %d" % (S_CNT, SPIN_MAX))
            a("s_cbranch_scc1 L_end")
            a("s_waitcnt lgkmcnt(0)")
            a("v_readfirstlane_b32 s%d, %s" % (S_V, vr(T + 1)))
            a("v_readfirstlane_b32 s%d, %s" % (S_I, vr(T + 2)))
            a("s_cmp_lt_u32 s%d, %d" % (S_V, ks + 1))
            a("s_cbranch_scc1 %s" % Lsp)
            a(Lgo + ":")
            if ks == 3:
                self.stamp(5)
            for u in range(2):
                for jh in range(2):
                    a("ds_read_b64_tr_b16 %s, %s offset:%d" % (vr(VF + 8 * ks + 4 * u + 2 * jh, 2), vr(VO + u), 8192 * ks + 1024 * jh))
            if ks:
                a("s_waitcnt lgkmcnt(4)")
                for u in range(2):
                    a("v_mfma_f32_16x16x32_bf16 %s, %s, %s, 0" % (vr(D + 8 * (ks - 1) + 4 * u, 4), vr(PF + 4 * (ks - 1), 4), vr(VF + 8 * (ks - 1) + 4 * u, 4)))
        for u in range(2):
            a("s_waitcnt lgkmcnt(%d)" % (2 - 2 * u))
            a("v_mfma_f32_16x16x32_bf16 %s, %s, %s, 0" % (vr(D + 24 + 4 * u, 4), vr(PF + 12, 4), vr(VF + 24 + 4 * u, 4)))
        a("v_mul_f32 %s, %s, %s" % (vr(TG), vr(FW), vr(D)))
        a("v_mul_f32 %s, %s, %s" % (vr(TG + 1), vr(FW), vr(D + 4)))
        for ks in range(1, 3):
            a("v_fmac_f32 %s, %s, %s" % (vr(TG), vr(FW + ks), vr(D + 8 * ks)))
            a("v_fmac_f32 %s, %s, %s" % (vr(TG + 1), vr(FW + ks), vr(D + 8 * ks + 4)))
        a("s_nop 1")
        a("v_fmac_f32 %s, %s, %s" % (vr(TG), vr(FW + 3), vr(D + 24)))
        a("v_fmac_f32 %s, %s, %s" % (vr(TG + 1), vr(FW + 3), vr(D + 28)))
        if self.sinit:
            Li = a.newlabel("I")
            a("s_cmp_ge_u32 s%d, 2" % S_I)
            a("s_cbranch_scc1 %s" % Li)
            self.flag_wait(F_INIT, 2, VZ, T)
            a(Li + ":")
        self.store_mode(OA, TG)
        Lns = a.newlabel("NS")
        a("s_cmp_lg_u32 s28, 0")
        a("s_cbranch_scc1 %s" % Lns)
        a("s_mov_b32 s42, 0x00010001")
        a("s_mov_b32 s43, 0x00010001")
        a("s_mov_b64 exec, s[42:43]")
        self.store_mode(STA, TS)
        a("s_mov_b64 exec, -1")
        a(Lns + ":")
        self.flag_add(F_OPUB, VZ, V1)
        self.stamp(6)
        if not wo_first:
            read_wo()
        AF = 64
        OG = 8
        Lsp = a.newlabel("O")
        a("s_mov_b32 s%d, 0" % S_CNT)
        a(Lsp + ":")
        a("ds_read_b128 %s, %s offset:%d" % (vr(OG, 4), vr(ORA), L_O))
        a("s_add_u32 s%d, s%d, 1" % (S_CNT, S_CNT))
        a("s_cmp_gt_u32 s%d, %d" % (S_CNT, SPIN_MAX))
        a("s_cbranch_scc1 L_end")
        a("s_waitcnt lgkmcnt(0)")
        a("v_and_b32 %s, %s, %s" % (vr(OG + 1), vr(OG + 1), vr(OG + 3)))
        a("v_cmp_ne_u32 vcc, 1, %s" % vr(OG + 1))
        a("s_cbranch_vccnz %s" % Lsp)
        for i in range(4):
            src = OG + 2 * (i >> 1)
            for t in range(4):
                a("v_perm_b32 %s, %s, %s, %s" % (vr(AF + 4 * i + t), vr(src), vr(src), vr(SEL + 4 * (i & 1) + t)))
            if i:
                a("v_mfma_f32_16x16x32_bf16 %s, %s, %s, %s" % (vr(OD, 4), vr(AF + 4 * (i - 1), 4), vr(WO + 4 * (i - 1), 4), "0" if i == 1 else vr(OD, 4)))
        a("s_nop 1")
        a("v_mfma_f32_16x16x32_bf16 %s, %s, %s, %s" % (vr(OD, 4), vr(AF + 12, 4), vr(WO + 12, 4), vr(OD, 4)))
        a("s_nop 7")
        a("v_permlane32_swap_b32 %s, %s" % (vr(OD), vr(OD + 2)))
        a("v_permlane32_swap_b32 %s, %s" % (vr(OD + 1), vr(OD + 3)))
        a("v_mov_b32 %s, %s" % (vr(TG), vr(OD)))
        a("v_mov_b32 %s, %s" % (vr(TG + 1), vr(OD + 1)))
        self.store_mode(SA, TG)
        if self.sgate:
            self.flag_add(F_SPUB, VZ, V1)
        self.stamp(7)
        self.end(T)

    def role_c0(self):
        a = self.a
        VZ, V1 = 1, 2
        X = 4
        W = 40
        AF = 104
        SEL = 168
        ACC = 176
        T = 180
        self.role = "C0"
        if self.code_pf:
            a("s_getpc_b64 s[52:53]")
            a("L_pc:")
            a("s_lshl_b32 s54, s27, 10")
            a("v_add_u32 v3, s54, v37")
            a("v_min_u32 v3, L_code_end-L_pc-16, v3")
            a("global_load_dwordx4 v[188:191], v3, s[52:53]")
        a("""
        s_lshl_b32 s41, s40, 8
        v_lshl_add_u32 v38, v0, 2, s41
        s_lshl_b32 s41, s40, 20               ; rb * 128 * 8192
        s_lshl_b32 s42, s26, 10               ; g * 512 * 2
        s_add_u32 s41, s41, s42
        s_and_b32 s42, s27, 7
        s_lshl_b32 s42, s42, 7                ; cb * 128
        s_add_u32 s41, s41, s42
        v_lshrrev_b32 v3, 3, v0
        v_lshlrev_b32 v3, 17, v3              ; 16 rows * 8192
        v_and_b32 v36, 7, v0
        v_lshl_add_u32 v3, v36, 4, v3
        v_add_u32 v3, s41, v3
        s_mov_b32 m0, %d
        s_movk_i32 s41, 15
        s_waitcnt lgkmcnt(0)
        global_load_dwordx4 %s, v37, %s
        global_load_dword %s, v38, %s
        L_wq:
        global_load_lds_dwordx4 v3, %s %s
        v_add_u32 v3, 0x2000, v3
        s_addk_i32 m0, 0x400
        s_sub_u32 s41, s41, 1
        s_cbranch_scc0 L_wq
        s_barrier
        L_C0_rest:
        s_setprio 3
        s_load_dwordx2 s[30:31], s[24:25], %d
        v_mov_b32 v1, 0
        v_mov_b32 v2, 1
        """ % (L_W1, vr(X, 4), sp(S_X), vr(X + 4), sp(S_X), sp(S_WQ), self.nt_w, EPOCH))
        self.stamp(1)
        self.selectors(SEL, T, both_parities=True)
        a("s_waitcnt vmcnt(16)")
        self.stamp(2)
        self.layernorm_rows(X, L_XQ, VZ)
        self.tags()
        a("s_waitcnt lgkmcnt(0)")
        self.stamp(3)
        XN = X + 8
        a("v_add_u32 v37, %d, v37" % L_W1)
        for i in range(16):
            for t in range(4):
                a("v_perm_b32 %s, %s, %s, %s" % (vr(AF + 4 * i + t), vr(XN + (i >> 1)), vr(XN + (i >> 1)), vr(SEL + 4 * (i & 1) + t)))
        for q in range(4):
            a("s_waitcnt vmcnt(%d)" % (12 - 4 * q))
            for i in range(4 * q, 4 * q + 4):
                a("ds_read_b128 %s, v37 offset:%d" % (vr(W + 4 * i, 4), 1024 * i))
            if q:
                for i in range(4 * q - 4, 4 * q):
                    a("s_waitcnt lgkmcnt(%d)" % (4 + (4 * q - 1 - i)))
                    a("v_mfma_f32_16x16x32_bf16 %s, %s, %s, %s" % (vr(ACC, 4), vr(AF + 4 * i, 4), vr(W + 4 * i, 4), "0" if i == 0 else vr(ACC, 4)))
        for i in range(12, 16):
            a("s_waitcnt lgkmcnt(%d)" % (15 - i))
            a("v_mfma_f32_16x16x32_bf16 %s, %s, %s, %s" % (vr(ACC, 4), vr(AF + 4 * i, 4), vr(W + 4 * i, 4), vr(ACC, 4)))
        a("s_nop 7")
        a("v_permlane32_swap_b32 %s, %s" % (vr(ACC), vr(ACC + 2)))
        a("v_permlane32_swap_b32 %s, %s" % (vr(ACC + 1), vr(ACC + 3)))
        a("s_nop 1")
        a("v_add_f32_dpp %s, %s, %s row_ror:8 row_mask:0xf bank_mask:0xf" % (vr(ACC), vr(ACC + 2), vr(ACC)))
        a("v_add_f32_dpp %s, %s, %s row_ror:8 row_mask:0xf bank_mask:0xf" % (vr(ACC + 1), vr(ACC + 3), vr(ACC + 1)))
        self.stamp(4)
        a("v_mov_b32 %s, s%d" % (vr(ACC + 2), S_T1X))
        a("v_mov_b32 %s, s%d" % (vr(ACC + 3), S_T1X + 1))
        a("""
        s_lshl_b32 s41, s26, 14               ; g * 16384
        s_lshr_b32 s42, s27, 3
        s_lshl_b32 s42, s42, 12               ; rb * 4096
        s_add_u32 s41, s41, s42
        s_and_b32 s42, s27, 7
        s_lshl_b32 s42, s42, 9                ; cb * 512
        s_add_u32 s41, s41, s42
        s_add_u32 s41, s41, %d
        v_lshrrev_b32 v3, 4, v0               ; 2 hi + g'
        v_lshlrev_b32 v3, 3, v3
        v_and_b32 v36, 7, v0
        v_add_u32 v3, v3, v36                 ; pos = 16 hi + 8 g' + n
        v_lshl_add_u32 v3, v3, 4, s41
        v_add_u32 v37, %d, v3
        """ % (H1, REGB))
        self.flag_wait(F_INIT, 1, VZ, T)
        a("s_mov_b32 s42, 0x00ff00ff")
        a("s_mov_b32 s43, 0x00ff00ff")
        a("s_mov_b64 exec, s[42:43]")
        a("global_store_dwordx4 v3, %s, %s" % (vr(ACC, 4), sp(S_WS)))
        a("s_mov_b64 exec, -1")
        self.flag_add(F_QPUB, VZ, V1)
        a("s_mov_b64 exec, s[42:43]")
        a("global_store_dwordx4 v37, %s, %s sc1" % (vr(ACC, 4), sp(S_WS)))
        a("s_mov_b64 exec, -1")
        self.stamp(5)
        SA, OA = 4, 5
        G = 8
        a("""
        s_lshl_b32 s41, s26, 11               ; g * 2048
        s_lshr_b32 s42, s27, 3
        s_lshl_b32 s42, s42, 9                ; head * 512
        s_add_u32 s41, s41, s42
        s_add_u32 s41, s41, %d
        v_lshrrev_b32 v3, 3, v0
        v_lshl_add_u32 %s, v3, 4, s41
        s_lshl_b32 s41, s26, 17
        s_lshl_b32 s42, s27, 12
        s_add_u32 s41, s41, s42
        s_add_u32 s41, s41, %d
        v_lshl_add_u32 %s, v0, 4, s41
        """ % (ST, vr(SA), H2, vr(OA)))
        a("v_lshlrev_b32 v6, 3, v0")
        self.flag_wait(F_Q, 1, VZ, T, sleep=2)
        self.read_mode(VZ, T)
        self.stamp(6)
        GO = 40
        self.flag_wait(F_OPUB, self.ogate, VZ, T, sleep=1)
        self.stamp(7)
        self.poll([(G + 4 * i, SA, 128 * i) for i in range(4)] + [(GO + 4 * i, OA, 1024 * i) for i in range(4)], S_MB, cnt=12)
        self.stamp(8)
        MX = 24
        a("v_max3_f32 %s, %s, %s, %s" % (vr(MX), vr(G), vr(G + 4), vr(G + 8)))
        a("v_max_f32 %s, %s, %s" % (vr(MX), vr(MX), vr(G + 12)))
        self.xor_reduce("v_max_f32", [MX], [8, 16, 32], T)
        WT = 26
        for i in range(4):
            a("v_sub_f32 %s, %s, %s" % (vr(WT + i), vr(G + 4 * i), vr(MX)))
        for i in range(4):
            a("v_mul_f32 %s, 0x%x, %s" % (vr(WT + i), LOG2E, vr(WT + i)))
        for i in range(4):
            a("v_exp_f32 %s, %s" % (vr(WT + i), vr(WT + i)))
        LS, A0, A1 = 25, 30, 31
        a("s_nop 0")
        a("v_mul_f32 %s, %s, %s" % (vr(A0), vr(WT), vr(GO)))
        a("v_mul_f32 %s, %s, %s" % (vr(A1), vr(WT), vr(GO + 1)))
        a("v_mul_f32 %s, %s, %s" % (vr(LS), vr(WT), vr(G + 1)))
        for i in range(1, 4):
            a("v_fmac_f32 %s, %s, %s" % (vr(A0), vr(WT + i), vr(GO + 4 * i)))
            a("v_fmac_f32 %s, %s, %s" % (vr(A1), vr(WT + i), vr(GO + 4 * i + 1)))
            a("v_fmac_f32 %s, %s, %s" % (vr(LS), vr(WT + i), vr(G + 4 * i + 1)))
        self.xor_reduce("v_add_f32", [LS, A0, A1], [8, 16, 32], T)
        a("v_rcp_f32 %s, %s" % (vr(T), vr(LS)))
        a("s_nop 0")
        a("v_fma_f32 %s, -%s, %s, 1.0" % (vr(T + 1), vr(T), vr(LS)))
        a("v_fmac_f32 %s, %s, %s" % (vr(T), vr(T + 1), vr(T)))
        a("v_mul_f32 %s, %s, %s" % (vr(A0), vr(A0), vr(T)))
        a("v_mul_f32 %s, %s, %s" % (vr(A1), vr(A1), vr(T)))
        a("v_cvt_pk_bf16_f32 %s, %s, %s" % (vr(A0), vr(A0), vr(A1)))
        a("v_mov_b32 %s, 1" % vr(A1))
        a("s_mov_b64 exec, 0xff")
        a("ds_write_b64 %s, %s offset:%d" % (vr(6), vr(A0, 2), L_O))
        a("s_mov_b64 exec, -1")
        self.stamp(9)
        self.end(T)

    def role_c1(self):
        a = self.a
        VZ, V1 = 1, 2
        X = 4
        W = 40
        AF = 104
        SEL = 168
        ACC = 176
        T = 180
        a("L_C1:")
        a("v_mov_b32 v1, 0\nv_mov_b32 v2, 1")
        self.role = "C1"
        a("s_barrier")
        a("s_setprio 3")
        self.mlp_scalars()
        a("""
        v_lshlrev_b32 v42, 4, v0
        s_and_b32 s40, s27, 7
        s_lshl_b32 s41, s40, 7
        v_and_b32 v3, 31, v0
        v_lshl_add_u32 v43, v3, 2, s41
        """)
        a("""
        s_lshl_b32 s42, s50, 7
        s_and_b32 s43, s27, 7
        s_mul_i32 s43, s43, %d
        s_add_u32 s42, s42, s43
        v_lshrrev_b32 v6, 3, v0
        v_mul_u32_u24 v6, %d, v6
        v_and_b32 v7, 7, v0
        v_lshl_add_u32 v6, v7, 4, v6
        v_add_u32 v44, s42, v6
        """ % (64 * 3584, 8 * 3584))
        self.args_ready()
        a("global_load_dwordx4 %s, v42, %s" % (vr(X, 4), sp(S_X)))
        a("global_load_dword %s, v43, %s" % (vr(X + 4), sp(S_X)))
        Z = 36
        for i in range(4):
            a("v_mov_b32 %s, 0" % vr(Z + i))
        a("""
        s_lshl_b32 s41, s26, 17
        s_lshl_b32 s42, s27, 12
        s_add_u32 s41, s41, s42
        v_lshl_add_u32 v3, v0, 4, s41
        v_add_u32 v40, %d, v3
        v_add_u32 v41, %d, v3
        v_add_u32 v3, %d, v3
        """ % (H3S, H3G, H2))
        for r in (3, 40, 41):
            for i in range(4 if self.init & 1 else 0):
                a("global_store_dwordx4 v%d, %s, %s offset:%d" % (r, vr(Z, 4), sp(S_WS), 1024 * i))
        a("""
        s_lshl_b32 s41, s26, 14
        s_lshr_b32 s42, s27, 3
        s_lshl_b32 s42, s42, 12
        s_add_u32 s41, s41, s42
        s_and_b32 s42, s27, 7
        s_lshl_b32 s42, s42, 9
        s_add_u32 s41, s41, s42
        s_add_u32 s41, s41, %d
        v_lshl_add_u32 v3, v0, 4, s41
        s_lshl_b32 s41, s26, 11
        s_lshr_b32 s42, s27, 3
        s_lshl_b32 s42, s42, 9
        s_add_u32 s41, s41, s42
        s_add_u32 s41, s41, %d
        v_lshl_add_u32 v40, v0, 4, s41
        s_lshl_b32 s41, s26, 14
        s_lshl_b32 s42, s27, 9
        s_add_u32 s44, s41, s42
        s_add_u32 s44, s44, %d
        v_lshl_add_u32 v41, v0, 4, s44
        s_mov_b32 exec_lo, -1
        s_mov_b32 exec_hi, 0
        """ % (H1, ST, HB))
        if self.init & 2:
            a("global_store_dwordx4 v3, %s, %s" % (vr(Z, 4), sp(S_WS)))
            a("global_store_dwordx4 v41, %s, %s" % (vr(Z, 4), sp(S_WS)))
        Ls = a.newlabel("I")
        a("""
        s_and_b32 s41, s27, 7
        s_cmp_lg_u32 s41, 0
        s_cbranch_scc1 %s
        %s
        %s:
        s_mov_b64 exec, -1
        """ % (Ls, "global_store_dwordx4 v40, %s, %s" % (vr(Z, 4), sp(S_WS)) if self.init & 2 else "s_nop 0", Ls))
        W1R = 48
        Lb = a.newlabel("B")
        a("s_cmp_lg_u32 s%d, 0" % S_ISB)
        a("s_cbranch_scc1 %s" % Lb)
        a("s_waitcnt vmcnt(0)")
        self.flag_add(F_INIT, VZ, V1)
        self.stamp(1)
        self.end(T)
        a(Lb + ":")
        for i in range(8):
            a("global_load_dwordx4 %s, v44, %s %s" % (vr(W1R + 4 * i, 4), sp(S_W1), self.nt_w))
            if i < 7:
                a("v_add_u32 v44, 3584, v44")
        a("s_waitcnt vmcnt(8)")
        self.flag_add(F_INIT, VZ, V1)
        self.stamp(1)
        self.role = "C1B"
        self.selectors(SEL, T, both_parities=True)
        self.layernorm_rows(X, L_XH, VZ, rows=64)
        self.tags()
        a("v_lshlrev_b32 v3, 4, v0")
        a("v_add_u32 v38, %d, v3" % L_W2)
        XN = X + 8
        for i in range(8):
            for t in range(4):
                a("v_perm_b32 %s, %s, %s, %s" % (vr(AF + 4 * i + t), vr(XN + (i >> 1)), vr(XN + (i >> 1)), vr(SEL + 4 * (i & 1) + t)))
        a("""
        v_lshrrev_b32 v3, 4, v0
        v_lshlrev_b32 v3, 3, v3
        v_and_b32 v36, 7, v0
        v_add_u32 v3, v3, v36
        v_lshl_add_u32 v3, v3, 4, s44
        s_lshr_b32 s41, s27, 3
        s_lshl_b32 s41, s41, 12               ; cbl * 4096
        s_lshl_b32 s42, s26, 14
        s_add_u32 s41, s41, s42
        s_and_b32 s42, s27, 7
        s_lshl_b32 s42, s42, 4                ; j * 16
        s_add_u32 s41, s41, s42
        s_add_u32 s41, s41, %d
        v_bfe_u32 v4, v0, 2, 3
        v_lshlrev_b32 v4, 9, v4               ; producer * 512
        v_and_b32 v5, 1, v0
        v_lshl_add_u32 v4, v5, 8, v4          ; 16 (q & 1) * 16
        v_bfe_u32 v5, v0, 1, 1
        v_lshl_add_u32 v4, v5, 7, v4          ; 8 (q >> 1) * 16
        v_add_u32 v4, s41, v4
        """ % HB)
        a("s_waitcnt vmcnt(0)")
        self.stamp(2)
        for i in range(8):
            a("v_mfma_f32_16x16x32_bf16 %s, %s, %s, %s" % (vr(ACC, 4), vr(AF + 4 * i, 4), vr(W1R + 4 * i, 4), "0" if i == 0 else vr(ACC, 4)))
        a("s_nop 7")
        a("v_permlane32_swap_b32 %s, %s" % (vr(ACC), vr(ACC + 2)))
        a("v_permlane32_swap_b32 %s, %s" % (vr(ACC + 1), vr(ACC + 3)))
        a("s_nop 1")
        a("v_add_f32_dpp %s, %s, %s row_ror:8 row_mask:0xf bank_mask:0xf" % (vr(ACC), vr(ACC + 2), vr(ACC)))
        a("v_add_f32_dpp %s, %s, %s row_ror:8 row_mask:0xf bank_mask:0xf" % (vr(ACC + 1), vr(ACC + 3), vr(ACC + 1)))
        self.stamp(3)
        a("v_mov_b32 %s, s%d" % (vr(ACC + 2), S_T))
        a("v_mov_b32 %s, s%d" % (vr(ACC + 3), S_T + 1))
        a("v_add_u32 v5, %d, v3" % REGB)
        a("s_mov_b32 s42, 0x00ff00ff")
        a("s_mov_b32 s43, 0x00ff00ff")
        a("s_mov_b64 exec, s[42:43]")
        a("global_store_dwordx4 v3, %s, %s" % (vr(ACC, 4), sp(S_WS)))
        a("s_mov_b64 exec, -1")
        self.flag_add(F_HPUB, VZ, V1)
        a("s_mov_b64 exec, s[42:43]")
        a("global_store_dwordx4 v5, %s, %s sc1" % (vr(ACC, 4), sp(S_WS)))
        a("s_mov_b64 exec, -1")
        G = 8
        self.selectors(SEL, T, both_parities=False)
        self.flag_wait(F_Q, 1, VZ, T, sleep=1)
        self.read_mode(VZ, T)
        self.poll([(G, 4, 0)], S_MB)
        self.stamp(4)
        self.xor_reduce("v_add_f32", [G, G + 1], ["r4", 8, 16], T)
        a("v_max_f32 %s, 0, %s" % (vr(G), vr(G)))
        a("v_max_f32 %s, 0, %s" % (vr(G + 1), vr(G + 1)))
        a("v_cvt_pk_bf16_f32 %s, %s, %s" % (vr(G), vr(G), vr(G + 1)))
        a("s_nop 1")
        for r in range(4):
            a("v_mov_b32_dpp %s, %s quad_perm:[%d,%d,%d,%d] row_mask:0x%x bank_mask:0xf" % (vr(G + 4), vr(G), r, r, r, r, 1 << r))
            if r < 3:
                a("s_nop 1")
        a("""
        s_lshl_b32 s42, s26, 17
        s_lshl_b32 s43, s27, 7
        s_add_u32 s42, s42, s43
        s_add_u32 s42, s42, %d
        v_lshrrev_b32 v3, 3, v0
        v_lshlrev_b32 v3, 12, v3
        v_lshl_add_u32 v3, v36, 4, v3
        v_add_u32 v3, s42, v3
        """ % H3G)
        for i in range(2):
            for t in range(4):
                a("v_perm_b32 %s, %s, %s, %s" % (vr(AF + 4 * i + t), vr(G + 4), vr(G + 4), vr(SEL + 4 * i + t)))
        self.flag_wait(F_W2, 1, VZ, T, sleep=1)
        for i in range(8):
            a("ds_read_b128 %s, v38 offset:%d" % (vr(W + 4 * i, 4), 1024 * i))
        for w in range(4):
            for i in range(2):
                a("s_waitcnt lgkmcnt(%d)" % (7 - (2 * w + i)))
                a("v_mfma_f32_16x16x32_bf16 %s, %s, %s, %s" % (vr(AF + 16 + 4 * w, 4), vr(AF + 4 * i, 4), vr(W + 8 * w + 4 * i, 4), "0" if i == 0 else vr(AF + 16 + 4 * w, 4)))
        a("s_nop 7")
        for w in range(4):
            d = AF + 16 + 4 * w
            a("v_permlane32_swap_b32 %s, %s" % (vr(d), vr(d + 2)))
            a("v_permlane32_swap_b32 %s, %s" % (vr(d + 1), vr(d + 3)))
        a("s_nop 0")
        for w in range(4):
            d = AF + 16 + 4 * w
            a("v_mov_b32 %s, s%d" % (vr(d + 2), S_T))
            a("v_mov_b32 %s, s%d" % (vr(d + 3), S_T + 1))
        for w in range(4):
            self.store_mode(3, AF + 16 + 4 * w)
            if w < 3:
                a("v_add_u32 v3, 0x8000, v3")
        self.stamp(5)
        self.end(T)

    def role_c2(self):
        a = self.a
        VZ, V1 = 1, 2
        T = 100
        G = 8
        a("L_C2:")
        a("v_mov_b32 v1, 0\nv_mov_b32 v2, 1")
        self.role = "C2"
        a("s_setprio 3")
        a("v_lshlrev_b32 v3, 2, v0")
        a("s_mov_b32 exec_hi, 0")
        a("ds_write_b32 v3, v1 offset:%d" % L_F)
        a("s_mov_b64 exec, -1")
        self.args_ready()
        a("s_barrier")
        self.mlp_scalars()
        XF, FA, OUTA = 80, 81, 82
        a("""
        s_max_u32 s45, s27, 28
        s_sub_u32 s45, s45, 28
        s_lshl_b32 s45, s45, 3
        s_add_u32 s45, s45, s26               ; column set c'
        s_lshr_b32 s41, s45, 3
        s_lshl_b32 s41, s41, 7                ; 128 (c' >> 3)
        s_and_b32 s42, s45, 1
        s_lshl_b32 s42, s42, 6                ; 64 (c' & 1)
        s_add_u32 s41, s41, s42
        s_bfe_u32 s42, s45, 0x10001
        s_lshl_b32 s42, s42, 2
        s_add_u32 s41, s41, s42
        s_bfe_u32 s42, s45, 0x10002
        s_lshl_b32 s42, s42, 1
        s_add_u32 s41, s41, s42
        v_and_b32 v3, 7, v0
        v_lshlrev_b32 v3, 3, v3
        v_add_u32 v3, s41, v3                 ; first column of the pair
        v_lshlrev_b32 %s, 1, v3               ; byte offset in x / out
        s_lshl_b32 s41, s45, 11
        s_add_u32 s41, s41, %d
        v_lshrrev_b32 v3, 3, v0
        v_lshlrev_b32 v3, 8, v3
        v_and_b32 v83, 7, v0
        v_lshl_add_u32 v3, v83, 4, v3
        v_add_u32 %s, s41, v3
        """ % (vr(OUTA), H3B, vr(FA)))
        Lnf = a.newlabel("NF")
        a("s_cmp_lt_u32 s27, 28")
        a("s_cbranch_scc1 %s" % Lnf)
        a("global_load_dword %s, %s, %s" % (vr(XF), vr(OUTA), sp(S_X)))
        a("global_load_dwordx4 v[84:87], %s, %s sc1" % (vr(FA), sp(S_WS)))
        a("global_load_dwordx4 v[88:91], %s, %s offset:128 sc1" % (vr(FA), sp(S_WS)))
        a(Lnf + ":")
        a("""
        s_lshl_b32 s41, s26, 14
        s_add_u32 s41, s41, %d
        v_lshl_add_u32 v4, v0, 4, s41
        v_add_u32 v5, 0x1000, v4
        v_add_u32 v6, 0x2000, v4
        v_add_u32 v7, 0x3000, v4
        """ % H1)
        qloads = [(G + 16 * hd + 4 * rb, 4 + rb, 1024 * hd) for hd in range(4) for rb in range(4)]
        self.tags()
        self.stamp(1)
        self.flag_wait(F_QPUB, 1, VZ, T, sleep=1)
        self.stamp(2)
        Lslow, Lgot = a.newlabel("Q"), a.newlabel("Q")
        if not self.force_global:
            self.poll(qloads, S_WS, tag=S_T1X, limit=A_TIMEOUT, on_timeout=Lslow, cnt=12)
            a("s_branch %s" % Lgot)
        a(Lslow + ":")
        a("s_waitcnt vmcnt(0)")
        a("s_add_u32 s46, s%d, %d" % (S_WS, REGB))
        a("s_addc_u32 s47, s%d, 0" % (S_WS + 1))
        L = a.newlabel("P")
        a("s_mov_b32 s%d, 0" % S_CNT)
        a(L + ":")
        for (vd, va, off) in qloads:
            a("global_load_dwordx4 %s, %s, s[46:47] offset:%d sc1" % (vr(vd, 4), vr(va), off))
        a("s_add_u32 s%d, s%d, 1" % (S_CNT, S_CNT))
        a("s_cmp_gt_u32 s%d, %d" % (S_CNT, POLL_MAX))
        a("s_cbranch_scc1 L_end")
        a("s_waitcnt vmcnt(0)")
        a("v_mov_b32 %s, 0" % vr(T))
        a("v_mov_b32 %s, 0" % vr(T + 1))
        for (vd, va, off) in qloads:
            a("v_xor_b32 %s, s%d, %s" % (vr(T + 2), S_T, vr(vd + 2)))
            a("v_xor_b32 %s, s%d, %s" % (vr(T + 3), S_T + 1, vr(vd + 3)))
            a("v_and_b32 %s, 0xfffffff0, %s" % (vr(T + 3), vr(T + 3)))
            a("v_or3_b32 %s, %s, %s, %s" % (vr(T), vr(T), vr(T + 2), vr(T + 3)))
            a("v_xor_b32 %s, s%d, %s" % (vr(T + 3), S_T1X + 1, vr(vd + 3)))
            a("v_or_b32 %s, %s, %s" % (vr(T + 1), vr(T + 1), vr(T + 3)))
        a("v_cmp_ne_u32 vcc, 0, %s" % vr(T))
        a("s_cbranch_vccnz %s" % L)
        a("v_cmp_ne_u32 vcc, 0, %s" % vr(T + 1))
        a("s_cbranch_vccz %s" % Lgot)
        self.flag_add(F_REM, VZ, V1)
        a(Lgot + ":")
        self.stamp(3)
        for hd in range(4):
            b = G + 16 * hd
            for e in range(2):
                a("v_add_f32 %s, %s, %s" % (vr(b + e), vr(b + e), vr(b + 4 + e)))
                a("v_add_f32 %s, %s, %s" % (vr(b + 8 + e), vr(b + 8 + e), vr(b + 12 + e)))
            for e in range(2):
                a("v_add_f32 %s, %s, %s" % (vr(b + e), vr(b + e), vr(b + 8 + e)))
            a("v_cvt_pk_bf16_f32 %s, %s, %s" % (vr(b), vr(b), vr(b + 1)))
        a("""
        v_lshrrev_b32 v72, 5, v0              ; cb_local
        v_lshlrev_b32 v72, 7, v72             ; 64 columns * 2 B
        v_and_b32 v73, 7, v0
        v_lshl_add_u32 v72, v73, 4, v72       ; 8 n * 2 B
        v_bfe_u32 v73, v0, 3, 1
        v_lshl_add_u32 v72, v73, 3, v72       ; 4 g' * 2 B
        v_bfe_u32 v73, v0, 4, 1
        v_lshl_add_u32 v72, v73, 2, v72       ; 2 s * 2 B
        """)
        for hd in range(4):
            a("ds_write_b32 v72, %s offset:%d" % (vr(G + 16 * hd), L_Q + 320 * hd))
        self.flag_add(F_Q, VZ, V1)
        self.stamp(4)
        SA, GA, BA = 4, 5, 6
        a("""
        s_lshl_b32 s41, s26, 17
        s_lshl_b32 s42, s27, 12
        s_add_u32 s41, s41, s42
        v_lshl_add_u32 v3, v0, 4, s41
        v_add_u32 %s, %d, v3
        v_add_u32 %s, %d, v3
        s_lshl_b32 s41, s27, 11
        s_lshl_b32 s42, s26, 8
        s_add_u32 s41, s41, s42
        s_add_u32 s41, s41, %d
        v_lshl_add_u32 %s, v0, 4, s41
        """ % (vr(SA), H3S, vr(GA), H3G, H3B, vr(BA)))
        self.read_mode(VZ, T)
        if self.sinit:
            for i in range(4):
                a("v_mov_b32 %s, 0" % vr(56 + i))
            for i in range(4):
                a("global_store_dwordx4 %s, v[56:59], %s offset:%d" % (vr(SA), sp(S_WS), 1024 * i))
            a("s_waitcnt vmcnt(0)")
            self.flag_add(F_INIT, VZ, V1)
        GS = 40
        GG, GAD, GW = 24, 44, 48
        a("v_mov_b32 %s, 0" % vr(GS))
        a("v_mov_b32 %s, 0" % vr(GS + 1))
        Lng = a.newlabel("NG")
        a("s_cmp_eq_u32 s49, 0")
        a("s_cbranch_scc1 %s" % Lng)
        a("v_lshrrev_b32 v3, 3, v0")
        for i in range(4):
            a("v_add_u32 v52, %d, v3" % (8 * i))
            a("v_cmp_gt_u32 vcc, s49, v52")
            a("v_add_u32 v53, %d, %s" % (1024 * i, vr(GA)))
            a("v_mov_b32 v54, 1.0")
            a("v_cndmask_b32 %s, %s, v53, vcc" % (vr(GAD + i), vr(GA)))
            a("v_cndmask_b32 %s, v1, v54, vcc" % vr(GW + i))
        self.flag_wait(F_OPUB, 4, VZ, T, sleep=1)
        if self.spf == 1:
            for i in range(4):
                a("global_load_dwordx4 %s, %s, %s offset:%d sc1" % (vr(60 + 4 * i, 4), vr(SA), sp(S_MB), 1024 * i))
        self.poll([(GG + 4 * i, GAD + i, 0) for i in range(4)], S_MB, cnt=15)
        if self.spf == 3:
            for i in range(4):
                a("global_load_dwordx4 %s, %s, %s offset:%d sc1" % (vr(60 + 4 * i, 4), vr(SA), sp(S_MB), 1024 * i))
        for i in range(4):
            for e in range(2):
                a("v_fmac_f32 %s, %s, %s" % (vr(GS + e), vr(GW + i), vr(GG + 4 * i + e)))
        a(Lng + ":")
        self.stamp(5)
        if self.sgate:
            self.flag_wait(F_SPUB, 4, VZ, T)
        else:
            L = a.newlabel("O")
            a("s_mov_b32 s%d, 0" % S_CNT)
            a(L + ":")
            a("ds_read_b32 %s, %s offset:%d" % (vr(T), vr(VZ), L_O + 4))
            a("s_add_u32 s%d, s%d, 1" % (S_CNT, S_CNT))
            a("s_cmp_gt_u32 s%d, %d" % (S_CNT, SPIN_MAX))
            a("s_cbranch_scc1 L_end")
            a("s_waitcnt lgkmcnt(0)")
            a("v_readfirstlane_b32 s%d, %s" % (S_TMP, vr(T)))
            a("s_cmp_lg_u32 s%d, 1" % S_TMP)
            a("s_cbranch_scc1 %s" % L)
        if self.sdelay:
            a("s_sleep %d" % self.sdelay)
        self.stamp(6)
        if self.trace:
            for k in range(11, 16):
                a("s_mov_b32 s%d, 0" % (S_STAMP + 2 * k))
            self.poll_traced([(G + 4 * i, SA, 1024 * i) for i in range(4)], S_MB, 11, 5)
        else:
            self.poll([(G + 4 * i, SA, 1024 * i) for i in range(4)], S_MB, cnt=13)
        self.stamp(7)
        for e in range(2):
            a("v_add_f32 %s, %s, %s" % (vr(G + e), vr(G + e), vr(G + 4 + e)))
            a("v_add_f32 %s, %s, %s" % (vr(G + 8 + e), vr(G + 8 + e), vr(G + 12 + e)))
        for e in range(2):
            a("v_add_f32 %s, %s, %s" % (vr(G + e), vr(G + e), vr(G + 8 + e)))
        self.xor_reduce("v_add_f32", [G, G + 1, GS, GS + 1], [8, 16, 32], T)
        a("""
        v_bfe_u32 v3, v0, 3, 1
        v_cmp_eq_u32 vcc, 1, v3
        v_mov_b32 %s, s%d
        v_mov_b32 %s, s%d
        v_cndmask_b32 %s, %s, %s, vcc
        v_cndmask_b32 %s, %s, %s, vcc
        s_mov_b64 exec, 0xffff
        global_store_dwordx4 %s, %s, %s sc1
        s_mov_b64 exec, -1
        """ % (vr(G + 2), S_T, vr(G + 3), S_T + 1, vr(G), vr(G), vr(GS), vr(G + 1), vr(G + 1), vr(GS + 1), vr(BA), vr(G, 4), sp(S_WS)))
        self.stamp(8)
        Lf = a.newlabel("F")
        a("s_cmp_ge_u32 s27, 28")
        a("s_cbranch_scc1 %s" % Lf)
        self.end(T)
        a(Lf + ":")
        self.role = "C2F"
        G = 12
        self.poll([(G, FA, 0), (G + 4, FA, 128)], S_WS, cnt=14)
        self.stamp(9)
        self.xor_reduce("v_add_f32", [G, G + 1, G + 4, G + 5], [8, 16, 32], T)
        a("v_cvt_pk_bf16_f32 %s, %s, %s" % (vr(G), vr(G), vr(G + 1)))
        a("v_cvt_pk_bf16_f32 %s, %s, %s" % (vr(G + 4), vr(G + 4), vr(G + 5)))
        a("v_and_b32 %s, 0xffff0000, %s" % (vr(G + 1), vr(G)))
        a("v_lshlrev_b32 %s, 16, %s" % (vr(G), vr(G)))
        a("v_and_b32 %s, 0xffff0000, %s" % (vr(G + 5), vr(G + 4)))
        a("v_lshlrev_b32 %s, 16, %s" % (vr(G + 4), vr(G + 4)))
        for e in range(2):
            a("v_mul_f32 %s, 0x%x, %s" % (vr(G + 8 + e), LOG2E ^ 0x80000000, vr(G + 4 + e)))
        for e in range(2):
            a("v_exp_f32 %s, %s" % (vr(G + 8 + e), vr(G + 8 + e)))
        a("s_nop 0")
        for e in range(2):
            a("v_add_f32 %s, 1.0, %s" % (vr(G + 8 + e), vr(G + 8 + e)))
        for e in range(2):
            a("v_rcp_f32 %s, %s" % (vr(G + 8 + e), vr(G + 8 + e)))
        a("s_nop 0")
        for e in range(2):
            a("v_mul_f32 %s, %s, %s" % (vr(G + 4 + e), vr(G + 4 + e), vr(G + 8 + e)))
        a("v_cvt_pk_bf16_f32 %s, %s, %s" % (vr(G + 4), vr(G + 4), vr(G + 5)))
        a("v_and_b32 %s, 0xffff0000, %s" % (vr(G + 5), vr(G + 4)))
        a("v_lshlrev_b32 %s, 16, %s" % (vr(G + 4), vr(G + 4)))
        for e in range(2):
            a("v_mul_f32 %s, %s, %s" % (vr(G + e), vr(G + e), vr(G + 4 + e)))
        a("v_cvt_pk_bf16_f32 %s, %s, %s" % (vr(G), vr(G), vr(G + 1)))
        a("v_and_b32 %s, 0xffff0000, %s" % (vr(G + 1), vr(G)))
        a("v_lshlrev_b32 %s, 16, %s" % (vr(G), vr(G)))
        a("v_and_b32 %s, 0xffff0000, %s" % (vr(G + 5), vr(XF)))
        a("v_lshlrev_b32 %s, 16, %s" % (vr(G + 4), vr(XF)))
        for e in range(2):
            a("v_add_f32 %s, %s, %s" % (vr(G + e), vr(G + e), vr(G + 4 + e)))
        a("v_cvt_pk_bf16_f32 %s, %s, %s" % (vr(G), vr(G), vr(G + 1)))
        a("s_mov_b64 exec, 0xff")
        a("global_store_dword %s, %s, %s" % (vr(OUTA), vr(G), sp(S_OUT)))
        Le = a.newlabel("E")
        a("s_cmp_lg_u32 s45, 0")
        a("s_cbranch_scc1 %s" % Le)
        a("s_mov_b64 exec, 1")
        a("v_mov_b32 %s, s%d" % (vr(G + 2), S_T))
        a("v_mov_b32 %s, s%d" % (vr(G + 3), S_T + 1))
        a("global_store_dwordx2 v1, %s, %s offset:%d sc1" % (vr(G + 2, 2), sp(S_WS), EPOCH))
        a(Le + ":")
        a("s_mov_b64 exec, -1")
        self.stamp(10)
        self.end(T)

    def build(self):
        self.prologue()
        self.role_c0()
        self.role_c1()
        self.role_c2()
        self.role_a()
        self.role_l()
        self.a("L_end:\ns_endpgm\nL_code_end:")
        return wrap(self.a.text(), 256, 512, LDS_BYTES, 192, sgpr=96)


def generate(**kw):
    return Gen(**kw).build()


if __name__ == "__main__":
    out = sys.argv[1] if len(sys.argv) > 1 else "cdna_kernels/%s.s" % NAME
    kw = {}
    for arg in sys.argv[2:]:
        k, v = arg.split("=")
        kw[k] = {"True": True, "False": False}.get(v, v)
    open(out, "w").write(generate(**kw))
    print("wrote", out)
```

```python
import sys
from asmgen import Asm, wrap, NAME

REGB = 0x400000
EPOCH = 0x0
H1 = 0x10000
ST = 0x50000
H3B = 0x70000
HB = 0x80000
H2 = 0x100000
H3S = 0x200000
H3G = 0x300000
STAMP_OFF = 256 << 20

L_Q = 0x0000
L_P = 0x0800
L_MX = 0x1800
L_O = 0x1AC0
L_XQ = 0x1880
L_XH = 0x1980
L_F = 0x1A80
L_K = 0x2000
L_V = 0xA000
L_WO = 0x12000
L_W2 = 0x16000
L_W1 = 0x1A000
F_V, F_INIT, F_Q, F_REM, F_K, F_MAX, F_P, F_ST, F_QPUB, F_OPUB, F_O, F_W1, F_SPUB, F_WO, F_W2, F_HPUB = [L_F + 4 * i for i in range(16)]
LDS_BYTES = 0x1E000

S_X, S_K, S_V, S_WQ, S_WO, S_W1, S_W2, S_OUT, S_WS = 4, 6, 8, 10, 12, 16, 18, 20, 24
S_G, S_C, S_W = 26, 27, 28
S_T = 30
S_XCC = 32
S_MODE = 33
S_MB = 34
S_T1X = 36
S_ISB = 38
S_CNT = 39
S_TMP = 40
S_STAMP = 60

LOG2E = 0x3fb8aa3b
SCALE = 0x3db504f3
A_TIMEOUT = 64
SPIN_MAX = 1 << 20
POLL_MAX = 1 << 16


def sp(n):
    return "s[%d:%d]" % (n, n + 1)


def vr(n, k=1):
    return "v%d" % n if k == 1 else "v[%d:%d]" % (n, n + k - 1)


class Gen:
    def __init__(self, stamps=False, nt_kv="nt", nt_w="nt", force_global=False, mimic=True, window=16, nb_lo=32, nb_hi=24, order="k2v|o", code_pf=1, dbg=0, ileave=1, hold=0, init=2, w2=40, chk=4, init_late=0, ogate=4, sdelay=0, trace=0, sinit=0, sgate=1, spf=1, ofill=0, scramble=0):
        self.a = Asm()
        self.window = int(window)
        self.nb_lo = int(nb_lo)
        self.nb_hi = int(nb_hi)
        self.order = order
        self.code_pf = int(code_pf)
        self.dbg = int(dbg)
        self.role = None
        if self.dbg:
            self.stamps = stamps = True
        self.ileave = int(ileave)
        self.hold = int(hold)
        self.init = int(init)
        self.w2 = int(w2)
        self.chk = int(chk)
        self.init_late = int(init_late)
        self.ogate = int(ogate)
        self.sdelay = int(sdelay)
        self.trace = int(trace)
        self.sinit = int(sinit)
        self.sgate = int(sgate)
        self.spf = int(spf)
        self.ofill = int(ofill)
        self.scramble = int(scramble)
        assert 4 * self.nb_lo + 4 * self.nb_hi == 224 and self.nb_lo % 8 == 0 and self.nb_hi % 8 == 0
        self.stamps = stamps
        self.nt_kv = nt_kv
        self.nt_w = nt_w
        self.force_global = force_global
        self.mimic = mimic
        self.nstamp = 0

    def stamp(self, idx):
        if self.stamps:
            self.a("s_memrealtime %s" % sp(S_STAMP + 2 * idx))

    def flag_add(self, flag, vz, vone):
        a = self.a
        a("s_mov_b64 exec, 1")
        a("ds_add_u32 %s, %s offset:%d" % (vr(vz), vr(vone), flag))
        a("s_mov_b64 exec, -1")

    def flag_set(self, flag, val, vz, vt):
        a = self.a
        a("v_mov_b32 %s, %d" % (vr(vt), val))
        a("s_mov_b64 exec, 1")
        a("ds_write_b32 %s, %s offset:%d" % (vr(vz), vr(vt), flag))
        a("s_mov_b64 exec, -1")

    def flag_wait(self, flag, n, vz, vt, sleep=0):
        a = self.a
        L, Lgo = a.newlabel("W"), a.newlabel("W")
        a("s_mov_b32 s%d, 0" % S_CNT)
        a(L + ":")
        a("ds_read_b32 %s, %s offset:%d" % (vr(vt), vr(vz), flag))
        a("s_waitcnt lgkmcnt(0)")
        a("v_readfirstlane_b32 s%d, %s" % (S_TMP, vr(vt)))
        a("s_cmp_ge_u32 s%d, %d" % (S_TMP, n))
        a("s_cbranch_scc1 %s" % Lgo)
        if sleep:
            a("s_sleep %d" % sleep)
        a("s_add_u32 s%d, s%d, 1" % (S_CNT, S_CNT))
        a("s_cmp_lt_u32 s%d, %d" % (S_CNT, SPIN_MAX))
        a("s_cbranch_scc1 %s" % L)
        a("s_branch L_end")
        a(Lgo + ":")

    def store_mode(self, vaddr, vdata, n=4):
        a = self.a
        L1, L2 = a.newlabel("S"), a.newlabel("S")
        op = "global_store_dwordx%d" % n
        a("s_cmp_lg_u32 s%d, 0" % S_MODE)
        a("s_cbranch_scc1 %s" % L1)
        a("%s %s, %s, %s" % (op, vr(vaddr), vr(vdata, n), sp(S_MB)))
        a("s_branch %s" % L2)
        a(L1 + ":")
        a("%s %s, %s, %s sc1" % (op, vr(vaddr), vr(vdata, n), sp(S_MB)))
        a(L2 + ":")

    def poll_traced(self, loads, base, first_stamp, npass=4):
        a = self.a
        Lok = a.newlabel("PT")
        n = len(loads)
        for k in range(npass):
            a("s_memrealtime %s" % sp(S_STAMP + 2 * (first_stamp + k)))
            for (vd, va, off) in loads:
                a("global_load_dwordx4 %s, %s, %s offset:%d sc1" % (vr(vd, 4), vr(va), sp(base), off))
            for i, (vd, va, off) in enumerate(loads):
                a("s_waitcnt vmcnt(%d)" % (n - 1 - i))
                dst = "vcc" if i == 0 else sp(S_TMP)
                a("v_cmp_ne_u64 %s, %s, %s" % (dst, vr(vd + 2, 2), sp(S_T)))
                if i:
                    a("s_or_b64 vcc, vcc, %s" % sp(S_TMP))
            a("s_cbranch_vccz %s" % Lok)
        self.poll(loads, base)
        a(Lok + ":")

    def poll(self, loads, base, tag=S_T, limit=POLL_MAX, on_timeout="L_end", cnt=None):
        a = self.a
        L, Lok = a.newlabel("P"), a.newlabel("P")
        a("s_mov_b32 s%d, 0" % S_CNT)
        a(L + ":")
        for (vd, va, off) in loads:
            a("global_load_dwordx4 %s, %s, %s offset:%d sc1" % (vr(vd, 4), vr(va), sp(base), off))
        n = len(loads)
        for i, (vd, va, off) in enumerate(loads):
            a("s_waitcnt vmcnt(%d)" % (n - 1 - i))
            dst = "vcc" if i == 0 else sp(S_TMP)
            a("v_cmp_ne_u64 %s, %s, %s" % (dst, vr(vd + 2, 2), sp(tag)))
            if i:
                a("s_or_b64 vcc, vcc, %s" % sp(S_TMP))
        a("s_cbranch_vccz %s" % Lok)
        a("s_add_u32 s%d, s%d, 1" % (S_CNT, S_CNT))
        a("s_cmp_le_u32 s%d, %d" % (S_CNT, limit))
        a("s_cbranch_scc1 %s" % L)
        a("s_branch %s" % on_timeout)
        a(Lok + ":")
        if cnt is not None and self.stamps:
            a("s_mov_b32 s%d, s%d" % (S_STAMP + 2 * cnt, S_CNT))

    def xor_reduce(self, op, regs, steps, tmp):
        a = self.a
        for st in steps:
            if st in (16, 32):
                ins = "v_permlane16_swap_b32" if st == 16 else "v_permlane32_swap_b32"
                for i, r in enumerate(regs):
                    a("v_mov_b32 %s, %s" % (vr(tmp + i), vr(r)))
                a("s_nop 1")
                for i, r in enumerate(regs):
                    a("%s %s, %s" % (ins, vr(r), vr(tmp + i)))
                a("s_nop 1")
                for i, r in enumerate(regs):
                    a("%s %s, %s, %s" % (op, vr(r), vr(r), vr(tmp + i)))
            else:
                ctl = {1: "quad_perm:[1,0,3,2]", 2: "quad_perm:[2,3,0,1]", "hm": "row_half_mirror", "m": "row_mirror", 8: "row_ror:8", "r4": "row_ror:4"}[st]
                a("s_nop 1")
                for r in regs:
                    a("%s_dpp %s, %s, %s %s row_mask:0xf bank_mask:0xf" % (op, vr(r), vr(r), vr(r), ctl))

    def read_mode(self, vz, vt):
        a = self.a
        a("ds_read_b32 %s, %s offset:%d" % (vr(vt), vr(vz), F_REM))
        a("s_waitcnt lgkmcnt(0)")
        a("v_readfirstlane_b32 s%d, %s" % (S_MODE, vr(vt)))
        if self.force_global:
            a("s_mov_b32 s%d, 1" % S_MODE)
        a("s_min_u32 s%d, s%d, 1" % (S_MODE, S_MODE))
        a("s_mul_i32 s%d, s%d, %d" % (S_TMP, S_MODE, REGB))
        a("s_add_u32 s%d, s%d, s%d" % (S_MB, S_WS, S_TMP))
        a("s_addc_u32 s%d, s%d, 0" % (S_MB + 1, S_WS + 1))

    def tags(self):
        a = self.a
        a("s_getreg_b32 s32, hwreg(HW_REG_XCC_ID, 0, 4)")
        a("s_waitcnt lgkmcnt(0)")
        a("s_add_u32 s%d, s%d, 0x9E3779B9" % (S_T, S_T))
        a("s_add_u32 s%d, s%d, 0x7F4A7C00" % (S_T + 1, S_T + 1))
        a("s_and_b32 s%d, s%d, 0xFFFFFFE0" % (S_T + 1, S_T + 1))
        a("s_or_b32 s%d, s%d, 0x10" % (S_T + 1, S_T + 1))
        a("s_mov_b32 s%d, s%d" % (S_T1X, S_T))
        a("s_or_b32 s%d, s%d, s%d" % (S_T1X + 1, S_T + 1, S_XCC))

    DBG_MAP = {"A": {0: [(0, True), (1, False)], 1: [(12, False)], 3: [(5, False)], 6: [(7, False)], 7: [(9, False)]},
               "C0": {2: [(14, False)], 4: [(15, False)], 5: [(3, False)], 9: [(8, False)]},
               "C1B": {5: [(13, False)]},
               "C2": {4: [(4, False)], 8: [(10, False)]},
               "C2F": {4: [(4, False)], 8: [(10, False)], 10: [(11, False)]},
               "L": {1: [(2, False)], 3: [(6, False)]}}

    def dump_stamps(self, vt):
        if not self.stamps:
            return
        a = self.a
        if self.dbg:
            a("s_waitcnt lgkmcnt(0)")
            a("s_mov_b64 exec, 1")
            a("v_mov_b32 %s, 0" % vr(vt))
            for st, outs in self.DBG_MAP.get(self.role, {}).items():
                for slot, inv in outs:
                    a("v_mov_b32 %s, s%d" % (vr(vt + 1), S_STAMP + 2 * st))
                    if inv:
                        a("v_not_b32 %s, %s" % (vr(vt + 1), vr(vt + 1)))
                    a("global_atomic_umax %s, %s, s[22:23] offset:%d" % (vr(vt), vr(vt + 1), 4 * slot))
            return
        a("s_waitcnt lgkmcnt(0)")
        a("s_lshl_b32 s%d, s2, 3" % S_TMP)
        a("s_add_u32 s%d, s%d, s%d" % (S_TMP, S_TMP, S_W))
        a("s_lshl_b32 s%d, s%d, 6" % (S_TMP, S_TMP))
        a("s_add_u32 s%d, s%d, %d" % (S_TMP, S_TMP, STAMP_OFF))
        a("s_mov_b64 exec, 1")
        a("v_mov_b32 %s, s%d" % (vr(vt), S_TMP))
        for i in range(16):
            a("v_mov_b32 %s, s%d" % (vr(vt + 1), S_STAMP + 2 * i))
            a("global_store_dword %s, %s, %s offset:%d" % (vr(vt), vr(vt + 1), sp(S_WS), 4 * i))

    def end(self, vt):
        self.dump_stamps(vt)
        self.a("s_endpgm")

    def layernorm_rows(self, base, lds_x, VZ, rows=128):
        a = self.a
        xs, xp = base, base + 4
        f = base + 16
        t = base + 24
        for i in range(4):
            a("v_lshlrev_b32 %s, 16, %s" % (vr(f + 2 * i), vr(xs + i)))
            a("v_and_b32 %s, 0xffff0000, %s" % (vr(f + 2 * i + 1), vr(xs + i)))
        a("v_add_f32 %s, %s, %s" % (vr(t), vr(f), vr(f + 1)))
        a("v_add_f32 %s, %s, %s" % (vr(t + 1), vr(f + 2), vr(f + 3)))
        a("v_add_f32 %s, %s, %s" % (vr(t + 2), vr(f + 4), vr(f + 5)))
        a("v_add_f32 %s, %s, %s" % (vr(t + 3), vr(f + 6), vr(f + 7)))
        a("v_add_f32 %s, %s, %s" % (vr(t), vr(t), vr(t + 1)))
        a("v_add_f32 %s, %s, %s" % (vr(t + 2), vr(t + 2), vr(t + 3)))
        a("v_add_f32 %s, %s, %s" % (vr(t), vr(t), vr(t + 2)))
        self.xor_reduce("v_add_f32", [t], [1, 2, "hm", "m", 16, 32], t + 4)
        a("v_mul_f32 %s, 0x3b000000, %s" % (vr(t), vr(t)))
        for i in range(8):
            a("v_sub_f32 %s, %s, %s" % (vr(f + i), vr(f + i), vr(t)))
        a("v_mul_f32 %s, %s, %s" % (vr(t + 1), vr(f), vr(f)))
        a("v_mul_f32 %s, %s, %s" % (vr(t + 2), vr(f + 1), vr(f + 1)))
        for i in range(2, 8, 2):
            a("v_fmac_f32 %s, %s, %s" % (vr(t + 1), vr(f + i), vr(f + i)))
            a("v_fmac_f32 %s, %s, %s" % (vr(t + 2), vr(f + i + 1), vr(f + i + 1)))
        a("v_add_f32 %s, %s, %s" % (vr(t + 1), vr(t + 1), vr(t + 2)))
        self.xor_reduce("v_add_f32", [t + 1], [1, 2, "hm", "m", 16, 32], t + 4)
        a("v_mul_f32 %s, 0x3b000000, %s" % (vr(t + 1), vr(t + 1)))
        a("v_cvt_pk_bf16_f32 %s, %s, %s" % (vr(t + 2), vr(t), vr(t + 1)))
        a("v_lshlrev_b32 %s, 16, %s" % (vr(t), vr(t + 2)))
        a("v_and_b32 %s, 0xffff0000, %s" % (vr(t + 1), vr(t + 2)))
        a("v_add_f32 %s, 0x3727c5ac, %s" % (vr(t + 1), vr(t + 1)))
        a("v_cvt_pk_bf16_f32 %s, %s, %s" % (vr(t + 1), vr(t + 1), vr(t + 1)))
        a("v_and_b32 %s, 0xffff0000, %s" % (vr(t + 1), vr(t + 1)))
        a("v_sqrt_f32 %s, %s" % (vr(t + 1), vr(t + 1)))
        a("s_nop 0")
        a("v_cvt_pk_bf16_f32 %s, %s, %s" % (vr(t + 1), vr(t + 1), vr(t + 1)))
        a("v_and_b32 %s, 0xffff0000, %s" % (vr(t + 1), vr(t + 1)))
        a("v_rcp_f32 %s, %s" % (vr(t + 2), vr(t + 1)))
        a("v_lshlrev_b32 %s, 16, %s" % (vr(f), vr(xp)))
        a("v_and_b32 %s, 0xffff0000, %s" % (vr(f + 1), vr(xp)))
        a("v_sub_f32 %s, %s, %s" % (vr(f), vr(f), vr(t)))
        a("v_sub_f32 %s, %s, %s" % (vr(f + 1), vr(f + 1), vr(t)))
        a("v_cvt_pk_bf16_f32 %s, %s, %s" % (vr(f), vr(f), vr(f + 1)))
        a("v_and_b32 %s, 0xffff0000, %s" % (vr(f + 1), vr(f)))
        a("v_lshlrev_b32 %s, 16, %s" % (vr(f), vr(f)))
        for i in range(2):
            a("v_mul_f32 %s, %s, %s" % (vr(f + 2 + i), vr(f + i), vr(t + 2)))
        for i in range(2):
            a("v_fma_f32 %s, -%s, %s, %s" % (vr(f + 4 + i), vr(f + 2 + i), vr(t + 1), vr(f + i)))
        for i in range(2):
            a("v_fmac_f32 %s, %s, %s" % (vr(f + 2 + i), vr(f + 4 + i), vr(t + 2)))
        a("v_cvt_pk_bf16_f32 %s, %s, %s" % (vr(f), vr(f + 2), vr(f + 3)))
        if rows == 128:
            a("v_lshlrev_b32 %s, 2, v0" % vr(t))
        else:
            a("v_and_b32 %s, 31, v0" % vr(t))
            a("v_lshlrev_b32 %s, 2, %s" % (vr(t), vr(t)))
        a("ds_write_b32 %s, %s offset:%d" % (vr(t), vr(f), lds_x))
        a("v_lshrrev_b32 %s, 3, v0" % vr(t))
        a("v_lshlrev_b32 %s, %d, %s" % (vr(t), 5 if rows == 128 else 4, vr(t)))
        a("ds_read_b128 %s, %s offset:%d" % (vr(base + 8, 4), vr(t), lds_x))
        if rows == 128:
            a("ds_read_b128 %s, %s offset:%d" % (vr(base + 12, 4), vr(t), lds_x + 16))

    def selectors(self, sel, tmp, both_parities):
        a = self.a
        a("v_and_b32 %s, 15, v0" % vr(tmp))
        a("v_and_b32 %s, 1, %s" % (vr(tmp + 1), vr(tmp)))
        a("v_bfe_u32 %s, %s, 1, 2" % (vr(tmp + 2), vr(tmp)))
        if not both_parities:
            a("v_lshrrev_b32 %s, 3, %s" % (vr(tmp + 3), vr(tmp)))
            a("v_lshl_add_u32 %s, %s, 2, %s" % (vr(tmp + 2), vr(tmp + 3), vr(tmp + 2)))
        a("v_cmp_eq_u32 vcc, 1, %s" % vr(tmp + 1))
        a("v_mov_b32 %s, 0x0c0c0100" % vr(tmp + 3))
        a("v_mov_b32 %s, 0x01000c0c" % vr(tmp + 4))
        a("v_cndmask_b32 %s, %s, %s, vcc" % (vr(tmp + 5), vr(tmp + 3), vr(tmp + 4)))
        a("v_mov_b32 %s, 0x0c0c0302" % vr(tmp + 3))
        a("v_mov_b32 %s, 0x03020c0c" % vr(tmp + 4))
        a("v_cndmask_b32 %s, %s, %s, vcc" % (vr(tmp + 6), vr(tmp + 3), vr(tmp + 4)))
        a("v_mov_b32 %s, 0x0c0c0c0c" % vr(tmp + 3))
        for t in range(4):
            a("v_cmp_eq_u32 vcc, %d, %s" % (t, vr(tmp + 2)))
            a("s_nop 1")
            a("v_cndmask_b32 %s, %s, %s, vcc" % (vr(sel + t), vr(tmp + 3), vr(tmp + 5)))
            a("v_cndmask_b32 %s, %s, %s, vcc" % (vr(sel + 4 + t), vr(tmp + 3), vr(tmp + 6)))

    def tile_gemv(self, W, XN, SEL, AF, ACC, nafter):
        a = self.a
        for i in range(16):
            for t in range(4):
                a("v_perm_b32 %s, %s, %s, %s" % (vr(AF + 4 * i + t), vr(XN + (i >> 1)), vr(XN + (i >> 1)), vr(SEL + 4 * (i & 1) + t)))
        for i in range(16):
            a("s_waitcnt vmcnt(%d)" % (15 - i + nafter))
            a("v_mfma_f32_16x16x32_bf16 %s, %s, %s, %s" % (vr(ACC, 4), vr(AF + 4 * i, 4), vr(W + 4 * i, 4), "0" if i == 0 else vr(ACC, 4)))
        a("s_nop 7")
        a("v_permlane32_swap_b32 %s, %s" % (vr(ACC), vr(ACC + 2)))
        a("v_permlane32_swap_b32 %s, %s" % (vr(ACC + 1), vr(ACC + 3)))
        a("s_nop 1")
        a("v_add_f32_dpp %s, %s, %s row_ror:8 row_mask:0xf bank_mask:0xf" % (vr(ACC), vr(ACC + 2), vr(ACC)))
        a("v_add_f32_dpp %s, %s, %s row_ror:8 row_mask:0xf bank_mask:0xf" % (vr(ACC + 1), vr(ACC + 3), vr(ACC + 1)))


    def prologue(self):
        a = self.a
        a("""
        s_cmp_ge_u32 s2, 256
        s_cbranch_scc1 L_end
        """)
        self.stamp(0)
        a("""
        s_load_dwordx16 s[4:19], s[0:1], 0
        s_load_dwordx4 s[20:23], s[0:1], 64
        s_load_dwordx2 s[24:25], s[0:1], 80
        v_lshrrev_b32 v1, 6, v0
        v_and_b32 v0, 63, v0
        %s
        v_readfirstlane_b32 s28, v1
        v_lshlrev_b32 v37, 4, v0
        s_lshr_b32 s40, s27, 3                ; row block of the Wq tile
        s_cmp_eq_u32 s28, 7
        s_cbranch_scc1 L_L
        s_cmp_eq_u32 s28, 5
        s_cbranch_scc1 L_C1
        s_cmp_eq_u32 s28, 6
        s_cbranch_scc1 L_C2
        s_cmp_lt_u32 s28, 4
        s_cbranch_scc1 L_A
        """ % ("s_lshr_b32 s26, s2, 5\ns_and_b32 s27, s2, 31" if self.scramble else "s_and_b32 s26, s2, 7\ns_lshr_b32 s27, s2, 3"))

    def dispatch_others(self):
        self.a("""
        L_other:
        v_mov_b32 v1, 0
        v_mov_b32 v2, 1
        s_cmp_eq_u32 s28, 7
        s_cbranch_scc1 L_L
        s_cmp_eq_u32 s28, 5
        s_cbranch_scc1 L_C1
        s_cmp_eq_u32 s28, 6
        s_cbranch_scc1 L_C2
        s_branch L_A
        """)

    def mlp_scalars(self):
        self.a("""
        s_cmp_lt_u32 s26, 4
        s_cselect_b32 s49, %d, %d
        s_cmp_lt_u32 s27, s49
        s_cselect_b32 s38, 1, 0
        s_mul_i32 s50, s26, %d
        s_sub_u32 s51, s26, 4
        s_mul_i32 s51, s51, %d
        s_add_u32 s51, s51, %d
        s_cmp_lt_u32 s26, 4
        s_cselect_b32 s50, s50, s51
        s_lshr_b32 s51, s27, 3
        s_add_u32 s50, s50, s51
        """ % (self.nb_lo, self.nb_hi, self.nb_lo // 8, self.nb_hi // 8, self.nb_lo // 2))

    def args_ready(self):
        self.a("s_waitcnt lgkmcnt(0)")
        self.a("s_load_dwordx2 s[30:31], s[24:25], %d" % EPOCH)

    def role_l(self):
        a = self.a
        VZ, V1 = 1, 2
        a(".p2align 8")
        a("L_L:")
        a("v_mov_b32 v1, 0\nv_mov_b32 v2, 1")
        self.role = "L"
        KO, VO = 8, 12
        WOA, WOB, W2A, W1A = 16, 17, 18, 20
        piece = 0x8000 if self.ileave else 0x400
        a("""
        s_lshl_b32 s40, s26, 24
        s_add_u32 s40, s40, 0xF00000
        s_lshl_b32 s41, s27, %d
        s_add_u32 s40, s40, s41               ; first piece of this chunk
        v_lshrrev_b32 v3, 4, v0               ; q4
        v_and_b32 v4, 15, v0                  ; pos
        v_xor_b32 v5, v4, v3
        v_lshl_add_u32 v6, v3, 8, s40
        """ % (10 if self.ileave else 15))
        for q in range(4):
            a("v_xor_b32 v7, %d, v5" % (4 * q))
            a("v_lshl_add_u32 v7, v7, 4, v6")
            a("v_add_u32 %s, %d, v7" % (vr(KO + q), 2 * q * piece))

        def rest_addresses():
            a("v_lshlrev_b32 v7, 1, v3")
            a("v_xor_b32 v7, v7, v4")
            a("v_lshl_add_u32 %s, v7, 4, v6" % vr(VO))
            a("v_xor_b32 v7, 8, v7")
            a("v_lshl_add_u32 v7, v7, 4, v6")
            a("v_add_u32 %s, %d, v7" % (vr(VO + 1), 2 * piece))
            a("""
            s_lshl_b32 s42, s26, 9                ; 512 g
            s_lshr_b32 s43, s27, 3
            s_lshl_b32 s43, s43, 7                ; 128 h
            s_add_u32 s42, s42, s43
            s_bfe_u32 s43, s27, 0x20001
            s_lshl_b32 s43, s43, 5
            s_add_u32 s42, s42, s43
            s_and_b32 s43, s27, 1
            s_lshl_b32 s43, s43, 3
            s_add_u32 s42, s42, s43               ; first Wo row
            s_lshl_b32 s42, s42, 10
            v_lshlrev_b32 v6, 4, v4               ; 16 n
            v_lshl_add_u32 v7, v3, 11, v6
            v_add_u32 %s, s42, v7
            v_add_u32 %s, 0x4000, %s
            s_lshl_b32 s42, s50, 6
            s_and_b32 s43, s27, 7
            s_lshl_b32 s43, s43, 3
            s_add_u32 s42, s42, s43               ; first W2 row = 64 cbg + 8 j
            s_lshl_b32 s42, s42, 10
            v_lshl_add_u32 v7, v3, 11, v6         ; + 2 gg rows
            v_add_u32 %s, s42, v7
            """ % (vr(WOA), vr(WOB), vr(WOA), vr(W2A)))

        def m0(x):
            return "s_movk_i32 m0, 0x%x\n" % x if x < 0x8000 else "s_mov_b32 m0, 0x%x\n" % x

        def seq(isb):
            ops, flags, gates = [], [], []
            for grp in self.order:
                if grp == "|":
                    gates.append(len(ops))
                elif grp == "k":
                    for w in range(4):
                        for q in range(4):
                            for t in range(2):
                                p = 8 * w + 2 * q + t
                                ops.append((m0(L_K + 1024 * p), "global_load_lds_dwordx4 %s, %s %s" % (vr(KO + q), sp(S_K), self.nt_kv),
                                            "v_add_u32 %s, 0x%x, %s" % (vr(KO + q), (1 if t == 0 else 7) * piece, vr(KO + q))))
                    flags.append((len(ops), F_K))
                elif grp == "v":
                    for w in range(4):
                        for i in range(8):
                            b = (i >> 1) & 1
                            ops.append((m0(L_V + 1024 * (8 * w + i)), "global_load_lds_dwordx4 %s, %s %s" % (vr(VO + b), sp(S_V), self.nt_kv),
                                        "v_add_u32 %s, 0x%x, %s" % (vr(VO + b), (1 if (i & 1) == 0 else 3) * piece, vr(VO + b))))
                        flags.append((len(ops), F_V))
                elif grp == "f":
                    for i in range(4):
                        ops.append(("", "global_load_dwordx4 v[24:27], v23, %s offset:%d sc1" % (sp(S_WS), 1024 * i), ""))
                    ops.append(("", "global_load_dwordx4 v[24:27], v28, %s sc1" % sp(S_WS), ""))
                elif grp == "o":
                    for w in range(4):
                        for i in range(4):
                            off = 256 * w + 1024 * (i >> 1)
                            ops.append((m0(L_WO + (4 * w + i) * 1024 - off),
                                        "global_load_lds_dwordx4 %s, %s offset:%d %s" % (vr(WOA if (i & 1) == 0 else WOB), sp(S_WO), off, self.nt_w), ""))
                    flags.append((len(ops), F_WO))
                elif grp == "2" and isb:
                    for w in range(4):
                        for i in range(2):
                            off = 256 * w + 1024 * i
                            ops.append((m0(L_W2 + (2 * w + i) * 1024 - off),
                                        "global_load_lds_dwordx4 %s, %s offset:%d %s" % (vr(W2A), sp(S_W2), off, self.nt_w), ""))
                    flags.append((len(ops), F_W2))
                elif grp == "1" and isb:
                    for i in range(8):
                        ops.append((m0(L_W1 + 1024 * i), "global_load_lds_dwordx4 %s, %s %s" % (vr(W1A), sp(S_W1), self.nt_w),
                                    "v_add_u32 %s, 3584, %s" % (vr(W1A), vr(W1A))))
                    flags.append((len(ops), F_W1))
            return ops, flags, gates

        W = self.window
        self.args_ready()
        self.stamp(1)
        assert self.order[0] == "k"
        ops0, _, _ = seq(False)
        NE = min(W, 5)
        for j in range(NE):
            pre, ld, post = ops0[j]
            a(pre)
            a("s_nop 0")
            a(ld)
            a(post)
        a("s_barrier")
        self.mlp_scalars()
        rest_addresses()
        if "f" in self.order:
            a("""
            s_lshl_b32 s41, s26, 17
            s_lshl_b32 s42, s27, 12
            s_add_u32 s41, s41, s42
            s_add_u32 s41, s41, %d
            v_lshl_add_u32 v23, v0, 4, s41
            s_lshl_b32 s41, s26, 11
            s_lshr_b32 s42, s27, 3
            s_lshl_b32 s42, s42, 9
            s_add_u32 s41, s41, s42
            s_add_u32 s41, s41, %d
            v_and_b32 v28, 31, v0
            v_lshl_add_u32 v28, v28, 4, s41
            """ % (H2, ST))

        def with_values(flags):
            out, nv = [], 0
            for (e, f) in flags:
                if f == F_V:
                    nv += 1
                    out.append((e, f, nv))
                else:
                    out.append((e, f, 1))
            return out

        def run(ops, flags, gates, W, start, labels=None, check_to=None, first=False):
            n = len(ops)
            pend = [f for f in flags if f[0] > max(0, start - (W - 1)) or first]
            hold = self.hold
            for j in range(start, n):
                pre, ld, post = ops[j]
                if labels and j in labels:
                    a(labels[j] + ":")
                if hold and j == hold:
                    while pend and pend[0][0] <= j:
                        e, f, val = pend.pop(0)
                        a("s_waitcnt vmcnt(%d)" % (j - e))
                        self.flag_set(f, val, VZ, 22)
                    self.flag_wait(F_QPUB, 1, VZ, 21)
                    if isb_cur[0] and self.order[0] == "1":
                        self.flag_wait(F_HPUB, 1, VZ, 21)
                    self.stamp(4)
                if j in gates:
                    while pend and pend[0][0] <= j:
                        e, f, val = pend.pop(0)
                        a("s_waitcnt vmcnt(%d)" % (j - e))
                        self.flag_set(f, val, VZ, 22)
                    self.flag_wait(F_OPUB, 4, VZ, 21)
                chk = check_to is not None and j in check_to
                if chk:
                    a("ds_read_b32 v21, %s offset:%d" % (vr(VZ), F_Q))
                if j >= W and not any(g <= j < g + W for g in gates):
                    a("s_waitcnt vmcnt(%d)" % (W - 1))
                    landed = j - (W - 1)
                    while pend and pend[0][0] <= landed:
                        e, f, val = pend.pop(0)
                        self.flag_set(f, val, VZ, 22)
                if chk:
                    a("s_waitcnt lgkmcnt(0)")
                    a("v_readfirstlane_b32 s%d, v21" % S_TMP)
                    a("s_cmp_lg_u32 s%d, 0" % S_TMP)
                    a("s_cbranch_scc1 %s" % check_to[j])
                a(pre)
                a("s_nop 0")
                a(ld)
                if post:
                    a(post)
            self.stamp(2)
            for (e, f, val) in pend:
                a("s_waitcnt vmcnt(%d)" % (n - e))
                self.flag_set(f, val, VZ, 22)
            self.stamp(3)
            self.end(3)

        isb_cur = [False]

        def emit(isb):
            isb_cur[0] = isb
            ops, flags, gates = seq(isb)
            flags = with_values(flags)
            n = len(ops)
            if not self.w2:
                run(ops, flags, gates, W, NE, first=True)
                return
            points = [j for j in range(W, n - 8) if (j - W) % self.chk == 0]
            labels = {j: a.newlabel("FAST") for j in points}
            run(ops, flags, gates, W, NE, check_to=labels, first=True)
            run(ops, flags, gates, self.w2, points[0], labels=labels)

        Lb = a.newlabel("LB")
        a("s_cmp_lg_u32 s%d, 0" % S_ISB)
        a("s_cbranch_scc1 %s" % Lb)
        emit(False)
        a(Lb + ":")
        emit(True)

    def role_a(self):
        a = self.a
        VZ, V1 = 1, 2
        T = 5
        a("L_A:")
        a("v_mov_b32 v1, 0\nv_mov_b32 v2, 1")
        self.role = "A"
        a("s_barrier")
        self.args_ready()
        a("s_setprio 1")
        KO, VO, QA = 16, 20, 24
        a("""
        v_lshrrev_b32 v3, 4, v0               ; gg
        v_and_b32 v4, 15, v0                  ; m
        s_lshl_b32 s41, s28, 13
        v_and_b32 v5, 3, v4                   ; b = m & 3
        v_lshrrev_b32 v6, 2, v4               ; a = m >> 2
        v_lshlrev_b32 v7, 11, v6
        v_lshl_add_u32 v7, v5, 8, v7
        v_xor_b32 v8, v3, v5
        v_lshl_add_u32 v7, v8, 4, v7
        v_add_u32 v7, s41, v7
        """)
        for s in range(4):
            a("v_xor_b32 v8, %d, v6" % s)
            a("v_lshl_add_u32 %s, v8, 6, v7" % vr(KO + s))
        a("v_mul_u32_u24 v8, 320, v6")
        a("v_lshl_add_u32 %s, v3, 4, v8" % vr(QA))
        a("""
        v_lshrrev_b32 v8, 2, v4               ; r
        v_and_b32 v9, 3, v4                   ; cq
        v_and_b32 v10, 1, v3
        v_lshl_or_b32 v10, v10, 2, v8         ; sigma
        v_lshl_add_u32 v11, v3, 3, v8         ; 8 gg + r
        v_lshlrev_b32 v11, 8, v11
        v_lshl_add_u32 v11, v9, 3, v11
        v_add_u32 v11, %d, v11
        s_lshl_b32 s42, s28, 1
        """ % L_V)
        for u in range(2):
            a("s_add_u32 s43, s42, %d" % u)
            a("v_xor_b32 v12, s43, v10")
            a("v_lshl_add_u32 %s, v12, 5, v11" % vr(VO + u))
        WOA = 22
        a("s_lshl_b32 s42, s28, 12")
        a("s_add_u32 s42, s42, %d" % L_WO)
        a("v_lshl_add_u32 %s, v0, 4, s42" % vr(WOA))
        SEL = 28
        self.selectors(SEL, T, both_parities=False)
        self.tags()
        TG = 36
        a("v_mov_b32 %s, s%d" % (vr(TG + 2), S_T))
        a("v_mov_b32 %s, s%d" % (vr(TG + 3), S_T + 1))
        OA, SA, STA = 40, 41, 43
        a("""
        s_lshl_b32 s42, s26, 17               ; g * 131072
        s_lshl_b32 s43, s27, 7                ; c * 128
        s_add_u32 s42, s42, s43
        v_and_b32 v12, 7, v0
        v_lshlrev_b32 v12, 4, v12             ; slot * 16
        v_bfe_u32 v13, v0, 3, 1               ; b
        v_lshl_add_u32 v13, v3, 3, v13        ; 8 h + b
        s_lshl_b32 s43, s28, 1
        v_add_u32 v13, s43, v13               ; + 2 w
        v_lshl_add_u32 v13, v13, 12, v12
        s_add_u32 s43, s42, %d
        v_add_u32 %s, s43, v13
        v_lshrrev_b32 v13, 3, v0
        s_lshl_b32 s43, s28, 3
        v_add_u32 v13, s43, v13               ; 8 w + (l >> 3)
        v_lshl_add_u32 v14, v13, 12, v12
        s_add_u32 s43, s42, %d
        v_add_u32 %s, s43, v14
        s_lshl_b32 s42, s26, 11
        s_lshl_b32 s43, s27, 4
        s_add_u32 s42, s42, s43
        s_add_u32 s42, s42, %d
        v_lshl_add_u32 %s, v3, 9, s42
        """ % (H2, vr(OA), H3S, vr(SA), ST, vr(STA)))
        MXW, PWA, PRA, MRA, ORA = 25, 26, 27, 45, 46
        a("""
        v_lshrrev_b32 v12, 2, v4
        v_lshlrev_b32 v12, 4, v12             ; head (l & 15) >> 2, * 16
        s_lshl_b32 s42, s28, 2
        v_add_u32 %s, s42, v12                ; + wave * 4
        v_lshlrev_b32 %s, 4, v0
        s_lshl_b32 s42, s28, 10
        v_add_u32 %s, s42, %s
        v_lshlrev_b32 %s, 4, v3
        v_lshlrev_b32 %s, 4, v3
        """ % (vr(MXW), vr(PRA), vr(PWA), vr(PRA), vr(MRA), vr(ORA)))
        OD = 112
        KF = 48
        QF = 80
        WO = 96
        self.flag_wait(F_K, 1, VZ, T, sleep=2)
        self.stamp(1)
        for t in range(2):
            for s in range(4):
                a("ds_read_b128 %s, %s offset:%d" % (vr(KF + 16 * t + 4 * s, 4), vr(KO + s), L_K + 1024 * t))
        self.flag_wait(F_Q, 1, VZ, T, sleep=1)
        self.stamp(2)
        for s in range(4):
            a("ds_read_b128 %s, %s offset:%d" % (vr(QF + 4 * s, 4), vr(QA), L_Q + 64 * s))
        self.read_mode(VZ, T)
        SC = 112
        for s in range(4):
            for t in range(2):
                a("v_mfma_f32_16x16x32_bf16 %s, %s, %s, %s" % (vr(SC + 4 * t, 4), vr(KF + 16 * t + 4 * s, 4), vr(QF + 4 * s, 4), "0" if s == 0 else vr(SC + 4 * t, 4)))
        a("s_nop 7")
        if self.mimic:
            for i in range(4):
                a("v_cvt_pk_bf16_f32 %s, %s, %s" % (vr(T + i), vr(SC + 2 * i), vr(SC + 2 * i + 1)))
            for i in range(4):
                a("v_lshlrev_b32 %s, 16, %s" % (vr(SC + 2 * i), vr(T + i)))
                a("v_and_b32 %s, 0xffff0000, %s" % (vr(SC + 2 * i + 1), vr(T + i)))
        for i in range(8):
            a("v_mul_f32 %s, 0x%x, %s" % (vr(SC + i), SCALE, vr(SC + i)))
        if self.mimic:
            for i in range(4):
                a("v_cvt_pk_bf16_f32 %s, %s, %s" % (vr(T + i), vr(SC + 2 * i), vr(SC + 2 * i + 1)))
            for i in range(4):
                a("v_lshlrev_b32 %s, 16, %s" % (vr(SC + 2 * i), vr(T + i)))
                a("v_and_b32 %s, 0xffff0000, %s" % (vr(SC + 2 * i + 1), vr(T + i)))
        MX = 44
        a("v_max3_f32 %s, %s, %s, %s" % (vr(T), vr(SC), vr(SC + 1), vr(SC + 2)))
        a("v_max3_f32 %s, %s, %s, %s" % (vr(T + 1), vr(SC + 3), vr(SC + 4), vr(SC + 5)))
        a("v_max3_f32 %s, %s, %s, %s" % (vr(T), vr(T), vr(SC + 6), vr(SC + 7)))
        a("v_max_f32 %s, %s, %s" % (vr(MX), vr(T), vr(T + 1)))
        self.xor_reduce("v_max_f32", [MX], [16, 32], T)
        a("v_mov_b32 %s, 0x%x" % (vr(T + 8), LOG2E))
        a("v_mul_f32 %s, %s, %s" % (vr(T + 9), vr(MX), vr(T + 8)))
        a("s_mov_b64 exec, 0x1111")
        a("ds_write_b32 %s, %s offset:%d" % (vr(MXW), vr(MX), L_MX))
        a("s_mov_b64 exec, -1")
        for i in range(8):
            a("v_fma_f32 %s, %s, %s, -%s" % (vr(SC + i), vr(SC + i), vr(T + 8), vr(T + 9)))
        for i in range(8):
            a("v_exp_f32 %s, %s" % (vr(SC + i), vr(SC + i)))
        PF = 48
        a("s_nop 0")
        for i in range(4):
            a("v_cvt_pk_bf16_f32 %s, %s, %s" % (vr(T + 1 + i), vr(SC + 2 * i), vr(SC + 2 * i + 1)))
        a("ds_write_b128 %s, %s offset:%d" % (vr(PWA), vr(T + 1, 4), L_P))
        self.flag_add(F_P, VZ, V1)
        self.flag_wait(F_P, 4, VZ, T + 6)
        for ks in range(4):
            a("ds_read_b128 %s, %s offset:%d" % (vr(PF + 4 * ks, 4), vr(PRA), L_P + 1024 * ks))
        FW = 120
        a("ds_read_b128 %s, %s offset:%d" % (vr(FW, 4), vr(MRA), L_MX))
        self.stamp(3)
        a("s_waitcnt lgkmcnt(0)")
        a("v_max3_f32 %s, %s, %s, %s" % (vr(MX), vr(FW), vr(FW + 1), vr(FW + 2)))
        a("v_max_f32 %s, %s, %s" % (vr(MX), vr(MX), vr(FW + 3)))
        a("v_mul_f32 %s, %s, %s" % (vr(T + 9), vr(MX), vr(T + 8)))
        for i in range(4):
            a("v_fma_f32 %s, %s, %s, -%s" % (vr(FW + i), vr(FW + i), vr(T + 8), vr(T + 9)))
        for i in range(4):
            a("v_exp_f32 %s, %s" % (vr(FW + i), vr(FW + i)))
        D = 128
        TS = 124
        Lns = a.newlabel("NS")
        a("s_cmp_lg_u32 s28, 0")
        a("s_cbranch_scc1 %s" % Lns)
        ON = 64
        for t in range(4):
            a("v_mov_b32 %s, 0x3f803f80" % vr(ON + t))
        a("s_nop 1")
        for ks in range(4):
            a("v_mfma_f32_16x16x32_bf16 %s, %s, %s, 0" % (vr(D + 4 * ks, 4), vr(PF + 4 * ks, 4), vr(ON, 4)))
        a("v_mov_b32 %s, %s" % (vr(TS), vr(MX)))
        a("v_mov_b32 %s, %s" % (vr(TS + 2), vr(TG + 2)))
        a("v_mov_b32 %s, %s" % (vr(TS + 3), vr(TG + 3)))
        a("s_nop 4")
        a("v_mul_f32 %s, %s, %s" % (vr(TS + 1), vr(FW), vr(D)))
        for ks in range(1, 4):
            a("v_fmac_f32 %s, %s, %s" % (vr(TS + 1), vr(FW + ks), vr(D + 4 * ks)))
        a(Lns + ":")
        wo_first = self.order.index("o") < self.order.index("v")

        def read_wo():
            self.flag_wait(F_WO, 1, VZ, T, sleep=0 if not wo_first else 1)
            for i in range(4):
                a("ds_read_b128 %s, %s offset:%d" % (vr(WO + 4 * i, 4), vr(WOA), 1024 * i))
        if wo_first:
            read_wo()
        self.stamp(4)
        VF = 64
        S_V, S_I = 44, 45
        a("s_mov_b32 s%d, 0" % S_V)
        a("s_mov_b32 s%d, 0" % S_I)
        for ks in range(4):
            Lgo, Lsp = a.newlabel("V"), a.newlabel("V")
            a("s_cmp_ge_u32 s%d, %d" % (S_V, ks + 1))
            a("s_cbranch_scc1 %s" % Lgo)
            a("s_mov_b32 s%d, 0" % S_CNT)
            a(Lsp + ":")
            a("ds_read_b64 %s, %s offset:%d" % (vr(T + 1, 2), vr(VZ), F_V))
            a("s_add_u32 s%d, s%d, 1" % (S_CNT, S_CNT))
            a("s_cmp_gt_u32 s%d, %d" % (S_CNT, SPIN_MAX))
            a("s_cbranch_scc1 L_end")
            a("s_waitcnt lgkmcnt(0)")
            a("v_readfirstlane_b32 s%d, %s" % (S_V, vr(T + 1)))
            a("v_readfirstlane_b32 s%d, %s" % (S_I, vr(T + 2)))
            a("s_cmp_lt_u32 s%d, %d" % (S_V, ks + 1))
            a("s_cbranch_scc1 %s" % Lsp)
            a(Lgo + ":")
            if ks == 3:
                self.stamp(5)
            for u in range(2):
                for jh in range(2):
                    a("ds_read_b64_tr_b16 %s, %s offset:%d" % (vr(VF + 8 * ks + 4 * u + 2 * jh, 2), vr(VO + u), 8192 * ks + 1024 * jh))
            if ks:
                a("s_waitcnt lgkmcnt(4)")
                for u in range(2):
                    a("v_mfma_f32_16x16x32_bf16 %s, %s, %s, 0" % (vr(D + 8 * (ks - 1) + 4 * u, 4), vr(PF + 4 * (ks - 1), 4), vr(VF + 8 * (ks - 1) + 4 * u, 4)))
        for u in range(2):
            a("s_waitcnt lgkmcnt(%d)" % (2 - 2 * u))
            a("v_mfma_f32_16x16x32_bf16 %s, %s, %s, 0" % (vr(D + 24 + 4 * u, 4), vr(PF + 12, 4), vr(VF + 24 + 4 * u, 4)))
        a("v_mul_f32 %s, %s, %s" % (vr(TG), vr(FW), vr(D)))
        a("v_mul_f32 %s, %s, %s" % (vr(TG + 1), vr(FW), vr(D + 4)))
        for ks in range(1, 3):
            a("v_fmac_f32 %s, %s, %s" % (vr(TG), vr(FW + ks), vr(D + 8 * ks)))
            a("v_fmac_f32 %s, %s, %s" % (vr(TG + 1), vr(FW + ks), vr(D + 8 * ks + 4)))
        a("s_nop 1")
        a("v_fmac_f32 %s, %s, %s" % (vr(TG), vr(FW + 3), vr(D + 24)))
        a("v_fmac_f32 %s, %s, %s" % (vr(TG + 1), vr(FW + 3), vr(D + 28)))
        if self.sinit:
            Li = a.newlabel("I")
            a("s_cmp_ge_u32 s%d, 2" % S_I)
            a("s_cbranch_scc1 %s" % Li)
            self.flag_wait(F_INIT, 2, VZ, T)
            a(Li + ":")
        self.store_mode(OA, TG)
        Lns = a.newlabel("NS")
        a("s_cmp_lg_u32 s28, 0")
        a("s_cbranch_scc1 %s" % Lns)
        a("s_mov_b32 s42, 0x00010001")
        a("s_mov_b32 s43, 0x00010001")
        a("s_mov_b64 exec, s[42:43]")
        self.store_mode(STA, TS)
        a("s_mov_b64 exec, -1")
        a(Lns + ":")
        self.flag_add(F_OPUB, VZ, V1)
        self.stamp(6)
        if not wo_first:
            read_wo()
        AF = 64
        OG = 8
        Lsp = a.newlabel("O")
        a("s_mov_b32 s%d, 0" % S_CNT)
        a(Lsp + ":")
        a("ds_read_b128 %s, %s offset:%d" % (vr(OG, 4), vr(ORA), L_O))
        a("s_add_u32 s%d, s%d, 1" % (S_CNT, S_CNT))
        a("s_cmp_gt_u32 s%d, %d" % (S_CNT, SPIN_MAX))
        a("s_cbranch_scc1 L_end")
        a("s_waitcnt lgkmcnt(0)")
        a("v_and_b32 %s, %s, %s" % (vr(OG + 1), vr(OG + 1), vr(OG + 3)))
        a("v_cmp_ne_u32 vcc, 1, %s" % vr(OG + 1))
        a("s_cbranch_vccnz %s" % Lsp)
        for i in range(4):
            src = OG + 2 * (i >> 1)
            for t in range(4):
                a("v_perm_b32 %s, %s, %s, %s" % (vr(AF + 4 * i + t), vr(src), vr(src), vr(SEL + 4 * (i & 1) + t)))
            if i:
                a("v_mfma_f32_16x16x32_bf16 %s, %s, %s, %s" % (vr(OD, 4), vr(AF + 4 * (i - 1), 4), vr(WO + 4 * (i - 1), 4), "0" if i == 1 else vr(OD, 4)))
        a("s_nop 1")
        a("v_mfma_f32_16x16x32_bf16 %s, %s, %s, %s" % (vr(OD, 4), vr(AF + 12, 4), vr(WO + 12, 4), vr(OD, 4)))
        a("s_nop 7")
        a("v_permlane32_swap_b32 %s, %s" % (vr(OD), vr(OD + 2)))
        a("v_permlane32_swap_b32 %s, %s" % (vr(OD + 1), vr(OD + 3)))
        a("v_mov_b32 %s, %s" % (vr(TG), vr(OD)))
        a("v_mov_b32 %s, %s" % (vr(TG + 1), vr(OD + 1)))
        self.store_mode(SA, TG)
        if self.sgate:
            self.flag_add(F_SPUB, VZ, V1)
        self.stamp(7)
        self.end(T)

    def role_c0(self):
        a = self.a
        VZ, V1 = 1, 2
        X = 4
        W = 40
        AF = 104
        SEL = 168
        ACC = 176
        T = 180
        self.role = "C0"
        if self.code_pf:
            a("s_getpc_b64 s[52:53]")
            a("L_pc:")
            a("s_lshl_b32 s54, s27, 10")
            a("v_add_u32 v3, s54, v37")
            a("v_min_u32 v3, L_code_end-L_pc-16, v3")
            a("global_load_dwordx4 v[188:191], v3, s[52:53]")
        a("""
        s_lshl_b32 s41, s40, 8
        v_lshl_add_u32 v38, v0, 2, s41
        s_lshl_b32 s41, s40, 20               ; rb * 128 * 8192
        s_lshl_b32 s42, s26, 10               ; g * 512 * 2
        s_add_u32 s41, s41, s42
        s_and_b32 s42, s27, 7
        s_lshl_b32 s42, s42, 7                ; cb * 128
        s_add_u32 s41, s41, s42
        v_lshrrev_b32 v3, 3, v0
        v_lshlrev_b32 v3, 17, v3              ; 16 rows * 8192
        v_and_b32 v36, 7, v0
        v_lshl_add_u32 v3, v36, 4, v3
        v_add_u32 v3, s41, v3
        s_mov_b32 m0, %d
        s_movk_i32 s41, 15
        s_waitcnt lgkmcnt(0)
        global_load_dwordx4 %s, v37, %s
        global_load_dword %s, v38, %s
        L_wq:
        global_load_lds_dwordx4 v3, %s %s
        v_add_u32 v3, 0x2000, v3
        s_addk_i32 m0, 0x400
        s_sub_u32 s41, s41, 1
        s_cbranch_scc0 L_wq
        s_barrier
        L_C0_rest:
        s_setprio 3
        s_load_dwordx2 s[30:31], s[24:25], %d
        v_mov_b32 v1, 0
        v_mov_b32 v2, 1
        """ % (L_W1, vr(X, 4), sp(S_X), vr(X + 4), sp(S_X), sp(S_WQ), self.nt_w, EPOCH))
        self.stamp(1)
        self.selectors(SEL, T, both_parities=True)
        a("s_waitcnt vmcnt(16)")
        self.stamp(2)
        self.layernorm_rows(X, L_XQ, VZ)
        self.tags()
        a("s_waitcnt lgkmcnt(0)")
        self.stamp(3)
        XN = X + 8
        a("v_add_u32 v37, %d, v37" % L_W1)
        for i in range(16):
            for t in range(4):
                a("v_perm_b32 %s, %s, %s, %s" % (vr(AF + 4 * i + t), vr(XN + (i >> 1)), vr(XN + (i >> 1)), vr(SEL + 4 * (i & 1) + t)))
        for q in range(4):
            a("s_waitcnt vmcnt(%d)" % (12 - 4 * q))
            for i in range(4 * q, 4 * q + 4):
                a("ds_read_b128 %s, v37 offset:%d" % (vr(W + 4 * i, 4), 1024 * i))
            if q:
                for i in range(4 * q - 4, 4 * q):
                    a("s_waitcnt lgkmcnt(%d)" % (4 + (4 * q - 1 - i)))
                    a("v_mfma_f32_16x16x32_bf16 %s, %s, %s, %s" % (vr(ACC, 4), vr(AF + 4 * i, 4), vr(W + 4 * i, 4), "0" if i == 0 else vr(ACC, 4)))
        for i in range(12, 16):
            a("s_waitcnt lgkmcnt(%d)" % (15 - i))
            a("v_mfma_f32_16x16x32_bf16 %s, %s, %s, %s" % (vr(ACC, 4), vr(AF + 4 * i, 4), vr(W + 4 * i, 4), vr(ACC, 4)))
        a("s_nop 7")
        a("v_permlane32_swap_b32 %s, %s" % (vr(ACC), vr(ACC + 2)))
        a("v_permlane32_swap_b32 %s, %s" % (vr(ACC + 1), vr(ACC + 3)))
        a("s_nop 1")
        a("v_add_f32_dpp %s, %s, %s row_ror:8 row_mask:0xf bank_mask:0xf" % (vr(ACC), vr(ACC + 2), vr(ACC)))
        a("v_add_f32_dpp %s, %s, %s row_ror:8 row_mask:0xf bank_mask:0xf" % (vr(ACC + 1), vr(ACC + 3), vr(ACC + 1)))
        self.stamp(4)
        a("v_mov_b32 %s, s%d" % (vr(ACC + 2), S_T1X))
        a("v_mov_b32 %s, s%d" % (vr(ACC + 3), S_T1X + 1))
        a("""
        s_lshl_b32 s41, s26, 14               ; g * 16384
        s_lshr_b32 s42, s27, 3
        s_lshl_b32 s42, s42, 12               ; rb * 4096
        s_add_u32 s41, s41, s42
        s_and_b32 s42, s27, 7
        s_lshl_b32 s42, s42, 9                ; cb * 512
        s_add_u32 s41, s41, s42
        s_add_u32 s41, s41, %d
        v_lshrrev_b32 v3, 4, v0               ; 2 hi + g'
        v_lshlrev_b32 v3, 3, v3
        v_and_b32 v36, 7, v0
        v_add_u32 v3, v3, v36                 ; pos = 16 hi + 8 g' + n
        v_lshl_add_u32 v3, v3, 4, s41
        v_add_u32 v37, %d, v3
        """ % (H1, REGB))
        a("s_mov_b32 s42, 0x00ff00ff")
        a("s_mov_b32 s43, 0x00ff00ff")
        a("s_mov_b64 exec, s[42:43]")
        a("global_store_dwordx4 v3, %s, %s" % (vr(ACC, 4), sp(S_WS)))
        a("s_mov_b64 exec, -1")
        self.flag_add(F_QPUB, VZ, V1)
        a("s_mov_b64 exec, s[42:43]")
        a("global_store_dwordx4 v37, %s, %s sc1" % (vr(ACC, 4), sp(S_WS)))
        a("s_mov_b64 exec, -1")
        self.stamp(5)
        SA, OA = 4, 5
        G = 8
        a("""
        s_lshl_b32 s41, s26, 11               ; g * 2048
        s_lshr_b32 s42, s27, 3
        s_lshl_b32 s42, s42, 9                ; head * 512
        s_add_u32 s41, s41, s42
        s_add_u32 s41, s41, %d
        v_lshrrev_b32 v3, 3, v0
        v_lshl_add_u32 %s, v3, 4, s41
        s_lshl_b32 s41, s26, 17
        s_lshl_b32 s42, s27, 12
        s_add_u32 s41, s41, s42
        s_add_u32 s41, s41, %d
        v_lshl_add_u32 %s, v0, 4, s41
        """ % (ST, vr(SA), H2, vr(OA)))
        a("v_lshlrev_b32 v6, 3, v0")
        self.flag_wait(F_Q, 1, VZ, T, sleep=2)
        self.read_mode(VZ, T)
        self.stamp(6)
        GO = 40
        self.flag_wait(F_OPUB, self.ogate, VZ, T, sleep=1)
        self.stamp(7)
        self.poll([(G + 4 * i, SA, 128 * i) for i in range(4)] + [(GO + 4 * i, OA, 1024 * i) for i in range(4)], S_MB, cnt=12)
        self.stamp(8)
        MX = 24
        a("v_max3_f32 %s, %s, %s, %s" % (vr(MX), vr(G), vr(G + 4), vr(G + 8)))
        a("v_max_f32 %s, %s, %s" % (vr(MX), vr(MX), vr(G + 12)))
        self.xor_reduce("v_max_f32", [MX], [8, 16, 32], T)
        WT = 26
        for i in range(4):
            a("v_sub_f32 %s, %s, %s" % (vr(WT + i), vr(G + 4 * i), vr(MX)))
        for i in range(4):
            a("v_mul_f32 %s, 0x%x, %s" % (vr(WT + i), LOG2E, vr(WT + i)))
        for i in range(4):
            a("v_exp_f32 %s, %s" % (vr(WT + i), vr(WT + i)))
        LS, A0, A1 = 25, 30, 31
        a("s_nop 0")
        a("v_mul_f32 %s, %s, %s" % (vr(A0), vr(WT), vr(GO)))
        a("v_mul_f32 %s, %s, %s" % (vr(A1), vr(WT), vr(GO + 1)))
        a("v_mul_f32 %s, %s, %s" % (vr(LS), vr(WT), vr(G + 1)))
        for i in range(1, 4):
            a("v_fmac_f32 %s, %s, %s" % (vr(A0), vr(WT + i), vr(GO + 4 * i)))
            a("v_fmac_f32 %s, %s, %s" % (vr(A1), vr(WT + i), vr(GO + 4 * i + 1)))
            a("v_fmac_f32 %s, %s, %s" % (vr(LS), vr(WT + i), vr(G + 4 * i + 1)))
        self.xor_reduce("v_add_f32", [LS, A0, A1], [8, 16, 32], T)
        a("v_rcp_f32 %s, %s" % (vr(T), vr(LS)))
        a("s_nop 0")
        a("v_fma_f32 %s, -%s, %s, 1.0" % (vr(T + 1), vr(T), vr(LS)))
        a("v_fmac_f32 %s, %s, %s" % (vr(T), vr(T + 1), vr(T)))
        a("v_mul_f32 %s, %s, %s" % (vr(A0), vr(A0), vr(T)))
        a("v_mul_f32 %s, %s, %s" % (vr(A1), vr(A1), vr(T)))
        a("v_cvt_pk_bf16_f32 %s, %s, %s" % (vr(A0), vr(A0), vr(A1)))
        a("v_mov_b32 %s, 1" % vr(A1))
        a("s_mov_b64 exec, 0xff")
        a("ds_write_b64 %s, %s offset:%d" % (vr(6), vr(A0, 2), L_O))
        a("s_mov_b64 exec, -1")
        self.stamp(9)
        self.end(T)

    def role_c1(self):
        a = self.a
        VZ, V1 = 1, 2
        X = 4
        W = 40
        AF = 104
        SEL = 168
        ACC = 176
        T = 180
        a("L_C1:")
        a("v_mov_b32 v1, 0\nv_mov_b32 v2, 1")
        self.role = "C1"
        a("s_barrier")
        a("s_setprio 3")
        self.mlp_scalars()
        a("""
        v_lshlrev_b32 v42, 4, v0
        s_and_b32 s40, s27, 7
        s_lshl_b32 s41, s40, 7
        v_and_b32 v3, 31, v0
        v_lshl_add_u32 v43, v3, 2, s41
        """)
        a("""
        s_lshl_b32 s42, s50, 7
        s_and_b32 s43, s27, 7
        s_mul_i32 s43, s43, %d
        s_add_u32 s42, s42, s43
        v_lshrrev_b32 v6, 3, v0
        v_mul_u32_u24 v6, %d, v6
        v_and_b32 v7, 7, v0
        v_lshl_add_u32 v6, v7, 4, v6
        v_add_u32 v44, s42, v6
        """ % (64 * 3584, 8 * 3584))
        self.args_ready()
        a("""
        s_lshl_b32 s41, s26, 14
        s_lshl_b32 s42, s27, 9
        s_add_u32 s44, s41, s42
        s_add_u32 s44, s44, %d                ; own outbox of hidden-unit partials
        """ % HB)
        W1R = 48
        Lb = a.newlabel("B")
        a("s_cmp_lg_u32 s%d, 0" % S_ISB)
        a("s_cbranch_scc1 %s" % Lb)
        self.stamp(1)
        self.end(T)
        a(Lb + ":")
        a("global_load_dwordx4 %s, v42, %s" % (vr(X, 4), sp(S_X)))
        a("global_load_dword %s, v43, %s" % (vr(X + 4), sp(S_X)))
        for i in range(8):
            a("global_load_dwordx4 %s, v44, %s %s" % (vr(W1R + 4 * i, 4), sp(S_W1), self.nt_w))
            if i < 7:
                a("v_add_u32 v44, 3584, v44")
        a("s_waitcnt vmcnt(8)")
        self.stamp(1)
        self.role = "C1B"
        self.selectors(SEL, T, both_parities=True)
        self.layernorm_rows(X, L_XH, VZ, rows=64)
        self.tags()
        a("v_lshlrev_b32 v3, 4, v0")
        a("v_add_u32 v38, %d, v3" % L_W2)
        XN = X + 8
        for i in range(8):
            for t in range(4):
                a("v_perm_b32 %s, %s, %s, %s" % (vr(AF + 4 * i + t), vr(XN + (i >> 1)), vr(XN + (i >> 1)), vr(SEL + 4 * (i & 1) + t)))
        a("""
        v_lshrrev_b32 v3, 4, v0
        v_lshlrev_b32 v3, 3, v3
        v_and_b32 v36, 7, v0
        v_add_u32 v3, v3, v36
        v_lshl_add_u32 v3, v3, 4, s44
        s_lshr_b32 s41, s27, 3
        s_lshl_b32 s41, s41, 12               ; cbl * 4096
        s_lshl_b32 s42, s26, 14
        s_add_u32 s41, s41, s42
        s_and_b32 s42, s27, 7
        s_lshl_b32 s42, s42, 4                ; j * 16
        s_add_u32 s41, s41, s42
        s_add_u32 s41, s41, %d
        v_bfe_u32 v4, v0, 2, 3
        v_lshlrev_b32 v4, 9, v4               ; producer * 512
        v_and_b32 v5, 1, v0
        v_lshl_add_u32 v4, v5, 8, v4          ; 16 (q & 1) * 16
        v_bfe_u32 v5, v0, 1, 1
        v_lshl_add_u32 v4, v5, 7, v4          ; 8 (q >> 1) * 16
        v_add_u32 v4, s41, v4
        """ % HB)
        a("s_waitcnt vmcnt(0)")
        self.stamp(2)
        for i in range(8):
            a("v_mfma_f32_16x16x32_bf16 %s, %s, %s, %s" % (vr(ACC, 4), vr(AF + 4 * i, 4), vr(W1R + 4 * i, 4), "0" if i == 0 else vr(ACC, 4)))
        a("s_nop 7")
        a("v_permlane32_swap_b32 %s, %s" % (vr(ACC), vr(ACC + 2)))
        a("v_permlane32_swap_b32 %s, %s" % (vr(ACC + 1), vr(ACC + 3)))
        a("s_nop 1")
        a("v_add_f32_dpp %s, %s, %s row_ror:8 row_mask:0xf bank_mask:0xf" % (vr(ACC), vr(ACC + 2), vr(ACC)))
        a("v_add_f32_dpp %s, %s, %s row_ror:8 row_mask:0xf bank_mask:0xf" % (vr(ACC + 1), vr(ACC + 3), vr(ACC + 1)))
        self.stamp(3)
        a("v_mov_b32 %s, s%d" % (vr(ACC + 2), S_T))
        a("v_mov_b32 %s, s%d" % (vr(ACC + 3), S_T + 1))
        a("v_add_u32 v5, %d, v3" % REGB)
        a("s_mov_b32 s42, 0x00ff00ff")
        a("s_mov_b32 s43, 0x00ff00ff")
        a("s_mov_b64 exec, s[42:43]")
        a("global_store_dwordx4 v3, %s, %s" % (vr(ACC, 4), sp(S_WS)))
        a("s_mov_b64 exec, -1")
        self.flag_add(F_HPUB, VZ, V1)
        a("s_mov_b64 exec, s[42:43]")
        a("global_store_dwordx4 v5, %s, %s sc1" % (vr(ACC, 4), sp(S_WS)))
        a("s_mov_b64 exec, -1")
        G = 8
        self.selectors(SEL, T, both_parities=False)
        self.flag_wait(F_Q, 1, VZ, T, sleep=1)
        self.read_mode(VZ, T)
        self.poll([(G, 4, 0)], S_MB)
        self.stamp(4)
        self.xor_reduce("v_add_f32", [G, G + 1], ["r4", 8, 16], T)
        a("v_max_f32 %s, 0, %s" % (vr(G), vr(G)))
        a("v_max_f32 %s, 0, %s" % (vr(G + 1), vr(G + 1)))
        a("v_cvt_pk_bf16_f32 %s, %s, %s" % (vr(G), vr(G), vr(G + 1)))
        a("s_nop 1")
        for r in range(4):
            a("v_mov_b32_dpp %s, %s quad_perm:[%d,%d,%d,%d] row_mask:0x%x bank_mask:0xf" % (vr(G + 4), vr(G), r, r, r, r, 1 << r))
            if r < 3:
                a("s_nop 1")
        a("""
        s_lshl_b32 s42, s26, 17
        s_lshl_b32 s43, s27, 7
        s_add_u32 s42, s42, s43
        s_add_u32 s42, s42, %d
        v_lshrrev_b32 v3, 3, v0
        v_lshlrev_b32 v3, 12, v3
        v_lshl_add_u32 v3, v36, 4, v3
        v_add_u32 v3, s42, v3
        """ % H3G)
        for i in range(2):
            for t in range(4):
                a("v_perm_b32 %s, %s, %s, %s" % (vr(AF + 4 * i + t), vr(G + 4), vr(G + 4), vr(SEL + 4 * i + t)))
        self.flag_wait(F_W2, 1, VZ, T, sleep=1)
        for i in range(8):
            a("ds_read_b128 %s, v38 offset:%d" % (vr(W + 4 * i, 4), 1024 * i))
        for w in range(4):
            for i in range(2):
                a("s_waitcnt lgkmcnt(%d)" % (7 - (2 * w + i)))
                a("v_mfma_f32_16x16x32_bf16 %s, %s, %s, %s" % (vr(AF + 16 + 4 * w, 4), vr(AF + 4 * i, 4), vr(W + 8 * w + 4 * i, 4), "0" if i == 0 else vr(AF + 16 + 4 * w, 4)))
        a("s_nop 7")
        for w in range(4):
            d = AF + 16 + 4 * w
            a("v_permlane32_swap_b32 %s, %s" % (vr(d), vr(d + 2)))
            a("v_permlane32_swap_b32 %s, %s" % (vr(d + 1), vr(d + 3)))
        a("s_nop 0")
        for w in range(4):
            d = AF + 16 + 4 * w
            a("v_mov_b32 %s, s%d" % (vr(d + 2), S_T))
            a("v_mov_b32 %s, s%d" % (vr(d + 3), S_T + 1))
        for w in range(4):
            self.store_mode(3, AF + 16 + 4 * w)
            if w < 3:
                a("v_add_u32 v3, 0x8000, v3")
        self.stamp(5)
        self.end(T)

    def role_c2(self):
        a = self.a
        VZ, V1 = 1, 2
        T = 100
        G = 8
        a("L_C2:")
        a("v_mov_b32 v1, 0\nv_mov_b32 v2, 1")
        self.role = "C2"
        a("s_setprio 3")
        a("v_lshlrev_b32 v3, 2, v0")
        a("s_mov_b32 exec_hi, 0")
        a("ds_write_b32 v3, v1 offset:%d" % L_F)
        a("s_mov_b64 exec, -1")
        self.args_ready()
        a("s_barrier")
        self.mlp_scalars()
        XF, FA, OUTA = 80, 81, 82
        a("""
        s_max_u32 s45, s27, 28
        s_sub_u32 s45, s45, 28
        s_lshl_b32 s45, s45, 3
        s_add_u32 s45, s45, s26               ; column set c'
        s_lshr_b32 s41, s45, 3
        s_lshl_b32 s41, s41, 7                ; 128 (c' >> 3)
        s_and_b32 s42, s45, 1
        s_lshl_b32 s42, s42, 6                ; 64 (c' & 1)
        s_add_u32 s41, s41, s42
        s_bfe_u32 s42, s45, 0x10001
        s_lshl_b32 s42, s42, 2
        s_add_u32 s41, s41, s42
        s_bfe_u32 s42, s45, 0x10002
        s_lshl_b32 s42, s42, 1
        s_add_u32 s41, s41, s42
        v_and_b32 v3, 7, v0
        v_lshlrev_b32 v3, 3, v3
        v_add_u32 v3, s41, v3                 ; first column of the pair
        v_lshlrev_b32 %s, 1, v3               ; byte offset in x / out
        s_lshl_b32 s41, s45, 11
        s_add_u32 s41, s41, %d
        v_lshrrev_b32 v3, 3, v0
        v_lshlrev_b32 v3, 8, v3
        v_and_b32 v83, 7, v0
        v_lshl_add_u32 v3, v83, 4, v3
        v_add_u32 %s, s41, v3
        """ % (vr(OUTA), H3B, vr(FA)))
        Lnf = a.newlabel("NF")
        a("s_cmp_lt_u32 s27, 28")
        a("s_cbranch_scc1 %s" % Lnf)
        a("global_load_dword %s, %s, %s" % (vr(XF), vr(OUTA), sp(S_X)))
        a("global_load_dwordx4 v[84:87], %s, %s sc1" % (vr(FA), sp(S_WS)))
        a("global_load_dwordx4 v[88:91], %s, %s offset:128 sc1" % (vr(FA), sp(S_WS)))
        a(Lnf + ":")
        a("""
        s_lshl_b32 s41, s26, 14
        s_add_u32 s41, s41, %d
        v_lshl_add_u32 v4, v0, 4, s41
        v_add_u32 v5, 0x1000, v4
        v_add_u32 v6, 0x2000, v4
        v_add_u32 v7, 0x3000, v4
        """ % H1)
        qloads = [(G + 16 * hd + 4 * rb, 4 + rb, 1024 * hd) for hd in range(4) for rb in range(4)]
        self.tags()
        self.stamp(1)
        self.flag_wait(F_QPUB, 1, VZ, T, sleep=1)
        self.stamp(2)
        Lslow, Lgot = a.newlabel("Q"), a.newlabel("Q")
        if not self.force_global:
            self.poll(qloads, S_WS, tag=S_T1X, limit=A_TIMEOUT, on_timeout=Lslow, cnt=12)
            a("s_branch %s" % Lgot)
        a(Lslow + ":")
        a("s_waitcnt vmcnt(0)")
        a("s_add_u32 s46, s%d, %d" % (S_WS, REGB))
        a("s_addc_u32 s47, s%d, 0" % (S_WS + 1))
        L = a.newlabel("P")
        a("s_mov_b32 s%d, 0" % S_CNT)
        a(L + ":")
        for (vd, va, off) in qloads:
            a("global_load_dwordx4 %s, %s, s[46:47] offset:%d sc1" % (vr(vd, 4), vr(va), off))
        a("s_add_u32 s%d, s%d, 1" % (S_CNT, S_CNT))
        a("s_cmp_gt_u32 s%d, %d" % (S_CNT, POLL_MAX))
        a("s_cbranch_scc1 L_end")
        a("s_waitcnt vmcnt(0)")
        a("v_mov_b32 %s, 0" % vr(T))
        a("v_mov_b32 %s, 0" % vr(T + 1))
        for (vd, va, off) in qloads:
            a("v_xor_b32 %s, s%d, %s" % (vr(T + 2), S_T, vr(vd + 2)))
            a("v_xor_b32 %s, s%d, %s" % (vr(T + 3), S_T + 1, vr(vd + 3)))
            a("v_and_b32 %s, 0xfffffff0, %s" % (vr(T + 3), vr(T + 3)))
            a("v_or3_b32 %s, %s, %s, %s" % (vr(T), vr(T), vr(T + 2), vr(T + 3)))
            a("v_xor_b32 %s, s%d, %s" % (vr(T + 3), S_T1X + 1, vr(vd + 3)))
            a("v_or_b32 %s, %s, %s" % (vr(T + 1), vr(T + 1), vr(T + 3)))
        a("v_cmp_ne_u32 vcc, 0, %s" % vr(T))
        a("s_cbranch_vccnz %s" % L)
        a("v_cmp_ne_u32 vcc, 0, %s" % vr(T + 1))
        a("s_cbranch_vccz %s" % Lgot)
        self.flag_add(F_REM, VZ, V1)
        a(Lgot + ":")
        self.stamp(3)
        for hd in range(4):
            b = G + 16 * hd
            for e in range(2):
                a("v_add_f32 %s, %s, %s" % (vr(b + e), vr(b + e), vr(b + 4 + e)))
                a("v_add_f32 %s, %s, %s" % (vr(b + 8 + e), vr(b + 8 + e), vr(b + 12 + e)))
            for e in range(2):
                a("v_add_f32 %s, %s, %s" % (vr(b + e), vr(b + e), vr(b + 8 + e)))
            a("v_cvt_pk_bf16_f32 %s, %s, %s" % (vr(b), vr(b), vr(b + 1)))
        a("""
        v_lshrrev_b32 v72, 5, v0              ; cb_local
        v_lshlrev_b32 v72, 7, v72             ; 64 columns * 2 B
        v_and_b32 v73, 7, v0
        v_lshl_add_u32 v72, v73, 4, v72       ; 8 n * 2 B
        v_bfe_u32 v73, v0, 3, 1
        v_lshl_add_u32 v72, v73, 3, v72       ; 4 g' * 2 B
        v_bfe_u32 v73, v0, 4, 1
        v_lshl_add_u32 v72, v73, 2, v72       ; 2 s * 2 B
        """)
        for hd in range(4):
            a("ds_write_b32 v72, %s offset:%d" % (vr(G + 16 * hd), L_Q + 320 * hd))
        self.flag_add(F_Q, VZ, V1)
        self.stamp(4)
        SA, GA, BA = 4, 5, 6
        a("""
        s_lshl_b32 s41, s26, 17
        s_lshl_b32 s42, s27, 12
        s_add_u32 s41, s41, s42
        v_lshl_add_u32 v3, v0, 4, s41
        v_add_u32 %s, %d, v3
        v_add_u32 %s, %d, v3
        s_lshl_b32 s41, s27, 11
        s_lshl_b32 s42, s26, 8
        s_add_u32 s41, s41, s42
        s_add_u32 s41, s41, %d
        v_lshl_add_u32 %s, v0, 4, s41
        """ % (vr(SA), H3S, vr(GA), H3G, H3B, vr(BA)))
        self.read_mode(VZ, T)
        if self.sinit:
            for i in range(4):
                a("v_mov_b32 %s, 0" % vr(56 + i))
            for i in range(4):
                a("global_store_dwordx4 %s, v[56:59], %s offset:%d" % (vr(SA), sp(S_WS), 1024 * i))
            a("s_waitcnt vmcnt(0)")
            self.flag_add(F_INIT, VZ, V1)
        GS = 40
        GG, GAD, GW = 24, 44, 48
        a("v_mov_b32 %s, 0" % vr(GS))
        a("v_mov_b32 %s, 0" % vr(GS + 1))
        Lng = a.newlabel("NG")
        a("s_cmp_eq_u32 s49, 0")
        a("s_cbranch_scc1 %s" % Lng)
        a("v_lshrrev_b32 v3, 3, v0")
        for i in range(4):
            a("v_add_u32 v52, %d, v3" % (8 * i))
            a("v_cmp_gt_u32 vcc, s49, v52")
            a("v_add_u32 v53, %d, %s" % (1024 * i, vr(GA)))
            a("v_mov_b32 v54, 1.0")
            a("v_cndmask_b32 %s, %s, v53, vcc" % (vr(GAD + i), vr(GA)))
            a("v_cndmask_b32 %s, v1, v54, vcc" % vr(GW + i))
        self.flag_wait(F_OPUB, 4, VZ, T, sleep=1)
        if self.spf == 1:
            for i in range(4):
                a("global_load_dwordx4 %s, %s, %s offset:%d sc1" % (vr(60 + 4 * i, 4), vr(SA), sp(S_MB), 1024 * i))
        self.poll([(GG + 4 * i, GAD + i, 0) for i in range(4)], S_MB, cnt=15)
        if self.spf == 3:
            for i in range(4):
                a("global_load_dwordx4 %s, %s, %s offset:%d sc1" % (vr(60 + 4 * i, 4), vr(SA), sp(S_MB), 1024 * i))
        for i in range(4):
            for e in range(2):
                a("v_fmac_f32 %s, %s, %s" % (vr(GS + e), vr(GW + i), vr(GG + 4 * i + e)))
        self.xor_reduce("v_add_f32", [GS, GS + 1], [8, 16, 32], T)
        a(Lng + ":")
        self.stamp(5)
        if self.sgate:
            self.flag_wait(F_SPUB, 4, VZ, T)
        else:
            L = a.newlabel("O")
            a("s_mov_b32 s%d, 0" % S_CNT)
            a(L + ":")
            a("ds_read_b32 %s, %s offset:%d" % (vr(T), vr(VZ), L_O + 4))
            a("s_add_u32 s%d, s%d, 1" % (S_CNT, S_CNT))
            a("s_cmp_gt_u32 s%d, %d" % (S_CNT, SPIN_MAX))
            a("s_cbranch_scc1 L_end")
            a("s_waitcnt lgkmcnt(0)")
            a("v_readfirstlane_b32 s%d, %s" % (S_TMP, vr(T)))
            a("s_cmp_lg_u32 s%d, 1" % S_TMP)
            a("s_cbranch_scc1 %s" % L)
        if self.sdelay:
            a("s_sleep %d" % self.sdelay)
        self.stamp(6)
        if self.trace:
            for k in range(11, 16):
                a("s_mov_b32 s%d, 0" % (S_STAMP + 2 * k))
            self.poll_traced([(G + 4 * i, SA, 1024 * i) for i in range(4)], S_MB, 11, 5)
        else:
            self.poll([(G + 4 * i, SA, 1024 * i) for i in range(4)], S_MB, cnt=13)
        self.stamp(7)
        for e in range(2):
            a("v_add_f32 %s, %s, %s" % (vr(G + e), vr(G + e), vr(G + 4 + e)))
            a("v_add_f32 %s, %s, %s" % (vr(G + 8 + e), vr(G + 8 + e), vr(G + 12 + e)))
        for e in range(2):
            a("v_add_f32 %s, %s, %s" % (vr(G + e), vr(G + e), vr(G + 8 + e)))
        self.xor_reduce("v_add_f32", [G, G + 1], [8, 16, 32], T)
        a("""
        v_bfe_u32 v3, v0, 3, 1
        v_cmp_eq_u32 vcc, 1, v3
        v_mov_b32 %s, s%d
        v_mov_b32 %s, s%d
        v_cndmask_b32 %s, %s, %s, vcc
        v_cndmask_b32 %s, %s, %s, vcc
        s_mov_b64 exec, 0xffff
        global_store_dwordx4 %s, %s, %s sc1
        s_mov_b64 exec, -1
        """ % (vr(G + 2), S_T, vr(G + 3), S_T + 1, vr(G), vr(G), vr(GS), vr(G + 1), vr(G + 1), vr(GS + 1), vr(BA), vr(G, 4), sp(S_WS)))
        self.stamp(8)
        Lf = a.newlabel("F")
        a("s_cmp_ge_u32 s27, 28")
        a("s_cbranch_scc1 %s" % Lf)
        self.end(T)
        a(Lf + ":")
        self.role = "C2F"
        G = 12
        self.poll([(G, FA, 0), (G + 4, FA, 128)], S_WS, cnt=14)
        self.stamp(9)
        self.xor_reduce("v_add_f32", [G, G + 1, G + 4, G + 5], [8, 16, 32], T)
        a("v_cvt_pk_bf16_f32 %s, %s, %s" % (vr(G), vr(G), vr(G + 1)))
        a("v_cvt_pk_bf16_f32 %s, %s, %s" % (vr(G + 4), vr(G + 4), vr(G + 5)))
        a("v_and_b32 %s, 0xffff0000, %s" % (vr(G + 1), vr(G)))
        a("v_lshlrev_b32 %s, 16, %s" % (vr(G), vr(G)))
        a("v_and_b32 %s, 0xffff0000, %s" % (vr(G + 5), vr(G + 4)))
        a("v_lshlrev_b32 %s, 16, %s" % (vr(G + 4), vr(G + 4)))
        for e in range(2):
            a("v_mul_f32 %s, 0x%x, %s" % (vr(G + 8 + e), LOG2E ^ 0x80000000, vr(G + 4 + e)))
        for e in range(2):
            a("v_exp_f32 %s, %s" % (vr(G + 8 + e), vr(G + 8 + e)))
        a("s_nop 0")
        for e in range(2):
            a("v_add_f32 %s, 1.0, %s" % (vr(G + 8 + e), vr(G + 8 + e)))
        for e in range(2):
            a("v_rcp_f32 %s, %s" % (vr(G + 8 + e), vr(G + 8 + e)))
        a("s_nop 0")
        for e in range(2):
            a("v_mul_f32 %s, %s, %s" % (vr(G + 4 + e), vr(G + 4 + e), vr(G + 8 + e)))
        a("v_cvt_pk_bf16_f32 %s, %s, %s" % (vr(G + 4), vr(G + 4), vr(G + 5)))
        a("v_and_b32 %s, 0xffff0000, %s" % (vr(G + 5), vr(G + 4)))
        a("v_lshlrev_b32 %s, 16, %s" % (vr(G + 4), vr(G + 4)))
        for e in range(2):
            a("v_mul_f32 %s, %s, %s" % (vr(G + e), vr(G + e), vr(G + 4 + e)))
        a("v_cvt_pk_bf16_f32 %s, %s, %s" % (vr(G), vr(G), vr(G + 1)))
        a("v_and_b32 %s, 0xffff0000, %s" % (vr(G + 1), vr(G)))
        a("v_lshlrev_b32 %s, 16, %s" % (vr(G), vr(G)))
        a("v_and_b32 %s, 0xffff0000, %s" % (vr(G + 5), vr(XF)))
        a("v_lshlrev_b32 %s, 16, %s" % (vr(G + 4), vr(XF)))
        for e in range(2):
            a("v_add_f32 %s, %s, %s" % (vr(G + e), vr(G + e), vr(G + 4 + e)))
        a("v_cvt_pk_bf16_f32 %s, %s, %s" % (vr(G), vr(G), vr(G + 1)))
        a("s_mov_b64 exec, 0xff")
        a("global_store_dword %s, %s, %s" % (vr(OUTA), vr(G), sp(S_OUT)))
        Le = a.newlabel("E")
        a("s_cmp_lg_u32 s45, 0")
        a("s_cbranch_scc1 %s" % Le)
        a("s_mov_b64 exec, 1")
        a("v_mov_b32 %s, s%d" % (vr(G + 2), S_T))
        a("v_mov_b32 %s, s%d" % (vr(G + 3), S_T + 1))
        a("global_store_dwordx2 v1, %s, %s offset:%d sc1" % (vr(G + 2, 2), sp(S_WS), EPOCH))
        a(Le + ":")
        a("s_mov_b64 exec, -1")
        self.stamp(10)
        self.end(T)

    def build(self):
        self.prologue()
        self.role_c0()
        self.role_c1()
        self.role_c2()
        self.role_a()
        self.role_l()
        self.a("L_end:\ns_endpgm\nL_code_end:")
        return wrap(self.a.text(), 256, 512, LDS_BYTES, 192, sgpr=96)


def generate(**kw):
    return Gen(**kw).build()


if __name__ == "__main__":
    out = sys.argv[1] if len(sys.argv) > 1 else "cdna_kernels/%s.s" % NAME
    kw = {}
    for arg in sys.argv[2:]:
        k, v = arg.split("=")
        kw[k] = {"True": True, "False": False}.get(v, v)
    open(out, "w").write(generate(**kw))
    print("wrote", out)
```

```python
import sys
from asmgen import Asm, wrap, NAME

REGB = 0x400000
EPOCH = 0x0
H1 = 0x10000
ST = 0x50000
H3B = 0x70000
HB = 0x80000
H2 = 0x100000
H3S = 0x200000
H3G = 0x300000
STAMP_OFF = 256 << 20

L_Q = 0x0000
L_P = 0x0800
L_MX = 0x1800
L_O = 0x1AC0
L_XQ = 0x1880
L_XH = 0x1980
L_F = 0x1A80
L_K = 0x2000
L_V = 0xA000
L_WO = 0x12000
L_W2 = 0x16000
L_W1 = 0x1A000
F_V, F_INIT, F_Q, F_REM, F_K, F_MAX, F_P, F_ST, F_QPUB, F_OPUB, F_O, F_W1, F_SPUB, F_WO, F_W2, F_HPUB = [L_F + 4 * i for i in range(16)]
LDS_BYTES = 0x1E000

S_X, S_K, S_V, S_WQ, S_WO, S_W1, S_W2, S_OUT, S_WS = 4, 6, 8, 10, 12, 16, 18, 20, 24
S_G, S_C, S_W = 26, 27, 28
S_T = 30
S_XCC = 32
S_MODE = 33
S_MB = 34
S_T1X = 36
S_ISB = 38
S_CNT = 39
S_TMP = 40
S_STAMP = 60

LOG2E = 0x3fb8aa3b
SCALE = 0x3db504f3
A_TIMEOUT = 64
SPIN_MAX = 1 << 20
POLL_MAX = 1 << 16


def sp(n):
    return "s[%d:%d]" % (n, n + 1)


def vr(n, k=1):
    return "v%d" % n if k == 1 else "v[%d:%d]" % (n, n + k - 1)


class Gen:
    def __init__(self, stamps=False, nt_kv="nt", nt_w="nt", force_global=False, mimic=True, window=16, nb_lo=32, nb_hi=24, order="k2v|o", code_pf=1, dbg=0, ileave=1, hold=0, init=2, w2=40, chk=4, init_late=0, ogate=4, sdelay=0, trace=0, sinit=0, sgate=1, spf=1, ofill=0, scramble=0, qack=1, qsleep=0, ggate=0):
        self.a = Asm()
        self.window = int(window)
        self.nb_lo = int(nb_lo)
        self.nb_hi = int(nb_hi)
        self.order = order
        self.code_pf = int(code_pf)
        self.dbg = int(dbg)
        self.role = None
        if self.dbg:
            self.stamps = stamps = True
        self.ileave = int(ileave)
        self.hold = int(hold)
        self.init = int(init)
        self.w2 = int(w2)
        self.chk = int(chk)
        self.init_late = int(init_late)
        self.ogate = int(ogate)
        self.sdelay = int(sdelay)
        self.trace = int(trace)
        self.sinit = int(sinit)
        self.sgate = int(sgate)
        self.spf = int(spf)
        self.ofill = int(ofill)
        self.scramble = int(scramble)
        self.qack = int(qack)
        self.qsleep = int(qsleep)
        self.ggate = int(ggate)
        assert 4 * self.nb_lo + 4 * self.nb_hi == 224 and self.nb_lo % 8 == 0 and self.nb_hi % 8 == 0
        self.stamps = stamps
        self.nt_kv = nt_kv
        self.nt_w = nt_w
        self.force_global = force_global
        self.mimic = mimic
        self.nstamp = 0

    def stamp(self, idx):
        if self.stamps:
            self.a("s_memrealtime %s" % sp(S_STAMP + 2 * idx))

    def flag_add(self, flag, vz, vone):
        a = self.a
        a("s_mov_b64 exec, 1")
        a("ds_add_u32 %s, %s offset:%d" % (vr(vz), vr(vone), flag))
        a("s_mov_b64 exec, -1")

    def flag_set(self, flag, val, vz, vt):
        a = self.a
        a("v_mov_b32 %s, %d" % (vr(vt), val))
        a("s_mov_b64 exec, 1")
        a("ds_write_b32 %s, %s offset:%d" % (vr(vz), vr(vt), flag))
        a("s_mov_b64 exec, -1")

    def flag_wait(self, flag, n, vz, vt, sleep=0):
        a = self.a
        L, Lgo = a.newlabel("W"), a.newlabel("W")
        a("s_mov_b32 s%d, 0" % S_CNT)
        a(L + ":")
        a("ds_read_b32 %s, %s offset:%d" % (vr(vt), vr(vz), flag))
        a("s_waitcnt lgkmcnt(0)")
        a("v_readfirstlane_b32 s%d, %s" % (S_TMP, vr(vt)))
        a("s_cmp_ge_u32 s%d, %d" % (S_TMP, n))
        a("s_cbranch_scc1 %s" % Lgo)
        if sleep:
            a("s_sleep %d" % sleep)
        a("s_add_u32 s%d, s%d, 1" % (S_CNT, S_CNT))
        a("s_cmp_lt_u32 s%d, %d" % (S_CNT, SPIN_MAX))
        a("s_cbranch_scc1 %s" % L)
        a("s_branch L_end")
        a(Lgo + ":")

    def store_mode(self, vaddr, vdata, n=4):
        a = self.a
        L1, L2 = a.newlabel("S"), a.newlabel("S")
        op = "global_store_dwordx%d" % n
        a("s_cmp_lg_u32 s%d, 0" % S_MODE)
        a("s_cbranch_scc1 %s" % L1)
        a("%s %s, %s, %s" % (op, vr(vaddr), vr(vdata, n), sp(S_MB)))
        a("s_branch %s" % L2)
        a(L1 + ":")
        a("%s %s, %s, %s sc1" % (op, vr(vaddr), vr(vdata, n), sp(S_MB)))
        a(L2 + ":")

    def poll_traced(self, loads, base, first_stamp, npass=4):
        a = self.a
        Lok = a.newlabel("PT")
        n = len(loads)
        for k in range(npass):
            a("s_memrealtime %s" % sp(S_STAMP + 2 * (first_stamp + k)))
            for (vd, va, off) in loads:
                a("global_load_dwordx4 %s, %s, %s offset:%d sc1" % (vr(vd, 4), vr(va), sp(base), off))
            for i, (vd, va, off) in enumerate(loads):
                a("s_waitcnt vmcnt(%d)" % (n - 1 - i))
                dst = "vcc" if i == 0 else sp(S_TMP)
                a("v_cmp_ne_u64 %s, %s, %s" % (dst, vr(vd + 2, 2), sp(S_T)))
                if i:
                    a("s_or_b64 vcc, vcc, %s" % sp(S_TMP))
            a("s_cbranch_vccz %s" % Lok)
        self.poll(loads, base)
        a(Lok + ":")

    def poll(self, loads, base, tag=S_T, limit=POLL_MAX, on_timeout="L_end", cnt=None):
        a = self.a
        L, Lok = a.newlabel("P"), a.newlabel("P")
        a("s_mov_b32 s%d, 0" % S_CNT)
        a(L + ":")
        for (vd, va, off) in loads:
            a("global_load_dwordx4 %s, %s, %s offset:%d sc1" % (vr(vd, 4), vr(va), sp(base), off))
        n = len(loads)
        for i, (vd, va, off) in enumerate(loads):
            a("s_waitcnt vmcnt(%d)" % (n - 1 - i))
            dst = "vcc" if i == 0 else sp(S_TMP)
            a("v_cmp_ne_u64 %s, %s, %s" % (dst, vr(vd + 2, 2), sp(tag)))
            if i:
                a("s_or_b64 vcc, vcc, %s" % sp(S_TMP))
        a("s_cbranch_vccz %s" % Lok)
        a("s_add_u32 s%d, s%d, 1" % (S_CNT, S_CNT))
        a("s_cmp_le_u32 s%d, %d" % (S_CNT, limit))
        a("s_cbranch_scc1 %s" % L)
        a("s_branch %s" % on_timeout)
        a(Lok + ":")
        if cnt is not None and self.stamps:
            a("s_mov_b32 s%d, s%d" % (S_STAMP + 2 * cnt, S_CNT))

    def xor_reduce(self, op, regs, steps, tmp):
        a = self.a
        for st in steps:
            if st in (16, 32):
                ins = "v_permlane16_swap_b32" if st == 16 else "v_permlane32_swap_b32"
                for i, r in enumerate(regs):
                    a("v_mov_b32 %s, %s" % (vr(tmp + i), vr(r)))
                a("s_nop 1")
                for i, r in enumerate(regs):
                    a("%s %s, %s" % (ins, vr(r), vr(tmp + i)))
                a("s_nop 1")
                for i, r in enumerate(regs):
                    a("%s %s, %s, %s" % (op, vr(r), vr(r), vr(tmp + i)))
            else:
                ctl = {1: "quad_perm:[1,0,3,2]", 2: "quad_perm:[2,3,0,1]", "hm": "row_half_mirror", "m": "row_mirror", 8: "row_ror:8", "r4": "row_ror:4"}[st]
                a("s_nop 1")
                for r in regs:
                    a("%s_dpp %s, %s, %s %s row_mask:0xf bank_mask:0xf" % (op, vr(r), vr(r), vr(r), ctl))

    def read_mode(self, vz, vt):
        a = self.a
        a("ds_read_b32 %s, %s offset:%d" % (vr(vt), vr(vz), F_REM))
        a("s_waitcnt lgkmcnt(0)")
        a("v_readfirstlane_b32 s%d, %s" % (S_MODE, vr(vt)))
        if self.force_global:
            a("s_mov_b32 s%d, 1" % S_MODE)
        a("s_min_u32 s%d, s%d, 1" % (S_MODE, S_MODE))
        a("s_mul_i32 s%d, s%d, %d" % (S_TMP, S_MODE, REGB))
        a("s_add_u32 s%d, s%d, s%d" % (S_MB, S_WS, S_TMP))
        a("s_addc_u32 s%d, s%d, 0" % (S_MB + 1, S_WS + 1))

    def tags(self):
        a = self.a
        a("s_getreg_b32 s32, hwreg(HW_REG_XCC_ID, 0, 4)")
        a("s_waitcnt lgkmcnt(0)")
        a("s_add_u32 s%d, s%d, 0x9E3779B9" % (S_T, S_T))
        a("s_add_u32 s%d, s%d, 0x7F4A7C00" % (S_T + 1, S_T + 1))
        a("s_and_b32 s%d, s%d, 0xFFFFFFE0" % (S_T + 1, S_T + 1))
        a("s_or_b32 s%d, s%d, 0x10" % (S_T + 1, S_T + 1))
        a("s_mov_b32 s%d, s%d" % (S_T1X, S_T))
        a("s_or_b32 s%d, s%d, s%d" % (S_T1X + 1, S_T + 1, S_XCC))

    DBG_MAP = {"A": {0: [(0, True), (1, False)], 1: [(12, False)], 3: [(5, False)], 6: [(7, False)], 7: [(9, False)]},
               "C0": {2: [(14, False)], 4: [(15, False)], 5: [(3, False)], 9: [(8, False)]},
               "C1B": {5: [(13, False)]},
               "C2": {4: [(4, False)], 8: [(10, False)]},
               "C2F": {4: [(4, False)], 8: [(10, False)], 10: [(11, False)]},
               "L": {1: [(2, False)], 3: [(6, False)]}}

    def dump_stamps(self, vt):
        if not self.stamps:
            return
        a = self.a
        if self.dbg:
            a("s_waitcnt lgkmcnt(0)")
            a("s_mov_b64 exec, 1")
            a("v_mov_b32 %s, 0" % vr(vt))
            for st, outs in self.DBG_MAP.get(self.role, {}).items():
                for slot, inv in outs:
                    a("v_mov_b32 %s, s%d" % (vr(vt + 1), S_STAMP + 2 * st))
                    if inv:
                        a("v_not_b32 %s, %s" % (vr(vt + 1), vr(vt + 1)))
                    a("global_atomic_umax %s, %s, s[22:23] offset:%d" % (vr(vt), vr(vt + 1), 4 * slot))
            return
        a("s_waitcnt lgkmcnt(0)")
        a("s_lshl_b32 s%d, s2, 3" % S_TMP)
        a("s_add_u32 s%d, s%d, s%d" % (S_TMP, S_TMP, S_W))
        a("s_lshl_b32 s%d, s%d, 6" % (S_TMP, S_TMP))
        a("s_add_u32 s%d, s%d, %d" % (S_TMP, S_TMP, STAMP_OFF))
        a("s_mov_b64 exec, 1")
        a("v_mov_b32 %s, s%d" % (vr(vt), S_TMP))
        for i in range(16):
            a("v_mov_b32 %s, s%d" % (vr(vt + 1), S_STAMP + 2 * i))
            a("global_store_dword %s, %s, %s offset:%d" % (vr(vt), vr(vt + 1), sp(S_WS), 4 * i))

    def end(self, vt):
        self.dump_stamps(vt)
        self.a("s_endpgm")

    def layernorm_rows(self, base, lds_x, VZ, rows=128):
        a = self.a
        xs, xp = base, base + 4
        f = base + 16
        t = base + 24
        for i in range(4):
            a("v_lshlrev_b32 %s, 16, %s" % (vr(f + 2 * i), vr(xs + i)))
            a("v_and_b32 %s, 0xffff0000, %s" % (vr(f + 2 * i + 1), vr(xs + i)))
        a("v_add_f32 %s, %s, %s" % (vr(t), vr(f), vr(f + 1)))
        a("v_add_f32 %s, %s, %s" % (vr(t + 1), vr(f + 2), vr(f + 3)))
        a("v_add_f32 %s, %s, %s" % (vr(t + 2), vr(f + 4), vr(f + 5)))
        a("v_add_f32 %s, %s, %s" % (vr(t + 3), vr(f + 6), vr(f + 7)))
        a("v_add_f32 %s, %s, %s" % (vr(t), vr(t), vr(t + 1)))
        a("v_add_f32 %s, %s, %s" % (vr(t + 2), vr(t + 2), vr(t + 3)))
        a("v_add_f32 %s, %s, %s" % (vr(t), vr(t), vr(t + 2)))
        self.xor_reduce("v_add_f32", [t], [1, 2, "hm", "m", 16, 32], t + 4)
        a("v_mul_f32 %s, 0x3b000000, %s" % (vr(t), vr(t)))
        for i in range(8):
            a("v_sub_f32 %s, %s, %s" % (vr(f + i), vr(f + i), vr(t)))
        a("v_mul_f32 %s, %s, %s" % (vr(t + 1), vr(f), vr(f)))
        a("v_mul_f32 %s, %s, %s" % (vr(t + 2), vr(f + 1), vr(f + 1)))
        for i in range(2, 8, 2):
            a("v_fmac_f32 %s, %s, %s" % (vr(t + 1), vr(f + i), vr(f + i)))
            a("v_fmac_f32 %s, %s, %s" % (vr(t + 2), vr(f + i + 1), vr(f + i + 1)))
        a("v_add_f32 %s, %s, %s" % (vr(t + 1), vr(t + 1), vr(t + 2)))
        self.xor_reduce("v_add_f32", [t + 1], [1, 2, "hm", "m", 16, 32], t + 4)
        a("v_mul_f32 %s, 0x3b000000, %s" % (vr(t + 1), vr(t + 1)))
        a("v_cvt_pk_bf16_f32 %s, %s, %s" % (vr(t + 2), vr(t), vr(t + 1)))
        a("v_lshlrev_b32 %s, 16, %s" % (vr(t), vr(t + 2)))
        a("v_and_b32 %s, 0xffff0000, %s" % (vr(t + 1), vr(t + 2)))
        a("v_add_f32 %s, 0x3727c5ac, %s" % (vr(t + 1), vr(t + 1)))
        a("v_cvt_pk_bf16_f32 %s, %s, %s" % (vr(t + 1), vr(t + 1), vr(t + 1)))
        a("v_and_b32 %s, 0xffff0000, %s" % (vr(t + 1), vr(t + 1)))
        a("v_sqrt_f32 %s, %s" % (vr(t + 1), vr(t + 1)))
        a("s_nop 0")
        a("v_cvt_pk_bf16_f32 %s, %s, %s" % (vr(t + 1), vr(t + 1), vr(t + 1)))
        a("v_and_b32 %s, 0xffff0000, %s" % (vr(t + 1), vr(t + 1)))
        a("v_rcp_f32 %s, %s" % (vr(t + 2), vr(t + 1)))
        a("v_lshlrev_b32 %s, 16, %s" % (vr(f), vr(xp)))
        a("v_and_b32 %s, 0xffff0000, %s" % (vr(f + 1), vr(xp)))
        a("v_sub_f32 %s, %s, %s" % (vr(f), vr(f), vr(t)))
        a("v_sub_f32 %s, %s, %s" % (vr(f + 1), vr(f + 1), vr(t)))
        a("v_cvt_pk_bf16_f32 %s, %s, %s" % (vr(f), vr(f), vr(f + 1)))
        a("v_and_b32 %s, 0xffff0000, %s" % (vr(f + 1), vr(f)))
        a("v_lshlrev_b32 %s, 16, %s" % (vr(f), vr(f)))
        for i in range(2):
            a("v_mul_f32 %s, %s, %s" % (vr(f + 2 + i), vr(f + i), vr(t + 2)))
        for i in range(2):
            a("v_fma_f32 %s, -%s, %s, %s" % (vr(f + 4 + i), vr(f + 2 + i), vr(t + 1), vr(f + i)))
        for i in range(2):
            a("v_fmac_f32 %s, %s, %s" % (vr(f + 2 + i), vr(f + 4 + i), vr(t + 2)))
        a("v_cvt_pk_bf16_f32 %s, %s, %s" % (vr(f), vr(f + 2), vr(f + 3)))
        if rows == 128:
            a("v_lshlrev_b32 %s, 2, v0" % vr(t))
        else:
            a("v_and_b32 %s, 31, v0" % vr(t))
            a("v_lshlrev_b32 %s, 2, %s" % (vr(t), vr(t)))
        a("ds_write_b32 %s, %s offset:%d" % (vr(t), vr(f), lds_x))
        a("v_lshrrev_b32 %s, 3, v0" % vr(t))
        a("v_lshlrev_b32 %s, %d, %s" % (vr(t), 5 if rows == 128 else 4, vr(t)))
        a("ds_read_b128 %s, %s offset:%d" % (vr(base + 8, 4), vr(t), lds_x))
        if rows == 128:
            a("ds_read_b128 %s, %s offset:%d" % (vr(base + 12, 4), vr(t), lds_x + 16))

    def selectors(self, sel, tmp, both_parities):
        a = self.a
        a("v_and_b32 %s, 15, v0" % vr(tmp))
        a("v_and_b32 %s, 1, %s" % (vr(tmp + 1), vr(tmp)))
        a("v_bfe_u32 %s, %s, 1, 2" % (vr(tmp + 2), vr(tmp)))
        if not both_parities:
            a("v_lshrrev_b32 %s, 3, %s" % (vr(tmp + 3), vr(tmp)))
            a("v_lshl_add_u32 %s, %s, 2, %s" % (vr(tmp + 2), vr(tmp + 3), vr(tmp + 2)))
        a("v_cmp_eq_u32 vcc, 1, %s" % vr(tmp + 1))
        a("v_mov_b32 %s, 0x0c0c0100" % vr(tmp + 3))
        a("v_mov_b32 %s, 0x01000c0c" % vr(tmp + 4))
        a("v_cndmask_b32 %s, %s, %s, vcc" % (vr(tmp + 5), vr(tmp + 3), vr(tmp + 4)))
        a("v_mov_b32 %s, 0x0c0c0302" % vr(tmp + 3))
        a("v_mov_b32 %s, 0x03020c0c" % vr(tmp + 4))
        a("v_cndmask_b32 %s, %s, %s, vcc" % (vr(tmp + 6), vr(tmp + 3), vr(tmp + 4)))
        a("v_mov_b32 %s, 0x0c0c0c0c" % vr(tmp + 3))
        for t in range(4):
            a("v_cmp_eq_u32 vcc, %d, %s" % (t, vr(tmp + 2)))
            a("s_nop 1")
            a("v_cndmask_b32 %s, %s, %s, vcc" % (vr(sel + t), vr(tmp + 3), vr(tmp + 5)))
            a("v_cndmask_b32 %s, %s, %s, vcc" % (vr(sel + 4 + t), vr(tmp + 3), vr(tmp + 6)))

    def tile_gemv(self, W, XN, SEL, AF, ACC, nafter):
        a = self.a
        for i in range(16):
            for t in range(4):
                a("v_perm_b32 %s, %s, %s, %s" % (vr(AF + 4 * i + t), vr(XN + (i >> 1)), vr(XN + (i >> 1)), vr(SEL + 4 * (i & 1) + t)))
        for i in range(16):
            a("s_waitcnt vmcnt(%d)" % (15 - i + nafter))
            a("v_mfma_f32_16x16x32_bf16 %s, %s, %s, %s" % (vr(ACC, 4), vr(AF + 4 * i, 4), vr(W + 4 * i, 4), "0" if i == 0 else vr(ACC, 4)))
        a("s_nop 7")
        a("v_permlane32_swap_b32 %s, %s" % (vr(ACC), vr(ACC + 2)))
        a("v_permlane32_swap_b32 %s, %s" % (vr(ACC + 1), vr(ACC + 3)))
        a("s_nop 1")
        a("v_add_f32_dpp %s, %s, %s row_ror:8 row_mask:0xf bank_mask:0xf" % (vr(ACC), vr(ACC + 2), vr(ACC)))
        a("v_add_f32_dpp %s, %s, %s row_ror:8 row_mask:0xf bank_mask:0xf" % (vr(ACC + 1), vr(ACC + 3), vr(ACC + 1)))


    def prologue(self):
        a = self.a
        a("""
        s_cmp_ge_u32 s2, 256
        s_cbranch_scc1 L_end
        """)
        self.stamp(0)
        a("""
        s_load_dwordx16 s[4:19], s[0:1], 0
        s_load_dwordx4 s[20:23], s[0:1], 64
        s_load_dwordx2 s[24:25], s[0:1], 80
        v_lshrrev_b32 v1, 6, v0
        v_and_b32 v0, 63, v0
        %s
        v_readfirstlane_b32 s28, v1
        v_lshlrev_b32 v37, 4, v0
        s_lshr_b32 s40, s27, 3                ; row block of the Wq tile
        s_cmp_eq_u32 s28, 7
        s_cbranch_scc1 L_L
        s_cmp_eq_u32 s28, 5
        s_cbranch_scc1 L_C1
        s_cmp_eq_u32 s28, 6
        s_cbranch_scc1 L_C2
        s_cmp_lt_u32 s28, 4
        s_cbranch_scc1 L_A
        """ % ("s_lshr_b32 s26, s2, 5\ns_and_b32 s27, s2, 31" if self.scramble else "s_and_b32 s26, s2, 7\ns_lshr_b32 s27, s2, 3"))

    def dispatch_others(self):
        self.a("""
        L_other:
        v_mov_b32 v1, 0
        v_mov_b32 v2, 1
        s_cmp_eq_u32 s28, 7
        s_cbranch_scc1 L_L
        s_cmp_eq_u32 s28, 5
        s_cbranch_scc1 L_C1
        s_cmp_eq_u32 s28, 6
        s_cbranch_scc1 L_C2
        s_branch L_A
        """)

    def mlp_scalars(self):
        self.a("""
        s_cmp_lt_u32 s26, 4
        s_cselect_b32 s49, %d, %d
        s_cmp_lt_u32 s27, s49
        s_cselect_b32 s38, 1, 0
        s_mul_i32 s50, s26, %d
        s_sub_u32 s51, s26, 4
        s_mul_i32 s51, s51, %d
        s_add_u32 s51, s51, %d
        s_cmp_lt_u32 s26, 4
        s_cselect_b32 s50, s50, s51
        s_lshr_b32 s51, s27, 3
        s_add_u32 s50, s50, s51
        """ % (self.nb_lo, self.nb_hi, self.nb_lo // 8, self.nb_hi // 8, self.nb_lo // 2))

    def args_ready(self):
        self.a("s_waitcnt lgkmcnt(0)")
        self.a("s_load_dwordx2 s[30:31], s[24:25], %d" % EPOCH)

    def role_l(self):
        a = self.a
        VZ, V1 = 1, 2
        a(".p2align 8")
        a("L_L:")
        a("v_mov_b32 v1, 0\nv_mov_b32 v2, 1")
        self.role = "L"
        KO, VO = 8, 12
        WOA, WOB, W2A, W1A = 16, 17, 18, 20
        piece = 0x8000 if self.ileave else 0x400
        a("""
        s_lshl_b32 s40, s26, 24
        s_add_u32 s40, s40, 0xF00000
        s_lshl_b32 s41, s27, %d
        s_add_u32 s40, s40, s41               ; first piece of this chunk
        v_lshrrev_b32 v3, 4, v0               ; q4
        v_and_b32 v4, 15, v0                  ; pos
        v_xor_b32 v5, v4, v3
        v_lshl_add_u32 v6, v3, 8, s40
        """ % (10 if self.ileave else 15))
        for q in range(4):
            a("v_xor_b32 v7, %d, v5" % (4 * q))
            a("v_lshl_add_u32 v7, v7, 4, v6")
            a("v_add_u32 %s, %d, v7" % (vr(KO + q), 2 * q * piece))

        def rest_addresses():
            a("v_lshlrev_b32 v7, 1, v3")
            a("v_xor_b32 v7, v7, v4")
            a("v_lshl_add_u32 %s, v7, 4, v6" % vr(VO))
            a("v_xor_b32 v7, 8, v7")
            a("v_lshl_add_u32 v7, v7, 4, v6")
            a("v_add_u32 %s, %d, v7" % (vr(VO + 1), 2 * piece))
            a("""
            s_lshl_b32 s42, s26, 9                ; 512 g
            s_lshr_b32 s43, s27, 3
            s_lshl_b32 s43, s43, 7                ; 128 h
            s_add_u32 s42, s42, s43
            s_bfe_u32 s43, s27, 0x20001
            s_lshl_b32 s43, s43, 5
            s_add_u32 s42, s42, s43
            s_and_b32 s43, s27, 1
            s_lshl_b32 s43, s43, 3
            s_add_u32 s42, s42, s43               ; first Wo row
            s_lshl_b32 s42, s42, 10
            v_lshlrev_b32 v6, 4, v4               ; 16 n
            v_lshl_add_u32 v7, v3, 11, v6
            v_add_u32 %s, s42, v7
            v_add_u32 %s, 0x4000, %s
            s_lshl_b32 s42, s50, 6
            s_and_b32 s43, s27, 7
            s_lshl_b32 s43, s43, 3
            s_add_u32 s42, s42, s43               ; first W2 row = 64 cbg + 8 j
            s_lshl_b32 s42, s42, 10
            v_lshl_add_u32 v7, v3, 11, v6         ; + 2 gg rows
            v_add_u32 %s, s42, v7
            """ % (vr(WOA), vr(WOB), vr(WOA), vr(W2A)))

        def m0(x):
            return "s_movk_i32 m0, 0x%x\n" % x if x < 0x8000 else "s_mov_b32 m0, 0x%x\n" % x

        def seq(isb):
            ops, flags, gates = [], [], []
            for grp in self.order:
                if grp == "|":
                    gates.append(len(ops))
                elif grp == "k":
                    for w in range(4):
                        for q in range(4):
                            for t in range(2):
                                p = 8 * w + 2 * q + t
                                ops.append((m0(L_K + 1024 * p), "global_load_lds_dwordx4 %s, %s %s" % (vr(KO + q), sp(S_K), self.nt_kv),
                                            "v_add_u32 %s, 0x%x, %s" % (vr(KO + q), (1 if t == 0 else 7) * piece, vr(KO + q))))
                    flags.append((len(ops), F_K))
                elif grp == "v":
                    for w in range(4):
                        for i in range(8):
                            b = (i >> 1) & 1
                            ops.append((m0(L_V + 1024 * (8 * w + i)), "global_load_lds_dwordx4 %s, %s %s" % (vr(VO + b), sp(S_V), self.nt_kv),
                                        "v_add_u32 %s, 0x%x, %s" % (vr(VO + b), (1 if (i & 1) == 0 else 3) * piece, vr(VO + b))))
                        flags.append((len(ops), F_V))
                elif grp == "f":
                    for i in range(4):
                        ops.append(("", "global_load_dwordx4 v[24:27], v23, %s offset:%d sc1" % (sp(S_WS), 1024 * i), ""))
                    ops.append(("", "global_load_dwordx4 v[24:27], v28, %s sc1" % sp(S_WS), ""))
                elif grp == "o":
                    for w in range(4):
                        for i in range(4):
                            off = 256 * w + 1024 * (i >> 1)
                            ops.append((m0(L_WO + (4 * w + i) * 1024 - off),
                                        "global_load_lds_dwordx4 %s, %s offset:%d %s" % (vr(WOA if (i & 1) == 0 else WOB), sp(S_WO), off, self.nt_w), ""))
                    flags.append((len(ops), F_WO))
                elif grp == "2" and isb:
                    for w in range(4):
                        for i in range(2):
                            off = 256 * w + 1024 * i
                            ops.append((m0(L_W2 + (2 * w + i) * 1024 - off),
                                        "global_load_lds_dwordx4 %s, %s offset:%d %s" % (vr(W2A), sp(S_W2), off, self.nt_w), ""))
                    flags.append((len(ops), F_W2))
                elif grp == "1" and isb:
                    for i in range(8):
                        ops.append((m0(L_W1 + 1024 * i), "global_load_lds_dwordx4 %s, %s %s" % (vr(W1A), sp(S_W1), self.nt_w),
                                    "v_add_u32 %s, 3584, %s" % (vr(W1A), vr(W1A))))
                    flags.append((len(ops), F_W1))
            return ops, flags, gates

        W = self.window
        self.args_ready()
        self.stamp(1)
        assert self.order[0] == "k"
        ops0, _, _ = seq(False)
        NE = min(W, 5)
        for j in range(NE):
            pre, ld, post = ops0[j]
            a(pre)
            a("s_nop 0")
            a(ld)
            a(post)
        a("s_barrier")
        self.mlp_scalars()
        rest_addresses()
        if "f" in self.order:
            a("""
            s_lshl_b32 s41, s26, 17
            s_lshl_b32 s42, s27, 12
            s_add_u32 s41, s41, s42
            s_add_u32 s41, s41, %d
            v_lshl_add_u32 v23, v0, 4, s41
            s_lshl_b32 s41, s26, 11
            s_lshr_b32 s42, s27, 3
            s_lshl_b32 s42, s42, 9
            s_add_u32 s41, s41, s42
            s_add_u32 s41, s41, %d
            v_and_b32 v28, 31, v0
            v_lshl_add_u32 v28, v28, 4, s41
            """ % (H2, ST))

        def with_values(flags):
            out, nv = [], 0
            for (e, f) in flags:
                if f == F_V:
                    nv += 1
                    out.append((e, f, nv))
                else:
                    out.append((e, f, 1))
            return out

        def run(ops, flags, gates, W, start, labels=None, check_to=None, first=False):
            n = len(ops)
            pend = [f for f in flags if f[0] > max(0, start - (W - 1)) or first]
            hold = self.hold
            for j in range(start, n):
                pre, ld, post = ops[j]
                if labels and j in labels:
                    a(labels[j] + ":")
                if hold and j == hold:
                    while pend and pend[0][0] <= j:
                        e, f, val = pend.pop(0)
                        a("s_waitcnt vmcnt(%d)" % (j - e))
                        self.flag_set(f, val, VZ, 22)
                    self.flag_wait(F_QPUB, 1, VZ, 21)
                    if isb_cur[0] and self.order[0] == "1":
                        self.flag_wait(F_HPUB, 1, VZ, 21)
                    self.stamp(4)
                if j in gates:
                    while pend and pend[0][0] <= j:
                        e, f, val = pend.pop(0)
                        a("s_waitcnt vmcnt(%d)" % (j - e))
                        self.flag_set(f, val, VZ, 22)
                    self.flag_wait(F_OPUB, 4, VZ, 21)
                chk = check_to is not None and j in check_to
                if chk:
                    a("ds_read_b32 v21, %s offset:%d" % (vr(VZ), F_Q))
                if j >= W and not any(g <= j < g + W for g in gates):
                    a("s_waitcnt vmcnt(%d)" % (W - 1))
                    landed = j - (W - 1)
                    while pend and pend[0][0] <= landed:
                        e, f, val = pend.pop(0)
                        self.flag_set(f, val, VZ, 22)
                if chk:
                    a("s_waitcnt lgkmcnt(0)")
                    a("v_readfirstlane_b32 s%d, v21" % S_TMP)
                    a("s_cmp_lg_u32 s%d, 0" % S_TMP)
                    a("s_cbranch_scc1 %s" % check_to[j])
                a(pre)
                a("s_nop 0")
                a(ld)
                if post:
                    a(post)
            self.stamp(2)
            for (e, f, val) in pend:
                a("s_waitcnt vmcnt(%d)" % (n - e))
                self.flag_set(f, val, VZ, 22)
            self.stamp(3)
            self.end(3)

        isb_cur = [False]

        def emit(isb):
            isb_cur[0] = isb
            ops, flags, gates = seq(isb)
            flags = with_values(flags)
            n = len(ops)
            if not self.w2:
                run(ops, flags, gates, W, NE, first=True)
                return
            points = [j for j in range(W, n - 8) if (j - W) % self.chk == 0]
            labels = {j: a.newlabel("FAST") for j in points}
            run(ops, flags, gates, W, NE, check_to=labels, first=True)
            run(ops, flags, gates, self.w2, points[0], labels=labels)

        Lb = a.newlabel("LB")
        a("s_cmp_lg_u32 s%d, 0" % S_ISB)
        a("s_cbranch_scc1 %s" % Lb)
        emit(False)
        a(Lb + ":")
        emit(True)

    def role_a(self):
        a = self.a
        VZ, V1 = 1, 2
        T = 5
        a("L_A:")
        a("v_mov_b32 v1, 0\nv_mov_b32 v2, 1")
        self.role = "A"
        a("s_barrier")
        self.args_ready()
        a("s_setprio 1")
        KO, VO, QA = 16, 20, 24
        a("""
        v_lshrrev_b32 v3, 4, v0               ; gg
        v_and_b32 v4, 15, v0                  ; m
        s_lshl_b32 s41, s28, 13
        v_and_b32 v5, 3, v4                   ; b = m & 3
        v_lshrrev_b32 v6, 2, v4               ; a = m >> 2
        v_lshlrev_b32 v7, 11, v6
        v_lshl_add_u32 v7, v5, 8, v7
        v_xor_b32 v8, v3, v5
        v_lshl_add_u32 v7, v8, 4, v7
        v_add_u32 v7, s41, v7
        """)
        for s in range(4):
            a("v_xor_b32 v8, %d, v6" % s)
            a("v_lshl_add_u32 %s, v8, 6, v7" % vr(KO + s))
        a("v_mul_u32_u24 v8, 320, v6")
        a("v_lshl_add_u32 %s, v3, 4, v8" % vr(QA))
        a("""
        v_lshrrev_b32 v8, 2, v4               ; r
        v_and_b32 v9, 3, v4                   ; cq
        v_and_b32 v10, 1, v3
        v_lshl_or_b32 v10, v10, 2, v8         ; sigma
        v_lshl_add_u32 v11, v3, 3, v8         ; 8 gg + r
        v_lshlrev_b32 v11, 8, v11
        v_lshl_add_u32 v11, v9, 3, v11
        v_add_u32 v11, %d, v11
        s_lshl_b32 s42, s28, 1
        """ % L_V)
        for u in range(2):
            a("s_add_u32 s43, s42, %d" % u)
            a("v_xor_b32 v12, s43, v10")
            a("v_lshl_add_u32 %s, v12, 5, v11" % vr(VO + u))
        WOA = 22
        a("s_lshl_b32 s42, s28, 12")
        a("s_add_u32 s42, s42, %d" % L_WO)
        a("v_lshl_add_u32 %s, v0, 4, s42" % vr(WOA))
        SEL = 28
        self.selectors(SEL, T, both_parities=False)
        self.tags()
        TG = 36
        a("v_mov_b32 %s, s%d" % (vr(TG + 2), S_T))
        a("v_mov_b32 %s, s%d" % (vr(TG + 3), S_T + 1))
        OA, SA, STA = 40, 41, 43
        a("""
        s_lshl_b32 s42, s26, 17               ; g * 131072
        s_lshl_b32 s43, s27, 7                ; c * 128
        s_add_u32 s42, s42, s43
        v_and_b32 v12, 7, v0
        v_lshlrev_b32 v12, 4, v12             ; slot * 16
        v_bfe_u32 v13, v0, 3, 1               ; b
        v_lshl_add_u32 v13, v3, 3, v13        ; 8 h + b
        s_lshl_b32 s43, s28, 1
        v_add_u32 v13, s43, v13               ; + 2 w
        v_lshl_add_u32 v13, v13, 12, v12
        s_add_u32 s43, s42, %d
        v_add_u32 %s, s43, v13
        v_lshrrev_b32 v13, 3, v0
        s_lshl_b32 s43, s28, 3
        v_add_u32 v13, s43, v13               ; 8 w + (l >> 3)
        v_lshl_add_u32 v14, v13, 12, v12
        s_add_u32 s43, s42, %d
        v_add_u32 %s, s43, v14
        s_lshl_b32 s42, s26, 11
        s_lshl_b32 s43, s27, 4
        s_add_u32 s42, s42, s43
        s_add_u32 s42, s42, %d
        v_lshl_add_u32 %s, v3, 9, s42
        """ % (H2, vr(OA), H3S, vr(SA), ST, vr(STA)))
        MXW, PWA, PRA, MRA, ORA = 25, 26, 27, 45, 46
        a("""
        v_lshrrev_b32 v12, 2, v4
        v_lshlrev_b32 v12, 4, v12             ; head (l & 15) >> 2, * 16
        s_lshl_b32 s42, s28, 2
        v_add_u32 %s, s42, v12                ; + wave * 4
        v_lshlrev_b32 %s, 4, v0
        s_lshl_b32 s42, s28, 10
        v_add_u32 %s, s42, %s
        v_lshlrev_b32 %s, 4, v3
        v_lshlrev_b32 %s, 4, v3
        """ % (vr(MXW), vr(PRA), vr(PWA), vr(PRA), vr(MRA), vr(ORA)))
        OD = 112
        KF = 48
        QF = 80
        WO = 96
        self.flag_wait(F_K, 1, VZ, T, sleep=2)
        self.stamp(1)
        for t in range(2):
            for s in range(4):
                a("ds_read_b128 %s, %s offset:%d" % (vr(KF + 16 * t + 4 * s, 4), vr(KO + s), L_K + 1024 * t))
        self.flag_wait(F_Q, 1, VZ, T, sleep=1)
        self.stamp(2)
        for s in range(4):
            a("ds_read_b128 %s, %s offset:%d" % (vr(QF + 4 * s, 4), vr(QA), L_Q + 64 * s))
        self.read_mode(VZ, T)
        SC = 112
        for s in range(4):
            for t in range(2):
                a("v_mfma_f32_16x16x32_bf16 %s, %s, %s, %s" % (vr(SC + 4 * t, 4), vr(KF + 16 * t + 4 * s, 4), vr(QF + 4 * s, 4), "0" if s == 0 else vr(SC + 4 * t, 4)))
        a("s_nop 7")
        if self.mimic:
            for i in range(4):
                a("v_cvt_pk_bf16_f32 %s, %s, %s" % (vr(T + i), vr(SC + 2 * i), vr(SC + 2 * i + 1)))
            for i in range(4):
                a("v_lshlrev_b32 %s, 16, %s" % (vr(SC + 2 * i), vr(T + i)))
                a("v_and_b32 %s, 0xffff0000, %s" % (vr(SC + 2 * i + 1), vr(T + i)))
        for i in range(8):
            a("v_mul_f32 %s, 0x%x, %s" % (vr(SC + i), SCALE, vr(SC + i)))
        if self.mimic:
            for i in range(4):
                a("v_cvt_pk_bf16_f32 %s, %s, %s" % (vr(T + i), vr(SC + 2 * i), vr(SC + 2 * i + 1)))
            for i in range(4):
                a("v_lshlrev_b32 %s, 16, %s" % (vr(SC + 2 * i), vr(T + i)))
                a("v_and_b32 %s, 0xffff0000, %s" % (vr(SC + 2 * i + 1), vr(T + i)))
        MX = 44
        a("v_max3_f32 %s, %s, %s, %s" % (vr(T), vr(SC), vr(SC + 1), vr(SC + 2)))
        a("v_max3_f32 %s, %s, %s, %s" % (vr(T + 1), vr(SC + 3), vr(SC + 4), vr(SC + 5)))
        a("v_max3_f32 %s, %s, %s, %s" % (vr(T), vr(T), vr(SC + 6), vr(SC + 7)))
        a("v_max_f32 %s, %s, %s" % (vr(MX), vr(T), vr(T + 1)))
        self.xor_reduce("v_max_f32", [MX], [16, 32], T)
        a("v_mov_b32 %s, 0x%x" % (vr(T + 8), LOG2E))
        a("v_mul_f32 %s, %s, %s" % (vr(T + 9), vr(MX), vr(T + 8)))
        a("s_mov_b64 exec, 0x1111")
        a("ds_write_b32 %s, %s offset:%d" % (vr(MXW), vr(MX), L_MX))
        a("s_mov_b64 exec, -1")
        for i in range(8):
            a("v_fma_f32 %s, %s, %s, -%s" % (vr(SC + i), vr(SC + i), vr(T + 8), vr(T + 9)))
        for i in range(8):
            a("v_exp_f32 %s, %s" % (vr(SC + i), vr(SC + i)))
        PF = 48
        a("s_nop 0")
        for i in range(4):
            a("v_cvt_pk_bf16_f32 %s, %s, %s" % (vr(T + 1 + i), vr(SC + 2 * i), vr(SC + 2 * i + 1)))
        a("ds_write_b128 %s, %s offset:%d" % (vr(PWA), vr(T + 1, 4), L_P))
        self.flag_add(F_P, VZ, V1)
        self.flag_wait(F_P, 4, VZ, T + 6)
        for ks in range(4):
            a("ds_read_b128 %s, %s offset:%d" % (vr(PF + 4 * ks, 4), vr(PRA), L_P + 1024 * ks))
        FW = 120
        a("ds_read_b128 %s, %s offset:%d" % (vr(FW, 4), vr(MRA), L_MX))
        self.stamp(3)
        a("s_waitcnt lgkmcnt(0)")
        a("v_max3_f32 %s, %s, %s, %s" % (vr(MX), vr(FW), vr(FW + 1), vr(FW + 2)))
        a("v_max_f32 %s, %s, %s" % (vr(MX), vr(MX), vr(FW + 3)))
        a("v_mul_f32 %s, %s, %s" % (vr(T + 9), vr(MX), vr(T + 8)))
        for i in range(4):
            a("v_fma_f32 %s, %s, %s, -%s" % (vr(FW + i), vr(FW + i), vr(T + 8), vr(T + 9)))
        for i in range(4):
            a("v_exp_f32 %s, %s" % (vr(FW + i), vr(FW + i)))
        D = 128
        TS = 124
        Lns = a.newlabel("NS")
        a("s_cmp_lg_u32 s28, 0")
        a("s_cbranch_scc1 %s" % Lns)
        ON = 64
        for t in range(4):
            a("v_mov_b32 %s, 0x3f803f80" % vr(ON + t))
        a("s_nop 1")
        for ks in range(4):
            a("v_mfma_f32_16x16x32_bf16 %s, %s, %s, 0" % (vr(D + 4 * ks, 4), vr(PF + 4 * ks, 4), vr(ON, 4)))
        a("v_mov_b32 %s, %s" % (vr(TS), vr(MX)))
        a("v_mov_b32 %s, %s" % (vr(TS + 2), vr(TG + 2)))
        a("v_mov_b32 %s, %s" % (vr(TS + 3), vr(TG + 3)))
        a("s_nop 4")
        a("v_mul_f32 %s, %s, %s" % (vr(TS + 1), vr(FW), vr(D)))
        for ks in range(1, 4):
            a("v_fmac_f32 %s, %s, %s" % (vr(TS + 1), vr(FW + ks), vr(D + 4 * ks)))
        a(Lns + ":")
        wo_first = self.order.index("o") < self.order.index("v")

        def read_wo():
            self.flag_wait(F_WO, 1, VZ, T, sleep=0 if not wo_first else 1)
            for i in range(4):
                a("ds_read_b128 %s, %s offset:%d" % (vr(WO + 4 * i, 4), vr(WOA), 1024 * i))
        if wo_first:
            read_wo()
        self.stamp(4)
        VF = 64
        S_V, S_I = 44, 45
        a("s_mov_b32 s%d, 0" % S_V)
        a("s_mov_b32 s%d, 0" % S_I)
        for ks in range(4):
            Lgo, Lsp = a.newlabel("V"), a.newlabel("V")
            a("s_cmp_ge_u32 s%d, %d" % (S_V, ks + 1))
            a("s_cbranch_scc1 %s" % Lgo)
            a("s_mov_b32 s%d, 0" % S_CNT)
            a(Lsp + ":")
            a("ds_read_b64 %s, %s offset:%d" % (vr(T + 1, 2), vr(VZ), F_V))
            a("s_add_u32 s%d, s%d, 1" % (S_CNT, S_CNT))
            a("s_cmp_gt_u32 s%d, %d" % (S_CNT, SPIN_MAX))
            a("s_cbranch_scc1 L_end")
            a("s_waitcnt lgkmcnt(0)")
            a("v_readfirstlane_b32 s%d, %s" % (S_V, vr(T + 1)))
            a("v_readfirstlane_b32 s%d, %s" % (S_I, vr(T + 2)))
            a("s_cmp_lt_u32 s%d, %d" % (S_V, ks + 1))
            a("s_cbranch_scc1 %s" % Lsp)
            a(Lgo + ":")
            if ks == 3:
                self.stamp(5)
            for u in range(2):
                for jh in range(2):
                    a("ds_read_b64_tr_b16 %s, %s offset:%d" % (vr(VF + 8 * ks + 4 * u + 2 * jh, 2), vr(VO + u), 8192 * ks + 1024 * jh))
            if ks:
                a("s_waitcnt lgkmcnt(4)")
                for u in range(2):
                    a("v_mfma_f32_16x16x32_bf16 %s, %s, %s, 0" % (vr(D + 8 * (ks - 1) + 4 * u, 4), vr(PF + 4 * (ks - 1), 4), vr(VF + 8 * (ks - 1) + 4 * u, 4)))
        for u in range(2):
            a("s_waitcnt lgkmcnt(%d)" % (2 - 2 * u))
            a("v_mfma_f32_16x16x32_bf16 %s, %s, %s, 0" % (vr(D + 24 + 4 * u, 4), vr(PF + 12, 4), vr(VF + 24 + 4 * u, 4)))
        a("v_mul_f32 %s, %s, %s" % (vr(TG), vr(FW), vr(D)))
        a("v_mul_f32 %s, %s, %s" % (vr(TG + 1), vr(FW), vr(D + 4)))
        for ks in range(1, 3):
            a("v_fmac_f32 %s, %s, %s" % (vr(TG), vr(FW + ks), vr(D + 8 * ks)))
            a("v_fmac_f32 %s, %s, %s" % (vr(TG + 1), vr(FW + ks), vr(D + 8 * ks + 4)))
        a("s_nop 1")
        a("v_fmac_f32 %s, %s, %s" % (vr(TG), vr(FW + 3), vr(D + 24)))
        a("v_fmac_f32 %s, %s, %s" % (vr(TG + 1), vr(FW + 3), vr(D + 28)))
        if self.sinit:
            Li = a.newlabel("I")
            a("s_cmp_ge_u32 s%d, 2" % S_I)
            a("s_cbranch_scc1 %s" % Li)
            self.flag_wait(F_INIT, 2, VZ, T)
            a(Li + ":")
        self.store_mode(OA, TG)
        Lns = a.newlabel("NS")
        a("s_cmp_lg_u32 s28, 0")
        a("s_cbranch_scc1 %s" % Lns)
        a("s_mov_b32 s42, 0x00010001")
        a("s_mov_b32 s43, 0x00010001")
        a("s_mov_b64 exec, s[42:43]")
        self.store_mode(STA, TS)
        a("s_mov_b64 exec, -1")
        a(Lns + ":")
        self.flag_add(F_OPUB, VZ, V1)
        self.stamp(6)
        if not wo_first:
            read_wo()
        AF = 64
        OG = 8
        Lsp = a.newlabel("O")
        a("s_mov_b32 s%d, 0" % S_CNT)
        a(Lsp + ":")
        a("ds_read_b128 %s, %s offset:%d" % (vr(OG, 4), vr(ORA), L_O))
        a("s_add_u32 s%d, s%d, 1" % (S_CNT, S_CNT))
        a("s_cmp_gt_u32 s%d, %d" % (S_CNT, SPIN_MAX))
        a("s_cbranch_scc1 L_end")
        a("s_waitcnt lgkmcnt(0)")
        a("v_and_b32 %s, %s, %s" % (vr(OG + 1), vr(OG + 1), vr(OG + 3)))
        a("v_cmp_ne_u32 vcc, 1, %s" % vr(OG + 1))
        a("s_cbranch_vccnz %s" % Lsp)
        for i in range(4):
            src = OG + 2 * (i >> 1)
            for t in range(4):
                a("v_perm_b32 %s, %s, %s, %s" % (vr(AF + 4 * i + t), vr(src), vr(src), vr(SEL + 4 * (i & 1) + t)))
            if i:
                a("v_mfma_f32_16x16x32_bf16 %s, %s, %s, %s" % (vr(OD, 4), vr(AF + 4 * (i - 1), 4), vr(WO + 4 * (i - 1), 4), "0" if i == 1 else vr(OD, 4)))
        a("s_nop 1")
        a("v_mfma_f32_16x16x32_bf16 %s, %s, %s, %s" % (vr(OD, 4), vr(AF + 12, 4), vr(WO + 12, 4), vr(OD, 4)))
        a("s_nop 7")
        a("v_permlane32_swap_b32 %s, %s" % (vr(OD), vr(OD + 2)))
        a("v_permlane32_swap_b32 %s, %s" % (vr(OD + 1), vr(OD + 3)))
        a("v_mov_b32 %s, %s" % (vr(TG), vr(OD)))
        a("v_mov_b32 %s, %s" % (vr(TG + 1), vr(OD + 1)))
        self.store_mode(SA, TG)
        if self.sgate:
            self.flag_add(F_SPUB, VZ, V1)
        self.stamp(7)
        self.end(T)

    def role_c0(self):
        a = self.a
        VZ, V1 = 1, 2
        X = 4
        W = 40
        AF = 104
        SEL = 168
        ACC = 176
        T = 180
        self.role = "C0"
        if self.code_pf:
            a("s_getpc_b64 s[52:53]")
            a("L_pc:")
            a("s_lshl_b32 s54, s27, 10")
            a("v_add_u32 v3, s54, v37")
            a("v_min_u32 v3, L_code_end-L_pc-16, v3")
            a("global_load_dwordx4 v[188:191], v3, s[52:53]")
        a("""
        s_lshl_b32 s41, s40, 8
        v_lshl_add_u32 v38, v0, 2, s41
        s_lshl_b32 s41, s40, 20               ; rb * 128 * 8192
        s_lshl_b32 s42, s26, 10               ; g * 512 * 2
        s_add_u32 s41, s41, s42
        s_and_b32 s42, s27, 7
        s_lshl_b32 s42, s42, 7                ; cb * 128
        s_add_u32 s41, s41, s42
        v_lshrrev_b32 v3, 3, v0
        v_lshlrev_b32 v3, 17, v3              ; 16 rows * 8192
        v_and_b32 v36, 7, v0
        v_lshl_add_u32 v3, v36, 4, v3
        v_add_u32 v3, s41, v3
        s_mov_b32 m0, %d
        s_movk_i32 s41, 15
        s_waitcnt lgkmcnt(0)
        global_load_dwordx4 %s, v37, %s
        global_load_dword %s, v38, %s
        L_wq:
        global_load_lds_dwordx4 v3, %s %s
        v_add_u32 v3, 0x2000, v3
        s_addk_i32 m0, 0x400
        s_sub_u32 s41, s41, 1
        s_cbranch_scc0 L_wq
        s_barrier
        L_C0_rest:
        s_setprio 3
        s_load_dwordx2 s[30:31], s[24:25], %d
        v_mov_b32 v1, 0
        v_mov_b32 v2, 1
        """ % (L_W1, vr(X, 4), sp(S_X), vr(X + 4), sp(S_X), sp(S_WQ), self.nt_w, EPOCH))
        self.stamp(1)
        self.selectors(SEL, T, both_parities=True)
        a("s_waitcnt vmcnt(16)")
        self.stamp(2)
        self.layernorm_rows(X, L_XQ, VZ)
        self.tags()
        a("s_waitcnt lgkmcnt(0)")
        self.stamp(3)
        XN = X + 8
        a("v_add_u32 v37, %d, v37" % L_W1)
        for i in range(16):
            for t in range(4):
                a("v_perm_b32 %s, %s, %s, %s" % (vr(AF + 4 * i + t), vr(XN + (i >> 1)), vr(XN + (i >> 1)), vr(SEL + 4 * (i & 1) + t)))
        for q in range(4):
            a("s_waitcnt vmcnt(%d)" % (12 - 4 * q))
            for i in range(4 * q, 4 * q + 4):
                a("ds_read_b128 %s, v37 offset:%d" % (vr(W + 4 * i, 4), 1024 * i))
            if q:
                for i in range(4 * q - 4, 4 * q):
                    a("s_waitcnt lgkmcnt(%d)" % (4 + (4 * q - 1 - i)))
                    a("v_mfma_f32_16x16x32_bf16 %s, %s, %s, %s" % (vr(ACC, 4), vr(AF + 4 * i, 4), vr(W + 4 * i, 4), "0" if i == 0 else vr(ACC, 4)))
        for i in range(12, 16):
            a("s_waitcnt lgkmcnt(%d)" % (15 - i))
            a("v_mfma_f32_16x16x32_bf16 %s, %s, %s, %s" % (vr(ACC, 4), vr(AF + 4 * i, 4), vr(W + 4 * i, 4), vr(ACC, 4)))
        a("s_nop 7")
        a("v_permlane32_swap_b32 %s, %s" % (vr(ACC), vr(ACC + 2)))
        a("v_permlane32_swap_b32 %s, %s" % (vr(ACC + 1), vr(ACC + 3)))
        a("s_nop 1")
        a("v_add_f32_dpp %s, %s, %s row_ror:8 row_mask:0xf bank_mask:0xf" % (vr(ACC), vr(ACC + 2), vr(ACC)))
        a("v_add_f32_dpp %s, %s, %s row_ror:8 row_mask:0xf bank_mask:0xf" % (vr(ACC + 1), vr(ACC + 3), vr(ACC + 1)))
        self.stamp(4)
        a("v_mov_b32 %s, s%d" % (vr(ACC + 2), S_T1X))
        a("v_mov_b32 %s, s%d" % (vr(ACC + 3), S_T1X + 1))
        a("""
        s_lshl_b32 s41, s26, 14               ; g * 16384
        s_lshr_b32 s42, s27, 3
        s_lshl_b32 s42, s42, 12               ; rb * 4096
        s_add_u32 s41, s41, s42
        s_and_b32 s42, s27, 7
        s_lshl_b32 s42, s42, 9                ; cb * 512
        s_add_u32 s41, s41, s42
        s_add_u32 s41, s41, %d
        v_lshrrev_b32 v3, 4, v0               ; 2 hi + g'
        v_lshlrev_b32 v3, 3, v3
        v_and_b32 v36, 7, v0
        v_add_u32 v3, v3, v36                 ; pos = 16 hi + 8 g' + n
        v_lshl_add_u32 v3, v3, 4, s41
        v_add_u32 v37, %d, v3
        """ % (H1, REGB))
        a("s_mov_b32 s42, 0x00ff00ff")
        a("s_mov_b32 s43, 0x00ff00ff")
        a("s_mov_b64 exec, s[42:43]")
        a("global_store_dwordx4 v3, %s, %s" % (vr(ACC, 4), sp(S_WS)))
        if self.qack:
            a("global_store_dwordx4 v37, %s, %s sc1" % (vr(ACC, 4), sp(S_WS)))
            a("s_mov_b64 exec, -1")
            self.stamp(5)
            a("s_waitcnt vmcnt(1)")
            if self.qsleep:
                a("s_sleep %d" % self.qsleep)
            self.flag_add(F_QPUB, VZ, V1)
        else:
            a("s_mov_b64 exec, -1")
            self.flag_add(F_QPUB, VZ, V1)
            a("s_mov_b64 exec, s[42:43]")
            a("global_store_dwordx4 v37, %s, %s sc1" % (vr(ACC, 4), sp(S_WS)))
            a("s_mov_b64 exec, -1")
        if not self.qack:
            self.stamp(5)
        SA, OA = 4, 5
        G = 8
        a("""
        s_lshl_b32 s41, s26, 11               ; g * 2048
        s_lshr_b32 s42, s27, 3
        s_lshl_b32 s42, s42, 9                ; head * 512
        s_add_u32 s41, s41, s42
        s_add_u32 s41, s41, %d
        v_lshrrev_b32 v3, 3, v0
        v_lshl_add_u32 %s, v3, 4, s41
        s_lshl_b32 s41, s26, 17
        s_lshl_b32 s42, s27, 12
        s_add_u32 s41, s41, s42
        s_add_u32 s41, s41, %d
        v_lshl_add_u32 %s, v0, 4, s41
        """ % (ST, vr(SA), H2, vr(OA)))
        a("v_lshlrev_b32 v6, 3, v0")
        self.flag_wait(F_Q, 1, VZ, T, sleep=2)
        self.read_mode(VZ, T)
        self.stamp(6)
        GO = 40
        self.flag_wait(F_OPUB, self.ogate, VZ, T, sleep=1)
        self.stamp(7)
        self.poll([(G + 4 * i, SA, 128 * i) for i in range(4)] + [(GO + 4 * i, OA, 1024 * i) for i in range(4)], S_MB, cnt=12)
        self.stamp(8)
        MX = 24
        a("v_max3_f32 %s, %s, %s, %s" % (vr(MX), vr(G), vr(G + 4), vr(G + 8)))
        a("v_max_f32 %s, %s, %s" % (vr(MX), vr(MX), vr(G + 12)))
        self.xor_reduce("v_max_f32", [MX], [8, 16, 32], T)
        WT = 26
        for i in range(4):
            a("v_sub_f32 %s, %s, %s" % (vr(WT + i), vr(G + 4 * i), vr(MX)))
        for i in range(4):
            a("v_mul_f32 %s, 0x%x, %s" % (vr(WT + i), LOG2E, vr(WT + i)))
        for i in range(4):
            a("v_exp_f32 %s, %s" % (vr(WT + i), vr(WT + i)))
        LS, A0, A1 = 25, 30, 31
        a("s_nop 0")
        a("v_mul_f32 %s, %s, %s" % (vr(A0), vr(WT), vr(GO)))
        a("v_mul_f32 %s, %s, %s" % (vr(A1), vr(WT), vr(GO + 1)))
        a("v_mul_f32 %s, %s, %s" % (vr(LS), vr(WT), vr(G + 1)))
        for i in range(1, 4):
            a("v_fmac_f32 %s, %s, %s" % (vr(A0), vr(WT + i), vr(GO + 4 * i)))
            a("v_fmac_f32 %s, %s, %s" % (vr(A1), vr(WT + i), vr(GO + 4 * i + 1)))
            a("v_fmac_f32 %s, %s, %s" % (vr(LS), vr(WT + i), vr(G + 4 * i + 1)))
        self.xor_reduce("v_add_f32", [LS, A0, A1], [8, 16, 32], T)
        a("v_rcp_f32 %s, %s" % (vr(T), vr(LS)))
        a("s_nop 0")
        a("v_fma_f32 %s, -%s, %s, 1.0" % (vr(T + 1), vr(T), vr(LS)))
        a("v_fmac_f32 %s, %s, %s" % (vr(T), vr(T + 1), vr(T)))
        a("v_mul_f32 %s, %s, %s" % (vr(A0), vr(A0), vr(T)))
        a("v_mul_f32 %s, %s, %s" % (vr(A1), vr(A1), vr(T)))
        a("v_cvt_pk_bf16_f32 %s, %s, %s" % (vr(A0), vr(A0), vr(A1)))
        a("v_mov_b32 %s, 1" % vr(A1))
        a("s_mov_b64 exec, 0xff")
        a("ds_write_b64 %s, %s offset:%d" % (vr(6), vr(A0, 2), L_O))
        a("s_mov_b64 exec, -1")
        self.stamp(9)
        self.end(T)

    def role_c1(self):
        a = self.a
        VZ, V1 = 1, 2
        X = 4
        W = 40
        AF = 104
        SEL = 168
        ACC = 176
        T = 180
        a("L_C1:")
        a("v_mov_b32 v1, 0\nv_mov_b32 v2, 1")
        self.role = "C1"
        a("s_barrier")
        a("s_setprio 3")
        self.mlp_scalars()
        a("""
        v_lshlrev_b32 v42, 4, v0
        s_and_b32 s40, s27, 7
        s_lshl_b32 s41, s40, 7
        v_and_b32 v3, 31, v0
        v_lshl_add_u32 v43, v3, 2, s41
        """)
        a("""
        s_lshl_b32 s42, s50, 7
        s_and_b32 s43, s27, 7
        s_mul_i32 s43, s43, %d
        s_add_u32 s42, s42, s43
        v_lshrrev_b32 v6, 3, v0
        v_mul_u32_u24 v6, %d, v6
        v_and_b32 v7, 7, v0
        v_lshl_add_u32 v6, v7, 4, v6
        v_add_u32 v44, s42, v6
        """ % (64 * 3584, 8 * 3584))
        self.args_ready()
        a("""
        s_lshl_b32 s41, s26, 14
        s_lshl_b32 s42, s27, 9
        s_add_u32 s44, s41, s42
        s_add_u32 s44, s44, %d                ; own outbox of hidden-unit partials
        """ % HB)
        W1R = 48
        Lb = a.newlabel("B")
        a("s_cmp_lg_u32 s%d, 0" % S_ISB)
        a("s_cbranch_scc1 %s" % Lb)
        self.stamp(1)
        self.end(T)
        a(Lb + ":")
        a("global_load_dwordx4 %s, v42, %s" % (vr(X, 4), sp(S_X)))
        a("global_load_dword %s, v43, %s" % (vr(X + 4), sp(S_X)))
        for i in range(8):
            a("global_load_dwordx4 %s, v44, %s %s" % (vr(W1R + 4 * i, 4), sp(S_W1), self.nt_w))
            if i < 7:
                a("v_add_u32 v44, 3584, v44")
        a("s_waitcnt vmcnt(8)")
        self.stamp(1)
        self.role = "C1B"
        self.selectors(SEL, T, both_parities=True)
        self.layernorm_rows(X, L_XH, VZ, rows=64)
        self.tags()
        a("v_lshlrev_b32 v3, 4, v0")
        a("v_add_u32 v38, %d, v3" % L_W2)
        XN = X + 8
        for i in range(8):
            for t in range(4):
                a("v_perm_b32 %s, %s, %s, %s" % (vr(AF + 4 * i + t), vr(XN + (i >> 1)), vr(XN + (i >> 1)), vr(SEL + 4 * (i & 1) + t)))
        a("""
        v_lshrrev_b32 v3, 4, v0
        v_lshlrev_b32 v3, 3, v3
        v_and_b32 v36, 7, v0
        v_add_u32 v3, v3, v36
        v_lshl_add_u32 v3, v3, 4, s44
        s_lshr_b32 s41, s27, 3
        s_lshl_b32 s41, s41, 12               ; cbl * 4096
        s_lshl_b32 s42, s26, 14
        s_add_u32 s41, s41, s42
        s_and_b32 s42, s27, 7
        s_lshl_b32 s42, s42, 4                ; j * 16
        s_add_u32 s41, s41, s42
        s_add_u32 s41, s41, %d
        v_bfe_u32 v4, v0, 2, 3
        v_lshlrev_b32 v4, 9, v4               ; producer * 512
        v_and_b32 v5, 1, v0
        v_lshl_add_u32 v4, v5, 8, v4          ; 16 (q & 1) * 16
        v_bfe_u32 v5, v0, 1, 1
        v_lshl_add_u32 v4, v5, 7, v4          ; 8 (q >> 1) * 16
        v_add_u32 v4, s41, v4
        """ % HB)
        a("s_waitcnt vmcnt(0)")
        self.stamp(2)
        for i in range(8):
            a("v_mfma_f32_16x16x32_bf16 %s, %s, %s, %s" % (vr(ACC, 4), vr(AF + 4 * i, 4), vr(W1R + 4 * i, 4), "0" if i == 0 else vr(ACC, 4)))
        a("s_nop 7")
        a("v_permlane32_swap_b32 %s, %s" % (vr(ACC), vr(ACC + 2)))
        a("v_permlane32_swap_b32 %s, %s" % (vr(ACC + 1), vr(ACC + 3)))
        a("s_nop 1")
        a("v_add_f32_dpp %s, %s, %s row_ror:8 row_mask:0xf bank_mask:0xf" % (vr(ACC), vr(ACC + 2), vr(ACC)))
        a("v_add_f32_dpp %s, %s, %s row_ror:8 row_mask:0xf bank_mask:0xf" % (vr(ACC + 1), vr(ACC + 3), vr(ACC + 1)))
        self.stamp(3)
        a("v_mov_b32 %s, s%d" % (vr(ACC + 2), S_T))
        a("v_mov_b32 %s, s%d" % (vr(ACC + 3), S_T + 1))
        a("v_add_u32 v5, %d, v3" % REGB)
        a("s_mov_b32 s42, 0x00ff00ff")
        a("s_mov_b32 s43, 0x00ff00ff")
        a("s_mov_b64 exec, s[42:43]")
        a("global_store_dwordx4 v3, %s, %s" % (vr(ACC, 4), sp(S_WS)))
        a("s_mov_b64 exec, -1")
        self.flag_add(F_HPUB, VZ, V1)
        a("s_mov_b64 exec, s[42:43]")
        a("global_store_dwordx4 v5, %s, %s sc1" % (vr(ACC, 4), sp(S_WS)))
        a("s_mov_b64 exec, -1")
        G = 8
        self.selectors(SEL, T, both_parities=False)
        self.flag_wait(F_Q, 1, VZ, T, sleep=1)
        self.read_mode(VZ, T)
        self.poll([(G, 4, 0)], S_MB)
        self.stamp(4)
        self.xor_reduce("v_add_f32", [G, G + 1], ["r4", 8, 16], T)
        a("v_max_f32 %s, 0, %s" % (vr(G), vr(G)))
        a("v_max_f32 %s, 0, %s" % (vr(G + 1), vr(G + 1)))
        a("v_cvt_pk_bf16_f32 %s, %s, %s" % (vr(G), vr(G), vr(G + 1)))
        a("s_nop 1")
        for r in range(4):
            a("v_mov_b32_dpp %s, %s quad_perm:[%d,%d,%d,%d] row_mask:0x%x bank_mask:0xf" % (vr(G + 4), vr(G), r, r, r, r, 1 << r))
            if r < 3:
                a("s_nop 1")
        a("""
        s_lshl_b32 s42, s26, 17
        s_lshl_b32 s43, s27, 7
        s_add_u32 s42, s42, s43
        s_add_u32 s42, s42, %d
        v_lshrrev_b32 v3, 3, v0
        v_lshlrev_b32 v3, 12, v3
        v_lshl_add_u32 v3, v36, 4, v3
        v_add_u32 v3, s42, v3
        """ % H3G)
        for i in range(2):
            for t in range(4):
                a("v_perm_b32 %s, %s, %s, %s" % (vr(AF + 4 * i + t), vr(G + 4), vr(G + 4), vr(SEL + 4 * i + t)))
        self.flag_wait(F_W2, 1, VZ, T, sleep=1)
        for i in range(8):
            a("ds_read_b128 %s, v38 offset:%d" % (vr(W + 4 * i, 4), 1024 * i))
        for w in range(4):
            for i in range(2):
                a("s_waitcnt lgkmcnt(%d)" % (7 - (2 * w + i)))
                a("v_mfma_f32_16x16x32_bf16 %s, %s, %s, %s" % (vr(AF + 16 + 4 * w, 4), vr(AF + 4 * i, 4), vr(W + 8 * w + 4 * i, 4), "0" if i == 0 else vr(AF + 16 + 4 * w, 4)))
        a("s_nop 7")
        for w in range(4):
            d = AF + 16 + 4 * w
            a("v_permlane32_swap_b32 %s, %s" % (vr(d), vr(d + 2)))
            a("v_permlane32_swap_b32 %s, %s" % (vr(d + 1), vr(d + 3)))
        a("s_nop 0")
        for w in range(4):
            d = AF + 16 + 4 * w
            a("v_mov_b32 %s, s%d" % (vr(d + 2), S_T))
            a("v_mov_b32 %s, s%d" % (vr(d + 3), S_T + 1))
        for w in range(4):
            self.store_mode(3, AF + 16 + 4 * w)
            if w < 3:
                a("v_add_u32 v3, 0x8000, v3")
        self.stamp(5)
        self.end(T)

    def role_c2(self):
        a = self.a
        VZ, V1 = 1, 2
        T = 100
        G = 8
        a("L_C2:")
        a("v_mov_b32 v1, 0\nv_mov_b32 v2, 1")
        self.role = "C2"
        a("s_setprio 3")
        a("v_lshlrev_b32 v3, 2, v0")
        a("s_mov_b32 exec_hi, 0")
        a("ds_write_b32 v3, v1 offset:%d" % L_F)
        a("s_mov_b64 exec, -1")
        self.args_ready()
        a("s_barrier")
        self.mlp_scalars()
        XF, FA, OUTA = 80, 81, 82
        a("""
        s_max_u32 s45, s27, 28
        s_sub_u32 s45, s45, 28
        s_lshl_b32 s45, s45, 3
        s_add_u32 s45, s45, s26               ; column set c'
        s_lshr_b32 s41, s45, 3
        s_lshl_b32 s41, s41, 7                ; 128 (c' >> 3)
        s_and_b32 s42, s45, 1
        s_lshl_b32 s42, s42, 6                ; 64 (c' & 1)
        s_add_u32 s41, s41, s42
        s_bfe_u32 s42, s45, 0x10001
        s_lshl_b32 s42, s42, 2
        s_add_u32 s41, s41, s42
        s_bfe_u32 s42, s45, 0x10002
        s_lshl_b32 s42, s42, 1
        s_add_u32 s41, s41, s42
        v_and_b32 v3, 7, v0
        v_lshlrev_b32 v3, 3, v3
        v_add_u32 v3, s41, v3                 ; first column of the pair
        v_lshlrev_b32 %s, 1, v3               ; byte offset in x / out
        s_lshl_b32 s41, s45, 11
        s_add_u32 s41, s41, %d
        v_lshrrev_b32 v3, 3, v0
        v_lshlrev_b32 v3, 8, v3
        v_and_b32 v83, 7, v0
        v_lshl_add_u32 v3, v83, 4, v3
        v_add_u32 %s, s41, v3
        """ % (vr(OUTA), H3B, vr(FA)))
        Lnf = a.newlabel("NF")
        a("s_cmp_lt_u32 s27, 28")
        a("s_cbranch_scc1 %s" % Lnf)
        a("global_load_dword %s, %s, %s" % (vr(XF), vr(OUTA), sp(S_X)))
        a("global_load_dwordx4 v[84:87], %s, %s sc1" % (vr(FA), sp(S_WS)))
        a("global_load_dwordx4 v[88:91], %s, %s offset:128 sc1" % (vr(FA), sp(S_WS)))
        a(Lnf + ":")
        a("""
        s_lshl_b32 s41, s26, 14
        s_add_u32 s41, s41, %d
        v_lshl_add_u32 v4, v0, 4, s41
        v_add_u32 v5, 0x1000, v4
        v_add_u32 v6, 0x2000, v4
        v_add_u32 v7, 0x3000, v4
        """ % H1)
        qloads = [(G + 16 * hd + 4 * rb, 4 + rb, 1024 * hd) for hd in range(4) for rb in range(4)]
        self.tags()
        self.stamp(1)
        self.flag_wait(F_QPUB, 1, VZ, T, sleep=1)
        self.stamp(2)
        Lslow, Lgot = a.newlabel("Q"), a.newlabel("Q")
        if not self.force_global:
            self.poll(qloads, S_WS, tag=S_T1X, limit=A_TIMEOUT, on_timeout=Lslow, cnt=12)
            a("s_branch %s" % Lgot)
        a(Lslow + ":")
        a("s_waitcnt vmcnt(0)")
        a("s_add_u32 s46, s%d, %d" % (S_WS, REGB))
        a("s_addc_u32 s47, s%d, 0" % (S_WS + 1))
        L = a.newlabel("P")
        a("s_mov_b32 s%d, 0" % S_CNT)
        a(L + ":")
        for (vd, va, off) in qloads:
            a("global_load_dwordx4 %s, %s, s[46:47] offset:%d sc1" % (vr(vd, 4), vr(va), off))
        a("s_add_u32 s%d, s%d, 1" % (S_CNT, S_CNT))
        a("s_cmp_gt_u32 s%d, %d" % (S_CNT, POLL_MAX))
        a("s_cbranch_scc1 L_end")
        a("s_waitcnt vmcnt(0)")
        a("v_mov_b32 %s, 0" % vr(T))
        a("v_mov_b32 %s, 0" % vr(T + 1))
        for (vd, va, off) in qloads:
            a("v_xor_b32 %s, s%d, %s" % (vr(T + 2), S_T, vr(vd + 2)))
            a("v_xor_b32 %s, s%d, %s" % (vr(T + 3), S_T + 1, vr(vd + 3)))
            a("v_and_b32 %s, 0xfffffff0, %s" % (vr(T + 3), vr(T + 3)))
            a("v_or3_b32 %s, %s, %s, %s" % (vr(T), vr(T), vr(T + 2), vr(T + 3)))
            a("v_xor_b32 %s, s%d, %s" % (vr(T + 3), S_T1X + 1, vr(vd + 3)))
            a("v_or_b32 %s, %s, %s" % (vr(T + 1), vr(T + 1), vr(T + 3)))
        a("v_cmp_ne_u32 vcc, 0, %s" % vr(T))
        a("s_cbranch_vccnz %s" % L)
        a("v_cmp_ne_u32 vcc, 0, %s" % vr(T + 1))
        a("s_cbranch_vccz %s" % Lgot)
        self.flag_add(F_REM, VZ, V1)
        a(Lgot + ":")
        self.stamp(3)
        for hd in range(4):
            b = G + 16 * hd
            for e in range(2):
                a("v_add_f32 %s, %s, %s" % (vr(b + e), vr(b + e), vr(b + 4 + e)))
                a("v_add_f32 %s, %s, %s" % (vr(b + 8 + e), vr(b + 8 + e), vr(b + 12 + e)))
            for e in range(2):
                a("v_add_f32 %s, %s, %s" % (vr(b + e), vr(b + e), vr(b + 8 + e)))
            a("v_cvt_pk_bf16_f32 %s, %s, %s" % (vr(b), vr(b), vr(b + 1)))
        a("""
        v_lshrrev_b32 v72, 5, v0              ; cb_local
        v_lshlrev_b32 v72, 7, v72             ; 64 columns * 2 B
        v_and_b32 v73, 7, v0
        v_lshl_add_u32 v72, v73, 4, v72       ; 8 n * 2 B
        v_bfe_u32 v73, v0, 3, 1
        v_lshl_add_u32 v72, v73, 3, v72       ; 4 g' * 2 B
        v_bfe_u32 v73, v0, 4, 1
        v_lshl_add_u32 v72, v73, 2, v72       ; 2 s * 2 B
        """)
        for hd in range(4):
            a("ds_write_b32 v72, %s offset:%d" % (vr(G + 16 * hd), L_Q + 320 * hd))
        self.flag_add(F_Q, VZ, V1)
        self.stamp(4)
        SA, GA, BA = 4, 5, 6
        a("""
        s_lshl_b32 s41, s26, 17
        s_lshl_b32 s42, s27, 12
        s_add_u32 s41, s41, s42
        v_lshl_add_u32 v3, v0, 4, s41
        v_add_u32 %s, %d, v3
        v_add_u32 %s, %d, v3
        s_lshl_b32 s41, s27, 11
        s_lshl_b32 s42, s26, 8
        s_add_u32 s41, s41, s42
        s_add_u32 s41, s41, %d
        v_lshl_add_u32 %s, v0, 4, s41
        """ % (vr(SA), H3S, vr(GA), H3G, H3B, vr(BA)))
        self.read_mode(VZ, T)
        if self.sinit:
            for i in range(4):
                a("v_mov_b32 %s, 0" % vr(56 + i))
            for i in range(4):
                a("global_store_dwordx4 %s, v[56:59], %s offset:%d" % (vr(SA), sp(S_WS), 1024 * i))
            a("s_waitcnt vmcnt(0)")
            self.flag_add(F_INIT, VZ, V1)
        GS = 40
        GG, GAD, GW = 24, 44, 48
        a("v_mov_b32 %s, 0" % vr(GS))
        a("v_mov_b32 %s, 0" % vr(GS + 1))
        Lng = a.newlabel("NG")
        a("s_cmp_eq_u32 s49, 0")
        a("s_cbranch_scc1 %s" % Lng)
        a("v_lshrrev_b32 v3, 3, v0")
        for i in range(4):
            a("v_add_u32 v52, %d, v3" % (8 * i))
            a("v_cmp_gt_u32 vcc, s49, v52")
            a("v_add_u32 v53, %d, %s" % (1024 * i, vr(GA)))
            a("v_mov_b32 v54, 1.0")
            a("v_cndmask_b32 %s, %s, v53, vcc" % (vr(GAD + i), vr(GA)))
            a("v_cndmask_b32 %s, v1, v54, vcc" % vr(GW + i))
        def fill_s():
            for i in range(4):
                a("global_load_dwordx4 %s, %s, %s offset:%d sc1" % (vr(60 + 4 * i, 4), vr(SA), sp(S_MB), 1024 * i))
        if self.spf == 1 or not self.ggate:
            self.flag_wait(F_OPUB, 4, VZ, T, sleep=1)
        if self.spf == 1:
            fill_s()
        if self.ggate == 1:
            self.flag_wait(F_WO, 1, VZ, T, sleep=1)
        if self.spf == 4:
            fill_s()
        self.poll([(GG + 4 * i, GAD + i, 0) for i in range(4)], S_MB, cnt=15)
        if self.spf == 3:
            for i in range(4):
                a("global_load_dwordx4 %s, %s, %s offset:%d sc1" % (vr(60 + 4 * i, 4), vr(SA), sp(S_MB), 1024 * i))
        for i in range(4):
            for e in range(2):
                a("v_fmac_f32 %s, %s, %s" % (vr(GS + e), vr(GW + i), vr(GG + 4 * i + e)))
        self.xor_reduce("v_add_f32", [GS, GS + 1], [8, 16, 32], T)
        a(Lng + ":")
        self.stamp(5)
        if self.sgate:
            self.flag_wait(F_SPUB, 4, VZ, T)
        else:
            L = a.newlabel("O")
            a("s_mov_b32 s%d, 0" % S_CNT)
            a(L + ":")
            a("ds_read_b32 %s, %s offset:%d" % (vr(T), vr(VZ), L_O + 4))
            a("s_add_u32 s%d, s%d, 1" % (S_CNT, S_CNT))
            a("s_cmp_gt_u32 s%d, %d" % (S_CNT, SPIN_MAX))
            a("s_cbranch_scc1 L_end")
            a("s_waitcnt lgkmcnt(0)")
            a("v_readfirstlane_b32 s%d, %s" % (S_TMP, vr(T)))
            a("s_cmp_lg_u32 s%d, 1" % S_TMP)
            a("s_cbranch_scc1 %s" % L)
        if self.sdelay:
            a("s_sleep %d" % self.sdelay)
        self.stamp(6)
        if self.trace:
            for k in range(11, 16):
                a("s_mov_b32 s%d, 0" % (S_STAMP + 2 * k))
            self.poll_traced([(G + 4 * i, SA, 1024 * i) for i in range(4)], S_MB, 11, 5)
        else:
            self.poll([(G + 4 * i, SA, 1024 * i) for i in range(4)], S_MB, cnt=13)
        self.stamp(7)
        for e in range(2):
            a("v_add_f32 %s, %s, %s" % (vr(G + e), vr(G + e), vr(G + 4 + e)))
            a("v_add_f32 %s, %s, %s" % (vr(G + 8 + e), vr(G + 8 + e), vr(G + 12 + e)))
        for e in range(2):
            a("v_add_f32 %s, %s, %s" % (vr(G + e), vr(G + e), vr(G + 8 + e)))
        self.xor_reduce("v_add_f32", [G, G + 1], [8, 16, 32], T)
        a("""
        v_bfe_u32 v3, v0, 3, 1
        v_cmp_eq_u32 vcc, 1, v3
        v_mov_b32 %s, s%d
        v_mov_b32 %s, s%d
        v_cndmask_b32 %s, %s, %s, vcc
        v_cndmask_b32 %s, %s, %s, vcc
        s_mov_b64 exec, 0xffff
        global_store_dwordx4 %s, %s, %s sc1
        s_mov_b64 exec, -1
        """ % (vr(G + 2), S_T, vr(G + 3), S_T + 1, vr(G), vr(G), vr(GS), vr(G + 1), vr(G + 1), vr(GS + 1), vr(BA), vr(G, 4), sp(S_WS)))
        self.stamp(8)
        Lf = a.newlabel("F")
        a("s_cmp_ge_u32 s27, 28")
        a("s_cbranch_scc1 %s" % Lf)
        self.end(T)
        a(Lf + ":")
        self.role = "C2F"
        G = 12
        self.poll([(G, FA, 0), (G + 4, FA, 128)], S_WS, cnt=14)
        self.stamp(9)
        self.xor_reduce("v_add_f32", [G, G + 1, G + 4, G + 5], [8, 16, 32], T)
        a("v_cvt_pk_bf16_f32 %s, %s, %s" % (vr(G), vr(G), vr(G + 1)))
        a("v_cvt_pk_bf16_f32 %s, %s, %s" % (vr(G + 4), vr(G + 4), vr(G + 5)))
        a("v_and_b32 %s, 0xffff0000, %s" % (vr(G + 1), vr(G)))
        a("v_lshlrev_b32 %s, 16, %s" % (vr(G), vr(G)))
        a("v_and_b32 %s, 0xffff0000, %s" % (vr(G + 5), vr(G + 4)))
        a("v_lshlrev_b32 %s, 16, %s" % (vr(G + 4), vr(G + 4)))
        for e in range(2):
            a("v_mul_f32 %s, 0x%x, %s" % (vr(G + 8 + e), LOG2E ^ 0x80000000, vr(G + 4 + e)))
        for e in range(2):
            a("v_exp_f32 %s, %s" % (vr(G + 8 + e), vr(G + 8 + e)))
        a("s_nop 0")
        for e in range(2):
            a("v_add_f32 %s, 1.0, %s" % (vr(G + 8 + e), vr(G + 8 + e)))
        for e in range(2):
            a("v_rcp_f32 %s, %s" % (vr(G + 8 + e), vr(G + 8 + e)))
        a("s_nop 0")
        for e in range(2):
            a("v_mul_f32 %s, %s, %s" % (vr(G + 4 + e), vr(G + 4 + e), vr(G + 8 + e)))
        a("v_cvt_pk_bf16_f32 %s, %s, %s" % (vr(G + 4), vr(G + 4), vr(G + 5)))
        a("v_and_b32 %s, 0xffff0000, %s" % (vr(G + 5), vr(G + 4)))
        a("v_lshlrev_b32 %s, 16, %s" % (vr(G + 4), vr(G + 4)))
        for e in range(2):
            a("v_mul_f32 %s, %s, %s" % (vr(G + e), vr(G + e), vr(G + 4 + e)))
        a("v_cvt_pk_bf16_f32 %s, %s, %s" % (vr(G), vr(G), vr(G + 1)))
        a("v_and_b32 %s, 0xffff0000, %s" % (vr(G + 1), vr(G)))
        a("v_lshlrev_b32 %s, 16, %s" % (vr(G), vr(G)))
        a("v_and_b32 %s, 0xffff0000, %s" % (vr(G + 5), vr(XF)))
        a("v_lshlrev_b32 %s, 16, %s" % (vr(G + 4), vr(XF)))
        for e in range(2):
            a("v_add_f32 %s, %s, %s" % (vr(G + e), vr(G + e), vr(G + 4 + e)))
        a("v_cvt_pk_bf16_f32 %s, %s, %s" % (vr(G), vr(G), vr(G + 1)))
        a("s_mov_b64 exec, 0xff")
        a("global_store_dword %s, %s, %s" % (vr(OUTA), vr(G), sp(S_OUT)))
        Le = a.newlabel("E")
        a("s_cmp_lg_u32 s45, 0")
        a("s_cbranch_scc1 %s" % Le)
        a("s_mov_b64 exec, 1")
        a("v_mov_b32 %s, s%d" % (vr(G + 2), S_T))
        a("v_mov_b32 %s, s%d" % (vr(G + 3), S_T + 1))
        a("global_store_dwordx2 v1, %s, %s offset:%d sc1" % (vr(G + 2, 2), sp(S_WS), EPOCH))
        a(Le + ":")
        a("s_mov_b64 exec, -1")
        self.stamp(10)
        self.end(T)

    def build(self):
        self.prologue()
        self.role_c0()
        self.role_c1()
        self.role_c2()
        self.role_a()
        self.role_l()
        self.a("L_end:\ns_endpgm\nL_code_end:")
        return wrap(self.a.text(), 256, 512, LDS_BYTES, 192, sgpr=96)


def generate(**kw):
    return Gen(**kw).build()


if __name__ == "__main__":
    out = sys.argv[1] if len(sys.argv) > 1 else "cdna_kernels/%s.s" % NAME
    kw = {}
    for arg in sys.argv[2:]:
        k, v = arg.split("=")
        kw[k] = {"True": True, "False": False}.get(v, v)
    open(out, "w").write(generate(**kw))
    print("wrote", out)
```

```python
import sys
from asmgen import Asm, wrap, NAME

REGB = 0x400000
EPOCH = 0x0
H1 = 0x10000
ST = 0x50000
H3B = 0x70000
HB = 0x80000
H2 = 0x100000
H3S = 0x200000
H3G = 0x300000
STAMP_OFF = 256 << 20

L_Q = 0x0000
L_P = 0x0800
L_MX = 0x1800
L_O = 0x1AC0
L_XQ = 0x1880
L_XH = 0x1980
L_F = 0x1A80
L_K = 0x2000
L_V = 0xA000
L_WO = 0x12000
L_W2 = 0x16000
L_W1 = 0x1A000
F_V, F_INIT, F_Q, F_REM, F_K, F_MAX, F_P, F_ST, F_QPUB, F_OPUB, F_O, F_W1, F_SPUB, F_WO, F_W2, F_HPUB = [L_F + 4 * i for i in range(16)]
LDS_BYTES = 0x1E000

S_X, S_K, S_V, S_WQ, S_WO, S_W1, S_W2, S_OUT, S_WS = 4, 6, 8, 10, 12, 16, 18, 20, 24
S_G, S_C, S_W = 26, 27, 28
S_T = 30
S_XCC = 32
S_MODE = 33
S_MB = 34
S_T1X = 36
S_ISB = 38
S_CNT = 39
S_TMP = 40
S_STAMP = 60

LOG2E = 0x3fb8aa3b
SCALE = 0x3db504f3
A_TIMEOUT = 64
SPIN_MAX = 1 << 20
POLL_MAX = 1 << 16


def sp(n):
    return "s[%d:%d]" % (n, n + 1)


def vr(n, k=1):
    return "v%d" % n if k == 1 else "v[%d:%d]" % (n, n + k - 1)


class Gen:
    def __init__(self, stamps=False, nt_kv="nt", nt_w="nt", force_global=False, mimic=True, window=16, nb_lo=32, nb_hi=24, order="k2v|o", code_pf=1, dbg=0, ileave=1, hold=0, init=2, w2=40, chk=4, init_late=0, ogate=4, sdelay=0, trace=0, sinit=0, sgate=1, spf=1, ofill=0, scramble=0, qack=1, qsleep=0, ggate=0, fstag=5, kgate=1, w1gate=0):
        self.a = Asm()
        self.window = int(window)
        self.nb_lo = int(nb_lo)
        self.nb_hi = int(nb_hi)
        self.order = order
        self.code_pf = int(code_pf)
        self.dbg = int(dbg)
        self.role = None
        if self.dbg:
            self.stamps = stamps = True
        self.ileave = int(ileave)
        self.hold = int(hold)
        self.init = int(init)
        self.w2 = int(w2)
        self.chk = int(chk)
        self.init_late = int(init_late)
        self.ogate = int(ogate)
        self.sdelay = int(sdelay)
        self.trace = int(trace)
        self.sinit = int(sinit)
        self.sgate = int(sgate)
        self.spf = int(spf)
        self.ofill = int(ofill)
        self.scramble = int(scramble)
        self.qack = int(qack)
        self.qsleep = int(qsleep)
        self.ggate = int(ggate)
        self.fstag = int(fstag)
        self.kgate = int(kgate)
        self.w1gate = int(w1gate)
        assert 4 * self.nb_lo + 4 * self.nb_hi == 224 and self.nb_lo % 8 == 0 and self.nb_hi % 8 == 0
        self.stamps = stamps
        self.nt_kv = nt_kv
        self.nt_w = nt_w
        self.force_global = force_global
        self.mimic = mimic
        self.nstamp = 0

    def stamp(self, idx):
        if self.stamps:
            self.a("s_memrealtime %s" % sp(S_STAMP + 2 * idx))

    def flag_add(self, flag, vz, vone):
        a = self.a
        a("s_mov_b64 exec, 1")
        a("ds_add_u32 %s, %s offset:%d" % (vr(vz), vr(vone), flag))
        a("s_mov_b64 exec, -1")

    def flag_set(self, flag, val, vz, vt):
        a = self.a
        a("v_mov_b32 %s, %d" % (vr(vt), val))
        a("s_mov_b64 exec, 1")
        a("ds_write_b32 %s, %s offset:%d" % (vr(vz), vr(vt), flag))
        a("s_mov_b64 exec, -1")

    def flag_wait(self, flag, n, vz, vt, sleep=0):
        a = self.a
        L, Lgo = a.newlabel("W"), a.newlabel("W")
        a("s_mov_b32 s%d, 0" % S_CNT)
        a(L + ":")
        a("ds_read_b32 %s, %s offset:%d" % (vr(vt), vr(vz), flag))
        a("s_waitcnt lgkmcnt(0)")
        a("v_readfirstlane_b32 s%d, %s" % (S_TMP, vr(vt)))
        a("s_cmp_ge_u32 s%d, %d" % (S_TMP, n))
        a("s_cbranch_scc1 %s" % Lgo)
        if sleep:
            a("s_sleep %d" % sleep)
        a("s_add_u32 s%d, s%d, 1" % (S_CNT, S_CNT))
        a("s_cmp_lt_u32 s%d, %d" % (S_CNT, SPIN_MAX))
        a("s_cbranch_scc1 %s" % L)
        a("s_branch L_end")
        a(Lgo + ":")

    def store_mode(self, vaddr, vdata, n=4):
        a = self.a
        L1, L2 = a.newlabel("S"), a.newlabel("S")
        op = "global_store_dwordx%d" % n
        a("s_cmp_lg_u32 s%d, 0" % S_MODE)
        a("s_cbranch_scc1 %s" % L1)
        a("%s %s, %s, %s" % (op, vr(vaddr), vr(vdata, n), sp(S_MB)))
        a("s_branch %s" % L2)
        a(L1 + ":")
        a("%s %s, %s, %s sc1" % (op, vr(vaddr), vr(vdata, n), sp(S_MB)))
        a(L2 + ":")

    def poll_traced(self, loads, base, first_stamp, npass=4):
        a = self.a
        Lok = a.newlabel("PT")
        n = len(loads)
        for k in range(npass):
            a("s_memrealtime %s" % sp(S_STAMP + 2 * (first_stamp + k)))
            for (vd, va, off) in loads:
                a("global_load_dwordx4 %s, %s, %s offset:%d sc1" % (vr(vd, 4), vr(va), sp(base), off))
            for i, (vd, va, off) in enumerate(loads):
                a("s_waitcnt vmcnt(%d)" % (n - 1 - i))
                dst = "vcc" if i == 0 else sp(S_TMP)
                a("v_cmp_ne_u64 %s, %s, %s" % (dst, vr(vd + 2, 2), sp(S_T)))
                if i:
                    a("s_or_b64 vcc, vcc, %s" % sp(S_TMP))
            a("s_cbranch_vccz %s" % Lok)
        self.poll(loads, base)
        a(Lok + ":")

    def poll(self, loads, base, tag=S_T, limit=POLL_MAX, on_timeout="L_end", cnt=None):
        a = self.a
        L, Lok = a.newlabel("P"), a.newlabel("P")
        a("s_mov_b32 s%d, 0" % S_CNT)
        a(L + ":")
        for (vd, va, off) in loads:
            a("global_load_dwordx4 %s, %s, %s offset:%d sc1" % (vr(vd, 4), vr(va), sp(base), off))
        n = len(loads)
        for i, (vd, va, off) in enumerate(loads):
            a("s_waitcnt vmcnt(%d)" % (n - 1 - i))
            dst = "vcc" if i == 0 else sp(S_TMP)
            a("v_cmp_ne_u64 %s, %s, %s" % (dst, vr(vd + 2, 2), sp(tag)))
            if i:
                a("s_or_b64 vcc, vcc, %s" % sp(S_TMP))
        a("s_cbranch_vccz %s" % Lok)
        a("s_add_u32 s%d, s%d, 1" % (S_CNT, S_CNT))
        a("s_cmp_le_u32 s%d, %d" % (S_CNT, limit))
        a("s_cbranch_scc1 %s" % L)
        a("s_branch %s" % on_timeout)
        a(Lok + ":")
        if cnt is not None and self.stamps:
            a("s_mov_b32 s%d, s%d" % (S_STAMP + 2 * cnt, S_CNT))

    def poll_staggered(self, loads, alt, dst, base, sleep):
        a = self.a
        n = len(loads)
        L, LA, LB = a.newlabel("PS"), a.newlabel("PS"), a.newlabel("PS")

        def issue(regs):
            for (vd, (_, va, off)) in zip(regs, loads):
                a("global_load_dwordx4 %s, %s, %s offset:%d sc1" % (vr(vd, 4), vr(va), sp(base), off))

        def check(regs, ok):
            for i, vd in enumerate(regs):
                a("s_waitcnt vmcnt(%d)" % (2 * n - 1 - i))
                dst = "vcc" if i == 0 else sp(S_TMP)
                a("v_cmp_ne_u64 %s, %s, %s" % (dst, vr(vd + 2, 2), sp(S_T)))
                if i:
                    a("s_or_b64 vcc, vcc, %s" % sp(S_TMP))
            a("s_cbranch_vccz %s" % ok)
        ra = [vd for (vd, _, _) in loads]
        a("s_mov_b32 s%d, 0" % S_CNT)
        issue(ra)
        a("s_sleep %d" % sleep)
        a(L + ":")
        issue(alt)
        check(ra, LA)
        issue(ra)
        check(alt, LB)
        a("s_add_u32 s%d, s%d, 1" % (S_CNT, S_CNT))
        a("s_cmp_le_u32 s%d, %d" % (S_CNT, POLL_MAX))
        a("s_cbranch_scc1 %s" % L)
        a("s_branch L_end")
        Ld = a.newlabel("PS")
        a(LB + ":")
        for (x, y) in zip(dst, alt):
            for k in range(2):
                a("v_mov_b32 %s, %s" % (vr(x + k), vr(y + k)))
        a("s_branch %s" % Ld)
        a(LA + ":")
        for (x, y) in zip(dst, ra):
            for k in range(2):
                a("v_mov_b32 %s, %s" % (vr(x + k), vr(y + k)))
        a(Ld + ":")

    def xor_reduce(self, op, regs, steps, tmp):
        a = self.a
        first_dpp = True
        for st in steps:
            if st in (16, 32):
                ins = "v_permlane16_swap_b32" if st == 16 else "v_permlane32_swap_b32"
                for i, r in enumerate(regs):
                    a("v_mov_b32 %s, %s" % (vr(tmp + i), vr(r)))
                if len(regs) < 3:
                    a("s_nop %d" % (2 - len(regs)))
                for i, r in enumerate(regs):
                    a("%s %s, %s" % (ins, vr(r), vr(tmp + i)))
                for i, r in enumerate(regs):
                    a("%s %s, %s, %s" % (op, vr(r), vr(r), vr(tmp + i)))
            else:
                ctl = {1: "quad_perm:[1,0,3,2]", 2: "quad_perm:[2,3,0,1]", "hm": "row_half_mirror", "m": "row_mirror", 8: "row_ror:8", "r4": "row_ror:4"}[st]
                a("s_nop 1" if first_dpp or len(regs) < 3 else "s_nop 0")
                first_dpp = False
                for r in regs:
                    a("%s_dpp %s, %s, %s %s row_mask:0xf bank_mask:0xf" % (op, vr(r), vr(r), vr(r), ctl))

    def read_mode(self, vz, vt):
        a = self.a
        a("ds_read_b32 %s, %s offset:%d" % (vr(vt), vr(vz), F_REM))
        a("s_waitcnt lgkmcnt(0)")
        a("v_readfirstlane_b32 s%d, %s" % (S_MODE, vr(vt)))
        if self.force_global:
            a("s_mov_b32 s%d, 1" % S_MODE)
        a("s_min_u32 s%d, s%d, 1" % (S_MODE, S_MODE))
        a("s_mul_i32 s%d, s%d, %d" % (S_TMP, S_MODE, REGB))
        a("s_add_u32 s%d, s%d, s%d" % (S_MB, S_WS, S_TMP))
        a("s_addc_u32 s%d, s%d, 0" % (S_MB + 1, S_WS + 1))

    def tags(self):
        a = self.a
        a("s_getreg_b32 s32, hwreg(HW_REG_XCC_ID, 0, 4)")
        a("s_waitcnt lgkmcnt(0)")
        a("s_add_u32 s%d, s%d, 0x9E3779B9" % (S_T, S_T))
        a("s_add_u32 s%d, s%d, 0x7F4A7C00" % (S_T + 1, S_T + 1))
        a("s_and_b32 s%d, s%d, 0xFFFFFFE0" % (S_T + 1, S_T + 1))
        a("s_or_b32 s%d, s%d, 0x10" % (S_T + 1, S_T + 1))
        a("s_mov_b32 s%d, s%d" % (S_T1X, S_T))
        a("s_or_b32 s%d, s%d, s%d" % (S_T1X + 1, S_T + 1, S_XCC))

    DBG_MAP = {"A": {0: [(0, True), (1, False)], 1: [(12, False)], 3: [(5, False)], 6: [(7, False)], 7: [(9, False)]},
               "C0": {2: [(14, False)], 4: [(15, False)], 5: [(3, False)], 9: [(8, False)]},
               "C1B": {5: [(13, False)]},
               "C2": {4: [(4, False)], 8: [(10, False)]},
               "C2F": {4: [(4, False)], 8: [(10, False)], 10: [(11, False)]},
               "L": {1: [(2, False)], 3: [(6, False)]}}

    def dump_stamps(self, vt):
        if not self.stamps:
            return
        a = self.a
        if self.dbg:
            a("s_waitcnt lgkmcnt(0)")
            a("s_mov_b64 exec, 1")
            a("v_mov_b32 %s, 0" % vr(vt))
            for st, outs in self.DBG_MAP.get(self.role, {}).items():
                for slot, inv in outs:
                    a("v_mov_b32 %s, s%d" % (vr(vt + 1), S_STAMP + 2 * st))
                    if inv:
                        a("v_not_b32 %s, %s" % (vr(vt + 1), vr(vt + 1)))
                    a("global_atomic_umax %s, %s, s[22:23] offset:%d" % (vr(vt), vr(vt + 1), 4 * slot))
            return
        a("s_waitcnt lgkmcnt(0)")
        a("s_lshl_b32 s%d, s2, 3" % S_TMP)
        a("s_add_u32 s%d, s%d, s%d" % (S_TMP, S_TMP, S_W))
        a("s_lshl_b32 s%d, s%d, 6" % (S_TMP, S_TMP))
        a("s_add_u32 s%d, s%d, %d" % (S_TMP, S_TMP, STAMP_OFF))
        a("s_mov_b64 exec, 1")
        a("v_mov_b32 %s, s%d" % (vr(vt), S_TMP))
        for i in range(16):
            a("v_mov_b32 %s, s%d" % (vr(vt + 1), S_STAMP + 2 * i))
            a("global_store_dword %s, %s, %s offset:%d" % (vr(vt), vr(vt + 1), sp(S_WS), 4 * i))

    def end(self, vt):
        self.dump_stamps(vt)
        self.a("s_endpgm")

    def layernorm_rows(self, base, lds_x, VZ, rows=128):
        a = self.a
        xs, xp = base, base + 4
        f = base + 16
        t = base + 24
        for i in range(4):
            a("v_lshlrev_b32 %s, 16, %s" % (vr(f + 2 * i), vr(xs + i)))
            a("v_and_b32 %s, 0xffff0000, %s" % (vr(f + 2 * i + 1), vr(xs + i)))
        a("v_add_f32 %s, %s, %s" % (vr(t), vr(f), vr(f + 1)))
        a("v_add_f32 %s, %s, %s" % (vr(t + 1), vr(f + 2), vr(f + 3)))
        a("v_add_f32 %s, %s, %s" % (vr(t + 2), vr(f + 4), vr(f + 5)))
        a("v_add_f32 %s, %s, %s" % (vr(t + 3), vr(f + 6), vr(f + 7)))
        a("v_add_f32 %s, %s, %s" % (vr(t), vr(t), vr(t + 1)))
        a("v_add_f32 %s, %s, %s" % (vr(t + 2), vr(t + 2), vr(t + 3)))
        a("v_add_f32 %s, %s, %s" % (vr(t), vr(t), vr(t + 2)))
        self.xor_reduce("v_add_f32", [t], [1, 2, "hm", "m", 16, 32], t + 4)
        a("v_mul_f32 %s, 0x3b000000, %s" % (vr(t), vr(t)))
        for i in range(8):
            a("v_sub_f32 %s, %s, %s" % (vr(f + i), vr(f + i), vr(t)))
        a("v_mul_f32 %s, %s, %s" % (vr(t + 1), vr(f), vr(f)))
        a("v_mul_f32 %s, %s, %s" % (vr(t + 2), vr(f + 1), vr(f + 1)))
        for i in range(2, 8, 2):
            a("v_fmac_f32 %s, %s, %s" % (vr(t + 1), vr(f + i), vr(f + i)))
            a("v_fmac_f32 %s, %s, %s" % (vr(t + 2), vr(f + i + 1), vr(f + i + 1)))
        a("v_add_f32 %s, %s, %s" % (vr(t + 1), vr(t + 1), vr(t + 2)))
        self.xor_reduce("v_add_f32", [t + 1], [1, 2, "hm", "m", 16, 32], t + 4)
        a("v_mul_f32 %s, 0x3b000000, %s" % (vr(t + 1), vr(t + 1)))
        a("v_cvt_pk_bf16_f32 %s, %s, %s" % (vr(t + 2), vr(t), vr(t + 1)))
        a("v_lshlrev_b32 %s, 16, %s" % (vr(t), vr(t + 2)))
        a("v_and_b32 %s, 0xffff0000, %s" % (vr(t + 1), vr(t + 2)))
        a("v_add_f32 %s, 0x3727c5ac, %s" % (vr(t + 1), vr(t + 1)))
        a("v_cvt_pk_bf16_f32 %s, %s, %s" % (vr(t + 1), vr(t + 1), vr(t + 1)))
        a("v_and_b32 %s, 0xffff0000, %s" % (vr(t + 1), vr(t + 1)))
        a("v_sqrt_f32 %s, %s" % (vr(t + 1), vr(t + 1)))
        a("s_nop 0")
        a("v_cvt_pk_bf16_f32 %s, %s, %s" % (vr(t + 1), vr(t + 1), vr(t + 1)))
        a("v_and_b32 %s, 0xffff0000, %s" % (vr(t + 1), vr(t + 1)))
        a("v_rcp_f32 %s, %s" % (vr(t + 2), vr(t + 1)))
        a("v_lshlrev_b32 %s, 16, %s" % (vr(f), vr(xp)))
        a("v_and_b32 %s, 0xffff0000, %s" % (vr(f + 1), vr(xp)))
        a("v_sub_f32 %s, %s, %s" % (vr(f), vr(f), vr(t)))
        a("v_sub_f32 %s, %s, %s" % (vr(f + 1), vr(f + 1), vr(t)))
        a("v_cvt_pk_bf16_f32 %s, %s, %s" % (vr(f), vr(f), vr(f + 1)))
        a("v_and_b32 %s, 0xffff0000, %s" % (vr(f + 1), vr(f)))
        a("v_lshlrev_b32 %s, 16, %s" % (vr(f), vr(f)))
        for i in range(2):
            a("v_mul_f32 %s, %s, %s" % (vr(f + 2 + i), vr(f + i), vr(t + 2)))
        for i in range(2):
            a("v_fma_f32 %s, -%s, %s, %s" % (vr(f + 4 + i), vr(f + 2 + i), vr(t + 1), vr(f + i)))
        for i in range(2):
            a("v_fmac_f32 %s, %s, %s" % (vr(f + 2 + i), vr(f + 4 + i), vr(t + 2)))
        a("v_cvt_pk_bf16_f32 %s, %s, %s" % (vr(f), vr(f + 2), vr(f + 3)))
        if rows == 128:
            a("v_lshlrev_b32 %s, 2, v0" % vr(t))
        else:
            a("v_and_b32 %s, 31, v0" % vr(t))
            a("v_lshlrev_b32 %s, 2, %s" % (vr(t), vr(t)))
        a("ds_write_b32 %s, %s offset:%d" % (vr(t), vr(f), lds_x))
        a("v_lshrrev_b32 %s, 3, v0" % vr(t))
        a("v_lshlrev_b32 %s, %d, %s" % (vr(t), 5 if rows == 128 else 4, vr(t)))
        a("ds_read_b128 %s, %s offset:%d" % (vr(base + 8, 4), vr(t), lds_x))
        if rows == 128:
            a("ds_read_b128 %s, %s offset:%d" % (vr(base + 12, 4), vr(t), lds_x + 16))

    def selectors(self, sel, tmp, both_parities):
        a = self.a
        a("v_and_b32 %s, 15, v0" % vr(tmp))
        a("v_and_b32 %s, 1, %s" % (vr(tmp + 1), vr(tmp)))
        a("v_bfe_u32 %s, %s, 1, 2" % (vr(tmp + 2), vr(tmp)))
        if not both_parities:
            a("v_lshrrev_b32 %s, 3, %s" % (vr(tmp + 3), vr(tmp)))
            a("v_lshl_add_u32 %s, %s, 2, %s" % (vr(tmp + 2), vr(tmp + 3), vr(tmp + 2)))
        a("v_cmp_eq_u32 vcc, 1, %s" % vr(tmp + 1))
        a("v_mov_b32 %s, 0x0c0c0100" % vr(tmp + 3))
        a("v_mov_b32 %s, 0x01000c0c" % vr(tmp + 4))
        a("v_cndmask_b32 %s, %s, %s, vcc" % (vr(tmp + 5), vr(tmp + 3), vr(tmp + 4)))
        a("v_mov_b32 %s, 0x0c0c0302" % vr(tmp + 3))
        a("v_mov_b32 %s, 0x03020c0c" % vr(tmp + 4))
        a("v_cndmask_b32 %s, %s, %s, vcc" % (vr(tmp + 6), vr(tmp + 3), vr(tmp + 4)))
        a("v_mov_b32 %s, 0x0c0c0c0c" % vr(tmp + 3))
        for t in range(4):
            a("v_cmp_eq_u32 vcc, %d, %s" % (t, vr(tmp + 2)))
            a("s_nop 1")
            a("v_cndmask_b32 %s, %s, %s, vcc" % (vr(sel + t), vr(tmp + 3), vr(tmp + 5)))
            a("v_cndmask_b32 %s, %s, %s, vcc" % (vr(sel + 4 + t), vr(tmp + 3), vr(tmp + 6)))

    def tile_gemv(self, W, XN, SEL, AF, ACC, nafter):
        a = self.a
        for i in range(16):
            for t in range(4):
                a("v_perm_b32 %s, %s, %s, %s" % (vr(AF + 4 * i + t), vr(XN + (i >> 1)), vr(XN + (i >> 1)), vr(SEL + 4 * (i & 1) + t)))
        for i in range(16):
            a("s_waitcnt vmcnt(%d)" % (15 - i + nafter))
            a("v_mfma_f32_16x16x32_bf16 %s, %s, %s, %s" % (vr(ACC, 4), vr(AF + 4 * i, 4), vr(W + 4 * i, 4), "0" if i == 0 else vr(ACC, 4)))
        a("s_nop 7")
        a("v_permlane32_swap_b32 %s, %s" % (vr(ACC), vr(ACC + 2)))
        a("v_permlane32_swap_b32 %s, %s" % (vr(ACC + 1), vr(ACC + 3)))
        a("s_nop 1")
        a("v_add_f32_dpp %s, %s, %s row_ror:8 row_mask:0xf bank_mask:0xf" % (vr(ACC), vr(ACC + 2), vr(ACC)))
        a("v_add_f32_dpp %s, %s, %s row_ror:8 row_mask:0xf bank_mask:0xf" % (vr(ACC + 1), vr(ACC + 3), vr(ACC + 1)))


    def prologue(self):
        a = self.a
        a("""
        s_cmp_ge_u32 s2, 256
        s_cbranch_scc1 L_end
        """)
        self.stamp(0)
        a("""
        s_load_dwordx16 s[4:19], s[0:1], 0
        s_load_dwordx4 s[20:23], s[0:1], 64
        s_load_dwordx2 s[24:25], s[0:1], 80
        v_lshrrev_b32 v1, 6, v0
        v_and_b32 v0, 63, v0
        %s
        v_readfirstlane_b32 s28, v1
        v_lshlrev_b32 v37, 4, v0
        s_lshr_b32 s40, s27, 3                ; row block of the Wq tile
        s_cmp_eq_u32 s28, 7
        s_cbranch_scc1 L_L
        s_cmp_eq_u32 s28, 5
        s_cbranch_scc1 L_C1
        s_cmp_eq_u32 s28, 6
        s_cbranch_scc1 L_C2
        s_cmp_lt_u32 s28, 4
        s_cbranch_scc1 L_A
        """ % ("s_lshr_b32 s26, s2, 5\ns_and_b32 s27, s2, 31" if self.scramble else "s_and_b32 s26, s2, 7\ns_lshr_b32 s27, s2, 3"))

    def dispatch_others(self):
        self.a("""
        L_other:
        v_mov_b32 v1, 0
        v_mov_b32 v2, 1
        s_cmp_eq_u32 s28, 7
        s_cbranch_scc1 L_L
        s_cmp_eq_u32 s28, 5
        s_cbranch_scc1 L_C1
        s_cmp_eq_u32 s28, 6
        s_cbranch_scc1 L_C2
        s_branch L_A
        """)

    def mlp_scalars(self):
        self.a("""
        s_cmp_lt_u32 s26, 4
        s_cselect_b32 s49, %d, %d
        s_cmp_lt_u32 s27, s49
        s_cselect_b32 s38, 1, 0
        s_mul_i32 s50, s26, %d
        s_sub_u32 s51, s26, 4
        s_mul_i32 s51, s51, %d
        s_add_u32 s51, s51, %d
        s_cmp_lt_u32 s26, 4
        s_cselect_b32 s50, s50, s51
        s_lshr_b32 s51, s27, 3
        s_add_u32 s50, s50, s51
        """ % (self.nb_lo, self.nb_hi, self.nb_lo // 8, self.nb_hi // 8, self.nb_lo // 2))

    def args_ready(self):
        self.a("s_waitcnt lgkmcnt(0)")
        self.a("s_load_dwordx2 s[30:31], s[24:25], %d" % EPOCH)

    def role_l(self):
        a = self.a
        VZ, V1 = 1, 2
        a(".p2align 8")
        a("L_L:")
        a("v_mov_b32 v1, 0\nv_mov_b32 v2, 1")
        self.role = "L"
        KO, VO = 8, 12
        WOA, WOB, W2A, W1A = 16, 17, 18, 20
        piece = 0x8000 if self.ileave else 0x400
        a("""
        s_lshl_b32 s40, s26, 24
        s_add_u32 s40, s40, 0xF00000
        s_lshl_b32 s41, s27, %d
        s_add_u32 s40, s40, s41               ; first piece of this chunk
        v_lshrrev_b32 v3, 4, v0               ; q4
        v_and_b32 v4, 15, v0                  ; pos
        v_xor_b32 v5, v4, v3
        v_lshl_add_u32 v6, v3, 8, s40
        """ % (10 if self.ileave else 15))
        for q in range(4):
            a("v_xor_b32 v7, %d, v5" % (4 * q))
            a("v_lshl_add_u32 v7, v7, 4, v6")
            a("v_add_u32 %s, %d, v7" % (vr(KO + q), 2 * q * piece))

        def rest_addresses():
            a("v_lshlrev_b32 v7, 1, v3")
            a("v_xor_b32 v7, v7, v4")
            a("v_lshl_add_u32 %s, v7, 4, v6" % vr(VO))
            a("v_xor_b32 v7, 8, v7")
            a("v_lshl_add_u32 v7, v7, 4, v6")
            a("v_add_u32 %s, %d, v7" % (vr(VO + 1), 2 * piece))
            a("""
            s_lshl_b32 s42, s26, 9                ; 512 g
            s_lshr_b32 s43, s27, 3
            s_lshl_b32 s43, s43, 7                ; 128 h
            s_add_u32 s42, s42, s43
            s_bfe_u32 s43, s27, 0x20001
            s_lshl_b32 s43, s43, 5
            s_add_u32 s42, s42, s43
            s_and_b32 s43, s27, 1
            s_lshl_b32 s43, s43, 3
            s_add_u32 s42, s42, s43               ; first Wo row
            s_lshl_b32 s42, s42, 10
            v_lshlrev_b32 v6, 4, v4               ; 16 n
            v_lshl_add_u32 v7, v3, 11, v6
            v_add_u32 %s, s42, v7
            v_add_u32 %s, 0x4000, %s
            s_lshl_b32 s42, s50, 6
            s_and_b32 s43, s27, 7
            s_lshl_b32 s43, s43, 3
            s_add_u32 s42, s42, s43               ; first W2 row = 64 cbg + 8 j
            s_lshl_b32 s42, s42, 10
            v_lshl_add_u32 v7, v3, 11, v6         ; + 2 gg rows
            v_add_u32 %s, s42, v7
            """ % (vr(WOA), vr(WOB), vr(WOA), vr(W2A)))

        def m0(x):
            return "s_movk_i32 m0, 0x%x\n" % x if x < 0x8000 else "s_mov_b32 m0, 0x%x\n" % x

        def seq(isb):
            ops, flags, gates = [], [], []
            for grp in self.order:
                if grp == "|":
                    gates.append(len(ops))
                elif grp == "k":
                    for w in range(4):
                        for q in range(4):
                            for t in range(2):
                                p = 8 * w + 2 * q + t
                                ops.append((m0(L_K + 1024 * p), "global_load_lds_dwordx4 %s, %s %s" % (vr(KO + q), sp(S_K), self.nt_kv),
                                            "v_add_u32 %s, 0x%x, %s" % (vr(KO + q), (1 if t == 0 else 7) * piece, vr(KO + q))))
                    flags.append((len(ops), F_K))
                elif grp == "v":
                    for w in range(4):
                        for i in range(8):
                            b = (i >> 1) & 1
                            ops.append((m0(L_V + 1024 * (8 * w + i)), "global_load_lds_dwordx4 %s, %s %s" % (vr(VO + b), sp(S_V), self.nt_kv),
                                        "v_add_u32 %s, 0x%x, %s" % (vr(VO + b), (1 if (i & 1) == 0 else 3) * piece, vr(VO + b))))
                        flags.append((len(ops), F_V))
                elif grp == "f":
                    for i in range(4):
                        ops.append(("", "global_load_dwordx4 v[24:27], v23, %s offset:%d sc1" % (sp(S_WS), 1024 * i), ""))
                    ops.append(("", "global_load_dwordx4 v[24:27], v28, %s sc1" % sp(S_WS), ""))
                elif grp == "o":
                    for w in range(4):
                        for i in range(4):
                            off = 256 * w + 1024 * (i >> 1)
                            ops.append((m0(L_WO + (4 * w + i) * 1024 - off),
                                        "global_load_lds_dwordx4 %s, %s offset:%d %s" % (vr(WOA if (i & 1) == 0 else WOB), sp(S_WO), off, self.nt_w), ""))
                    flags.append((len(ops), F_WO))
                elif grp == "2" and isb:
                    for w in range(4):
                        for i in range(2):
                            off = 256 * w + 1024 * i
                            ops.append((m0(L_W2 + (2 * w + i) * 1024 - off),
                                        "global_load_lds_dwordx4 %s, %s offset:%d %s" % (vr(W2A), sp(S_W2), off, self.nt_w), ""))
                    flags.append((len(ops), F_W2))
                elif grp == "1" and isb:
                    for i in range(8):
                        ops.append((m0(L_W1 + 1024 * i), "global_load_lds_dwordx4 %s, %s %s" % (vr(W1A), sp(S_W1), self.nt_w),
                                    "v_add_u32 %s, 3584, %s" % (vr(W1A), vr(W1A))))
                    flags.append((len(ops), F_W1))
            return ops, flags, gates

        W = self.window
        self.args_ready()
        self.stamp(1)
        assert self.order[0] == "k"
        ops0, _, _ = seq(False)
        NE = min(W, 5) if not self.kgate else 0
        for j in range(NE):
            pre, ld, post = ops0[j]
            a(pre)
            a("s_nop 0")
            a(ld)
            a(post)
        a("s_barrier")
        self.mlp_scalars()
        rest_addresses()
        if self.kgate:
            self.flag_wait(F_ST, 1, VZ, 21)
        if "f" in self.order:
            a("""
            s_lshl_b32 s41, s26, 17
            s_lshl_b32 s42, s27, 12
            s_add_u32 s41, s41, s42
            s_add_u32 s41, s41, %d
            v_lshl_add_u32 v23, v0, 4, s41
            s_lshl_b32 s41, s26, 11
            s_lshr_b32 s42, s27, 3
            s_lshl_b32 s42, s42, 9
            s_add_u32 s41, s41, s42
            s_add_u32 s41, s41, %d
            v_and_b32 v28, 31, v0
            v_lshl_add_u32 v28, v28, 4, s41
            """ % (H2, ST))

        def with_values(flags):
            out, nv = [], 0
            for (e, f) in flags:
                if f == F_V:
                    nv += 1
                    out.append((e, f, nv))
                else:
                    out.append((e, f, 1))
            return out

        def run(ops, flags, gates, W, start, labels=None, check_to=None, first=False):
            n = len(ops)
            pend = [f for f in flags if f[0] > max(0, start - (W - 1)) or first]
            hold = self.hold
            for j in range(start, n):
                pre, ld, post = ops[j]
                if labels and j in labels:
                    a(labels[j] + ":")
                if hold and j == hold:
                    while pend and pend[0][0] <= j:
                        e, f, val = pend.pop(0)
                        a("s_waitcnt vmcnt(%d)" % (j - e))
                        self.flag_set(f, val, VZ, 22)
                    self.flag_wait(F_QPUB, 1, VZ, 21)
                    if isb_cur[0] and self.order[0] == "1":
                        self.flag_wait(F_HPUB, 1, VZ, 21)
                    self.stamp(4)
                if j in gates:
                    while pend and pend[0][0] <= j:
                        e, f, val = pend.pop(0)
                        a("s_waitcnt vmcnt(%d)" % (j - e))
                        self.flag_set(f, val, VZ, 22)
                    self.flag_wait(F_OPUB, 4, VZ, 21)
                chk = check_to is not None and j in check_to
                if chk:
                    a("ds_read_b32 v21, %s offset:%d" % (vr(VZ), F_Q))
                if j >= W and not any(g <= j < g + W for g in gates):
                    a("s_waitcnt vmcnt(%d)" % (W - 1))
                    landed = j - (W - 1)
                    while pend and pend[0][0] <= landed:
                        e, f, val = pend.pop(0)
                        self.flag_set(f, val, VZ, 22)
                if chk:
                    a("s_waitcnt lgkmcnt(0)")
                    a("v_readfirstlane_b32 s%d, v21" % S_TMP)
                    a("s_cmp_lg_u32 s%d, 0" % S_TMP)
                    a("s_cbranch_scc1 %s" % check_to[j])
                a(pre)
                a("s_nop 0")
                a(ld)
                if post:
                    a(post)
            self.stamp(2)
            for (e, f, val) in pend:
                a("s_waitcnt vmcnt(%d)" % (n - e))
                self.flag_set(f, val, VZ, 22)
            self.stamp(3)
            self.end(3)

        isb_cur = [False]

        def emit(isb):
            isb_cur[0] = isb
            ops, flags, gates = seq(isb)
            flags = with_values(flags)
            n = len(ops)
            if not self.w2:
                run(ops, flags, gates, W, NE, first=True)
                return
            points = [j for j in range(W, n - 8) if (j - W) % self.chk == 0]
            labels = {j: a.newlabel("FAST") for j in points}
            run(ops, flags, gates, W, NE, check_to=labels, first=True)
            run(ops, flags, gates, self.w2, points[0], labels=labels)

        Lb = a.newlabel("LB")
        a("s_cmp_lg_u32 s%d, 0" % S_ISB)
        a("s_cbranch_scc1 %s" % Lb)
        emit(False)
        a(Lb + ":")
        emit(True)

    def role_a(self):
        a = self.a
        VZ, V1 = 1, 2
        T = 5
        a("L_A:")
        a("v_mov_b32 v1, 0\nv_mov_b32 v2, 1")
        self.role = "A"
        a("s_barrier")
        self.args_ready()
        a("s_setprio 1")
        KO, VO, QA = 16, 20, 24
        a("""
        v_lshrrev_b32 v3, 4, v0               ; gg
        v_and_b32 v4, 15, v0                  ; m
        s_lshl_b32 s41, s28, 13
        v_and_b32 v5, 3, v4                   ; b = m & 3
        v_lshrrev_b32 v6, 2, v4               ; a = m >> 2
        v_lshlrev_b32 v7, 11, v6
        v_lshl_add_u32 v7, v5, 8, v7
        v_xor_b32 v8, v3, v5
        v_lshl_add_u32 v7, v8, 4, v7
        v_add_u32 v7, s41, v7
        """)
        for s in range(4):
            a("v_xor_b32 v8, %d, v6" % s)
            a("v_lshl_add_u32 %s, v8, 6, v7" % vr(KO + s))
        a("v_mul_u32_u24 v8, 320, v6")
        a("v_lshl_add_u32 %s, v3, 4, v8" % vr(QA))
        a("""
        v_lshrrev_b32 v8, 2, v4               ; r
        v_and_b32 v9, 3, v4                   ; cq
        v_and_b32 v10, 1, v3
        v_lshl_or_b32 v10, v10, 2, v8         ; sigma
        v_lshl_add_u32 v11, v3, 3, v8         ; 8 gg + r
        v_lshlrev_b32 v11, 8, v11
        v_lshl_add_u32 v11, v9, 3, v11
        v_add_u32 v11, %d, v11
        s_lshl_b32 s42, s28, 1
        """ % L_V)
        for u in range(2):
            a("s_add_u32 s43, s42, %d" % u)
            a("v_xor_b32 v12, s43, v10")
            a("v_lshl_add_u32 %s, v12, 5, v11" % vr(VO + u))
        WOA = 22
        a("s_lshl_b32 s42, s28, 12")
        a("s_add_u32 s42, s42, %d" % L_WO)
        a("v_lshl_add_u32 %s, v0, 4, s42" % vr(WOA))
        SEL = 28
        self.selectors(SEL, T, both_parities=False)
        self.tags()
        TG = 36
        a("v_mov_b32 %s, s%d" % (vr(TG + 2), S_T))
        a("v_mov_b32 %s, s%d" % (vr(TG + 3), S_T + 1))
        OA, SA, STA = 40, 41, 43
        a("""
        s_lshl_b32 s42, s26, 17               ; g * 131072
        s_lshl_b32 s43, s27, 7                ; c * 128
        s_add_u32 s42, s42, s43
        v_and_b32 v12, 7, v0
        v_lshlrev_b32 v12, 4, v12             ; slot * 16
        v_bfe_u32 v13, v0, 3, 1               ; b
        v_lshl_add_u32 v13, v3, 3, v13        ; 8 h + b
        s_lshl_b32 s43, s28, 1
        v_add_u32 v13, s43, v13               ; + 2 w
        v_lshl_add_u32 v13, v13, 12, v12
        s_add_u32 s43, s42, %d
        v_add_u32 %s, s43, v13
        v_lshrrev_b32 v13, 3, v0
        s_lshl_b32 s43, s28, 3
        v_add_u32 v13, s43, v13               ; 8 w + (l >> 3)
        v_lshl_add_u32 v14, v13, 12, v12
        s_add_u32 s43, s42, %d
        v_add_u32 %s, s43, v14
        s_lshl_b32 s42, s26, 11
        s_lshl_b32 s43, s27, 4
        s_add_u32 s42, s42, s43
        s_add_u32 s42, s42, %d
        v_lshl_add_u32 %s, v3, 9, s42
        """ % (H2, vr(OA), H3S, vr(SA), ST, vr(STA)))
        MXW, PWA, PRA, MRA, ORA = 25, 26, 27, 45, 46
        a("""
        v_lshrrev_b32 v12, 2, v4
        v_lshlrev_b32 v12, 4, v12             ; head (l & 15) >> 2, * 16
        s_lshl_b32 s42, s28, 2
        v_add_u32 %s, s42, v12                ; + wave * 4
        v_lshlrev_b32 %s, 4, v0
        s_lshl_b32 s42, s28, 10
        v_add_u32 %s, s42, %s
        v_lshlrev_b32 %s, 4, v3
        v_lshlrev_b32 %s, 4, v3
        """ % (vr(MXW), vr(PRA), vr(PWA), vr(PRA), vr(MRA), vr(ORA)))
        OD = 112
        KF = 48
        QF = 80
        WO = 96
        self.flag_wait(F_K, 1, VZ, T, sleep=2)
        self.stamp(1)
        for t in range(2):
            for s in range(4):
                a("ds_read_b128 %s, %s offset:%d" % (vr(KF + 16 * t + 4 * s, 4), vr(KO + s), L_K + 1024 * t))
        self.flag_wait(F_Q, 1, VZ, T, sleep=1)
        self.stamp(2)
        for s in range(4):
            a("ds_read_b128 %s, %s offset:%d" % (vr(QF + 4 * s, 4), vr(QA), L_Q + 64 * s))
        self.read_mode(VZ, T)
        SC = 112
        for s in range(4):
            for t in range(2):
                a("v_mfma_f32_16x16x32_bf16 %s, %s, %s, %s" % (vr(SC + 4 * t, 4), vr(KF + 16 * t + 4 * s, 4), vr(QF + 4 * s, 4), "0" if s == 0 else vr(SC + 4 * t, 4)))
        a("s_nop 7")
        if self.mimic:
            for i in range(4):
                a("v_cvt_pk_bf16_f32 %s, %s, %s" % (vr(T + i), vr(SC + 2 * i), vr(SC + 2 * i + 1)))
            for i in range(4):
                a("v_lshlrev_b32 %s, 16, %s" % (vr(SC + 2 * i), vr(T + i)))
                a("v_and_b32 %s, 0xffff0000, %s" % (vr(SC + 2 * i + 1), vr(T + i)))
        for i in range(8):
            a("v_mul_f32 %s, 0x%x, %s" % (vr(SC + i), SCALE, vr(SC + i)))
        if self.mimic:
            for i in range(4):
                a("v_cvt_pk_bf16_f32 %s, %s, %s" % (vr(T + i), vr(SC + 2 * i), vr(SC + 2 * i + 1)))
            for i in range(4):
                a("v_lshlrev_b32 %s, 16, %s" % (vr(SC + 2 * i), vr(T + i)))
                a("v_and_b32 %s, 0xffff0000, %s" % (vr(SC + 2 * i + 1), vr(T + i)))
        MX = 44
        a("v_max3_f32 %s, %s, %s, %s" % (vr(T), vr(SC), vr(SC + 1), vr(SC + 2)))
        a("v_max3_f32 %s, %s, %s, %s" % (vr(T + 1), vr(SC + 3), vr(SC + 4), vr(SC + 5)))
        a("v_max3_f32 %s, %s, %s, %s" % (vr(T), vr(T), vr(SC + 6), vr(SC + 7)))
        a("v_max_f32 %s, %s, %s" % (vr(MX), vr(T), vr(T + 1)))
        self.xor_reduce("v_max_f32", [MX], [16, 32], T)
        a("v_mov_b32 %s, 0x%x" % (vr(T + 8), LOG2E))
        a("v_mul_f32 %s, %s, %s" % (vr(T + 9), vr(MX), vr(T + 8)))
        a("s_mov_b64 exec, 0x1111")
        a("ds_write_b32 %s, %s offset:%d" % (vr(MXW), vr(MX), L_MX))
        a("s_mov_b64 exec, -1")
        for i in range(8):
            a("v_fma_f32 %s, %s, %s, -%s" % (vr(SC + i), vr(SC + i), vr(T + 8), vr(T + 9)))
        for i in range(8):
            a("v_exp_f32 %s, %s" % (vr(SC + i), vr(SC + i)))
        PF = 48
        a("s_nop 0")
        for i in range(4):
            a("v_cvt_pk_bf16_f32 %s, %s, %s" % (vr(T + 1 + i), vr(SC + 2 * i), vr(SC + 2 * i + 1)))
        a("ds_write_b128 %s, %s offset:%d" % (vr(PWA), vr(T + 1, 4), L_P))
        self.flag_add(F_P, VZ, V1)
        self.flag_wait(F_P, 4, VZ, T + 6)
        for ks in range(4):
            a("ds_read_b128 %s, %s offset:%d" % (vr(PF + 4 * ks, 4), vr(PRA), L_P + 1024 * ks))
        FW = 120
        a("ds_read_b128 %s, %s offset:%d" % (vr(FW, 4), vr(MRA), L_MX))
        self.stamp(3)
        a("s_waitcnt lgkmcnt(0)")
        a("v_max3_f32 %s, %s, %s, %s" % (vr(MX), vr(FW), vr(FW + 1), vr(FW + 2)))
        a("v_max_f32 %s, %s, %s" % (vr(MX), vr(MX), vr(FW + 3)))
        a("v_mul_f32 %s, %s, %s" % (vr(T + 9), vr(MX), vr(T + 8)))
        for i in range(4):
            a("v_fma_f32 %s, %s, %s, -%s" % (vr(FW + i), vr(FW + i), vr(T + 8), vr(T + 9)))
        for i in range(4):
            a("v_exp_f32 %s, %s" % (vr(FW + i), vr(FW + i)))
        D = 128
        TS = 124
        Lns = a.newlabel("NS")
        a("s_cmp_lg_u32 s28, 0")
        a("s_cbranch_scc1 %s" % Lns)
        ON = 64
        for t in range(4):
            a("v_mov_b32 %s, 0x3f803f80" % vr(ON + t))
        a("s_nop 1")
        for ks in range(4):
            a("v_mfma_f32_16x16x32_bf16 %s, %s, %s, 0" % (vr(D + 4 * ks, 4), vr(PF + 4 * ks, 4), vr(ON, 4)))
        a("v_mov_b32 %s, %s" % (vr(TS), vr(MX)))
        a("v_mov_b32 %s, %s" % (vr(TS + 2), vr(TG + 2)))
        a("v_mov_b32 %s, %s" % (vr(TS + 3), vr(TG + 3)))
        a("s_nop 4")
        a("v_mul_f32 %s, %s, %s" % (vr(TS + 1), vr(FW), vr(D)))
        for ks in range(1, 4):
            a("v_fmac_f32 %s, %s, %s" % (vr(TS + 1), vr(FW + ks), vr(D + 4 * ks)))
        a(Lns + ":")
        wo_first = self.order.index("o") < self.order.index("v")

        def read_wo():
            self.flag_wait(F_WO, 1, VZ, T, sleep=0 if not wo_first else 1)
            for i in range(4):
                a("ds_read_b128 %s, %s offset:%d" % (vr(WO + 4 * i, 4), vr(WOA), 1024 * i))
        if wo_first:
            read_wo()
        self.stamp(4)
        VF = 64
        S_V, S_I = 44, 45
        a("s_mov_b32 s%d, 0" % S_V)
        a("s_mov_b32 s%d, 0" % S_I)
        for ks in range(4):
            Lgo, Lsp = a.newlabel("V"), a.newlabel("V")
            a("s_cmp_ge_u32 s%d, %d" % (S_V, ks + 1))
            a("s_cbranch_scc1 %s" % Lgo)
            a("s_mov_b32 s%d, 0" % S_CNT)
            a(Lsp + ":")
            a("ds_read_b64 %s, %s offset:%d" % (vr(T + 1, 2), vr(VZ), F_V))
            a("s_add_u32 s%d, s%d, 1" % (S_CNT, S_CNT))
            a("s_cmp_gt_u32 s%d, %d" % (S_CNT, SPIN_MAX))
            a("s_cbranch_scc1 L_end")
            a("s_waitcnt lgkmcnt(0)")
            a("v_readfirstlane_b32 s%d, %s" % (S_V, vr(T + 1)))
            a("v_readfirstlane_b32 s%d, %s" % (S_I, vr(T + 2)))
            a("s_cmp_lt_u32 s%d, %d" % (S_V, ks + 1))
            a("s_cbranch_scc1 %s" % Lsp)
            a(Lgo + ":")
            if ks == 3:
                self.stamp(5)
            for u in range(2):
                for jh in range(2):
                    a("ds_read_b64_tr_b16 %s, %s offset:%d" % (vr(VF + 8 * ks + 4 * u + 2 * jh, 2), vr(VO + u), 8192 * ks + 1024 * jh))
            if ks:
                a("s_waitcnt lgkmcnt(4)")
                for u in range(2):
                    a("v_mfma_f32_16x16x32_bf16 %s, %s, %s, 0" % (vr(D + 8 * (ks - 1) + 4 * u, 4), vr(PF + 4 * (ks - 1), 4), vr(VF + 8 * (ks - 1) + 4 * u, 4)))
        for u in range(2):
            a("s_waitcnt lgkmcnt(%d)" % (2 - 2 * u))
            a("v_mfma_f32_16x16x32_bf16 %s, %s, %s, 0" % (vr(D + 24 + 4 * u, 4), vr(PF + 12, 4), vr(VF + 24 + 4 * u, 4)))
        a("v_mul_f32 %s, %s, %s" % (vr(TG), vr(FW), vr(D)))
        a("v_mul_f32 %s, %s, %s" % (vr(TG + 1), vr(FW), vr(D + 4)))
        for ks in range(1, 3):
            a("v_fmac_f32 %s, %s, %s" % (vr(TG), vr(FW + ks), vr(D + 8 * ks)))
            a("v_fmac_f32 %s, %s, %s" % (vr(TG + 1), vr(FW + ks), vr(D + 8 * ks + 4)))
        a("s_nop 1")
        a("v_fmac_f32 %s, %s, %s" % (vr(TG), vr(FW + 3), vr(D + 24)))
        a("v_fmac_f32 %s, %s, %s" % (vr(TG + 1), vr(FW + 3), vr(D + 28)))
        if self.sinit:
            Li = a.newlabel("I")
            a("s_cmp_ge_u32 s%d, 2" % S_I)
            a("s_cbranch_scc1 %s" % Li)
            self.flag_wait(F_INIT, 2, VZ, T)
            a(Li + ":")
        self.store_mode(OA, TG)
        Lns = a.newlabel("NS")
        a("s_cmp_lg_u32 s28, 0")
        a("s_cbranch_scc1 %s" % Lns)
        a("s_mov_b32 s42, 0x00010001")
        a("s_mov_b32 s43, 0x00010001")
        a("s_mov_b64 exec, s[42:43]")
        self.store_mode(STA, TS)
        a("s_mov_b64 exec, -1")
        a(Lns + ":")
        self.flag_add(F_OPUB, VZ, V1)
        self.stamp(6)
        if not wo_first:
            read_wo()
        AF = 64
        OG = 8
        Lsp = a.newlabel("O")
        a("s_mov_b32 s%d, 0" % S_CNT)
        a(Lsp + ":")
        a("ds_read_b128 %s, %s offset:%d" % (vr(OG, 4), vr(ORA), L_O))
        a("s_add_u32 s%d, s%d, 1" % (S_CNT, S_CNT))
        a("s_cmp_gt_u32 s%d, %d" % (S_CNT, SPIN_MAX))
        a("s_cbranch_scc1 L_end")
        a("s_waitcnt lgkmcnt(0)")
        a("v_and_b32 %s, %s, %s" % (vr(OG + 1), vr(OG + 1), vr(OG + 3)))
        a("v_cmp_ne_u32 vcc, 1, %s" % vr(OG + 1))
        a("s_cbranch_vccnz %s" % Lsp)
        for i in range(4):
            src = OG + 2 * (i >> 1)
            for t in range(4):
                a("v_perm_b32 %s, %s, %s, %s" % (vr(AF + 4 * i + t), vr(src), vr(src), vr(SEL + 4 * (i & 1) + t)))
            if i:
                a("v_mfma_f32_16x16x32_bf16 %s, %s, %s, %s" % (vr(OD, 4), vr(AF + 4 * (i - 1), 4), vr(WO + 4 * (i - 1), 4), "0" if i == 1 else vr(OD, 4)))
        a("s_nop 1")
        a("v_mfma_f32_16x16x32_bf16 %s, %s, %s, %s" % (vr(OD, 4), vr(AF + 12, 4), vr(WO + 12, 4), vr(OD, 4)))
        a("s_nop 7")
        a("v_permlane32_swap_b32 %s, %s" % (vr(OD), vr(OD + 2)))
        a("v_permlane32_swap_b32 %s, %s" % (vr(OD + 1), vr(OD + 3)))
        a("v_mov_b32 %s, %s" % (vr(TG), vr(OD)))
        a("v_mov_b32 %s, %s" % (vr(TG + 1), vr(OD + 1)))
        self.store_mode(SA, TG)
        if self.sgate:
            self.flag_add(F_SPUB, VZ, V1)
        self.stamp(7)
        self.end(T)

    def role_c0(self):
        a = self.a
        VZ, V1 = 1, 2
        X = 4
        W = 40
        AF = 104
        SEL = 168
        ACC = 176
        T = 180
        self.role = "C0"
        if self.code_pf:
            a("s_getpc_b64 s[52:53]")
            a("L_pc:")
            a("s_lshl_b32 s54, s27, 10")
            a("v_add_u32 v3, s54, v37")
            a("v_min_u32 v3, L_code_end-L_pc-16, v3")
            a("global_load_dwordx4 v[188:191], v3, s[52:53]")
        a("""
        s_lshl_b32 s41, s40, 8
        v_lshl_add_u32 v38, v0, 2, s41
        s_lshl_b32 s41, s40, 20               ; rb * 128 * 8192
        s_lshl_b32 s42, s26, 10               ; g * 512 * 2
        s_add_u32 s41, s41, s42
        s_and_b32 s42, s27, 7
        s_lshl_b32 s42, s42, 7                ; cb * 128
        s_add_u32 s41, s41, s42
        v_lshrrev_b32 v3, 3, v0
        v_lshlrev_b32 v3, 17, v3              ; 16 rows * 8192
        v_and_b32 v36, 7, v0
        v_lshl_add_u32 v3, v36, 4, v3
        v_add_u32 v3, s41, v3
        s_mov_b32 m0, %d
        s_movk_i32 s41, 15
        s_waitcnt lgkmcnt(0)
        global_load_dwordx4 %s, v37, %s
        global_load_dword %s, v38, %s
        L_wq:
        global_load_lds_dwordx4 v3, %s %s
        v_add_u32 v3, 0x2000, v3
        s_addk_i32 m0, 0x400
        s_sub_u32 s41, s41, 1
        s_cbranch_scc0 L_wq
        s_barrier
        L_C0_rest:
        s_setprio 3
        s_load_dwordx2 s[30:31], s[24:25], %d
        v_mov_b32 v1, 0
        v_mov_b32 v2, 1
        """ % (L_W1, vr(X, 4), sp(S_X), vr(X + 4), sp(S_X), sp(S_WQ), self.nt_w, EPOCH))
        self.stamp(1)
        self.selectors(SEL, T, both_parities=True)
        a("s_waitcnt vmcnt(16)")
        if self.kgate == 1:
            self.flag_add(F_ST, VZ, V1)
        self.stamp(2)
        self.layernorm_rows(X, L_XQ, VZ)
        self.tags()
        a("s_waitcnt lgkmcnt(0)")
        if self.kgate == 2:
            self.flag_add(F_ST, VZ, V1)
        self.stamp(3)
        XN = X + 8
        a("v_add_u32 v37, %d, v37" % L_W1)
        for i in range(16):
            for t in range(4):
                a("v_perm_b32 %s, %s, %s, %s" % (vr(AF + 4 * i + t), vr(XN + (i >> 1)), vr(XN + (i >> 1)), vr(SEL + 4 * (i & 1) + t)))
        for q in range(4):
            a("s_waitcnt vmcnt(%d)" % (12 - 4 * q))
            if self.kgate >= 3 and q == self.kgate - 3:
                self.flag_add(F_ST, VZ, V1)
            for i in range(4 * q, 4 * q + 4):
                a("ds_read_b128 %s, v37 offset:%d" % (vr(W + 4 * i, 4), 1024 * i))
            if q:
                for i in range(4 * q - 4, 4 * q):
                    a("s_waitcnt lgkmcnt(%d)" % (4 + (4 * q - 1 - i)))
                    a("v_mfma_f32_16x16x32_bf16 %s, %s, %s, %s" % (vr(ACC, 4), vr(AF + 4 * i, 4), vr(W + 4 * i, 4), "0" if i == 0 else vr(ACC, 4)))
        for i in range(12, 16):
            a("s_waitcnt lgkmcnt(%d)" % (15 - i))
            a("v_mfma_f32_16x16x32_bf16 %s, %s, %s, %s" % (vr(ACC, 4), vr(AF + 4 * i, 4), vr(W + 4 * i, 4), vr(ACC, 4)))
        a("s_nop 7")
        a("v_permlane32_swap_b32 %s, %s" % (vr(ACC), vr(ACC + 2)))
        a("v_permlane32_swap_b32 %s, %s" % (vr(ACC + 1), vr(ACC + 3)))
        a("s_nop 1")
        a("v_add_f32_dpp %s, %s, %s row_ror:8 row_mask:0xf bank_mask:0xf" % (vr(ACC), vr(ACC + 2), vr(ACC)))
        a("v_add_f32_dpp %s, %s, %s row_ror:8 row_mask:0xf bank_mask:0xf" % (vr(ACC + 1), vr(ACC + 3), vr(ACC + 1)))
        self.stamp(4)
        a("v_mov_b32 %s, s%d" % (vr(ACC + 2), S_T1X))
        a("v_mov_b32 %s, s%d" % (vr(ACC + 3), S_T1X + 1))
        a("""
        s_lshl_b32 s41, s26, 14               ; g * 16384
        s_lshr_b32 s42, s27, 3
        s_lshl_b32 s42, s42, 12               ; rb * 4096
        s_add_u32 s41, s41, s42
        s_and_b32 s42, s27, 7
        s_lshl_b32 s42, s42, 9                ; cb * 512
        s_add_u32 s41, s41, s42
        s_add_u32 s41, s41, %d
        v_lshrrev_b32 v3, 4, v0               ; 2 hi + g'
        v_lshlrev_b32 v3, 3, v3
        v_and_b32 v36, 7, v0
        v_add_u32 v3, v3, v36                 ; pos = 16 hi + 8 g' + n
        v_lshl_add_u32 v3, v3, 4, s41
        v_add_u32 v37, %d, v3
        """ % (H1, REGB))
        a("s_mov_b32 s42, 0x00ff00ff")
        a("s_mov_b32 s43, 0x00ff00ff")
        a("s_mov_b64 exec, s[42:43]")
        a("global_store_dwordx4 v3, %s, %s" % (vr(ACC, 4), sp(S_WS)))
        if self.qack:
            a("global_store_dwordx4 v37, %s, %s sc1" % (vr(ACC, 4), sp(S_WS)))
            a("s_mov_b64 exec, -1")
            self.stamp(5)
            a("s_waitcnt vmcnt(1)")
            if self.qsleep:
                a("s_sleep %d" % self.qsleep)
            self.flag_add(F_QPUB, VZ, V1)
        else:
            a("s_mov_b64 exec, -1")
            self.flag_add(F_QPUB, VZ, V1)
            a("s_mov_b64 exec, s[42:43]")
            a("global_store_dwordx4 v37, %s, %s sc1" % (vr(ACC, 4), sp(S_WS)))
            a("s_mov_b64 exec, -1")
        if not self.qack:
            self.stamp(5)
        SA, OA = 4, 5
        G = 8
        a("""
        s_lshl_b32 s41, s26, 11               ; g * 2048
        s_lshr_b32 s42, s27, 3
        s_lshl_b32 s42, s42, 9                ; head * 512
        s_add_u32 s41, s41, s42
        s_add_u32 s41, s41, %d
        v_lshrrev_b32 v3, 3, v0
        v_lshl_add_u32 %s, v3, 4, s41
        s_lshl_b32 s41, s26, 17
        s_lshl_b32 s42, s27, 12
        s_add_u32 s41, s41, s42
        s_add_u32 s41, s41, %d
        v_lshl_add_u32 %s, v0, 4, s41
        """ % (ST, vr(SA), H2, vr(OA)))
        a("v_lshlrev_b32 v6, 3, v0")
        self.flag_wait(F_Q, 1, VZ, T, sleep=2)
        self.read_mode(VZ, T)
        self.stamp(6)
        GO = 40
        self.flag_wait(F_OPUB, self.ogate, VZ, T, sleep=1)
        self.stamp(7)
        self.poll([(G + 4 * i, SA, 128 * i) for i in range(4)] + [(GO + 4 * i, OA, 1024 * i) for i in range(4)], S_MB, cnt=12)
        self.stamp(8)
        MX = 24
        a("v_max3_f32 %s, %s, %s, %s" % (vr(MX), vr(G), vr(G + 4), vr(G + 8)))
        a("v_max_f32 %s, %s, %s" % (vr(MX), vr(MX), vr(G + 12)))
        self.xor_reduce("v_max_f32", [MX], [8, 16, 32], T)
        WT = 26
        for i in range(4):
            a("v_sub_f32 %s, %s, %s" % (vr(WT + i), vr(G + 4 * i), vr(MX)))
        for i in range(4):
            a("v_mul_f32 %s, 0x%x, %s" % (vr(WT + i), LOG2E, vr(WT + i)))
        for i in range(4):
            a("v_exp_f32 %s, %s" % (vr(WT + i), vr(WT + i)))
        LS, A0, A1 = 25, 30, 31
        a("s_nop 0")
        a("v_mul_f32 %s, %s, %s" % (vr(A0), vr(WT), vr(GO)))
        a("v_mul_f32 %s, %s, %s" % (vr(A1), vr(WT), vr(GO + 1)))
        a("v_mul_f32 %s, %s, %s" % (vr(LS), vr(WT), vr(G + 1)))
        for i in range(1, 4):
            a("v_fmac_f32 %s, %s, %s" % (vr(A0), vr(WT + i), vr(GO + 4 * i)))
            a("v_fmac_f32 %s, %s, %s" % (vr(A1), vr(WT + i), vr(GO + 4 * i + 1)))
            a("v_fmac_f32 %s, %s, %s" % (vr(LS), vr(WT + i), vr(G + 4 * i + 1)))
        self.xor_reduce("v_add_f32", [LS, A0, A1], [8, 16, 32], T)
        a("v_rcp_f32 %s, %s" % (vr(T), vr(LS)))
        a("s_nop 0")
        a("v_fma_f32 %s, -%s, %s, 1.0" % (vr(T + 1), vr(T), vr(LS)))
        a("v_fmac_f32 %s, %s, %s" % (vr(T), vr(T + 1), vr(T)))
        a("v_mul_f32 %s, %s, %s" % (vr(A0), vr(A0), vr(T)))
        a("v_mul_f32 %s, %s, %s" % (vr(A1), vr(A1), vr(T)))
        a("v_cvt_pk_bf16_f32 %s, %s, %s" % (vr(A0), vr(A0), vr(A1)))
        a("v_mov_b32 %s, 1" % vr(A1))
        a("s_mov_b64 exec, 0xff")
        a("ds_write_b64 %s, %s offset:%d" % (vr(6), vr(A0, 2), L_O))
        a("s_mov_b64 exec, -1")
        self.stamp(9)
        self.end(T)

    def role_c1(self):
        a = self.a
        VZ, V1 = 1, 2
        X = 4
        W = 40
        AF = 104
        SEL = 168
        ACC = 176
        T = 180
        a("L_C1:")
        a("v_mov_b32 v1, 0\nv_mov_b32 v2, 1")
        self.role = "C1"
        a("s_barrier")
        a("s_setprio 3")
        self.mlp_scalars()
        a("""
        v_lshlrev_b32 v42, 4, v0
        s_and_b32 s40, s27, 7
        s_lshl_b32 s41, s40, 7
        v_and_b32 v3, 31, v0
        v_lshl_add_u32 v43, v3, 2, s41
        """)
        a("""
        s_lshl_b32 s42, s50, 7
        s_and_b32 s43, s27, 7
        s_mul_i32 s43, s43, %d
        s_add_u32 s42, s42, s43
        v_lshrrev_b32 v6, 3, v0
        v_mul_u32_u24 v6, %d, v6
        v_and_b32 v7, 7, v0
        v_lshl_add_u32 v6, v7, 4, v6
        v_add_u32 v44, s42, v6
        """ % (64 * 3584, 8 * 3584))
        self.args_ready()
        a("""
        s_lshl_b32 s41, s26, 14
        s_lshl_b32 s42, s27, 9
        s_add_u32 s44, s41, s42
        s_add_u32 s44, s44, %d                ; own outbox of hidden-unit partials
        """ % HB)
        W1R = 48
        Lb = a.newlabel("B")
        a("s_cmp_lg_u32 s%d, 0" % S_ISB)
        a("s_cbranch_scc1 %s" % Lb)
        self.stamp(1)
        self.end(T)
        a(Lb + ":")
        a("global_load_dwordx4 %s, v42, %s" % (vr(X, 4), sp(S_X)))
        a("global_load_dword %s, v43, %s" % (vr(X + 4), sp(S_X)))
        if self.w1gate:
            self.flag_wait(F_ST, 1, VZ, T)
        for i in range(8):
            a("global_load_dwordx4 %s, v44, %s %s" % (vr(W1R + 4 * i, 4), sp(S_W1), self.nt_w))
            if i < 7:
                a("v_add_u32 v44, 3584, v44")
        a("s_waitcnt vmcnt(8)")
        self.stamp(1)
        self.role = "C1B"
        self.selectors(SEL, T, both_parities=True)
        self.layernorm_rows(X, L_XH, VZ, rows=64)
        self.tags()
        a("v_lshlrev_b32 v3, 4, v0")
        a("v_add_u32 v38, %d, v3" % L_W2)
        XN = X + 8
        for i in range(8):
            for t in range(4):
                a("v_perm_b32 %s, %s, %s, %s" % (vr(AF + 4 * i + t), vr(XN + (i >> 1)), vr(XN + (i >> 1)), vr(SEL + 4 * (i & 1) + t)))
        a("""
        v_lshrrev_b32 v3, 4, v0
        v_lshlrev_b32 v3, 3, v3
        v_and_b32 v36, 7, v0
        v_add_u32 v3, v3, v36
        v_lshl_add_u32 v3, v3, 4, s44
        s_lshr_b32 s41, s27, 3
        s_lshl_b32 s41, s41, 12               ; cbl * 4096
        s_lshl_b32 s42, s26, 14
        s_add_u32 s41, s41, s42
        s_and_b32 s42, s27, 7
        s_lshl_b32 s42, s42, 4                ; j * 16
        s_add_u32 s41, s41, s42
        s_add_u32 s41, s41, %d
        v_bfe_u32 v4, v0, 2, 3
        v_lshlrev_b32 v4, 9, v4               ; producer * 512
        v_and_b32 v5, 1, v0
        v_lshl_add_u32 v4, v5, 8, v4          ; 16 (q & 1) * 16
        v_bfe_u32 v5, v0, 1, 1
        v_lshl_add_u32 v4, v5, 7, v4          ; 8 (q >> 1) * 16
        v_add_u32 v4, s41, v4
        """ % HB)
        a("s_waitcnt vmcnt(0)")
        self.stamp(2)
        for i in range(8):
            a("v_mfma_f32_16x16x32_bf16 %s, %s, %s, %s" % (vr(ACC, 4), vr(AF + 4 * i, 4), vr(W1R + 4 * i, 4), "0" if i == 0 else vr(ACC, 4)))
        a("s_nop 7")
        a("v_permlane32_swap_b32 %s, %s" % (vr(ACC), vr(ACC + 2)))
        a("v_permlane32_swap_b32 %s, %s" % (vr(ACC + 1), vr(ACC + 3)))
        a("s_nop 1")
        a("v_add_f32_dpp %s, %s, %s row_ror:8 row_mask:0xf bank_mask:0xf" % (vr(ACC), vr(ACC + 2), vr(ACC)))
        a("v_add_f32_dpp %s, %s, %s row_ror:8 row_mask:0xf bank_mask:0xf" % (vr(ACC + 1), vr(ACC + 3), vr(ACC + 1)))
        self.stamp(3)
        a("v_mov_b32 %s, s%d" % (vr(ACC + 2), S_T))
        a("v_mov_b32 %s, s%d" % (vr(ACC + 3), S_T + 1))
        a("v_add_u32 v5, %d, v3" % REGB)
        a("s_mov_b32 s42, 0x00ff00ff")
        a("s_mov_b32 s43, 0x00ff00ff")
        a("s_mov_b64 exec, s[42:43]")
        a("global_store_dwordx4 v3, %s, %s" % (vr(ACC, 4), sp(S_WS)))
        a("s_mov_b64 exec, -1")
        self.flag_add(F_HPUB, VZ, V1)
        a("s_mov_b64 exec, s[42:43]")
        a("global_store_dwordx4 v5, %s, %s sc1" % (vr(ACC, 4), sp(S_WS)))
        a("s_mov_b64 exec, -1")
        G = 8
        self.selectors(SEL, T, both_parities=False)
        self.flag_wait(F_Q, 1, VZ, T, sleep=1)
        self.read_mode(VZ, T)
        self.poll([(G, 4, 0)], S_MB)
        self.stamp(4)
        self.xor_reduce("v_add_f32", [G, G + 1], ["r4", 8, 16], T)
        a("v_max_f32 %s, 0, %s" % (vr(G), vr(G)))
        a("v_max_f32 %s, 0, %s" % (vr(G + 1), vr(G + 1)))
        a("v_cvt_pk_bf16_f32 %s, %s, %s" % (vr(G), vr(G), vr(G + 1)))
        a("s_nop 1")
        for r in range(4):
            a("v_mov_b32_dpp %s, %s quad_perm:[%d,%d,%d,%d] row_mask:0x%x bank_mask:0xf" % (vr(G + 4), vr(G), r, r, r, r, 1 << r))
            if r < 3:
                a("s_nop 1")
        a("""
        s_lshl_b32 s42, s26, 17
        s_lshl_b32 s43, s27, 7
        s_add_u32 s42, s42, s43
        s_add_u32 s42, s42, %d
        v_lshrrev_b32 v3, 3, v0
        v_lshlrev_b32 v3, 12, v3
        v_lshl_add_u32 v3, v36, 4, v3
        v_add_u32 v3, s42, v3
        """ % H3G)
        for i in range(2):
            for t in range(4):
                a("v_perm_b32 %s, %s, %s, %s" % (vr(AF + 4 * i + t), vr(G + 4), vr(G + 4), vr(SEL + 4 * i + t)))
        self.flag_wait(F_W2, 1, VZ, T, sleep=1)
        for i in range(8):
            a("ds_read_b128 %s, v38 offset:%d" % (vr(W + 4 * i, 4), 1024 * i))
        for w in range(4):
            for i in range(2):
                a("s_waitcnt lgkmcnt(%d)" % (7 - (2 * w + i)))
                a("v_mfma_f32_16x16x32_bf16 %s, %s, %s, %s" % (vr(AF + 16 + 4 * w, 4), vr(AF + 4 * i, 4), vr(W + 8 * w + 4 * i, 4), "0" if i == 0 else vr(AF + 16 + 4 * w, 4)))
        a("s_nop 7")
        for w in range(4):
            d = AF + 16 + 4 * w
            a("v_permlane32_swap_b32 %s, %s" % (vr(d), vr(d + 2)))
            a("v_permlane32_swap_b32 %s, %s" % (vr(d + 1), vr(d + 3)))
        a("s_nop 0")
        for w in range(4):
            d = AF + 16 + 4 * w
            a("v_mov_b32 %s, s%d" % (vr(d + 2), S_T))
            a("v_mov_b32 %s, s%d" % (vr(d + 3), S_T + 1))
        for w in range(4):
            self.store_mode(3, AF + 16 + 4 * w)
            if w < 3:
                a("v_add_u32 v3, 0x8000, v3")
        self.stamp(5)
        self.end(T)

    def role_c2(self):
        a = self.a
        VZ, V1 = 1, 2
        T = 100
        G = 8
        a("L_C2:")
        a("v_mov_b32 v1, 0\nv_mov_b32 v2, 1")
        self.role = "C2"
        a("s_setprio 3")
        a("v_lshlrev_b32 v3, 2, v0")
        a("s_mov_b32 exec_hi, 0")
        a("ds_write_b32 v3, v1 offset:%d" % L_F)
        a("s_mov_b64 exec, -1")
        self.args_ready()
        a("s_barrier")
        self.mlp_scalars()
        XF, FA, OUTA = 80, 81, 82
        a("""
        s_max_u32 s45, s27, 28
        s_sub_u32 s45, s45, 28
        s_lshl_b32 s45, s45, 3
        s_add_u32 s45, s45, s26               ; column set c'
        s_lshr_b32 s41, s45, 3
        s_lshl_b32 s41, s41, 7                ; 128 (c' >> 3)
        s_and_b32 s42, s45, 1
        s_lshl_b32 s42, s42, 6                ; 64 (c' & 1)
        s_add_u32 s41, s41, s42
        s_bfe_u32 s42, s45, 0x10001
        s_lshl_b32 s42, s42, 2
        s_add_u32 s41, s41, s42
        s_bfe_u32 s42, s45, 0x10002
        s_lshl_b32 s42, s42, 1
        s_add_u32 s41, s41, s42
        v_and_b32 v3, 7, v0
        v_lshlrev_b32 v3, 3, v3
        v_add_u32 v3, s41, v3                 ; first column of the pair
        v_lshlrev_b32 %s, 1, v3               ; byte offset in x / out
        s_lshl_b32 s41, s45, 11
        s_add_u32 s41, s41, %d
        v_lshrrev_b32 v3, 3, v0
        v_lshlrev_b32 v3, 8, v3
        v_and_b32 v83, 7, v0
        v_lshl_add_u32 v3, v83, 4, v3
        v_add_u32 %s, s41, v3
        """ % (vr(OUTA), H3B, vr(FA)))
        Lnf = a.newlabel("NF")
        a("s_cmp_lt_u32 s27, 28")
        a("s_cbranch_scc1 %s" % Lnf)
        a("global_load_dword %s, %s, %s" % (vr(XF), vr(OUTA), sp(S_X)))
        a("global_load_dwordx4 v[84:87], %s, %s sc1" % (vr(FA), sp(S_WS)))
        a("global_load_dwordx4 v[88:91], %s, %s offset:128 sc1" % (vr(FA), sp(S_WS)))
        a(Lnf + ":")
        a("""
        s_lshl_b32 s41, s26, 14
        s_add_u32 s41, s41, %d
        v_lshl_add_u32 v4, v0, 4, s41
        v_add_u32 v5, 0x1000, v4
        v_add_u32 v6, 0x2000, v4
        v_add_u32 v7, 0x3000, v4
        """ % H1)
        qloads = [(G + 16 * hd + 4 * rb, 4 + rb, 1024 * hd) for hd in range(4) for rb in range(4)]
        self.tags()
        self.stamp(1)
        self.flag_wait(F_QPUB, 1, VZ, T, sleep=1)
        self.stamp(2)
        Lslow, Lgot = a.newlabel("Q"), a.newlabel("Q")
        if not self.force_global:
            self.poll(qloads, S_WS, tag=S_T1X, limit=A_TIMEOUT, on_timeout=Lslow, cnt=12)
            a("s_branch %s" % Lgot)
        a(Lslow + ":")
        a("s_waitcnt vmcnt(0)")
        a("s_add_u32 s46, s%d, %d" % (S_WS, REGB))
        a("s_addc_u32 s47, s%d, 0" % (S_WS + 1))
        L = a.newlabel("P")
        a("s_mov_b32 s%d, 0" % S_CNT)
        a(L + ":")
        for (vd, va, off) in qloads:
            a("global_load_dwordx4 %s, %s, s[46:47] offset:%d sc1" % (vr(vd, 4), vr(va), off))
        a("s_add_u32 s%d, s%d, 1" % (S_CNT, S_CNT))
        a("s_cmp_gt_u32 s%d, %d" % (S_CNT, POLL_MAX))
        a("s_cbranch_scc1 L_end")
        a("s_waitcnt vmcnt(0)")
        a("v_mov_b32 %s, 0" % vr(T))
        a("v_mov_b32 %s, 0" % vr(T + 1))
        for (vd, va, off) in qloads:
            a("v_xor_b32 %s, s%d, %s" % (vr(T + 2), S_T, vr(vd + 2)))
            a("v_xor_b32 %s, s%d, %s" % (vr(T + 3), S_T + 1, vr(vd + 3)))
            a("v_and_b32 %s, 0xfffffff0, %s" % (vr(T + 3), vr(T + 3)))
            a("v_or3_b32 %s, %s, %s, %s" % (vr(T), vr(T), vr(T + 2), vr(T + 3)))
            a("v_xor_b32 %s, s%d, %s" % (vr(T + 3), S_T1X + 1, vr(vd + 3)))
            a("v_or_b32 %s, %s, %s" % (vr(T + 1), vr(T + 1), vr(T + 3)))
        a("v_cmp_ne_u32 vcc, 0, %s" % vr(T))
        a("s_cbranch_vccnz %s" % L)
        a("v_cmp_ne_u32 vcc, 0, %s" % vr(T + 1))
        a("s_cbranch_vccz %s" % Lgot)
        self.flag_add(F_REM, VZ, V1)
        a(Lgot + ":")
        self.stamp(3)
        for hd in range(4):
            b = G + 16 * hd
            for e in range(2):
                a("v_add_f32 %s, %s, %s" % (vr(b + e), vr(b + e), vr(b + 4 + e)))
                a("v_add_f32 %s, %s, %s" % (vr(b + 8 + e), vr(b + 8 + e), vr(b + 12 + e)))
            for e in range(2):
                a("v_add_f32 %s, %s, %s" % (vr(b + e), vr(b + e), vr(b + 8 + e)))
            a("v_cvt_pk_bf16_f32 %s, %s, %s" % (vr(b), vr(b), vr(b + 1)))
        a("""
        v_lshrrev_b32 v72, 5, v0              ; cb_local
        v_lshlrev_b32 v72, 7, v72             ; 64 columns * 2 B
        v_and_b32 v73, 7, v0
        v_lshl_add_u32 v72, v73, 4, v72       ; 8 n * 2 B
        v_bfe_u32 v73, v0, 3, 1
        v_lshl_add_u32 v72, v73, 3, v72       ; 4 g' * 2 B
        v_bfe_u32 v73, v0, 4, 1
        v_lshl_add_u32 v72, v73, 2, v72       ; 2 s * 2 B
        """)
        for hd in range(4):
            a("ds_write_b32 v72, %s offset:%d" % (vr(G + 16 * hd), L_Q + 320 * hd))
        self.flag_add(F_Q, VZ, V1)
        self.stamp(4)
        SA, GA, BA = 4, 5, 6
        a("""
        s_lshl_b32 s41, s26, 17
        s_lshl_b32 s42, s27, 12
        s_add_u32 s41, s41, s42
        v_lshl_add_u32 v3, v0, 4, s41
        v_add_u32 %s, %d, v3
        v_add_u32 %s, %d, v3
        s_lshl_b32 s41, s27, 11
        s_lshl_b32 s42, s26, 8
        s_add_u32 s41, s41, s42
        s_add_u32 s41, s41, %d
        v_lshl_add_u32 %s, v0, 4, s41
        """ % (vr(SA), H3S, vr(GA), H3G, H3B, vr(BA)))
        self.read_mode(VZ, T)
        if self.sinit:
            for i in range(4):
                a("v_mov_b32 %s, 0" % vr(56 + i))
            for i in range(4):
                a("global_store_dwordx4 %s, v[56:59], %s offset:%d" % (vr(SA), sp(S_WS), 1024 * i))
            a("s_waitcnt vmcnt(0)")
            self.flag_add(F_INIT, VZ, V1)
        GS = 40
        GG, GAD, GW = 24, 44, 48
        a("v_mov_b32 %s, 0" % vr(GS))
        a("v_mov_b32 %s, 0" % vr(GS + 1))
        Lng = a.newlabel("NG")
        a("s_cmp_eq_u32 s49, 0")
        a("s_cbranch_scc1 %s" % Lng)
        a("v_lshrrev_b32 v3, 3, v0")
        for i in range(4):
            a("v_add_u32 v52, %d, v3" % (8 * i))
            a("v_cmp_gt_u32 vcc, s49, v52")
            a("v_add_u32 v53, %d, %s" % (1024 * i, vr(GA)))
            a("v_mov_b32 v54, 1.0")
            a("v_cndmask_b32 %s, %s, v53, vcc" % (vr(GAD + i), vr(GA)))
            a("v_cndmask_b32 %s, v1, v54, vcc" % vr(GW + i))
        def fill_s():
            for i in range(4):
                a("global_load_dwordx4 %s, %s, %s offset:%d sc1" % (vr(60 + 4 * i, 4), vr(SA), sp(S_MB), 1024 * i))
        if self.spf == 1 or not self.ggate:
            self.flag_wait(F_OPUB, 4, VZ, T, sleep=1)
        if self.spf == 1:
            fill_s()
        if self.ggate == 1:
            self.flag_wait(F_WO, 1, VZ, T, sleep=1)
        if self.spf == 4:
            fill_s()
        self.poll([(GG + 4 * i, GAD + i, 0) for i in range(4)], S_MB, cnt=15)
        if self.spf == 3:
            for i in range(4):
                a("global_load_dwordx4 %s, %s, %s offset:%d sc1" % (vr(60 + 4 * i, 4), vr(SA), sp(S_MB), 1024 * i))
        for i in range(4):
            for e in range(2):
                a("v_fmac_f32 %s, %s, %s" % (vr(GS + e), vr(GW + i), vr(GG + 4 * i + e)))
        self.xor_reduce("v_add_f32", [GS, GS + 1], [8, 16, 32], T)
        a(Lng + ":")
        self.stamp(5)
        if self.sgate:
            self.flag_wait(F_SPUB, 4, VZ, T)
        else:
            L = a.newlabel("O")
            a("s_mov_b32 s%d, 0" % S_CNT)
            a(L + ":")
            a("ds_read_b32 %s, %s offset:%d" % (vr(T), vr(VZ), L_O + 4))
            a("s_add_u32 s%d, s%d, 1" % (S_CNT, S_CNT))
            a("s_cmp_gt_u32 s%d, %d" % (S_CNT, SPIN_MAX))
            a("s_cbranch_scc1 L_end")
            a("s_waitcnt lgkmcnt(0)")
            a("v_readfirstlane_b32 s%d, %s" % (S_TMP, vr(T)))
            a("s_cmp_lg_u32 s%d, 1" % S_TMP)
            a("s_cbranch_scc1 %s" % L)
        if self.sdelay:
            a("s_sleep %d" % self.sdelay)
        self.stamp(6)
        if self.trace:
            for k in range(11, 16):
                a("s_mov_b32 s%d, 0" % (S_STAMP + 2 * k))
            self.poll_traced([(G + 4 * i, SA, 1024 * i) for i in range(4)], S_MB, 11, 5)
        else:
            self.poll([(G + 4 * i, SA, 1024 * i) for i in range(4)], S_MB, cnt=13)
        self.stamp(7)
        for e in range(2):
            a("v_add_f32 %s, %s, %s" % (vr(G + e), vr(G + e), vr(G + 4 + e)))
            a("v_add_f32 %s, %s, %s" % (vr(G + 8 + e), vr(G + 8 + e), vr(G + 12 + e)))
        for e in range(2):
            a("v_add_f32 %s, %s, %s" % (vr(G + e), vr(G + e), vr(G + 8 + e)))
        self.xor_reduce("v_add_f32", [G, G + 1], [8, 16, 32], T)
        a("""
        v_bfe_u32 v3, v0, 3, 1
        v_cmp_eq_u32 vcc, 1, v3
        v_mov_b32 %s, s%d
        v_mov_b32 %s, s%d
        v_cndmask_b32 %s, %s, %s, vcc
        v_cndmask_b32 %s, %s, %s, vcc
        s_mov_b64 exec, 0xffff
        global_store_dwordx4 %s, %s, %s sc1
        s_mov_b64 exec, -1
        """ % (vr(G + 2), S_T, vr(G + 3), S_T + 1, vr(G), vr(G), vr(GS), vr(G + 1), vr(G + 1), vr(GS + 1), vr(BA), vr(G, 4), sp(S_WS)))
        self.stamp(8)
        Lf = a.newlabel("F")
        a("s_cmp_ge_u32 s27, 28")
        a("s_cbranch_scc1 %s" % Lf)
        self.end(T)
        a(Lf + ":")
        self.role = "C2F"
        G = 12
        if self.fstag:
            self.poll_staggered([(G, FA, 0), (G + 4, FA, 128)], [24, 28], [32, 36], S_WS, self.fstag)
            G = 32
        else:
            self.poll([(G, FA, 0), (G + 4, FA, 128)], S_WS, cnt=14)
        self.stamp(9)
        self.xor_reduce("v_add_f32", [G, G + 1, G + 4, G + 5], [8, 16, 32], T)
        a("v_cvt_pk_bf16_f32 %s, %s, %s" % (vr(G), vr(G), vr(G + 1)))
        a("v_cvt_pk_bf16_f32 %s, %s, %s" % (vr(G + 4), vr(G + 4), vr(G + 5)))
        a("v_and_b32 %s, 0xffff0000, %s" % (vr(G + 1), vr(G)))
        a("v_lshlrev_b32 %s, 16, %s" % (vr(G), vr(G)))
        a("v_and_b32 %s, 0xffff0000, %s" % (vr(G + 5), vr(G + 4)))
        a("v_lshlrev_b32 %s, 16, %s" % (vr(G + 4), vr(G + 4)))
        for e in range(2):
            a("v_mul_f32 %s, 0x%x, %s" % (vr(G + 8 + e), LOG2E ^ 0x80000000, vr(G + 4 + e)))
        for e in range(2):
            a("v_exp_f32 %s, %s" % (vr(G + 8 + e), vr(G + 8 + e)))
        a("s_nop 0")
        for e in range(2):
            a("v_add_f32 %s, 1.0, %s" % (vr(G + 8 + e), vr(G + 8 + e)))
        for e in range(2):
            a("v_rcp_f32 %s, %s" % (vr(G + 8 + e), vr(G + 8 + e)))
        a("s_nop 0")
        for e in range(2):
            a("v_mul_f32 %s, %s, %s" % (vr(G + 4 + e), vr(G + 4 + e), vr(G + 8 + e)))
        a("v_cvt_pk_bf16_f32 %s, %s, %s" % (vr(G + 4), vr(G + 4), vr(G + 5)))
        a("v_and_b32 %s, 0xffff0000, %s" % (vr(G + 5), vr(G + 4)))
        a("v_lshlrev_b32 %s, 16, %s" % (vr(G + 4), vr(G + 4)))
        for e in range(2):
            a("v_mul_f32 %s, %s, %s" % (vr(G + e), vr(G + e), vr(G + 4 + e)))
        a("v_cvt_pk_bf16_f32 %s, %s, %s" % (vr(G), vr(G), vr(G + 1)))
        a("v_and_b32 %s, 0xffff0000, %s" % (vr(G + 1), vr(G)))
        a("v_lshlrev_b32 %s, 16, %s" % (vr(G), vr(G)))
        a("v_and_b32 %s, 0xffff0000, %s" % (vr(G + 5), vr(XF)))
        a("v_lshlrev_b32 %s, 16, %s" % (vr(G + 4), vr(XF)))
        for e in range(2):
            a("v_add_f32 %s, %s, %s" % (vr(G + e), vr(G + e), vr(G + 4 + e)))
        a("v_cvt_pk_bf16_f32 %s, %s, %s" % (vr(G), vr(G), vr(G + 1)))
        a("s_mov_b64 exec, 0xff")
        a("global_store_dword %s, %s, %s" % (vr(OUTA), vr(G), sp(S_OUT)))
        Le = a.newlabel("E")
        a("s_cmp_lg_u32 s45, 0")
        a("s_cbranch_scc1 %s" % Le)
        a("s_mov_b64 exec, 1")
        a("v_mov_b32 %s, s%d" % (vr(G + 2), S_T))
        a("v_mov_b32 %s, s%d" % (vr(G + 3), S_T + 1))
        a("global_store_dwordx2 v1, %s, %s offset:%d sc1" % (vr(G + 2, 2), sp(S_WS), EPOCH))
        a(Le + ":")
        a("s_mov_b64 exec, -1")
        self.stamp(10)
        self.end(T)

    def build(self):
        self.prologue()
        self.role_c0()
        self.role_c1()
        self.role_c2()
        self.role_a()
        self.role_l()
        self.a("L_end:\ns_endpgm\nL_code_end:")
        return wrap(self.a.text(), 256, 512, LDS_BYTES, 192, sgpr=96)


def generate(**kw):
    return Gen(**kw).build()


if __name__ == "__main__":
    out = sys.argv[1] if len(sys.argv) > 1 else "cdna_kernels/%s.s" % NAME
    kw = {}
    for arg in sys.argv[2:]:
        k, v = arg.split("=")
        kw[k] = {"True": True, "False": False}.get(v, v)
    open(out, "w").write(generate(**kw))
    print("wrote", out)
```

```python
import sys
from asmgen import Asm, wrap, NAME

REGB = 0x400000
EPOCH = 0x0
H1 = 0x10000
ST = 0x50000
H3B = 0x70000
HB = 0x80000
H2 = 0x100000
H3S = 0x200000
H3G = 0x300000
STAMP_OFF = 256 << 20

L_Q = 0x0000
L_P = 0x0800
L_MX = 0x1800
L_O = 0x1AC0
L_XQ = 0x1880
L_XH = 0x1980
L_F = 0x1A80
L_K = 0x2000
L_V = 0xA000
L_WO = 0x12000
L_W2 = 0x16000
L_W1 = 0x1A000
F_V, F_INIT, F_Q, F_REM, F_K, F_MAX, F_P, F_ST, F_QPUB, F_OPUB, F_O, F_W1, F_SPUB, F_WO, F_W2, F_HPUB = [L_F + 4 * i for i in range(16)]
LDS_BYTES = 0x1E000

S_X, S_K, S_V, S_WQ, S_WO, S_W1, S_W2, S_OUT, S_WS = 4, 6, 8, 10, 12, 16, 18, 20, 24
S_G, S_C, S_W = 26, 27, 28
S_T = 30
S_XCC = 32
S_MODE = 33
S_MB = 34
S_T1X = 36
S_ISB = 38
S_CNT = 39
S_TMP = 40
S_STAMP = 60

LOG2E = 0x3fb8aa3b
SCALE = 0x3db504f3
A_TIMEOUT = 8
SPIN_MAX = 1 << 20
POLL_MAX = 1 << 16


def sp(n):
    return "s[%d:%d]" % (n, n + 1)


def vr(n, k=1):
    return "v%d" % n if k == 1 else "v[%d:%d]" % (n, n + k - 1)


class Gen:
    def __init__(self, stamps=False, nt_kv="nt", nt_w="nt", force_global=False, mimic=True, window=16, nb_lo=32, nb_hi=24, order="k2v|o", code_pf=1, dbg=0, ileave=1, hold=0, init=2, w2=40, chk=4, init_late=0, ogate=4, sdelay=0, trace=0, sinit=0, sgate=1, spf=1, ofill=0, scramble=0, qack=1, qsleep=0, ggate=0, fstag=5, kgate=1, w1gate=0, odelay=0, prefill=0, plain0=0, atimeout=A_TIMEOUT, lprio=2, aprio=1):
        self.a = Asm()
        self.window = int(window)
        self.nb_lo = int(nb_lo)
        self.nb_hi = int(nb_hi)
        self.order = order
        self.code_pf = int(code_pf)
        self.dbg = int(dbg)
        self.role = None
        if self.dbg:
            self.stamps = stamps = True
        self.ileave = int(ileave)
        self.hold = int(hold)
        self.init = int(init)
        self.w2 = int(w2)
        self.chk = int(chk)
        self.init_late = int(init_late)
        self.ogate = int(ogate)
        self.sdelay = int(sdelay)
        self.trace = int(trace)
        self.sinit = int(sinit)
        self.sgate = int(sgate)
        self.spf = int(spf)
        self.ofill = int(ofill)
        self.scramble = int(scramble)
        self.qack = int(qack)
        self.qsleep = int(qsleep)
        self.ggate = int(ggate)
        self.fstag = int(fstag)
        self.kgate = int(kgate)
        self.w1gate = int(w1gate)
        self.odelay = int(odelay)
        self.prefill = int(prefill)
        self.plain0 = int(plain0)
        self.atimeout = int(atimeout)
        self.lprio = int(lprio)
        self.aprio = int(aprio)
        assert 4 * self.nb_lo + 4 * self.nb_hi == 224 and self.nb_lo % 8 == 0 and self.nb_hi % 8 == 0
        self.stamps = stamps
        self.nt_kv = nt_kv
        self.nt_w = nt_w
        self.force_global = force_global
        self.mimic = mimic
        self.nstamp = 0

    def stamp(self, idx):
        if self.stamps:
            self.a("s_memrealtime %s" % sp(S_STAMP + 2 * idx))

    def flag_add(self, flag, vz, vone):
        a = self.a
        a("s_mov_b64 exec, 1")
        a("ds_add_u32 %s, %s offset:%d" % (vr(vz), vr(vone), flag))
        a("s_mov_b64 exec, -1")

    def flag_set(self, flag, val, vz, vt):
        a = self.a
        a("v_mov_b32 %s, %d" % (vr(vt), val))
        a("s_mov_b64 exec, 1")
        a("ds_write_b32 %s, %s offset:%d" % (vr(vz), vr(vt), flag))
        a("s_mov_b64 exec, -1")

    def flag_wait(self, flag, n, vz, vt, sleep=0):
        a = self.a
        L, Lgo = a.newlabel("W"), a.newlabel("W")
        a("s_mov_b32 s%d, 0" % S_CNT)
        a(L + ":")
        a("ds_read_b32 %s, %s offset:%d" % (vr(vt), vr(vz), flag))
        a("s_waitcnt lgkmcnt(0)")
        a("v_readfirstlane_b32 s%d, %s" % (S_TMP, vr(vt)))
        a("s_cmp_ge_u32 s%d, %d" % (S_TMP, n))
        a("s_cbranch_scc1 %s" % Lgo)
        if sleep:
            a("s_sleep %d" % sleep)
        a("s_add_u32 s%d, s%d, 1" % (S_CNT, S_CNT))
        a("s_cmp_lt_u32 s%d, %d" % (S_CNT, SPIN_MAX))
        a("s_cbranch_scc1 %s" % L)
        a("s_branch L_end")
        a(Lgo + ":")

    def store_mode(self, vaddr, vdata, n=4):
        a = self.a
        L1, L2 = a.newlabel("S"), a.newlabel("S")
        op = "global_store_dwordx%d" % n
        a("s_cmp_lg_u32 s%d, 0" % S_MODE)
        a("s_cbranch_scc1 %s" % L1)
        a("%s %s, %s, %s" % (op, vr(vaddr), vr(vdata, n), sp(S_MB)))
        a("s_branch %s" % L2)
        a(L1 + ":")
        a("%s %s, %s, %s sc1" % (op, vr(vaddr), vr(vdata, n), sp(S_MB)))
        a(L2 + ":")

    def poll_traced(self, loads, base, first_stamp, npass=4):
        a = self.a
        Lok = a.newlabel("PT")
        n = len(loads)
        for k in range(npass):
            a("s_memrealtime %s" % sp(S_STAMP + 2 * (first_stamp + k)))
            for (vd, va, off) in loads:
                a("global_load_dwordx4 %s, %s, %s offset:%d sc1" % (vr(vd, 4), vr(va), sp(base), off))
            for i, (vd, va, off) in enumerate(loads):
                a("s_waitcnt vmcnt(%d)" % (n - 1 - i))
                dst = "vcc" if i == 0 else sp(S_TMP)
                a("v_cmp_ne_u64 %s, %s, %s" % (dst, vr(vd + 2, 2), sp(S_T)))
                if i:
                    a("s_or_b64 vcc, vcc, %s" % sp(S_TMP))
            a("s_cbranch_vccz %s" % Lok)
        self.poll(loads, base)
        a(Lok + ":")

    def poll(self, loads, base, tag=S_T, limit=POLL_MAX, on_timeout="L_end", cnt=None, plain_first=False):
        a = self.a
        L, Lok = a.newlabel("P"), a.newlabel("P")
        n = len(loads)

        def one_pass(flag):
            for (vd, va, off) in loads:
                a("global_load_dwordx4 %s, %s, %s offset:%d %s" % (vr(vd, 4), vr(va), sp(base), off, flag))
            for i, (vd, va, off) in enumerate(loads):
                a("s_waitcnt vmcnt(%d)" % (n - 1 - i))
                dst = "vcc" if i == 0 else sp(S_TMP)
                a("v_cmp_ne_u64 %s, %s, %s" % (dst, vr(vd + 2, 2), sp(tag)))
                if i:
                    a("s_or_b64 vcc, vcc, %s" % sp(S_TMP))
            a("s_cbranch_vccz %s" % Lok)
        a("s_mov_b32 s%d, 0" % S_CNT)
        if plain_first:
            one_pass("")
        a(L + ":")
        one_pass("sc1")
        a("s_add_u32 s%d, s%d, 1" % (S_CNT, S_CNT))
        a("s_cmp_le_u32 s%d, %d" % (S_CNT, limit))
        a("s_cbranch_scc1 %s" % L)
        a("s_branch %s" % on_timeout)
        a(Lok + ":")
        if cnt is not None and self.stamps:
            a("s_mov_b32 s%d, s%d" % (S_STAMP + 2 * cnt, S_CNT))

    def poll_staggered(self, loads, alt, dst, base, sleep):
        a = self.a
        n = len(loads)
        L, LA, LB = a.newlabel("PS"), a.newlabel("PS"), a.newlabel("PS")

        def issue(regs):
            for (vd, (_, va, off)) in zip(regs, loads):
                a("global_load_dwordx4 %s, %s, %s offset:%d sc1" % (vr(vd, 4), vr(va), sp(base), off))

        def check(regs, ok):
            for i, vd in enumerate(regs):
                a("s_waitcnt vmcnt(%d)" % (2 * n - 1 - i))
                dst = "vcc" if i == 0 else sp(S_TMP)
                a("v_cmp_ne_u64 %s, %s, %s" % (dst, vr(vd + 2, 2), sp(S_T)))
                if i:
                    a("s_or_b64 vcc, vcc, %s" % sp(S_TMP))
            a("s_cbranch_vccz %s" % ok)
        ra = [vd for (vd, _, _) in loads]
        a("s_mov_b32 s%d, 0" % S_CNT)
        issue(ra)
        a("s_sleep %d" % sleep)
        a(L + ":")
        issue(alt)
        check(ra, LA)
        issue(ra)
        check(alt, LB)
        a("s_add_u32 s%d, s%d, 1" % (S_CNT, S_CNT))
        a("s_cmp_le_u32 s%d, %d" % (S_CNT, POLL_MAX))
        a("s_cbranch_scc1 %s" % L)
        a("s_branch L_end")
        Ld = a.newlabel("PS")
        a(LB + ":")
        for (x, y) in zip(dst, alt):
            for k in range(2):
                a("v_mov_b32 %s, %s" % (vr(x + k), vr(y + k)))
        a("s_branch %s" % Ld)
        a(LA + ":")
        for (x, y) in zip(dst, ra):
            for k in range(2):
                a("v_mov_b32 %s, %s" % (vr(x + k), vr(y + k)))
        a(Ld + ":")

    def xor_reduce(self, op, regs, steps, tmp):
        a = self.a
        first_dpp = True
        for st in steps:
            if st in (16, 32):
                ins = "v_permlane16_swap_b32" if st == 16 else "v_permlane32_swap_b32"
                for i, r in enumerate(regs):
                    a("v_mov_b32 %s, %s" % (vr(tmp + i), vr(r)))
                if len(regs) < 3:
                    a("s_nop %d" % (2 - len(regs)))
                for i, r in enumerate(regs):
                    a("%s %s, %s" % (ins, vr(r), vr(tmp + i)))
                for i, r in enumerate(regs):
                    a("%s %s, %s, %s" % (op, vr(r), vr(r), vr(tmp + i)))
            else:
                ctl = {1: "quad_perm:[1,0,3,2]", 2: "quad_perm:[2,3,0,1]", "hm": "row_half_mirror", "m": "row_mirror", 8: "row_ror:8", "r4": "row_ror:4"}[st]
                a("s_nop 1" if first_dpp or len(regs) < 3 else "s_nop 0")
                first_dpp = False
                for r in regs:
                    a("%s_dpp %s, %s, %s %s row_mask:0xf bank_mask:0xf" % (op, vr(r), vr(r), vr(r), ctl))

    def read_mode(self, vz, vt):
        a = self.a
        a("ds_read_b32 %s, %s offset:%d" % (vr(vt), vr(vz), F_REM))
        a("s_waitcnt lgkmcnt(0)")
        a("v_readfirstlane_b32 s%d, %s" % (S_MODE, vr(vt)))
        if self.force_global:
            a("s_mov_b32 s%d, 1" % S_MODE)
        a("s_min_u32 s%d, s%d, 1" % (S_MODE, S_MODE))
        a("s_mul_i32 s%d, s%d, %d" % (S_TMP, S_MODE, REGB))
        a("s_add_u32 s%d, s%d, s%d" % (S_MB, S_WS, S_TMP))
        a("s_addc_u32 s%d, s%d, 0" % (S_MB + 1, S_WS + 1))

    def tags(self):
        a = self.a
        a("s_getreg_b32 s32, hwreg(HW_REG_XCC_ID, 0, 4)")
        a("s_waitcnt lgkmcnt(0)")
        a("s_add_u32 s%d, s%d, 0x9E3779B9" % (S_T, S_T))
        a("s_add_u32 s%d, s%d, 0x7F4A7C00" % (S_T + 1, S_T + 1))
        a("s_and_b32 s%d, s%d, 0xFFFFFFE0" % (S_T + 1, S_T + 1))
        a("s_or_b32 s%d, s%d, 0x10" % (S_T + 1, S_T + 1))
        a("s_mov_b32 s%d, s%d" % (S_T1X, S_T))
        a("s_or_b32 s%d, s%d, s%d" % (S_T1X + 1, S_T + 1, S_XCC))

    DBG_MAP = {"A": {0: [(0, True), (1, False)], 1: [(12, False)], 3: [(5, False)], 6: [(7, False)], 7: [(9, False)]},
               "C0": {2: [(14, False)], 4: [(15, False)], 5: [(3, False)], 9: [(8, False)]},
               "C1B": {5: [(13, False)]},
               "C2": {4: [(4, False)], 8: [(10, False)]},
               "C2F": {4: [(4, False)], 8: [(10, False)], 10: [(11, False)]},
               "L": {1: [(2, False)], 3: [(6, False)]}}

    def dump_stamps(self, vt):
        if not self.stamps:
            return
        a = self.a
        if self.dbg:
            a("s_waitcnt lgkmcnt(0)")
            a("s_mov_b64 exec, 1")
            a("v_mov_b32 %s, 0" % vr(vt))
            for st, outs in self.DBG_MAP.get(self.role, {}).items():
                for slot, inv in outs:
                    a("v_mov_b32 %s, s%d" % (vr(vt + 1), S_STAMP + 2 * st))
                    if inv:
                        a("v_not_b32 %s, %s" % (vr(vt + 1), vr(vt + 1)))
                    a("global_atomic_umax %s, %s, s[22:23] offset:%d" % (vr(vt), vr(vt + 1), 4 * slot))
            return
        a("s_waitcnt lgkmcnt(0)")
        a("s_lshl_b32 s%d, s2, 3" % S_TMP)
        a("s_add_u32 s%d, s%d, s%d" % (S_TMP, S_TMP, S_W))
        a("s_lshl_b32 s%d, s%d, 6" % (S_TMP, S_TMP))
        a("s_add_u32 s%d, s%d, %d" % (S_TMP, S_TMP, STAMP_OFF))
        a("s_mov_b64 exec, 1")
        a("v_mov_b32 %s, s%d" % (vr(vt), S_TMP))
        for i in range(16):
            a("v_mov_b32 %s, s%d" % (vr(vt + 1), S_STAMP + 2 * i))
            a("global_store_dword %s, %s, %s offset:%d" % (vr(vt), vr(vt + 1), sp(S_WS), 4 * i))

    def end(self, vt):
        self.dump_stamps(vt)
        self.a("s_endpgm")

    def layernorm_rows(self, base, lds_x, VZ, rows=128):
        a = self.a
        xs, xp = base, base + 4
        f = base + 16
        t = base + 24
        for i in range(4):
            a("v_lshlrev_b32 %s, 16, %s" % (vr(f + 2 * i), vr(xs + i)))
            a("v_and_b32 %s, 0xffff0000, %s" % (vr(f + 2 * i + 1), vr(xs + i)))
        a("v_add_f32 %s, %s, %s" % (vr(t), vr(f), vr(f + 1)))
        a("v_add_f32 %s, %s, %s" % (vr(t + 1), vr(f + 2), vr(f + 3)))
        a("v_add_f32 %s, %s, %s" % (vr(t + 2), vr(f + 4), vr(f + 5)))
        a("v_add_f32 %s, %s, %s" % (vr(t + 3), vr(f + 6), vr(f + 7)))
        a("v_add_f32 %s, %s, %s" % (vr(t), vr(t), vr(t + 1)))
        a("v_add_f32 %s, %s, %s" % (vr(t + 2), vr(t + 2), vr(t + 3)))
        a("v_add_f32 %s, %s, %s" % (vr(t), vr(t), vr(t + 2)))
        self.xor_reduce("v_add_f32", [t], [1, 2, "hm", "m", 16, 32], t + 4)
        a("v_mul_f32 %s, 0x3b000000, %s" % (vr(t), vr(t)))
        for i in range(8):
            a("v_sub_f32 %s, %s, %s" % (vr(f + i), vr(f + i), vr(t)))
        a("v_mul_f32 %s, %s, %s" % (vr(t + 1), vr(f), vr(f)))
        a("v_mul_f32 %s, %s, %s" % (vr(t + 2), vr(f + 1), vr(f + 1)))
        for i in range(2, 8, 2):
            a("v_fmac_f32 %s, %s, %s" % (vr(t + 1), vr(f + i), vr(f + i)))
            a("v_fmac_f32 %s, %s, %s" % (vr(t + 2), vr(f + i + 1), vr(f + i + 1)))
        a("v_add_f32 %s, %s, %s" % (vr(t + 1), vr(t + 1), vr(t + 2)))
        self.xor_reduce("v_add_f32", [t + 1], [1, 2, "hm", "m", 16, 32], t + 4)
        a("v_mul_f32 %s, 0x3b000000, %s" % (vr(t + 1), vr(t + 1)))
        a("v_cvt_pk_bf16_f32 %s, %s, %s" % (vr(t + 2), vr(t), vr(t + 1)))
        a("v_lshlrev_b32 %s, 16, %s" % (vr(t), vr(t + 2)))
        a("v_and_b32 %s, 0xffff0000, %s" % (vr(t + 1), vr(t + 2)))
        a("v_add_f32 %s, 0x3727c5ac, %s" % (vr(t + 1), vr(t + 1)))
        a("v_cvt_pk_bf16_f32 %s, %s, %s" % (vr(t + 1), vr(t + 1), vr(t + 1)))
        a("v_and_b32 %s, 0xffff0000, %s" % (vr(t + 1), vr(t + 1)))
        a("v_sqrt_f32 %s, %s" % (vr(t + 1), vr(t + 1)))
        a("s_nop 0")
        a("v_cvt_pk_bf16_f32 %s, %s, %s" % (vr(t + 1), vr(t + 1), vr(t + 1)))
        a("v_and_b32 %s, 0xffff0000, %s" % (vr(t + 1), vr(t + 1)))
        a("v_rcp_f32 %s, %s" % (vr(t + 2), vr(t + 1)))
        a("v_lshlrev_b32 %s, 16, %s" % (vr(f), vr(xp)))
        a("v_and_b32 %s, 0xffff0000, %s" % (vr(f + 1), vr(xp)))
        a("v_sub_f32 %s, %s, %s" % (vr(f), vr(f), vr(t)))
        a("v_sub_f32 %s, %s, %s" % (vr(f + 1), vr(f + 1), vr(t)))
        a("v_cvt_pk_bf16_f32 %s, %s, %s" % (vr(f), vr(f), vr(f + 1)))
        a("v_and_b32 %s, 0xffff0000, %s" % (vr(f + 1), vr(f)))
        a("v_lshlrev_b32 %s, 16, %s" % (vr(f), vr(f)))
        for i in range(2):
            a("v_mul_f32 %s, %s, %s" % (vr(f + 2 + i), vr(f + i), vr(t + 2)))
        for i in range(2):
            a("v_fma_f32 %s, -%s, %s, %s" % (vr(f + 4 + i), vr(f + 2 + i), vr(t + 1), vr(f + i)))
        for i in range(2):
            a("v_fmac_f32 %s, %s, %s" % (vr(f + 2 + i), vr(f + 4 + i), vr(t + 2)))
        a("v_cvt_pk_bf16_f32 %s, %s, %s" % (vr(f), vr(f + 2), vr(f + 3)))
        if rows == 128:
            a("v_lshlrev_b32 %s, 2, v0" % vr(t))
        else:
            a("v_and_b32 %s, 31, v0" % vr(t))
            a("v_lshlrev_b32 %s, 2, %s" % (vr(t), vr(t)))
        a("ds_write_b32 %s, %s offset:%d" % (vr(t), vr(f), lds_x))
        a("v_lshrrev_b32 %s, 3, v0" % vr(t))
        a("v_lshlrev_b32 %s, %d, %s" % (vr(t), 5 if rows == 128 else 4, vr(t)))
        a("ds_read_b128 %s, %s offset:%d" % (vr(base + 8, 4), vr(t), lds_x))
        if rows == 128:
            a("ds_read_b128 %s, %s offset:%d" % (vr(base + 12, 4), vr(t), lds_x + 16))

    def selectors(self, sel, tmp, both_parities):
        a = self.a
        a("v_and_b32 %s, 15, v0" % vr(tmp))
        a("v_and_b32 %s, 1, %s" % (vr(tmp + 1), vr(tmp)))
        a("v_bfe_u32 %s, %s, 1, 2" % (vr(tmp + 2), vr(tmp)))
        if not both_parities:
            a("v_lshrrev_b32 %s, 3, %s" % (vr(tmp + 3), vr(tmp)))
            a("v_lshl_add_u32 %s, %s, 2, %s" % (vr(tmp + 2), vr(tmp + 3), vr(tmp + 2)))
        a("v_cmp_eq_u32 vcc, 1, %s" % vr(tmp + 1))
        a("v_mov_b32 %s, 0x0c0c0100" % vr(tmp + 3))
        a("v_mov_b32 %s, 0x01000c0c" % vr(tmp + 4))
        a("v_cndmask_b32 %s, %s, %s, vcc" % (vr(tmp + 5), vr(tmp + 3), vr(tmp + 4)))
        a("v_mov_b32 %s, 0x0c0c0302" % vr(tmp + 3))
        a("v_mov_b32 %s, 0x03020c0c" % vr(tmp + 4))
        a("v_cndmask_b32 %s, %s, %s, vcc" % (vr(tmp + 6), vr(tmp + 3), vr(tmp + 4)))
        a("v_mov_b32 %s, 0x0c0c0c0c" % vr(tmp + 3))
        for t in range(4):
            a("v_cmp_eq_u32 vcc, %d, %s" % (t, vr(tmp + 2)))
            a("s_nop 1")
            a("v_cndmask_b32 %s, %s, %s, vcc" % (vr(sel + t), vr(tmp + 3), vr(tmp + 5)))
            a("v_cndmask_b32 %s, %s, %s, vcc" % (vr(sel + 4 + t), vr(tmp + 3), vr(tmp + 6)))

    def tile_gemv(self, W, XN, SEL, AF, ACC, nafter):
        a = self.a
        for i in range(16):
            for t in range(4):
                a("v_perm_b32 %s, %s, %s, %s" % (vr(AF + 4 * i + t), vr(XN + (i >> 1)), vr(XN + (i >> 1)), vr(SEL + 4 * (i & 1) + t)))
        for i in range(16):
            a("s_waitcnt vmcnt(%d)" % (15 - i + nafter))
            a("v_mfma_f32_16x16x32_bf16 %s, %s, %s, %s" % (vr(ACC, 4), vr(AF + 4 * i, 4), vr(W + 4 * i, 4), "0" if i == 0 else vr(ACC, 4)))
        a("s_nop 7")
        a("v_permlane32_swap_b32 %s, %s" % (vr(ACC), vr(ACC + 2)))
        a("v_permlane32_swap_b32 %s, %s" % (vr(ACC + 1), vr(ACC + 3)))
        a("s_nop 1")
        a("v_add_f32_dpp %s, %s, %s row_ror:8 row_mask:0xf bank_mask:0xf" % (vr(ACC), vr(ACC + 2), vr(ACC)))
        a("v_add_f32_dpp %s, %s, %s row_ror:8 row_mask:0xf bank_mask:0xf" % (vr(ACC + 1), vr(ACC + 3), vr(ACC + 1)))


    def prologue(self):
        a = self.a
        a("""
        s_cmp_ge_u32 s2, 256
        s_cbranch_scc1 L_end
        """)
        self.stamp(0)
        a("""
        s_load_dwordx16 s[4:19], s[0:1], 0
        s_load_dwordx4 s[20:23], s[0:1], 64
        s_load_dwordx2 s[24:25], s[0:1], 80
        v_lshrrev_b32 v1, 6, v0
        v_and_b32 v0, 63, v0
        %s
        v_readfirstlane_b32 s28, v1
        v_lshlrev_b32 v37, 4, v0
        s_lshr_b32 s40, s27, 3                ; row block of the Wq tile
        s_cmp_eq_u32 s28, 7
        s_cbranch_scc1 L_L
        s_cmp_eq_u32 s28, 5
        s_cbranch_scc1 L_C1
        s_cmp_eq_u32 s28, 6
        s_cbranch_scc1 L_C2
        s_cmp_lt_u32 s28, 4
        s_cbranch_scc1 L_A
        """ % ("s_lshr_b32 s26, s2, 5\ns_and_b32 s27, s2, 31" if self.scramble else "s_and_b32 s26, s2, 7\ns_lshr_b32 s27, s2, 3"))

    def dispatch_others(self):
        self.a("""
        L_other:
        v_mov_b32 v1, 0
        v_mov_b32 v2, 1
        s_cmp_eq_u32 s28, 7
        s_cbranch_scc1 L_L
        s_cmp_eq_u32 s28, 5
        s_cbranch_scc1 L_C1
        s_cmp_eq_u32 s28, 6
        s_cbranch_scc1 L_C2
        s_branch L_A
        """)

    def mlp_scalars(self):
        self.a("""
        s_cmp_lt_u32 s26, 4
        s_cselect_b32 s49, %d, %d
        s_cmp_lt_u32 s27, s49
        s_cselect_b32 s38, 1, 0
        s_mul_i32 s50, s26, %d
        s_sub_u32 s51, s26, 4
        s_mul_i32 s51, s51, %d
        s_add_u32 s51, s51, %d
        s_cmp_lt_u32 s26, 4
        s_cselect_b32 s50, s50, s51
        s_lshr_b32 s51, s27, 3
        s_add_u32 s50, s50, s51
        """ % (self.nb_lo, self.nb_hi, self.nb_lo // 8, self.nb_hi // 8, self.nb_lo // 2))

    def args_ready(self):
        self.a("s_waitcnt lgkmcnt(0)")
        self.a("s_load_dwordx2 s[30:31], s[24:25], %d" % EPOCH)

    def role_l(self):
        a = self.a
        VZ, V1 = 1, 2
        a(".p2align 8")
        a("L_L:")
        a("v_mov_b32 v1, 0\nv_mov_b32 v2, 1")
        self.role = "L"
        KO, VO = 8, 12
        WOA, WOB, W2A, W1A = 16, 17, 18, 20
        piece = 0x8000 if self.ileave else 0x400
        a("""
        s_lshl_b32 s40, s26, 24
        s_add_u32 s40, s40, 0xF00000
        s_lshl_b32 s41, s27, %d
        s_add_u32 s40, s40, s41               ; first piece of this chunk
        v_lshrrev_b32 v3, 4, v0               ; q4
        v_and_b32 v4, 15, v0                  ; pos
        v_xor_b32 v5, v4, v3
        v_lshl_add_u32 v6, v3, 8, s40
        """ % (10 if self.ileave else 15))
        for q in range(4):
            a("v_xor_b32 v7, %d, v5" % (4 * q))
            a("v_lshl_add_u32 v7, v7, 4, v6")
            a("v_add_u32 %s, %d, v7" % (vr(KO + q), 2 * q * piece))

        def rest_addresses():
            a("v_lshlrev_b32 v7, 1, v3")
            a("v_xor_b32 v7, v7, v4")
            a("v_lshl_add_u32 %s, v7, 4, v6" % vr(VO))
            a("v_xor_b32 v7, 8, v7")
            a("v_lshl_add_u32 v7, v7, 4, v6")
            a("v_add_u32 %s, %d, v7" % (vr(VO + 1), 2 * piece))
            a("""
            s_lshl_b32 s42, s26, 9                ; 512 g
            s_lshr_b32 s43, s27, 3
            s_lshl_b32 s43, s43, 7                ; 128 h
            s_add_u32 s42, s42, s43
            s_bfe_u32 s43, s27, 0x20001
            s_lshl_b32 s43, s43, 5
            s_add_u32 s42, s42, s43
            s_and_b32 s43, s27, 1
            s_lshl_b32 s43, s43, 3
            s_add_u32 s42, s42, s43               ; first Wo row
            s_lshl_b32 s42, s42, 10
            v_lshlrev_b32 v6, 4, v4               ; 16 n
            v_lshl_add_u32 v7, v3, 11, v6
            v_add_u32 %s, s42, v7
            v_add_u32 %s, 0x4000, %s
            s_lshl_b32 s42, s50, 16               ; 64 cbg rows * 1024
            s_and_b32 s43, s27, 7
            s_lshl_b32 s43, s43, 7                ; column block j * 128 bytes
            s_add_u32 s42, s42, s43
            v_lshrrev_b32 v6, 3, v0
            v_lshlrev_b32 v6, 13, v6              ; 8 rows * 1024
            v_and_b32 v7, 7, v0
            v_lshl_add_u32 v6, v7, 4, v6
            v_add_u32 %s, s42, v6
            v_add_u32 v19, 0x1000, %s
            """ % (vr(WOA), vr(WOB), vr(WOA), vr(W2A), vr(W2A)))

        def m0(x):
            return "s_movk_i32 m0, 0x%x\n" % x if x < 0x8000 else "s_mov_b32 m0, 0x%x\n" % x

        def seq(isb):
            ops, flags, gates = [], [], []
            for grp in self.order:
                if grp == "|":
                    gates.append(len(ops))
                elif grp == "k":
                    for w in range(4):
                        for q in range(4):
                            for t in range(2):
                                p = 8 * w + 2 * q + t
                                ops.append((m0(L_K + 1024 * p), "global_load_lds_dwordx4 %s, %s %s" % (vr(KO + q), sp(S_K), self.nt_kv),
                                            "v_add_u32 %s, 0x%x, %s" % (vr(KO + q), (1 if t == 0 else 7) * piece, vr(KO + q))))
                    flags.append((len(ops), F_K))
                elif grp == "v":
                    for w in range(4):
                        for i in range(8):
                            b = (i >> 1) & 1
                            ops.append((m0(L_V + 1024 * (8 * w + i)), "global_load_lds_dwordx4 %s, %s %s" % (vr(VO + b), sp(S_V), self.nt_kv),
                                        "v_add_u32 %s, 0x%x, %s" % (vr(VO + b), (1 if (i & 1) == 0 else 3) * piece, vr(VO + b))))
                        flags.append((len(ops), F_V))
                elif grp == "f":
                    for i in range(4):
                        ops.append(("", "global_load_dwordx4 v[24:27], v23, %s offset:%d sc1" % (sp(S_WS), 1024 * i), ""))
                    ops.append(("", "global_load_dwordx4 v[24:27], v28, %s sc1" % sp(S_WS), ""))
                elif grp == "o":
                    for w in range(4):
                        for i in range(4):
                            off = 256 * w + 1024 * (i >> 1)
                            ops.append((m0(L_WO + (4 * w + i) * 1024 - off),
                                        "global_load_lds_dwordx4 %s, %s offset:%d %s" % (vr(WOA if (i & 1) == 0 else WOB), sp(S_WO), off, self.nt_w), ""))
                    flags.append((len(ops), F_WO))
                elif grp == "2" and isb:
                    for i in range(8):
                        ops.append((m0(L_W2 + 4096 * (i >> 2)),
                                    "global_load_lds_dwordx4 %s, %s offset:%d %s" % (vr(W2A if i < 4 else 19), sp(S_W2), 1024 * (i & 3), self.nt_w), ""))
                    flags.append((len(ops), F_W2))
                elif grp == "1" and isb:
                    for i in range(8):
                        ops.append((m0(L_W1 + 1024 * i), "global_load_lds_dwordx4 %s, %s %s" % (vr(W1A), sp(S_W1), self.nt_w),
                                    "v_add_u32 %s, 3584, %s" % (vr(W1A), vr(W1A))))
                    flags.append((len(ops), F_W1))
            return ops, flags, gates

        W = self.window
        self.args_ready()
        self.stamp(1)
        assert self.order[0] == "k"
        ops0, _, _ = seq(False)
        NE = min(W, 5) if not self.kgate else 0
        for j in range(NE):
            pre, ld, post = ops0[j]
            a(pre)
            a("s_nop 0")
            a(ld)
            a(post)
        a("s_barrier")
        if self.lprio:
            a("s_setprio %d" % self.lprio)
        self.mlp_scalars()
        rest_addresses()
        if self.kgate:
            self.flag_wait(F_ST, 1, VZ, 21)
        if "f" in self.order:
            a("""
            s_lshl_b32 s41, s26, 17
            s_lshl_b32 s42, s27, 12
            s_add_u32 s41, s41, s42
            s_add_u32 s41, s41, %d
            v_lshl_add_u32 v23, v0, 4, s41
            s_lshl_b32 s41, s26, 11
            s_lshr_b32 s42, s27, 3
            s_lshl_b32 s42, s42, 9
            s_add_u32 s41, s41, s42
            s_add_u32 s41, s41, %d
            v_and_b32 v28, 31, v0
            v_lshl_add_u32 v28, v28, 4, s41
            """ % (H2, ST))

        def with_values(flags):
            out, nv = [], 0
            for (e, f) in flags:
                if f == F_V:
                    nv += 1
                    out.append((e, f, nv))
                else:
                    out.append((e, f, 1))
            return out

        def run(ops, flags, gates, W, start, labels=None, check_to=None, first=False):
            n = len(ops)
            pend = [f for f in flags if f[0] > max(0, start - (W - 1)) or first]
            hold = self.hold
            for j in range(start, n):
                pre, ld, post = ops[j]
                if labels and j in labels:
                    a(labels[j] + ":")
                if hold and j == hold:
                    while pend and pend[0][0] <= j:
                        e, f, val = pend.pop(0)
                        a("s_waitcnt vmcnt(%d)" % (j - e))
                        self.flag_set(f, val, VZ, 22)
                    self.flag_wait(F_QPUB, 1, VZ, 21)
                    if isb_cur[0] and self.order[0] == "1":
                        self.flag_wait(F_HPUB, 1, VZ, 21)
                    self.stamp(4)
                if j in gates:
                    while pend and pend[0][0] <= j:
                        e, f, val = pend.pop(0)
                        a("s_waitcnt vmcnt(%d)" % (j - e))
                        self.flag_set(f, val, VZ, 22)
                    self.flag_wait(F_OPUB, 4, VZ, 21)
                chk = check_to is not None and j in check_to
                if chk:
                    a("ds_read_b32 v21, %s offset:%d" % (vr(VZ), F_Q))
                if j >= W and not any(g <= j < g + W for g in gates):
                    a("s_waitcnt vmcnt(%d)" % (W - 1))
                    landed = j - (W - 1)
                    while pend and pend[0][0] <= landed:
                        e, f, val = pend.pop(0)
                        self.flag_set(f, val, VZ, 22)
                if chk:
                    a("s_waitcnt lgkmcnt(0)")
                    a("v_readfirstlane_b32 s%d, v21" % S_TMP)
                    a("s_cmp_lg_u32 s%d, 0" % S_TMP)
                    a("s_cbranch_scc1 %s" % check_to[j])
                a(pre)
                a("s_nop 0")
                a(ld)
                if post:
                    a(post)
            self.stamp(2)
            for (e, f, val) in pend:
                a("s_waitcnt vmcnt(%d)" % (n - e))
                self.flag_set(f, val, VZ, 22)
            self.stamp(3)
            self.end(3)

        isb_cur = [False]

        def emit(isb):
            isb_cur[0] = isb
            ops, flags, gates = seq(isb)
            flags = with_values(flags)
            n = len(ops)
            if not self.w2:
                run(ops, flags, gates, W, NE, first=True)
                return
            points = [j for j in range(W, n - 8) if (j - W) % self.chk == 0]
            labels = {j: a.newlabel("FAST") for j in points}
            run(ops, flags, gates, W, NE, check_to=labels, first=True)
            run(ops, flags, gates, self.w2, points[0], labels=labels)

        Lb = a.newlabel("LB")
        a("s_cmp_lg_u32 s%d, 0" % S_ISB)
        a("s_cbranch_scc1 %s" % Lb)
        emit(False)
        a(Lb + ":")
        emit(True)

    def role_a(self):
        a = self.a
        VZ, V1 = 1, 2
        T = 5
        a("L_A:")
        a("v_mov_b32 v1, 0\nv_mov_b32 v2, 1")
        self.role = "A"
        a("s_barrier")
        self.args_ready()
        a("s_setprio %d" % self.aprio)
        KO, VO, QA = 16, 20, 24
        a("""
        v_lshrrev_b32 v3, 4, v0               ; gg
        v_and_b32 v4, 15, v0                  ; m
        s_lshl_b32 s41, s28, 13
        v_and_b32 v5, 3, v4                   ; b = m & 3
        v_lshrrev_b32 v6, 2, v4               ; a = m >> 2
        v_lshlrev_b32 v7, 11, v6
        v_lshl_add_u32 v7, v5, 8, v7
        v_xor_b32 v8, v3, v5
        v_lshl_add_u32 v7, v8, 4, v7
        v_add_u32 v7, s41, v7
        """)
        for s in range(4):
            a("v_xor_b32 v8, %d, v6" % s)
            a("v_lshl_add_u32 %s, v8, 6, v7" % vr(KO + s))
        a("v_mul_u32_u24 v8, 320, v6")
        a("v_lshl_add_u32 %s, v3, 4, v8" % vr(QA))
        a("""
        v_lshrrev_b32 v8, 2, v4               ; r
        v_and_b32 v9, 3, v4                   ; cq
        v_and_b32 v10, 1, v3
        v_lshl_or_b32 v10, v10, 2, v8         ; sigma
        v_lshl_add_u32 v11, v3, 3, v8         ; 8 gg + r
        v_lshlrev_b32 v11, 8, v11
        v_lshl_add_u32 v11, v9, 3, v11
        v_add_u32 v11, %d, v11
        s_lshl_b32 s42, s28, 1
        """ % L_V)
        for u in range(2):
            a("s_add_u32 s43, s42, %d" % u)
            a("v_xor_b32 v12, s43, v10")
            a("v_lshl_add_u32 %s, v12, 5, v11" % vr(VO + u))
        WOA = 22
        a("s_lshl_b32 s42, s28, 12")
        a("s_add_u32 s42, s42, %d" % L_WO)
        a("v_lshl_add_u32 %s, v0, 4, s42" % vr(WOA))
        SEL = 28
        self.selectors(SEL, T, both_parities=False)
        self.tags()
        TG = 36
        a("v_mov_b32 %s, s%d" % (vr(TG + 2), S_T))
        a("v_mov_b32 %s, s%d" % (vr(TG + 3), S_T + 1))
        OA, SA, STA = 40, 41, 43
        a("""
        s_lshl_b32 s42, s26, 17               ; g * 131072
        s_lshl_b32 s43, s27, 7                ; c * 128
        s_add_u32 s42, s42, s43
        v_and_b32 v12, 7, v0
        v_lshlrev_b32 v12, 4, v12             ; slot * 16
        v_bfe_u32 v13, v0, 3, 1               ; b
        v_lshl_add_u32 v13, v3, 3, v13        ; 8 h + b
        s_lshl_b32 s43, s28, 1
        v_add_u32 v13, s43, v13               ; + 2 w
        v_lshl_add_u32 v13, v13, 12, v12
        s_add_u32 s43, s42, %d
        v_add_u32 %s, s43, v13
        v_lshrrev_b32 v13, 3, v0
        s_lshl_b32 s43, s28, 3
        v_add_u32 v13, s43, v13               ; 8 w + (l >> 3)
        v_lshl_add_u32 v14, v13, 12, v12
        s_add_u32 s43, s42, %d
        v_add_u32 %s, s43, v14
        s_lshl_b32 s42, s26, 11
        s_lshl_b32 s43, s27, 4
        s_add_u32 s42, s42, s43
        s_add_u32 s42, s42, %d
        v_lshl_add_u32 %s, v3, 9, s42
        """ % (H2, vr(OA), H3S, vr(SA), ST, vr(STA)))
        MXW, PWA, PRA, MRA, ORA = 25, 26, 27, 45, 46
        a("""
        v_lshrrev_b32 v12, 2, v4
        v_lshlrev_b32 v12, 4, v12             ; head (l & 15) >> 2, * 16
        s_lshl_b32 s42, s28, 2
        v_add_u32 %s, s42, v12                ; + wave * 4
        v_lshlrev_b32 %s, 4, v0
        s_lshl_b32 s42, s28, 10
        v_add_u32 %s, s42, %s
        v_lshlrev_b32 %s, 4, v3
        v_lshlrev_b32 %s, 4, v3
        """ % (vr(MXW), vr(PRA), vr(PWA), vr(PRA), vr(MRA), vr(ORA)))
        OD = 112
        KF = 48
        QF = 80
        WO = 96
        self.flag_wait(F_K, 1, VZ, T, sleep=2)
        self.stamp(1)
        for t in range(2):
            for s in range(4):
                a("ds_read_b128 %s, %s offset:%d" % (vr(KF + 16 * t + 4 * s, 4), vr(KO + s), L_K + 1024 * t))
        self.flag_wait(F_Q, 1, VZ, T, sleep=1)
        self.stamp(2)
        for s in range(4):
            a("ds_read_b128 %s, %s offset:%d" % (vr(QF + 4 * s, 4), vr(QA), L_Q + 64 * s))
        self.read_mode(VZ, T)
        SC = 112
        for s in range(4):
            for t in range(2):
                a("v_mfma_f32_16x16x32_bf16 %s, %s, %s, %s" % (vr(SC + 4 * t, 4), vr(KF + 16 * t + 4 * s, 4), vr(QF + 4 * s, 4), "0" if s == 0 else vr(SC + 4 * t, 4)))
        a("s_nop 7")
        if self.mimic:
            for i in range(4):
                a("v_cvt_pk_bf16_f32 %s, %s, %s" % (vr(T + i), vr(SC + 2 * i), vr(SC + 2 * i + 1)))
            for i in range(4):
                a("v_lshlrev_b32 %s, 16, %s" % (vr(SC + 2 * i), vr(T + i)))
                a("v_and_b32 %s, 0xffff0000, %s" % (vr(SC + 2 * i + 1), vr(T + i)))
        for i in range(8):
            a("v_mul_f32 %s, 0x%x, %s" % (vr(SC + i), SCALE, vr(SC + i)))
        if self.mimic:
            for i in range(4):
                a("v_cvt_pk_bf16_f32 %s, %s, %s" % (vr(T + i), vr(SC + 2 * i), vr(SC + 2 * i + 1)))
            for i in range(4):
                a("v_lshlrev_b32 %s, 16, %s" % (vr(SC + 2 * i), vr(T + i)))
                a("v_and_b32 %s, 0xffff0000, %s" % (vr(SC + 2 * i + 1), vr(T + i)))
        MX = 44
        a("v_max3_f32 %s, %s, %s, %s" % (vr(T), vr(SC), vr(SC + 1), vr(SC + 2)))
        a("v_max3_f32 %s, %s, %s, %s" % (vr(T + 1), vr(SC + 3), vr(SC + 4), vr(SC + 5)))
        a("v_max3_f32 %s, %s, %s, %s" % (vr(T), vr(T), vr(SC + 6), vr(SC + 7)))
        a("v_max_f32 %s, %s, %s" % (vr(MX), vr(T), vr(T + 1)))
        self.xor_reduce("v_max_f32", [MX], [16, 32], T)
        a("v_mov_b32 %s, 0x%x" % (vr(T + 8), LOG2E))
        a("v_mul_f32 %s, %s, %s" % (vr(T + 9), vr(MX), vr(T + 8)))
        a("s_mov_b64 exec, 0x1111")
        a("ds_write_b32 %s, %s offset:%d" % (vr(MXW), vr(MX), L_MX))
        a("s_mov_b64 exec, -1")
        for i in range(8):
            a("v_fma_f32 %s, %s, %s, -%s" % (vr(SC + i), vr(SC + i), vr(T + 8), vr(T + 9)))
        for i in range(8):
            a("v_exp_f32 %s, %s" % (vr(SC + i), vr(SC + i)))
        PF = 48
        a("s_nop 0")
        for i in range(4):
            a("v_cvt_pk_bf16_f32 %s, %s, %s" % (vr(T + 1 + i), vr(SC + 2 * i), vr(SC + 2 * i + 1)))
        a("ds_write_b128 %s, %s offset:%d" % (vr(PWA), vr(T + 1, 4), L_P))
        self.flag_add(F_P, VZ, V1)
        self.flag_wait(F_P, 4, VZ, T + 6)
        for ks in range(4):
            a("ds_read_b128 %s, %s offset:%d" % (vr(PF + 4 * ks, 4), vr(PRA), L_P + 1024 * ks))
        FW = 120
        a("ds_read_b128 %s, %s offset:%d" % (vr(FW, 4), vr(MRA), L_MX))
        self.stamp(3)
        a("s_waitcnt lgkmcnt(0)")
        a("v_max3_f32 %s, %s, %s, %s" % (vr(MX), vr(FW), vr(FW + 1), vr(FW + 2)))
        a("v_max_f32 %s, %s, %s" % (vr(MX), vr(MX), vr(FW + 3)))
        a("v_mul_f32 %s, %s, %s" % (vr(T + 9), vr(MX), vr(T + 8)))
        for i in range(4):
            a("v_fma_f32 %s, %s, %s, -%s" % (vr(FW + i), vr(FW + i), vr(T + 8), vr(T + 9)))
        for i in range(4):
            a("v_exp_f32 %s, %s" % (vr(FW + i), vr(FW + i)))
        D = 128
        TS = 124
        Lns = a.newlabel("NS")
        a("s_cmp_lg_u32 s28, 0")
        a("s_cbranch_scc1 %s" % Lns)
        ON = 64
        for t in range(4):
            a("v_mov_b32 %s, 0x3f803f80" % vr(ON + t))
        a("s_nop 1")
        for ks in range(4):
            a("v_mfma_f32_16x16x32_bf16 %s, %s, %s, 0" % (vr(D + 4 * ks, 4), vr(PF + 4 * ks, 4), vr(ON, 4)))
        a("v_mov_b32 %s, %s" % (vr(TS), vr(MX)))
        a("v_mov_b32 %s, %s" % (vr(TS + 2), vr(TG + 2)))
        a("v_mov_b32 %s, %s" % (vr(TS + 3), vr(TG + 3)))
        a("s_nop 4")
        a("v_mul_f32 %s, %s, %s" % (vr(TS + 1), vr(FW), vr(D)))
        for ks in range(1, 4):
            a("v_fmac_f32 %s, %s, %s" % (vr(TS + 1), vr(FW + ks), vr(D + 4 * ks)))
        a(Lns + ":")
        wo_first = self.order.index("o") < self.order.index("v")

        def read_wo():
            self.flag_wait(F_WO, 1, VZ, T, sleep=0 if not wo_first else 1)
            for i in range(4):
                a("ds_read_b128 %s, %s offset:%d" % (vr(WO + 4 * i, 4), vr(WOA), 1024 * i))
        if wo_first:
            read_wo()
        self.stamp(4)
        VF = 64
        S_V, S_I = 44, 45
        a("s_mov_b32 s%d, 0" % S_V)
        a("s_mov_b32 s%d, 0" % S_I)
        for ks in range(4):
            Lgo, Lsp = a.newlabel("V"), a.newlabel("V")
            a("s_cmp_ge_u32 s%d, %d" % (S_V, ks + 1))
            a("s_cbranch_scc1 %s" % Lgo)
            a("s_mov_b32 s%d, 0" % S_CNT)
            a(Lsp + ":")
            a("ds_read_b64 %s, %s offset:%d" % (vr(T + 1, 2), vr(VZ), F_V))
            a("s_add_u32 s%d, s%d, 1" % (S_CNT, S_CNT))
            a("s_cmp_gt_u32 s%d, %d" % (S_CNT, SPIN_MAX))
            a("s_cbranch_scc1 L_end")
            a("s_waitcnt lgkmcnt(0)")
            a("v_readfirstlane_b32 s%d, %s" % (S_V, vr(T + 1)))
            a("v_readfirstlane_b32 s%d, %s" % (S_I, vr(T + 2)))
            a("s_cmp_lt_u32 s%d, %d" % (S_V, ks + 1))
            a("s_cbranch_scc1 %s" % Lsp)
            a(Lgo + ":")
            if ks == 3:
                self.stamp(5)
            for u in range(2):
                for jh in range(2):
                    a("ds_read_b64_tr_b16 %s, %s offset:%d" % (vr(VF + 8 * ks + 4 * u + 2 * jh, 2), vr(VO + u), 8192 * ks + 1024 * jh))
            if ks:
                a("s_waitcnt lgkmcnt(4)")
                for u in range(2):
                    a("v_mfma_f32_16x16x32_bf16 %s, %s, %s, 0" % (vr(D + 8 * (ks - 1) + 4 * u, 4), vr(PF + 4 * (ks - 1), 4), vr(VF + 8 * (ks - 1) + 4 * u, 4)))
        for u in range(2):
            a("s_waitcnt lgkmcnt(%d)" % (2 - 2 * u))
            a("v_mfma_f32_16x16x32_bf16 %s, %s, %s, 0" % (vr(D + 24 + 4 * u, 4), vr(PF + 12, 4), vr(VF + 24 + 4 * u, 4)))
        a("v_mul_f32 %s, %s, %s" % (vr(TG), vr(FW), vr(D)))
        a("v_mul_f32 %s, %s, %s" % (vr(TG + 1), vr(FW), vr(D + 4)))
        for ks in range(1, 3):
            a("v_fmac_f32 %s, %s, %s" % (vr(TG), vr(FW + ks), vr(D + 8 * ks)))
            a("v_fmac_f32 %s, %s, %s" % (vr(TG + 1), vr(FW + ks), vr(D + 8 * ks + 4)))
        a("s_nop 1")
        a("v_fmac_f32 %s, %s, %s" % (vr(TG), vr(FW + 3), vr(D + 24)))
        a("v_fmac_f32 %s, %s, %s" % (vr(TG + 1), vr(FW + 3), vr(D + 28)))
        if self.sinit:
            Li = a.newlabel("I")
            a("s_cmp_ge_u32 s%d, 2" % S_I)
            a("s_cbranch_scc1 %s" % Li)
            self.flag_wait(F_INIT, 2, VZ, T)
            a(Li + ":")
        self.store_mode(OA, TG)
        Lns = a.newlabel("NS")
        a("s_cmp_lg_u32 s28, 0")
        a("s_cbranch_scc1 %s" % Lns)
        a("s_mov_b32 s42, 0x00010001")
        a("s_mov_b32 s43, 0x00010001")
        a("s_mov_b64 exec, s[42:43]")
        self.store_mode(STA, TS)
        a("s_mov_b64 exec, -1")
        a(Lns + ":")
        self.flag_add(F_OPUB, VZ, V1)
        self.stamp(6)
        if not wo_first:
            read_wo()
        AF = 64
        OG = 8
        Lsp = a.newlabel("O")
        a("s_mov_b32 s%d, 0" % S_CNT)
        a(Lsp + ":")
        a("ds_read_b128 %s, %s offset:%d" % (vr(OG, 4), vr(ORA), L_O))
        a("s_add_u32 s%d, s%d, 1" % (S_CNT, S_CNT))
        a("s_cmp_gt_u32 s%d, %d" % (S_CNT, SPIN_MAX))
        a("s_cbranch_scc1 L_end")
        a("s_waitcnt lgkmcnt(0)")
        a("v_and_b32 %s, %s, %s" % (vr(OG + 1), vr(OG + 1), vr(OG + 3)))
        a("v_cmp_ne_u32 vcc, 1, %s" % vr(OG + 1))
        a("s_cbranch_vccnz %s" % Lsp)
        for i in range(4):
            src = OG + 2 * (i >> 1)
            for t in range(4):
                a("v_perm_b32 %s, %s, %s, %s" % (vr(AF + 4 * i + t), vr(src), vr(src), vr(SEL + 4 * (i & 1) + t)))
            if i:
                a("v_mfma_f32_16x16x32_bf16 %s, %s, %s, %s" % (vr(OD, 4), vr(AF + 4 * (i - 1), 4), vr(WO + 4 * (i - 1), 4), "0" if i == 1 else vr(OD, 4)))
        a("s_nop 1")
        a("v_mfma_f32_16x16x32_bf16 %s, %s, %s, %s" % (vr(OD, 4), vr(AF + 12, 4), vr(WO + 12, 4), vr(OD, 4)))
        a("s_nop 7")
        a("v_permlane32_swap_b32 %s, %s" % (vr(OD), vr(OD + 2)))
        a("v_permlane32_swap_b32 %s, %s" % (vr(OD + 1), vr(OD + 3)))
        a("v_mov_b32 %s, %s" % (vr(TG), vr(OD)))
        a("v_mov_b32 %s, %s" % (vr(TG + 1), vr(OD + 1)))
        self.store_mode(SA, TG)
        if self.sgate:
            self.flag_add(F_SPUB, VZ, V1)
        self.stamp(7)
        self.end(T)

    def role_c0(self):
        a = self.a
        VZ, V1 = 1, 2
        X = 4
        W = 40
        AF = 104
        SEL = 168
        ACC = 176
        T = 180
        self.role = "C0"
        if self.code_pf:
            a("s_getpc_b64 s[52:53]")
            a("L_pc:")
            a("s_lshl_b32 s54, s27, 10")
            a("v_add_u32 v3, s54, v37")
            a("v_min_u32 v3, L_code_end-L_pc-16, v3")
            a("global_load_dwordx4 v[188:191], v3, s[52:53]")
        a("""
        s_lshl_b32 s41, s40, 8
        v_lshl_add_u32 v38, v0, 2, s41
        s_lshl_b32 s41, s40, 20               ; rb * 128 * 8192
        s_lshl_b32 s42, s26, 10               ; g * 512 * 2
        s_add_u32 s41, s41, s42
        s_and_b32 s42, s27, 7
        s_lshl_b32 s42, s42, 7                ; cb * 128
        s_add_u32 s41, s41, s42
        v_lshrrev_b32 v3, 3, v0
        v_lshlrev_b32 v3, 17, v3              ; 16 rows * 8192
        v_and_b32 v36, 7, v0
        v_lshl_add_u32 v3, v36, 4, v3
        v_add_u32 v3, s41, v3
        s_mov_b32 m0, %d
        s_movk_i32 s41, 15
        s_waitcnt lgkmcnt(0)
        global_load_dwordx4 %s, v37, %s
        global_load_dword %s, v38, %s
        L_wq:
        global_load_lds_dwordx4 v3, %s %s
        v_add_u32 v3, 0x2000, v3
        s_addk_i32 m0, 0x400
        s_sub_u32 s41, s41, 1
        s_cbranch_scc0 L_wq
        s_barrier
        L_C0_rest:
        s_setprio 3
        s_load_dwordx2 s[30:31], s[24:25], %d
        v_mov_b32 v1, 0
        v_mov_b32 v2, 1
        """ % (L_W1, vr(X, 4), sp(S_X), vr(X + 4), sp(S_X), sp(S_WQ), self.nt_w, EPOCH))
        self.stamp(1)
        self.selectors(SEL, T, both_parities=True)
        a("s_waitcnt vmcnt(16)")
        if self.kgate == 1:
            self.flag_add(F_ST, VZ, V1)
        self.stamp(2)
        self.layernorm_rows(X, L_XQ, VZ)
        self.tags()
        a("s_waitcnt lgkmcnt(0)")
        if self.kgate == 2:
            self.flag_add(F_ST, VZ, V1)
        self.stamp(3)
        XN = X + 8
        a("v_add_u32 v37, %d, v37" % L_W1)
        for i in range(16):
            for t in range(4):
                a("v_perm_b32 %s, %s, %s, %s" % (vr(AF + 4 * i + t), vr(XN + (i >> 1)), vr(XN + (i >> 1)), vr(SEL + 4 * (i & 1) + t)))
        for q in range(4):
            a("s_waitcnt vmcnt(%d)" % (12 - 4 * q))
            if self.kgate >= 3 and q == self.kgate - 3:
                self.flag_add(F_ST, VZ, V1)
            for i in range(4 * q, 4 * q + 4):
                a("ds_read_b128 %s, v37 offset:%d" % (vr(W + 4 * i, 4), 1024 * i))
            if q:
                for i in range(4 * q - 4, 4 * q):
                    a("s_waitcnt lgkmcnt(%d)" % (4 + (4 * q - 1 - i)))
                    a("v_mfma_f32_16x16x32_bf16 %s, %s, %s, %s" % (vr(ACC, 4), vr(AF + 4 * i, 4), vr(W + 4 * i, 4), "0" if i == 0 else vr(ACC, 4)))
        for i in range(12, 16):
            a("s_waitcnt lgkmcnt(%d)" % (15 - i))
            a("v_mfma_f32_16x16x32_bf16 %s, %s, %s, %s" % (vr(ACC, 4), vr(AF + 4 * i, 4), vr(W + 4 * i, 4), vr(ACC, 4)))
        a("s_nop 7")
        a("v_permlane32_swap_b32 %s, %s" % (vr(ACC), vr(ACC + 2)))
        a("v_permlane32_swap_b32 %s, %s" % (vr(ACC + 1), vr(ACC + 3)))
        a("s_nop 1")
        a("v_add_f32_dpp %s, %s, %s row_ror:8 row_mask:0xf bank_mask:0xf" % (vr(ACC), vr(ACC + 2), vr(ACC)))
        a("v_add_f32_dpp %s, %s, %s row_ror:8 row_mask:0xf bank_mask:0xf" % (vr(ACC + 1), vr(ACC + 3), vr(ACC + 1)))
        self.stamp(4)
        a("v_mov_b32 %s, s%d" % (vr(ACC + 2), S_T1X))
        a("v_mov_b32 %s, s%d" % (vr(ACC + 3), S_T1X + 1))
        a("""
        s_lshl_b32 s41, s26, 14               ; g * 16384
        s_lshr_b32 s42, s27, 3
        s_lshl_b32 s42, s42, 12               ; rb * 4096
        s_add_u32 s41, s41, s42
        s_and_b32 s42, s27, 7
        s_lshl_b32 s42, s42, 9                ; cb * 512
        s_add_u32 s41, s41, s42
        s_add_u32 s41, s41, %d
        v_lshrrev_b32 v3, 4, v0               ; 2 hi + g'
        v_lshlrev_b32 v3, 3, v3
        v_and_b32 v36, 7, v0
        v_add_u32 v3, v3, v36                 ; pos = 16 hi + 8 g' + n
        v_lshl_add_u32 v3, v3, 4, s41
        v_add_u32 v37, %d, v3
        """ % (H1, REGB))
        a("s_mov_b32 s42, 0x00ff00ff")
        a("s_mov_b32 s43, 0x00ff00ff")
        a("s_mov_b64 exec, s[42:43]")
        a("global_store_dwordx4 v3, %s, %s" % (vr(ACC, 4), sp(S_WS)))
        if self.qack:
            a("global_store_dwordx4 v37, %s, %s sc1" % (vr(ACC, 4), sp(S_WS)))
            a("s_mov_b64 exec, -1")
            self.stamp(5)
            a("s_waitcnt vmcnt(1)")
            if self.qsleep:
                a("s_sleep %d" % self.qsleep)
            self.flag_add(F_QPUB, VZ, V1)
        else:
            a("s_mov_b64 exec, -1")
            self.flag_add(F_QPUB, VZ, V1)
            a("s_mov_b64 exec, s[42:43]")
            a("global_store_dwordx4 v37, %s, %s sc1" % (vr(ACC, 4), sp(S_WS)))
            a("s_mov_b64 exec, -1")
        if not self.qack:
            self.stamp(5)
        SA, OA = 4, 5
        G = 8
        a("""
        s_lshl_b32 s41, s26, 11               ; g * 2048
        s_lshr_b32 s42, s27, 3
        s_lshl_b32 s42, s42, 9                ; head * 512
        s_add_u32 s41, s41, s42
        s_add_u32 s41, s41, %d
        v_lshrrev_b32 v3, 3, v0
        v_lshl_add_u32 %s, v3, 4, s41
        s_lshl_b32 s41, s26, 17
        s_lshl_b32 s42, s27, 12
        s_add_u32 s41, s41, s42
        s_add_u32 s41, s41, %d
        v_lshl_add_u32 %s, v0, 4, s41
        """ % (ST, vr(SA), H2, vr(OA)))
        a("v_lshlrev_b32 v6, 3, v0")
        self.flag_wait(F_Q, 1, VZ, T, sleep=2)
        self.read_mode(VZ, T)
        self.stamp(6)
        GO = 40
        self.flag_wait(F_OPUB, self.ogate, VZ, T, sleep=0 if self.odelay else 1)
        if self.odelay:
            a("s_sleep %d" % self.odelay)
            self.flag_add(F_O, VZ, V1)
        self.stamp(7)
        self.poll([(G + 4 * i, SA, 128 * i) for i in range(4)] + [(GO + 4 * i, OA, 1024 * i) for i in range(4)], S_MB, cnt=12, plain_first=bool(self.plain0 & 2))
        self.stamp(8)
        MX = 24
        a("v_max3_f32 %s, %s, %s, %s" % (vr(MX), vr(G), vr(G + 4), vr(G + 8)))
        a("v_max_f32 %s, %s, %s" % (vr(MX), vr(MX), vr(G + 12)))
        self.xor_reduce("v_max_f32", [MX], [8, 16, 32], T)
        WT = 26
        for i in range(4):
            a("v_sub_f32 %s, %s, %s" % (vr(WT + i), vr(G + 4 * i), vr(MX)))
        for i in range(4):
            a("v_mul_f32 %s, 0x%x, %s" % (vr(WT + i), LOG2E, vr(WT + i)))
        for i in range(4):
            a("v_exp_f32 %s, %s" % (vr(WT + i), vr(WT + i)))
        LS, A0, A1 = 25, 30, 31
        a("s_nop 0")
        a("v_mul_f32 %s, %s, %s" % (vr(A0), vr(WT), vr(GO)))
        a("v_mul_f32 %s, %s, %s" % (vr(A1), vr(WT), vr(GO + 1)))
        a("v_mul_f32 %s, %s, %s" % (vr(LS), vr(WT), vr(G + 1)))
        for i in range(1, 4):
            a("v_fmac_f32 %s, %s, %s" % (vr(A0), vr(WT + i), vr(GO + 4 * i)))
            a("v_fmac_f32 %s, %s, %s" % (vr(A1), vr(WT + i), vr(GO + 4 * i + 1)))
            a("v_fmac_f32 %s, %s, %s" % (vr(LS), vr(WT + i), vr(G + 4 * i + 1)))
        self.xor_reduce("v_add_f32", [LS, A0, A1], [8, 16, 32], T)
        a("v_rcp_f32 %s, %s" % (vr(T), vr(LS)))
        a("s_nop 0")
        a("v_fma_f32 %s, -%s, %s, 1.0" % (vr(T + 1), vr(T), vr(LS)))
        a("v_fmac_f32 %s, %s, %s" % (vr(T), vr(T + 1), vr(T)))
        a("v_mul_f32 %s, %s, %s" % (vr(A0), vr(A0), vr(T)))
        a("v_mul_f32 %s, %s, %s" % (vr(A1), vr(A1), vr(T)))
        a("v_cvt_pk_bf16_f32 %s, %s, %s" % (vr(A0), vr(A0), vr(A1)))
        a("v_mov_b32 %s, 1" % vr(A1))
        a("s_mov_b64 exec, 0xff")
        a("ds_write_b64 %s, %s offset:%d" % (vr(6), vr(A0, 2), L_O))
        a("s_mov_b64 exec, -1")
        self.stamp(9)
        self.end(T)

    def role_c1(self):
        a = self.a
        VZ, V1 = 1, 2
        X = 4
        W = 40
        AF = 104
        SEL = 168
        ACC = 176
        T = 180
        a("L_C1:")
        a("v_mov_b32 v1, 0\nv_mov_b32 v2, 1")
        self.role = "C1"
        a("s_barrier")
        a("s_setprio 3")
        self.mlp_scalars()
        a("""
        v_lshlrev_b32 v42, 4, v0
        s_and_b32 s40, s27, 7
        s_lshl_b32 s41, s40, 7
        v_and_b32 v3, 31, v0
        v_lshl_add_u32 v43, v3, 2, s41
        """)
        a("""
        s_lshl_b32 s42, s50, 7
        s_and_b32 s43, s27, 7
        s_mul_i32 s43, s43, %d
        s_add_u32 s42, s42, s43
        v_lshrrev_b32 v6, 3, v0
        v_mul_u32_u24 v6, %d, v6
        v_and_b32 v7, 7, v0
        v_lshl_add_u32 v6, v7, 4, v6
        v_add_u32 v44, s42, v6
        """ % (64 * 3584, 8 * 3584))
        self.args_ready()
        a("""
        s_lshl_b32 s41, s26, 14
        s_lshl_b32 s42, s27, 9
        s_add_u32 s44, s41, s42
        s_add_u32 s44, s44, %d                ; own outbox of hidden-unit partials
        """ % HB)
        if self.prefill:
            a("""
            s_lshl_b32 s41, s26, 14
            s_lshr_b32 s42, s27, 3
            s_lshl_b32 s42, s42, 12
            s_add_u32 s41, s41, s42
            s_and_b32 s42, s27, 7
            s_lshl_b32 s42, s42, 9
            s_add_u32 s41, s41, s42
            s_add_u32 s41, s41, %d
            v_and_b32 v3, 31, v0
            v_lshl_add_u32 v40, v3, 4, s41
            v_lshl_add_u32 v41, v3, 4, s44
            s_lshl_b32 s41, s26, 11
            s_lshr_b32 s42, s27, 3
            s_lshl_b32 s42, s42, 9
            s_add_u32 s41, s41, s42
            s_add_u32 s41, s41, %d
            v_lshl_add_u32 v45, v3, 4, s41
            v_cmp_gt_u32 vcc, 32, v0
            s_nop 1
            v_cndmask_b32 v40, v41, v40, vcc
            global_load_dwordx4 v[188:191], v40, %s
            """ % (H1, ST, sp(S_WS)))
            if self.prefill >= 2:
                Ls = a.newlabel("I")
                a("""
                s_and_b32 s41, s27, 7
                s_cmp_lg_u32 s41, 0
                s_cbranch_scc1 %s
                global_load_dwordx4 v[188:191], v45, %s
                %s:
                """ % (Ls, sp(S_WS), Ls))
        W1R = 48
        Lb = a.newlabel("B")
        a("s_cmp_lg_u32 s%d, 0" % S_ISB)
        a("s_cbranch_scc1 %s" % Lb)
        self.stamp(1)
        self.end(T)
        a(Lb + ":")
        a("global_load_dwordx4 %s, v42, %s" % (vr(X, 4), sp(S_X)))
        a("global_load_dword %s, v43, %s" % (vr(X + 4), sp(S_X)))
        if self.w1gate:
            self.flag_wait(F_ST, 1, VZ, T)
        for i in range(8):
            a("global_load_dwordx4 %s, v44, %s %s" % (vr(W1R + 4 * i, 4), sp(S_W1), self.nt_w))
            if i < 7:
                a("v_add_u32 v44, 3584, v44")
        a("s_waitcnt vmcnt(8)")
        self.stamp(1)
        self.role = "C1B"
        self.selectors(SEL, T, both_parities=True)
        self.layernorm_rows(X, L_XH, VZ, rows=64)
        self.tags()
        a("v_lshlrev_b32 v3, 4, v0")
        a("v_add_u32 v38, %d, v3" % L_W2)
        XN = X + 8
        for i in range(8):
            for t in range(4):
                a("v_perm_b32 %s, %s, %s, %s" % (vr(AF + 4 * i + t), vr(XN + (i >> 1)), vr(XN + (i >> 1)), vr(SEL + 4 * (i & 1) + t)))
        a("""
        v_lshrrev_b32 v3, 4, v0
        v_lshlrev_b32 v3, 3, v3
        v_and_b32 v36, 7, v0
        v_add_u32 v3, v3, v36
        v_lshl_add_u32 v3, v3, 4, s44
        s_lshr_b32 s41, s27, 3
        s_lshl_b32 s41, s41, 12               ; cbl * 4096
        s_lshl_b32 s42, s26, 14
        s_add_u32 s41, s41, s42
        s_add_u32 s41, s41, %d
        v_lshl_add_u32 v4, v0, 4, s41
        """ % HB)
        a("s_waitcnt vmcnt(0)")
        self.stamp(2)
        for i in range(8):
            a("v_mfma_f32_16x16x32_bf16 %s, %s, %s, %s" % (vr(ACC, 4), vr(AF + 4 * i, 4), vr(W1R + 4 * i, 4), "0" if i == 0 else vr(ACC, 4)))
        a("s_nop 7")
        a("v_permlane32_swap_b32 %s, %s" % (vr(ACC), vr(ACC + 2)))
        a("v_permlane32_swap_b32 %s, %s" % (vr(ACC + 1), vr(ACC + 3)))
        a("s_nop 1")
        a("v_add_f32_dpp %s, %s, %s row_ror:8 row_mask:0xf bank_mask:0xf" % (vr(ACC), vr(ACC + 2), vr(ACC)))
        a("v_add_f32_dpp %s, %s, %s row_ror:8 row_mask:0xf bank_mask:0xf" % (vr(ACC + 1), vr(ACC + 3), vr(ACC + 1)))
        self.stamp(3)
        a("v_mov_b32 %s, s%d" % (vr(ACC + 2), S_T))
        a("v_mov_b32 %s, s%d" % (vr(ACC + 3), S_T + 1))
        a("v_add_u32 v5, %d, v3" % REGB)
        a("s_mov_b32 s42, 0x00ff00ff")
        a("s_mov_b32 s43, 0x00ff00ff")
        a("s_mov_b64 exec, s[42:43]")
        a("global_store_dwordx4 v3, %s, %s" % (vr(ACC, 4), sp(S_WS)))
        a("s_mov_b64 exec, -1")
        self.flag_add(F_HPUB, VZ, V1)
        a("s_mov_b64 exec, s[42:43]")
        a("global_store_dwordx4 v5, %s, %s sc1" % (vr(ACC, 4), sp(S_WS)))
        a("s_mov_b64 exec, -1")
        G = 8
        self.flag_wait(F_Q, 1, VZ, T, sleep=1)
        self.read_mode(VZ, T)
        self.poll([(G + 4 * i, 4, 1024 * i) for i in range(4)], S_MB)
        self.stamp(4)
        for e in range(2):
            a("v_add_f32 %s, %s, %s" % (vr(G + e), vr(G + e), vr(G + 4 + e)))
            a("v_add_f32 %s, %s, %s" % (vr(G + 8 + e), vr(G + 8 + e), vr(G + 12 + e)))
        for e in range(2):
            a("v_add_f32 %s, %s, %s" % (vr(G + e), vr(G + e), vr(G + 8 + e)))
        self.xor_reduce("v_add_f32", [G, G + 1], [32], T)
        a("v_max_f32 %s, 0, %s" % (vr(G), vr(G)))
        a("v_max_f32 %s, 0, %s" % (vr(G + 1), vr(G + 1)))
        a("v_cvt_pk_bf16_f32 %s, %s, %s" % (vr(G), vr(G), vr(G + 1)))
        a("""
        v_and_b32 v5, 7, v0
        v_lshlrev_b32 v5, 4, v5               ; 8 n * 2 B
        v_bfe_u32 v6, v0, 3, 1
        v_lshl_add_u32 v5, v6, 3, v5          ; 4 g' * 2 B
        v_bfe_u32 v6, v0, 4, 1
        v_lshl_add_u32 v5, v6, 2, v5          ; 2 hi * 2 B
        ds_write_b32 v5, %s offset:%d
        v_lshrrev_b32 v5, 3, v0
        v_lshlrev_b32 v5, 4, v5
        ds_read_b128 %s, v5 offset:%d
        """ % (vr(G), L_XH, vr(G + 4, 4), L_XH))
        a("""
        s_and_b32 s41, s27, 7
        s_lshr_b32 s42, s41, 1
        s_lshl_b32 s42, s42, 3
        s_and_b32 s41, s41, 1
        s_add_u32 s41, s41, s42
        s_lshl_b32 s41, s41, 9
        s_lshl_b32 s42, s26, 14
        s_add_u32 s41, s41, s42
        s_lshr_b32 s42, s27, 3
        s_lshl_b32 s42, s42, 7
        s_add_u32 s41, s41, s42
        s_add_u32 s41, s41, %d
        v_lshrrev_b32 v3, 4, v0
        v_lshlrev_b32 v3, 10, v3
        v_lshl_add_u32 v3, v36, 4, v3
        v_add_u32 v3, s41, v3
        s_waitcnt lgkmcnt(0)
        """ % H3G)
        for i in range(8):
            for t in range(4):
                a("v_perm_b32 %s, %s, %s, %s" % (vr(AF + 4 * i + t), vr(G + 4 + (i >> 1)), vr(G + 4 + (i >> 1)), vr(SEL + 4 * (i & 1) + t)))
        self.flag_wait(F_W2, 1, VZ, T, sleep=1)
        for i in range(8):
            a("ds_read_b128 %s, v38 offset:%d" % (vr(W + 4 * i, 4), 1024 * i))
        for i in range(8):
            a("s_waitcnt lgkmcnt(%d)" % (7 - i))
            a("v_mfma_f32_16x16x32_bf16 %s, %s, %s, %s" % (vr(ACC, 4), vr(AF + 4 * i, 4), vr(W + 4 * i, 4), "0" if i == 0 else vr(ACC, 4)))
        a("s_nop 7")
        a("v_permlane32_swap_b32 %s, %s" % (vr(ACC), vr(ACC + 2)))
        a("v_permlane32_swap_b32 %s, %s" % (vr(ACC + 1), vr(ACC + 3)))
        a("s_nop 1")
        a("v_add_f32_dpp %s, %s, %s row_ror:8 row_mask:0xf bank_mask:0xf" % (vr(ACC), vr(ACC + 2), vr(ACC)))
        a("v_add_f32_dpp %s, %s, %s row_ror:8 row_mask:0xf bank_mask:0xf" % (vr(ACC + 1), vr(ACC + 3), vr(ACC + 1)))
        a("v_mov_b32 %s, s%d" % (vr(ACC + 2), S_T))
        a("v_mov_b32 %s, s%d" % (vr(ACC + 3), S_T + 1))
        a("s_mov_b32 s42, 0x00ff00ff")
        a("s_mov_b32 s43, 0x00ff00ff")
        a("s_mov_b64 exec, s[42:43]")
        self.store_mode(3, ACC)
        a("s_mov_b64 exec, -1")
        self.stamp(5)
        self.end(T)

    def role_c2(self):
        a = self.a
        VZ, V1 = 1, 2
        T = 100
        G = 8
        a("L_C2:")
        a("v_mov_b32 v1, 0\nv_mov_b32 v2, 1")
        self.role = "C2"
        a("s_setprio 3")
        a("v_lshlrev_b32 v3, 2, v0")
        a("s_mov_b32 exec_hi, 0")
        a("ds_write_b32 v3, v1 offset:%d" % L_F)
        a("s_mov_b64 exec, -1")
        self.args_ready()
        a("s_barrier")
        self.mlp_scalars()
        XF, FA, OUTA = 80, 81, 82
        a("""
        s_max_u32 s45, s27, 28
        s_sub_u32 s45, s45, 28
        s_lshl_b32 s45, s45, 3
        s_add_u32 s45, s45, s26               ; column set c'
        s_lshr_b32 s41, s45, 3
        s_lshl_b32 s41, s41, 7                ; 128 (c' >> 3)
        s_and_b32 s42, s45, 1
        s_lshl_b32 s42, s42, 6                ; 64 (c' & 1)
        s_add_u32 s41, s41, s42
        s_bfe_u32 s42, s45, 0x10001
        s_lshl_b32 s42, s42, 2
        s_add_u32 s41, s41, s42
        s_bfe_u32 s42, s45, 0x10002
        s_lshl_b32 s42, s42, 1
        s_add_u32 s41, s41, s42
        v_and_b32 v3, 7, v0
        v_lshlrev_b32 v3, 3, v3
        v_add_u32 v3, s41, v3                 ; first column of the pair
        v_lshlrev_b32 %s, 1, v3               ; byte offset in x / out
        s_lshl_b32 s41, s45, 11
        s_add_u32 s41, s41, %d
        v_lshrrev_b32 v3, 3, v0
        v_lshlrev_b32 v3, 8, v3
        v_and_b32 v83, 7, v0
        v_lshl_add_u32 v3, v83, 4, v3
        v_add_u32 %s, s41, v3
        """ % (vr(OUTA), H3B, vr(FA)))
        Lnf = a.newlabel("NF")
        a("s_cmp_lt_u32 s27, 28")
        a("s_cbranch_scc1 %s" % Lnf)
        a("global_load_dword %s, %s, %s" % (vr(XF), vr(OUTA), sp(S_X)))
        a("global_load_dwordx4 v[84:87], %s, %s sc1" % (vr(FA), sp(S_WS)))
        a("global_load_dwordx4 v[88:91], %s, %s offset:128 sc1" % (vr(FA), sp(S_WS)))
        a(Lnf + ":")
        a("""
        s_lshl_b32 s41, s26, 14
        s_add_u32 s41, s41, %d
        v_lshl_add_u32 v4, v0, 4, s41
        v_add_u32 v5, 0x1000, v4
        v_add_u32 v6, 0x2000, v4
        v_add_u32 v7, 0x3000, v4
        """ % H1)
        qloads = [(G + 16 * hd + 4 * rb, 4 + rb, 1024 * hd) for hd in range(4) for rb in range(4)]
        self.tags()
        self.stamp(1)
        self.flag_wait(F_QPUB, 1, VZ, T, sleep=1)
        self.stamp(2)
        Lslow, Lgot = a.newlabel("Q"), a.newlabel("Q")
        if not self.force_global:
            self.poll(qloads, S_WS, tag=S_T1X, limit=self.atimeout, on_timeout=Lslow, cnt=12, plain_first=bool(self.plain0 & 1))
            a("s_branch %s" % Lgot)
        a(Lslow + ":")
        a("s_waitcnt vmcnt(0)")
        a("s_add_u32 s46, s%d, %d" % (S_WS, REGB))
        a("s_addc_u32 s47, s%d, 0" % (S_WS + 1))
        L = a.newlabel("P")
        a("s_mov_b32 s%d, 0" % S_CNT)
        a(L + ":")
        for (vd, va, off) in qloads:
            a("global_load_dwordx4 %s, %s, s[46:47] offset:%d sc1" % (vr(vd, 4), vr(va), off))
        a("s_add_u32 s%d, s%d, 1" % (S_CNT, S_CNT))
        a("s_cmp_gt_u32 s%d, %d" % (S_CNT, POLL_MAX))
        a("s_cbranch_scc1 L_end")
        a("s_waitcnt vmcnt(0)")
        a("v_mov_b32 %s, 0" % vr(T))
        a("v_mov_b32 %s, 0" % vr(T + 1))
        for (vd, va, off) in qloads:
            a("v_xor_b32 %s, s%d, %s" % (vr(T + 2), S_T, vr(vd + 2)))
            a("v_xor_b32 %s, s%d, %s" % (vr(T + 3), S_T + 1, vr(vd + 3)))
            a("v_and_b32 %s, 0xfffffff0, %s" % (vr(T + 3), vr(T + 3)))
            a("v_or3_b32 %s, %s, %s, %s" % (vr(T), vr(T), vr(T + 2), vr(T + 3)))
            a("v_xor_b32 %s, s%d, %s" % (vr(T + 3), S_T1X + 1, vr(vd + 3)))
            a("v_or_b32 %s, %s, %s" % (vr(T + 1), vr(T + 1), vr(T + 3)))
        a("v_cmp_ne_u32 vcc, 0, %s" % vr(T))
        a("s_cbranch_vccnz %s" % L)
        a("v_cmp_ne_u32 vcc, 0, %s" % vr(T + 1))
        a("s_cbranch_vccz %s" % Lgot)
        self.flag_add(F_REM, VZ, V1)
        a(Lgot + ":")
        self.stamp(3)
        for hd in range(4):
            b = G + 16 * hd
            for e in range(2):
                a("v_add_f32 %s, %s, %s" % (vr(b + e), vr(b + e), vr(b + 4 + e)))
                a("v_add_f32 %s, %s, %s" % (vr(b + 8 + e), vr(b + 8 + e), vr(b + 12 + e)))
            for e in range(2):
                a("v_add_f32 %s, %s, %s" % (vr(b + e), vr(b + e), vr(b + 8 + e)))
            a("v_cvt_pk_bf16_f32 %s, %s, %s" % (vr(b), vr(b), vr(b + 1)))
        a("""
        v_lshrrev_b32 v72, 5, v0              ; cb_local
        v_lshlrev_b32 v72, 7, v72             ; 64 columns * 2 B
        v_and_b32 v73, 7, v0
        v_lshl_add_u32 v72, v73, 4, v72       ; 8 n * 2 B
        v_bfe_u32 v73, v0, 3, 1
        v_lshl_add_u32 v72, v73, 3, v72       ; 4 g' * 2 B
        v_bfe_u32 v73, v0, 4, 1
        v_lshl_add_u32 v72, v73, 2, v72       ; 2 s * 2 B
        """)
        for hd in range(4):
            a("ds_write_b32 v72, %s offset:%d" % (vr(G + 16 * hd), L_Q + 320 * hd))
        self.flag_add(F_Q, VZ, V1)
        self.stamp(4)
        SA, GA, BA = 4, 5, 6
        a("""
        s_lshl_b32 s41, s26, 17
        s_lshl_b32 s42, s27, 12
        s_add_u32 s41, s41, s42
        v_lshl_add_u32 v3, v0, 4, s41
        v_add_u32 %s, %d, v3
        v_add_u32 %s, %d, v3
        s_lshl_b32 s41, s27, 11
        s_lshl_b32 s42, s26, 8
        s_add_u32 s41, s41, s42
        s_add_u32 s41, s41, %d
        v_lshl_add_u32 %s, v0, 4, s41
        """ % (vr(SA), H3S, vr(GA), H3G, H3B, vr(BA)))
        self.read_mode(VZ, T)
        if self.sinit:
            for i in range(4):
                a("v_mov_b32 %s, 0" % vr(56 + i))
            for i in range(4):
                a("global_store_dwordx4 %s, v[56:59], %s offset:%d" % (vr(SA), sp(S_WS), 1024 * i))
            a("s_waitcnt vmcnt(0)")
            self.flag_add(F_INIT, VZ, V1)
        GS = 40
        GG, GAD, GW = 24, 44, 48
        a("v_mov_b32 %s, 0" % vr(GS))
        a("v_mov_b32 %s, 0" % vr(GS + 1))
        Lng = a.newlabel("NG")
        a("s_cmp_eq_u32 s49, 0")
        a("s_cbranch_scc1 %s" % Lng)
        a("""
        s_lshl_b32 s41, s26, 14
        s_lshl_b32 s42, s27, 9
        s_add_u32 s41, s41, s42
        s_add_u32 s41, s41, %d
        s_lshr_b32 s42, s49, 3
        v_bfe_u32 v52, v0, 3, 2
        v_cmp_gt_u32 vcc, s42, v52
        v_and_b32 v53, 31, v0
        v_and_b32 v54, 7, v0
        v_cndmask_b32 v53, v54, v53, vcc
        v_lshl_add_u32 %s, v53, 4, s41
        v_mov_b32 v54, 1.0
        v_cndmask_b32 %s, v1, v54, vcc
        """ % (H3G, vr(GAD), vr(GW)))
        def fill_s():
            for i in range(4):
                a("global_load_dwordx4 %s, %s, %s offset:%d sc1" % (vr(60 + 4 * i, 4), vr(SA), sp(S_MB), 1024 * i))
        if self.odelay:
            self.flag_wait(F_O, 1, VZ, T, sleep=1)
        elif self.spf == 1 or not self.ggate:
            self.flag_wait(F_OPUB, 4, VZ, T, sleep=1)
        if self.spf == 1:
            fill_s()
        if self.ggate == 1:
            self.flag_wait(F_WO, 1, VZ, T, sleep=1)
        if self.spf == 4:
            fill_s()
        self.poll([(GG, GAD, 0)], S_MB, cnt=15, plain_first=bool(self.plain0 & 4))
        if self.spf == 3:
            for i in range(4):
                a("global_load_dwordx4 %s, %s, %s offset:%d sc1" % (vr(60 + 4 * i, 4), vr(SA), sp(S_MB), 1024 * i))
        for e in range(2):
            a("v_mul_f32 %s, %s, %s" % (vr(GS + e), vr(GW), vr(GG + e)))
        self.xor_reduce("v_add_f32", [GS, GS + 1], [8, 16], T)
        a(Lng + ":")
        self.stamp(5)
        if self.sgate:
            self.flag_wait(F_SPUB, 4, VZ, T)
        else:
            L = a.newlabel("O")
            a("s_mov_b32 s%d, 0" % S_CNT)
            a(L + ":")
            a("ds_read_b32 %s, %s offset:%d" % (vr(T), vr(VZ), L_O + 4))
            a("s_add_u32 s%d, s%d, 1" % (S_CNT, S_CNT))
            a("s_cmp_gt_u32 s%d, %d" % (S_CNT, SPIN_MAX))
            a("s_cbranch_scc1 L_end")
            a("s_waitcnt lgkmcnt(0)")
            a("v_readfirstlane_b32 s%d, %s" % (S_TMP, vr(T)))
            a("s_cmp_lg_u32 s%d, 1" % S_TMP)
            a("s_cbranch_scc1 %s" % L)
        if self.sdelay:
            a("s_sleep %d" % self.sdelay)
        self.stamp(6)
        if self.trace:
            for k in range(11, 16):
                a("s_mov_b32 s%d, 0" % (S_STAMP + 2 * k))
            self.poll_traced([(G + 4 * i, SA, 1024 * i) for i in range(4)], S_MB, 11, 5)
        else:
            self.poll([(G + 4 * i, SA, 1024 * i) for i in range(4)], S_MB, cnt=13, plain_first=bool(self.plain0 & 8))
        self.stamp(7)
        for e in range(2):
            a("v_add_f32 %s, %s, %s" % (vr(G + e), vr(G + e), vr(G + 4 + e)))
            a("v_add_f32 %s, %s, %s" % (vr(G + 8 + e), vr(G + 8 + e), vr(G + 12 + e)))
        for e in range(2):
            a("v_add_f32 %s, %s, %s" % (vr(G + e), vr(G + e), vr(G + 8 + e)))
        self.xor_reduce("v_add_f32", [G, G + 1], [8, 16, 32], T)
        a("""
        v_bfe_u32 v3, v0, 3, 1
        v_cmp_eq_u32 vcc, 1, v3
        v_mov_b32 %s, s%d
        v_mov_b32 %s, s%d
        v_cndmask_b32 %s, %s, %s, vcc
        v_cndmask_b32 %s, %s, %s, vcc
        s_mov_b64 exec, 0xffff
        global_store_dwordx4 %s, %s, %s sc1
        s_mov_b64 exec, -1
        """ % (vr(G + 2), S_T, vr(G + 3), S_T + 1, vr(G), vr(G), vr(GS), vr(G + 1), vr(G + 1), vr(GS + 1), vr(BA), vr(G, 4), sp(S_WS)))
        self.stamp(8)
        Lf = a.newlabel("F")
        a("s_cmp_ge_u32 s27, 28")
        a("s_cbranch_scc1 %s" % Lf)
        self.end(T)
        a(Lf + ":")
        self.role = "C2F"
        G = 12
        if self.fstag:
            self.poll_staggered([(G, FA, 0), (G + 4, FA, 128)], [24, 28], [32, 36], S_WS, self.fstag)
            G = 32
        else:
            self.poll([(G, FA, 0), (G + 4, FA, 128)], S_WS, cnt=14)
        self.stamp(9)
        self.xor_reduce("v_add_f32", [G, G + 1, G + 4, G + 5], [8, 16, 32], T)
        a("v_cvt_pk_bf16_f32 %s, %s, %s" % (vr(G), vr(G), vr(G + 1)))
        a("v_cvt_pk_bf16_f32 %s, %s, %s" % (vr(G + 4), vr(G + 4), vr(G + 5)))
        a("v_and_b32 %s, 0xffff0000, %s" % (vr(G + 1), vr(G)))
        a("v_lshlrev_b32 %s, 16, %s" % (vr(G), vr(G)))
        a("v_and_b32 %s, 0xffff0000, %s" % (vr(G + 5), vr(G + 4)))
        a("v_lshlrev_b32 %s, 16, %s" % (vr(G + 4), vr(G + 4)))
        for e in range(2):
            a("v_mul_f32 %s, 0x%x, %s" % (vr(G + 8 + e), LOG2E ^ 0x80000000, vr(G + 4 + e)))
        for e in range(2):
            a("v_exp_f32 %s, %s" % (vr(G + 8 + e), vr(G + 8 + e)))
        a("s_nop 0")
        for e in range(2):
            a("v_add_f32 %s, 1.0, %s" % (vr(G + 8 + e), vr(G + 8 + e)))
        for e in range(2):
            a("v_rcp_f32 %s, %s" % (vr(G + 8 + e), vr(G + 8 + e)))
        a("s_nop 0")
        for e in range(2):
            a("v_mul_f32 %s, %s, %s" % (vr(G + 4 + e), vr(G + 4 + e), vr(G + 8 + e)))
        a("v_cvt_pk_bf16_f32 %s, %s, %s" % (vr(G + 4), vr(G + 4), vr(G + 5)))
        a("v_and_b32 %s, 0xffff0000, %s" % (vr(G + 5), vr(G + 4)))
        a("v_lshlrev_b32 %s, 16, %s" % (vr(G + 4), vr(G + 4)))
        for e in range(2):
            a("v_mul_f32 %s, %s, %s" % (vr(G + e), vr(G + e), vr(G + 4 + e)))
        a("v_cvt_pk_bf16_f32 %s, %s, %s" % (vr(G), vr(G), vr(G + 1)))
        a("v_and_b32 %s, 0xffff0000, %s" % (vr(G + 1), vr(G)))
        a("v_lshlrev_b32 %s, 16, %s" % (vr(G), vr(G)))
        a("v_and_b32 %s, 0xffff0000, %s" % (vr(G + 5), vr(XF)))
        a("v_lshlrev_b32 %s, 16, %s" % (vr(G + 4), vr(XF)))
        for e in range(2):
            a("v_add_f32 %s, %s, %s" % (vr(G + e), vr(G + e), vr(G + 4 + e)))
        a("v_cvt_pk_bf16_f32 %s, %s, %s" % (vr(G), vr(G), vr(G + 1)))
        a("s_mov_b64 exec, 0xff")
        a("global_store_dword %s, %s, %s" % (vr(OUTA), vr(G), sp(S_OUT)))
        Le = a.newlabel("E")
        a("s_cmp_lg_u32 s45, 0")
        a("s_cbranch_scc1 %s" % Le)
        a("s_mov_b64 exec, 1")
        a("v_mov_b32 %s, s%d" % (vr(G + 2), S_T))
        a("v_mov_b32 %s, s%d" % (vr(G + 3), S_T + 1))
        a("global_store_dwordx2 v1, %s, %s offset:%d sc1" % (vr(G + 2, 2), sp(S_WS), EPOCH))
        a(Le + ":")
        a("s_mov_b64 exec, -1")
        self.stamp(10)
        self.end(T)

    def build(self):
        self.prologue()
        self.role_c0()
        self.role_c1()
        self.role_c2()
        self.role_a()
        self.role_l()
        self.a("L_end:\ns_endpgm\nL_code_end:")
        return wrap(self.a.text(), 256, 512, LDS_BYTES, 192, sgpr=96)


def generate(**kw):
    return Gen(**kw).build()


if __name__ == "__main__":
    out = sys.argv[1] if len(sys.argv) > 1 else "cdna_kernels/%s.s" % NAME
    kw = {}
    for arg in sys.argv[2:]:
        k, v = arg.split("=")
        kw[k] = {"True": True, "False": False}.get(v, v)
    open(out, "w").write(generate(**kw))
    print("wrote", out)
```

```python
import sys
from asmgen import Asm, wrap, NAME

REGB = 0x400000
EPOCH = 0x0
H1 = 0x10000
ST = 0x50000
H3B = 0x70000
HB = 0x80000
H2 = 0x100000
H3S = 0x200000
H3G = 0x300000
STAMP_OFF = 256 << 20

L_Q = 0x0000
L_P = 0x0800
L_MX = 0x1800
L_O = 0x1AC0
L_XQ = 0x1880
L_XH = 0x1980
L_F = 0x1A80
L_K = 0x2000
L_V = 0xA000
L_WO = 0x12000
L_W2 = 0x16000
L_W1 = 0x1A000
F_V, F_INIT, F_Q, F_REM, F_K, F_MAX, F_P, F_ST, F_QPUB, F_OPUB, F_O, F_W1, F_SPUB, F_WO, F_W2, F_HPUB = [L_F + 4 * i for i in range(16)]
LDS_BYTES = 0x1E000

S_X, S_K, S_V, S_WQ, S_WO, S_W1, S_W2, S_OUT, S_WS = 4, 6, 8, 10, 12, 16, 18, 20, 24
S_G, S_C, S_W = 26, 27, 28
S_T = 30
S_XCC = 32
S_MODE = 33
S_MB = 34
S_T1X = 36
S_ISB = 38
S_CNT = 39
S_TMP = 40
S_E = 52
S_EM, S_EN = 56, 57
S_STAMP = 60

LOG2E = 0x3fb8aa3b
SCALE = 0x3db504f3
A_TIMEOUT = 8
SPIN_MAX = 1 << 20
POLL_MAX = 1 << 16


def sp(n):
    return "s[%d:%d]" % (n, n + 1)


def vr(n, k=1):
    return "v%d" % n if k == 1 else "v[%d:%d]" % (n, n + k - 1)


class Gen:
    def __init__(self, stamps=False, nt_kv="nt", nt_w="nt", force_global=False, mimic=True, window=16, nb_lo=32, nb_hi=24, order="k2v|o", code_pf=1, dbg=0, ileave=1, hold=0, init=2, w2=40, chk=4, init_late=0, ogate=4, sdelay=0, trace=0, sinit=0, sgate=1, spf=0, ofill=0, scramble=0, qack=1, qsleep=0, ggate=0, fstag=5, kgate=1, w1gate=0, odelay=0, prefill=0, plain0=0, atimeout=A_TIMEOUT, lprio=2, aprio=1):
        self.a = Asm()
        self.window = int(window)
        self.nb_lo = int(nb_lo)
        self.nb_hi = int(nb_hi)
        self.order = order
        self.code_pf = int(code_pf)
        self.dbg = int(dbg)
        self.role = None
        if self.dbg:
            self.stamps = stamps = True
        self.ileave = int(ileave)
        self.hold = int(hold)
        self.init = int(init)
        self.w2 = int(w2)
        self.chk = int(chk)
        self.init_late = int(init_late)
        self.ogate = int(ogate)
        self.sdelay = int(sdelay)
        self.trace = int(trace)
        self.sinit = int(sinit)
        self.sgate = int(sgate)
        self.spf = int(spf)
        self.ofill = int(ofill)
        self.scramble = int(scramble)
        self.qack = int(qack)
        self.qsleep = int(qsleep)
        self.ggate = int(ggate)
        self.fstag = int(fstag)
        self.kgate = int(kgate)
        self.w1gate = int(w1gate)
        self.odelay = int(odelay)
        self.prefill = int(prefill)
        self.plain0 = int(plain0)
        self.atimeout = int(atimeout)
        self.lprio = int(lprio)
        self.aprio = int(aprio)
        assert 4 * self.nb_lo + 4 * self.nb_hi == 224 and self.nb_lo % 8 == 0 and self.nb_hi % 8 == 0
        self.stamps = stamps
        self.nt_kv = nt_kv
        self.nt_w = nt_w
        self.force_global = force_global
        self.mimic = mimic
        self.nstamp = 0

    def stamp(self, idx):
        if self.stamps:
            self.a("s_memrealtime %s" % sp(S_STAMP + 2 * idx))

    def flag_add(self, flag, vz, vone):
        a = self.a
        a("s_mov_b64 exec, 1")
        a("ds_add_u32 %s, %s offset:%d" % (vr(vz), vr(vone), flag))
        a("s_mov_b64 exec, -1")

    def flag_set(self, flag, val, vz, vt):
        a = self.a
        a("v_mov_b32 %s, %d" % (vr(vt), val))
        a("s_mov_b64 exec, 1")
        a("ds_write_b32 %s, %s offset:%d" % (vr(vz), vr(vt), flag))
        a("s_mov_b64 exec, -1")

    def flag_wait(self, flag, n, vz, vt, sleep=0):
        a = self.a
        L, Lgo = a.newlabel("W"), a.newlabel("W")
        a("s_mov_b32 s%d, 0" % S_CNT)
        a(L + ":")
        a("ds_read_b32 %s, %s offset:%d" % (vr(vt), vr(vz), flag))
        a("s_waitcnt lgkmcnt(0)")
        a("v_readfirstlane_b32 s%d, %s" % (S_TMP, vr(vt)))
        a("s_cmp_ge_u32 s%d, %d" % (S_TMP, n))
        a("s_cbranch_scc1 %s" % Lgo)
        if sleep:
            a("s_sleep %d" % sleep)
        a("s_add_u32 s%d, s%d, 1" % (S_CNT, S_CNT))
        a("s_cmp_lt_u32 s%d, %d" % (S_CNT, SPIN_MAX))
        a("s_cbranch_scc1 %s" % L)
        a("s_branch L_end")
        a(Lgo + ":")

    def store_mode(self, vaddr, vdata, n=4):
        a = self.a
        L1, L2 = a.newlabel("S"), a.newlabel("S")
        op = "global_store_dwordx%d" % n
        a("s_cmp_lg_u32 s%d, 0" % S_MODE)
        a("s_cbranch_scc1 %s" % L1)
        a("%s %s, %s, %s" % (op, vr(vaddr), vr(vdata, n), sp(S_MB)))
        a("s_branch %s" % L2)
        a(L1 + ":")
        a("%s %s, %s, %s sc1" % (op, vr(vaddr), vr(vdata, n), sp(S_MB)))
        a(L2 + ":")

    def poll_traced(self, loads, base, first_stamp, npass=4):
        a = self.a
        Lok = a.newlabel("PT")
        n = len(loads)
        for k in range(npass):
            a("s_memrealtime %s" % sp(S_STAMP + 2 * (first_stamp + k)))
            for (vd, va, off) in loads:
                a("global_load_dwordx4 %s, %s, %s offset:%d sc1" % (vr(vd, 4), vr(va), sp(base), off))
            for i, (vd, va, off) in enumerate(loads):
                a("s_waitcnt vmcnt(%d)" % (n - 1 - i))
                dst = "vcc" if i == 0 else sp(S_TMP)
                a("v_cmp_ne_u64 %s, %s, %s" % (dst, vr(vd + 2, 2), sp(S_T)))
                if i:
                    a("s_or_b64 vcc, vcc, %s" % sp(S_TMP))
            a("s_cbranch_vccz %s" % Lok)
        self.poll(loads, base)
        a(Lok + ":")

    def poll(self, loads, base, tag=S_T, limit=POLL_MAX, on_timeout="L_end", cnt=None, plain_first=False):
        a = self.a
        L, Lok = a.newlabel("P"), a.newlabel("P")
        n = len(loads)

        def one_pass(flag):
            for (vd, va, off) in loads:
                a("global_load_dwordx4 %s, %s, %s offset:%d %s" % (vr(vd, 4), vr(va), sp(base), off, flag))
            for i, (vd, va, off) in enumerate(loads):
                a("s_waitcnt vmcnt(%d)" % (n - 1 - i))
                dst = "vcc" if i == 0 else sp(S_TMP)
                a("v_cmp_ne_u64 %s, %s, %s" % (dst, vr(vd + 2, 2), sp(tag)))
                if i:
                    a("s_or_b64 vcc, vcc, %s" % sp(S_TMP))
            a("s_cbranch_vccz %s" % Lok)
        a("s_mov_b32 s%d, 0" % S_CNT)
        if plain_first:
            one_pass("")
        a(L + ":")
        one_pass("sc1")
        a("s_add_u32 s%d, s%d, 1" % (S_CNT, S_CNT))
        a("s_cmp_le_u32 s%d, %d" % (S_CNT, limit))
        a("s_cbranch_scc1 %s" % L)
        a("s_branch %s" % on_timeout)
        a(Lok + ":")
        if cnt is not None and self.stamps:
            a("s_mov_b32 s%d, s%d" % (S_STAMP + 2 * cnt, S_CNT))

    def poll_mixed(self, loads, base, tmp, cnt=None):
        a = self.a
        L, Lok = a.newlabel("P"), a.newlabel("P")
        n = len(loads)
        a("s_mov_b32 s%d, 0" % S_CNT)
        a(L + ":")
        for (vd, va, off, kind) in loads:
            a("global_load_dwordx4 %s, %s, %s offset:%d sc1" % (vr(vd, 4), vr(va), sp(base), off))
        first_t, first_e = True, True
        for i, (vd, va, off, kind) in enumerate(loads):
            a("s_waitcnt vmcnt(%d)" % (n - 1 - i))
            if kind == "t":
                a("v_cmp_ne_u64 %s, %s, %s" % (sp(46) if first_t else sp(S_TMP), vr(vd + 2, 2), sp(S_T)))
                if not first_t:
                    a("s_or_b64 s[46:47], s[46:47], %s" % sp(S_TMP))
                first_t = False
            else:
                for k in range(4):
                    a("v_xor_b32 %s, s%d, %s" % (vr(tmp + 1 + k), S_E + k, vr(vd + k)))
                if first_e:
                    a("v_or3_b32 %s, %s, %s, %s" % (vr(tmp), vr(tmp + 1), vr(tmp + 2), vr(tmp + 3)))
                    a("v_or_b32 %s, %s, %s" % (vr(tmp), vr(tmp), vr(tmp + 4)))
                else:
                    a("v_or3_b32 %s, %s, %s, %s" % (vr(tmp), vr(tmp), vr(tmp + 1), vr(tmp + 2)))
                    a("v_or3_b32 %s, %s, %s, %s" % (vr(tmp), vr(tmp), vr(tmp + 3), vr(tmp + 4)))
                first_e = False
        a("v_and_b32 %s, s%d, %s" % (vr(tmp), S_EM, vr(tmp)))
        a("v_cmp_ne_u32 vcc, 0, %s" % vr(tmp))
        if not first_t:
            a("s_or_b64 vcc, vcc, s[46:47]")
        a("s_cbranch_vccz %s" % Lok)
        a("s_add_u32 s%d, s%d, 1" % (S_CNT, S_CNT))
        a("s_cmp_le_u32 s%d, %d" % (S_CNT, POLL_MAX))
        a("s_cbranch_scc1 %s" % L)
        a("s_branch L_end")
        a(Lok + ":")
        if cnt is not None and self.stamps:
            a("s_mov_b32 s%d, s%d" % (S_STAMP + 2 * cnt, S_CNT))

    def poll_staggered(self, loads, alt, dst, base, sleep):
        a = self.a
        n = len(loads)
        L, LA, LB = a.newlabel("PS"), a.newlabel("PS"), a.newlabel("PS")

        def issue(regs):
            for (vd, (_, va, off)) in zip(regs, loads):
                a("global_load_dwordx4 %s, %s, %s offset:%d sc1" % (vr(vd, 4), vr(va), sp(base), off))

        def check(regs, ok):
            for i, vd in enumerate(regs):
                a("s_waitcnt vmcnt(%d)" % (2 * n - 1 - i))
                dst = "vcc" if i == 0 else sp(S_TMP)
                a("v_cmp_ne_u64 %s, %s, %s" % (dst, vr(vd + 2, 2), sp(S_T)))
                if i:
                    a("s_or_b64 vcc, vcc, %s" % sp(S_TMP))
            a("s_cbranch_vccz %s" % ok)
        ra = [vd for (vd, _, _) in loads]
        a("s_mov_b32 s%d, 0" % S_CNT)
        issue(ra)
        a("s_sleep %d" % sleep)
        a(L + ":")
        issue(alt)
        check(ra, LA)
        issue(ra)
        check(alt, LB)
        a("s_add_u32 s%d, s%d, 1" % (S_CNT, S_CNT))
        a("s_cmp_le_u32 s%d, %d" % (S_CNT, POLL_MAX))
        a("s_cbranch_scc1 %s" % L)
        a("s_branch L_end")
        Ld = a.newlabel("PS")
        a(LB + ":")
        for (x, y) in zip(dst, alt):
            for k in range(2):
                a("v_mov_b32 %s, %s" % (vr(x + k), vr(y + k)))
        a("s_branch %s" % Ld)
        a(LA + ":")
        for (x, y) in zip(dst, ra):
            for k in range(2):
                a("v_mov_b32 %s, %s" % (vr(x + k), vr(y + k)))
        a(Ld + ":")

    def xor_reduce(self, op, regs, steps, tmp):
        a = self.a
        first_dpp = True
        for st in steps:
            if st in (16, 32):
                ins = "v_permlane16_swap_b32" if st == 16 else "v_permlane32_swap_b32"
                for i, r in enumerate(regs):
                    a("v_mov_b32 %s, %s" % (vr(tmp + i), vr(r)))
                if len(regs) < 3:
                    a("s_nop %d" % (2 - len(regs)))
                for i, r in enumerate(regs):
                    a("%s %s, %s" % (ins, vr(r), vr(tmp + i)))
                for i, r in enumerate(regs):
                    a("%s %s, %s, %s" % (op, vr(r), vr(r), vr(tmp + i)))
            else:
                ctl = {1: "quad_perm:[1,0,3,2]", 2: "quad_perm:[2,3,0,1]", "hm": "row_half_mirror", "m": "row_mirror", 8: "row_ror:8", "r4": "row_ror:4"}[st]
                a("s_nop 1" if first_dpp or len(regs) < 3 else "s_nop 0")
                first_dpp = False
                for r in regs:
                    a("%s_dpp %s, %s, %s %s row_mask:0xf bank_mask:0xf" % (op, vr(r), vr(r), vr(r), ctl))

    def read_mode(self, vz, vt):
        a = self.a
        a("ds_read_b32 %s, %s offset:%d" % (vr(vt), vr(vz), F_REM))
        a("s_waitcnt lgkmcnt(0)")
        a("v_readfirstlane_b32 s%d, %s" % (S_MODE, vr(vt)))
        if self.force_global:
            a("s_mov_b32 s%d, 1" % S_MODE)
        a("s_min_u32 s%d, s%d, 1" % (S_MODE, S_MODE))
        a("s_mul_i32 s%d, s%d, %d" % (S_TMP, S_MODE, REGB))
        a("s_add_u32 s%d, s%d, s%d" % (S_MB, S_WS, S_TMP))
        a("s_addc_u32 s%d, s%d, 0" % (S_MB + 1, S_WS + 1))

    def tags(self):
        a = self.a
        a("s_getreg_b32 s32, hwreg(HW_REG_XCC_ID, 0, 4)")
        a("s_waitcnt lgkmcnt(0)")
        a("s_add_u32 s%d, s%d, 0x9E3779B9" % (S_T, S_T))
        a("s_add_u32 s%d, s%d, 0x7F4A7C00" % (S_T + 1, S_T + 1))
        a("s_and_b32 s%d, s%d, 0xFFFFFFE0" % (S_T + 1, S_T + 1))
        a("s_or_b32 s%d, s%d, 0x10" % (S_T + 1, S_T + 1))
        a("s_mov_b32 s%d, s%d" % (S_T1X, S_T))
        a("s_or_b32 s%d, s%d, s%d" % (S_T1X + 1, S_T + 1, S_XCC))
        a("s_and_b32 s%d, s%d, 0x3ff" % (S_E, S_T))
        a("s_bfe_u32 s%d, s%d, 0xA000A" % (S_E + 1, S_T))
        a("s_bfe_u32 s%d, s%d, 0xA0014" % (S_E + 2, S_T))
        a("s_bfe_u32 s%d, s%d, 0xA0008" % (S_E + 3, S_T + 1))
        a("s_movk_i32 s%d, 0x3ff" % S_EM)
        a("s_mov_b32 s%d, 0xfffffc00" % S_EN)

    DBG_MAP = {"A": {0: [(0, True), (1, False)], 1: [(12, False)], 3: [(5, False)], 6: [(7, False)], 7: [(9, False)]},
               "C0": {2: [(14, False)], 4: [(15, False)], 5: [(3, False)], 9: [(8, False)]},
               "C1B": {5: [(13, False)]},
               "C2": {4: [(4, False)], 8: [(10, False)]},
               "C2F": {4: [(4, False)], 8: [(10, False)], 10: [(11, False)]},
               "L": {1: [(2, False)], 3: [(6, False)]}}

    def dump_stamps(self, vt):
        if not self.stamps:
            return
        a = self.a
        if self.dbg:
            a("s_waitcnt lgkmcnt(0)")
            a("s_mov_b64 exec, 1")
            a("v_mov_b32 %s, 0" % vr(vt))
            for st, outs in self.DBG_MAP.get(self.role, {}).items():
                for slot, inv in outs:
                    a("v_mov_b32 %s, s%d" % (vr(vt + 1), S_STAMP + 2 * st))
                    if inv:
                        a("v_not_b32 %s, %s" % (vr(vt + 1), vr(vt + 1)))
                    a("global_atomic_umax %s, %s, s[22:23] offset:%d" % (vr(vt), vr(vt + 1), 4 * slot))
            return
        a("s_waitcnt lgkmcnt(0)")
        a("s_lshl_b32 s%d, s2, 3" % S_TMP)
        a("s_add_u32 s%d, s%d, s%d" % (S_TMP, S_TMP, S_W))
        a("s_lshl_b32 s%d, s%d, 6" % (S_TMP, S_TMP))
        a("s_add_u32 s%d, s%d, %d" % (S_TMP, S_TMP, STAMP_OFF))
        a("s_mov_b64 exec, 1")
        a("v_mov_b32 %s, s%d" % (vr(vt), S_TMP))
        for i in range(16):
            a("v_mov_b32 %s, s%d" % (vr(vt + 1), S_STAMP + 2 * i))
            a("global_store_dword %s, %s, %s offset:%d" % (vr(vt), vr(vt + 1), sp(S_WS), 4 * i))

    def end(self, vt):
        self.dump_stamps(vt)
        self.a("s_endpgm")

    def layernorm_rows(self, base, lds_x, VZ, rows=128):
        a = self.a
        xs, xp = base, base + 4
        f = base + 16
        t = base + 24
        for i in range(4):
            a("v_lshlrev_b32 %s, 16, %s" % (vr(f + 2 * i), vr(xs + i)))
            a("v_and_b32 %s, 0xffff0000, %s" % (vr(f + 2 * i + 1), vr(xs + i)))
        a("v_add_f32 %s, %s, %s" % (vr(t), vr(f), vr(f + 1)))
        a("v_add_f32 %s, %s, %s" % (vr(t + 1), vr(f + 2), vr(f + 3)))
        a("v_add_f32 %s, %s, %s" % (vr(t + 2), vr(f + 4), vr(f + 5)))
        a("v_add_f32 %s, %s, %s" % (vr(t + 3), vr(f + 6), vr(f + 7)))
        a("v_add_f32 %s, %s, %s" % (vr(t), vr(t), vr(t + 1)))
        a("v_add_f32 %s, %s, %s" % (vr(t + 2), vr(t + 2), vr(t + 3)))
        a("v_add_f32 %s, %s, %s" % (vr(t), vr(t), vr(t + 2)))
        self.xor_reduce("v_add_f32", [t], [1, 2, "hm", "m", 16, 32], t + 4)
        a("v_mul_f32 %s, 0x3b000000, %s" % (vr(t), vr(t)))
        for i in range(8):
            a("v_sub_f32 %s, %s, %s" % (vr(f + i), vr(f + i), vr(t)))
        a("v_mul_f32 %s, %s, %s" % (vr(t + 1), vr(f), vr(f)))
        a("v_mul_f32 %s, %s, %s" % (vr(t + 2), vr(f + 1), vr(f + 1)))
        for i in range(2, 8, 2):
            a("v_fmac_f32 %s, %s, %s" % (vr(t + 1), vr(f + i), vr(f + i)))
            a("v_fmac_f32 %s, %s, %s" % (vr(t + 2), vr(f + i + 1), vr(f + i + 1)))
        a("v_add_f32 %s, %s, %s" % (vr(t + 1), vr(t + 1), vr(t + 2)))
        self.xor_reduce("v_add_f32", [t + 1], [1, 2, "hm", "m", 16, 32], t + 4)
        a("v_mul_f32 %s, 0x3b000000, %s" % (vr(t + 1), vr(t + 1)))
        a("v_cvt_pk_bf16_f32 %s, %s, %s" % (vr(t + 2), vr(t), vr(t + 1)))
        a("v_lshlrev_b32 %s, 16, %s" % (vr(t), vr(t + 2)))
        a("v_and_b32 %s, 0xffff0000, %s" % (vr(t + 1), vr(t + 2)))
        a("v_add_f32 %s, 0x3727c5ac, %s" % (vr(t + 1), vr(t + 1)))
        a("v_cvt_pk_bf16_f32 %s, %s, %s" % (vr(t + 1), vr(t + 1), vr(t + 1)))
        a("v_and_b32 %s, 0xffff0000, %s" % (vr(t + 1), vr(t + 1)))
        a("v_sqrt_f32 %s, %s" % (vr(t + 1), vr(t + 1)))
        a("s_nop 0")
        a("v_cvt_pk_bf16_f32 %s, %s, %s" % (vr(t + 1), vr(t + 1), vr(t + 1)))
        a("v_and_b32 %s, 0xffff0000, %s" % (vr(t + 1), vr(t + 1)))
        a("v_rcp_f32 %s, %s" % (vr(t + 2), vr(t + 1)))
        a("v_lshlrev_b32 %s, 16, %s" % (vr(f), vr(xp)))
        a("v_and_b32 %s, 0xffff0000, %s" % (vr(f + 1), vr(xp)))
        a("v_sub_f32 %s, %s, %s" % (vr(f), vr(f), vr(t)))
        a("v_sub_f32 %s, %s, %s" % (vr(f + 1), vr(f + 1), vr(t)))
        a("v_cvt_pk_bf16_f32 %s, %s, %s" % (vr(f), vr(f), vr(f + 1)))
        a("v_and_b32 %s, 0xffff0000, %s" % (vr(f + 1), vr(f)))
        a("v_lshlrev_b32 %s, 16, %s" % (vr(f), vr(f)))
        for i in range(2):
            a("v_mul_f32 %s, %s, %s" % (vr(f + 2 + i), vr(f + i), vr(t + 2)))
        for i in range(2):
            a("v_fma_f32 %s, -%s, %s, %s" % (vr(f + 4 + i), vr(f + 2 + i), vr(t + 1), vr(f + i)))
        for i in range(2):
            a("v_fmac_f32 %s, %s, %s" % (vr(f + 2 + i), vr(f + 4 + i), vr(t + 2)))
        a("v_cvt_pk_bf16_f32 %s, %s, %s" % (vr(f), vr(f + 2), vr(f + 3)))
        if rows == 128:
            a("v_lshlrev_b32 %s, 2, v0" % vr(t))
        else:
            a("v_and_b32 %s, 31, v0" % vr(t))
            a("v_lshlrev_b32 %s, 2, %s" % (vr(t), vr(t)))
        a("ds_write_b32 %s, %s offset:%d" % (vr(t), vr(f), lds_x))
        a("v_lshrrev_b32 %s, 3, v0" % vr(t))
        a("v_lshlrev_b32 %s, %d, %s" % (vr(t), 5 if rows == 128 else 4, vr(t)))
        a("ds_read_b128 %s, %s offset:%d" % (vr(base + 8, 4), vr(t), lds_x))
        if rows == 128:
            a("ds_read_b128 %s, %s offset:%d" % (vr(base + 12, 4), vr(t), lds_x + 16))

    def selectors(self, sel, tmp, both_parities):
        a = self.a
        a("v_and_b32 %s, 15, v0" % vr(tmp))
        a("v_and_b32 %s, 1, %s" % (vr(tmp + 1), vr(tmp)))
        a("v_bfe_u32 %s, %s, 1, 2" % (vr(tmp + 2), vr(tmp)))
        if not both_parities:
            a("v_lshrrev_b32 %s, 3, %s" % (vr(tmp + 3), vr(tmp)))
            a("v_lshl_add_u32 %s, %s, 2, %s" % (vr(tmp + 2), vr(tmp + 3), vr(tmp + 2)))
        a("v_cmp_eq_u32 vcc, 1, %s" % vr(tmp + 1))
        a("v_mov_b32 %s, 0x0c0c0100" % vr(tmp + 3))
        a("v_mov_b32 %s, 0x01000c0c" % vr(tmp + 4))
        a("v_cndmask_b32 %s, %s, %s, vcc" % (vr(tmp + 5), vr(tmp + 3), vr(tmp + 4)))
        a("v_mov_b32 %s, 0x0c0c0302" % vr(tmp + 3))
        a("v_mov_b32 %s, 0x03020c0c" % vr(tmp + 4))
        a("v_cndmask_b32 %s, %s, %s, vcc" % (vr(tmp + 6), vr(tmp + 3), vr(tmp + 4)))
        a("v_mov_b32 %s, 0x0c0c0c0c" % vr(tmp + 3))
        for t in range(4):
            a("v_cmp_eq_u32 vcc, %d, %s" % (t, vr(tmp + 2)))
            a("s_nop 1")
            a("v_cndmask_b32 %s, %s, %s, vcc" % (vr(sel + t), vr(tmp + 3), vr(tmp + 5)))
            a("v_cndmask_b32 %s, %s, %s, vcc" % (vr(sel + 4 + t), vr(tmp + 3), vr(tmp + 6)))

    def tile_gemv(self, W, XN, SEL, AF, ACC, nafter):
        a = self.a
        for i in range(16):
            for t in range(4):
                a("v_perm_b32 %s, %s, %s, %s" % (vr(AF + 4 * i + t), vr(XN + (i >> 1)), vr(XN + (i >> 1)), vr(SEL + 4 * (i & 1) + t)))
        for i in range(16):
            a("s_waitcnt vmcnt(%d)" % (15 - i + nafter))
            a("v_mfma_f32_16x16x32_bf16 %s, %s, %s, %s" % (vr(ACC, 4), vr(AF + 4 * i, 4), vr(W + 4 * i, 4), "0" if i == 0 else vr(ACC, 4)))
        a("s_nop 7")
        a("v_permlane32_swap_b32 %s, %s" % (vr(ACC), vr(ACC + 2)))
        a("v_permlane32_swap_b32 %s, %s" % (vr(ACC + 1), vr(ACC + 3)))
        a("s_nop 1")
        a("v_add_f32_dpp %s, %s, %s row_ror:8 row_mask:0xf bank_mask:0xf" % (vr(ACC), vr(ACC + 2), vr(ACC)))
        a("v_add_f32_dpp %s, %s, %s row_ror:8 row_mask:0xf bank_mask:0xf" % (vr(ACC + 1), vr(ACC + 3), vr(ACC + 1)))


    def prologue(self):
        a = self.a
        a("""
        s_cmp_ge_u32 s2, 256
        s_cbranch_scc1 L_end
        """)
        self.stamp(0)
        a("""
        s_load_dwordx16 s[4:19], s[0:1], 0
        s_load_dwordx4 s[20:23], s[0:1], 64
        s_load_dwordx2 s[24:25], s[0:1], 80
        v_lshrrev_b32 v1, 6, v0
        v_and_b32 v0, 63, v0
        %s
        v_readfirstlane_b32 s28, v1
        v_lshlrev_b32 v37, 4, v0
        s_lshr_b32 s40, s27, 3                ; row block of the Wq tile
        s_cmp_eq_u32 s28, 7
        s_cbranch_scc1 L_L
        s_cmp_eq_u32 s28, 5
        s_cbranch_scc1 L_C1
        s_cmp_eq_u32 s28, 6
        s_cbranch_scc1 L_C2
        s_cmp_lt_u32 s28, 4
        s_cbranch_scc1 L_A
        """ % ("s_lshr_b32 s26, s2, 5\ns_and_b32 s27, s2, 31" if self.scramble else "s_and_b32 s26, s2, 7\ns_lshr_b32 s27, s2, 3"))

    def dispatch_others(self):
        self.a("""
        L_other:
        v_mov_b32 v1, 0
        v_mov_b32 v2, 1
        s_cmp_eq_u32 s28, 7
        s_cbranch_scc1 L_L
        s_cmp_eq_u32 s28, 5
        s_cbranch_scc1 L_C1
        s_cmp_eq_u32 s28, 6
        s_cbranch_scc1 L_C2
        s_branch L_A
        """)

    def mlp_scalars(self):
        self.a("""
        s_cmp_lt_u32 s26, 4
        s_cselect_b32 s49, %d, %d
        s_cmp_lt_u32 s27, s49
        s_cselect_b32 s38, 1, 0
        s_mul_i32 s50, s26, %d
        s_sub_u32 s51, s26, 4
        s_mul_i32 s51, s51, %d
        s_add_u32 s51, s51, %d
        s_cmp_lt_u32 s26, 4
        s_cselect_b32 s50, s50, s51
        s_lshr_b32 s51, s27, 3
        s_add_u32 s50, s50, s51
        """ % (self.nb_lo, self.nb_hi, self.nb_lo // 8, self.nb_hi // 8, self.nb_lo // 2))

    def args_ready(self):
        self.a("s_waitcnt lgkmcnt(0)")
        self.a("s_load_dwordx2 s[30:31], s[24:25], %d" % EPOCH)

    def role_l(self):
        a = self.a
        VZ, V1 = 1, 2
        a(".p2align 8")
        a("L_L:")
        a("v_mov_b32 v1, 0\nv_mov_b32 v2, 1")
        self.role = "L"
        KO, VO = 8, 12
        WOA, WOB, W2A, W1A = 16, 17, 18, 20
        piece = 0x8000 if self.ileave else 0x400
        a("""
        s_lshl_b32 s40, s26, 24
        s_add_u32 s40, s40, 0xF00000
        s_lshl_b32 s41, s27, %d
        s_add_u32 s40, s40, s41               ; first piece of this chunk
        v_lshrrev_b32 v3, 4, v0               ; q4
        v_and_b32 v4, 15, v0                  ; pos
        v_xor_b32 v5, v4, v3
        v_lshl_add_u32 v6, v3, 8, s40
        """ % (10 if self.ileave else 15))
        for q in range(4):
            a("v_xor_b32 v7, %d, v5" % (4 * q))
            a("v_lshl_add_u32 v7, v7, 4, v6")
            a("v_add_u32 %s, %d, v7" % (vr(KO + q), 2 * q * piece))

        def rest_addresses():
            a("v_lshlrev_b32 v7, 1, v3")
            a("v_xor_b32 v7, v7, v4")
            a("v_lshl_add_u32 %s, v7, 4, v6" % vr(VO))
            a("v_xor_b32 v7, 8, v7")
            a("v_lshl_add_u32 v7, v7, 4, v6")
            a("v_add_u32 %s, %d, v7" % (vr(VO + 1), 2 * piece))
            a("""
            s_lshl_b32 s42, s26, 9                ; 512 g
            s_lshr_b32 s43, s27, 3
            s_lshl_b32 s43, s43, 7                ; 128 h
            s_add_u32 s42, s42, s43
            s_bfe_u32 s43, s27, 0x20001
            s_lshl_b32 s43, s43, 5
            s_add_u32 s42, s42, s43
            s_and_b32 s43, s27, 1
            s_lshl_b32 s43, s43, 3
            s_add_u32 s42, s42, s43               ; first Wo row
            s_lshl_b32 s42, s42, 10
            v_lshlrev_b32 v6, 4, v4               ; 16 n
            v_lshl_add_u32 v7, v3, 11, v6
            v_add_u32 %s, s42, v7
            v_add_u32 %s, 0x4000, %s
            s_lshl_b32 s42, s50, 16               ; 64 cbg rows * 1024
            s_and_b32 s43, s27, 7
            s_lshl_b32 s43, s43, 7                ; column block j * 128 bytes
            s_add_u32 s42, s42, s43
            v_lshrrev_b32 v6, 3, v0
            v_lshlrev_b32 v6, 13, v6              ; 8 rows * 1024
            v_and_b32 v7, 7, v0
            v_lshl_add_u32 v6, v7, 4, v6
            v_add_u32 %s, s42, v6
            v_add_u32 v19, 0x1000, %s
            """ % (vr(WOA), vr(WOB), vr(WOA), vr(W2A), vr(W2A)))

        def m0(x):
            return "s_movk_i32 m0, 0x%x\n" % x if x < 0x8000 else "s_mov_b32 m0, 0x%x\n" % x

        def seq(isb):
            ops, flags, gates = [], [], []
            for grp in self.order:
                if grp == "|":
                    gates.append(len(ops))
                elif grp == "k":
                    for w in range(4):
                        for q in range(4):
                            for t in range(2):
                                p = 8 * w + 2 * q + t
                                ops.append((m0(L_K + 1024 * p), "global_load_lds_dwordx4 %s, %s %s" % (vr(KO + q), sp(S_K), self.nt_kv),
                                            "v_add_u32 %s, 0x%x, %s" % (vr(KO + q), (1 if t == 0 else 7) * piece, vr(KO + q))))
                    flags.append((len(ops), F_K))
                elif grp == "v":
                    for w in range(4):
                        for i in range(8):
                            b = (i >> 1) & 1
                            ops.append((m0(L_V + 1024 * (8 * w + i)), "global_load_lds_dwordx4 %s, %s %s" % (vr(VO + b), sp(S_V), self.nt_kv),
                                        "v_add_u32 %s, 0x%x, %s" % (vr(VO + b), (1 if (i & 1) == 0 else 3) * piece, vr(VO + b))))
                        flags.append((len(ops), F_V))
                elif grp == "f":
                    for i in range(4):
                        ops.append(("", "global_load_dwordx4 v[24:27], v23, %s offset:%d sc1" % (sp(S_WS), 1024 * i), ""))
                    ops.append(("", "global_load_dwordx4 v[24:27], v28, %s sc1" % sp(S_WS), ""))
                elif grp == "o":
                    for w in range(4):
                        for i in range(4):
                            off = 256 * w + 1024 * (i >> 1)
                            ops.append((m0(L_WO + (4 * w + i) * 1024 - off),
                                        "global_load_lds_dwordx4 %s, %s offset:%d %s" % (vr(WOA if (i & 1) == 0 else WOB), sp(S_WO), off, self.nt_w), ""))
                    flags.append((len(ops), F_WO))
                elif grp == "2" and isb:
                    for i in range(8):
                        ops.append((m0(L_W2 + 4096 * (i >> 2)),
                                    "global_load_lds_dwordx4 %s, %s offset:%d %s" % (vr(W2A if i < 4 else 19), sp(S_W2), 1024 * (i & 3), self.nt_w), ""))
                    flags.append((len(ops), F_W2))
                elif grp == "1" and isb:
                    for i in range(8):
                        ops.append((m0(L_W1 + 1024 * i), "global_load_lds_dwordx4 %s, %s %s" % (vr(W1A), sp(S_W1), self.nt_w),
                                    "v_add_u32 %s, 3584, %s" % (vr(W1A), vr(W1A))))
                    flags.append((len(ops), F_W1))
            return ops, flags, gates

        W = self.window
        self.args_ready()
        self.stamp(1)
        assert self.order[0] == "k"
        ops0, _, _ = seq(False)
        NE = min(W, 5) if not self.kgate else 0
        for j in range(NE):
            pre, ld, post = ops0[j]
            a(pre)
            a("s_nop 0")
            a(ld)
            a(post)
        a("s_barrier")
        if self.lprio:
            a("s_setprio %d" % self.lprio)
        self.mlp_scalars()
        rest_addresses()
        if self.kgate:
            self.flag_wait(F_ST, 1, VZ, 21)
        if "f" in self.order:
            a("""
            s_lshl_b32 s41, s26, 17
            s_lshl_b32 s42, s27, 12
            s_add_u32 s41, s41, s42
            s_add_u32 s41, s41, %d
            v_lshl_add_u32 v23, v0, 4, s41
            s_lshl_b32 s41, s26, 11
            s_lshr_b32 s42, s27, 3
            s_lshl_b32 s42, s42, 9
            s_add_u32 s41, s41, s42
            s_add_u32 s41, s41, %d
            v_and_b32 v28, 31, v0
            v_lshl_add_u32 v28, v28, 4, s41
            """ % (H2, ST))

        def with_values(flags):
            out, nv = [], 0
            for (e, f) in flags:
                if f == F_V:
                    nv += 1
                    out.append((e, f, nv))
                else:
                    out.append((e, f, 1))
            return out

        def run(ops, flags, gates, W, start, labels=None, check_to=None, first=False):
            n = len(ops)
            pend = [f for f in flags if f[0] > max(0, start - (W - 1)) or first]
            hold = self.hold
            for j in range(start, n):
                pre, ld, post = ops[j]
                if labels and j in labels:
                    a(labels[j] + ":")
                if hold and j == hold:
                    while pend and pend[0][0] <= j:
                        e, f, val = pend.pop(0)
                        a("s_waitcnt vmcnt(%d)" % (j - e))
                        self.flag_set(f, val, VZ, 22)
                    self.flag_wait(F_QPUB, 1, VZ, 21)
                    if isb_cur[0] and self.order[0] == "1":
                        self.flag_wait(F_HPUB, 1, VZ, 21)
                    self.stamp(4)
                if j in gates:
                    while pend and pend[0][0] <= j:
                        e, f, val = pend.pop(0)
                        a("s_waitcnt vmcnt(%d)" % (j - e))
                        self.flag_set(f, val, VZ, 22)
                    self.flag_wait(F_OPUB, 4, VZ, 21)
                chk = check_to is not None and j in check_to
                if chk:
                    a("ds_read_b32 v21, %s offset:%d" % (vr(VZ), F_Q))
                if j >= W and not any(g <= j < g + W for g in gates):
                    a("s_waitcnt vmcnt(%d)" % (W - 1))
                    landed = j - (W - 1)
                    while pend and pend[0][0] <= landed:
                        e, f, val = pend.pop(0)
                        self.flag_set(f, val, VZ, 22)
                if chk:
                    a("s_waitcnt lgkmcnt(0)")
                    a("v_readfirstlane_b32 s%d, v21" % S_TMP)
                    a("s_cmp_lg_u32 s%d, 0" % S_TMP)
                    a("s_cbranch_scc1 %s" % check_to[j])
                a(pre)
                a("s_nop 0")
                a(ld)
                if post:
                    a(post)
            self.stamp(2)
            for (e, f, val) in pend:
                a("s_waitcnt vmcnt(%d)" % (n - e))
                self.flag_set(f, val, VZ, 22)
            self.stamp(3)
            self.end(3)

        isb_cur = [False]

        def emit(isb):
            isb_cur[0] = isb
            ops, flags, gates = seq(isb)
            flags = with_values(flags)
            n = len(ops)
            if not self.w2:
                run(ops, flags, gates, W, NE, first=True)
                return
            points = [j for j in range(W, n - 8) if (j - W) % self.chk == 0]
            labels = {j: a.newlabel("FAST") for j in points}
            run(ops, flags, gates, W, NE, check_to=labels, first=True)
            run(ops, flags, gates, self.w2, points[0], labels=labels)

        Lb = a.newlabel("LB")
        a("s_cmp_lg_u32 s%d, 0" % S_ISB)
        a("s_cbranch_scc1 %s" % Lb)
        emit(False)
        a(Lb + ":")
        emit(True)

    def role_a(self):
        a = self.a
        VZ, V1 = 1, 2
        T = 5
        a("L_A:")
        a("v_mov_b32 v1, 0\nv_mov_b32 v2, 1")
        self.role = "A"
        a("s_barrier")
        self.args_ready()
        a("s_setprio %d" % self.aprio)
        KO, VO, QA = 16, 20, 24
        a("""
        v_lshrrev_b32 v3, 4, v0               ; gg
        v_and_b32 v4, 15, v0                  ; m
        s_lshl_b32 s41, s28, 13
        v_and_b32 v5, 3, v4                   ; b = m & 3
        v_lshrrev_b32 v6, 2, v4               ; a = m >> 2
        v_lshlrev_b32 v7, 11, v6
        v_lshl_add_u32 v7, v5, 8, v7
        v_xor_b32 v8, v3, v5
        v_lshl_add_u32 v7, v8, 4, v7
        v_add_u32 v7, s41, v7
        """)
        for s in range(4):
            a("v_xor_b32 v8, %d, v6" % s)
            a("v_lshl_add_u32 %s, v8, 6, v7" % vr(KO + s))
        a("v_mul_u32_u24 v8, 320, v6")
        a("v_lshl_add_u32 %s, v3, 4, v8" % vr(QA))
        a("""
        v_lshrrev_b32 v8, 2, v4               ; r
        v_and_b32 v9, 3, v4                   ; cq
        v_and_b32 v10, 1, v3
        v_lshl_or_b32 v10, v10, 2, v8         ; sigma
        v_lshl_add_u32 v11, v3, 3, v8         ; 8 gg + r
        v_lshlrev_b32 v11, 8, v11
        v_lshl_add_u32 v11, v9, 3, v11
        v_add_u32 v11, %d, v11
        s_lshl_b32 s42, s28, 1
        """ % L_V)
        for u in range(2):
            a("s_add_u32 s43, s42, %d" % u)
            a("v_xor_b32 v12, s43, v10")
            a("v_lshl_add_u32 %s, v12, 5, v11" % vr(VO + u))
        WOA = 22
        a("s_lshl_b32 s42, s28, 12")
        a("s_add_u32 s42, s42, %d" % L_WO)
        a("v_lshl_add_u32 %s, v0, 4, s42" % vr(WOA))
        SEL = 28
        self.selectors(SEL, T, both_parities=False)
        self.tags()
        TG = 36
        a("v_mov_b32 %s, s%d" % (vr(TG + 2), S_T))
        a("v_mov_b32 %s, s%d" % (vr(TG + 3), S_T + 1))
        OA, SA, STA = 40, 41, 43
        a("""
        s_lshl_b32 s42, s26, 17               ; g * 131072
        s_lshl_b32 s43, s27, 7                ; c * 128
        s_add_u32 s42, s42, s43
        s_add_u32 s42, s42, %d
        v_bfe_u32 v12, v0, 1, 2
        v_lshlrev_b32 v12, 4, v12             ; O slot ((n & 7) >> 1) * 16
        v_bfe_u32 v13, v0, 3, 1               ; b
        v_lshl_add_u32 v13, v3, 3, v13        ; 8 h + b
        s_lshl_b32 s43, s28, 1
        v_add_u32 v13, s43, v13               ; + 2 w
        v_lshl_add_u32 v13, v13, 12, v12
        v_add_u32 %s, s42, v13
        v_and_b32 v12, 3, v0
        v_lshlrev_b32 v12, 4, v12             ; s slot (l & 3) * 16
        v_bfe_u32 v13, v0, 2, 3
        s_lshl_b32 s43, s28, 3
        v_add_u32 v13, s43, v13               ; 8 w + ((l >> 2) & 7)
        v_lshl_add_u32 v14, v13, 12, v12
        s_add_u32 s43, s42, 64
        v_add_u32 %s, s43, v14
        s_lshl_b32 s42, s26, 11
        s_lshl_b32 s43, s27, 4
        s_add_u32 s42, s42, s43
        s_add_u32 s42, s42, %d
        v_lshl_add_u32 %s, v3, 9, s42
        """ % (H2, vr(OA), vr(SA), ST, vr(STA)))
        VT, PK = 160, 164
        for k in range(4):
            a("v_mov_b32 %s, s%d" % (vr(VT + k), S_E + k))
        MXW, PWA, PRA, MRA, ORA = 25, 26, 27, 45, 46
        a("""
        v_lshrrev_b32 v12, 2, v4
        v_lshlrev_b32 v12, 4, v12             ; head (l & 15) >> 2, * 16
        s_lshl_b32 s42, s28, 2
        v_add_u32 %s, s42, v12                ; + wave * 4
        v_lshlrev_b32 %s, 4, v0
        s_lshl_b32 s42, s28, 10
        v_add_u32 %s, s42, %s
        v_lshlrev_b32 %s, 4, v3
        v_lshlrev_b32 %s, 4, v3
        """ % (vr(MXW), vr(PRA), vr(PWA), vr(PRA), vr(MRA), vr(ORA)))
        OD = 112
        KF = 48
        QF = 80
        WO = 96
        self.flag_wait(F_K, 1, VZ, T, sleep=2)
        self.stamp(1)
        for t in range(2):
            for s in range(4):
                a("ds_read_b128 %s, %s offset:%d" % (vr(KF + 16 * t + 4 * s, 4), vr(KO + s), L_K + 1024 * t))
        self.flag_wait(F_Q, 1, VZ, T, sleep=1)
        self.stamp(2)
        for s in range(4):
            a("ds_read_b128 %s, %s offset:%d" % (vr(QF + 4 * s, 4), vr(QA), L_Q + 64 * s))
        self.read_mode(VZ, T)
        SC = 112
        for s in range(4):
            for t in range(2):
                a("v_mfma_f32_16x16x32_bf16 %s, %s, %s, %s" % (vr(SC + 4 * t, 4), vr(KF + 16 * t + 4 * s, 4), vr(QF + 4 * s, 4), "0" if s == 0 else vr(SC + 4 * t, 4)))
        a("s_nop 7")
        if self.mimic:
            for i in range(4):
                a("v_cvt_pk_bf16_f32 %s, %s, %s" % (vr(T + i), vr(SC + 2 * i), vr(SC + 2 * i + 1)))
            for i in range(4):
                a("v_lshlrev_b32 %s, 16, %s" % (vr(SC + 2 * i), vr(T + i)))
                a("v_and_b32 %s, 0xffff0000, %s" % (vr(SC + 2 * i + 1), vr(T + i)))
        for i in range(8):
            a("v_mul_f32 %s, 0x%x, %s" % (vr(SC + i), SCALE, vr(SC + i)))
        if self.mimic:
            for i in range(4):
                a("v_cvt_pk_bf16_f32 %s, %s, %s" % (vr(T + i), vr(SC + 2 * i), vr(SC + 2 * i + 1)))
            for i in range(4):
                a("v_lshlrev_b32 %s, 16, %s" % (vr(SC + 2 * i), vr(T + i)))
                a("v_and_b32 %s, 0xffff0000, %s" % (vr(SC + 2 * i + 1), vr(T + i)))
        MX = 44
        a("v_max3_f32 %s, %s, %s, %s" % (vr(T), vr(SC), vr(SC + 1), vr(SC + 2)))
        a("v_max3_f32 %s, %s, %s, %s" % (vr(T + 1), vr(SC + 3), vr(SC + 4), vr(SC + 5)))
        a("v_max3_f32 %s, %s, %s, %s" % (vr(T), vr(T), vr(SC + 6), vr(SC + 7)))
        a("v_max_f32 %s, %s, %s" % (vr(MX), vr(T), vr(T + 1)))
        self.xor_reduce("v_max_f32", [MX], [16, 32], T)
        a("v_mov_b32 %s, 0x%x" % (vr(T + 8), LOG2E))
        a("v_mul_f32 %s, %s, %s" % (vr(T + 9), vr(MX), vr(T + 8)))
        a("s_mov_b64 exec, 0x1111")
        a("ds_write_b32 %s, %s offset:%d" % (vr(MXW), vr(MX), L_MX))
        a("s_mov_b64 exec, -1")
        for i in range(8):
            a("v_fma_f32 %s, %s, %s, -%s" % (vr(SC + i), vr(SC + i), vr(T + 8), vr(T + 9)))
        for i in range(8):
            a("v_exp_f32 %s, %s" % (vr(SC + i), vr(SC + i)))
        PF = 48
        a("s_nop 0")
        for i in range(4):
            a("v_cvt_pk_bf16_f32 %s, %s, %s" % (vr(T + 1 + i), vr(SC + 2 * i), vr(SC + 2 * i + 1)))
        a("ds_write_b128 %s, %s offset:%d" % (vr(PWA), vr(T + 1, 4), L_P))
        self.flag_add(F_P, VZ, V1)
        self.flag_wait(F_P, 4, VZ, T + 6)
        for ks in range(4):
            a("ds_read_b128 %s, %s offset:%d" % (vr(PF + 4 * ks, 4), vr(PRA), L_P + 1024 * ks))
        FW = 120
        a("ds_read_b128 %s, %s offset:%d" % (vr(FW, 4), vr(MRA), L_MX))
        self.stamp(3)
        a("s_waitcnt lgkmcnt(0)")
        a("v_max3_f32 %s, %s, %s, %s" % (vr(MX), vr(FW), vr(FW + 1), vr(FW + 2)))
        a("v_max_f32 %s, %s, %s" % (vr(MX), vr(MX), vr(FW + 3)))
        a("v_mul_f32 %s, %s, %s" % (vr(T + 9), vr(MX), vr(T + 8)))
        for i in range(4):
            a("v_fma_f32 %s, %s, %s, -%s" % (vr(FW + i), vr(FW + i), vr(T + 8), vr(T + 9)))
        for i in range(4):
            a("v_exp_f32 %s, %s" % (vr(FW + i), vr(FW + i)))
        D = 128
        TS = 124
        Lns = a.newlabel("NS")
        a("s_cmp_lg_u32 s28, 0")
        a("s_cbranch_scc1 %s" % Lns)
        ON = 64
        for t in range(4):
            a("v_mov_b32 %s, 0x3f803f80" % vr(ON + t))
        a("s_nop 1")
        for ks in range(4):
            a("v_mfma_f32_16x16x32_bf16 %s, %s, %s, 0" % (vr(D + 4 * ks, 4), vr(PF + 4 * ks, 4), vr(ON, 4)))
        a("v_mov_b32 %s, %s" % (vr(TS), vr(MX)))
        a("v_mov_b32 %s, %s" % (vr(TS + 2), vr(TG + 2)))
        a("v_mov_b32 %s, %s" % (vr(TS + 3), vr(TG + 3)))
        a("s_nop 4")
        a("v_mul_f32 %s, %s, %s" % (vr(TS + 1), vr(FW), vr(D)))
        for ks in range(1, 4):
            a("v_fmac_f32 %s, %s, %s" % (vr(TS + 1), vr(FW + ks), vr(D + 4 * ks)))
        a(Lns + ":")
        wo_first = self.order.index("o") < self.order.index("v")

        def read_wo():
            self.flag_wait(F_WO, 1, VZ, T, sleep=0 if not wo_first else 1)
            for i in range(4):
                a("ds_read_b128 %s, %s offset:%d" % (vr(WO + 4 * i, 4), vr(WOA), 1024 * i))
        if wo_first:
            read_wo()
        self.stamp(4)
        VF = 64
        S_V, S_I = 44, 45
        a("s_mov_b32 s%d, 0" % S_V)
        a("s_mov_b32 s%d, 0" % S_I)
        for ks in range(4):
            Lgo, Lsp = a.newlabel("V"), a.newlabel("V")
            a("s_cmp_ge_u32 s%d, %d" % (S_V, ks + 1))
            a("s_cbranch_scc1 %s" % Lgo)
            a("s_mov_b32 s%d, 0" % S_CNT)
            a(Lsp + ":")
            a("ds_read_b64 %s, %s offset:%d" % (vr(T + 1, 2), vr(VZ), F_V))
            a("s_add_u32 s%d, s%d, 1" % (S_CNT, S_CNT))
            a("s_cmp_gt_u32 s%d, %d" % (S_CNT, SPIN_MAX))
            a("s_cbranch_scc1 L_end")
            a("s_waitcnt lgkmcnt(0)")
            a("v_readfirstlane_b32 s%d, %s" % (S_V, vr(T + 1)))
            a("v_readfirstlane_b32 s%d, %s" % (S_I, vr(T + 2)))
            a("s_cmp_lt_u32 s%d, %d" % (S_V, ks + 1))
            a("s_cbranch_scc1 %s" % Lsp)
            a(Lgo + ":")
            if ks == 3:
                self.stamp(5)
            for u in range(2):
                for jh in range(2):
                    a("ds_read_b64_tr_b16 %s, %s offset:%d" % (vr(VF + 8 * ks + 4 * u + 2 * jh, 2), vr(VO + u), 8192 * ks + 1024 * jh))
            if ks:
                a("s_waitcnt lgkmcnt(4)")
                for u in range(2):
                    a("v_mfma_f32_16x16x32_bf16 %s, %s, %s, 0" % (vr(D + 8 * (ks - 1) + 4 * u, 4), vr(PF + 4 * (ks - 1), 4), vr(VF + 8 * (ks - 1) + 4 * u, 4)))
        for u in range(2):
            a("s_waitcnt lgkmcnt(%d)" % (2 - 2 * u))
            a("v_mfma_f32_16x16x32_bf16 %s, %s, %s, 0" % (vr(D + 24 + 4 * u, 4), vr(PF + 12, 4), vr(VF + 24 + 4 * u, 4)))
        a("v_mul_f32 %s, %s, %s" % (vr(TG), vr(FW), vr(D)))
        a("v_mul_f32 %s, %s, %s" % (vr(TG + 1), vr(FW), vr(D + 4)))
        for ks in range(1, 3):
            a("v_fmac_f32 %s, %s, %s" % (vr(TG), vr(FW + ks), vr(D + 8 * ks)))
            a("v_fmac_f32 %s, %s, %s" % (vr(TG + 1), vr(FW + ks), vr(D + 8 * ks + 4)))
        a("s_nop 1")
        a("v_fmac_f32 %s, %s, %s" % (vr(TG), vr(FW + 3), vr(D + 24)))
        a("v_fmac_f32 %s, %s, %s" % (vr(TG + 1), vr(FW + 3), vr(D + 28)))
        if self.sinit:
            Li = a.newlabel("I")
            a("s_cmp_ge_u32 s%d, 2" % S_I)
            a("s_cbranch_scc1 %s" % Li)
            self.flag_wait(F_INIT, 2, VZ, T)
            a(Li + ":")
        a("v_and_or_b32 %s, %s, s%d, %s" % (vr(PK), vr(TG), S_EN, vr(VT)))
        a("v_and_or_b32 %s, %s, s%d, %s" % (vr(PK + 1), vr(TG + 1), S_EN, vr(VT + 1)))
        a("v_mov_b32_dpp %s, %s quad_perm:[1,1,3,3] row_mask:0xf bank_mask:0xf" % (vr(PK + 2), vr(TG)))
        a("v_mov_b32_dpp %s, %s quad_perm:[1,1,3,3] row_mask:0xf bank_mask:0xf" % (vr(PK + 3), vr(TG + 1)))
        a("v_and_or_b32 %s, %s, s%d, %s" % (vr(PK + 2), vr(PK + 2), S_EN, vr(VT + 2)))
        a("v_and_or_b32 %s, %s, s%d, %s" % (vr(PK + 3), vr(PK + 3), S_EN, vr(VT + 3)))
        a("s_mov_b32 exec_lo, 0x55555555")
        a("s_mov_b32 exec_hi, 0x55555555")
        self.store_mode(OA, PK)
        a("s_mov_b64 exec, -1")
        Lns = a.newlabel("NS")
        a("s_cmp_lg_u32 s28, 0")
        a("s_cbranch_scc1 %s" % Lns)
        a("s_mov_b32 s42, 0x00010001")
        a("s_mov_b32 s43, 0x00010001")
        a("s_mov_b64 exec, s[42:43]")
        self.store_mode(STA, TS)
        a("s_mov_b64 exec, -1")
        a(Lns + ":")
        self.flag_add(F_OPUB, VZ, V1)
        self.stamp(6)
        if not wo_first:
            read_wo()
        AF = 64
        OG = 8
        Lsp = a.newlabel("O")
        a("s_mov_b32 s%d, 0" % S_CNT)
        a(Lsp + ":")
        a("ds_read_b128 %s, %s offset:%d" % (vr(OG, 4), vr(ORA), L_O))
        a("s_add_u32 s%d, s%d, 1" % (S_CNT, S_CNT))
        a("s_cmp_gt_u32 s%d, %d" % (S_CNT, SPIN_MAX))
        a("s_cbranch_scc1 L_end")
        a("s_waitcnt lgkmcnt(0)")
        a("v_and_b32 %s, %s, %s" % (vr(OG + 1), vr(OG + 1), vr(OG + 3)))
        a("v_cmp_ne_u32 vcc, 1, %s" % vr(OG + 1))
        a("s_cbranch_vccnz %s" % Lsp)
        for i in range(4):
            src = OG + 2 * (i >> 1)
            for t in range(4):
                a("v_perm_b32 %s, %s, %s, %s" % (vr(AF + 4 * i + t), vr(src), vr(src), vr(SEL + 4 * (i & 1) + t)))
            if i:
                a("v_mfma_f32_16x16x32_bf16 %s, %s, %s, %s" % (vr(OD, 4), vr(AF + 4 * (i - 1), 4), vr(WO + 4 * (i - 1), 4), "0" if i == 1 else vr(OD, 4)))
        a("s_nop 1")
        a("v_mfma_f32_16x16x32_bf16 %s, %s, %s, %s" % (vr(OD, 4), vr(AF + 12, 4), vr(WO + 12, 4), vr(OD, 4)))
        a("s_nop 7")
        for k in range(4):
            a("v_and_or_b32 %s, %s, s%d, %s" % (vr(PK + k), vr(OD + k), S_EN, vr(VT + k)))
        a("s_mov_b32 exec_hi, 0")
        self.store_mode(SA, PK)
        a("s_mov_b64 exec, -1")
        if self.sgate:
            self.flag_add(F_SPUB, VZ, V1)
        self.stamp(7)
        self.end(T)

    def role_c0(self):
        a = self.a
        VZ, V1 = 1, 2
        X = 4
        W = 40
        AF = 104
        SEL = 168
        ACC = 176
        T = 180
        self.role = "C0"
        if self.code_pf:
            a("s_getpc_b64 s[52:53]")
            a("L_pc:")
            a("s_lshl_b32 s54, s27, 10")
            a("v_add_u32 v3, s54, v37")
            a("v_min_u32 v3, L_code_end-L_pc-16, v3")
            a("global_load_dwordx4 v[188:191], v3, s[52:53]")
        a("""
        s_lshl_b32 s41, s40, 8
        v_lshl_add_u32 v38, v0, 2, s41
        s_lshl_b32 s41, s40, 20               ; rb * 128 * 8192
        s_lshl_b32 s42, s26, 10               ; g * 512 * 2
        s_add_u32 s41, s41, s42
        s_and_b32 s42, s27, 7
        s_lshl_b32 s42, s42, 7                ; cb * 128
        s_add_u32 s41, s41, s42
        v_lshrrev_b32 v3, 3, v0
        v_lshlrev_b32 v3, 17, v3              ; 16 rows * 8192
        v_and_b32 v36, 7, v0
        v_lshl_add_u32 v3, v36, 4, v3
        v_add_u32 v3, s41, v3
        s_mov_b32 m0, %d
        s_movk_i32 s41, 15
        s_waitcnt lgkmcnt(0)
        global_load_dwordx4 %s, v37, %s
        global_load_dword %s, v38, %s
        L_wq:
        global_load_lds_dwordx4 v3, %s %s
        v_add_u32 v3, 0x2000, v3
        s_addk_i32 m0, 0x400
        s_sub_u32 s41, s41, 1
        s_cbranch_scc0 L_wq
        s_barrier
        L_C0_rest:
        s_setprio 3
        s_load_dwordx2 s[30:31], s[24:25], %d
        v_mov_b32 v1, 0
        v_mov_b32 v2, 1
        """ % (L_W1, vr(X, 4), sp(S_X), vr(X + 4), sp(S_X), sp(S_WQ), self.nt_w, EPOCH))
        self.stamp(1)
        self.selectors(SEL, T, both_parities=True)
        a("s_waitcnt vmcnt(16)")
        if self.kgate == 1:
            self.flag_add(F_ST, VZ, V1)
        self.stamp(2)
        self.layernorm_rows(X, L_XQ, VZ)
        self.tags()
        a("s_waitcnt lgkmcnt(0)")
        if self.kgate == 2:
            self.flag_add(F_ST, VZ, V1)
        self.stamp(3)
        XN = X + 8
        a("v_add_u32 v37, %d, v37" % L_W1)
        for i in range(16):
            for t in range(4):
                a("v_perm_b32 %s, %s, %s, %s" % (vr(AF + 4 * i + t), vr(XN + (i >> 1)), vr(XN + (i >> 1)), vr(SEL + 4 * (i & 1) + t)))
        for q in range(4):
            a("s_waitcnt vmcnt(%d)" % (12 - 4 * q))
            if self.kgate >= 3 and q == self.kgate - 3:
                self.flag_add(F_ST, VZ, V1)
            for i in range(4 * q, 4 * q + 4):
                a("ds_read_b128 %s, v37 offset:%d" % (vr(W + 4 * i, 4), 1024 * i))
            if q:
                for i in range(4 * q - 4, 4 * q):
                    a("s_waitcnt lgkmcnt(%d)" % (4 + (4 * q - 1 - i)))
                    a("v_mfma_f32_16x16x32_bf16 %s, %s, %s, %s" % (vr(ACC, 4), vr(AF + 4 * i, 4), vr(W + 4 * i, 4), "0" if i == 0 else vr(ACC, 4)))
        for i in range(12, 16):
            a("s_waitcnt lgkmcnt(%d)" % (15 - i))
            a("v_mfma_f32_16x16x32_bf16 %s, %s, %s, %s" % (vr(ACC, 4), vr(AF + 4 * i, 4), vr(W + 4 * i, 4), vr(ACC, 4)))
        a("s_nop 7")
        a("v_permlane32_swap_b32 %s, %s" % (vr(ACC), vr(ACC + 2)))
        a("v_permlane32_swap_b32 %s, %s" % (vr(ACC + 1), vr(ACC + 3)))
        a("s_nop 1")
        a("v_add_f32_dpp %s, %s, %s row_ror:8 row_mask:0xf bank_mask:0xf" % (vr(ACC), vr(ACC + 2), vr(ACC)))
        a("v_add_f32_dpp %s, %s, %s row_ror:8 row_mask:0xf bank_mask:0xf" % (vr(ACC + 1), vr(ACC + 3), vr(ACC + 1)))
        self.stamp(4)
        a("v_mov_b32 %s, s%d" % (vr(ACC + 2), S_T1X))
        a("v_mov_b32 %s, s%d" % (vr(ACC + 3), S_T1X + 1))
        a("""
        s_lshl_b32 s41, s26, 14               ; g * 16384
        s_lshr_b32 s42, s27, 3
        s_lshl_b32 s42, s42, 12               ; rb * 4096
        s_add_u32 s41, s41, s42
        s_and_b32 s42, s27, 7
        s_lshl_b32 s42, s42, 9                ; cb * 512
        s_add_u32 s41, s41, s42
        s_add_u32 s41, s41, %d
        v_lshrrev_b32 v3, 4, v0               ; 2 hi + g'
        v_lshlrev_b32 v3, 3, v3
        v_and_b32 v36, 7, v0
        v_add_u32 v3, v3, v36                 ; pos = 16 hi + 8 g' + n
        v_lshl_add_u32 v3, v3, 4, s41
        v_add_u32 v37, %d, v3
        """ % (H1, REGB))
        a("s_mov_b32 s42, 0x00ff00ff")
        a("s_mov_b32 s43, 0x00ff00ff")
        a("s_mov_b64 exec, s[42:43]")
        a("global_store_dwordx4 v3, %s, %s" % (vr(ACC, 4), sp(S_WS)))
        if self.qack:
            a("global_store_dwordx4 v37, %s, %s sc1" % (vr(ACC, 4), sp(S_WS)))
            a("s_mov_b64 exec, -1")
            self.stamp(5)
            a("s_waitcnt vmcnt(1)")
            if self.qsleep:
                a("s_sleep %d" % self.qsleep)
            self.flag_add(F_QPUB, VZ, V1)
        else:
            a("s_mov_b64 exec, -1")
            self.flag_add(F_QPUB, VZ, V1)
            a("s_mov_b64 exec, s[42:43]")
            a("global_store_dwordx4 v37, %s, %s sc1" % (vr(ACC, 4), sp(S_WS)))
            a("s_mov_b64 exec, -1")
        if not self.qack:
            self.stamp(5)
        SA, OA = 4, 5
        G = 8
        a("""
        s_lshl_b32 s41, s26, 11               ; g * 2048
        s_lshr_b32 s42, s27, 3
        s_lshl_b32 s42, s42, 9                ; head * 512
        s_add_u32 s41, s41, s42
        s_add_u32 s41, s41, %d
        v_lshrrev_b32 v3, 2, v0
        v_lshl_add_u32 %s, v3, 4, s41
        s_lshl_b32 s41, s26, 17
        s_lshl_b32 s42, s27, 12
        s_add_u32 s41, s41, s42
        s_add_u32 s41, s41, %d
        v_and_b32 v6, 3, v0
        v_lshlrev_b32 v6, 4, v6
        v_lshl_add_u32 v7, v3, 7, v6
        v_add_u32 %s, s41, v7
        """ % (ST, vr(SA), H2, vr(OA)))
        a("v_lshlrev_b32 v6, 4, v0")
        self.flag_wait(F_Q, 1, VZ, T, sleep=2)
        self.read_mode(VZ, T)
        self.stamp(6)
        GO = 40
        self.flag_wait(F_OPUB, self.ogate, VZ, T, sleep=0 if self.odelay else 1)
        if self.odelay:
            a("s_sleep %d" % self.odelay)
            self.flag_add(F_O, VZ, V1)
        self.stamp(7)
        self.poll_mixed([(G + 4 * i, SA, 256 * i, "t") for i in range(2)] + [(GO + 4 * i, OA, 2048 * i, "e") for i in range(2)], S_MB, T, cnt=12)
        self.stamp(8)
        MX, LS, WT, AC = 24, 25, 26, 28
        a("v_max_f32 %s, %s, %s" % (vr(MX), vr(G), vr(G + 4)))
        for k in range(4):
            a("v_and_b32 %s, s%d, %s" % (vr(GO + k), S_EN, vr(GO + k)))
        self.xor_reduce("v_max_f32", [MX], ["r4", 8, 16, 32], T)
        a("v_mov_b32 %s, 0x%x" % (vr(T + 4), LOG2E))
        a("v_mul_f32 %s, %s, %s" % (vr(T + 5), vr(MX), vr(T + 4)))
        for i in range(2):
            a("v_fma_f32 %s, %s, %s, -%s" % (vr(WT + i), vr(G + 4 * i), vr(T + 4), vr(T + 5)))
        for i in range(2):
            a("v_exp_f32 %s, %s" % (vr(WT + i), vr(WT + i)))
        for k in range(4):
            a("v_and_b32 %s, s%d, %s" % (vr(GO + 4 + k), S_EN, vr(GO + 4 + k)))
        a("v_mul_f32 %s, %s, %s" % (vr(LS), vr(WT), vr(G + 1)))
        for k in range(4):
            a("v_mul_f32 %s, %s, %s" % (vr(AC + k), vr(WT), vr(GO + k)))
        a("v_fmac_f32 %s, %s, %s" % (vr(LS), vr(WT + 1), vr(G + 5)))
        for k in range(4):
            a("v_fmac_f32 %s, %s, %s" % (vr(AC + k), vr(WT + 1), vr(GO + 4 + k)))
        self.xor_reduce("v_add_f32", [LS, AC, AC + 1, AC + 2, AC + 3], ["r4", 8, 16, 32], T)
        a("v_rcp_f32 %s, %s" % (vr(T), vr(LS)))
        a("v_mov_b32 v33, 1")
        a("v_mov_b32 v35, 1")
        a("v_fma_f32 %s, -%s, %s, 1.0" % (vr(T + 1), vr(T), vr(LS)))
        a("v_fmac_f32 %s, %s, %s" % (vr(T), vr(T + 1), vr(T)))
        for k in range(4):
            a("v_mul_f32 %s, %s, %s" % (vr(AC + k), vr(AC + k), vr(T)))
        a("v_cvt_pk_bf16_f32 v32, %s, %s" % (vr(AC), vr(AC + 1)))
        a("v_cvt_pk_bf16_f32 v34, %s, %s" % (vr(AC + 2), vr(AC + 3)))
        a("s_mov_b64 exec, 0xf")
        a("ds_write_b128 v6, v[32:35] offset:%d" % L_O)
        a("s_mov_b64 exec, -1")
        self.stamp(9)
        self.end(T)

    def role_c1(self):
        a = self.a
        VZ, V1 = 1, 2
        X = 4
        W = 40
        AF = 104
        SEL = 168
        ACC = 176
        T = 180
        a("L_C1:")
        a("v_mov_b32 v1, 0\nv_mov_b32 v2, 1")
        self.role = "C1"
        a("s_barrier")
        a("s_setprio 3")
        self.mlp_scalars()
        a("""
        v_lshlrev_b32 v42, 4, v0
        s_and_b32 s40, s27, 7
        s_lshl_b32 s41, s40, 7
        v_and_b32 v3, 31, v0
        v_lshl_add_u32 v43, v3, 2, s41
        """)
        a("""
        s_lshl_b32 s42, s50, 7
        s_and_b32 s43, s27, 7
        s_mul_i32 s43, s43, %d
        s_add_u32 s42, s42, s43
        v_lshrrev_b32 v6, 3, v0
        v_mul_u32_u24 v6, %d, v6
        v_and_b32 v7, 7, v0
        v_lshl_add_u32 v6, v7, 4, v6
        v_add_u32 v44, s42, v6
        """ % (64 * 3584, 8 * 3584))
        self.args_ready()
        a("""
        s_lshl_b32 s41, s26, 14
        s_lshl_b32 s42, s27, 9
        s_add_u32 s44, s41, s42
        s_add_u32 s44, s44, %d                ; own outbox of hidden-unit partials
        """ % HB)
        if self.prefill:
            a("""
            s_lshl_b32 s41, s26, 14
            s_lshr_b32 s42, s27, 3
            s_lshl_b32 s42, s42, 12
            s_add_u32 s41, s41, s42
            s_and_b32 s42, s27, 7
            s_lshl_b32 s42, s42, 9
            s_add_u32 s41, s41, s42
            s_add_u32 s41, s41, %d
            v_and_b32 v3, 31, v0
            v_lshl_add_u32 v40, v3, 4, s41
            v_lshl_add_u32 v41, v3, 4, s44
            s_lshl_b32 s41, s26, 11
            s_lshr_b32 s42, s27, 3
            s_lshl_b32 s42, s42, 9
            s_add_u32 s41, s41, s42
            s_add_u32 s41, s41, %d
            v_lshl_add_u32 v45, v3, 4, s41
            v_cmp_gt_u32 vcc, 32, v0
            s_nop 1
            v_cndmask_b32 v40, v41, v40, vcc
            global_load_dwordx4 v[188:191], v40, %s
            """ % (H1, ST, sp(S_WS)))
            if self.prefill >= 2:
                Ls = a.newlabel("I")
                a("""
                s_and_b32 s41, s27, 7
                s_cmp_lg_u32 s41, 0
                s_cbranch_scc1 %s
                global_load_dwordx4 v[188:191], v45, %s
                %s:
                """ % (Ls, sp(S_WS), Ls))
        W1R = 48
        Lb = a.newlabel("B")
        a("s_cmp_lg_u32 s%d, 0" % S_ISB)
        a("s_cbranch_scc1 %s" % Lb)
        self.stamp(1)
        self.end(T)
        a(Lb + ":")
        a("global_load_dwordx4 %s, v42, %s" % (vr(X, 4), sp(S_X)))
        a("global_load_dword %s, v43, %s" % (vr(X + 4), sp(S_X)))
        if self.w1gate:
            self.flag_wait(F_ST, 1, VZ, T)
        for i in range(8):
            a("global_load_dwordx4 %s, v44, %s %s" % (vr(W1R + 4 * i, 4), sp(S_W1), self.nt_w))
            if i < 7:
                a("v_add_u32 v44, 3584, v44")
        a("s_waitcnt vmcnt(8)")
        self.stamp(1)
        self.role = "C1B"
        self.selectors(SEL, T, both_parities=True)
        self.layernorm_rows(X, L_XH, VZ, rows=64)
        self.tags()
        a("v_lshlrev_b32 v3, 4, v0")
        a("v_add_u32 v38, %d, v3" % L_W2)
        XN = X + 8
        for i in range(8):
            for t in range(4):
                a("v_perm_b32 %s, %s, %s, %s" % (vr(AF + 4 * i + t), vr(XN + (i >> 1)), vr(XN + (i >> 1)), vr(SEL + 4 * (i & 1) + t)))
        a("""
        v_lshrrev_b32 v3, 4, v0
        v_lshlrev_b32 v3, 3, v3
        v_and_b32 v36, 7, v0
        v_add_u32 v3, v3, v36
        v_lshl_add_u32 v3, v3, 4, s44
        s_lshr_b32 s41, s27, 3
        s_lshl_b32 s41, s41, 12               ; cbl * 4096
        s_lshl_b32 s42, s26, 14
        s_add_u32 s41, s41, s42
        s_add_u32 s41, s41, %d
        v_lshl_add_u32 v4, v0, 4, s41
        """ % HB)
        a("s_waitcnt vmcnt(0)")
        self.stamp(2)
        for i in range(8):
            a("v_mfma_f32_16x16x32_bf16 %s, %s, %s, %s" % (vr(ACC, 4), vr(AF + 4 * i, 4), vr(W1R + 4 * i, 4), "0" if i == 0 else vr(ACC, 4)))
        a("s_nop 7")
        a("v_permlane32_swap_b32 %s, %s" % (vr(ACC), vr(ACC + 2)))
        a("v_permlane32_swap_b32 %s, %s" % (vr(ACC + 1), vr(ACC + 3)))
        a("s_nop 1")
        a("v_add_f32_dpp %s, %s, %s row_ror:8 row_mask:0xf bank_mask:0xf" % (vr(ACC), vr(ACC + 2), vr(ACC)))
        a("v_add_f32_dpp %s, %s, %s row_ror:8 row_mask:0xf bank_mask:0xf" % (vr(ACC + 1), vr(ACC + 3), vr(ACC + 1)))
        self.stamp(3)
        a("v_mov_b32 %s, s%d" % (vr(ACC + 2), S_T))
        a("v_mov_b32 %s, s%d" % (vr(ACC + 3), S_T + 1))
        a("v_add_u32 v5, %d, v3" % REGB)
        a("s_mov_b32 s42, 0x00ff00ff")
        a("s_mov_b32 s43, 0x00ff00ff")
        a("s_mov_b64 exec, s[42:43]")
        a("global_store_dwordx4 v3, %s, %s" % (vr(ACC, 4), sp(S_WS)))
        a("s_mov_b64 exec, -1")
        self.flag_add(F_HPUB, VZ, V1)
        a("s_mov_b64 exec, s[42:43]")
        a("global_store_dwordx4 v5, %s, %s sc1" % (vr(ACC, 4), sp(S_WS)))
        a("s_mov_b64 exec, -1")
        G = 8
        self.flag_wait(F_Q, 1, VZ, T, sleep=1)
        self.read_mode(VZ, T)
        self.poll([(G + 4 * i, 4, 1024 * i) for i in range(4)], S_MB)
        self.stamp(4)
        for e in range(2):
            a("v_add_f32 %s, %s, %s" % (vr(G + e), vr(G + e), vr(G + 4 + e)))
            a("v_add_f32 %s, %s, %s" % (vr(G + 8 + e), vr(G + 8 + e), vr(G + 12 + e)))
        for e in range(2):
            a("v_add_f32 %s, %s, %s" % (vr(G + e), vr(G + e), vr(G + 8 + e)))
        self.xor_reduce("v_add_f32", [G, G + 1], [32], T)
        a("v_max_f32 %s, 0, %s" % (vr(G), vr(G)))
        a("v_max_f32 %s, 0, %s" % (vr(G + 1), vr(G + 1)))
        a("v_cvt_pk_bf16_f32 %s, %s, %s" % (vr(G), vr(G), vr(G + 1)))
        a("""
        v_and_b32 v5, 7, v0
        v_lshlrev_b32 v5, 4, v5               ; 8 n * 2 B
        v_bfe_u32 v6, v0, 3, 1
        v_lshl_add_u32 v5, v6, 3, v5          ; 4 g' * 2 B
        v_bfe_u32 v6, v0, 4, 1
        v_lshl_add_u32 v5, v6, 2, v5          ; 2 hi * 2 B
        ds_write_b32 v5, %s offset:%d
        v_lshrrev_b32 v5, 3, v0
        v_lshlrev_b32 v5, 4, v5
        ds_read_b128 %s, v5 offset:%d
        """ % (vr(G), L_XH, vr(G + 4, 4), L_XH))
        a("""
        s_and_b32 s41, s27, 7
        s_lshr_b32 s42, s41, 1
        s_lshl_b32 s42, s42, 3
        s_and_b32 s41, s41, 1
        s_lshl_b32 s41, s41, 1
        s_add_u32 s41, s41, s42
        s_lshl_b32 s41, s41, 9
        s_lshl_b32 s42, s26, 14
        s_add_u32 s41, s41, s42
        s_lshr_b32 s42, s27, 3
        s_lshl_b32 s42, s42, 7
        s_add_u32 s41, s41, s42
        s_add_u32 s41, s41, %d
        v_bfe_u32 v3, v0, 4, 1
        v_lshlrev_b32 v3, 11, v3              ; 4 g' * 512
        v_bfe_u32 v5, v0, 2, 1
        v_lshl_add_u32 v3, v5, 9, v3          ; (n >> 2) * 512
        v_lshrrev_b32 v5, 5, v0
        v_lshl_add_u32 v3, v5, 6, v3          ; 4 hi * 16
        v_and_b32 v5, 3, v0
        v_lshl_add_u32 v3, v5, 4, v3
        v_add_u32 v3, s41, v3
        s_waitcnt lgkmcnt(0)
        """ % H3G)
        for i in range(8):
            for t in range(4):
                a("v_perm_b32 %s, %s, %s, %s" % (vr(AF + 4 * i + t), vr(G + 4 + (i >> 1)), vr(G + 4 + (i >> 1)), vr(SEL + 4 * (i & 1) + t)))
        self.flag_wait(F_W2, 1, VZ, T, sleep=1)
        for i in range(8):
            a("ds_read_b128 %s, v38 offset:%d" % (vr(W + 4 * i, 4), 1024 * i))
        for i in range(8):
            a("s_waitcnt lgkmcnt(%d)" % (7 - i))
            a("v_mfma_f32_16x16x32_bf16 %s, %s, %s, %s" % (vr(ACC, 4), vr(AF + 4 * i, 4), vr(W + 4 * i, 4), "0" if i == 0 else vr(ACC, 4)))
        a("s_nop 7")
        a("v_permlane32_swap_b32 %s, %s" % (vr(ACC), vr(ACC + 2)))
        a("v_permlane32_swap_b32 %s, %s" % (vr(ACC + 1), vr(ACC + 3)))
        a("s_nop 1")
        a("v_add_f32_dpp %s, %s, %s row_ror:8 row_mask:0xf bank_mask:0xf" % (vr(ACC), vr(ACC + 2), vr(ACC)))
        a("v_add_f32_dpp %s, %s, %s row_ror:8 row_mask:0xf bank_mask:0xf" % (vr(ACC + 1), vr(ACC + 3), vr(ACC + 1)))
        a("v_mov_b32 %s, s%d" % (vr(ACC + 2), S_T))
        a("v_mov_b32 %s, s%d" % (vr(ACC + 3), S_T + 1))
        a("s_mov_b32 s42, 0x00ff00ff")
        a("s_mov_b32 s43, 0x00ff00ff")
        a("s_mov_b64 exec, s[42:43]")
        self.store_mode(3, ACC)
        a("s_mov_b64 exec, -1")
        self.stamp(5)
        self.end(T)

    def role_c2(self):
        a = self.a
        VZ, V1 = 1, 2
        T = 100
        G = 8
        a("L_C2:")
        a("v_mov_b32 v1, 0\nv_mov_b32 v2, 1")
        self.role = "C2"
        a("s_setprio 3")
        a("v_lshlrev_b32 v3, 2, v0")
        a("s_mov_b32 exec_hi, 0")
        a("ds_write_b32 v3, v1 offset:%d" % L_F)
        a("s_mov_b64 exec, -1")
        self.args_ready()
        a("s_barrier")
        self.mlp_scalars()
        XF, FA, OUTA = 80, 81, 82
        a("""
        s_max_u32 s45, s27, 28
        s_sub_u32 s45, s45, 28
        s_lshl_b32 s45, s45, 3
        s_add_u32 s45, s45, s26               ; column set c'
        s_lshr_b32 s41, s45, 3
        s_lshl_b32 s41, s41, 7                ; 128 (c' >> 3)
        s_and_b32 s42, s45, 3
        s_lshl_b32 s42, s42, 5                ; 32 (c' & 3)
        s_add_u32 s41, s41, s42
        s_bfe_u32 s42, s45, 0x10002
        s_lshl_b32 s42, s42, 2
        s_add_u32 s41, s41, s42
        v_and_b32 v3, 3, v0
        v_lshlrev_b32 v3, 3, v3
        v_bfe_u32 v83, v0, 2, 1
        v_lshl_add_u32 v3, v83, 1, v3
        v_add_u32 v3, s41, v3                 ; first column of the pair
        v_lshlrev_b32 %s, 1, v3               ; byte offset in x / out
        s_lshl_b32 s41, s45, 11
        s_add_u32 s41, s41, %d
        v_lshrrev_b32 v3, 3, v0
        v_lshlrev_b32 v3, 8, v3
        v_and_b32 v83, 7, v0
        v_lshl_add_u32 v3, v83, 4, v3
        v_add_u32 %s, s41, v3
        """ % (vr(OUTA), H3B, vr(FA)))
        Lnf = a.newlabel("NF")
        a("s_cmp_lt_u32 s27, 28")
        a("s_cbranch_scc1 %s" % Lnf)
        a("global_load_dword %s, %s, %s" % (vr(XF), vr(OUTA), sp(S_X)))
        a("global_load_dwordx4 v[84:87], %s, %s sc1" % (vr(FA), sp(S_WS)))
        a("global_load_dwordx4 v[88:91], %s, %s offset:128 sc1" % (vr(FA), sp(S_WS)))
        a(Lnf + ":")
        a("""
        s_lshl_b32 s41, s26, 14
        s_add_u32 s41, s41, %d
        v_lshl_add_u32 v4, v0, 4, s41
        v_add_u32 v5, 0x1000, v4
        v_add_u32 v6, 0x2000, v4
        v_add_u32 v7, 0x3000, v4
        """ % H1)
        qloads = [(G + 16 * hd + 4 * rb, 4 + rb, 1024 * hd) for hd in range(4) for rb in range(4)]
        self.tags()
        self.stamp(1)
        self.flag_wait(F_QPUB, 1, VZ, T, sleep=1)
        self.stamp(2)
        Lslow, Lgot = a.newlabel("Q"), a.newlabel("Q")
        if not self.force_global:
            self.poll(qloads, S_WS, tag=S_T1X, limit=self.atimeout, on_timeout=Lslow, cnt=12, plain_first=bool(self.plain0 & 1))
            a("s_branch %s" % Lgot)
        a(Lslow + ":")
        a("s_waitcnt vmcnt(0)")
        a("s_add_u32 s46, s%d, %d" % (S_WS, REGB))
        a("s_addc_u32 s47, s%d, 0" % (S_WS + 1))
        L = a.newlabel("P")
        a("s_mov_b32 s%d, 0" % S_CNT)
        a(L + ":")
        for (vd, va, off) in qloads:
            a("global_load_dwordx4 %s, %s, s[46:47] offset:%d sc1" % (vr(vd, 4), vr(va), off))
        a("s_add_u32 s%d, s%d, 1" % (S_CNT, S_CNT))
        a("s_cmp_gt_u32 s%d, %d" % (S_CNT, POLL_MAX))
        a("s_cbranch_scc1 L_end")
        a("s_waitcnt vmcnt(0)")
        a("v_mov_b32 %s, 0" % vr(T))
        a("v_mov_b32 %s, 0" % vr(T + 1))
        for (vd, va, off) in qloads:
            a("v_xor_b32 %s, s%d, %s" % (vr(T + 2), S_T, vr(vd + 2)))
            a("v_xor_b32 %s, s%d, %s" % (vr(T + 3), S_T + 1, vr(vd + 3)))
            a("v_and_b32 %s, 0xfffffff0, %s" % (vr(T + 3), vr(T + 3)))
            a("v_or3_b32 %s, %s, %s, %s" % (vr(T), vr(T), vr(T + 2), vr(T + 3)))
            a("v_xor_b32 %s, s%d, %s" % (vr(T + 3), S_T1X + 1, vr(vd + 3)))
            a("v_or_b32 %s, %s, %s" % (vr(T + 1), vr(T + 1), vr(T + 3)))
        a("v_cmp_ne_u32 vcc, 0, %s" % vr(T))
        a("s_cbranch_vccnz %s" % L)
        a("v_cmp_ne_u32 vcc, 0, %s" % vr(T + 1))
        a("s_cbranch_vccz %s" % Lgot)
        self.flag_add(F_REM, VZ, V1)
        a(Lgot + ":")
        self.stamp(3)
        for hd in range(4):
            b = G + 16 * hd
            for e in range(2):
                a("v_add_f32 %s, %s, %s" % (vr(b + e), vr(b + e), vr(b + 4 + e)))
                a("v_add_f32 %s, %s, %s" % (vr(b + 8 + e), vr(b + 8 + e), vr(b + 12 + e)))
            for e in range(2):
                a("v_add_f32 %s, %s, %s" % (vr(b + e), vr(b + e), vr(b + 8 + e)))
            a("v_cvt_pk_bf16_f32 %s, %s, %s" % (vr(b), vr(b), vr(b + 1)))
        a("""
        v_lshrrev_b32 v72, 5, v0              ; cb_local
        v_lshlrev_b32 v72, 7, v72             ; 64 columns * 2 B
        v_and_b32 v73, 7, v0
        v_lshl_add_u32 v72, v73, 4, v72       ; 8 n * 2 B
        v_bfe_u32 v73, v0, 3, 1
        v_lshl_add_u32 v72, v73, 3, v72       ; 4 g' * 2 B
        v_bfe_u32 v73, v0, 4, 1
        v_lshl_add_u32 v72, v73, 2, v72       ; 2 s * 2 B
        """)
        for hd in range(4):
            a("ds_write_b32 v72, %s offset:%d" % (vr(G + 16 * hd), L_Q + 320 * hd))
        self.flag_add(F_Q, VZ, V1)
        self.stamp(4)
        SA, GA, BA = 4, 5, 6
        a("""
        s_lshl_b32 s41, s26, 17
        s_lshl_b32 s42, s27, 12
        s_add_u32 s41, s41, s42
        s_add_u32 s41, s41, %d
        v_lshrrev_b32 v3, 2, v0
        v_lshlrev_b32 v3, 7, v3
        v_and_b32 v7, 3, v0
        v_lshl_add_u32 v3, v7, 4, v3
        v_add_u32 %s, s41, v3
        s_lshl_b32 s41, s27, 11
        s_lshl_b32 s42, s26, 8
        s_add_u32 s41, s41, s42
        s_add_u32 s41, s41, %d
        v_lshl_add_u32 %s, v0, 4, s41
        """ % (H2 + 64, vr(SA), H3B, vr(BA)))
        self.read_mode(VZ, T)
        if self.sinit:
            for i in range(4):
                a("v_mov_b32 %s, 0" % vr(56 + i))
            for i in range(4):
                a("global_store_dwordx4 %s, v[56:59], %s offset:%d" % (vr(SA), sp(S_WS), 1024 * i))
            a("s_waitcnt vmcnt(0)")
            self.flag_add(F_INIT, VZ, V1)
        GS = 40
        GG, GAD, GW = 24, 44, 48
        a("v_mov_b32 %s, 0" % vr(GS))
        a("v_mov_b32 %s, 0" % vr(GS + 1))
        Lng = a.newlabel("NG")
        a("s_cmp_eq_u32 s49, 0")
        a("s_cbranch_scc1 %s" % Lng)
        a("""
        s_lshl_b32 s41, s26, 14
        s_lshl_b32 s42, s27, 9
        s_add_u32 s41, s41, s42
        s_add_u32 s41, s41, %d
        s_lshr_b32 s42, s49, 3
        v_bfe_u32 v52, v0, 3, 2
        v_cmp_gt_u32 vcc, s42, v52
        v_and_b32 v53, 31, v0
        v_and_b32 v54, 7, v0
        v_cndmask_b32 v53, v54, v53, vcc
        v_lshl_add_u32 %s, v53, 4, s41
        v_mov_b32 v54, 1.0
        v_cndmask_b32 %s, v1, v54, vcc
        """ % (H3G, vr(GAD), vr(GW)))
        def fill_s():
            for i in range(4):
                a("global_load_dwordx4 %s, %s, %s offset:%d sc1" % (vr(60 + 4 * i, 4), vr(SA), sp(S_MB), 1024 * i))
        if self.odelay:
            self.flag_wait(F_O, 1, VZ, T, sleep=1)
        elif self.spf == 1 or not self.ggate:
            self.flag_wait(F_OPUB, 4, VZ, T, sleep=1)
        if self.spf == 1:
            fill_s()
        if self.ggate == 1:
            self.flag_wait(F_WO, 1, VZ, T, sleep=1)
        if self.spf == 4:
            fill_s()
        self.poll([(GG, GAD, 0)], S_MB, cnt=15, plain_first=bool(self.plain0 & 4))
        if self.spf == 3:
            for i in range(4):
                a("global_load_dwordx4 %s, %s, %s offset:%d sc1" % (vr(60 + 4 * i, 4), vr(SA), sp(S_MB), 1024 * i))
        for e in range(2):
            a("v_mul_f32 %s, %s, %s" % (vr(GS + e), vr(GW), vr(GG + e)))
        self.xor_reduce("v_add_f32", [GS, GS + 1], [8, 16], T)
        a(Lng + ":")
        a("v_bfe_u32 v3, v0, 2, 1")
        a("v_bfe_u32 v7, v0, 3, 1")
        a("v_cmp_eq_u32 s[42:43], 1, v3")
        a("v_cmp_eq_u32 s[58:59], 1, v7")
        self.stamp(5)
        if self.sgate:
            self.flag_wait(F_SPUB, 4, VZ, T)
        else:
            L = a.newlabel("O")
            a("s_mov_b32 s%d, 0" % S_CNT)
            a(L + ":")
            a("ds_read_b32 %s, %s offset:%d" % (vr(T), vr(VZ), L_O + 4))
            a("s_add_u32 s%d, s%d, 1" % (S_CNT, S_CNT))
            a("s_cmp_gt_u32 s%d, %d" % (S_CNT, SPIN_MAX))
            a("s_cbranch_scc1 L_end")
            a("s_waitcnt lgkmcnt(0)")
            a("v_readfirstlane_b32 s%d, %s" % (S_TMP, vr(T)))
            a("s_cmp_lg_u32 s%d, 1" % S_TMP)
            a("s_cbranch_scc1 %s" % L)
        if self.sdelay:
            a("s_sleep %d" % self.sdelay)
        self.stamp(6)
        self.poll_mixed([(G + 4 * i, SA, 2048 * i, "e") for i in range(2)], S_MB, T, cnt=13)
        self.stamp(7)
        for k in range(8):
            a("v_and_b32 %s, s%d, %s" % (vr(G + k), S_EN, vr(G + k)))
        for k in range(4):
            a("v_add_f32 %s, %s, %s" % (vr(G + k), vr(G + k), vr(G + 4 + k)))
        self.xor_reduce("v_add_f32", [G, G + 1, G + 2, G + 3], ["r4", 8, 16, 32], T)
        a("v_cndmask_b32 %s, %s, %s, s[42:43]" % (vr(G), vr(G), vr(G + 2)))
        a("v_cndmask_b32 %s, %s, %s, s[42:43]" % (vr(G + 1), vr(G + 1), vr(G + 3)))
        a("v_mov_b32 %s, s%d" % (vr(G + 2), S_T))
        a("v_mov_b32 %s, s%d" % (vr(G + 3), S_T + 1))
        a("v_cndmask_b32 %s, %s, %s, s[58:59]" % (vr(G), vr(G), vr(GS)))
        a("v_cndmask_b32 %s, %s, %s, s[58:59]" % (vr(G + 1), vr(G + 1), vr(GS + 1)))
        a("s_mov_b64 exec, 0xffff")
        a("global_store_dwordx4 %s, %s, %s sc1" % (vr(BA), vr(G, 4), sp(S_WS)))
        a("s_mov_b64 exec, -1")
        self.stamp(8)
        Lf = a.newlabel("F")
        a("s_cmp_ge_u32 s27, 28")
        a("s_cbranch_scc1 %s" % Lf)
        self.end(T)
        a(Lf + ":")
        self.role = "C2F"
        G = 12
        if self.fstag:
            self.poll_staggered([(G, FA, 0), (G + 4, FA, 128)], [24, 28], [32, 36], S_WS, self.fstag)
            G = 32
        else:
            self.poll([(G, FA, 0), (G + 4, FA, 128)], S_WS, cnt=14)
        self.stamp(9)
        self.xor_reduce("v_add_f32", [G, G + 1, G + 4, G + 5], [8, 16, 32], T)
        a("v_cvt_pk_bf16_f32 %s, %s, %s" % (vr(G), vr(G), vr(G + 1)))
        a("v_cvt_pk_bf16_f32 %s, %s, %s" % (vr(G + 4), vr(G + 4), vr(G + 5)))
        a("v_and_b32 %s, 0xffff0000, %s" % (vr(G + 1), vr(G)))
        a("v_lshlrev_b32 %s, 16, %s" % (vr(G), vr(G)))
        a("v_and_b32 %s, 0xffff0000, %s" % (vr(G + 5), vr(G + 4)))
        a("v_lshlrev_b32 %s, 16, %s" % (vr(G + 4), vr(G + 4)))
        for e in range(2):
            a("v_mul_f32 %s, 0x%x, %s" % (vr(G + 8 + e), LOG2E ^ 0x80000000, vr(G + 4 + e)))
        for e in range(2):
            a("v_exp_f32 %s, %s" % (vr(G + 8 + e), vr(G + 8 + e)))
        a("s_nop 0")
        for e in range(2):
            a("v_add_f32 %s, 1.0, %s" % (vr(G + 8 + e), vr(G + 8 + e)))
        for e in range(2):
            a("v_rcp_f32 %s, %s" % (vr(G + 8 + e), vr(G + 8 + e)))
        a("s_nop 0")
        for e in range(2):
            a("v_mul_f32 %s, %s, %s" % (vr(G + 4 + e), vr(G + 4 + e), vr(G + 8 + e)))
        a("v_cvt_pk_bf16_f32 %s, %s, %s" % (vr(G + 4), vr(G + 4), vr(G + 5)))
        a("v_and_b32 %s, 0xffff0000, %s" % (vr(G + 5), vr(G + 4)))
        a("v_lshlrev_b32 %s, 16, %s" % (vr(G + 4), vr(G + 4)))
        for e in range(2):
            a("v_mul_f32 %s, %s, %s" % (vr(G + e), vr(G + e), vr(G + 4 + e)))
        a("v_cvt_pk_bf16_f32 %s, %s, %s" % (vr(G), vr(G), vr(G + 1)))
        a("v_and_b32 %s, 0xffff0000, %s" % (vr(G + 1), vr(G)))
        a("v_lshlrev_b32 %s, 16, %s" % (vr(G), vr(G)))
        a("v_and_b32 %s, 0xffff0000, %s" % (vr(G + 5), vr(XF)))
        a("v_lshlrev_b32 %s, 16, %s" % (vr(G + 4), vr(XF)))
        for e in range(2):
            a("v_add_f32 %s, %s, %s" % (vr(G + e), vr(G + e), vr(G + 4 + e)))
        a("v_cvt_pk_bf16_f32 %s, %s, %s" % (vr(G), vr(G), vr(G + 1)))
        a("s_mov_b64 exec, 0xff")
        a("global_store_dword %s, %s, %s" % (vr(OUTA), vr(G), sp(S_OUT)))
        Le = a.newlabel("E")
        a("s_cmp_lg_u32 s45, 0")
        a("s_cbranch_scc1 %s" % Le)
        a("s_mov_b64 exec, 1")
        a("v_mov_b32 %s, s%d" % (vr(G + 2), S_T))
        a("v_mov_b32 %s, s%d" % (vr(G + 3), S_T + 1))
        a("global_store_dwordx2 v1, %s, %s offset:%d sc1" % (vr(G + 2, 2), sp(S_WS), EPOCH))
        a(Le + ":")
        a("s_mov_b64 exec, -1")
        self.stamp(10)
        self.end(T)

    def build(self):
        self.prologue()
        self.role_c0()
        self.role_c1()
        self.role_c2()
        self.role_a()
        self.role_l()
        self.a("L_end:\ns_endpgm\nL_code_end:")
        return wrap(self.a.text(), 256, 512, LDS_BYTES, 192, sgpr=96)


def generate(**kw):
    return Gen(**kw).build()


if __name__ == "__main__":
    out = sys.argv[1] if len(sys.argv) > 1 else "cdna_kernels/%s.s" % NAME
    kw = {}
    for arg in sys.argv[2:]:
        k, v = arg.split("=")
        kw[k] = {"True": True, "False": False}.get(v, v)
    open(out, "w").write(generate(**kw))
    print("wrote", out)
```

```python
import sys
from asmgen import Asm, wrap, NAME

REGB = 0x400000
EPOCH = 0x0
H1 = 0x10000
ST = 0x50000
H3B = 0x70000
HB = 0x80000
H2 = 0x100000
H3S = 0x200000
H3G = 0x300000
STAMP_OFF = 256 << 20

L_Q = 0x0000
L_P = 0x0800
L_MX = 0x1800
L_O = 0x1AC0
L_XQ = 0x1880
L_XH = 0x1980
L_F = 0x1A80
L_K = 0x2000
L_V = 0xA000
L_WO = 0x12000
L_W2 = 0x16000
L_W1 = 0x1A000
F_V, F_INIT, F_Q, F_REM, F_K, F_MAX, F_P, F_ST, F_QPUB, F_OPUB, F_O, F_W1, F_SPUB, F_WO, F_W2, F_HPUB = [L_F + 4 * i for i in range(16)]
LDS_BYTES = 0x1E000

S_X, S_K, S_V, S_WQ, S_WO, S_W1, S_W2, S_OUT, S_WS = 4, 6, 8, 10, 12, 16, 18, 20, 24
S_G, S_C, S_W = 26, 27, 28
S_T = 30
S_XCC = 32
S_MODE = 33
S_MB = 34
S_T1X = 36
S_ISB = 38
S_CNT = 39
S_TMP = 40
S_E = 52
S_EM, S_EN = 56, 57
S_STAMP = 60

LOG2E = 0x3fb8aa3b
SCALE = 0x3db504f3
A_TIMEOUT = 8
SPIN_MAX = 1 << 20
POLL_MAX = 1 << 16


def sp(n):
    return "s[%d:%d]" % (n, n + 1)


def vr(n, k=1):
    return "v%d" % n if k == 1 else "v[%d:%d]" % (n, n + k - 1)


class Gen:
    def __init__(self, stamps=False, nt_kv="nt", nt_w="nt", force_global=False, mimic=True, window=16, nb_lo=32, nb_hi=24, order="k2v|o", code_pf=1, dbg=0, ileave=1, hold=0, init=2, w2=40, chk=4, init_late=0, ogate=4, sdelay=0, trace=0, sinit=0, sgate=1, spf=0, ofill=0, scramble=0, qack=1, qsleep=0, ggate=0, fstag=5, kgate=1, w1gate=0, odelay=0, prefill=0, plain0=0, atimeout=A_TIMEOUT, lprio=2, aprio=1, st_nt="", lazyb=0):
        self.a = Asm()
        self.window = int(window)
        self.nb_lo = int(nb_lo)
        self.nb_hi = int(nb_hi)
        self.order = order
        self.code_pf = int(code_pf)
        self.dbg = int(dbg)
        self.role = None
        if self.dbg:
            self.stamps = stamps = True
        self.ileave = int(ileave)
        self.hold = int(hold)
        self.init = int(init)
        self.w2 = int(w2)
        self.chk = int(chk)
        self.init_late = int(init_late)
        self.ogate = int(ogate)
        self.sdelay = int(sdelay)
        self.trace = int(trace)
        self.sinit = int(sinit)
        self.sgate = int(sgate)
        self.spf = int(spf)
        self.ofill = int(ofill)
        self.scramble = int(scramble)
        self.qack = int(qack)
        self.qsleep = int(qsleep)
        self.ggate = int(ggate)
        self.fstag = int(fstag)
        self.kgate = int(kgate)
        self.w1gate = int(w1gate)
        self.odelay = int(odelay)
        self.prefill = int(prefill)
        self.plain0 = int(plain0)
        self.atimeout = int(atimeout)
        self.lprio = int(lprio)
        self.st_nt = st_nt
        self.lazyb = int(lazyb)
        self.aprio = int(aprio)
        assert 4 * self.nb_lo + 4 * self.nb_hi == 224 and self.nb_lo % 8 == 0 and self.nb_hi % 8 == 0
        self.stamps = stamps
        self.nt_kv = nt_kv
        self.nt_w = nt_w
        self.force_global = force_global
        self.mimic = mimic
        self.nstamp = 0

    def stamp(self, idx):
        if self.stamps:
            self.a("s_memrealtime %s" % sp(S_STAMP + 2 * idx))

    def flag_add(self, flag, vz, vone):
        a = self.a
        a("s_mov_b64 exec, 1")
        a("ds_add_u32 %s, %s offset:%d" % (vr(vz), vr(vone), flag))
        a("s_mov_b64 exec, -1")

    def flag_set(self, flag, val, vz, vt):
        a = self.a
        a("v_mov_b32 %s, %d" % (vr(vt), val))
        a("s_mov_b64 exec, 1")
        a("ds_write_b32 %s, %s offset:%d" % (vr(vz), vr(vt), flag))
        a("s_mov_b64 exec, -1")

    def flag_wait(self, flag, n, vz, vt, sleep=0):
        a = self.a
        L, Lgo = a.newlabel("W"), a.newlabel("W")
        a("s_mov_b32 s%d, 0" % S_CNT)
        a(L + ":")
        a("ds_read_b32 %s, %s offset:%d" % (vr(vt), vr(vz), flag))
        a("s_waitcnt lgkmcnt(0)")
        a("v_readfirstlane_b32 s%d, %s" % (S_TMP, vr(vt)))
        a("s_cmp_ge_u32 s%d, %d" % (S_TMP, n))
        a("s_cbranch_scc1 %s" % Lgo)
        if sleep:
            a("s_sleep %d" % sleep)
        a("s_add_u32 s%d, s%d, 1" % (S_CNT, S_CNT))
        a("s_cmp_lt_u32 s%d, %d" % (S_CNT, SPIN_MAX))
        a("s_cbranch_scc1 %s" % L)
        a("s_branch L_end")
        a(Lgo + ":")

    def store_mode(self, vaddr, vdata, n=4):
        a = self.a
        L1, L2 = a.newlabel("S"), a.newlabel("S")
        op = "global_store_dwordx%d" % n
        a("s_cmp_lg_u32 s%d, 0" % S_MODE)
        a("s_cbranch_scc1 %s" % L1)
        a("%s %s, %s, %s %s" % (op, vr(vaddr), vr(vdata, n), sp(S_MB), self.st_nt))
        a("s_branch %s" % L2)
        a(L1 + ":")
        a("%s %s, %s, %s sc1" % (op, vr(vaddr), vr(vdata, n), sp(S_MB)))
        a(L2 + ":")

    def poll_traced(self, loads, base, first_stamp, npass=4):
        a = self.a
        Lok = a.newlabel("PT")
        n = len(loads)
        for k in range(npass):
            a("s_memrealtime %s" % sp(S_STAMP + 2 * (first_stamp + k)))
            for (vd, va, off) in loads:
                a("global_load_dwordx4 %s, %s, %s offset:%d sc1" % (vr(vd, 4), vr(va), sp(base), off))
            for i, (vd, va, off) in enumerate(loads):
                a("s_waitcnt vmcnt(%d)" % (n - 1 - i))
                dst = "vcc" if i == 0 else sp(S_TMP)
                a("v_cmp_ne_u64 %s, %s, %s" % (dst, vr(vd + 2, 2), sp(S_T)))
                if i:
                    a("s_or_b64 vcc, vcc, %s" % sp(S_TMP))
            a("s_cbranch_vccz %s" % Lok)
        self.poll(loads, base)
        a(Lok + ":")

    def poll(self, loads, base, tag=S_T, limit=POLL_MAX, on_timeout="L_end", cnt=None, plain_first=False):
        a = self.a
        L, Lok = a.newlabel("P"), a.newlabel("P")
        n = len(loads)

        def one_pass(flag):
            for (vd, va, off) in loads:
                a("global_load_dwordx4 %s, %s, %s offset:%d %s" % (vr(vd, 4), vr(va), sp(base), off, flag))
            for i, (vd, va, off) in enumerate(loads):
                a("s_waitcnt vmcnt(%d)" % (n - 1 - i))
                dst = "vcc" if i == 0 else sp(S_TMP)
                a("v_cmp_ne_u64 %s, %s, %s" % (dst, vr(vd + 2, 2), sp(tag)))
                if i:
                    a("s_or_b64 vcc, vcc, %s" % sp(S_TMP))
            a("s_cbranch_vccz %s" % Lok)
        a("s_mov_b32 s%d, 0" % S_CNT)
        if plain_first:
            one_pass("")
        a(L + ":")
        one_pass("sc1")
        a("s_add_u32 s%d, s%d, 1" % (S_CNT, S_CNT))
        a("s_cmp_le_u32 s%d, %d" % (S_CNT, limit))
        a("s_cbranch_scc1 %s" % L)
        a("s_branch %s" % on_timeout)
        a(Lok + ":")
        if cnt is not None and self.stamps:
            a("s_mov_b32 s%d, s%d" % (S_STAMP + 2 * cnt, S_CNT))

    def poll_mixed(self, loads, base, tmp, cnt=None):
        a = self.a
        L, Lok = a.newlabel("P"), a.newlabel("P")
        n = len(loads)
        a("s_mov_b32 s%d, 0" % S_CNT)
        a(L + ":")
        for (vd, va, off, kind) in loads:
            a("global_load_dwordx4 %s, %s, %s offset:%d sc1" % (vr(vd, 4), vr(va), sp(base), off))
        first_t, first_e = True, True
        for i, (vd, va, off, kind) in enumerate(loads):
            a("s_waitcnt vmcnt(%d)" % (n - 1 - i))
            if kind == "t":
                a("v_cmp_ne_u64 %s, %s, %s" % (sp(46) if first_t else sp(S_TMP), vr(vd + 2, 2), sp(S_T)))
                if not first_t:
                    a("s_or_b64 s[46:47], s[46:47], %s" % sp(S_TMP))
                first_t = False
            else:
                for k in range(4):
                    a("v_xor_b32 %s, s%d, %s" % (vr(tmp + 1 + k), S_E + k, vr(vd + k)))
                if first_e:
                    a("v_or3_b32 %s, %s, %s, %s" % (vr(tmp), vr(tmp + 1), vr(tmp + 2), vr(tmp + 3)))
                    a("v_or_b32 %s, %s, %s" % (vr(tmp), vr(tmp), vr(tmp + 4)))
                else:
                    a("v_or3_b32 %s, %s, %s, %s" % (vr(tmp), vr(tmp), vr(tmp + 1), vr(tmp + 2)))
                    a("v_or3_b32 %s, %s, %s, %s" % (vr(tmp), vr(tmp), vr(tmp + 3), vr(tmp + 4)))
                first_e = False
        a("v_and_b32 %s, s%d, %s" % (vr(tmp), S_EM, vr(tmp)))
        a("v_cmp_ne_u32 vcc, 0, %s" % vr(tmp))
        if not first_t:
            a("s_or_b64 vcc, vcc, s[46:47]")
        a("s_cbranch_vccz %s" % Lok)
        a("s_add_u32 s%d, s%d, 1" % (S_CNT, S_CNT))
        a("s_cmp_le_u32 s%d, %d" % (S_CNT, POLL_MAX))
        a("s_cbranch_scc1 %s" % L)
        a("s_branch L_end")
        a(Lok + ":")
        if cnt is not None and self.stamps:
            a("s_mov_b32 s%d, s%d" % (S_STAMP + 2 * cnt, S_CNT))

    def poll_staggered(self, loads, alt, dst, base, sleep):
        a = self.a
        n = len(loads)
        L, LA, LB = a.newlabel("PS"), a.newlabel("PS"), a.newlabel("PS")

        def issue(regs):
            for (vd, (_, va, off)) in zip(regs, loads):
                a("global_load_dwordx4 %s, %s, %s offset:%d sc1" % (vr(vd, 4), vr(va), sp(base), off))

        def check(regs, ok):
            for i, vd in enumerate(regs):
                a("s_waitcnt vmcnt(%d)" % (2 * n - 1 - i))
                dst = "vcc" if i == 0 else sp(S_TMP)
                a("v_cmp_ne_u64 %s, %s, %s" % (dst, vr(vd + 2, 2), sp(S_T)))
                if i:
                    a("s_or_b64 vcc, vcc, %s" % sp(S_TMP))
            a("s_cbranch_vccz %s" % ok)
        ra = [vd for (vd, _, _) in loads]
        a("s_mov_b32 s%d, 0" % S_CNT)
        issue(ra)
        a("s_sleep %d" % sleep)
        a(L + ":")
        issue(alt)
        check(ra, LA)
        issue(ra)
        check(alt, LB)
        a("s_add_u32 s%d, s%d, 1" % (S_CNT, S_CNT))
        a("s_cmp_le_u32 s%d, %d" % (S_CNT, POLL_MAX))
        a("s_cbranch_scc1 %s" % L)
        a("s_branch L_end")
        Ld = a.newlabel("PS")
        a(LB + ":")
        for (x, y) in zip(dst, alt):
            for k in range(2):
                a("v_mov_b32 %s, %s" % (vr(x + k), vr(y + k)))
        a("s_branch %s" % Ld)
        a(LA + ":")
        for (x, y) in zip(dst, ra):
            for k in range(2):
                a("v_mov_b32 %s, %s" % (vr(x + k), vr(y + k)))
        a(Ld + ":")

    def xor_reduce(self, op, regs, steps, tmp):
        a = self.a
        first_dpp = True
        for st in steps:
            if st in (16, 32):
                ins = "v_permlane16_swap_b32" if st == 16 else "v_permlane32_swap_b32"
                for i, r in enumerate(regs):
                    a("v_mov_b32 %s, %s" % (vr(tmp + i), vr(r)))
                if len(regs) < 3:
                    a("s_nop %d" % (2 - len(regs)))
                for i, r in enumerate(regs):
                    a("%s %s, %s" % (ins, vr(r), vr(tmp + i)))
                for i, r in enumerate(regs):
                    a("%s %s, %s, %s" % (op, vr(r), vr(r), vr(tmp + i)))
            else:
                ctl = {1: "quad_perm:[1,0,3,2]", 2: "quad_perm:[2,3,0,1]", "hm": "row_half_mirror", "m": "row_mirror", 8: "row_ror:8", "r4": "row_ror:4"}[st]
                a("s_nop 1" if first_dpp or len(regs) < 3 else "s_nop 0")
                first_dpp = False
                for r in regs:
                    a("%s_dpp %s, %s, %s %s row_mask:0xf bank_mask:0xf" % (op, vr(r), vr(r), vr(r), ctl))

    def read_mode(self, vz, vt):
        a = self.a
        a("ds_read_b32 %s, %s offset:%d" % (vr(vt), vr(vz), F_REM))
        a("s_waitcnt lgkmcnt(0)")
        a("v_readfirstlane_b32 s%d, %s" % (S_MODE, vr(vt)))
        if self.force_global:
            a("s_mov_b32 s%d, 1" % S_MODE)
        a("s_min_u32 s%d, s%d, 1" % (S_MODE, S_MODE))
        a("s_mul_i32 s%d, s%d, %d" % (S_TMP, S_MODE, REGB))
        a("s_add_u32 s%d, s%d, s%d" % (S_MB, S_WS, S_TMP))
        a("s_addc_u32 s%d, s%d, 0" % (S_MB + 1, S_WS + 1))

    def tags(self):
        a = self.a
        a("s_getreg_b32 s32, hwreg(HW_REG_XCC_ID, 0, 4)")
        a("s_waitcnt lgkmcnt(0)")
        a("s_add_u32 s%d, s%d, 0x9E3779B9" % (S_T, S_T))
        a("s_add_u32 s%d, s%d, 0x7F4A7C00" % (S_T + 1, S_T + 1))
        a("s_and_b32 s%d, s%d, 0xFFFFFFE0" % (S_T + 1, S_T + 1))
        a("s_or_b32 s%d, s%d, 0x10" % (S_T + 1, S_T + 1))
        a("s_mov_b32 s%d, s%d" % (S_T1X, S_T))
        a("s_or_b32 s%d, s%d, s%d" % (S_T1X + 1, S_T + 1, S_XCC))
        a("s_and_b32 s%d, s%d, 0x3ff" % (S_E, S_T))
        a("s_bfe_u32 s%d, s%d, 0xA000A" % (S_E + 1, S_T))
        a("s_bfe_u32 s%d, s%d, 0xA0014" % (S_E + 2, S_T))
        a("s_bfe_u32 s%d, s%d, 0xA0008" % (S_E + 3, S_T + 1))
        a("s_movk_i32 s%d, 0x3ff" % S_EM)
        a("s_mov_b32 s%d, 0xfffffc00" % S_EN)

    DBG_MAP = {"A": {0: [(0, True), (1, False)], 1: [(12, False)], 3: [(5, False)], 6: [(7, False)], 7: [(9, False)]},
               "C0": {2: [(14, False)], 4: [(15, False)], 5: [(3, False)], 9: [(8, False)]},
               "C1B": {5: [(13, False)]},
               "C2": {4: [(4, False)], 8: [(10, False)]},
               "C2F": {4: [(4, False)], 8: [(10, False)], 10: [(11, False)]},
               "L": {1: [(2, False)], 3: [(6, False)]}}

    def dump_stamps(self, vt):
        if not self.stamps:
            return
        a = self.a
        if self.dbg:
            a("s_waitcnt lgkmcnt(0)")
            a("s_mov_b64 exec, 1")
            a("v_mov_b32 %s, 0" % vr(vt))
            for st, outs in self.DBG_MAP.get(self.role, {}).items():
                for slot, inv in outs:
                    a("v_mov_b32 %s, s%d" % (vr(vt + 1), S_STAMP + 2 * st))
                    if inv:
                        a("v_not_b32 %s, %s" % (vr(vt + 1), vr(vt + 1)))
                    a("global_atomic_umax %s, %s, s[22:23] offset:%d" % (vr(vt), vr(vt + 1), 4 * slot))
            return
        a("s_waitcnt lgkmcnt(0)")
        a("s_lshl_b32 s%d, s2, 3" % S_TMP)
        a("s_add_u32 s%d, s%d, s%d" % (S_TMP, S_TMP, S_W))
        a("s_lshl_b32 s%d, s%d, 6" % (S_TMP, S_TMP))
        a("s_add_u32 s%d, s%d, %d" % (S_TMP, S_TMP, STAMP_OFF))
        a("s_mov_b64 exec, 1")
        a("v_mov_b32 %s, s%d" % (vr(vt), S_TMP))
        for i in range(16):
            a("v_mov_b32 %s, s%d" % (vr(vt + 1), S_STAMP + 2 * i))
            a("global_store_dword %s, %s, %s offset:%d" % (vr(vt), vr(vt + 1), sp(S_WS), 4 * i))

    def end(self, vt):
        self.dump_stamps(vt)
        self.a("s_endpgm")

    def layernorm_rows(self, base, lds_x, VZ, rows=128):
        a = self.a
        xs, xp = base, base + 4
        f = base + 16
        t = base + 24
        for i in range(4):
            a("v_lshlrev_b32 %s, 16, %s" % (vr(f + 2 * i), vr(xs + i)))
            a("v_and_b32 %s, 0xffff0000, %s" % (vr(f + 2 * i + 1), vr(xs + i)))
        a("v_add_f32 %s, %s, %s" % (vr(t), vr(f), vr(f + 1)))
        a("v_add_f32 %s, %s, %s" % (vr(t + 1), vr(f + 2), vr(f + 3)))
        a("v_add_f32 %s, %s, %s" % (vr(t + 2), vr(f + 4), vr(f + 5)))
        a("v_add_f32 %s, %s, %s" % (vr(t + 3), vr(f + 6), vr(f + 7)))
        a("v_add_f32 %s, %s, %s" % (vr(t), vr(t), vr(t + 1)))
        a("v_add_f32 %s, %s, %s" % (vr(t + 2), vr(t + 2), vr(t + 3)))
        a("v_add_f32 %s, %s, %s" % (vr(t), vr(t), vr(t + 2)))
        self.xor_reduce("v_add_f32", [t], [1, 2, "hm", "m", 16, 32], t + 4)
        a("v_mul_f32 %s, 0x3b000000, %s" % (vr(t), vr(t)))
        for i in range(8):
            a("v_sub_f32 %s, %s, %s" % (vr(f + i), vr(f + i), vr(t)))
        a("v_mul_f32 %s, %s, %s" % (vr(t + 1), vr(f), vr(f)))
        a("v_mul_f32 %s, %s, %s" % (vr(t + 2), vr(f + 1), vr(f + 1)))
        for i in range(2, 8, 2):
            a("v_fmac_f32 %s, %s, %s" % (vr(t + 1), vr(f + i), vr(f + i)))
            a("v_fmac_f32 %s, %s, %s" % (vr(t + 2), vr(f + i + 1), vr(f + i + 1)))
        a("v_add_f32 %s, %s, %s" % (vr(t + 1), vr(t + 1), vr(t + 2)))
        self.xor_reduce("v_add_f32", [t + 1], [1, 2, "hm", "m", 16, 32], t + 4)
        a("v_mul_f32 %s, 0x3b000000, %s" % (vr(t + 1), vr(t + 1)))
        a("v_cvt_pk_bf16_f32 %s, %s, %s" % (vr(t + 2), vr(t), vr(t + 1)))
        a("v_lshlrev_b32 %s, 16, %s" % (vr(t), vr(t + 2)))
        a("v_and_b32 %s, 0xffff0000, %s" % (vr(t + 1), vr(t + 2)))
        a("v_add_f32 %s, 0x3727c5ac, %s" % (vr(t + 1), vr(t + 1)))
        a("v_cvt_pk_bf16_f32 %s, %s, %s" % (vr(t + 1), vr(t + 1), vr(t + 1)))
        a("v_and_b32 %s, 0xffff0000, %s" % (vr(t + 1), vr(t + 1)))
        a("v_sqrt_f32 %s, %s" % (vr(t + 1), vr(t + 1)))
        a("s_nop 0")
        a("v_cvt_pk_bf16_f32 %s, %s, %s" % (vr(t + 1), vr(t + 1), vr(t + 1)))
        a("v_and_b32 %s, 0xffff0000, %s" % (vr(t + 1), vr(t + 1)))
        a("v_rcp_f32 %s, %s" % (vr(t + 2), vr(t + 1)))
        a("v_lshlrev_b32 %s, 16, %s" % (vr(f), vr(xp)))
        a("v_and_b32 %s, 0xffff0000, %s" % (vr(f + 1), vr(xp)))
        a("v_sub_f32 %s, %s, %s" % (vr(f), vr(f), vr(t)))
        a("v_sub_f32 %s, %s, %s" % (vr(f + 1), vr(f + 1), vr(t)))
        a("v_cvt_pk_bf16_f32 %s, %s, %s" % (vr(f), vr(f), vr(f + 1)))
        a("v_and_b32 %s, 0xffff0000, %s" % (vr(f + 1), vr(f)))
        a("v_lshlrev_b32 %s, 16, %s" % (vr(f), vr(f)))
        for i in range(2):
            a("v_mul_f32 %s, %s, %s" % (vr(f + 2 + i), vr(f + i), vr(t + 2)))
        for i in range(2):
            a("v_fma_f32 %s, -%s, %s, %s" % (vr(f + 4 + i), vr(f + 2 + i), vr(t + 1), vr(f + i)))
        for i in range(2):
            a("v_fmac_f32 %s, %s, %s" % (vr(f + 2 + i), vr(f + 4 + i), vr(t + 2)))
        a("v_cvt_pk_bf16_f32 %s, %s, %s" % (vr(f), vr(f + 2), vr(f + 3)))
        if rows == 128:
            a("v_lshlrev_b32 %s, 2, v0" % vr(t))
        else:
            a("v_and_b32 %s, 31, v0" % vr(t))
            a("v_lshlrev_b32 %s, 2, %s" % (vr(t), vr(t)))
        a("ds_write_b32 %s, %s offset:%d" % (vr(t), vr(f), lds_x))
        a("v_lshrrev_b32 %s, 3, v0" % vr(t))
        a("v_lshlrev_b32 %s, %d, %s" % (vr(t), 5 if rows == 128 else 4, vr(t)))
        a("ds_read_b128 %s, %s offset:%d" % (vr(base + 8, 4), vr(t), lds_x))
        if rows == 128:
            a("ds_read_b128 %s, %s offset:%d" % (vr(base + 12, 4), vr(t), lds_x + 16))

    def selectors(self, sel, tmp, both_parities):
        a = self.a
        a("v_and_b32 %s, 15, v0" % vr(tmp))
        a("v_and_b32 %s, 1, %s" % (vr(tmp + 1), vr(tmp)))
        a("v_bfe_u32 %s, %s, 1, 2" % (vr(tmp + 2), vr(tmp)))
        if not both_parities:
            a("v_lshrrev_b32 %s, 3, %s" % (vr(tmp + 3), vr(tmp)))
            a("v_lshl_add_u32 %s, %s, 2, %s" % (vr(tmp + 2), vr(tmp + 3), vr(tmp + 2)))
        a("v_cmp_eq_u32 vcc, 1, %s" % vr(tmp + 1))
        a("v_mov_b32 %s, 0x0c0c0100" % vr(tmp + 3))
        a("v_mov_b32 %s, 0x01000c0c" % vr(tmp + 4))
        a("v_cndmask_b32 %s, %s, %s, vcc" % (vr(tmp + 5), vr(tmp + 3), vr(tmp + 4)))
        a("v_mov_b32 %s, 0x0c0c0302" % vr(tmp + 3))
        a("v_mov_b32 %s, 0x03020c0c" % vr(tmp + 4))
        a("v_cndmask_b32 %s, %s, %s, vcc" % (vr(tmp + 6), vr(tmp + 3), vr(tmp + 4)))
        a("v_mov_b32 %s, 0x0c0c0c0c" % vr(tmp + 3))
        for t in range(4):
            a("v_cmp_eq_u32 vcc, %d, %s" % (t, vr(tmp + 2)))
            a("s_nop 1")
            a("v_cndmask_b32 %s, %s, %s, vcc" % (vr(sel + t), vr(tmp + 3), vr(tmp + 5)))
            a("v_cndmask_b32 %s, %s, %s, vcc" % (vr(sel + 4 + t), vr(tmp + 3), vr(tmp + 6)))

    def tile_gemv(self, W, XN, SEL, AF, ACC, nafter):
        a = self.a
        for i in range(16):
            for t in range(4):
                a("v_perm_b32 %s, %s, %s, %s" % (vr(AF + 4 * i + t), vr(XN + (i >> 1)), vr(XN + (i >> 1)), vr(SEL + 4 * (i & 1) + t)))
        for i in range(16):
            a("s_waitcnt vmcnt(%d)" % (15 - i + nafter))
            a("v_mfma_f32_16x16x32_bf16 %s, %s, %s, %s" % (vr(ACC, 4), vr(AF + 4 * i, 4), vr(W + 4 * i, 4), "0" if i == 0 else vr(ACC, 4)))
        a("s_nop 7")
        a("v_permlane32_swap_b32 %s, %s" % (vr(ACC), vr(ACC + 2)))
        a("v_permlane32_swap_b32 %s, %s" % (vr(ACC + 1), vr(ACC + 3)))
        a("s_nop 1")
        a("v_add_f32_dpp %s, %s, %s row_ror:8 row_mask:0xf bank_mask:0xf" % (vr(ACC), vr(ACC + 2), vr(ACC)))
        a("v_add_f32_dpp %s, %s, %s row_ror:8 row_mask:0xf bank_mask:0xf" % (vr(ACC + 1), vr(ACC + 3), vr(ACC + 1)))


    def prologue(self):
        a = self.a
        a("""
        s_cmp_ge_u32 s2, 256
        s_cbranch_scc1 L_end
        """)
        self.stamp(0)
        a("""
        s_load_dwordx16 s[4:19], s[0:1], 0
        s_load_dwordx4 s[20:23], s[0:1], 64
        s_load_dwordx2 s[24:25], s[0:1], 80
        v_lshrrev_b32 v1, 6, v0
        v_and_b32 v0, 63, v0
        %s
        v_readfirstlane_b32 s28, v1
        v_lshlrev_b32 v37, 4, v0
        s_lshr_b32 s40, s27, 3                ; row block of the Wq tile
        s_cmp_eq_u32 s28, 7
        s_cbranch_scc1 L_L
        s_cmp_eq_u32 s28, 5
        s_cbranch_scc1 L_C1
        s_cmp_eq_u32 s28, 6
        s_cbranch_scc1 L_C2
        s_cmp_lt_u32 s28, 4
        s_cbranch_scc1 L_A
        """ % ("s_lshr_b32 s26, s2, 5\ns_and_b32 s27, s2, 31" if self.scramble else "s_and_b32 s26, s2, 7\ns_lshr_b32 s27, s2, 3"))

    def dispatch_others(self):
        self.a("""
        L_other:
        v_mov_b32 v1, 0
        v_mov_b32 v2, 1
        s_cmp_eq_u32 s28, 7
        s_cbranch_scc1 L_L
        s_cmp_eq_u32 s28, 5
        s_cbranch_scc1 L_C1
        s_cmp_eq_u32 s28, 6
        s_cbranch_scc1 L_C2
        s_branch L_A
        """)

    def mlp_scalars(self):
        self.a("""
        s_cmp_lt_u32 s26, 4
        s_cselect_b32 s49, %d, %d
        s_cmp_lt_u32 s27, s49
        s_cselect_b32 s38, 1, 0
        s_mul_i32 s50, s26, %d
        s_sub_u32 s51, s26, 4
        s_mul_i32 s51, s51, %d
        s_add_u32 s51, s51, %d
        s_cmp_lt_u32 s26, 4
        s_cselect_b32 s50, s50, s51
        s_lshr_b32 s51, s27, 3
        s_add_u32 s50, s50, s51
        """ % (self.nb_lo, self.nb_hi, self.nb_lo // 8, self.nb_hi // 8, self.nb_lo // 2))

    def args_ready(self):
        self.a("s_waitcnt lgkmcnt(0)")
        self.a("s_load_dwordx2 s[30:31], s[24:25], %d" % EPOCH)

    def role_l(self):
        a = self.a
        VZ, V1 = 1, 2
        a(".p2align 8")
        a("L_L:")
        a("v_mov_b32 v1, 0\nv_mov_b32 v2, 1")
        self.role = "L"
        KO, VO = 8, 12
        WOA, WOB, W2A, W1A = 16, 17, 18, 20
        piece = 0x8000 if self.ileave else 0x400
        a("""
        s_lshl_b32 s40, s26, 24
        s_add_u32 s40, s40, 0xF00000
        s_lshl_b32 s41, s27, %d
        s_add_u32 s40, s40, s41               ; first piece of this chunk
        v_lshrrev_b32 v3, 4, v0               ; q4
        v_and_b32 v4, 15, v0                  ; pos
        v_xor_b32 v5, v4, v3
        v_lshl_add_u32 v6, v3, 8, s40
        """ % (10 if self.ileave else 15))
        for q in range(4):
            a("v_xor_b32 v7, %d, v5" % (4 * q))
            a("v_lshl_add_u32 v7, v7, 4, v6")
            a("v_add_u32 %s, %d, v7" % (vr(KO + q), 2 * q * piece))

        def rest_addresses():
            a("v_lshlrev_b32 v7, 1, v3")
            a("v_xor_b32 v7, v7, v4")
            a("v_lshl_add_u32 %s, v7, 4, v6" % vr(VO))
            a("v_xor_b32 v7, 8, v7")
            a("v_lshl_add_u32 v7, v7, 4, v6")
            a("v_add_u32 %s, %d, v7" % (vr(VO + 1), 2 * piece))
            a("""
            s_lshl_b32 s42, s26, 9                ; 512 g
            s_lshr_b32 s43, s27, 3
            s_lshl_b32 s43, s43, 7                ; 128 h
            s_add_u32 s42, s42, s43
            s_bfe_u32 s43, s27, 0x20001
            s_lshl_b32 s43, s43, 5
            s_add_u32 s42, s42, s43
            s_and_b32 s43, s27, 1
            s_lshl_b32 s43, s43, 3
            s_add_u32 s42, s42, s43               ; first Wo row
            s_lshl_b32 s42, s42, 10
            v_lshlrev_b32 v6, 4, v4               ; 16 n
            v_lshl_add_u32 v7, v3, 11, v6
            v_add_u32 %s, s42, v7
            v_add_u32 %s, 0x4000, %s
            s_lshl_b32 s42, s50, 16               ; 64 cbg rows * 1024
            s_and_b32 s43, s27, 7
            s_lshl_b32 s43, s43, 7                ; column block j * 128 bytes
            s_add_u32 s42, s42, s43
            v_lshrrev_b32 v6, 3, v0
            v_lshlrev_b32 v6, 13, v6              ; 8 rows * 1024
            v_and_b32 v7, 7, v0
            v_lshl_add_u32 v6, v7, 4, v6
            v_add_u32 %s, s42, v6
            v_add_u32 v19, 0x1000, %s
            """ % (vr(WOA), vr(WOB), vr(WOA), vr(W2A), vr(W2A)))

        def m0(x):
            return "s_movk_i32 m0, 0x%x\n" % x if x < 0x8000 else "s_mov_b32 m0, 0x%x\n" % x

        def seq(isb):
            ops, flags, gates = [], [], []
            for grp in self.order:
                if grp == "|":
                    gates.append(len(ops))
                elif grp == "k":
                    for w in range(4):
                        for q in range(4):
                            for t in range(2):
                                p = 8 * w + 2 * q + t
                                ops.append((m0(L_K + 1024 * p), "global_load_lds_dwordx4 %s, %s %s" % (vr(KO + q), sp(S_K), self.nt_kv),
                                            "v_add_u32 %s, 0x%x, %s" % (vr(KO + q), (1 if t == 0 else 7) * piece, vr(KO + q))))
                    flags.append((len(ops), F_K))
                elif grp == "v":
                    for w in range(4):
                        for i in range(8):
                            b = (i >> 1) & 1
                            ops.append((m0(L_V + 1024 * (8 * w + i)), "global_load_lds_dwordx4 %s, %s %s" % (vr(VO + b), sp(S_V), self.nt_kv),
                                        "v_add_u32 %s, 0x%x, %s" % (vr(VO + b), (1 if (i & 1) == 0 else 3) * piece, vr(VO + b))))
                        flags.append((len(ops), F_V))
                elif grp == "f":
                    for i in range(4):
                        ops.append(("", "global_load_dwordx4 v[24:27], v23, %s offset:%d sc1" % (sp(S_WS), 1024 * i), ""))
                    ops.append(("", "global_load_dwordx4 v[24:27], v28, %s sc1" % sp(S_WS), ""))
                elif grp == "o":
                    for w in range(4):
                        for i in range(4):
                            off = 256 * w + 1024 * (i >> 1)
                            ops.append((m0(L_WO + (4 * w + i) * 1024 - off),
                                        "global_load_lds_dwordx4 %s, %s offset:%d %s" % (vr(WOA if (i & 1) == 0 else WOB), sp(S_WO), off, self.nt_w), ""))
                    flags.append((len(ops), F_WO))
                elif grp == "2" and isb:
                    for i in range(8):
                        ops.append((m0(L_W2 + 4096 * (i >> 2)),
                                    "global_load_lds_dwordx4 %s, %s offset:%d %s" % (vr(W2A if i < 4 else 19), sp(S_W2), 1024 * (i & 3), self.nt_w), ""))
                    flags.append((len(ops), F_W2))
                elif grp == "1" and isb:
                    for i in range(8):
                        ops.append((m0(L_W1 + 1024 * i), "global_load_lds_dwordx4 %s, %s %s" % (vr(W1A), sp(S_W1), self.nt_w),
                                    "v_add_u32 %s, 3584, %s" % (vr(W1A), vr(W1A))))
                    flags.append((len(ops), F_W1))
            return ops, flags, gates

        W = self.window
        self.args_ready()
        self.stamp(1)
        assert self.order[0] == "k"
        ops0, _, _ = seq(False)
        NE = min(W, 5) if not self.kgate else 0
        for j in range(NE):
            pre, ld, post = ops0[j]
            a(pre)
            a("s_nop 0")
            a(ld)
            a(post)
        a("s_barrier")
        if self.lprio:
            a("s_setprio %d" % self.lprio)
        self.mlp_scalars()
        rest_addresses()
        if self.kgate:
            self.flag_wait(F_ST, 1, VZ, 21)
        if "f" in self.order:
            a("""
            s_lshl_b32 s41, s26, 17
            s_lshl_b32 s42, s27, 12
            s_add_u32 s41, s41, s42
            s_add_u32 s41, s41, %d
            v_lshl_add_u32 v23, v0, 4, s41
            s_lshl_b32 s41, s26, 11
            s_lshr_b32 s42, s27, 3
            s_lshl_b32 s42, s42, 9
            s_add_u32 s41, s41, s42
            s_add_u32 s41, s41, %d
            v_and_b32 v28, 31, v0
            v_lshl_add_u32 v28, v28, 4, s41
            """ % (H2, ST))

        def with_values(flags):
            out, nv = [], 0
            for (e, f) in flags:
                if f == F_V:
                    nv += 1
                    out.append((e, f, nv))
                else:
                    out.append((e, f, 1))
            return out

        def run(ops, flags, gates, W, start, labels=None, check_to=None, first=False):
            n = len(ops)
            pend = [f for f in flags if f[0] > max(0, start - (W - 1)) or first]
            hold = self.hold
            for j in range(start, n):
                pre, ld, post = ops[j]
                if labels and j in labels:
                    a(labels[j] + ":")
                if hold and j == hold:
                    while pend and pend[0][0] <= j:
                        e, f, val = pend.pop(0)
                        a("s_waitcnt vmcnt(%d)" % (j - e))
                        self.flag_set(f, val, VZ, 22)
                    self.flag_wait(F_QPUB, 1, VZ, 21)
                    if isb_cur[0] and self.order[0] == "1":
                        self.flag_wait(F_HPUB, 1, VZ, 21)
                    self.stamp(4)
                if j in gates:
                    while pend and pend[0][0] <= j:
                        e, f, val = pend.pop(0)
                        a("s_waitcnt vmcnt(%d)" % (j - e))
                        self.flag_set(f, val, VZ, 22)
                    self.flag_wait(F_OPUB, 4, VZ, 21)
                chk = check_to is not None and j in check_to
                if chk:
                    a("ds_read_b32 v21, %s offset:%d" % (vr(VZ), F_Q))
                if j >= W and not any(g <= j < g + W for g in gates):
                    a("s_waitcnt vmcnt(%d)" % (W - 1))
                    landed = j - (W - 1)
                    while pend and pend[0][0] <= landed:
                        e, f, val = pend.pop(0)
                        self.flag_set(f, val, VZ, 22)
                if chk:
                    a("s_waitcnt lgkmcnt(0)")
                    a("v_readfirstlane_b32 s%d, v21" % S_TMP)
                    a("s_cmp_lg_u32 s%d, 0" % S_TMP)
                    a("s_cbranch_scc1 %s" % check_to[j])
                a(pre)
                a("s_nop 0")
                a(ld)
                if post:
                    a(post)
            self.stamp(2)
            for (e, f, val) in pend:
                a("s_waitcnt vmcnt(%d)" % (n - e))
                self.flag_set(f, val, VZ, 22)
            self.stamp(3)
            self.end(3)

        isb_cur = [False]

        def emit(isb):
            isb_cur[0] = isb
            ops, flags, gates = seq(isb)
            flags = with_values(flags)
            n = len(ops)
            if not self.w2:
                run(ops, flags, gates, W, NE, first=True)
                return
            points = [j for j in range(W, n - 8) if (j - W) % self.chk == 0]
            labels = {j: a.newlabel("FAST") for j in points}
            run(ops, flags, gates, W, NE, check_to=labels, first=True)
            run(ops, flags, gates, self.w2, points[0], labels=labels)

        Lb = a.newlabel("LB")
        a("s_cmp_lg_u32 s%d, 0" % S_ISB)
        a("s_cbranch_scc1 %s" % Lb)
        emit(False)
        a(Lb + ":")
        emit(True)

    def role_a(self):
        a = self.a
        VZ, V1 = 1, 2
        T = 5
        a("L_A:")
        a("v_mov_b32 v1, 0\nv_mov_b32 v2, 1")
        self.role = "A"
        a("s_barrier")
        self.args_ready()
        a("s_setprio %d" % self.aprio)
        KO, VO, QA = 16, 20, 24
        a("""
        v_lshrrev_b32 v3, 4, v0               ; gg
        v_and_b32 v4, 15, v0                  ; m
        s_lshl_b32 s41, s28, 13
        v_and_b32 v5, 3, v4                   ; b = m & 3
        v_lshrrev_b32 v6, 2, v4               ; a = m >> 2
        v_lshlrev_b32 v7, 11, v6
        v_lshl_add_u32 v7, v5, 8, v7
        v_xor_b32 v8, v3, v5
        v_lshl_add_u32 v7, v8, 4, v7
        v_add_u32 v7, s41, v7
        """)
        for s in range(4):
            a("v_xor_b32 v8, %d, v6" % s)
            a("v_lshl_add_u32 %s, v8, 6, v7" % vr(KO + s))
        a("v_mul_u32_u24 v8, 320, v6")
        a("v_lshl_add_u32 %s, v3, 4, v8" % vr(QA))
        a("""
        v_lshrrev_b32 v8, 2, v4               ; r
        v_and_b32 v9, 3, v4                   ; cq
        v_and_b32 v10, 1, v3
        v_lshl_or_b32 v10, v10, 2, v8         ; sigma
        v_lshl_add_u32 v11, v3, 3, v8         ; 8 gg + r
        v_lshlrev_b32 v11, 8, v11
        v_lshl_add_u32 v11, v9, 3, v11
        v_add_u32 v11, %d, v11
        s_lshl_b32 s42, s28, 1
        """ % L_V)
        for u in range(2):
            a("s_add_u32 s43, s42, %d" % u)
            a("v_xor_b32 v12, s43, v10")
            a("v_lshl_add_u32 %s, v12, 5, v11" % vr(VO + u))
        WOA = 22
        a("s_lshl_b32 s42, s28, 12")
        a("s_add_u32 s42, s42, %d" % L_WO)
        a("v_lshl_add_u32 %s, v0, 4, s42" % vr(WOA))
        SEL = 28
        self.selectors(SEL, T, both_parities=False)
        self.tags()
        TG = 36
        a("v_mov_b32 %s, s%d" % (vr(TG + 2), S_T))
        a("v_mov_b32 %s, s%d" % (vr(TG + 3), S_T + 1))
        OA, SA, STA = 40, 41, 43
        a("""
        s_lshl_b32 s42, s26, 17               ; g * 131072
        s_lshl_b32 s43, s27, 7                ; c * 128
        s_add_u32 s42, s42, s43
        s_add_u32 s42, s42, %d
        v_bfe_u32 v12, v0, 1, 2
        v_lshlrev_b32 v12, 4, v12             ; O slot ((n & 7) >> 1) * 16
        v_bfe_u32 v13, v0, 3, 1               ; b
        v_lshl_add_u32 v13, v3, 3, v13        ; 8 h + b
        s_lshl_b32 s43, s28, 1
        v_add_u32 v13, s43, v13               ; + 2 w
        v_lshl_add_u32 v13, v13, 12, v12
        v_add_u32 %s, s42, v13
        v_and_b32 v12, 3, v0
        v_lshlrev_b32 v12, 4, v12             ; s slot (l & 3) * 16
        v_bfe_u32 v13, v0, 2, 3
        s_lshl_b32 s43, s28, 3
        v_add_u32 v13, s43, v13               ; 8 w + ((l >> 2) & 7)
        v_lshl_add_u32 v14, v13, 12, v12
        s_add_u32 s43, s42, 64
        v_add_u32 %s, s43, v14
        s_lshl_b32 s42, s26, 11
        s_lshl_b32 s43, s27, 4
        s_add_u32 s42, s42, s43
        s_add_u32 s42, s42, %d
        v_lshl_add_u32 %s, v3, 9, s42
        """ % (H2, vr(OA), vr(SA), ST, vr(STA)))
        VT, PK = 160, 164
        for k in range(4):
            a("v_mov_b32 %s, s%d" % (vr(VT + k), S_E + k))
        MXW, PWA, PRA, MRA, ORA = 25, 26, 27, 45, 46
        a("""
        v_lshrrev_b32 v12, 2, v4
        v_lshlrev_b32 v12, 4, v12             ; head (l & 15) >> 2, * 16
        s_lshl_b32 s42, s28, 2
        v_add_u32 %s, s42, v12                ; + wave * 4
        v_lshlrev_b32 %s, 4, v0
        s_lshl_b32 s42, s28, 10
        v_add_u32 %s, s42, %s
        v_lshlrev_b32 %s, 4, v3
        v_lshlrev_b32 %s, 4, v3
        """ % (vr(MXW), vr(PRA), vr(PWA), vr(PRA), vr(MRA), vr(ORA)))
        OD = 112
        KF = 48
        QF = 80
        WO = 96
        self.flag_wait(F_K, 1, VZ, T, sleep=2)
        self.stamp(1)
        for t in range(2):
            for s in range(4):
                a("ds_read_b128 %s, %s offset:%d" % (vr(KF + 16 * t + 4 * s, 4), vr(KO + s), L_K + 1024 * t))
        self.flag_wait(F_Q, 1, VZ, T, sleep=1)
        self.stamp(2)
        for s in range(4):
            a("ds_read_b128 %s, %s offset:%d" % (vr(QF + 4 * s, 4), vr(QA), L_Q + 64 * s))
        self.read_mode(VZ, T)
        SC = 112
        for s in range(4):
            for t in range(2):
                a("v_mfma_f32_16x16x32_bf16 %s, %s, %s, %s" % (vr(SC + 4 * t, 4), vr(KF + 16 * t + 4 * s, 4), vr(QF + 4 * s, 4), "0" if s == 0 else vr(SC + 4 * t, 4)))
        a("s_nop 7")
        if self.mimic:
            for i in range(4):
                a("v_cvt_pk_bf16_f32 %s, %s, %s" % (vr(T + i), vr(SC + 2 * i), vr(SC + 2 * i + 1)))
            for i in range(4):
                a("v_lshlrev_b32 %s, 16, %s" % (vr(SC + 2 * i), vr(T + i)))
                a("v_and_b32 %s, 0xffff0000, %s" % (vr(SC + 2 * i + 1), vr(T + i)))
        for i in range(8):
            a("v_mul_f32 %s, 0x%x, %s" % (vr(SC + i), SCALE, vr(SC + i)))
        if self.mimic:
            for i in range(4):
                a("v_cvt_pk_bf16_f32 %s, %s, %s" % (vr(T + i), vr(SC + 2 * i), vr(SC + 2 * i + 1)))
            for i in range(4):
                a("v_lshlrev_b32 %s, 16, %s" % (vr(SC + 2 * i), vr(T + i)))
                a("v_and_b32 %s, 0xffff0000, %s" % (vr(SC + 2 * i + 1), vr(T + i)))
        MX = 44
        a("v_max3_f32 %s, %s, %s, %s" % (vr(T), vr(SC), vr(SC + 1), vr(SC + 2)))
        a("v_max3_f32 %s, %s, %s, %s" % (vr(T + 1), vr(SC + 3), vr(SC + 4), vr(SC + 5)))
        a("v_max3_f32 %s, %s, %s, %s" % (vr(T), vr(T), vr(SC + 6), vr(SC + 7)))
        a("v_max_f32 %s, %s, %s" % (vr(MX), vr(T), vr(T + 1)))
        self.xor_reduce("v_max_f32", [MX], [16, 32], T)
        a("v_mov_b32 %s, 0x%x" % (vr(T + 8), LOG2E))
        a("v_mul_f32 %s, %s, %s" % (vr(T + 9), vr(MX), vr(T + 8)))
        a("s_mov_b64 exec, 0x1111")
        a("ds_write_b32 %s, %s offset:%d" % (vr(MXW), vr(MX), L_MX))
        a("s_mov_b64 exec, -1")
        for i in range(8):
            a("v_fma_f32 %s, %s, %s, -%s" % (vr(SC + i), vr(SC + i), vr(T + 8), vr(T + 9)))
        for i in range(8):
            a("v_exp_f32 %s, %s" % (vr(SC + i), vr(SC + i)))
        PF = 48
        a("s_nop 0")
        for i in range(4):
            a("v_cvt_pk_bf16_f32 %s, %s, %s" % (vr(T + 1 + i), vr(SC + 2 * i), vr(SC + 2 * i + 1)))
        a("ds_write_b128 %s, %s offset:%d" % (vr(PWA), vr(T + 1, 4), L_P))
        self.flag_add(F_P, VZ, V1)
        self.flag_wait(F_P, 4, VZ, T + 6)
        for ks in range(4):
            a("ds_read_b128 %s, %s offset:%d" % (vr(PF + 4 * ks, 4), vr(PRA), L_P + 1024 * ks))
        FW = 120
        a("ds_read_b128 %s, %s offset:%d" % (vr(FW, 4), vr(MRA), L_MX))
        self.stamp(3)
        a("s_waitcnt lgkmcnt(0)")
        a("v_max3_f32 %s, %s, %s, %s" % (vr(MX), vr(FW), vr(FW + 1), vr(FW + 2)))
        a("v_max_f32 %s, %s, %s" % (vr(MX), vr(MX), vr(FW + 3)))
        a("v_mul_f32 %s, %s, %s" % (vr(T + 9), vr(MX), vr(T + 8)))
        for i in range(4):
            a("v_fma_f32 %s, %s, %s, -%s" % (vr(FW + i), vr(FW + i), vr(T + 8), vr(T + 9)))
        for i in range(4):
            a("v_exp_f32 %s, %s" % (vr(FW + i), vr(FW + i)))
        D = 128
        TS = 124
        Lns = a.newlabel("NS")
        a("s_cmp_lg_u32 s28, 0")
        a("s_cbranch_scc1 %s" % Lns)
        ON = 64
        for t in range(4):
            a("v_mov_b32 %s, 0x3f803f80" % vr(ON + t))
        a("s_nop 1")
        for ks in range(4):
            a("v_mfma_f32_16x16x32_bf16 %s, %s, %s, 0" % (vr(D + 4 * ks, 4), vr(PF + 4 * ks, 4), vr(ON, 4)))
        a("v_mov_b32 %s, %s" % (vr(TS), vr(MX)))
        a("v_mov_b32 %s, %s" % (vr(TS + 2), vr(TG + 2)))
        a("v_mov_b32 %s, %s" % (vr(TS + 3), vr(TG + 3)))
        a("s_nop 4")
        a("v_mul_f32 %s, %s, %s" % (vr(TS + 1), vr(FW), vr(D)))
        for ks in range(1, 4):
            a("v_fmac_f32 %s, %s, %s" % (vr(TS + 1), vr(FW + ks), vr(D + 4 * ks)))
        a(Lns + ":")
        wo_first = self.order.index("o") < self.order.index("v")

        def read_wo():
            self.flag_wait(F_WO, 1, VZ, T, sleep=0 if not wo_first else 1)
            for i in range(4):
                a("ds_read_b128 %s, %s offset:%d" % (vr(WO + 4 * i, 4), vr(WOA), 1024 * i))
        if wo_first:
            read_wo()
        self.stamp(4)
        VF = 64
        S_V, S_I = 44, 45
        a("s_mov_b32 s%d, 0" % S_V)
        a("s_mov_b32 s%d, 0" % S_I)
        for ks in range(4):
            Lgo, Lsp = a.newlabel("V"), a.newlabel("V")
            a("s_cmp_ge_u32 s%d, %d" % (S_V, ks + 1))
            a("s_cbranch_scc1 %s" % Lgo)
            a("s_mov_b32 s%d, 0" % S_CNT)
            a(Lsp + ":")
            a("ds_read_b64 %s, %s offset:%d" % (vr(T + 1, 2), vr(VZ), F_V))
            a("s_add_u32 s%d, s%d, 1" % (S_CNT, S_CNT))
            a("s_cmp_gt_u32 s%d, %d" % (S_CNT, SPIN_MAX))
            a("s_cbranch_scc1 L_end")
            a("s_waitcnt lgkmcnt(0)")
            a("v_readfirstlane_b32 s%d, %s" % (S_V, vr(T + 1)))
            a("v_readfirstlane_b32 s%d, %s" % (S_I, vr(T + 2)))
            a("s_cmp_lt_u32 s%d, %d" % (S_V, ks + 1))
            a("s_cbranch_scc1 %s" % Lsp)
            a(Lgo + ":")
            if ks == 3:
                self.stamp(5)
            for u in range(2):
                for jh in range(2):
                    a("ds_read_b64_tr_b16 %s, %s offset:%d" % (vr(VF + 8 * ks + 4 * u + 2 * jh, 2), vr(VO + u), 8192 * ks + 1024 * jh))
            if ks:
                a("s_waitcnt lgkmcnt(4)")
                for u in range(2):
                    a("v_mfma_f32_16x16x32_bf16 %s, %s, %s, 0" % (vr(D + 8 * (ks - 1) + 4 * u, 4), vr(PF + 4 * (ks - 1), 4), vr(VF + 8 * (ks - 1) + 4 * u, 4)))
        for u in range(2):
            a("s_waitcnt lgkmcnt(%d)" % (2 - 2 * u))
            a("v_mfma_f32_16x16x32_bf16 %s, %s, %s, 0" % (vr(D + 24 + 4 * u, 4), vr(PF + 12, 4), vr(VF + 24 + 4 * u, 4)))
        a("v_mul_f32 %s, %s, %s" % (vr(TG), vr(FW), vr(D)))
        a("v_mul_f32 %s, %s, %s" % (vr(TG + 1), vr(FW), vr(D + 4)))
        for ks in range(1, 3):
            a("v_fmac_f32 %s, %s, %s" % (vr(TG), vr(FW + ks), vr(D + 8 * ks)))
            a("v_fmac_f32 %s, %s, %s" % (vr(TG + 1), vr(FW + ks), vr(D + 8 * ks + 4)))
        a("s_nop 1")
        a("v_fmac_f32 %s, %s, %s" % (vr(TG), vr(FW + 3), vr(D + 24)))
        a("v_fmac_f32 %s, %s, %s" % (vr(TG + 1), vr(FW + 3), vr(D + 28)))
        if self.sinit:
            Li = a.newlabel("I")
            a("s_cmp_ge_u32 s%d, 2" % S_I)
            a("s_cbranch_scc1 %s" % Li)
            self.flag_wait(F_INIT, 2, VZ, T)
            a(Li + ":")
        a("v_and_or_b32 %s, %s, s%d, %s" % (vr(PK), vr(TG), S_EN, vr(VT)))
        a("v_and_or_b32 %s, %s, s%d, %s" % (vr(PK + 1), vr(TG + 1), S_EN, vr(VT + 1)))
        a("v_mov_b32_dpp %s, %s quad_perm:[1,1,3,3] row_mask:0xf bank_mask:0xf" % (vr(PK + 2), vr(TG)))
        a("v_mov_b32_dpp %s, %s quad_perm:[1,1,3,3] row_mask:0xf bank_mask:0xf" % (vr(PK + 3), vr(TG + 1)))
        a("v_and_or_b32 %s, %s, s%d, %s" % (vr(PK + 2), vr(PK + 2), S_EN, vr(VT + 2)))
        a("v_and_or_b32 %s, %s, s%d, %s" % (vr(PK + 3), vr(PK + 3), S_EN, vr(VT + 3)))
        a("s_mov_b32 exec_lo, 0x55555555")
        a("s_mov_b32 exec_hi, 0x55555555")
        self.store_mode(OA, PK)
        a("s_mov_b64 exec, -1")
        Lns = a.newlabel("NS")
        a("s_cmp_lg_u32 s28, 0")
        a("s_cbranch_scc1 %s" % Lns)
        a("s_mov_b32 s42, 0x00010001")
        a("s_mov_b32 s43, 0x00010001")
        a("s_mov_b64 exec, s[42:43]")
        self.store_mode(STA, TS)
        a("s_mov_b64 exec, -1")
        a(Lns + ":")
        self.flag_add(F_OPUB, VZ, V1)
        self.stamp(6)
        if not wo_first:
            read_wo()
        AF = 64
        OG = 8
        Lsp = a.newlabel("O")
        a("s_mov_b32 s%d, 0" % S_CNT)
        a(Lsp + ":")
        a("ds_read_b128 %s, %s offset:%d" % (vr(OG, 4), vr(ORA), L_O))
        a("s_add_u32 s%d, s%d, 1" % (S_CNT, S_CNT))
        a("s_cmp_gt_u32 s%d, %d" % (S_CNT, SPIN_MAX))
        a("s_cbranch_scc1 L_end")
        a("s_waitcnt lgkmcnt(0)")
        a("v_and_b32 %s, %s, %s" % (vr(OG + 1), vr(OG + 1), vr(OG + 3)))
        a("v_cmp_ne_u32 vcc, 1, %s" % vr(OG + 1))
        a("s_cbranch_vccnz %s" % Lsp)
        for i in range(4):
            src = OG + 2 * (i >> 1)
            for t in range(4):
                a("v_perm_b32 %s, %s, %s, %s" % (vr(AF + 4 * i + t), vr(src), vr(src), vr(SEL + 4 * (i & 1) + t)))
            if i:
                a("v_mfma_f32_16x16x32_bf16 %s, %s, %s, %s" % (vr(OD, 4), vr(AF + 4 * (i - 1), 4), vr(WO + 4 * (i - 1), 4), "0" if i == 1 else vr(OD, 4)))
        a("s_nop 1")
        a("v_mfma_f32_16x16x32_bf16 %s, %s, %s, %s" % (vr(OD, 4), vr(AF + 12, 4), vr(WO + 12, 4), vr(OD, 4)))
        a("s_nop 7")
        for k in range(4):
            a("v_and_or_b32 %s, %s, s%d, %s" % (vr(PK + k), vr(OD + k), S_EN, vr(VT + k)))
        a("s_mov_b32 exec_hi, 0")
        self.store_mode(SA, PK)
        a("s_mov_b64 exec, -1")
        if self.sgate:
            self.flag_add(F_SPUB, VZ, V1)
        self.stamp(7)
        self.end(T)

    def role_c0(self):
        a = self.a
        VZ, V1 = 1, 2
        X = 4
        W = 40
        AF = 104
        SEL = 168
        ACC = 176
        T = 180
        self.role = "C0"
        if self.code_pf:
            a("s_getpc_b64 s[52:53]")
            a("L_pc:")
            a("s_lshl_b32 s54, s27, 10")
            a("v_add_u32 v3, s54, v37")
            a("v_min_u32 v3, L_code_end-L_pc-16, v3")
            a("global_load_dwordx4 v[188:191], v3, s[52:53]")
        a("""
        s_lshl_b32 s41, s40, 8
        v_lshl_add_u32 v38, v0, 2, s41
        s_lshl_b32 s41, s40, 20               ; rb * 128 * 8192
        s_lshl_b32 s42, s26, 10               ; g * 512 * 2
        s_add_u32 s41, s41, s42
        s_and_b32 s42, s27, 7
        s_lshl_b32 s42, s42, 7                ; cb * 128
        s_add_u32 s41, s41, s42
        v_lshrrev_b32 v3, 3, v0
        v_lshlrev_b32 v3, 17, v3              ; 16 rows * 8192
        v_and_b32 v36, 7, v0
        v_lshl_add_u32 v3, v36, 4, v3
        v_add_u32 v3, s41, v3
        s_mov_b32 m0, %d
        s_movk_i32 s41, 15
        s_waitcnt lgkmcnt(0)
        global_load_dwordx4 %s, v37, %s
        global_load_dword %s, v38, %s
        L_wq:
        global_load_lds_dwordx4 v3, %s %s
        v_add_u32 v3, 0x2000, v3
        s_addk_i32 m0, 0x400
        s_sub_u32 s41, s41, 1
        s_cbranch_scc0 L_wq
        s_barrier
        L_C0_rest:
        s_setprio 3
        s_load_dwordx2 s[30:31], s[24:25], %d
        v_mov_b32 v1, 0
        v_mov_b32 v2, 1
        """ % (L_W1, vr(X, 4), sp(S_X), vr(X + 4), sp(S_X), sp(S_WQ), self.nt_w, EPOCH))
        self.stamp(1)
        self.selectors(SEL, T, both_parities=True)
        a("s_waitcnt vmcnt(16)")
        if self.kgate == 1:
            self.flag_add(F_ST, VZ, V1)
        self.stamp(2)
        self.layernorm_rows(X, L_XQ, VZ)
        self.tags()
        a("s_waitcnt lgkmcnt(0)")
        if self.kgate == 2:
            self.flag_add(F_ST, VZ, V1)
        self.stamp(3)
        XN = X + 8
        a("v_add_u32 v37, %d, v37" % L_W1)
        for i in range(16):
            for t in range(4):
                a("v_perm_b32 %s, %s, %s, %s" % (vr(AF + 4 * i + t), vr(XN + (i >> 1)), vr(XN + (i >> 1)), vr(SEL + 4 * (i & 1) + t)))
        for q in range(4):
            a("s_waitcnt vmcnt(%d)" % (12 - 4 * q))
            if self.kgate >= 3 and q == self.kgate - 3:
                self.flag_add(F_ST, VZ, V1)
            for i in range(4 * q, 4 * q + 4):
                a("ds_read_b128 %s, v37 offset:%d" % (vr(W + 4 * i, 4), 1024 * i))
            if q:
                for i in range(4 * q - 4, 4 * q):
                    a("s_waitcnt lgkmcnt(%d)" % (4 + (4 * q - 1 - i)))
                    a("v_mfma_f32_16x16x32_bf16 %s, %s, %s, %s" % (vr(ACC, 4), vr(AF + 4 * i, 4), vr(W + 4 * i, 4), "0" if i == 0 else vr(ACC, 4)))
        for i in range(12, 16):
            a("s_waitcnt lgkmcnt(%d)" % (15 - i))
            a("v_mfma_f32_16x16x32_bf16 %s, %s, %s, %s" % (vr(ACC, 4), vr(AF + 4 * i, 4), vr(W + 4 * i, 4), vr(ACC, 4)))
        a("s_nop 7")
        a("v_permlane32_swap_b32 %s, %s" % (vr(ACC), vr(ACC + 2)))
        a("v_permlane32_swap_b32 %s, %s" % (vr(ACC + 1), vr(ACC + 3)))
        a("s_nop 1")
        a("v_add_f32_dpp %s, %s, %s row_ror:8 row_mask:0xf bank_mask:0xf" % (vr(ACC), vr(ACC + 2), vr(ACC)))
        a("v_add_f32_dpp %s, %s, %s row_ror:8 row_mask:0xf bank_mask:0xf" % (vr(ACC + 1), vr(ACC + 3), vr(ACC + 1)))
        self.stamp(4)
        a("v_mov_b32 %s, s%d" % (vr(ACC + 2), S_T1X))
        a("v_mov_b32 %s, s%d" % (vr(ACC + 3), S_T1X + 1))
        a("""
        s_lshl_b32 s41, s26, 14               ; g * 16384
        s_lshr_b32 s42, s27, 3
        s_lshl_b32 s42, s42, 12               ; rb * 4096
        s_add_u32 s41, s41, s42
        s_and_b32 s42, s27, 7
        s_lshl_b32 s42, s42, 9                ; cb * 512
        s_add_u32 s41, s41, s42
        s_add_u32 s41, s41, %d
        v_lshrrev_b32 v3, 4, v0               ; 2 hi + g'
        v_lshlrev_b32 v3, 3, v3
        v_and_b32 v36, 7, v0
        v_add_u32 v3, v3, v36                 ; pos = 16 hi + 8 g' + n
        v_lshl_add_u32 v3, v3, 4, s41
        v_add_u32 v37, %d, v3
        """ % (H1, REGB))
        a("s_mov_b32 s42, 0x00ff00ff")
        a("s_mov_b32 s43, 0x00ff00ff")
        a("s_mov_b64 exec, s[42:43]")
        a("global_store_dwordx4 v3, %s, %s %s" % (vr(ACC, 4), sp(S_WS), self.st_nt))
        if self.qack:
            a("global_store_dwordx4 v37, %s, %s sc1" % (vr(ACC, 4), sp(S_WS)))
            a("s_mov_b64 exec, -1")
            self.stamp(5)
            a("s_waitcnt vmcnt(1)")
            if self.qsleep:
                a("s_sleep %d" % self.qsleep)
            self.flag_add(F_QPUB, VZ, V1)
        else:
            a("s_mov_b64 exec, -1")
            self.flag_add(F_QPUB, VZ, V1)
            a("s_mov_b64 exec, s[42:43]")
            a("global_store_dwordx4 v37, %s, %s sc1" % (vr(ACC, 4), sp(S_WS)))
            a("s_mov_b64 exec, -1")
        if not self.qack:
            self.stamp(5)
        SA, OA = 4, 5
        G = 8
        a("""
        s_lshl_b32 s41, s26, 11               ; g * 2048
        s_lshr_b32 s42, s27, 3
        s_lshl_b32 s42, s42, 9                ; head * 512
        s_add_u32 s41, s41, s42
        s_add_u32 s41, s41, %d
        v_lshrrev_b32 v3, 2, v0
        v_lshl_add_u32 %s, v3, 4, s41
        s_lshl_b32 s41, s26, 17
        s_lshl_b32 s42, s27, 12
        s_add_u32 s41, s41, s42
        s_add_u32 s41, s41, %d
        v_and_b32 v6, 3, v0
        v_lshlrev_b32 v6, 4, v6
        v_lshl_add_u32 v7, v3, 7, v6
        v_add_u32 %s, s41, v7
        """ % (ST, vr(SA), H2, vr(OA)))
        a("v_lshlrev_b32 v6, 4, v0")
        self.flag_wait(F_Q, 1, VZ, T, sleep=2)
        self.read_mode(VZ, T)
        self.stamp(6)
        GO = 40
        self.flag_wait(F_OPUB, self.ogate, VZ, T, sleep=0 if self.odelay else 1)
        if self.odelay:
            a("s_sleep %d" % self.odelay)
            self.flag_add(F_O, VZ, V1)
        self.stamp(7)
        self.poll_mixed([(G + 4 * i, SA, 256 * i, "t") for i in range(2)] + [(GO + 4 * i, OA, 2048 * i, "e") for i in range(2)], S_MB, T, cnt=12)
        self.stamp(8)
        MX, LS, WT, AC = 24, 25, 26, 28
        a("v_max_f32 %s, %s, %s" % (vr(MX), vr(G), vr(G + 4)))
        for k in range(4):
            a("v_and_b32 %s, s%d, %s" % (vr(GO + k), S_EN, vr(GO + k)))
        self.xor_reduce("v_max_f32", [MX], ["r4", 8, 16, 32], T)
        a("v_mov_b32 %s, 0x%x" % (vr(T + 4), LOG2E))
        a("v_mul_f32 %s, %s, %s" % (vr(T + 5), vr(MX), vr(T + 4)))
        for i in range(2):
            a("v_fma_f32 %s, %s, %s, -%s" % (vr(WT + i), vr(G + 4 * i), vr(T + 4), vr(T + 5)))
        for i in range(2):
            a("v_exp_f32 %s, %s" % (vr(WT + i), vr(WT + i)))
        for k in range(4):
            a("v_and_b32 %s, s%d, %s" % (vr(GO + 4 + k), S_EN, vr(GO + 4 + k)))
        a("v_mul_f32 %s, %s, %s" % (vr(LS), vr(WT), vr(G + 1)))
        for k in range(4):
            a("v_mul_f32 %s, %s, %s" % (vr(AC + k), vr(WT), vr(GO + k)))
        a("v_fmac_f32 %s, %s, %s" % (vr(LS), vr(WT + 1), vr(G + 5)))
        for k in range(4):
            a("v_fmac_f32 %s, %s, %s" % (vr(AC + k), vr(WT + 1), vr(GO + 4 + k)))
        self.xor_reduce("v_add_f32", [LS, AC, AC + 1, AC + 2, AC + 3], ["r4", 8, 16, 32], T)
        a("v_rcp_f32 %s, %s" % (vr(T), vr(LS)))
        a("v_mov_b32 v33, 1")
        a("v_mov_b32 v35, 1")
        a("v_fma_f32 %s, -%s, %s, 1.0" % (vr(T + 1), vr(T), vr(LS)))
        a("v_fmac_f32 %s, %s, %s" % (vr(T), vr(T + 1), vr(T)))
        for k in range(4):
            a("v_mul_f32 %s, %s, %s" % (vr(AC + k), vr(AC + k), vr(T)))
        a("v_cvt_pk_bf16_f32 v32, %s, %s" % (vr(AC), vr(AC + 1)))
        a("v_cvt_pk_bf16_f32 v34, %s, %s" % (vr(AC + 2), vr(AC + 3)))
        a("s_mov_b64 exec, 0xf")
        a("ds_write_b128 v6, v[32:35] offset:%d" % L_O)
        a("s_mov_b64 exec, -1")
        self.stamp(9)
        self.end(T)

    def role_c1(self):
        a = self.a
        VZ, V1 = 1, 2
        X = 4
        W = 40
        AF = 104
        SEL = 168
        ACC = 176
        T = 180
        a("L_C1:")
        a("v_mov_b32 v1, 0\nv_mov_b32 v2, 1")
        self.role = "C1"
        a("s_barrier")
        a("s_setprio 3")
        self.mlp_scalars()
        a("""
        v_lshlrev_b32 v42, 4, v0
        s_and_b32 s40, s27, 7
        s_lshl_b32 s41, s40, 7
        v_and_b32 v3, 31, v0
        v_lshl_add_u32 v43, v3, 2, s41
        """)
        a("""
        s_lshl_b32 s42, s50, 7
        s_and_b32 s43, s27, 7
        s_mul_i32 s43, s43, %d
        s_add_u32 s42, s42, s43
        v_lshrrev_b32 v6, 3, v0
        v_mul_u32_u24 v6, %d, v6
        v_and_b32 v7, 7, v0
        v_lshl_add_u32 v6, v7, 4, v6
        v_add_u32 v44, s42, v6
        """ % (64 * 3584, 8 * 3584))
        self.args_ready()
        a("""
        s_lshl_b32 s41, s26, 14
        s_lshl_b32 s42, s27, 9
        s_add_u32 s44, s41, s42
        s_add_u32 s44, s44, %d                ; own outbox of hidden-unit partials
        """ % HB)
        if self.prefill:
            a("""
            s_lshl_b32 s41, s26, 14
            s_lshr_b32 s42, s27, 3
            s_lshl_b32 s42, s42, 12
            s_add_u32 s41, s41, s42
            s_and_b32 s42, s27, 7
            s_lshl_b32 s42, s42, 9
            s_add_u32 s41, s41, s42
            s_add_u32 s41, s41, %d
            v_and_b32 v3, 31, v0
            v_lshl_add_u32 v40, v3, 4, s41
            v_lshl_add_u32 v41, v3, 4, s44
            s_lshl_b32 s41, s26, 11
            s_lshr_b32 s42, s27, 3
            s_lshl_b32 s42, s42, 9
            s_add_u32 s41, s41, s42
            s_add_u32 s41, s41, %d
            v_lshl_add_u32 v45, v3, 4, s41
            v_cmp_gt_u32 vcc, 32, v0
            s_nop 1
            v_cndmask_b32 v40, v41, v40, vcc
            global_load_dwordx4 v[188:191], v40, %s
            """ % (H1, ST, sp(S_WS)))
            if self.prefill >= 2:
                Ls = a.newlabel("I")
                a("""
                s_and_b32 s41, s27, 7
                s_cmp_lg_u32 s41, 0
                s_cbranch_scc1 %s
                global_load_dwordx4 v[188:191], v45, %s
                %s:
                """ % (Ls, sp(S_WS), Ls))
        W1R = 48
        Lb = a.newlabel("B")
        a("s_cmp_lg_u32 s%d, 0" % S_ISB)
        a("s_cbranch_scc1 %s" % Lb)
        self.stamp(1)
        self.end(T)
        a(Lb + ":")
        a("global_load_dwordx4 %s, v42, %s" % (vr(X, 4), sp(S_X)))
        a("global_load_dword %s, v43, %s" % (vr(X + 4), sp(S_X)))
        if self.w1gate:
            self.flag_wait(F_ST, 1, VZ, T)
        for i in range(8):
            a("global_load_dwordx4 %s, v44, %s %s" % (vr(W1R + 4 * i, 4), sp(S_W1), self.nt_w))
            if i < 7:
                a("v_add_u32 v44, 3584, v44")
        a("s_waitcnt vmcnt(8)")
        self.stamp(1)
        self.role = "C1B"
        self.selectors(SEL, T, both_parities=True)
        self.layernorm_rows(X, L_XH, VZ, rows=64)
        self.tags()
        a("v_lshlrev_b32 v3, 4, v0")
        a("v_add_u32 v38, %d, v3" % L_W2)
        XN = X + 8
        for i in range(8):
            for t in range(4):
                a("v_perm_b32 %s, %s, %s, %s" % (vr(AF + 4 * i + t), vr(XN + (i >> 1)), vr(XN + (i >> 1)), vr(SEL + 4 * (i & 1) + t)))
        a("""
        v_lshrrev_b32 v3, 4, v0
        v_lshlrev_b32 v3, 3, v3
        v_and_b32 v36, 7, v0
        v_add_u32 v3, v3, v36
        v_lshl_add_u32 v3, v3, 4, s44
        s_lshr_b32 s41, s27, 3
        s_lshl_b32 s41, s41, 12               ; cbl * 4096
        s_lshl_b32 s42, s26, 14
        s_add_u32 s41, s41, s42
        s_add_u32 s41, s41, %d
        v_lshl_add_u32 v4, v0, 4, s41
        """ % HB)
        a("s_waitcnt vmcnt(0)")
        self.stamp(2)
        for i in range(8):
            a("v_mfma_f32_16x16x32_bf16 %s, %s, %s, %s" % (vr(ACC, 4), vr(AF + 4 * i, 4), vr(W1R + 4 * i, 4), "0" if i == 0 else vr(ACC, 4)))
        a("s_nop 7")
        a("v_permlane32_swap_b32 %s, %s" % (vr(ACC), vr(ACC + 2)))
        a("v_permlane32_swap_b32 %s, %s" % (vr(ACC + 1), vr(ACC + 3)))
        a("s_nop 1")
        a("v_add_f32_dpp %s, %s, %s row_ror:8 row_mask:0xf bank_mask:0xf" % (vr(ACC), vr(ACC + 2), vr(ACC)))
        a("v_add_f32_dpp %s, %s, %s row_ror:8 row_mask:0xf bank_mask:0xf" % (vr(ACC + 1), vr(ACC + 3), vr(ACC + 1)))
        self.stamp(3)
        a("v_mov_b32 %s, s%d" % (vr(ACC + 2), S_T))
        a("v_mov_b32 %s, s%d" % (vr(ACC + 3), S_T + 1))
        a("v_add_u32 v5, %d, v3" % REGB)
        a("s_mov_b32 s42, 0x00ff00ff")
        a("s_mov_b32 s43, 0x00ff00ff")
        a("s_mov_b64 exec, s[42:43]")
        a("global_store_dwordx4 v3, %s, %s %s" % (vr(ACC, 4), sp(S_WS), self.st_nt))
        a("s_mov_b64 exec, -1")
        self.flag_add(F_HPUB, VZ, V1)
        a("s_mov_b64 exec, s[42:43]")
        a("global_store_dwordx4 v5, %s, %s sc1" % (vr(ACC, 4), sp(S_WS)))
        a("s_mov_b64 exec, -1")
        G = 8
        self.flag_wait(F_Q, 1, VZ, T, sleep=1)
        self.read_mode(VZ, T)
        self.poll([(G + 4 * i, 4, 1024 * i) for i in range(4)], S_MB)
        self.stamp(4)
        for e in range(2):
            a("v_add_f32 %s, %s, %s" % (vr(G + e), vr(G + e), vr(G + 4 + e)))
            a("v_add_f32 %s, %s, %s" % (vr(G + 8 + e), vr(G + 8 + e), vr(G + 12 + e)))
        for e in range(2):
            a("v_add_f32 %s, %s, %s" % (vr(G + e), vr(G + e), vr(G + 8 + e)))
        self.xor_reduce("v_add_f32", [G, G + 1], [32], T)
        a("v_max_f32 %s, 0, %s" % (vr(G), vr(G)))
        a("v_max_f32 %s, 0, %s" % (vr(G + 1), vr(G + 1)))
        a("v_cvt_pk_bf16_f32 %s, %s, %s" % (vr(G), vr(G), vr(G + 1)))
        a("""
        v_and_b32 v5, 7, v0
        v_lshlrev_b32 v5, 4, v5               ; 8 n * 2 B
        v_bfe_u32 v6, v0, 3, 1
        v_lshl_add_u32 v5, v6, 3, v5          ; 4 g' * 2 B
        v_bfe_u32 v6, v0, 4, 1
        v_lshl_add_u32 v5, v6, 2, v5          ; 2 hi * 2 B
        ds_write_b32 v5, %s offset:%d
        v_lshrrev_b32 v5, 3, v0
        v_lshlrev_b32 v5, 4, v5
        ds_read_b128 %s, v5 offset:%d
        """ % (vr(G), L_XH, vr(G + 4, 4), L_XH))
        a("""
        s_and_b32 s41, s27, 7
        s_lshr_b32 s42, s41, 1
        s_lshl_b32 s42, s42, 3
        s_and_b32 s41, s41, 1
        s_lshl_b32 s41, s41, 1
        s_add_u32 s41, s41, s42
        s_lshl_b32 s41, s41, 9
        s_lshl_b32 s42, s26, 14
        s_add_u32 s41, s41, s42
        s_lshr_b32 s42, s27, 3
        s_lshl_b32 s42, s42, 7
        s_add_u32 s41, s41, s42
        s_add_u32 s41, s41, %d
        v_bfe_u32 v3, v0, 4, 1
        v_lshlrev_b32 v3, 11, v3              ; 4 g' * 512
        v_bfe_u32 v5, v0, 2, 1
        v_lshl_add_u32 v3, v5, 9, v3          ; (n >> 2) * 512
        v_lshrrev_b32 v5, 5, v0
        v_lshl_add_u32 v3, v5, 6, v3          ; 4 hi * 16
        v_and_b32 v5, 3, v0
        v_lshl_add_u32 v3, v5, 4, v3
        v_add_u32 v3, s41, v3
        s_waitcnt lgkmcnt(0)
        """ % H3G)
        for i in range(8):
            for t in range(4):
                a("v_perm_b32 %s, %s, %s, %s" % (vr(AF + 4 * i + t), vr(G + 4 + (i >> 1)), vr(G + 4 + (i >> 1)), vr(SEL + 4 * (i & 1) + t)))
        self.flag_wait(F_W2, 1, VZ, T, sleep=1)
        for i in range(8):
            a("ds_read_b128 %s, v38 offset:%d" % (vr(W + 4 * i, 4), 1024 * i))
        for i in range(8):
            a("s_waitcnt lgkmcnt(%d)" % (7 - i))
            a("v_mfma_f32_16x16x32_bf16 %s, %s, %s, %s" % (vr(ACC, 4), vr(AF + 4 * i, 4), vr(W + 4 * i, 4), "0" if i == 0 else vr(ACC, 4)))
        a("s_nop 7")
        a("v_permlane32_swap_b32 %s, %s" % (vr(ACC), vr(ACC + 2)))
        a("v_permlane32_swap_b32 %s, %s" % (vr(ACC + 1), vr(ACC + 3)))
        a("s_nop 1")
        a("v_add_f32_dpp %s, %s, %s row_ror:8 row_mask:0xf bank_mask:0xf" % (vr(ACC), vr(ACC + 2), vr(ACC)))
        a("v_add_f32_dpp %s, %s, %s row_ror:8 row_mask:0xf bank_mask:0xf" % (vr(ACC + 1), vr(ACC + 3), vr(ACC + 1)))
        a("v_mov_b32 %s, s%d" % (vr(ACC + 2), S_T))
        a("v_mov_b32 %s, s%d" % (vr(ACC + 3), S_T + 1))
        a("s_mov_b32 s42, 0x00ff00ff")
        a("s_mov_b32 s43, 0x00ff00ff")
        a("s_mov_b64 exec, s[42:43]")
        self.store_mode(3, ACC)
        a("s_mov_b64 exec, -1")
        self.stamp(5)
        self.end(T)

    def role_c2(self):
        a = self.a
        VZ, V1 = 1, 2
        T = 100
        G = 8
        a("L_C2:")
        a("v_mov_b32 v1, 0\nv_mov_b32 v2, 1")
        self.role = "C2"
        a("s_setprio 3")
        a("v_lshlrev_b32 v3, 2, v0")
        a("s_mov_b32 exec_hi, 0")
        a("ds_write_b32 v3, v1 offset:%d" % L_F)
        a("s_mov_b64 exec, -1")
        self.args_ready()
        a("s_barrier")
        self.mlp_scalars()
        XF, FA, OUTA = 80, 81, 82
        a("""
        s_max_u32 s45, s27, 28
        s_sub_u32 s45, s45, 28
        s_lshl_b32 s45, s45, 3
        s_add_u32 s45, s45, s26               ; column set c'
        s_lshr_b32 s41, s45, 3
        s_lshl_b32 s41, s41, 7                ; 128 (c' >> 3)
        s_and_b32 s42, s45, 3
        s_lshl_b32 s42, s42, 5                ; 32 (c' & 3)
        s_add_u32 s41, s41, s42
        s_bfe_u32 s42, s45, 0x10002
        s_lshl_b32 s42, s42, 2
        s_add_u32 s41, s41, s42
        v_and_b32 v3, 3, v0
        v_lshlrev_b32 v3, 3, v3
        v_bfe_u32 v83, v0, 2, 1
        v_lshl_add_u32 v3, v83, 1, v3
        v_add_u32 v3, s41, v3                 ; first column of the pair
        v_lshlrev_b32 %s, 1, v3               ; byte offset in x / out
        s_lshl_b32 s41, s45, 11
        s_add_u32 s41, s41, %d
        v_lshrrev_b32 v3, 3, v0
        v_lshlrev_b32 v3, 8, v3
        v_and_b32 v83, 7, v0
        v_lshl_add_u32 v3, v83, 4, v3
        v_add_u32 %s, s41, v3
        """ % (vr(OUTA), H3B, vr(FA)))
        Lnf = a.newlabel("NF")
        a("s_cmp_lt_u32 s27, 28")
        a("s_cbranch_scc1 %s" % Lnf)
        a("global_load_dword %s, %s, %s" % (vr(XF), vr(OUTA), sp(S_X)))
        a("global_load_dwordx4 v[84:87], %s, %s sc1" % (vr(FA), sp(S_WS)))
        a("global_load_dwordx4 v[88:91], %s, %s offset:128 sc1" % (vr(FA), sp(S_WS)))
        a(Lnf + ":")
        a("""
        s_lshl_b32 s41, s26, 14
        s_add_u32 s41, s41, %d
        v_lshl_add_u32 v4, v0, 4, s41
        v_add_u32 v5, 0x1000, v4
        v_add_u32 v6, 0x2000, v4
        v_add_u32 v7, 0x3000, v4
        """ % H1)
        qloads = [(G + 16 * hd + 4 * rb, 4 + rb, 1024 * hd) for hd in range(4) for rb in range(4)]
        self.tags()
        self.stamp(1)
        self.flag_wait(F_QPUB, 1, VZ, T, sleep=1)
        self.stamp(2)
        Lslow, Lgot = a.newlabel("Q"), a.newlabel("Q")
        if not self.force_global:
            self.poll(qloads, S_WS, tag=S_T1X, limit=self.atimeout, on_timeout=Lslow, cnt=12, plain_first=bool(self.plain0 & 1))
            a("s_branch %s" % Lgot)
        a(Lslow + ":")
        a("s_waitcnt vmcnt(0)")
        a("s_add_u32 s46, s%d, %d" % (S_WS, REGB))
        a("s_addc_u32 s47, s%d, 0" % (S_WS + 1))
        L = a.newlabel("P")
        a("s_mov_b32 s%d, 0" % S_CNT)
        a(L + ":")
        for (vd, va, off) in qloads:
            a("global_load_dwordx4 %s, %s, s[46:47] offset:%d sc1" % (vr(vd, 4), vr(va), off))
        a("s_add_u32 s%d, s%d, 1" % (S_CNT, S_CNT))
        a("s_cmp_gt_u32 s%d, %d" % (S_CNT, POLL_MAX))
        a("s_cbranch_scc1 L_end")
        a("s_waitcnt vmcnt(0)")
        a("v_mov_b32 %s, 0" % vr(T))
        a("v_mov_b32 %s, 0" % vr(T + 1))
        for (vd, va, off) in qloads:
            a("v_xor_b32 %s, s%d, %s" % (vr(T + 2), S_T, vr(vd + 2)))
            a("v_xor_b32 %s, s%d, %s" % (vr(T + 3), S_T + 1, vr(vd + 3)))
            a("v_and_b32 %s, 0xfffffff0, %s" % (vr(T + 3), vr(T + 3)))
            a("v_or3_b32 %s, %s, %s, %s" % (vr(T), vr(T), vr(T + 2), vr(T + 3)))
            a("v_xor_b32 %s, s%d, %s" % (vr(T + 3), S_T1X + 1, vr(vd + 3)))
            a("v_or_b32 %s, %s, %s" % (vr(T + 1), vr(T + 1), vr(T + 3)))
        a("v_cmp_ne_u32 vcc, 0, %s" % vr(T))
        a("s_cbranch_vccnz %s" % L)
        a("v_cmp_ne_u32 vcc, 0, %s" % vr(T + 1))
        a("s_cbranch_vccz %s" % Lgot)
        self.flag_add(F_REM, VZ, V1)
        a(Lgot + ":")
        self.stamp(3)
        for hd in range(4):
            b = G + 16 * hd
            for e in range(2):
                a("v_add_f32 %s, %s, %s" % (vr(b + e), vr(b + e), vr(b + 4 + e)))
                a("v_add_f32 %s, %s, %s" % (vr(b + 8 + e), vr(b + 8 + e), vr(b + 12 + e)))
            for e in range(2):
                a("v_add_f32 %s, %s, %s" % (vr(b + e), vr(b + e), vr(b + 8 + e)))
            a("v_cvt_pk_bf16_f32 %s, %s, %s" % (vr(b), vr(b), vr(b + 1)))
        a("""
        v_lshrrev_b32 v72, 5, v0              ; cb_local
        v_lshlrev_b32 v72, 7, v72             ; 64 columns * 2 B
        v_and_b32 v73, 7, v0
        v_lshl_add_u32 v72, v73, 4, v72       ; 8 n * 2 B
        v_bfe_u32 v73, v0, 3, 1
        v_lshl_add_u32 v72, v73, 3, v72       ; 4 g' * 2 B
        v_bfe_u32 v73, v0, 4, 1
        v_lshl_add_u32 v72, v73, 2, v72       ; 2 s * 2 B
        """)
        for hd in range(4):
            a("ds_write_b32 v72, %s offset:%d" % (vr(G + 16 * hd), L_Q + 320 * hd))
        self.flag_add(F_Q, VZ, V1)
        self.stamp(4)
        SA, GA, BA = 4, 5, 6
        a("""
        s_lshl_b32 s41, s26, 17
        s_lshl_b32 s42, s27, 12
        s_add_u32 s41, s41, s42
        s_add_u32 s41, s41, %d
        v_lshrrev_b32 v3, 2, v0
        v_lshlrev_b32 v3, 7, v3
        v_and_b32 v7, 3, v0
        v_lshl_add_u32 v3, v7, 4, v3
        v_add_u32 %s, s41, v3
        s_lshl_b32 s41, s27, 11
        s_lshl_b32 s42, s26, 8
        s_add_u32 s41, s41, s42
        s_add_u32 s41, s41, %d
        v_lshl_add_u32 %s, v0, 4, s41
        """ % (H2 + 64, vr(SA), H3B, vr(BA)))
        self.read_mode(VZ, T)
        if self.sinit:
            for i in range(4):
                a("v_mov_b32 %s, 0" % vr(56 + i))
            for i in range(4):
                a("global_store_dwordx4 %s, v[56:59], %s offset:%d" % (vr(SA), sp(S_WS), 1024 * i))
            a("s_waitcnt vmcnt(0)")
            self.flag_add(F_INIT, VZ, V1)
        GS = 40
        GG, GAD, GW = 24, 44, 48
        a("v_mov_b32 %s, 0" % vr(GS))
        a("v_mov_b32 %s, 0" % vr(GS + 1))
        Lng = a.newlabel("NG")
        a("s_cmp_eq_u32 s49, 0")
        a("s_cbranch_scc1 %s" % Lng)
        a("""
        s_lshl_b32 s41, s26, 14
        s_lshl_b32 s42, s27, 9
        s_add_u32 s41, s41, s42
        s_add_u32 s41, s41, %d
        s_lshr_b32 s42, s49, 3
        v_bfe_u32 v52, v0, 3, 2
        v_cmp_gt_u32 vcc, s42, v52
        v_and_b32 v53, 31, v0
        v_and_b32 v54, 7, v0
        v_cndmask_b32 v53, v54, v53, vcc
        v_lshl_add_u32 %s, v53, 4, s41
        v_mov_b32 v54, 1.0
        v_cndmask_b32 %s, v1, v54, vcc
        """ % (H3G, vr(GAD), vr(GW)))
        def fill_s():
            for i in range(4):
                a("global_load_dwordx4 %s, %s, %s offset:%d sc1" % (vr(60 + 4 * i, 4), vr(SA), sp(S_MB), 1024 * i))
        if self.odelay:
            self.flag_wait(F_O, 1, VZ, T, sleep=1)
        elif self.spf == 1 or not self.ggate:
            self.flag_wait(F_OPUB, 4, VZ, T, sleep=1)
        if self.spf == 1:
            fill_s()
        if self.ggate == 1:
            self.flag_wait(F_WO, 1, VZ, T, sleep=1)
        if self.spf == 4:
            fill_s()
        self.poll([(GG, GAD, 0)], S_MB, cnt=15, plain_first=bool(self.plain0 & 4))
        if self.spf == 3:
            for i in range(4):
                a("global_load_dwordx4 %s, %s, %s offset:%d sc1" % (vr(60 + 4 * i, 4), vr(SA), sp(S_MB), 1024 * i))
        for e in range(2):
            a("v_mul_f32 %s, %s, %s" % (vr(GS + e), vr(GW), vr(GG + e)))
        self.xor_reduce("v_add_f32", [GS, GS + 1], [8, 16], T)
        a(Lng + ":")
        a("v_bfe_u32 v3, v0, 2, 1")
        a("v_bfe_u32 v7, v0, 3, 1")
        a("v_cmp_eq_u32 s[42:43], 1, v3")
        a("v_cmp_eq_u32 s[58:59], 1, v7")
        self.stamp(5)
        if self.sgate:
            self.flag_wait(F_SPUB, 4, VZ, T)
        else:
            L = a.newlabel("O")
            a("s_mov_b32 s%d, 0" % S_CNT)
            a(L + ":")
            a("ds_read_b32 %s, %s offset:%d" % (vr(T), vr(VZ), L_O + 4))
            a("s_add_u32 s%d, s%d, 1" % (S_CNT, S_CNT))
            a("s_cmp_gt_u32 s%d, %d" % (S_CNT, SPIN_MAX))
            a("s_cbranch_scc1 L_end")
            a("s_waitcnt lgkmcnt(0)")
            a("v_readfirstlane_b32 s%d, %s" % (S_TMP, vr(T)))
            a("s_cmp_lg_u32 s%d, 1" % S_TMP)
            a("s_cbranch_scc1 %s" % L)
        if self.sdelay:
            a("s_sleep %d" % self.sdelay)
        self.stamp(6)
        self.poll_mixed([(G + 4 * i, SA, 2048 * i, "e") for i in range(2)], S_MB, T, cnt=13)
        self.stamp(7)
        for k in range(8):
            a("v_and_b32 %s, s%d, %s" % (vr(G + k), S_EN, vr(G + k)))
        for k in range(4):
            a("v_add_f32 %s, %s, %s" % (vr(G + k), vr(G + k), vr(G + 4 + k)))
        self.xor_reduce("v_add_f32", [G, G + 1, G + 2, G + 3], ["r4", 8, 16, 32], T)
        a("v_cndmask_b32 %s, %s, %s, s[42:43]" % (vr(G), vr(G), vr(G + 2)))
        a("v_cndmask_b32 %s, %s, %s, s[42:43]" % (vr(G + 1), vr(G + 1), vr(G + 3)))
        a("v_mov_b32 %s, s%d" % (vr(G + 2), S_T))
        a("v_mov_b32 %s, s%d" % (vr(G + 3), S_T + 1))
        a("v_cndmask_b32 %s, %s, %s, s[58:59]" % (vr(G), vr(G), vr(GS)))
        a("v_cndmask_b32 %s, %s, %s, s[58:59]" % (vr(G + 1), vr(G + 1), vr(GS + 1)))
        a("s_mov_b64 exec, 0xffff")
        a("global_store_dwordx4 %s, %s, %s sc1" % (vr(BA), vr(G, 4), sp(S_WS)))
        a("s_mov_b64 exec, -1")
        self.stamp(8)
        Lf = a.newlabel("F")
        a("s_cmp_ge_u32 s27, 28")
        a("s_cbranch_scc1 %s" % Lf)
        self.end(T)
        a(Lf + ":")
        self.role = "C2F"
        G = 12
        if self.fstag:
            self.poll_staggered([(G, FA, 0), (G + 4, FA, 128)], [24, 28], [32, 36], S_WS, self.fstag)
            G = 32
        else:
            self.poll([(G, FA, 0), (G + 4, FA, 128)], S_WS, cnt=14)
        self.stamp(9)
        self.xor_reduce("v_add_f32", [G, G + 1, G + 4, G + 5], [8, 16, 32], T)
        a("v_cvt_pk_bf16_f32 %s, %s, %s" % (vr(G), vr(G), vr(G + 1)))
        a("v_cvt_pk_bf16_f32 %s, %s, %s" % (vr(G + 4), vr(G + 4), vr(G + 5)))
        a("v_and_b32 %s, 0xffff0000, %s" % (vr(G + 1), vr(G)))
        a("v_lshlrev_b32 %s, 16, %s" % (vr(G), vr(G)))
        a("v_and_b32 %s, 0xffff0000, %s" % (vr(G + 5), vr(G + 4)))
        a("v_lshlrev_b32 %s, 16, %s" % (vr(G + 4), vr(G + 4)))
        for e in range(2):
            a("v_mul_f32 %s, 0x%x, %s" % (vr(G + 8 + e), LOG2E ^ 0x80000000, vr(G + 4 + e)))
        for e in range(2):
            a("v_exp_f32 %s, %s" % (vr(G + 8 + e), vr(G + 8 + e)))
        a("s_nop 0")
        for e in range(2):
            a("v_add_f32 %s, 1.0, %s" % (vr(G + 8 + e), vr(G + 8 + e)))
        for e in range(2):
            a("v_rcp_f32 %s, %s" % (vr(G + 8 + e), vr(G + 8 + e)))
        a("s_nop 0")
        for e in range(2):
            a("v_mul_f32 %s, %s, %s" % (vr(G + 4 + e), vr(G + 4 + e), vr(G + 8 + e)))
        a("v_cvt_pk_bf16_f32 %s, %s, %s" % (vr(G + 4), vr(G + 4), vr(G + 5)))
        a("v_and_b32 %s, 0xffff0000, %s" % (vr(G + 5), vr(G + 4)))
        a("v_lshlrev_b32 %s, 16, %s" % (vr(G + 4), vr(G + 4)))
        for e in range(2):
            a("v_mul_f32 %s, %s, %s" % (vr(G + e), vr(G + e), vr(G + 4 + e)))
        a("v_cvt_pk_bf16_f32 %s, %s, %s" % (vr(G), vr(G), vr(G + 1)))
        a("v_and_b32 %s, 0xffff0000, %s" % (vr(G + 1), vr(G)))
        a("v_lshlrev_b32 %s, 16, %s" % (vr(G), vr(G)))
        a("v_and_b32 %s, 0xffff0000, %s" % (vr(G + 5), vr(XF)))
        a("v_lshlrev_b32 %s, 16, %s" % (vr(G + 4), vr(XF)))
        for e in range(2):
            a("v_add_f32 %s, %s, %s" % (vr(G + e), vr(G + e), vr(G + 4 + e)))
        a("v_cvt_pk_bf16_f32 %s, %s, %s" % (vr(G), vr(G), vr(G + 1)))
        a("s_mov_b64 exec, 0xff")
        a("global_store_dword %s, %s, %s" % (vr(OUTA), vr(G), sp(S_OUT)))
        Le = a.newlabel("E")
        a("s_cmp_lg_u32 s45, 0")
        a("s_cbranch_scc1 %s" % Le)
        a("s_mov_b64 exec, 1")
        a("v_mov_b32 %s, s%d" % (vr(G + 2), S_T))
        a("v_mov_b32 %s, s%d" % (vr(G + 3), S_T + 1))
        a("global_store_dwordx2 v1, %s, %s offset:%d sc1" % (vr(G + 2, 2), sp(S_WS), EPOCH))
        a(Le + ":")
        a("s_mov_b64 exec, -1")
        self.stamp(10)
        self.end(T)

    def build(self):
        self.prologue()
        self.role_c0()
        self.role_c1()
        self.role_c2()
        self.role_a()
        self.role_l()
        self.a("L_end:\ns_endpgm\nL_code_end:")
        return wrap(self.a.text(), 256, 512, LDS_BYTES, 192, sgpr=96)


def generate(**kw):
    return Gen(**kw).build()


if __name__ == "__main__":
    out = sys.argv[1] if len(sys.argv) > 1 else "cdna_kernels/%s.s" % NAME
    kw = {}
    for arg in sys.argv[2:]:
        k, v = arg.split("=")
        kw[k] = {"True": True, "False": False}.get(v, v)
    open(out, "w").write(generate(**kw))
    print("wrote", out)
```

```python
import sys
from asmgen import Asm, wrap, NAME

REGB = 0x400000
EPOCH = 0x0
H1 = 0x10000
ST = 0x50000
H3B = 0x70000
HB = 0x80000
H2 = 0x100000
H3S = 0x200000
H3G = 0x300000
STAMP_OFF = 256 << 20

L_Q = 0x0000
L_P = 0x0800
L_MX = 0x1800
L_O = 0x1AC0
L_XQ = 0x1880
L_XH = 0x1980
L_F = 0x1A80
L_K = 0x2000
L_V = 0xA000
L_WO = 0x12000
L_W2 = 0x16000
L_W1 = 0x1A000
F_V, F_INIT, F_Q, F_REM, F_K, F_MAX, F_P, F_ST, F_QPUB, F_OPUB, F_O, F_W1, F_SPUB, F_WO, F_W2, F_HPUB = [L_F + 4 * i for i in range(16)]
LDS_BYTES = 0x1E000

S_X, S_K, S_V, S_WQ, S_WO, S_W1, S_W2, S_OUT, S_WS = 4, 6, 8, 10, 12, 16, 18, 20, 24
S_G, S_C, S_W = 26, 27, 28
S_T = 30
S_XCC = 32
S_MODE = 33
S_MB = 34
S_T1X = 36
S_ISB = 38
S_CNT = 39
S_TMP = 40
S_E = 52
S_EM, S_EN = 56, 57
S_STAMP = 60

LOG2E = 0x3fb8aa3b
SCALE = 0x3db504f3
A_TIMEOUT = 8
SPIN_MAX = 1 << 20
POLL_MAX = 1 << 16


def sp(n):
    return "s[%d:%d]" % (n, n + 1)


def vr(n, k=1):
    return "v%d" % n if k == 1 else "v[%d:%d]" % (n, n + k - 1)


class Gen:
    def __init__(self, stamps=False, nt_kv="nt", nt_w="nt", force_global=False, mimic=True, window=16, nb_lo=32, nb_hi=24, order="k2v|o", code_pf=1, dbg=0, ileave=1, hold=0, init=2, w2=40, chk=4, init_late=0, ogate=4, sdelay=0, trace=0, sinit=0, sgate=1, spf=0, ofill=0, scramble=0, qack=1, qsleep=0, ggate=0, fstag=5, kgate=1, w1gate=0, odelay=0, prefill=0, plain0=0, atimeout=A_TIMEOUT, lprio=2, aprio=1, st_nt="", lazyb=1):
        self.a = Asm()
        self.window = int(window)
        self.nb_lo = int(nb_lo)
        self.nb_hi = int(nb_hi)
        self.order = order
        self.code_pf = int(code_pf)
        self.dbg = int(dbg)
        self.role = None
        if self.dbg:
            self.stamps = stamps = True
        self.ileave = int(ileave)
        self.hold = int(hold)
        self.init = int(init)
        self.w2 = int(w2)
        self.chk = int(chk)
        self.init_late = int(init_late)
        self.ogate = int(ogate)
        self.sdelay = int(sdelay)
        self.trace = int(trace)
        self.sinit = int(sinit)
        self.sgate = int(sgate)
        self.spf = int(spf)
        self.ofill = int(ofill)
        self.scramble = int(scramble)
        self.qack = int(qack)
        self.qsleep = int(qsleep)
        self.ggate = int(ggate)
        self.fstag = int(fstag)
        self.kgate = int(kgate)
        self.w1gate = int(w1gate)
        self.odelay = int(odelay)
        self.prefill = int(prefill)
        self.plain0 = int(plain0)
        self.atimeout = int(atimeout)
        self.lprio = int(lprio)
        self.st_nt = st_nt
        self.lazyb = int(lazyb)
        self.aprio = int(aprio)
        assert 4 * self.nb_lo + 4 * self.nb_hi == 224 and self.nb_lo % 8 == 0 and self.nb_hi % 8 == 0
        self.stamps = stamps
        self.nt_kv = nt_kv
        self.nt_w = nt_w
        self.force_global = force_global
        self.mimic = mimic
        self.nstamp = 0

    def stamp(self, idx):
        if self.stamps:
            self.a("s_memrealtime %s" % sp(S_STAMP + 2 * idx))

    def flag_add(self, flag, vz, vone):
        a = self.a
        a("s_mov_b64 exec, 1")
        a("ds_add_u32 %s, %s offset:%d" % (vr(vz), vr(vone), flag))
        a("s_mov_b64 exec, -1")

    def flag_set(self, flag, val, vz, vt):
        a = self.a
        a("v_mov_b32 %s, %d" % (vr(vt), val))
        a("s_mov_b64 exec, 1")
        a("ds_write_b32 %s, %s offset:%d" % (vr(vz), vr(vt), flag))
        a("s_mov_b64 exec, -1")

    def flag_wait(self, flag, n, vz, vt, sleep=0):
        a = self.a
        L, Lgo = a.newlabel("W"), a.newlabel("W")
        a("s_mov_b32 s%d, 0" % S_CNT)
        a(L + ":")
        a("ds_read_b32 %s, %s offset:%d" % (vr(vt), vr(vz), flag))
        a("s_waitcnt lgkmcnt(0)")
        a("v_readfirstlane_b32 s%d, %s" % (S_TMP, vr(vt)))
        a("s_cmp_ge_u32 s%d, %d" % (S_TMP, n))
        a("s_cbranch_scc1 %s" % Lgo)
        if sleep:
            a("s_sleep %d" % sleep)
        a("s_add_u32 s%d, s%d, 1" % (S_CNT, S_CNT))
        a("s_cmp_lt_u32 s%d, %d" % (S_CNT, SPIN_MAX))
        a("s_cbranch_scc1 %s" % L)
        a("s_branch L_end")
        a(Lgo + ":")

    def store_mode(self, vaddr, vdata, n=4):
        a = self.a
        L1, L2 = a.newlabel("S"), a.newlabel("S")
        op = "global_store_dwordx%d" % n
        a("s_cmp_lg_u32 s%d, 0" % S_MODE)
        a("s_cbranch_scc1 %s" % L1)
        a("%s %s, %s, %s %s" % (op, vr(vaddr), vr(vdata, n), sp(S_MB), self.st_nt))
        a("s_branch %s" % L2)
        a(L1 + ":")
        a("%s %s, %s, %s sc1" % (op, vr(vaddr), vr(vdata, n), sp(S_MB)))
        a(L2 + ":")

    def poll_traced(self, loads, base, first_stamp, npass=4):
        a = self.a
        Lok = a.newlabel("PT")
        n = len(loads)
        for k in range(npass):
            a("s_memrealtime %s" % sp(S_STAMP + 2 * (first_stamp + k)))
            for (vd, va, off) in loads:
                a("global_load_dwordx4 %s, %s, %s offset:%d sc1" % (vr(vd, 4), vr(va), sp(base), off))
            for i, (vd, va, off) in enumerate(loads):
                a("s_waitcnt vmcnt(%d)" % (n - 1 - i))
                dst = "vcc" if i == 0 else sp(S_TMP)
                a("v_cmp_ne_u64 %s, %s, %s" % (dst, vr(vd + 2, 2), sp(S_T)))
                if i:
                    a("s_or_b64 vcc, vcc, %s" % sp(S_TMP))
            a("s_cbranch_vccz %s" % Lok)
        self.poll(loads, base)
        a(Lok + ":")

    def poll(self, loads, base, tag=S_T, limit=POLL_MAX, on_timeout="L_end", cnt=None, plain_first=False):
        a = self.a
        L, Lok = a.newlabel("P"), a.newlabel("P")
        n = len(loads)

        def one_pass(flag):
            for (vd, va, off) in loads:
                a("global_load_dwordx4 %s, %s, %s offset:%d %s" % (vr(vd, 4), vr(va), sp(base), off, flag))
            for i, (vd, va, off) in enumerate(loads):
                a("s_waitcnt vmcnt(%d)" % (n - 1 - i))
                dst = "vcc" if i == 0 else sp(S_TMP)
                a("v_cmp_ne_u64 %s, %s, %s" % (dst, vr(vd + 2, 2), sp(tag)))
                if i:
                    a("s_or_b64 vcc, vcc, %s" % sp(S_TMP))
            a("s_cbranch_vccz %s" % Lok)
        a("s_mov_b32 s%d, 0" % S_CNT)
        if plain_first:
            one_pass("")
        a(L + ":")
        one_pass("sc1")
        a("s_add_u32 s%d, s%d, 1" % (S_CNT, S_CNT))
        a("s_cmp_le_u32 s%d, %d" % (S_CNT, limit))
        a("s_cbranch_scc1 %s" % L)
        a("s_branch %s" % on_timeout)
        a(Lok + ":")
        if cnt is not None and self.stamps:
            a("s_mov_b32 s%d, s%d" % (S_STAMP + 2 * cnt, S_CNT))

    def poll_mixed(self, loads, base, tmp, cnt=None):
        a = self.a
        L, Lok = a.newlabel("P"), a.newlabel("P")
        n = len(loads)
        a("s_mov_b32 s%d, 0" % S_CNT)
        a(L + ":")
        for (vd, va, off, kind) in loads:
            a("global_load_dwordx4 %s, %s, %s offset:%d sc1" % (vr(vd, 4), vr(va), sp(base), off))
        first_t, first_e = True, True
        for i, (vd, va, off, kind) in enumerate(loads):
            a("s_waitcnt vmcnt(%d)" % (n - 1 - i))
            if kind == "t":
                a("v_cmp_ne_u64 %s, %s, %s" % (sp(46) if first_t else sp(S_TMP), vr(vd + 2, 2), sp(S_T)))
                if not first_t:
                    a("s_or_b64 s[46:47], s[46:47], %s" % sp(S_TMP))
                first_t = False
            else:
                for k in range(4):
                    a("v_xor_b32 %s, s%d, %s" % (vr(tmp + 1 + k), S_E + k, vr(vd + k)))
                if first_e:
                    a("v_or3_b32 %s, %s, %s, %s" % (vr(tmp), vr(tmp + 1), vr(tmp + 2), vr(tmp + 3)))
                    a("v_or_b32 %s, %s, %s" % (vr(tmp), vr(tmp), vr(tmp + 4)))
                else:
                    a("v_or3_b32 %s, %s, %s, %s" % (vr(tmp), vr(tmp), vr(tmp + 1), vr(tmp + 2)))
                    a("v_or3_b32 %s, %s, %s, %s" % (vr(tmp), vr(tmp), vr(tmp + 3), vr(tmp + 4)))
                first_e = False
        a("v_and_b32 %s, s%d, %s" % (vr(tmp), S_EM, vr(tmp)))
        a("v_cmp_ne_u32 vcc, 0, %s" % vr(tmp))
        if not first_t:
            a("s_or_b64 vcc, vcc, s[46:47]")
        a("s_cbranch_vccz %s" % Lok)
        a("s_add_u32 s%d, s%d, 1" % (S_CNT, S_CNT))
        a("s_cmp_le_u32 s%d, %d" % (S_CNT, POLL_MAX))
        a("s_cbranch_scc1 %s" % L)
        a("s_branch L_end")
        a(Lok + ":")
        if cnt is not None and self.stamps:
            a("s_mov_b32 s%d, s%d" % (S_STAMP + 2 * cnt, S_CNT))

    def poll_staggered(self, loads, alt, dst, base, sleep):
        a = self.a
        n = len(loads)
        L, LA, LB = a.newlabel("PS"), a.newlabel("PS"), a.newlabel("PS")

        def issue(regs):
            for (vd, (_, va, off)) in zip(regs, loads):
                a("global_load_dwordx4 %s, %s, %s offset:%d sc1" % (vr(vd, 4), vr(va), sp(base), off))

        def check(regs, ok):
            for i, vd in enumerate(regs):
                a("s_waitcnt vmcnt(%d)" % (2 * n - 1 - i))
                dst = "vcc" if i == 0 else sp(S_TMP)
                a("v_cmp_ne_u64 %s, %s, %s" % (dst, vr(vd + 2, 2), sp(S_T)))
                if i:
                    a("s_or_b64 vcc, vcc, %s" % sp(S_TMP))
            a("s_cbranch_vccz %s" % ok)
        ra = [vd for (vd, _, _) in loads]
        a("s_mov_b32 s%d, 0" % S_CNT)
        issue(ra)
        a("s_sleep %d" % sleep)
        a(L + ":")
        issue(alt)
        check(ra, LA)
        issue(ra)
        check(alt, LB)
        a("s_add_u32 s%d, s%d, 1" % (S_CNT, S_CNT))
        a("s_cmp_le_u32 s%d, %d" % (S_CNT, POLL_MAX))
        a("s_cbranch_scc1 %s" % L)
        a("s_branch L_end")
        Ld = a.newlabel("PS")
        a(LB + ":")
        for (x, y) in zip(dst, alt):
            for k in range(2):
                a("v_mov_b32 %s, %s" % (vr(x + k), vr(y + k)))
        a("s_branch %s" % Ld)
        a(LA + ":")
        for (x, y) in zip(dst, ra):
            for k in range(2):
                a("v_mov_b32 %s, %s" % (vr(x + k), vr(y + k)))
        a(Ld + ":")

    def xor_reduce(self, op, regs, steps, tmp):
        a = self.a
        first_dpp = True
        for st in steps:
            if st in (16, 32):
                ins = "v_permlane16_swap_b32" if st == 16 else "v_permlane32_swap_b32"
                for i, r in enumerate(regs):
                    a("v_mov_b32 %s, %s" % (vr(tmp + i), vr(r)))
                if len(regs) < 3:
                    a("s_nop %d" % (2 - len(regs)))
                for i, r in enumerate(regs):
                    a("%s %s, %s" % (ins, vr(r), vr(tmp + i)))
                for i, r in enumerate(regs):
                    a("%s %s, %s, %s" % (op, vr(r), vr(r), vr(tmp + i)))
            else:
                ctl = {1: "quad_perm:[1,0,3,2]", 2: "quad_perm:[2,3,0,1]", "hm": "row_half_mirror", "m": "row_mirror", 8: "row_ror:8", "r4": "row_ror:4"}[st]
                a("s_nop 1" if first_dpp or len(regs) < 3 else "s_nop 0")
                first_dpp = False
                for r in regs:
                    a("%s_dpp %s, %s, %s %s row_mask:0xf bank_mask:0xf" % (op, vr(r), vr(r), vr(r), ctl))

    def read_mode(self, vz, vt):
        a = self.a
        a("ds_read_b32 %s, %s offset:%d" % (vr(vt), vr(vz), F_REM))
        a("s_waitcnt lgkmcnt(0)")
        a("v_readfirstlane_b32 s%d, %s" % (S_MODE, vr(vt)))
        if self.force_global:
            a("s_mov_b32 s%d, 1" % S_MODE)
        a("s_min_u32 s%d, s%d, 1" % (S_MODE, S_MODE))
        a("s_mul_i32 s%d, s%d, %d" % (S_TMP, S_MODE, REGB))
        a("s_add_u32 s%d, s%d, s%d" % (S_MB, S_WS, S_TMP))
        a("s_addc_u32 s%d, s%d, 0" % (S_MB + 1, S_WS + 1))

    def tags(self):
        a = self.a
        a("s_getreg_b32 s32, hwreg(HW_REG_XCC_ID, 0, 4)")
        a("s_waitcnt lgkmcnt(0)")
        a("s_add_u32 s%d, s%d, 0x9E3779B9" % (S_T, S_T))
        a("s_add_u32 s%d, s%d, 0x7F4A7C00" % (S_T + 1, S_T + 1))
        a("s_and_b32 s%d, s%d, 0xFFFFFFE0" % (S_T + 1, S_T + 1))
        a("s_or_b32 s%d, s%d, 0x10" % (S_T + 1, S_T + 1))
        a("s_mov_b32 s%d, s%d" % (S_T1X, S_T))
        a("s_or_b32 s%d, s%d, s%d" % (S_T1X + 1, S_T + 1, S_XCC))
        a("s_and_b32 s%d, s%d, 0x3ff" % (S_E, S_T))
        a("s_bfe_u32 s%d, s%d, 0xA000A" % (S_E + 1, S_T))
        a("s_bfe_u32 s%d, s%d, 0xA0014" % (S_E + 2, S_T))
        a("s_bfe_u32 s%d, s%d, 0xA0008" % (S_E + 3, S_T + 1))
        a("s_movk_i32 s%d, 0x3ff" % S_EM)
        a("s_mov_b32 s%d, 0xfffffc00" % S_EN)

    DBG_MAP = {"A": {0: [(0, True), (1, False)], 1: [(12, False)], 3: [(5, False)], 6: [(7, False)], 7: [(9, False)]},
               "C0": {2: [(14, False)], 4: [(15, False)], 5: [(3, False)], 9: [(8, False)]},
               "C1B": {5: [(13, False)]},
               "C2": {4: [(4, False)], 8: [(10, False)]},
               "C2F": {4: [(4, False)], 8: [(10, False)], 10: [(11, False)]},
               "L": {1: [(2, False)], 3: [(6, False)]}}

    def dump_stamps(self, vt):
        if not self.stamps:
            return
        a = self.a
        if self.dbg:
            a("s_waitcnt lgkmcnt(0)")
            a("s_mov_b64 exec, 1")
            a("v_mov_b32 %s, 0" % vr(vt))
            for st, outs in self.DBG_MAP.get(self.role, {}).items():
                for slot, inv in outs:
                    a("v_mov_b32 %s, s%d" % (vr(vt + 1), S_STAMP + 2 * st))
                    if inv:
                        a("v_not_b32 %s, %s" % (vr(vt + 1), vr(vt + 1)))
                    a("global_atomic_umax %s, %s, s[22:23] offset:%d" % (vr(vt), vr(vt + 1), 4 * slot))
            return
        a("s_waitcnt lgkmcnt(0)")
        a("s_lshl_b32 s%d, s2, 3" % S_TMP)
        a("s_add_u32 s%d, s%d, s%d" % (S_TMP, S_TMP, S_W))
        a("s_lshl_b32 s%d, s%d, 6" % (S_TMP, S_TMP))
        a("s_add_u32 s%d, s%d, %d" % (S_TMP, S_TMP, STAMP_OFF))
        a("s_mov_b64 exec, 1")
        a("v_mov_b32 %s, s%d" % (vr(vt), S_TMP))
        for i in range(16):
            a("v_mov_b32 %s, s%d" % (vr(vt + 1), S_STAMP + 2 * i))
            a("global_store_dword %s, %s, %s offset:%d" % (vr(vt), vr(vt + 1), sp(S_WS), 4 * i))

    def end(self, vt):
        self.dump_stamps(vt)
        self.a("s_endpgm")

    def layernorm_rows(self, base, lds_x, VZ, rows=128):
        a = self.a
        xs, xp = base, base + 4
        f = base + 16
        t = base + 24
        for i in range(4):
            a("v_lshlrev_b32 %s, 16, %s" % (vr(f + 2 * i), vr(xs + i)))
            a("v_and_b32 %s, 0xffff0000, %s" % (vr(f + 2 * i + 1), vr(xs + i)))
        a("v_add_f32 %s, %s, %s" % (vr(t), vr(f), vr(f + 1)))
        a("v_add_f32 %s, %s, %s" % (vr(t + 1), vr(f + 2), vr(f + 3)))
        a("v_add_f32 %s, %s, %s" % (vr(t + 2), vr(f + 4), vr(f + 5)))
        a("v_add_f32 %s, %s, %s" % (vr(t + 3), vr(f + 6), vr(f + 7)))
        a("v_add_f32 %s, %s, %s" % (vr(t), vr(t), vr(t + 1)))
        a("v_add_f32 %s, %s, %s" % (vr(t + 2), vr(t + 2), vr(t + 3)))
        a("v_add_f32 %s, %s, %s" % (vr(t), vr(t), vr(t + 2)))
        self.xor_reduce("v_add_f32", [t], [1, 2, "hm", "m", 16, 32], t + 4)
        a("v_mul_f32 %s, 0x3b000000, %s" % (vr(t), vr(t)))
        for i in range(8):
            a("v_sub_f32 %s, %s, %s" % (vr(f + i), vr(f + i), vr(t)))
        a("v_mul_f32 %s, %s, %s" % (vr(t + 1), vr(f), vr(f)))
        a("v_mul_f32 %s, %s, %s" % (vr(t + 2), vr(f + 1), vr(f + 1)))
        for i in range(2, 8, 2):
            a("v_fmac_f32 %s, %s, %s" % (vr(t + 1), vr(f + i), vr(f + i)))
            a("v_fmac_f32 %s, %s, %s" % (vr(t + 2), vr(f + i + 1), vr(f + i + 1)))
        a("v_add_f32 %s, %s, %s" % (vr(t + 1), vr(t + 1), vr(t + 2)))
        self.xor_reduce("v_add_f32", [t + 1], [1, 2, "hm", "m", 16, 32], t + 4)
        a("v_mul_f32 %s, 0x3b000000, %s" % (vr(t + 1), vr(t + 1)))
        a("v_cvt_pk_bf16_f32 %s, %s, %s" % (vr(t + 2), vr(t), vr(t + 1)))
        a("v_lshlrev_b32 %s, 16, %s" % (vr(t), vr(t + 2)))
        a("v_and_b32 %s, 0xffff0000, %s" % (vr(t + 1), vr(t + 2)))
        a("v_add_f32 %s, 0x3727c5ac, %s" % (vr(t + 1), vr(t + 1)))
        a("v_cvt_pk_bf16_f32 %s, %s, %s" % (vr(t + 1), vr(t + 1), vr(t + 1)))
        a("v_and_b32 %s, 0xffff0000, %s" % (vr(t + 1), vr(t + 1)))
        a("v_sqrt_f32 %s, %s" % (vr(t + 1), vr(t + 1)))
        a("s_nop 0")
        a("v_cvt_pk_bf16_f32 %s, %s, %s" % (vr(t + 1), vr(t + 1), vr(t + 1)))
        a("v_and_b32 %s, 0xffff0000, %s" % (vr(t + 1), vr(t + 1)))
        a("v_rcp_f32 %s, %s" % (vr(t + 2), vr(t + 1)))
        a("v_lshlrev_b32 %s, 16, %s" % (vr(f), vr(xp)))
        a("v_and_b32 %s, 0xffff0000, %s" % (vr(f + 1), vr(xp)))
        a("v_sub_f32 %s, %s, %s" % (vr(f), vr(f), vr(t)))
        a("v_sub_f32 %s, %s, %s" % (vr(f + 1), vr(f + 1), vr(t)))
        a("v_cvt_pk_bf16_f32 %s, %s, %s" % (vr(f), vr(f), vr(f + 1)))
        a("v_and_b32 %s, 0xffff0000, %s" % (vr(f + 1), vr(f)))
        a("v_lshlrev_b32 %s, 16, %s" % (vr(f), vr(f)))
        for i in range(2):
            a("v_mul_f32 %s, %s, %s" % (vr(f + 2 + i), vr(f + i), vr(t + 2)))
        for i in range(2):
            a("v_fma_f32 %s, -%s, %s, %s" % (vr(f + 4 + i), vr(f + 2 + i), vr(t + 1), vr(f + i)))
        for i in range(2):
            a("v_fmac_f32 %s, %s, %s" % (vr(f + 2 + i), vr(f + 4 + i), vr(t + 2)))
        a("v_cvt_pk_bf16_f32 %s, %s, %s" % (vr(f), vr(f + 2), vr(f + 3)))
        if rows == 128:
            a("v_lshlrev_b32 %s, 2, v0" % vr(t))
        else:
            a("v_and_b32 %s, 31, v0" % vr(t))
            a("v_lshlrev_b32 %s, 2, %s" % (vr(t), vr(t)))
        a("ds_write_b32 %s, %s offset:%d" % (vr(t), vr(f), lds_x))
        a("v_lshrrev_b32 %s, 3, v0" % vr(t))
        a("v_lshlrev_b32 %s, %d, %s" % (vr(t), 5 if rows == 128 else 4, vr(t)))
        a("ds_read_b128 %s, %s offset:%d" % (vr(base + 8, 4), vr(t), lds_x))
        if rows == 128:
            a("ds_read_b128 %s, %s offset:%d" % (vr(base + 12, 4), vr(t), lds_x + 16))

    def selectors(self, sel, tmp, both_parities):
        a = self.a
        a("v_and_b32 %s, 15, v0" % vr(tmp))
        a("v_and_b32 %s, 1, %s" % (vr(tmp + 1), vr(tmp)))
        a("v_bfe_u32 %s, %s, 1, 2" % (vr(tmp + 2), vr(tmp)))
        if not both_parities:
            a("v_lshrrev_b32 %s, 3, %s" % (vr(tmp + 3), vr(tmp)))
            a("v_lshl_add_u32 %s, %s, 2, %s" % (vr(tmp + 2), vr(tmp + 3), vr(tmp + 2)))
        a("v_cmp_eq_u32 vcc, 1, %s" % vr(tmp + 1))
        a("v_mov_b32 %s, 0x0c0c0100" % vr(tmp + 3))
        a("v_mov_b32 %s, 0x01000c0c" % vr(tmp + 4))
        a("v_cndmask_b32 %s, %s, %s, vcc" % (vr(tmp + 5), vr(tmp + 3), vr(tmp + 4)))
        a("v_mov_b32 %s, 0x0c0c0302" % vr(tmp + 3))
        a("v_mov_b32 %s, 0x03020c0c" % vr(tmp + 4))
        a("v_cndmask_b32 %s, %s, %s, vcc" % (vr(tmp + 6), vr(tmp + 3), vr(tmp + 4)))
        a("v_mov_b32 %s, 0x0c0c0c0c" % vr(tmp + 3))
        for t in range(4):
            a("v_cmp_eq_u32 vcc, %d, %s" % (t, vr(tmp + 2)))
            a("s_nop 1")
            a("v_cndmask_b32 %s, %s, %s, vcc" % (vr(sel + t), vr(tmp + 3), vr(tmp + 5)))
            a("v_cndmask_b32 %s, %s, %s, vcc" % (vr(sel + 4 + t), vr(tmp + 3), vr(tmp + 6)))

    def tile_gemv(self, W, XN, SEL, AF, ACC, nafter):
        a = self.a
        for i in range(16):
            for t in range(4):
                a("v_perm_b32 %s, %s, %s, %s" % (vr(AF + 4 * i + t), vr(XN + (i >> 1)), vr(XN + (i >> 1)), vr(SEL + 4 * (i & 1) + t)))
        for i in range(16):
            a("s_waitcnt vmcnt(%d)" % (15 - i + nafter))
            a("v_mfma_f32_16x16x32_bf16 %s, %s, %s, %s" % (vr(ACC, 4), vr(AF + 4 * i, 4), vr(W + 4 * i, 4), "0" if i == 0 else vr(ACC, 4)))
        a("s_nop 7")
        a("v_permlane32_swap_b32 %s, %s" % (vr(ACC), vr(ACC + 2)))
        a("v_permlane32_swap_b32 %s, %s" % (vr(ACC + 1), vr(ACC + 3)))
        a("s_nop 1")
        a("v_add_f32_dpp %s, %s, %s row_ror:8 row_mask:0xf bank_mask:0xf" % (vr(ACC), vr(ACC + 2), vr(ACC)))
        a("v_add_f32_dpp %s, %s, %s row_ror:8 row_mask:0xf bank_mask:0xf" % (vr(ACC + 1), vr(ACC + 3), vr(ACC + 1)))


    def prologue(self):
        a = self.a
        a("""
        s_cmp_ge_u32 s2, 256
        s_cbranch_scc1 L_end
        """)
        self.stamp(0)
        a("""
        s_load_dwordx16 s[4:19], s[0:1], 0
        s_load_dwordx4 s[20:23], s[0:1], 64
        s_load_dwordx2 s[24:25], s[0:1], 80
        v_lshrrev_b32 v1, 6, v0
        v_and_b32 v0, 63, v0
        %s
        v_readfirstlane_b32 s28, v1
        v_lshlrev_b32 v37, 4, v0
        s_lshr_b32 s40, s27, 3                ; row block of the Wq tile
        s_cmp_eq_u32 s28, 7
        s_cbranch_scc1 L_L
        s_cmp_eq_u32 s28, 5
        s_cbranch_scc1 L_C1
        s_cmp_eq_u32 s28, 6
        s_cbranch_scc1 L_C2
        s_cmp_lt_u32 s28, 4
        s_cbranch_scc1 L_A
        """ % ("s_lshr_b32 s26, s2, 5\ns_and_b32 s27, s2, 31" if self.scramble else "s_and_b32 s26, s2, 7\ns_lshr_b32 s27, s2, 3"))

    def dispatch_others(self):
        self.a("""
        L_other:
        v_mov_b32 v1, 0
        v_mov_b32 v2, 1
        s_cmp_eq_u32 s28, 7
        s_cbranch_scc1 L_L
        s_cmp_eq_u32 s28, 5
        s_cbranch_scc1 L_C1
        s_cmp_eq_u32 s28, 6
        s_cbranch_scc1 L_C2
        s_branch L_A
        """)

    def mlp_scalars(self):
        self.a("""
        s_cmp_lt_u32 s26, 4
        s_cselect_b32 s49, %d, %d
        s_cmp_lt_u32 s27, s49
        s_cselect_b32 s38, 1, 0
        s_mul_i32 s50, s26, %d
        s_sub_u32 s51, s26, 4
        s_mul_i32 s51, s51, %d
        s_add_u32 s51, s51, %d
        s_cmp_lt_u32 s26, 4
        s_cselect_b32 s50, s50, s51
        s_lshr_b32 s51, s27, 3
        s_add_u32 s50, s50, s51
        """ % (self.nb_lo, self.nb_hi, self.nb_lo // 8, self.nb_hi // 8, self.nb_lo // 2))

    def args_ready(self):
        self.a("s_waitcnt lgkmcnt(0)")
        self.a("s_load_dwordx2 s[30:31], s[24:25], %d" % EPOCH)

    def role_l(self):
        a = self.a
        VZ, V1 = 1, 2
        a(".p2align 8")
        a("L_L:")
        a("v_mov_b32 v1, 0\nv_mov_b32 v2, 1")
        self.role = "L"
        KO, VO = 8, 12
        WOA, WOB, W2A, W1A = 16, 17, 18, 20
        piece = 0x8000 if self.ileave else 0x400
        a("""
        s_lshl_b32 s40, s26, 24
        s_add_u32 s40, s40, 0xF00000
        s_lshl_b32 s41, s27, %d
        s_add_u32 s40, s40, s41               ; first piece of this chunk
        v_lshrrev_b32 v3, 4, v0               ; q4
        v_and_b32 v4, 15, v0                  ; pos
        v_xor_b32 v5, v4, v3
        v_lshl_add_u32 v6, v3, 8, s40
        """ % (10 if self.ileave else 15))
        for q in range(4):
            a("v_xor_b32 v7, %d, v5" % (4 * q))
            a("v_lshl_add_u32 v7, v7, 4, v6")
            a("v_add_u32 %s, %d, v7" % (vr(KO + q), 2 * q * piece))

        def rest_addresses():
            a("v_lshlrev_b32 v7, 1, v3")
            a("v_xor_b32 v7, v7, v4")
            a("v_lshl_add_u32 %s, v7, 4, v6" % vr(VO))
            a("v_xor_b32 v7, 8, v7")
            a("v_lshl_add_u32 v7, v7, 4, v6")
            a("v_add_u32 %s, %d, v7" % (vr(VO + 1), 2 * piece))
            a("""
            s_lshl_b32 s42, s26, 9                ; 512 g
            s_lshr_b32 s43, s27, 3
            s_lshl_b32 s43, s43, 7                ; 128 h
            s_add_u32 s42, s42, s43
            s_bfe_u32 s43, s27, 0x20001
            s_lshl_b32 s43, s43, 5
            s_add_u32 s42, s42, s43
            s_and_b32 s43, s27, 1
            s_lshl_b32 s43, s43, 3
            s_add_u32 s42, s42, s43               ; first Wo row
            s_lshl_b32 s42, s42, 10
            v_lshlrev_b32 v6, 4, v4               ; 16 n
            v_lshl_add_u32 v7, v3, 11, v6
            v_add_u32 %s, s42, v7
            v_add_u32 %s, 0x4000, %s
            s_lshl_b32 s42, s50, 16               ; 64 cbg rows * 1024
            s_and_b32 s43, s27, 7
            s_lshl_b32 s43, s43, 7                ; column block j * 128 bytes
            s_add_u32 s42, s42, s43
            v_lshrrev_b32 v6, 3, v0
            v_lshlrev_b32 v6, 13, v6              ; 8 rows * 1024
            v_and_b32 v7, 7, v0
            v_lshl_add_u32 v6, v7, 4, v6
            v_add_u32 %s, s42, v6
            v_add_u32 v19, 0x1000, %s
            """ % (vr(WOA), vr(WOB), vr(WOA), vr(W2A), vr(W2A)))

        def m0(x):
            return "s_movk_i32 m0, 0x%x\n" % x if x < 0x8000 else "s_mov_b32 m0, 0x%x\n" % x

        def seq(isb):
            ops, flags, gates = [], [], []
            for grp in self.order:
                if grp == "|":
                    gates.append(len(ops))
                elif grp == "k":
                    for w in range(4):
                        for q in range(4):
                            for t in range(2):
                                p = 8 * w + 2 * q + t
                                ops.append((m0(L_K + 1024 * p), "global_load_lds_dwordx4 %s, %s %s" % (vr(KO + q), sp(S_K), self.nt_kv),
                                            "v_add_u32 %s, 0x%x, %s" % (vr(KO + q), (1 if t == 0 else 7) * piece, vr(KO + q))))
                    flags.append((len(ops), F_K))
                elif grp == "v":
                    for w in range(4):
                        for i in range(8):
                            b = (i >> 1) & 1
                            ops.append((m0(L_V + 1024 * (8 * w + i)), "global_load_lds_dwordx4 %s, %s %s" % (vr(VO + b), sp(S_V), self.nt_kv),
                                        "v_add_u32 %s, 0x%x, %s" % (vr(VO + b), (1 if (i & 1) == 0 else 3) * piece, vr(VO + b))))
                        flags.append((len(ops), F_V))
                elif grp == "f":
                    for i in range(4):
                        ops.append(("", "global_load_dwordx4 v[24:27], v23, %s offset:%d sc1" % (sp(S_WS), 1024 * i), ""))
                    ops.append(("", "global_load_dwordx4 v[24:27], v28, %s sc1" % sp(S_WS), ""))
                elif grp == "o":
                    for w in range(4):
                        for i in range(4):
                            off = 256 * w + 1024 * (i >> 1)
                            ops.append((m0(L_WO + (4 * w + i) * 1024 - off),
                                        "global_load_lds_dwordx4 %s, %s offset:%d %s" % (vr(WOA if (i & 1) == 0 else WOB), sp(S_WO), off, self.nt_w), ""))
                    flags.append((len(ops), F_WO))
                elif grp == "2" and isb:
                    for i in range(8):
                        ops.append((m0(L_W2 + 4096 * (i >> 2)),
                                    "global_load_lds_dwordx4 %s, %s offset:%d %s" % (vr(W2A if i < 4 else 19), sp(S_W2), 1024 * (i & 3), self.nt_w), ""))
                    flags.append((len(ops), F_W2))
                elif grp == "1" and isb:
                    for i in range(8):
                        ops.append((m0(L_W1 + 1024 * i), "global_load_lds_dwordx4 %s, %s %s" % (vr(W1A), sp(S_W1), self.nt_w),
                                    "v_add_u32 %s, 3584, %s" % (vr(W1A), vr(W1A))))
                    flags.append((len(ops), F_W1))
            return ops, flags, gates

        W = self.window
        self.args_ready()
        self.stamp(1)
        assert self.order[0] == "k"
        ops0, _, _ = seq(False)
        NE = min(W, 5) if not self.kgate else 0
        for j in range(NE):
            pre, ld, post = ops0[j]
            a(pre)
            a("s_nop 0")
            a(ld)
            a(post)
        a("s_barrier")
        if self.lprio:
            a("s_setprio %d" % self.lprio)
        self.mlp_scalars()
        rest_addresses()
        if self.kgate:
            self.flag_wait(F_ST, 1, VZ, 21)
        if "f" in self.order:
            a("""
            s_lshl_b32 s41, s26, 17
            s_lshl_b32 s42, s27, 12
            s_add_u32 s41, s41, s42
            s_add_u32 s41, s41, %d
            v_lshl_add_u32 v23, v0, 4, s41
            s_lshl_b32 s41, s26, 11
            s_lshr_b32 s42, s27, 3
            s_lshl_b32 s42, s42, 9
            s_add_u32 s41, s41, s42
            s_add_u32 s41, s41, %d
            v_and_b32 v28, 31, v0
            v_lshl_add_u32 v28, v28, 4, s41
            """ % (H2, ST))

        def with_values(flags):
            out, nv = [], 0
            for (e, f) in flags:
                if f == F_V:
                    nv += 1
                    out.append((e, f, nv))
                else:
                    out.append((e, f, 1))
            return out

        def run(ops, flags, gates, W, start, labels=None, check_to=None, first=False):
            n = len(ops)
            pend = [f for f in flags if f[0] > max(0, start - (W - 1)) or first]
            hold = self.hold
            for j in range(start, n):
                pre, ld, post = ops[j]
                if labels and j in labels:
                    a(labels[j] + ":")
                if hold and j == hold:
                    while pend and pend[0][0] <= j:
                        e, f, val = pend.pop(0)
                        a("s_waitcnt vmcnt(%d)" % (j - e))
                        self.flag_set(f, val, VZ, 22)
                    self.flag_wait(F_QPUB, 1, VZ, 21)
                    if isb_cur[0] and self.order[0] == "1":
                        self.flag_wait(F_HPUB, 1, VZ, 21)
                    self.stamp(4)
                if j in gates:
                    while pend and pend[0][0] <= j:
                        e, f, val = pend.pop(0)
                        a("s_waitcnt vmcnt(%d)" % (j - e))
                        self.flag_set(f, val, VZ, 22)
                    self.flag_wait(F_OPUB, 4, VZ, 21)
                chk = check_to is not None and j in check_to
                if chk:
                    a("ds_read_b32 v21, %s offset:%d" % (vr(VZ), F_Q))
                if j >= W and not any(g <= j < g + W for g in gates):
                    a("s_waitcnt vmcnt(%d)" % (W - 1))
                    landed = j - (W - 1)
                    while pend and pend[0][0] <= landed:
                        e, f, val = pend.pop(0)
                        self.flag_set(f, val, VZ, 22)
                if chk:
                    a("s_waitcnt lgkmcnt(0)")
                    a("v_readfirstlane_b32 s%d, v21" % S_TMP)
                    a("s_cmp_lg_u32 s%d, 0" % S_TMP)
                    a("s_cbranch_scc1 %s" % check_to[j])
                a(pre)
                a("s_nop 0")
                a(ld)
                if post:
                    a(post)
            self.stamp(2)
            for (e, f, val) in pend:
                a("s_waitcnt vmcnt(%d)" % (n - e))
                self.flag_set(f, val, VZ, 22)
            self.stamp(3)
            self.end(3)

        isb_cur = [False]

        def emit(isb):
            isb_cur[0] = isb
            ops, flags, gates = seq(isb)
            flags = with_values(flags)
            n = len(ops)
            if not self.w2:
                run(ops, flags, gates, W, NE, first=True)
                return
            points = [j for j in range(W, n - 8) if (j - W) % self.chk == 0]
            labels = {j: a.newlabel("FAST") for j in points}
            run(ops, flags, gates, W, NE, check_to=labels, first=True)
            run(ops, flags, gates, self.w2, points[0], labels=labels)

        Lb = a.newlabel("LB")
        a("s_cmp_lg_u32 s%d, 0" % S_ISB)
        a("s_cbranch_scc1 %s" % Lb)
        emit(False)
        a(Lb + ":")
        emit(True)

    def role_a(self):
        a = self.a
        VZ, V1 = 1, 2
        T = 5
        a("L_A:")
        a("v_mov_b32 v1, 0\nv_mov_b32 v2, 1")
        self.role = "A"
        a("s_barrier")
        self.args_ready()
        a("s_setprio %d" % self.aprio)
        KO, VO, QA = 16, 20, 24
        a("""
        v_lshrrev_b32 v3, 4, v0               ; gg
        v_and_b32 v4, 15, v0                  ; m
        s_lshl_b32 s41, s28, 13
        v_and_b32 v5, 3, v4                   ; b = m & 3
        v_lshrrev_b32 v6, 2, v4               ; a = m >> 2
        v_lshlrev_b32 v7, 11, v6
        v_lshl_add_u32 v7, v5, 8, v7
        v_xor_b32 v8, v3, v5
        v_lshl_add_u32 v7, v8, 4, v7
        v_add_u32 v7, s41, v7
        """)
        for s in range(4):
            a("v_xor_b32 v8, %d, v6" % s)
            a("v_lshl_add_u32 %s, v8, 6, v7" % vr(KO + s))
        a("v_mul_u32_u24 v8, 320, v6")
        a("v_lshl_add_u32 %s, v3, 4, v8" % vr(QA))
        a("""
        v_lshrrev_b32 v8, 2, v4               ; r
        v_and_b32 v9, 3, v4                   ; cq
        v_and_b32 v10, 1, v3
        v_lshl_or_b32 v10, v10, 2, v8         ; sigma
        v_lshl_add_u32 v11, v3, 3, v8         ; 8 gg + r
        v_lshlrev_b32 v11, 8, v11
        v_lshl_add_u32 v11, v9, 3, v11
        v_add_u32 v11, %d, v11
        s_lshl_b32 s42, s28, 1
        """ % L_V)
        for u in range(2):
            a("s_add_u32 s43, s42, %d" % u)
            a("v_xor_b32 v12, s43, v10")
            a("v_lshl_add_u32 %s, v12, 5, v11" % vr(VO + u))
        WOA = 22
        a("s_lshl_b32 s42, s28, 12")
        a("s_add_u32 s42, s42, %d" % L_WO)
        a("v_lshl_add_u32 %s, v0, 4, s42" % vr(WOA))
        SEL = 28
        self.selectors(SEL, T, both_parities=False)
        self.tags()
        TG = 36
        a("v_mov_b32 %s, s%d" % (vr(TG + 2), S_T))
        a("v_mov_b32 %s, s%d" % (vr(TG + 3), S_T + 1))
        OA, SA, STA = 40, 41, 43
        a("""
        s_lshl_b32 s42, s26, 17               ; g * 131072
        s_lshl_b32 s43, s27, 7                ; c * 128
        s_add_u32 s42, s42, s43
        s_add_u32 s42, s42, %d
        v_bfe_u32 v12, v0, 1, 2
        v_lshlrev_b32 v12, 4, v12             ; O slot ((n & 7) >> 1) * 16
        v_bfe_u32 v13, v0, 3, 1               ; b
        v_lshl_add_u32 v13, v3, 3, v13        ; 8 h + b
        s_lshl_b32 s43, s28, 1
        v_add_u32 v13, s43, v13               ; + 2 w
        v_lshl_add_u32 v13, v13, 12, v12
        v_add_u32 %s, s42, v13
        v_and_b32 v12, 3, v0
        v_lshlrev_b32 v12, 4, v12             ; s slot (l & 3) * 16
        v_bfe_u32 v13, v0, 2, 3
        s_lshl_b32 s43, s28, 3
        v_add_u32 v13, s43, v13               ; 8 w + ((l >> 2) & 7)
        v_lshl_add_u32 v14, v13, 12, v12
        s_add_u32 s43, s42, 64
        v_add_u32 %s, s43, v14
        s_lshl_b32 s42, s26, 11
        s_lshl_b32 s43, s27, 4
        s_add_u32 s42, s42, s43
        s_add_u32 s42, s42, %d
        v_lshl_add_u32 %s, v3, 9, s42
        """ % (H2, vr(OA), vr(SA), ST, vr(STA)))
        VT, PK = 160, 164
        for k in range(4):
            a("v_mov_b32 %s, s%d" % (vr(VT + k), S_E + k))
        MXW, PWA, PRA, MRA, ORA = 25, 26, 27, 45, 46
        a("""
        v_lshrrev_b32 v12, 2, v4
        v_lshlrev_b32 v12, 4, v12             ; head (l & 15) >> 2, * 16
        s_lshl_b32 s42, s28, 2
        v_add_u32 %s, s42, v12                ; + wave * 4
        v_lshlrev_b32 %s, 4, v0
        s_lshl_b32 s42, s28, 10
        v_add_u32 %s, s42, %s
        v_lshlrev_b32 %s, 4, v3
        v_lshlrev_b32 %s, 4, v3
        """ % (vr(MXW), vr(PRA), vr(PWA), vr(PRA), vr(MRA), vr(ORA)))
        OD = 112
        KF = 48
        QF = 80
        WO = 96
        self.flag_wait(F_K, 1, VZ, T, sleep=2)
        self.stamp(1)
        for t in range(2):
            for s in range(4):
                a("ds_read_b128 %s, %s offset:%d" % (vr(KF + 16 * t + 4 * s, 4), vr(KO + s), L_K + 1024 * t))
        self.flag_wait(F_Q, 1, VZ, T, sleep=1)
        self.stamp(2)
        for s in range(4):
            a("ds_read_b128 %s, %s offset:%d" % (vr(QF + 4 * s, 4), vr(QA), L_Q + 64 * s))
        self.read_mode(VZ, T)
        SC = 112
        for s in range(4):
            for t in range(2):
                a("v_mfma_f32_16x16x32_bf16 %s, %s, %s, %s" % (vr(SC + 4 * t, 4), vr(KF + 16 * t + 4 * s, 4), vr(QF + 4 * s, 4), "0" if s == 0 else vr(SC + 4 * t, 4)))
        a("s_nop 7")
        if self.mimic:
            for i in range(4):
                a("v_cvt_pk_bf16_f32 %s, %s, %s" % (vr(T + i), vr(SC + 2 * i), vr(SC + 2 * i + 1)))
            for i in range(4):
                a("v_lshlrev_b32 %s, 16, %s" % (vr(SC + 2 * i), vr(T + i)))
                a("v_and_b32 %s, 0xffff0000, %s" % (vr(SC + 2 * i + 1), vr(T + i)))
        for i in range(8):
            a("v_mul_f32 %s, 0x%x, %s" % (vr(SC + i), SCALE, vr(SC + i)))
        if self.mimic:
            for i in range(4):
                a("v_cvt_pk_bf16_f32 %s, %s, %s" % (vr(T + i), vr(SC + 2 * i), vr(SC + 2 * i + 1)))
            for i in range(4):
                a("v_lshlrev_b32 %s, 16, %s" % (vr(SC + 2 * i), vr(T + i)))
                a("v_and_b32 %s, 0xffff0000, %s" % (vr(SC + 2 * i + 1), vr(T + i)))
        MX = 44
        a("v_max3_f32 %s, %s, %s, %s" % (vr(T), vr(SC), vr(SC + 1), vr(SC + 2)))
        a("v_max3_f32 %s, %s, %s, %s" % (vr(T + 1), vr(SC + 3), vr(SC + 4), vr(SC + 5)))
        a("v_max3_f32 %s, %s, %s, %s" % (vr(T), vr(T), vr(SC + 6), vr(SC + 7)))
        a("v_max_f32 %s, %s, %s" % (vr(MX), vr(T), vr(T + 1)))
        self.xor_reduce("v_max_f32", [MX], [16, 32], T)
        a("v_mov_b32 %s, 0x%x" % (vr(T + 8), LOG2E))
        a("v_mul_f32 %s, %s, %s" % (vr(T + 9), vr(MX), vr(T + 8)))
        a("s_mov_b64 exec, 0x1111")
        a("ds_write_b32 %s, %s offset:%d" % (vr(MXW), vr(MX), L_MX))
        a("s_mov_b64 exec, -1")
        for i in range(8):
            a("v_fma_f32 %s, %s, %s, -%s" % (vr(SC + i), vr(SC + i), vr(T + 8), vr(T + 9)))
        for i in range(8):
            a("v_exp_f32 %s, %s" % (vr(SC + i), vr(SC + i)))
        PF = 48
        a("s_nop 0")
        for i in range(4):
            a("v_cvt_pk_bf16_f32 %s, %s, %s" % (vr(T + 1 + i), vr(SC + 2 * i), vr(SC + 2 * i + 1)))
        a("ds_write_b128 %s, %s offset:%d" % (vr(PWA), vr(T + 1, 4), L_P))
        self.flag_add(F_P, VZ, V1)
        self.flag_wait(F_P, 4, VZ, T + 6)
        for ks in range(4):
            a("ds_read_b128 %s, %s offset:%d" % (vr(PF + 4 * ks, 4), vr(PRA), L_P + 1024 * ks))
        FW = 120
        a("ds_read_b128 %s, %s offset:%d" % (vr(FW, 4), vr(MRA), L_MX))
        self.stamp(3)
        a("s_waitcnt lgkmcnt(0)")
        a("v_max3_f32 %s, %s, %s, %s" % (vr(MX), vr(FW), vr(FW + 1), vr(FW + 2)))
        a("v_max_f32 %s, %s, %s" % (vr(MX), vr(MX), vr(FW + 3)))
        a("v_mul_f32 %s, %s, %s" % (vr(T + 9), vr(MX), vr(T + 8)))
        for i in range(4):
            a("v_fma_f32 %s, %s, %s, -%s" % (vr(FW + i), vr(FW + i), vr(T + 8), vr(T + 9)))
        for i in range(4):
            a("v_exp_f32 %s, %s" % (vr(FW + i), vr(FW + i)))
        D = 128
        TS = 124
        Lns = a.newlabel("NS")
        a("s_cmp_lg_u32 s28, 0")
        a("s_cbranch_scc1 %s" % Lns)
        ON = 64
        for t in range(4):
            a("v_mov_b32 %s, 0x3f803f80" % vr(ON + t))
        a("s_nop 1")
        for ks in range(4):
            a("v_mfma_f32_16x16x32_bf16 %s, %s, %s, 0" % (vr(D + 4 * ks, 4), vr(PF + 4 * ks, 4), vr(ON, 4)))
        a("v_mov_b32 %s, %s" % (vr(TS), vr(MX)))
        a("v_mov_b32 %s, %s" % (vr(TS + 2), vr(TG + 2)))
        a("v_mov_b32 %s, %s" % (vr(TS + 3), vr(TG + 3)))
        a("s_nop 4")
        a("v_mul_f32 %s, %s, %s" % (vr(TS + 1), vr(FW), vr(D)))
        for ks in range(1, 4):
            a("v_fmac_f32 %s, %s, %s" % (vr(TS + 1), vr(FW + ks), vr(D + 4 * ks)))
        a(Lns + ":")
        wo_first = self.order.index("o") < self.order.index("v")

        def read_wo():
            self.flag_wait(F_WO, 1, VZ, T, sleep=0 if not wo_first else 1)
            for i in range(4):
                a("ds_read_b128 %s, %s offset:%d" % (vr(WO + 4 * i, 4), vr(WOA), 1024 * i))
        if wo_first:
            read_wo()
        self.stamp(4)
        VF = 64
        S_V, S_I = 44, 45
        a("s_mov_b32 s%d, 0" % S_V)
        a("s_mov_b32 s%d, 0" % S_I)
        for ks in range(4):
            Lgo, Lsp = a.newlabel("V"), a.newlabel("V")
            a("s_cmp_ge_u32 s%d, %d" % (S_V, ks + 1))
            a("s_cbranch_scc1 %s" % Lgo)
            a("s_mov_b32 s%d, 0" % S_CNT)
            a(Lsp + ":")
            a("ds_read_b64 %s, %s offset:%d" % (vr(T + 1, 2), vr(VZ), F_V))
            a("s_add_u32 s%d, s%d, 1" % (S_CNT, S_CNT))
            a("s_cmp_gt_u32 s%d, %d" % (S_CNT, SPIN_MAX))
            a("s_cbranch_scc1 L_end")
            a("s_waitcnt lgkmcnt(0)")
            a("v_readfirstlane_b32 s%d, %s" % (S_V, vr(T + 1)))
            a("v_readfirstlane_b32 s%d, %s" % (S_I, vr(T + 2)))
            a("s_cmp_lt_u32 s%d, %d" % (S_V, ks + 1))
            a("s_cbranch_scc1 %s" % Lsp)
            a(Lgo + ":")
            if ks == 3:
                self.stamp(5)
            for u in range(2):
                for jh in range(2):
                    a("ds_read_b64_tr_b16 %s, %s offset:%d" % (vr(VF + 8 * ks + 4 * u + 2 * jh, 2), vr(VO + u), 8192 * ks + 1024 * jh))
            if ks:
                a("s_waitcnt lgkmcnt(4)")
                for u in range(2):
                    a("v_mfma_f32_16x16x32_bf16 %s, %s, %s, 0" % (vr(D + 8 * (ks - 1) + 4 * u, 4), vr(PF + 4 * (ks - 1), 4), vr(VF + 8 * (ks - 1) + 4 * u, 4)))
        for u in range(2):
            a("s_waitcnt lgkmcnt(%d)" % (2 - 2 * u))
            a("v_mfma_f32_16x16x32_bf16 %s, %s, %s, 0" % (vr(D + 24 + 4 * u, 4), vr(PF + 12, 4), vr(VF + 24 + 4 * u, 4)))
        a("v_mul_f32 %s, %s, %s" % (vr(TG), vr(FW), vr(D)))
        a("v_mul_f32 %s, %s, %s" % (vr(TG + 1), vr(FW), vr(D + 4)))
        for ks in range(1, 3):
            a("v_fmac_f32 %s, %s, %s" % (vr(TG), vr(FW + ks), vr(D + 8 * ks)))
            a("v_fmac_f32 %s, %s, %s" % (vr(TG + 1), vr(FW + ks), vr(D + 8 * ks + 4)))
        a("s_nop 1")
        a("v_fmac_f32 %s, %s, %s" % (vr(TG), vr(FW + 3), vr(D + 24)))
        a("v_fmac_f32 %s, %s, %s" % (vr(TG + 1), vr(FW + 3), vr(D + 28)))
        if self.sinit:
            Li = a.newlabel("I")
            a("s_cmp_ge_u32 s%d, 2" % S_I)
            a("s_cbranch_scc1 %s" % Li)
            self.flag_wait(F_INIT, 2, VZ, T)
            a(Li + ":")
        a("v_and_or_b32 %s, %s, s%d, %s" % (vr(PK), vr(TG), S_EN, vr(VT)))
        a("v_and_or_b32 %s, %s, s%d, %s" % (vr(PK + 1), vr(TG + 1), S_EN, vr(VT + 1)))
        a("v_mov_b32_dpp %s, %s quad_perm:[1,1,3,3] row_mask:0xf bank_mask:0xf" % (vr(PK + 2), vr(TG)))
        a("v_mov_b32_dpp %s, %s quad_perm:[1,1,3,3] row_mask:0xf bank_mask:0xf" % (vr(PK + 3), vr(TG + 1)))
        a("v_and_or_b32 %s, %s, s%d, %s" % (vr(PK + 2), vr(PK + 2), S_EN, vr(VT + 2)))
        a("v_and_or_b32 %s, %s, s%d, %s" % (vr(PK + 3), vr(PK + 3), S_EN, vr(VT + 3)))
        a("s_mov_b32 exec_lo, 0x55555555")
        a("s_mov_b32 exec_hi, 0x55555555")
        self.store_mode(OA, PK)
        a("s_mov_b64 exec, -1")
        Lns = a.newlabel("NS")
        a("s_cmp_lg_u32 s28, 0")
        a("s_cbranch_scc1 %s" % Lns)
        a("s_mov_b32 s42, 0x00010001")
        a("s_mov_b32 s43, 0x00010001")
        a("s_mov_b64 exec, s[42:43]")
        self.store_mode(STA, TS)
        a("s_mov_b64 exec, -1")
        a(Lns + ":")
        self.flag_add(F_OPUB, VZ, V1)
        self.stamp(6)
        if not wo_first:
            read_wo()
        AF = 64
        OG = 8
        Lsp = a.newlabel("O")
        a("s_mov_b32 s%d, 0" % S_CNT)
        a(Lsp + ":")
        a("ds_read_b128 %s, %s offset:%d" % (vr(OG, 4), vr(ORA), L_O))
        a("s_add_u32 s%d, s%d, 1" % (S_CNT, S_CNT))
        a("s_cmp_gt_u32 s%d, %d" % (S_CNT, SPIN_MAX))
        a("s_cbranch_scc1 L_end")
        a("s_waitcnt lgkmcnt(0)")
        a("v_and_b32 %s, %s, %s" % (vr(OG + 1), vr(OG + 1), vr(OG + 3)))
        a("v_cmp_ne_u32 vcc, 1, %s" % vr(OG + 1))
        a("s_cbranch_vccnz %s" % Lsp)
        for i in range(4):
            src = OG + 2 * (i >> 1)
            for t in range(4):
                a("v_perm_b32 %s, %s, %s, %s" % (vr(AF + 4 * i + t), vr(src), vr(src), vr(SEL + 4 * (i & 1) + t)))
            if i:
                a("v_mfma_f32_16x16x32_bf16 %s, %s, %s, %s" % (vr(OD, 4), vr(AF + 4 * (i - 1), 4), vr(WO + 4 * (i - 1), 4), "0" if i == 1 else vr(OD, 4)))
        a("s_nop 1")
        a("v_mfma_f32_16x16x32_bf16 %s, %s, %s, %s" % (vr(OD, 4), vr(AF + 12, 4), vr(WO + 12, 4), vr(OD, 4)))
        a("s_nop 7")
        for k in range(4):
            a("v_and_or_b32 %s, %s, s%d, %s" % (vr(PK + k), vr(OD + k), S_EN, vr(VT + k)))
        a("s_mov_b32 exec_hi, 0")
        self.store_mode(SA, PK)
        a("s_mov_b64 exec, -1")
        if self.sgate:
            self.flag_add(F_SPUB, VZ, V1)
        self.stamp(7)
        self.end(T)

    def role_c0(self):
        a = self.a
        VZ, V1 = 1, 2
        X = 4
        W = 40
        AF = 104
        SEL = 168
        ACC = 176
        T = 180
        self.role = "C0"
        if self.code_pf:
            a("s_getpc_b64 s[52:53]")
            a("L_pc:")
            a("s_lshl_b32 s54, s27, 10")
            a("v_add_u32 v3, s54, v37")
            a("v_min_u32 v3, L_code_end-L_pc-16, v3")
            a("global_load_dwordx4 v[188:191], v3, s[52:53]")
        a("""
        s_lshl_b32 s41, s40, 8
        v_lshl_add_u32 v38, v0, 2, s41
        s_lshl_b32 s41, s40, 20               ; rb * 128 * 8192
        s_lshl_b32 s42, s26, 10               ; g * 512 * 2
        s_add_u32 s41, s41, s42
        s_and_b32 s42, s27, 7
        s_lshl_b32 s42, s42, 7                ; cb * 128
        s_add_u32 s41, s41, s42
        v_lshrrev_b32 v3, 3, v0
        v_lshlrev_b32 v3, 17, v3              ; 16 rows * 8192
        v_and_b32 v36, 7, v0
        v_lshl_add_u32 v3, v36, 4, v3
        v_add_u32 v3, s41, v3
        s_mov_b32 m0, %d
        s_movk_i32 s41, 15
        s_waitcnt lgkmcnt(0)
        global_load_dwordx4 %s, v37, %s
        global_load_dword %s, v38, %s
        L_wq:
        global_load_lds_dwordx4 v3, %s %s
        v_add_u32 v3, 0x2000, v3
        s_addk_i32 m0, 0x400
        s_sub_u32 s41, s41, 1
        s_cbranch_scc0 L_wq
        s_barrier
        L_C0_rest:
        s_setprio 3
        s_load_dwordx2 s[30:31], s[24:25], %d
        v_mov_b32 v1, 0
        v_mov_b32 v2, 1
        """ % (L_W1, vr(X, 4), sp(S_X), vr(X + 4), sp(S_X), sp(S_WQ), self.nt_w, EPOCH))
        self.stamp(1)
        self.selectors(SEL, T, both_parities=True)
        a("s_waitcnt vmcnt(16)")
        if self.kgate == 1:
            self.flag_add(F_ST, VZ, V1)
        self.stamp(2)
        self.layernorm_rows(X, L_XQ, VZ)
        self.tags()
        a("s_waitcnt lgkmcnt(0)")
        if self.kgate == 2:
            self.flag_add(F_ST, VZ, V1)
        self.stamp(3)
        XN = X + 8
        a("v_add_u32 v37, %d, v37" % L_W1)
        for i in range(16):
            for t in range(4):
                a("v_perm_b32 %s, %s, %s, %s" % (vr(AF + 4 * i + t), vr(XN + (i >> 1)), vr(XN + (i >> 1)), vr(SEL + 4 * (i & 1) + t)))
        for q in range(4):
            a("s_waitcnt vmcnt(%d)" % (12 - 4 * q))
            if self.kgate >= 3 and q == self.kgate - 3:
                self.flag_add(F_ST, VZ, V1)
            for i in range(4 * q, 4 * q + 4):
                a("ds_read_b128 %s, v37 offset:%d" % (vr(W + 4 * i, 4), 1024 * i))
            if q:
                for i in range(4 * q - 4, 4 * q):
                    a("s_waitcnt lgkmcnt(%d)" % (4 + (4 * q - 1 - i)))
                    a("v_mfma_f32_16x16x32_bf16 %s, %s, %s, %s" % (vr(ACC, 4), vr(AF + 4 * i, 4), vr(W + 4 * i, 4), "0" if i == 0 else vr(ACC, 4)))
        for i in range(12, 16):
            a("s_waitcnt lgkmcnt(%d)" % (15 - i))
            a("v_mfma_f32_16x16x32_bf16 %s, %s, %s, %s" % (vr(ACC, 4), vr(AF + 4 * i, 4), vr(W + 4 * i, 4), vr(ACC, 4)))
        a("s_nop 7")
        a("v_permlane32_swap_b32 %s, %s" % (vr(ACC), vr(ACC + 2)))
        a("v_permlane32_swap_b32 %s, %s" % (vr(ACC + 1), vr(ACC + 3)))
        a("s_nop 1")
        a("v_add_f32_dpp %s, %s, %s row_ror:8 row_mask:0xf bank_mask:0xf" % (vr(ACC), vr(ACC + 2), vr(ACC)))
        a("v_add_f32_dpp %s, %s, %s row_ror:8 row_mask:0xf bank_mask:0xf" % (vr(ACC + 1), vr(ACC + 3), vr(ACC + 1)))
        self.stamp(4)
        a("v_mov_b32 %s, s%d" % (vr(ACC + 2), S_T1X))
        a("v_mov_b32 %s, s%d" % (vr(ACC + 3), S_T1X + 1))
        a("""
        s_lshl_b32 s41, s26, 14               ; g * 16384
        s_lshr_b32 s42, s27, 3
        s_lshl_b32 s42, s42, 12               ; rb * 4096
        s_add_u32 s41, s41, s42
        s_and_b32 s42, s27, 7
        s_lshl_b32 s42, s42, 9                ; cb * 512
        s_add_u32 s41, s41, s42
        s_add_u32 s41, s41, %d
        v_lshrrev_b32 v3, 4, v0               ; 2 hi + g'
        v_lshlrev_b32 v3, 3, v3
        v_and_b32 v36, 7, v0
        v_add_u32 v3, v3, v36                 ; pos = 16 hi + 8 g' + n
        v_lshl_add_u32 v3, v3, 4, s41
        v_add_u32 v37, %d, v3
        """ % (H1, REGB))
        a("s_mov_b32 s42, 0x00ff00ff")
        a("s_mov_b32 s43, 0x00ff00ff")
        a("s_mov_b64 exec, s[42:43]")
        a("global_store_dwordx4 v3, %s, %s %s" % (vr(ACC, 4), sp(S_WS), self.st_nt))
        if self.lazyb:
            a("s_mov_b64 exec, -1")
            self.stamp(5)
            a("s_waitcnt vmcnt(0)")
            self.flag_add(F_QPUB, VZ, V1)
        elif self.qack:
            a("global_store_dwordx4 v37, %s, %s sc1" % (vr(ACC, 4), sp(S_WS)))
            a("s_mov_b64 exec, -1")
            self.stamp(5)
            a("s_waitcnt vmcnt(1)")
            if self.qsleep:
                a("s_sleep %d" % self.qsleep)
            self.flag_add(F_QPUB, VZ, V1)
        else:
            a("s_mov_b64 exec, -1")
            self.flag_add(F_QPUB, VZ, V1)
            a("s_mov_b64 exec, s[42:43]")
            a("global_store_dwordx4 v37, %s, %s sc1" % (vr(ACC, 4), sp(S_WS)))
            a("s_mov_b64 exec, -1")
        if not self.qack:
            self.stamp(5)
        SA, OA = 4, 5
        G = 8
        a("""
        s_lshl_b32 s41, s26, 11               ; g * 2048
        s_lshr_b32 s42, s27, 3
        s_lshl_b32 s42, s42, 9                ; head * 512
        s_add_u32 s41, s41, s42
        s_add_u32 s41, s41, %d
        v_lshrrev_b32 v3, 2, v0
        v_lshl_add_u32 %s, v3, 4, s41
        s_lshl_b32 s41, s26, 17
        s_lshl_b32 s42, s27, 12
        s_add_u32 s41, s41, s42
        s_add_u32 s41, s41, %d
        v_and_b32 v6, 3, v0
        v_lshlrev_b32 v6, 4, v6
        v_lshl_add_u32 v7, v3, 7, v6
        v_add_u32 %s, s41, v7
        """ % (ST, vr(SA), H2, vr(OA)))
        a("v_lshlrev_b32 v6, 4, v0")
        self.flag_wait(F_Q, 1, VZ, T, sleep=2)
        self.read_mode(VZ, T)
        self.stamp(6)
        GO = 40
        self.flag_wait(F_OPUB, self.ogate, VZ, T, sleep=0 if self.odelay else 1)
        if self.odelay:
            a("s_sleep %d" % self.odelay)
            self.flag_add(F_O, VZ, V1)
        self.stamp(7)
        self.poll_mixed([(G + 4 * i, SA, 256 * i, "t") for i in range(2)] + [(GO + 4 * i, OA, 2048 * i, "e") for i in range(2)], S_MB, T, cnt=12)
        self.stamp(8)
        MX, LS, WT, AC = 24, 25, 26, 28
        a("v_max_f32 %s, %s, %s" % (vr(MX), vr(G), vr(G + 4)))
        for k in range(4):
            a("v_and_b32 %s, s%d, %s" % (vr(GO + k), S_EN, vr(GO + k)))
        self.xor_reduce("v_max_f32", [MX], ["r4", 8, 16, 32], T)
        a("v_mov_b32 %s, 0x%x" % (vr(T + 4), LOG2E))
        a("v_mul_f32 %s, %s, %s" % (vr(T + 5), vr(MX), vr(T + 4)))
        for i in range(2):
            a("v_fma_f32 %s, %s, %s, -%s" % (vr(WT + i), vr(G + 4 * i), vr(T + 4), vr(T + 5)))
        for i in range(2):
            a("v_exp_f32 %s, %s" % (vr(WT + i), vr(WT + i)))
        for k in range(4):
            a("v_and_b32 %s, s%d, %s" % (vr(GO + 4 + k), S_EN, vr(GO + 4 + k)))
        a("v_mul_f32 %s, %s, %s" % (vr(LS), vr(WT), vr(G + 1)))
        for k in range(4):
            a("v_mul_f32 %s, %s, %s" % (vr(AC + k), vr(WT), vr(GO + k)))
        a("v_fmac_f32 %s, %s, %s" % (vr(LS), vr(WT + 1), vr(G + 5)))
        for k in range(4):
            a("v_fmac_f32 %s, %s, %s" % (vr(AC + k), vr(WT + 1), vr(GO + 4 + k)))
        self.xor_reduce("v_add_f32", [LS, AC, AC + 1, AC + 2, AC + 3], ["r4", 8, 16, 32], T)
        a("v_rcp_f32 %s, %s" % (vr(T), vr(LS)))
        a("v_mov_b32 v33, 1")
        a("v_mov_b32 v35, 1")
        a("v_fma_f32 %s, -%s, %s, 1.0" % (vr(T + 1), vr(T), vr(LS)))
        a("v_fmac_f32 %s, %s, %s" % (vr(T), vr(T + 1), vr(T)))
        for k in range(4):
            a("v_mul_f32 %s, %s, %s" % (vr(AC + k), vr(AC + k), vr(T)))
        a("v_cvt_pk_bf16_f32 v32, %s, %s" % (vr(AC), vr(AC + 1)))
        a("v_cvt_pk_bf16_f32 v34, %s, %s" % (vr(AC + 2), vr(AC + 3)))
        a("s_mov_b64 exec, 0xf")
        a("ds_write_b128 v6, v[32:35] offset:%d" % L_O)
        a("s_mov_b64 exec, -1")
        self.stamp(9)
        self.end(T)

    def role_c1(self):
        a = self.a
        VZ, V1 = 1, 2
        X = 4
        W = 40
        AF = 104
        SEL = 168
        ACC = 176
        T = 180
        a("L_C1:")
        a("v_mov_b32 v1, 0\nv_mov_b32 v2, 1")
        self.role = "C1"
        a("s_barrier")
        a("s_setprio 3")
        self.mlp_scalars()
        a("""
        v_lshlrev_b32 v42, 4, v0
        s_and_b32 s40, s27, 7
        s_lshl_b32 s41, s40, 7
        v_and_b32 v3, 31, v0
        v_lshl_add_u32 v43, v3, 2, s41
        """)
        a("""
        s_lshl_b32 s42, s50, 7
        s_and_b32 s43, s27, 7
        s_mul_i32 s43, s43, %d
        s_add_u32 s42, s42, s43
        v_lshrrev_b32 v6, 3, v0
        v_mul_u32_u24 v6, %d, v6
        v_and_b32 v7, 7, v0
        v_lshl_add_u32 v6, v7, 4, v6
        v_add_u32 v44, s42, v6
        """ % (64 * 3584, 8 * 3584))
        self.args_ready()
        a("""
        s_lshl_b32 s41, s26, 14
        s_lshl_b32 s42, s27, 9
        s_add_u32 s44, s41, s42
        s_add_u32 s44, s44, %d                ; own outbox of hidden-unit partials
        """ % HB)
        if self.prefill:
            a("""
            s_lshl_b32 s41, s26, 14
            s_lshr_b32 s42, s27, 3
            s_lshl_b32 s42, s42, 12
            s_add_u32 s41, s41, s42
            s_and_b32 s42, s27, 7
            s_lshl_b32 s42, s42, 9
            s_add_u32 s41, s41, s42
            s_add_u32 s41, s41, %d
            v_and_b32 v3, 31, v0
            v_lshl_add_u32 v40, v3, 4, s41
            v_lshl_add_u32 v41, v3, 4, s44
            s_lshl_b32 s41, s26, 11
            s_lshr_b32 s42, s27, 3
            s_lshl_b32 s42, s42, 9
            s_add_u32 s41, s41, s42
            s_add_u32 s41, s41, %d
            v_lshl_add_u32 v45, v3, 4, s41
            v_cmp_gt_u32 vcc, 32, v0
            s_nop 1
            v_cndmask_b32 v40, v41, v40, vcc
            global_load_dwordx4 v[188:191], v40, %s
            """ % (H1, ST, sp(S_WS)))
            if self.prefill >= 2:
                Ls = a.newlabel("I")
                a("""
                s_and_b32 s41, s27, 7
                s_cmp_lg_u32 s41, 0
                s_cbranch_scc1 %s
                global_load_dwordx4 v[188:191], v45, %s
                %s:
                """ % (Ls, sp(S_WS), Ls))
        W1R = 48
        Lb = a.newlabel("B")
        a("s_cmp_lg_u32 s%d, 0" % S_ISB)
        a("s_cbranch_scc1 %s" % Lb)
        self.stamp(1)
        self.end(T)
        a(Lb + ":")
        a("global_load_dwordx4 %s, v42, %s" % (vr(X, 4), sp(S_X)))
        a("global_load_dword %s, v43, %s" % (vr(X + 4), sp(S_X)))
        if self.w1gate:
            self.flag_wait(F_ST, 1, VZ, T)
        for i in range(8):
            a("global_load_dwordx4 %s, v44, %s %s" % (vr(W1R + 4 * i, 4), sp(S_W1), self.nt_w))
            if i < 7:
                a("v_add_u32 v44, 3584, v44")
        a("s_waitcnt vmcnt(8)")
        self.stamp(1)
        self.role = "C1B"
        self.selectors(SEL, T, both_parities=True)
        self.layernorm_rows(X, L_XH, VZ, rows=64)
        self.tags()
        a("v_lshlrev_b32 v3, 4, v0")
        a("v_add_u32 v38, %d, v3" % L_W2)
        XN = X + 8
        for i in range(8):
            for t in range(4):
                a("v_perm_b32 %s, %s, %s, %s" % (vr(AF + 4 * i + t), vr(XN + (i >> 1)), vr(XN + (i >> 1)), vr(SEL + 4 * (i & 1) + t)))
        a("""
        v_lshrrev_b32 v3, 4, v0
        v_lshlrev_b32 v3, 3, v3
        v_and_b32 v36, 7, v0
        v_add_u32 v3, v3, v36
        v_lshl_add_u32 v3, v3, 4, s44
        s_lshr_b32 s41, s27, 3
        s_lshl_b32 s41, s41, 12               ; cbl * 4096
        s_lshl_b32 s42, s26, 14
        s_add_u32 s41, s41, s42
        s_add_u32 s41, s41, %d
        v_lshl_add_u32 v4, v0, 4, s41
        """ % HB)
        a("s_waitcnt vmcnt(0)")
        self.stamp(2)
        for i in range(8):
            a("v_mfma_f32_16x16x32_bf16 %s, %s, %s, %s" % (vr(ACC, 4), vr(AF + 4 * i, 4), vr(W1R + 4 * i, 4), "0" if i == 0 else vr(ACC, 4)))
        a("s_nop 7")
        a("v_permlane32_swap_b32 %s, %s" % (vr(ACC), vr(ACC + 2)))
        a("v_permlane32_swap_b32 %s, %s" % (vr(ACC + 1), vr(ACC + 3)))
        a("s_nop 1")
        a("v_add_f32_dpp %s, %s, %s row_ror:8 row_mask:0xf bank_mask:0xf" % (vr(ACC), vr(ACC + 2), vr(ACC)))
        a("v_add_f32_dpp %s, %s, %s row_ror:8 row_mask:0xf bank_mask:0xf" % (vr(ACC + 1), vr(ACC + 3), vr(ACC + 1)))
        self.stamp(3)
        a("v_mov_b32 %s, s%d" % (vr(ACC + 2), S_T))
        a("v_mov_b32 %s, s%d" % (vr(ACC + 3), S_T + 1))
        a("v_add_u32 v5, %d, v3" % REGB)
        a("s_mov_b32 s42, 0x00ff00ff")
        a("s_mov_b32 s43, 0x00ff00ff")
        a("s_mov_b64 exec, s[42:43]")
        a("global_store_dwordx4 v3, %s, %s %s" % (vr(ACC, 4), sp(S_WS), self.st_nt))
        a("s_mov_b64 exec, -1")
        self.flag_add(F_HPUB, VZ, V1)
        if not self.lazyb:
            a("s_mov_b64 exec, s[42:43]")
            a("global_store_dwordx4 v5, %s, %s sc1" % (vr(ACC, 4), sp(S_WS)))
            a("s_mov_b64 exec, -1")
        G = 8
        self.flag_wait(F_Q, 1, VZ, T, sleep=1)
        self.read_mode(VZ, T)
        if self.lazyb:
            Lloc = a.newlabel("H")
            a("s_cmp_eq_u32 s%d, 0" % S_MODE)
            a("s_cbranch_scc1 %s" % Lloc)
            a("s_mov_b64 exec, s[42:43]")
            a("global_store_dwordx4 v5, %s, %s sc1" % (vr(ACC, 4), sp(S_WS)))
            a("s_mov_b64 exec, -1")
            a(Lloc + ":")
        self.poll([(G + 4 * i, 4, 1024 * i) for i in range(4)], S_MB)
        self.stamp(4)
        for e in range(2):
            a("v_add_f32 %s, %s, %s" % (vr(G + e), vr(G + e), vr(G + 4 + e)))
            a("v_add_f32 %s, %s, %s" % (vr(G + 8 + e), vr(G + 8 + e), vr(G + 12 + e)))
        for e in range(2):
            a("v_add_f32 %s, %s, %s" % (vr(G + e), vr(G + e), vr(G + 8 + e)))
        self.xor_reduce("v_add_f32", [G, G + 1], [32], T)
        a("v_max_f32 %s, 0, %s" % (vr(G), vr(G)))
        a("v_max_f32 %s, 0, %s" % (vr(G + 1), vr(G + 1)))
        a("v_cvt_pk_bf16_f32 %s, %s, %s" % (vr(G), vr(G), vr(G + 1)))
        a("""
        v_and_b32 v5, 7, v0
        v_lshlrev_b32 v5, 4, v5               ; 8 n * 2 B
        v_bfe_u32 v6, v0, 3, 1
        v_lshl_add_u32 v5, v6, 3, v5          ; 4 g' * 2 B
        v_bfe_u32 v6, v0, 4, 1
        v_lshl_add_u32 v5, v6, 2, v5          ; 2 hi * 2 B
        ds_write_b32 v5, %s offset:%d
        v_lshrrev_b32 v5, 3, v0
        v_lshlrev_b32 v5, 4, v5
        ds_read_b128 %s, v5 offset:%d
        """ % (vr(G), L_XH, vr(G + 4, 4), L_XH))
        a("""
        s_and_b32 s41, s27, 7
        s_lshr_b32 s42, s41, 1
        s_lshl_b32 s42, s42, 3
        s_and_b32 s41, s41, 1
        s_lshl_b32 s41, s41, 1
        s_add_u32 s41, s41, s42
        s_lshl_b32 s41, s41, 9
        s_lshl_b32 s42, s26, 14
        s_add_u32 s41, s41, s42
        s_lshr_b32 s42, s27, 3
        s_lshl_b32 s42, s42, 7
        s_add_u32 s41, s41, s42
        s_add_u32 s41, s41, %d
        v_bfe_u32 v3, v0, 4, 1
        v_lshlrev_b32 v3, 11, v3              ; 4 g' * 512
        v_bfe_u32 v5, v0, 2, 1
        v_lshl_add_u32 v3, v5, 9, v3          ; (n >> 2) * 512
        v_lshrrev_b32 v5, 5, v0
        v_lshl_add_u32 v3, v5, 6, v3          ; 4 hi * 16
        v_and_b32 v5, 3, v0
        v_lshl_add_u32 v3, v5, 4, v3
        v_add_u32 v3, s41, v3
        s_waitcnt lgkmcnt(0)
        """ % H3G)
        for i in range(8):
            for t in range(4):
                a("v_perm_b32 %s, %s, %s, %s" % (vr(AF + 4 * i + t), vr(G + 4 + (i >> 1)), vr(G + 4 + (i >> 1)), vr(SEL + 4 * (i & 1) + t)))
        self.flag_wait(F_W2, 1, VZ, T, sleep=1)
        for i in range(8):
            a("ds_read_b128 %s, v38 offset:%d" % (vr(W + 4 * i, 4), 1024 * i))
        for i in range(8):
            a("s_waitcnt lgkmcnt(%d)" % (7 - i))
            a("v_mfma_f32_16x16x32_bf16 %s, %s, %s, %s" % (vr(ACC, 4), vr(AF + 4 * i, 4), vr(W + 4 * i, 4), "0" if i == 0 else vr(ACC, 4)))
        a("s_nop 7")
        a("v_permlane32_swap_b32 %s, %s" % (vr(ACC), vr(ACC + 2)))
        a("v_permlane32_swap_b32 %s, %s" % (vr(ACC + 1), vr(ACC + 3)))
        a("s_nop 1")
        a("v_add_f32_dpp %s, %s, %s row_ror:8 row_mask:0xf bank_mask:0xf" % (vr(ACC), vr(ACC + 2), vr(ACC)))
        a("v_add_f32_dpp %s, %s, %s row_ror:8 row_mask:0xf bank_mask:0xf" % (vr(ACC + 1), vr(ACC + 3), vr(ACC + 1)))
        a("v_mov_b32 %s, s%d" % (vr(ACC + 2), S_T))
        a("v_mov_b32 %s, s%d" % (vr(ACC + 3), S_T + 1))
        a("s_mov_b32 s42, 0x00ff00ff")
        a("s_mov_b32 s43, 0x00ff00ff")
        a("s_mov_b64 exec, s[42:43]")
        self.store_mode(3, ACC)
        a("s_mov_b64 exec, -1")
        self.stamp(5)
        self.end(T)

    def role_c2(self):
        a = self.a
        VZ, V1 = 1, 2
        T = 100
        G = 8
        a("L_C2:")
        a("v_mov_b32 v1, 0\nv_mov_b32 v2, 1")
        self.role = "C2"
        a("s_setprio 3")
        a("v_lshlrev_b32 v3, 2, v0")
        a("s_mov_b32 exec_hi, 0")
        a("ds_write_b32 v3, v1 offset:%d" % L_F)
        a("s_mov_b64 exec, -1")
        self.args_ready()
        a("s_barrier")
        self.mlp_scalars()
        XF, FA, OUTA = 80, 81, 82
        a("""
        s_max_u32 s45, s27, 28
        s_sub_u32 s45, s45, 28
        s_lshl_b32 s45, s45, 3
        s_add_u32 s45, s45, s26               ; column set c'
        s_lshr_b32 s41, s45, 3
        s_lshl_b32 s41, s41, 7                ; 128 (c' >> 3)
        s_and_b32 s42, s45, 3
        s_lshl_b32 s42, s42, 5                ; 32 (c' & 3)
        s_add_u32 s41, s41, s42
        s_bfe_u32 s42, s45, 0x10002
        s_lshl_b32 s42, s42, 2
        s_add_u32 s41, s41, s42
        v_and_b32 v3, 3, v0
        v_lshlrev_b32 v3, 3, v3
        v_bfe_u32 v83, v0, 2, 1
        v_lshl_add_u32 v3, v83, 1, v3
        v_add_u32 v3, s41, v3                 ; first column of the pair
        v_lshlrev_b32 %s, 1, v3               ; byte offset in x / out
        s_lshl_b32 s41, s45, 11
        s_add_u32 s41, s41, %d
        v_lshrrev_b32 v3, 3, v0
        v_lshlrev_b32 v3, 8, v3
        v_and_b32 v83, 7, v0
        v_lshl_add_u32 v3, v83, 4, v3
        v_add_u32 %s, s41, v3
        """ % (vr(OUTA), H3B, vr(FA)))
        Lnf = a.newlabel("NF")
        a("s_cmp_lt_u32 s27, 28")
        a("s_cbranch_scc1 %s" % Lnf)
        a("global_load_dword %s, %s, %s" % (vr(XF), vr(OUTA), sp(S_X)))
        a("global_load_dwordx4 v[84:87], %s, %s sc1" % (vr(FA), sp(S_WS)))
        a("global_load_dwordx4 v[88:91], %s, %s offset:128 sc1" % (vr(FA), sp(S_WS)))
        a(Lnf + ":")
        a("""
        s_lshl_b32 s41, s26, 14
        s_add_u32 s41, s41, %d
        v_lshl_add_u32 v4, v0, 4, s41
        v_add_u32 v5, 0x1000, v4
        v_add_u32 v6, 0x2000, v4
        v_add_u32 v7, 0x3000, v4
        """ % H1)
        qloads = [(G + 16 * hd + 4 * rb, 4 + rb, 1024 * hd) for hd in range(4) for rb in range(4)]
        self.tags()
        self.stamp(1)
        self.flag_wait(F_QPUB, 1, VZ, T, sleep=1)
        self.stamp(2)
        Lslow, Lgot = a.newlabel("Q"), a.newlabel("Q")
        if not self.force_global:
            self.poll(qloads, S_WS, tag=S_T1X, limit=self.atimeout, on_timeout=Lslow, cnt=12, plain_first=bool(self.plain0 & 1))
            a("s_branch %s" % Lgot)
        a(Lslow + ":")
        a("s_waitcnt vmcnt(0)")
        a("s_add_u32 s46, s%d, %d" % (S_WS, REGB))
        a("s_addc_u32 s47, s%d, 0" % (S_WS + 1))
        if self.lazyb:
            a("""
            s_lshl_b32 s41, s26, 14
            s_lshr_b32 s42, s27, 3
            s_lshl_b32 s42, s42, 12
            s_add_u32 s41, s41, s42
            s_and_b32 s42, s27, 7
            s_lshl_b32 s42, s42, 9
            s_add_u32 s41, s41, s42
            s_add_u32 s41, s41, %d
            v_and_b32 v76, 31, v0
            v_lshl_add_u32 v76, v76, 4, s41
            global_load_dwordx4 v[72:75], v76, %s sc1
            s_waitcnt vmcnt(0)
            global_store_dwordx4 v76, v[72:75], s[46:47] sc1
            """ % (H1, sp(S_WS)))
        L = a.newlabel("P")
        LA = a.newlabel("P")
        a("s_mov_b32 s%d, 0" % S_CNT)
        a(L + ":")
        for (vd, va, off) in qloads:
            a("global_load_dwordx4 %s, %s, s[46:47] offset:%d sc1" % (vr(vd, 4), vr(va), off))
        a("s_add_u32 s%d, s%d, 1" % (S_CNT, S_CNT))
        a("s_cmp_gt_u32 s%d, %d" % (S_CNT, POLL_MAX))
        a("s_cbranch_scc1 L_end")
        a("s_waitcnt vmcnt(0)")
        a("v_mov_b32 %s, 0" % vr(T))
        a("v_mov_b32 %s, 0" % vr(T + 1))
        for (vd, va, off) in qloads:
            a("v_xor_b32 %s, s%d, %s" % (vr(T + 2), S_T, vr(vd + 2)))
            a("v_xor_b32 %s, s%d, %s" % (vr(T + 3), S_T + 1, vr(vd + 3)))
            a("v_and_b32 %s, 0xfffffff0, %s" % (vr(T + 3), vr(T + 3)))
            a("v_or3_b32 %s, %s, %s, %s" % (vr(T), vr(T), vr(T + 2), vr(T + 3)))
            a("v_xor_b32 %s, s%d, %s" % (vr(T + 3), S_T1X + 1, vr(vd + 3)))
            a("v_or_b32 %s, %s, %s" % (vr(T + 1), vr(T + 1), vr(T + 3)))
        a("v_cmp_ne_u32 vcc, 0, %s" % vr(T))
        if self.lazyb and not self.force_global:
            Lb_ok = a.newlabel("Q")
            a("s_cbranch_vccz %s" % Lb_ok)
            for (vd, va, off) in qloads:
                a("global_load_dwordx4 %s, %s, %s offset:%d sc1" % (vr(vd, 4), vr(va), sp(S_WS), off))
            for i, (vd, va, off) in enumerate(qloads):
                a("s_waitcnt vmcnt(%d)" % (len(qloads) - 1 - i))
                a("v_cmp_ne_u64 %s, %s, %s" % ("vcc" if i == 0 else sp(S_TMP), vr(vd + 2, 2), sp(S_T1X)))
                if i:
                    a("s_or_b64 vcc, vcc, %s" % sp(S_TMP))
            a("s_cbranch_vccnz %s" % L)
            a("s_branch %s" % Lgot)
            a(Lb_ok + ":")
        else:
            a("s_cbranch_vccnz %s" % L)
        a("v_cmp_ne_u32 vcc, 0, %s" % vr(T + 1))
        a("s_cbranch_vccz %s" % Lgot)
        self.flag_add(F_REM, VZ, V1)
        a(Lgot + ":")
        self.stamp(3)
        for hd in range(4):
            b = G + 16 * hd
            for e in range(2):
                a("v_add_f32 %s, %s, %s" % (vr(b + e), vr(b + e), vr(b + 4 + e)))
                a("v_add_f32 %s, %s, %s" % (vr(b + 8 + e), vr(b + 8 + e), vr(b + 12 + e)))
            for e in range(2):
                a("v_add_f32 %s, %s, %s" % (vr(b + e), vr(b + e), vr(b + 8 + e)))
            a("v_cvt_pk_bf16_f32 %s, %s, %s" % (vr(b), vr(b), vr(b + 1)))
        a("""
        v_lshrrev_b32 v72, 5, v0              ; cb_local
        v_lshlrev_b32 v72, 7, v72             ; 64 columns * 2 B
        v_and_b32 v73, 7, v0
        v_lshl_add_u32 v72, v73, 4, v72       ; 8 n * 2 B
        v_bfe_u32 v73, v0, 3, 1
        v_lshl_add_u32 v72, v73, 3, v72       ; 4 g' * 2 B
        v_bfe_u32 v73, v0, 4, 1
        v_lshl_add_u32 v72, v73, 2, v72       ; 2 s * 2 B
        """)
        for hd in range(4):
            a("ds_write_b32 v72, %s offset:%d" % (vr(G + 16 * hd), L_Q + 320 * hd))
        self.flag_add(F_Q, VZ, V1)
        self.stamp(4)
        SA, GA, BA = 4, 5, 6
        a("""
        s_lshl_b32 s41, s26, 17
        s_lshl_b32 s42, s27, 12
        s_add_u32 s41, s41, s42
        s_add_u32 s41, s41, %d
        v_lshrrev_b32 v3, 2, v0
        v_lshlrev_b32 v3, 7, v3
        v_and_b32 v7, 3, v0
        v_lshl_add_u32 v3, v7, 4, v3
        v_add_u32 %s, s41, v3
        s_lshl_b32 s41, s27, 11
        s_lshl_b32 s42, s26, 8
        s_add_u32 s41, s41, s42
        s_add_u32 s41, s41, %d
        v_lshl_add_u32 %s, v0, 4, s41
        """ % (H2 + 64, vr(SA), H3B, vr(BA)))
        self.read_mode(VZ, T)
        if self.sinit:
            for i in range(4):
                a("v_mov_b32 %s, 0" % vr(56 + i))
            for i in range(4):
                a("global_store_dwordx4 %s, v[56:59], %s offset:%d" % (vr(SA), sp(S_WS), 1024 * i))
            a("s_waitcnt vmcnt(0)")
            self.flag_add(F_INIT, VZ, V1)
        GS = 40
        GG, GAD, GW = 24, 44, 48
        a("v_mov_b32 %s, 0" % vr(GS))
        a("v_mov_b32 %s, 0" % vr(GS + 1))
        Lng = a.newlabel("NG")
        a("s_cmp_eq_u32 s49, 0")
        a("s_cbranch_scc1 %s" % Lng)
        a("""
        s_lshl_b32 s41, s26, 14
        s_lshl_b32 s42, s27, 9
        s_add_u32 s41, s41, s42
        s_add_u32 s41, s41, %d
        s_lshr_b32 s42, s49, 3
        v_bfe_u32 v52, v0, 3, 2
        v_cmp_gt_u32 vcc, s42, v52
        v_and_b32 v53, 31, v0
        v_and_b32 v54, 7, v0
        v_cndmask_b32 v53, v54, v53, vcc
        v_lshl_add_u32 %s, v53, 4, s41
        v_mov_b32 v54, 1.0
        v_cndmask_b32 %s, v1, v54, vcc
        """ % (H3G, vr(GAD), vr(GW)))
        def fill_s():
            for i in range(4):
                a("global_load_dwordx4 %s, %s, %s offset:%d sc1" % (vr(60 + 4 * i, 4), vr(SA), sp(S_MB), 1024 * i))
        if self.odelay:
            self.flag_wait(F_O, 1, VZ, T, sleep=1)
        elif self.spf == 1 or not self.ggate:
            self.flag_wait(F_OPUB, 4, VZ, T, sleep=1)
        if self.spf == 1:
            fill_s()
        if self.ggate == 1:
            self.flag_wait(F_WO, 1, VZ, T, sleep=1)
        if self.spf == 4:
            fill_s()
        self.poll([(GG, GAD, 0)], S_MB, cnt=15, plain_first=bool(self.plain0 & 4))
        if self.spf == 3:
            for i in range(4):
                a("global_load_dwordx4 %s, %s, %s offset:%d sc1" % (vr(60 + 4 * i, 4), vr(SA), sp(S_MB), 1024 * i))
        for e in range(2):
            a("v_mul_f32 %s, %s, %s" % (vr(GS + e), vr(GW), vr(GG + e)))
        self.xor_reduce("v_add_f32", [GS, GS + 1], [8, 16], T)
        a(Lng + ":")
        a("v_bfe_u32 v3, v0, 2, 1")
        a("v_bfe_u32 v7, v0, 3, 1")
        a("v_cmp_eq_u32 s[42:43], 1, v3")
        a("v_cmp_eq_u32 s[58:59], 1, v7")
        self.stamp(5)
        if self.sgate:
            self.flag_wait(F_SPUB, 4, VZ, T)
        else:
            L = a.newlabel("O")
            a("s_mov_b32 s%d, 0" % S_CNT)
            a(L + ":")
            a("ds_read_b32 %s, %s offset:%d" % (vr(T), vr(VZ), L_O + 4))
            a("s_add_u32 s%d, s%d, 1" % (S_CNT, S_CNT))
            a("s_cmp_gt_u32 s%d, %d" % (S_CNT, SPIN_MAX))
            a("s_cbranch_scc1 L_end")
            a("s_waitcnt lgkmcnt(0)")
            a("v_readfirstlane_b32 s%d, %s" % (S_TMP, vr(T)))
            a("s_cmp_lg_u32 s%d, 1" % S_TMP)
            a("s_cbranch_scc1 %s" % L)
        if self.sdelay:
            a("s_sleep %d" % self.sdelay)
        self.stamp(6)
        self.poll_mixed([(G + 4 * i, SA, 2048 * i, "e") for i in range(2)], S_MB, T, cnt=13)
        self.stamp(7)
        for k in range(8):
            a("v_and_b32 %s, s%d, %s" % (vr(G + k), S_EN, vr(G + k)))
        for k in range(4):
            a("v_add_f32 %s, %s, %s" % (vr(G + k), vr(G + k), vr(G + 4 + k)))
        self.xor_reduce("v_add_f32", [G, G + 1, G + 2, G + 3], ["r4", 8, 16, 32], T)
        a("v_cndmask_b32 %s, %s, %s, s[42:43]" % (vr(G), vr(G), vr(G + 2)))
        a("v_cndmask_b32 %s, %s, %s, s[42:43]" % (vr(G + 1), vr(G + 1), vr(G + 3)))
        a("v_mov_b32 %s, s%d" % (vr(G + 2), S_T))
        a("v_mov_b32 %s, s%d" % (vr(G + 3), S_T + 1))
        a("v_cndmask_b32 %s, %s, %s, s[58:59]" % (vr(G), vr(G), vr(GS)))
        a("v_cndmask_b32 %s, %s, %s, s[58:59]" % (vr(G + 1), vr(G + 1), vr(GS + 1)))
        a("s_mov_b64 exec, 0xffff")
        a("global_store_dwordx4 %s, %s, %s sc1" % (vr(BA), vr(G, 4), sp(S_WS)))
        a("s_mov_b64 exec, -1")
        self.stamp(8)
        Lf = a.newlabel("F")
        a("s_cmp_ge_u32 s27, 28")
        a("s_cbranch_scc1 %s" % Lf)
        self.end(T)
        a(Lf + ":")
        self.role = "C2F"
        G = 12
        if self.fstag:
            self.poll_staggered([(G, FA, 0), (G + 4, FA, 128)], [24, 28], [32, 36], S_WS, self.fstag)
            G = 32
        else:
            self.poll([(G, FA, 0), (G + 4, FA, 128)], S_WS, cnt=14)
        self.stamp(9)
        self.xor_reduce("v_add_f32", [G, G + 1, G + 4, G + 5], [8, 16, 32], T)
        a("v_cvt_pk_bf16_f32 %s, %s, %s" % (vr(G), vr(G), vr(G + 1)))
        a("v_cvt_pk_bf16_f32 %s, %s, %s" % (vr(G + 4), vr(G + 4), vr(G + 5)))
        a("v_and_b32 %s, 0xffff0000, %s" % (vr(G + 1), vr(G)))
        a("v_lshlrev_b32 %s, 16, %s" % (vr(G), vr(G)))
        a("v_and_b32 %s, 0xffff0000, %s" % (vr(G + 5), vr(G + 4)))
        a("v_lshlrev_b32 %s, 16, %s" % (vr(G + 4), vr(G + 4)))
        for e in range(2):
            a("v_mul_f32 %s, 0x%x, %s" % (vr(G + 8 + e), LOG2E ^ 0x80000000, vr(G + 4 + e)))
        for e in range(2):
            a("v_exp_f32 %s, %s" % (vr(G + 8 + e), vr(G + 8 + e)))
        a("s_nop 0")
        for e in range(2):
            a("v_add_f32 %s, 1.0, %s" % (vr(G + 8 + e), vr(G + 8 + e)))
        for e in range(2):
            a("v_rcp_f32 %s, %s" % (vr(G + 8 + e), vr(G + 8 + e)))
        a("s_nop 0")
        for e in range(2):
            a("v_mul_f32 %s, %s, %s" % (vr(G + 4 + e), vr(G + 4 + e), vr(G + 8 + e)))
        a("v_cvt_pk_bf16_f32 %s, %s, %s" % (vr(G + 4), vr(G + 4), vr(G + 5)))
        a("v_and_b32 %s, 0xffff0000, %s" % (vr(G + 5), vr(G + 4)))
        a("v_lshlrev_b32 %s, 16, %s" % (vr(G + 4), vr(G + 4)))
        for e in range(2):
            a("v_mul_f32 %s, %s, %s" % (vr(G + e), vr(G + e), vr(G + 4 + e)))
        a("v_cvt_pk_bf16_f32 %s, %s, %s" % (vr(G), vr(G), vr(G + 1)))
        a("v_and_b32 %s, 0xffff0000, %s" % (vr(G + 1), vr(G)))
        a("v_lshlrev_b32 %s, 16, %s" % (vr(G), vr(G)))
        a("v_and_b32 %s, 0xffff0000, %s" % (vr(G + 5), vr(XF)))
        a("v_lshlrev_b32 %s, 16, %s" % (vr(G + 4), vr(XF)))
        for e in range(2):
            a("v_add_f32 %s, %s, %s" % (vr(G + e), vr(G + e), vr(G + 4 + e)))
        a("v_cvt_pk_bf16_f32 %s, %s, %s" % (vr(G), vr(G), vr(G + 1)))
        a("s_mov_b64 exec, 0xff")
        a("global_store_dword %s, %s, %s" % (vr(OUTA), vr(G), sp(S_OUT)))
        Le = a.newlabel("E")
        a("s_cmp_lg_u32 s45, 0")
        a("s_cbranch_scc1 %s" % Le)
        a("s_mov_b64 exec, 1")
        a("v_mov_b32 %s, s%d" % (vr(G + 2), S_T))
        a("v_mov_b32 %s, s%d" % (vr(G + 3), S_T + 1))
        a("global_store_dwordx2 v1, %s, %s offset:%d sc1" % (vr(G + 2, 2), sp(S_WS), EPOCH))
        a(Le + ":")
        a("s_mov_b64 exec, -1")
        self.stamp(10)
        self.end(T)

    def build(self):
        self.prologue()
        self.role_c0()
        self.role_c1()
        self.role_c2()
        self.role_a()
        self.role_l()
        self.a("L_end:\ns_endpgm\nL_code_end:")
        return wrap(self.a.text(), 256, 512, LDS_BYTES, 192, sgpr=96)


def generate(**kw):
    return Gen(**kw).build()


if __name__ == "__main__":
    out = sys.argv[1] if len(sys.argv) > 1 else "cdna_kernels/%s.s" % NAME
    kw = {}
    for arg in sys.argv[2:]:
        k, v = arg.split("=")
        kw[k] = {"True": True, "False": False}.get(v, v)
    open(out, "w").write(generate(**kw))
    print("wrote", out)
```

```python
import sys
from asmgen import Asm, wrap, NAME

REGB = 0x400000
EPOCH = 0x0
H1 = 0x10000
ST = 0x50000
H3B = 0x70000
HB = 0x80000
H2 = 0x100000
H3S = 0x200000
H3G = 0x300000
STAMP_OFF = 256 << 20

L_Q = 0x0000
L_P = 0x0800
L_MX = 0x1800
L_O = 0x1AC0
L_XQ = 0x1880
L_XH = 0x1980
L_F = 0x1A80
L_K = 0x2000
L_V = 0xA000
L_WO = 0x12000
L_W2 = 0x16000
L_W1 = 0x1A000
F_V, F_INIT, F_Q, F_REM, F_K, F_MAX, F_P, F_ST, F_QPUB, F_OPUB, F_O, F_W1, F_SPUB, F_WO, F_W2, F_HPUB = [L_F + 4 * i for i in range(16)]
LDS_BYTES = 0x1E000

S_X, S_K, S_V, S_WQ, S_WO, S_W1, S_W2, S_OUT, S_WS = 4, 6, 8, 10, 12, 16, 18, 20, 24
S_G, S_C, S_W = 26, 27, 28
S_T = 30
S_XCC = 32
S_MODE = 33
S_MB = 34
S_T1X = 36
S_ISB = 38
S_CNT = 39
S_TMP = 40
S_E = 52
S_EM, S_EN = 56, 57
S_STAMP = 60

LOG2E = 0x3fb8aa3b
SCALE = 0x3db504f3
A_TIMEOUT = 8
SPIN_MAX = 1 << 20
POLL_MAX = 1 << 16


def sp(n):
    return "s[%d:%d]" % (n, n + 1)


def vr(n, k=1):
    return "v%d" % n if k == 1 else "v[%d:%d]" % (n, n + k - 1)


class Gen:
    def __init__(self, stamps=False, nt_kv="nt", nt_w="nt", force_global=False, mimic=True, window=16, nb_lo=32, nb_hi=24, order="k2v|o", code_pf=1, dbg=0, ileave=1, hold=0, init=2, w2=40, chk=4, init_late=0, ogate=4, sdelay=0, trace=0, sinit=0, sgate=1, spf=1, ofill=0, scramble=0, qack=1, qsleep=0, ggate=0, fstag=5, kgate=1, w1gate=0, odelay=0, prefill=0, plain0=0, atimeout=A_TIMEOUT, lprio=2, aprio=1, st_nt="", lazyb=1):
        self.a = Asm()
        self.window = int(window)
        self.nb_lo = int(nb_lo)
        self.nb_hi = int(nb_hi)
        self.order = order
        self.code_pf = int(code_pf)
        self.dbg = int(dbg)
        self.role = None
        if self.dbg:
            self.stamps = stamps = True
        self.ileave = int(ileave)
        self.hold = int(hold)
        self.init = int(init)
        self.w2 = int(w2)
        self.chk = int(chk)
        self.init_late = int(init_late)
        self.ogate = int(ogate)
        self.sdelay = int(sdelay)
        self.trace = int(trace)
        self.sinit = int(sinit)
        self.sgate = int(sgate)
        self.spf = int(spf)
        self.ofill = int(ofill)
        self.scramble = int(scramble)
        self.qack = int(qack)
        self.qsleep = int(qsleep)
        self.ggate = int(ggate)
        self.fstag = int(fstag)
        self.kgate = int(kgate)
        self.w1gate = int(w1gate)
        self.odelay = int(odelay)
        self.prefill = int(prefill)
        self.plain0 = int(plain0)
        self.atimeout = int(atimeout)
        self.lprio = int(lprio)
        self.st_nt = st_nt
        self.lazyb = int(lazyb)
        self.aprio = int(aprio)
        assert 4 * self.nb_lo + 4 * self.nb_hi == 224 and self.nb_lo % 8 == 0 and self.nb_hi % 8 == 0
        self.stamps = stamps
        self.nt_kv = nt_kv
        self.nt_w = nt_w
        self.force_global = force_global
        self.mimic = mimic
        self.nstamp = 0

    def stamp(self, idx):
        if self.stamps:
            self.a("s_memrealtime %s" % sp(S_STAMP + 2 * idx))

    def flag_add(self, flag, vz, vone):
        a = self.a
        a("s_mov_b64 exec, 1")
        a("ds_add_u32 %s, %s offset:%d" % (vr(vz), vr(vone), flag))
        a("s_mov_b64 exec, -1")

    def flag_set(self, flag, val, vz, vt):
        a = self.a
        a("v_mov_b32 %s, %d" % (vr(vt), val))
        a("s_mov_b64 exec, 1")
        a("ds_write_b32 %s, %s offset:%d" % (vr(vz), vr(vt), flag))
        a("s_mov_b64 exec, -1")

    def flag_wait(self, flag, n, vz, vt, sleep=0):
        a = self.a
        L, Lgo = a.newlabel("W"), a.newlabel("W")
        a("s_mov_b32 s%d, 0" % S_CNT)
        a(L + ":")
        a("ds_read_b32 %s, %s offset:%d" % (vr(vt), vr(vz), flag))
        a("s_waitcnt lgkmcnt(0)")
        a("v_readfirstlane_b32 s%d, %s" % (S_TMP, vr(vt)))
        a("s_cmp_ge_u32 s%d, %d" % (S_TMP, n))
        a("s_cbranch_scc1 %s" % Lgo)
        if sleep:
            a("s_sleep %d" % sleep)
        a("s_add_u32 s%d, s%d, 1" % (S_CNT, S_CNT))
        a("s_cmp_lt_u32 s%d, %d" % (S_CNT, SPIN_MAX))
        a("s_cbranch_scc1 %s" % L)
        a("s_branch L_end")
        a(Lgo + ":")

    def store_mode(self, vaddr, vdata, n=4):
        a = self.a
        L1, L2 = a.newlabel("S"), a.newlabel("S")
        op = "global_store_dwordx%d" % n
        a("s_cmp_lg_u32 s%d, 0" % S_MODE)
        a("s_cbranch_scc1 %s" % L1)
        a("%s %s, %s, %s %s" % (op, vr(vaddr), vr(vdata, n), sp(S_MB), self.st_nt))
        a("s_branch %s" % L2)
        a(L1 + ":")
        a("%s %s, %s, %s sc1" % (op, vr(vaddr), vr(vdata, n), sp(S_MB)))
        a(L2 + ":")

    def poll_traced(self, loads, base, first_stamp, npass=4):
        a = self.a
        Lok = a.newlabel("PT")
        n = len(loads)
        for k in range(npass):
            a("s_memrealtime %s" % sp(S_STAMP + 2 * (first_stamp + k)))
            for (vd, va, off) in loads:
                a("global_load_dwordx4 %s, %s, %s offset:%d sc1" % (vr(vd, 4), vr(va), sp(base), off))
            for i, (vd, va, off) in enumerate(loads):
                a("s_waitcnt vmcnt(%d)" % (n - 1 - i))
                dst = "vcc" if i == 0 else sp(S_TMP)
                a("v_cmp_ne_u64 %s, %s, %s" % (dst, vr(vd + 2, 2), sp(S_T)))
                if i:
                    a("s_or_b64 vcc, vcc, %s" % sp(S_TMP))
            a("s_cbranch_vccz %s" % Lok)
        self.poll(loads, base)
        a(Lok + ":")

    def poll(self, loads, base, tag=S_T, limit=POLL_MAX, on_timeout="L_end", cnt=None, plain_first=False):
        a = self.a
        L, Lok = a.newlabel("P"), a.newlabel("P")
        n = len(loads)

        def one_pass(flag):
            for (vd, va, off) in loads:
                a("global_load_dwordx4 %s, %s, %s offset:%d %s" % (vr(vd, 4), vr(va), sp(base), off, flag))
            for i, (vd, va, off) in enumerate(loads):
                a("s_waitcnt vmcnt(%d)" % (n - 1 - i))
                dst = "vcc" if i == 0 else sp(S_TMP)
                a("v_cmp_ne_u64 %s, %s, %s" % (dst, vr(vd + 2, 2), sp(tag)))
                if i:
                    a("s_or_b64 vcc, vcc, %s" % sp(S_TMP))
            a("s_cbranch_vccz %s" % Lok)
        a("s_mov_b32 s%d, 0" % S_CNT)
        if plain_first:
            one_pass("")
        a(L + ":")
        one_pass("sc1")
        a("s_add_u32 s%d, s%d, 1" % (S_CNT, S_CNT))
        a("s_cmp_le_u32 s%d, %d" % (S_CNT, limit))
        a("s_cbranch_scc1 %s" % L)
        a("s_branch %s" % on_timeout)
        a(Lok + ":")
        if cnt is not None and self.stamps:
            a("s_mov_b32 s%d, s%d" % (S_STAMP + 2 * cnt, S_CNT))

    def poll_mixed(self, loads, base, tmp, cnt=None):
        a = self.a
        L, Lok = a.newlabel("P"), a.newlabel("P")
        n = len(loads)
        a("s_mov_b32 s%d, 0" % S_CNT)
        a(L + ":")
        for (vd, va, off, kind) in loads:
            a("global_load_dwordx4 %s, %s, %s offset:%d sc1" % (vr(vd, 4), vr(va), sp(base), off))
        first_t, first_e = True, True
        for i, (vd, va, off, kind) in enumerate(loads):
            a("s_waitcnt vmcnt(%d)" % (n - 1 - i))
            if kind == "t":
                a("v_cmp_ne_u64 %s, %s, %s" % (sp(46) if first_t else sp(S_TMP), vr(vd + 2, 2), sp(S_T)))
                if not first_t:
                    a("s_or_b64 s[46:47], s[46:47], %s" % sp(S_TMP))
                first_t = False
            else:
                for k in range(4):
                    a("v_xor_b32 %s, s%d, %s" % (vr(tmp + 1 + k), S_E + k, vr(vd + k)))
                if first_e:
                    a("v_or3_b32 %s, %s, %s, %s" % (vr(tmp), vr(tmp + 1), vr(tmp + 2), vr(tmp + 3)))
                    a("v_or_b32 %s, %s, %s" % (vr(tmp), vr(tmp), vr(tmp + 4)))
                else:
                    a("v_or3_b32 %s, %s, %s, %s" % (vr(tmp), vr(tmp), vr(tmp + 1), vr(tmp + 2)))
                    a("v_or3_b32 %s, %s, %s, %s" % (vr(tmp), vr(tmp), vr(tmp + 3), vr(tmp + 4)))
                first_e = False
        a("v_and_b32 %s, s%d, %s" % (vr(tmp), S_EM, vr(tmp)))
        a("v_cmp_ne_u32 vcc, 0, %s" % vr(tmp))
        if not first_t:
            a("s_or_b64 vcc, vcc, s[46:47]")
        a("s_cbranch_vccz %s" % Lok)
        a("s_add_u32 s%d, s%d, 1" % (S_CNT, S_CNT))
        a("s_cmp_le_u32 s%d, %d" % (S_CNT, POLL_MAX))
        a("s_cbranch_scc1 %s" % L)
        a("s_branch L_end")
        a(Lok + ":")
        if cnt is not None and self.stamps:
            a("s_mov_b32 s%d, s%d" % (S_STAMP + 2 * cnt, S_CNT))

    def poll_staggered(self, loads, alt, dst, base, sleep):
        a = self.a
        n = len(loads)
        L, LA, LB = a.newlabel("PS"), a.newlabel("PS"), a.newlabel("PS")

        def issue(regs):
            for (vd, (_, va, off)) in zip(regs, loads):
                a("global_load_dwordx4 %s, %s, %s offset:%d sc1" % (vr(vd, 4), vr(va), sp(base), off))

        def check(regs, ok):
            for i, vd in enumerate(regs):
                a("s_waitcnt vmcnt(%d)" % (2 * n - 1 - i))
                dst = "vcc" if i == 0 else sp(S_TMP)
                a("v_cmp_ne_u64 %s, %s, %s" % (dst, vr(vd + 2, 2), sp(S_T)))
                if i:
                    a("s_or_b64 vcc, vcc, %s" % sp(S_TMP))
            a("s_cbranch_vccz %s" % ok)
        ra = [vd for (vd, _, _) in loads]
        a("s_mov_b32 s%d, 0" % S_CNT)
        issue(ra)
        a("s_sleep %d" % sleep)
        a(L + ":")
        issue(alt)
        check(ra, LA)
        issue(ra)
        check(alt, LB)
        a("s_add_u32 s%d, s%d, 1" % (S_CNT, S_CNT))
        a("s_cmp_le_u32 s%d, %d" % (S_CNT, POLL_MAX))
        a("s_cbranch_scc1 %s" % L)
        a("s_branch L_end")
        Ld = a.newlabel("PS")
        a(LB + ":")
        for (x, y) in zip(dst, alt):
            for k in range(2):
                a("v_mov_b32 %s, %s" % (vr(x + k), vr(y + k)))
        a("s_branch %s" % Ld)
        a(LA + ":")
        for (x, y) in zip(dst, ra):
            for k in range(2):
                a("v_mov_b32 %s, %s" % (vr(x + k), vr(y + k)))
        a(Ld + ":")

    def xor_reduce(self, op, regs, steps, tmp):
        a = self.a
        first_dpp = True
        for st in steps:
            if st in (16, 32):
                ins = "v_permlane16_swap_b32" if st == 16 else "v_permlane32_swap_b32"
                for i, r in enumerate(regs):
                    a("v_mov_b32 %s, %s" % (vr(tmp + i), vr(r)))
                if len(regs) < 3:
                    a("s_nop %d" % (2 - len(regs)))
                for i, r in enumerate(regs):
                    a("%s %s, %s" % (ins, vr(r), vr(tmp + i)))
                for i, r in enumerate(regs):
                    a("%s %s, %s, %s" % (op, vr(r), vr(r), vr(tmp + i)))
            else:
                ctl = {1: "quad_perm:[1,0,3,2]", 2: "quad_perm:[2,3,0,1]", "hm": "row_half_mirror", "m": "row_mirror", 8: "row_ror:8", "r4": "row_ror:4"}[st]
                a("s_nop 1" if first_dpp or len(regs) < 3 else "s_nop 0")
                first_dpp = False
                for r in regs:
                    a("%s_dpp %s, %s, %s %s row_mask:0xf bank_mask:0xf" % (op, vr(r), vr(r), vr(r), ctl))

    def read_mode(self, vz, vt):
        a = self.a
        a("ds_read_b32 %s, %s offset:%d" % (vr(vt), vr(vz), F_REM))
        a("s_waitcnt lgkmcnt(0)")
        a("v_readfirstlane_b32 s%d, %s" % (S_MODE, vr(vt)))
        if self.force_global:
            a("s_mov_b32 s%d, 1" % S_MODE)
        a("s_min_u32 s%d, s%d, 1" % (S_MODE, S_MODE))
        a("s_mul_i32 s%d, s%d, %d" % (S_TMP, S_MODE, REGB))
        a("s_add_u32 s%d, s%d, s%d" % (S_MB, S_WS, S_TMP))
        a("s_addc_u32 s%d, s%d, 0" % (S_MB + 1, S_WS + 1))

    def tags(self):
        a = self.a
        a("s_getreg_b32 s32, hwreg(HW_REG_XCC_ID, 0, 4)")
        a("s_waitcnt lgkmcnt(0)")
        a("s_add_u32 s%d, s%d, 0x9E3779B9" % (S_T, S_T))
        a("s_add_u32 s%d, s%d, 0x7F4A7C00" % (S_T + 1, S_T + 1))
        a("s_and_b32 s%d, s%d, 0xFFFFFFE0" % (S_T + 1, S_T + 1))
        a("s_or_b32 s%d, s%d, 0x10" % (S_T + 1, S_T + 1))
        a("s_mov_b32 s%d, s%d" % (S_T1X, S_T))
        a("s_or_b32 s%d, s%d, s%d" % (S_T1X + 1, S_T + 1, S_XCC))
        a("s_and_b32 s%d, s%d, 0x3ff" % (S_E, S_T))
        a("s_bfe_u32 s%d, s%d, 0xA000A" % (S_E + 1, S_T))
        a("s_bfe_u32 s%d, s%d, 0xA0014" % (S_E + 2, S_T))
        a("s_bfe_u32 s%d, s%d, 0xA0008" % (S_E + 3, S_T + 1))
        a("s_movk_i32 s%d, 0x3ff" % S_EM)
        a("s_mov_b32 s%d, 0xfffffc00" % S_EN)

    DBG_MAP = {"A": {0: [(0, True), (1, False)], 1: [(12, False)], 3: [(5, False)], 6: [(7, False)], 7: [(9, False)]},
               "C0": {2: [(14, False)], 4: [(15, False)], 5: [(3, False)], 9: [(8, False)]},
               "C1B": {5: [(13, False)]},
               "C2": {4: [(4, False)], 8: [(10, False)]},
               "C2F": {4: [(4, False)], 8: [(10, False)], 10: [(11, False)]},
               "L": {1: [(2, False)], 3: [(6, False)]}}

    def dump_stamps(self, vt):
        if not self.stamps:
            return
        a = self.a
        if self.dbg:
            a("s_waitcnt lgkmcnt(0)")
            a("s_mov_b64 exec, 1")
            a("v_mov_b32 %s, 0" % vr(vt))
            for st, outs in self.DBG_MAP.get(self.role, {}).items():
                for slot, inv in outs:
                    a("v_mov_b32 %s, s%d" % (vr(vt + 1), S_STAMP + 2 * st))
                    if inv:
                        a("v_not_b32 %s, %s" % (vr(vt + 1), vr(vt + 1)))
                    a("global_atomic_umax %s, %s, s[22:23] offset:%d" % (vr(vt), vr(vt + 1), 4 * slot))
            return
        a("s_waitcnt lgkmcnt(0)")
        a("s_lshl_b32 s%d, s2, 3" % S_TMP)
        a("s_add_u32 s%d, s%d, s%d" % (S_TMP, S_TMP, S_W))
        a("s_lshl_b32 s%d, s%d, 6" % (S_TMP, S_TMP))
        a("s_add_u32 s%d, s%d, %d" % (S_TMP, S_TMP, STAMP_OFF))
        a("s_mov_b64 exec, 1")
        a("v_mov_b32 %s, s%d" % (vr(vt), S_TMP))
        for i in range(16):
            a("v_mov_b32 %s, s%d" % (vr(vt + 1), S_STAMP + 2 * i))
            a("global_store_dword %s, %s, %s offset:%d" % (vr(vt), vr(vt + 1), sp(S_WS), 4 * i))

    def end(self, vt):
        self.dump_stamps(vt)
        self.a("s_endpgm")

    def layernorm_rows(self, base, lds_x, VZ, rows=128):
        a = self.a
        xs, xp = base, base + 4
        f = base + 16
        t = base + 24
        for i in range(4):
            a("v_lshlrev_b32 %s, 16, %s" % (vr(f + 2 * i), vr(xs + i)))
            a("v_and_b32 %s, 0xffff0000, %s" % (vr(f + 2 * i + 1), vr(xs + i)))
        a("v_add_f32 %s, %s, %s" % (vr(t), vr(f), vr(f + 1)))
        a("v_add_f32 %s, %s, %s" % (vr(t + 1), vr(f + 2), vr(f + 3)))
        a("v_add_f32 %s, %s, %s" % (vr(t + 2), vr(f + 4), vr(f + 5)))
        a("v_add_f32 %s, %s, %s" % (vr(t + 3), vr(f + 6), vr(f + 7)))
        a("v_add_f32 %s, %s, %s" % (vr(t), vr(t), vr(t + 1)))
        a("v_add_f32 %s, %s, %s" % (vr(t + 2), vr(t + 2), vr(t + 3)))
        a("v_add_f32 %s, %s, %s" % (vr(t), vr(t), vr(t + 2)))
        self.xor_reduce("v_add_f32", [t], [1, 2, "hm", "m", 16, 32], t + 4)
        a("v_mul_f32 %s, 0x3b000000, %s" % (vr(t), vr(t)))
        for i in range(8):
            a("v_sub_f32 %s, %s, %s" % (vr(f + i), vr(f + i), vr(t)))
        a("v_mul_f32 %s, %s, %s" % (vr(t + 1), vr(f), vr(f)))
        a("v_mul_f32 %s, %s, %s" % (vr(t + 2), vr(f + 1), vr(f + 1)))
        for i in range(2, 8, 2):
            a("v_fmac_f32 %s, %s, %s" % (vr(t + 1), vr(f + i), vr(f + i)))
            a("v_fmac_f32 %s, %s, %s" % (vr(t + 2), vr(f + i + 1), vr(f + i + 1)))
        a("v_add_f32 %s, %s, %s" % (vr(t + 1), vr(t + 1), vr(t + 2)))
        self.xor_reduce("v_add_f32", [t + 1], [1, 2, "hm", "m", 16, 32], t + 4)
        a("v_mul_f32 %s, 0x3b000000, %s" % (vr(t + 1), vr(t + 1)))
        a("v_cvt_pk_bf16_f32 %s, %s, %s" % (vr(t + 2), vr(t), vr(t + 1)))
        a("v_lshlrev_b32 %s, 16, %s" % (vr(t), vr(t + 2)))
        a("v_and_b32 %s, 0xffff0000, %s" % (vr(t + 1), vr(t + 2)))
        a("v_add_f32 %s, 0x3727c5ac, %s" % (vr(t + 1), vr(t + 1)))
        a("v_cvt_pk_bf16_f32 %s, %s, %s" % (vr(t + 1), vr(t + 1), vr(t + 1)))
        a("v_and_b32 %s, 0xffff0000, %s" % (vr(t + 1), vr(t + 1)))
        a("v_sqrt_f32 %s, %s" % (vr(t + 1), vr(t + 1)))
        a("s_nop 0")
        a("v_cvt_pk_bf16_f32 %s, %s, %s" % (vr(t + 1), vr(t + 1), vr(t + 1)))
        a("v_and_b32 %s, 0xffff0000, %s" % (vr(t + 1), vr(t + 1)))
        a("v_rcp_f32 %s, %s" % (vr(t + 2), vr(t + 1)))
        a("v_lshlrev_b32 %s, 16, %s" % (vr(f), vr(xp)))
        a("v_and_b32 %s, 0xffff0000, %s" % (vr(f + 1), vr(xp)))
        a("v_sub_f32 %s, %s, %s" % (vr(f), vr(f), vr(t)))
        a("v_sub_f32 %s, %s, %s" % (vr(f + 1), vr(f + 1), vr(t)))
        a("v_cvt_pk_bf16_f32 %s, %s, %s" % (vr(f), vr(f), vr(f + 1)))
        a("v_and_b32 %s, 0xffff0000, %s" % (vr(f + 1), vr(f)))
        a("v_lshlrev_b32 %s, 16, %s" % (vr(f), vr(f)))
        for i in range(2):
            a("v_mul_f32 %s, %s, %s" % (vr(f + 2 + i), vr(f + i), vr(t + 2)))
        for i in range(2):
            a("v_fma_f32 %s, -%s, %s, %s" % (vr(f + 4 + i), vr(f + 2 + i), vr(t + 1), vr(f + i)))
        for i in range(2):
            a("v_fmac_f32 %s, %s, %s" % (vr(f + 2 + i), vr(f + 4 + i), vr(t + 2)))
        a("v_cvt_pk_bf16_f32 %s, %s, %s" % (vr(f), vr(f + 2), vr(f + 3)))
        if rows == 128:
            a("v_lshlrev_b32 %s, 2, v0" % vr(t))
        else:
            a("v_and_b32 %s, 31, v0" % vr(t))
            a("v_lshlrev_b32 %s, 2, %s" % (vr(t), vr(t)))
        a("ds_write_b32 %s, %s offset:%d" % (vr(t), vr(f), lds_x))
        a("v_lshrrev_b32 %s, 3, v0" % vr(t))
        a("v_lshlrev_b32 %s, %d, %s" % (vr(t), 5 if rows == 128 else 4, vr(t)))
        a("ds_read_b128 %s, %s offset:%d" % (vr(base + 8, 4), vr(t), lds_x))
        if rows == 128:
            a("ds_read_b128 %s, %s offset:%d" % (vr(base + 12, 4), vr(t), lds_x + 16))

    def selectors(self, sel, tmp, both_parities):
        a = self.a
        a("v_and_b32 %s, 15, v0" % vr(tmp))
        a("v_and_b32 %s, 1, %s" % (vr(tmp + 1), vr(tmp)))
        a("v_bfe_u32 %s, %s, 1, 2" % (vr(tmp + 2), vr(tmp)))
        if not both_parities:
            a("v_lshrrev_b32 %s, 3, %s" % (vr(tmp + 3), vr(tmp)))
            a("v_lshl_add_u32 %s, %s, 2, %s" % (vr(tmp + 2), vr(tmp + 3), vr(tmp + 2)))
        a("v_cmp_eq_u32 vcc, 1, %s" % vr(tmp + 1))
        a("v_mov_b32 %s, 0x0c0c0100" % vr(tmp + 3))
        a("v_mov_b32 %s, 0x01000c0c" % vr(tmp + 4))
        a("v_cndmask_b32 %s, %s, %s, vcc" % (vr(tmp + 5), vr(tmp + 3), vr(tmp + 4)))
        a("v_mov_b32 %s, 0x0c0c0302" % vr(tmp + 3))
        a("v_mov_b32 %s, 0x03020c0c" % vr(tmp + 4))
        a("v_cndmask_b32 %s, %s, %s, vcc" % (vr(tmp + 6), vr(tmp + 3), vr(tmp + 4)))
        a("v_mov_b32 %s, 0x0c0c0c0c" % vr(tmp + 3))
        for t in range(4):
            a("v_cmp_eq_u32 vcc, %d, %s" % (t, vr(tmp + 2)))
            a("s_nop 1")
            a("v_cndmask_b32 %s, %s, %s, vcc" % (vr(sel + t), vr(tmp + 3), vr(tmp + 5)))
            a("v_cndmask_b32 %s, %s, %s, vcc" % (vr(sel + 4 + t), vr(tmp + 3), vr(tmp + 6)))

    def tile_gemv(self, W, XN, SEL, AF, ACC, nafter):
        a = self.a
        for i in range(16):
            for t in range(4):
                a("v_perm_b32 %s, %s, %s, %s" % (vr(AF + 4 * i + t), vr(XN + (i >> 1)), vr(XN + (i >> 1)), vr(SEL + 4 * (i & 1) + t)))
        for i in range(16):
            a("s_waitcnt vmcnt(%d)" % (15 - i + nafter))
            a("v_mfma_f32_16x16x32_bf16 %s, %s, %s, %s" % (vr(ACC, 4), vr(AF + 4 * i, 4), vr(W + 4 * i, 4), "0" if i == 0 else vr(ACC, 4)))
        a("s_nop 7")
        a("v_permlane32_swap_b32 %s, %s" % (vr(ACC), vr(ACC + 2)))
        a("v_permlane32_swap_b32 %s, %s" % (vr(ACC + 1), vr(ACC + 3)))
        a("s_nop 1")
        a("v_add_f32_dpp %s, %s, %s row_ror:8 row_mask:0xf bank_mask:0xf" % (vr(ACC), vr(ACC + 2), vr(ACC)))
        a("v_add_f32_dpp %s, %s, %s row_ror:8 row_mask:0xf bank_mask:0xf" % (vr(ACC + 1), vr(ACC + 3), vr(ACC + 1)))


    def prologue(self):
        a = self.a
        a("""
        s_cmp_ge_u32 s2, 256
        s_cbranch_scc1 L_end
        """)
        self.stamp(0)
        a("""
        s_load_dwordx16 s[4:19], s[0:1], 0
        s_load_dwordx4 s[20:23], s[0:1], 64
        s_load_dwordx2 s[24:25], s[0:1], 80
        v_lshrrev_b32 v1, 6, v0
        v_and_b32 v0, 63, v0
        %s
        v_readfirstlane_b32 s28, v1
        v_lshlrev_b32 v37, 4, v0
        s_lshr_b32 s40, s27, 3                ; row block of the Wq tile
        s_cmp_eq_u32 s28, 7
        s_cbranch_scc1 L_L
        s_cmp_eq_u32 s28, 5
        s_cbranch_scc1 L_C1
        s_cmp_eq_u32 s28, 6
        s_cbranch_scc1 L_C2
        s_cmp_lt_u32 s28, 4
        s_cbranch_scc1 L_A
        """ % ("s_lshr_b32 s26, s2, 5\ns_and_b32 s27, s2, 31" if self.scramble else "s_and_b32 s26, s2, 7\ns_lshr_b32 s27, s2, 3"))

    def dispatch_others(self):
        self.a("""
        L_other:
        v_mov_b32 v1, 0
        v_mov_b32 v2, 1
        s_cmp_eq_u32 s28, 7
        s_cbranch_scc1 L_L
        s_cmp_eq_u32 s28, 5
        s_cbranch_scc1 L_C1
        s_cmp_eq_u32 s28, 6
        s_cbranch_scc1 L_C2
        s_branch L_A
        """)

    def mlp_scalars(self):
        self.a("""
        s_cmp_lt_u32 s26, 4
        s_cselect_b32 s49, %d, %d
        s_cmp_lt_u32 s27, s49
        s_cselect_b32 s38, 1, 0
        s_mul_i32 s50, s26, %d
        s_sub_u32 s51, s26, 4
        s_mul_i32 s51, s51, %d
        s_add_u32 s51, s51, %d
        s_cmp_lt_u32 s26, 4
        s_cselect_b32 s50, s50, s51
        s_lshr_b32 s51, s27, 3
        s_add_u32 s50, s50, s51
        """ % (self.nb_lo, self.nb_hi, self.nb_lo // 8, self.nb_hi // 8, self.nb_lo // 2))

    def args_ready(self):
        self.a("s_waitcnt lgkmcnt(0)")
        self.a("s_load_dwordx2 s[30:31], s[24:25], %d" % EPOCH)

    def role_l(self):
        a = self.a
        VZ, V1 = 1, 2
        a(".p2align 8")
        a("L_L:")
        a("v_mov_b32 v1, 0\nv_mov_b32 v2, 1")
        self.role = "L"
        KO, VO = 8, 12
        WOA, WOB, W2A, W1A = 16, 17, 18, 20
        piece = 0x8000 if self.ileave else 0x400
        a("""
        s_lshl_b32 s40, s26, 24
        s_add_u32 s40, s40, 0xF00000
        s_lshl_b32 s41, s27, %d
        s_add_u32 s40, s40, s41               ; first piece of this chunk
        v_lshrrev_b32 v3, 4, v0               ; q4
        v_and_b32 v4, 15, v0                  ; pos
        v_xor_b32 v5, v4, v3
        v_lshl_add_u32 v6, v3, 8, s40
        """ % (10 if self.ileave else 15))
        for q in range(4):
            a("v_xor_b32 v7, %d, v5" % (4 * q))
            a("v_lshl_add_u32 v7, v7, 4, v6")
            a("v_add_u32 %s, %d, v7" % (vr(KO + q), 2 * q * piece))

        def rest_addresses():
            a("v_lshlrev_b32 v7, 1, v3")
            a("v_xor_b32 v7, v7, v4")
            a("v_lshl_add_u32 %s, v7, 4, v6" % vr(VO))
            a("v_xor_b32 v7, 8, v7")
            a("v_lshl_add_u32 v7, v7, 4, v6")
            a("v_add_u32 %s, %d, v7" % (vr(VO + 1), 2 * piece))
            a("""
            s_lshl_b32 s42, s26, 9                ; 512 g
            s_lshr_b32 s43, s27, 3
            s_lshl_b32 s43, s43, 7                ; 128 h
            s_add_u32 s42, s42, s43
            s_bfe_u32 s43, s27, 0x20001
            s_lshl_b32 s43, s43, 5
            s_add_u32 s42, s42, s43
            s_lshl_b32 s42, s42, 10               ; first Wo row of the pair * 1024
            s_and_b32 s43, s27, 1
            s_lshl_b32 s43, s43, 9                ; column half * 512 bytes
            s_add_u32 s42, s42, s43
            v_lshrrev_b32 v6, 3, v0
            v_lshlrev_b32 v6, 11, v6              ; 2 rows * 1024
            v_and_b32 v7, 7, v0
            v_lshl_add_u32 v7, v7, 4, v6
            v_add_u32 %s, s42, v7
            v_add_u32 %s, 0x4000, %s
            s_lshl_b32 s42, s50, 16               ; 64 cbg rows * 1024
            s_and_b32 s43, s27, 7
            s_lshl_b32 s43, s43, 7                ; column block j * 128 bytes
            s_add_u32 s42, s42, s43
            v_lshrrev_b32 v6, 3, v0
            v_lshlrev_b32 v6, 13, v6              ; 8 rows * 1024
            v_and_b32 v7, 7, v0
            v_lshl_add_u32 v6, v7, 4, v6
            v_add_u32 %s, s42, v6
            v_add_u32 v19, 0x1000, %s
            """ % (vr(WOA), vr(WOB), vr(WOA), vr(W2A), vr(W2A)))

        def m0(x):
            return "s_movk_i32 m0, 0x%x\n" % x if x < 0x8000 else "s_mov_b32 m0, 0x%x\n" % x

        def seq(isb):
            ops, flags, gates = [], [], []
            for grp in self.order:
                if grp == "|":
                    gates.append(len(ops))
                elif grp == "k":
                    for w in range(4):
                        for q in range(4):
                            for t in range(2):
                                p = 8 * w + 2 * q + t
                                ops.append((m0(L_K + 1024 * p), "global_load_lds_dwordx4 %s, %s %s" % (vr(KO + q), sp(S_K), self.nt_kv),
                                            "v_add_u32 %s, 0x%x, %s" % (vr(KO + q), (1 if t == 0 else 7) * piece, vr(KO + q))))
                    flags.append((len(ops), F_K))
                elif grp == "v":
                    for w in range(4):
                        for i in range(8):
                            b = (i >> 1) & 1
                            ops.append((m0(L_V + 1024 * (8 * w + i)), "global_load_lds_dwordx4 %s, %s %s" % (vr(VO + b), sp(S_V), self.nt_kv),
                                        "v_add_u32 %s, 0x%x, %s" % (vr(VO + b), (1 if (i & 1) == 0 else 3) * piece, vr(VO + b))))
                        flags.append((len(ops), F_V))
                elif grp == "f":
                    for i in range(4):
                        ops.append(("", "global_load_dwordx4 v[24:27], v23, %s offset:%d sc1" % (sp(S_WS), 1024 * i), ""))
                    ops.append(("", "global_load_dwordx4 v[24:27], v28, %s sc1" % sp(S_WS), ""))
                elif grp == "o":
                    for w in range(4):
                        for i in range(4):
                            off = 128 * w + 1024 * (i >> 1)
                            ops.append((m0(L_WO + (4 * w + i) * 1024 - off),
                                        "global_load_lds_dwordx4 %s, %s offset:%d %s" % (vr(WOA if (i & 1) == 0 else WOB), sp(S_WO), off, self.nt_w), ""))
                    flags.append((len(ops), F_WO))
                elif grp == "2" and isb:
                    for i in range(8):
                        ops.append((m0(L_W2 + 4096 * (i >> 2)),
                                    "global_load_lds_dwordx4 %s, %s offset:%d %s" % (vr(W2A if i < 4 else 19), sp(S_W2), 1024 * (i & 3), self.nt_w), ""))
                    flags.append((len(ops), F_W2))
                elif grp == "1" and isb:
                    for i in range(8):
                        ops.append((m0(L_W1 + 1024 * i), "global_load_lds_dwordx4 %s, %s %s" % (vr(W1A), sp(S_W1), self.nt_w),
                                    "v_add_u32 %s, 3584, %s" % (vr(W1A), vr(W1A))))
                    flags.append((len(ops), F_W1))
            return ops, flags, gates

        W = self.window
        self.args_ready()
        self.stamp(1)
        assert self.order[0] == "k"
        ops0, _, _ = seq(False)
        NE = min(W, 5) if not self.kgate else 0
        for j in range(NE):
            pre, ld, post = ops0[j]
            a(pre)
            a("s_nop 0")
            a(ld)
            a(post)
        a("s_barrier")
        if self.lprio:
            a("s_setprio %d" % self.lprio)
        self.mlp_scalars()
        rest_addresses()
        if self.kgate:
            self.flag_wait(F_ST, 1, VZ, 21)
        if "f" in self.order:
            a("""
            s_lshl_b32 s41, s26, 17
            s_lshl_b32 s42, s27, 12
            s_add_u32 s41, s41, s42
            s_add_u32 s41, s41, %d
            v_lshl_add_u32 v23, v0, 4, s41
            s_lshl_b32 s41, s26, 11
            s_lshr_b32 s42, s27, 3
            s_lshl_b32 s42, s42, 9
            s_add_u32 s41, s41, s42
            s_add_u32 s41, s41, %d
            v_and_b32 v28, 31, v0
            v_lshl_add_u32 v28, v28, 4, s41
            """ % (H2, ST))

        def with_values(flags):
            out, nv = [], 0
            for (e, f) in flags:
                if f == F_V:
                    nv += 1
                    out.append((e, f, nv))
                else:
                    out.append((e, f, 1))
            return out

        def run(ops, flags, gates, W, start, labels=None, check_to=None, first=False):
            n = len(ops)
            pend = [f for f in flags if f[0] > max(0, start - (W - 1)) or first]
            hold = self.hold
            for j in range(start, n):
                pre, ld, post = ops[j]
                if labels and j in labels:
                    a(labels[j] + ":")
                if hold and j == hold:
                    while pend and pend[0][0] <= j:
                        e, f, val = pend.pop(0)
                        a("s_waitcnt vmcnt(%d)" % (j - e))
                        self.flag_set(f, val, VZ, 22)
                    self.flag_wait(F_QPUB, 1, VZ, 21)
                    if isb_cur[0] and self.order[0] == "1":
                        self.flag_wait(F_HPUB, 1, VZ, 21)
                    self.stamp(4)
                if j in gates:
                    while pend and pend[0][0] <= j:
                        e, f, val = pend.pop(0)
                        a("s_waitcnt vmcnt(%d)" % (j - e))
                        self.flag_set(f, val, VZ, 22)
                    self.flag_wait(F_OPUB, 4, VZ, 21)
                chk = check_to is not None and j in check_to
                if chk:
                    a("ds_read_b32 v21, %s offset:%d" % (vr(VZ), F_Q))
                if j >= W and not any(g <= j < g + W for g in gates):
                    a("s_waitcnt vmcnt(%d)" % (W - 1))
                    landed = j - (W - 1)
                    while pend and pend[0][0] <= landed:
                        e, f, val = pend.pop(0)
                        self.flag_set(f, val, VZ, 22)
                if chk:
                    a("s_waitcnt lgkmcnt(0)")
                    a("v_readfirstlane_b32 s%d, v21" % S_TMP)
                    a("s_cmp_lg_u32 s%d, 0" % S_TMP)
                    a("s_cbranch_scc1 %s" % check_to[j])
                a(pre)
                a("s_nop 0")
                a(ld)
                if post:
                    a(post)
            self.stamp(2)
            for (e, f, val) in pend:
                a("s_waitcnt vmcnt(%d)" % (n - e))
                self.flag_set(f, val, VZ, 22)
            self.stamp(3)
            self.end(3)

        isb_cur = [False]

        def emit(isb):
            isb_cur[0] = isb
            ops, flags, gates = seq(isb)
            flags = with_values(flags)
            n = len(ops)
            if not self.w2:
                run(ops, flags, gates, W, NE, first=True)
                return
            points = [j for j in range(W, n - 8) if (j - W) % self.chk == 0]
            labels = {j: a.newlabel("FAST") for j in points}
            run(ops, flags, gates, W, NE, check_to=labels, first=True)
            run(ops, flags, gates, self.w2, points[0], labels=labels)

        Lb = a.newlabel("LB")
        a("s_cmp_lg_u32 s%d, 0" % S_ISB)
        a("s_cbranch_scc1 %s" % Lb)
        emit(False)
        a(Lb + ":")
        emit(True)

    def role_a(self):
        a = self.a
        VZ, V1 = 1, 2
        T = 5
        a("L_A:")
        a("v_mov_b32 v1, 0\nv_mov_b32 v2, 1")
        self.role = "A"
        a("s_barrier")
        self.args_ready()
        a("s_setprio %d" % self.aprio)
        KO, VO, QA = 16, 20, 24
        a("""
        v_lshrrev_b32 v3, 4, v0               ; gg
        v_and_b32 v4, 15, v0                  ; m
        s_lshl_b32 s41, s28, 13
        v_and_b32 v5, 3, v4                   ; b = m & 3
        v_lshrrev_b32 v6, 2, v4               ; a = m >> 2
        v_lshlrev_b32 v7, 11, v6
        v_lshl_add_u32 v7, v5, 8, v7
        v_xor_b32 v8, v3, v5
        v_lshl_add_u32 v7, v8, 4, v7
        v_add_u32 v7, s41, v7
        """)
        for s in range(4):
            a("v_xor_b32 v8, %d, v6" % s)
            a("v_lshl_add_u32 %s, v8, 6, v7" % vr(KO + s))
        a("v_mul_u32_u24 v8, 320, v6")
        a("v_lshl_add_u32 %s, v3, 4, v8" % vr(QA))
        a("""
        v_lshrrev_b32 v8, 2, v4               ; r
        v_and_b32 v9, 3, v4                   ; cq
        v_and_b32 v10, 1, v3
        v_lshl_or_b32 v10, v10, 2, v8         ; sigma
        v_lshl_add_u32 v11, v3, 3, v8         ; 8 gg + r
        v_lshlrev_b32 v11, 8, v11
        v_lshl_add_u32 v11, v9, 3, v11
        v_add_u32 v11, %d, v11
        s_lshl_b32 s42, s28, 1
        """ % L_V)
        for u in range(2):
            a("s_add_u32 s43, s42, %d" % u)
            a("v_xor_b32 v12, s43, v10")
            a("v_lshl_add_u32 %s, v12, 5, v11" % vr(VO + u))
        WOA = 22
        a("s_lshl_b32 s42, s28, 12")
        a("s_add_u32 s42, s42, %d" % L_WO)
        a("v_lshl_add_u32 %s, v0, 4, s42" % vr(WOA))
        SEL = 28
        self.selectors(SEL, T, both_parities=True)
        self.tags()
        TG = 36
        a("v_mov_b32 %s, s%d" % (vr(TG + 2), S_T))
        a("v_mov_b32 %s, s%d" % (vr(TG + 3), S_T + 1))
        OA, SA, STA = 40, 41, 43
        a("""
        s_lshl_b32 s42, s26, 16               ; g * 65536
        s_lshl_b32 s43, s27, 7                ; c * 128
        s_add_u32 s42, s42, s43
        s_add_u32 s42, s42, %d
        v_bfe_u32 v12, v0, 1, 3
        v_lshlrev_b32 v12, 4, v12             ; O granule (n >> 1) * 16
        v_lshlrev_b32 v13, 2, v3              ; 4 h
        v_add_u32 v13, s28, v13               ; pair 4 h + w
        v_lshl_add_u32 v13, v13, 12, v12
        v_add_u32 %s, s42, v13
        s_lshl_b32 s42, s26, 15               ; g * 32768
        s_lshr_b32 s43, s27, 1
        s_lshl_b32 s43, s43, 6                ; (c >> 1) * 64
        s_add_u32 s42, s42, s43
        s_and_b32 s43, s27, 1
        s_lshl_b32 s43, s43, 14               ; 16 b' * 1024
        s_add_u32 s42, s42, s43
        s_lshr_b32 s43, s28, 1
        s_lshl_b32 s43, s43, 13               ; 8 (w >> 1) * 1024
        s_add_u32 s42, s42, s43
        s_and_b32 s43, s28, 1
        s_lshl_b32 s43, s43, 11               ; 2 (w & 1) * 1024
        s_add_u32 s42, s42, s43
        s_add_u32 s42, s42, %d
        v_bfe_u32 v12, v0, 4, 1
        v_lshlrev_b32 v12, 12, v12            ; 4 g' * 1024
        v_bfe_u32 v13, v0, 2, 1
        v_lshl_add_u32 v12, v13, 10, v12      ; (n >> 2) * 1024
        v_and_b32 v13, 3, v0
        v_lshl_add_u32 v12, v13, 4, v12
        v_add_u32 %s, s42, v12
        s_lshl_b32 s42, s26, 11
        s_lshl_b32 s43, s27, 4
        s_add_u32 s42, s42, s43
        s_add_u32 s42, s42, %d
        v_lshl_add_u32 %s, v3, 9, s42
        """ % (H2, vr(OA), H3S, vr(SA), ST, vr(STA)))
        VT, PK = 160, 164
        for k in range(4):
            a("v_mov_b32 %s, s%d" % (vr(VT + k), S_E + k))
        MXW, PWA, PRA, MRA, ORA = 25, 26, 27, 45, 46
        a("""
        v_lshrrev_b32 v12, 2, v4
        v_lshlrev_b32 v12, 4, v12             ; head (l & 15) >> 2, * 16
        s_lshl_b32 s42, s28, 2
        v_add_u32 %s, s42, v12                ; + wave * 4
        v_lshlrev_b32 %s, 4, v0
        s_lshl_b32 s42, s28, 10
        v_add_u32 %s, s42, %s
        v_lshlrev_b32 %s, 4, v3
        v_lshrrev_b32 v12, 3, v0
        v_lshlrev_b32 %s, 4, v12
        """ % (vr(MXW), vr(PRA), vr(PWA), vr(PRA), vr(MRA), vr(ORA)))
        OD = 112
        KF = 48
        QF = 80
        WO = 96
        self.flag_wait(F_K, 1, VZ, T, sleep=2)
        self.stamp(1)
        for t in range(2):
            for s in range(4):
                a("ds_read_b128 %s, %s offset:%d" % (vr(KF + 16 * t + 4 * s, 4), vr(KO + s), L_K + 1024 * t))
        self.flag_wait(F_Q, 1, VZ, T, sleep=1)
        self.stamp(2)
        for s in range(4):
            a("ds_read_b128 %s, %s offset:%d" % (vr(QF + 4 * s, 4), vr(QA), L_Q + 64 * s))
        self.read_mode(VZ, T)
        SC = 112
        for s in range(4):
            for t in range(2):
                a("v_mfma_f32_16x16x32_bf16 %s, %s, %s, %s" % (vr(SC + 4 * t, 4), vr(KF + 16 * t + 4 * s, 4), vr(QF + 4 * s, 4), "0" if s == 0 else vr(SC + 4 * t, 4)))
        a("s_nop 7")
        if self.mimic:
            for i in range(4):
                a("v_cvt_pk_bf16_f32 %s, %s, %s" % (vr(T + i), vr(SC + 2 * i), vr(SC + 2 * i + 1)))
            for i in range(4):
                a("v_lshlrev_b32 %s, 16, %s" % (vr(SC + 2 * i), vr(T + i)))
                a("v_and_b32 %s, 0xffff0000, %s" % (vr(SC + 2 * i + 1), vr(T + i)))
        for i in range(8):
            a("v_mul_f32 %s, 0x%x, %s" % (vr(SC + i), SCALE, vr(SC + i)))
        if self.mimic:
            for i in range(4):
                a("v_cvt_pk_bf16_f32 %s, %s, %s" % (vr(T + i), vr(SC + 2 * i), vr(SC + 2 * i + 1)))
            for i in range(4):
                a("v_lshlrev_b32 %s, 16, %s" % (vr(SC + 2 * i), vr(T + i)))
                a("v_and_b32 %s, 0xffff0000, %s" % (vr(SC + 2 * i + 1), vr(T + i)))
        MX = 44
        a("v_max3_f32 %s, %s, %s, %s" % (vr(T), vr(SC), vr(SC + 1), vr(SC + 2)))
        a("v_max3_f32 %s, %s, %s, %s" % (vr(T + 1), vr(SC + 3), vr(SC + 4), vr(SC + 5)))
        a("v_max3_f32 %s, %s, %s, %s" % (vr(T), vr(T), vr(SC + 6), vr(SC + 7)))
        a("v_max_f32 %s, %s, %s" % (vr(MX), vr(T), vr(T + 1)))
        self.xor_reduce("v_max_f32", [MX], [16, 32], T)
        a("v_mov_b32 %s, 0x%x" % (vr(T + 8), LOG2E))
        a("v_mul_f32 %s, %s, %s" % (vr(T + 9), vr(MX), vr(T + 8)))
        a("s_mov_b64 exec, 0x1111")
        a("ds_write_b32 %s, %s offset:%d" % (vr(MXW), vr(MX), L_MX))
        a("s_mov_b64 exec, -1")
        for i in range(8):
            a("v_fma_f32 %s, %s, %s, -%s" % (vr(SC + i), vr(SC + i), vr(T + 8), vr(T + 9)))
        for i in range(8):
            a("v_exp_f32 %s, %s" % (vr(SC + i), vr(SC + i)))
        PF = 48
        a("s_nop 0")
        for i in range(4):
            a("v_cvt_pk_bf16_f32 %s, %s, %s" % (vr(T + 1 + i), vr(SC + 2 * i), vr(SC + 2 * i + 1)))
        a("ds_write_b128 %s, %s offset:%d" % (vr(PWA), vr(T + 1, 4), L_P))
        self.flag_add(F_P, VZ, V1)
        self.flag_wait(F_P, 4, VZ, T + 6)
        for ks in range(4):
            a("ds_read_b128 %s, %s offset:%d" % (vr(PF + 4 * ks, 4), vr(PRA), L_P + 1024 * ks))
        FW = 120
        a("ds_read_b128 %s, %s offset:%d" % (vr(FW, 4), vr(MRA), L_MX))
        self.stamp(3)
        a("s_waitcnt lgkmcnt(0)")
        a("v_max3_f32 %s, %s, %s, %s" % (vr(MX), vr(FW), vr(FW + 1), vr(FW + 2)))
        a("v_max_f32 %s, %s, %s" % (vr(MX), vr(MX), vr(FW + 3)))
        a("v_mul_f32 %s, %s, %s" % (vr(T + 9), vr(MX), vr(T + 8)))
        for i in range(4):
            a("v_fma_f32 %s, %s, %s, -%s" % (vr(FW + i), vr(FW + i), vr(T + 8), vr(T + 9)))
        for i in range(4):
            a("v_exp_f32 %s, %s" % (vr(FW + i), vr(FW + i)))
        D = 128
        TS = 124
        Lns = a.newlabel("NS")
        a("s_cmp_lg_u32 s28, 0")
        a("s_cbranch_scc1 %s" % Lns)
        ON = 64
        for t in range(4):
            a("v_mov_b32 %s, 0x3f803f80" % vr(ON + t))
        a("s_nop 1")
        for ks in range(4):
            a("v_mfma_f32_16x16x32_bf16 %s, %s, %s, 0" % (vr(D + 4 * ks, 4), vr(PF + 4 * ks, 4), vr(ON, 4)))
        a("v_mov_b32 %s, %s" % (vr(TS), vr(MX)))
        a("v_mov_b32 %s, %s" % (vr(TS + 2), vr(TG + 2)))
        a("v_mov_b32 %s, %s" % (vr(TS + 3), vr(TG + 3)))
        a("s_nop 4")
        a("v_mul_f32 %s, %s, %s" % (vr(TS + 1), vr(FW), vr(D)))
        for ks in range(1, 4):
            a("v_fmac_f32 %s, %s, %s" % (vr(TS + 1), vr(FW + ks), vr(D + 4 * ks)))
        a(Lns + ":")
        wo_first = self.order.index("o") < self.order.index("v")

        def read_wo():
            self.flag_wait(F_WO, 1, VZ, T, sleep=0 if not wo_first else 1)
            for i in range(4):
                a("ds_read_b128 %s, %s offset:%d" % (vr(WO + 4 * i, 4), vr(WOA), 1024 * i))
        if wo_first:
            read_wo()
        self.stamp(4)
        VF = 64
        S_V, S_I = 44, 45
        a("s_mov_b32 s%d, 0" % S_V)
        a("s_mov_b32 s%d, 0" % S_I)
        for ks in range(4):
            Lgo, Lsp = a.newlabel("V"), a.newlabel("V")
            a("s_cmp_ge_u32 s%d, %d" % (S_V, ks + 1))
            a("s_cbranch_scc1 %s" % Lgo)
            a("s_mov_b32 s%d, 0" % S_CNT)
            a(Lsp + ":")
            a("ds_read_b64 %s, %s offset:%d" % (vr(T + 1, 2), vr(VZ), F_V))
            a("s_add_u32 s%d, s%d, 1" % (S_CNT, S_CNT))
            a("s_cmp_gt_u32 s%d, %d" % (S_CNT, SPIN_MAX))
            a("s_cbranch_scc1 L_end")
            a("s_waitcnt lgkmcnt(0)")
            a("v_readfirstlane_b32 s%d, %s" % (S_V, vr(T + 1)))
            a("v_readfirstlane_b32 s%d, %s" % (S_I, vr(T + 2)))
            a("s_cmp_lt_u32 s%d, %d" % (S_V, ks + 1))
            a("s_cbranch_scc1 %s" % Lsp)
            a(Lgo + ":")
            if ks == 3:
                self.stamp(5)
            for u in range(2):
                for jh in range(2):
                    a("ds_read_b64_tr_b16 %s, %s offset:%d" % (vr(VF + 8 * ks + 4 * u + 2 * jh, 2), vr(VO + u), 8192 * ks + 1024 * jh))
            if ks:
                a("s_waitcnt lgkmcnt(4)")
                for u in range(2):
                    a("v_mfma_f32_16x16x32_bf16 %s, %s, %s, 0" % (vr(D + 8 * (ks - 1) + 4 * u, 4), vr(PF + 4 * (ks - 1), 4), vr(VF + 8 * (ks - 1) + 4 * u, 4)))
        for u in range(2):
            a("s_waitcnt lgkmcnt(%d)" % (2 - 2 * u))
            a("v_mfma_f32_16x16x32_bf16 %s, %s, %s, 0" % (vr(D + 24 + 4 * u, 4), vr(PF + 12, 4), vr(VF + 24 + 4 * u, 4)))
        a("v_mul_f32 %s, %s, %s" % (vr(TG), vr(FW), vr(D)))
        a("v_mul_f32 %s, %s, %s" % (vr(TG + 1), vr(FW), vr(D + 4)))
        for ks in range(1, 3):
            a("v_fmac_f32 %s, %s, %s" % (vr(TG), vr(FW + ks), vr(D + 8 * ks)))
            a("v_fmac_f32 %s, %s, %s" % (vr(TG + 1), vr(FW + ks), vr(D + 8 * ks + 4)))
        a("s_nop 1")
        a("v_fmac_f32 %s, %s, %s" % (vr(TG), vr(FW + 3), vr(D + 24)))
        a("v_fmac_f32 %s, %s, %s" % (vr(TG + 1), vr(FW + 3), vr(D + 28)))
        if self.sinit:
            Li = a.newlabel("I")
            a("s_cmp_ge_u32 s%d, 2" % S_I)
            a("s_cbranch_scc1 %s" % Li)
            self.flag_wait(F_INIT, 2, VZ, T)
            a(Li + ":")
        a("v_and_or_b32 %s, %s, s%d, %s" % (vr(PK), vr(TG), S_EN, vr(VT)))
        a("v_and_or_b32 %s, %s, s%d, %s" % (vr(PK + 1), vr(TG + 1), S_EN, vr(VT + 1)))
        a("v_mov_b32_dpp %s, %s quad_perm:[1,1,3,3] row_mask:0xf bank_mask:0xf" % (vr(PK + 2), vr(TG)))
        a("v_mov_b32_dpp %s, %s quad_perm:[1,1,3,3] row_mask:0xf bank_mask:0xf" % (vr(PK + 3), vr(TG + 1)))
        a("v_and_or_b32 %s, %s, s%d, %s" % (vr(PK + 2), vr(PK + 2), S_EN, vr(VT + 2)))
        a("v_and_or_b32 %s, %s, s%d, %s" % (vr(PK + 3), vr(PK + 3), S_EN, vr(VT + 3)))
        a("s_mov_b32 exec_lo, 0x55555555")
        a("s_mov_b32 exec_hi, 0x55555555")
        self.store_mode(OA, PK)
        a("s_mov_b64 exec, -1")
        Lns = a.newlabel("NS")
        a("s_cmp_lg_u32 s28, 0")
        a("s_cbranch_scc1 %s" % Lns)
        a("s_mov_b32 s42, 0x00010001")
        a("s_mov_b32 s43, 0x00010001")
        a("s_mov_b64 exec, s[42:43]")
        self.store_mode(STA, TS)
        a("s_mov_b64 exec, -1")
        a(Lns + ":")
        self.flag_add(F_OPUB, VZ, V1)
        self.stamp(6)
        if not wo_first:
            read_wo()
        AF = 64
        OG = 8
        Lsp = a.newlabel("O")
        a("s_mov_b32 s%d, 0" % S_CNT)
        a(Lsp + ":")
        a("ds_read_b128 %s, %s offset:%d" % (vr(OG, 4), vr(ORA), L_O))
        a("s_add_u32 s%d, s%d, 1" % (S_CNT, S_CNT))
        a("s_cmp_gt_u32 s%d, %d" % (S_CNT, SPIN_MAX))
        a("s_cbranch_scc1 L_end")
        a("s_waitcnt lgkmcnt(0)")
        a("v_and_b32 %s, %s, %s" % (vr(OG + 1), vr(OG + 1), vr(OG + 3)))
        a("v_cmp_ne_u32 vcc, 1, %s" % vr(OG + 1))
        a("s_cbranch_vccnz %s" % Lsp)
        for i in range(4):
            src = OG + 2 * (i >> 1)
            for t in range(4):
                a("v_perm_b32 %s, %s, %s, %s" % (vr(AF + 4 * i + t), vr(src), vr(src), vr(SEL + 4 * (i & 1) + t)))
            if i:
                a("v_mfma_f32_16x16x32_bf16 %s, %s, %s, %s" % (vr(OD, 4), vr(AF + 4 * (i - 1), 4), vr(WO + 4 * (i - 1), 4), "0" if i == 1 else vr(OD, 4)))
        a("s_nop 1")
        a("v_mfma_f32_16x16x32_bf16 %s, %s, %s, %s" % (vr(OD, 4), vr(AF + 12, 4), vr(WO + 12, 4), vr(OD, 4)))
        a("s_nop 7")
        a("v_permlane32_swap_b32 %s, %s" % (vr(OD), vr(OD + 2)))
        a("v_permlane32_swap_b32 %s, %s" % (vr(OD + 1), vr(OD + 3)))
        a("s_mov_b32 s42, 0x00ff00ff")
        a("s_mov_b32 s43, 0")
        a("v_add_f32_dpp %s, %s, %s row_ror:8 row_mask:0xf bank_mask:0xf" % (vr(OD), vr(OD + 2), vr(OD)))
        a("v_add_f32_dpp %s, %s, %s row_ror:8 row_mask:0xf bank_mask:0xf" % (vr(OD + 1), vr(OD + 3), vr(OD + 1)))
        a("s_nop 1")
        a("v_permlane32_swap_b32 %s, %s" % (vr(OD), vr(OD + 2)))
        a("v_permlane32_swap_b32 %s, %s" % (vr(OD + 1), vr(OD + 3)))
        for k in range(4):
            a("v_and_or_b32 %s, %s, s%d, %s" % (vr(PK + k), vr(OD + k), S_EN, vr(VT + k)))
        a("s_mov_b64 exec, s[42:43]")
        self.store_mode(SA, PK)
        a("s_mov_b64 exec, -1")
        if self.sgate:
            self.flag_add(F_SPUB, VZ, V1)
        self.stamp(7)
        self.end(T)

    def role_c0(self):
        a = self.a
        VZ, V1 = 1, 2
        X = 4
        W = 40
        AF = 104
        SEL = 168
        ACC = 176
        T = 180
        self.role = "C0"
        if self.code_pf:
            a("s_getpc_b64 s[52:53]")
            a("L_pc:")
            a("s_lshl_b32 s54, s27, 10")
            a("v_add_u32 v3, s54, v37")
            a("v_min_u32 v3, L_code_end-L_pc-16, v3")
            a("global_load_dwordx4 v[188:191], v3, s[52:53]")
        a("""
        s_lshl_b32 s41, s40, 8
        v_lshl_add_u32 v38, v0, 2, s41
        s_lshl_b32 s41, s40, 20               ; rb * 128 * 8192
        s_lshl_b32 s42, s26, 10               ; g * 512 * 2
        s_add_u32 s41, s41, s42
        s_and_b32 s42, s27, 7
        s_lshl_b32 s42, s42, 7                ; cb * 128
        s_add_u32 s41, s41, s42
        v_lshrrev_b32 v3, 3, v0
        v_lshlrev_b32 v3, 17, v3              ; 16 rows * 8192
        v_and_b32 v36, 7, v0
        v_lshl_add_u32 v3, v36, 4, v3
        v_add_u32 v3, s41, v3
        s_mov_b32 m0, %d
        s_movk_i32 s41, 15
        s_waitcnt lgkmcnt(0)
        global_load_dwordx4 %s, v37, %s
        global_load_dword %s, v38, %s
        L_wq:
        global_load_lds_dwordx4 v3, %s %s
        v_add_u32 v3, 0x2000, v3
        s_addk_i32 m0, 0x400
        s_sub_u32 s41, s41, 1
        s_cbranch_scc0 L_wq
        s_barrier
        L_C0_rest:
        s_setprio 3
        s_load_dwordx2 s[30:31], s[24:25], %d
        v_mov_b32 v1, 0
        v_mov_b32 v2, 1
        """ % (L_W1, vr(X, 4), sp(S_X), vr(X + 4), sp(S_X), sp(S_WQ), self.nt_w, EPOCH))
        self.stamp(1)
        self.selectors(SEL, T, both_parities=True)
        a("s_waitcnt vmcnt(16)")
        if self.kgate == 1:
            self.flag_add(F_ST, VZ, V1)
        self.stamp(2)
        self.layernorm_rows(X, L_XQ, VZ)
        self.tags()
        a("s_waitcnt lgkmcnt(0)")
        if self.kgate == 2:
            self.flag_add(F_ST, VZ, V1)
        self.stamp(3)
        XN = X + 8
        a("v_add_u32 v37, %d, v37" % L_W1)
        for i in range(16):
            for t in range(4):
                a("v_perm_b32 %s, %s, %s, %s" % (vr(AF + 4 * i + t), vr(XN + (i >> 1)), vr(XN + (i >> 1)), vr(SEL + 4 * (i & 1) + t)))
        for q in range(4):
            a("s_waitcnt vmcnt(%d)" % (12 - 4 * q))
            if self.kgate >= 3 and q == self.kgate - 3:
                self.flag_add(F_ST, VZ, V1)
            for i in range(4 * q, 4 * q + 4):
                a("ds_read_b128 %s, v37 offset:%d" % (vr(W + 4 * i, 4), 1024 * i))
            if q:
                for i in range(4 * q - 4, 4 * q):
                    a("s_waitcnt lgkmcnt(%d)" % (4 + (4 * q - 1 - i)))
                    a("v_mfma_f32_16x16x32_bf16 %s, %s, %s, %s" % (vr(ACC, 4), vr(AF + 4 * i, 4), vr(W + 4 * i, 4), "0" if i == 0 else vr(ACC, 4)))
        for i in range(12, 16):
            a("s_waitcnt lgkmcnt(%d)" % (15 - i))
            a("v_mfma_f32_16x16x32_bf16 %s, %s, %s, %s" % (vr(ACC, 4), vr(AF + 4 * i, 4), vr(W + 4 * i, 4), vr(ACC, 4)))
        a("s_nop 7")
        a("v_permlane32_swap_b32 %s, %s" % (vr(ACC), vr(ACC + 2)))
        a("v_permlane32_swap_b32 %s, %s" % (vr(ACC + 1), vr(ACC + 3)))
        a("s_nop 1")
        a("v_add_f32_dpp %s, %s, %s row_ror:8 row_mask:0xf bank_mask:0xf" % (vr(ACC), vr(ACC + 2), vr(ACC)))
        a("v_add_f32_dpp %s, %s, %s row_ror:8 row_mask:0xf bank_mask:0xf" % (vr(ACC + 1), vr(ACC + 3), vr(ACC + 1)))
        self.stamp(4)
        a("v_mov_b32 %s, s%d" % (vr(ACC + 2), S_T1X))
        a("v_mov_b32 %s, s%d" % (vr(ACC + 3), S_T1X + 1))
        a("""
        s_lshl_b32 s41, s26, 14               ; g * 16384
        s_lshr_b32 s42, s27, 3
        s_lshl_b32 s42, s42, 12               ; rb * 4096
        s_add_u32 s41, s41, s42
        s_and_b32 s42, s27, 7
        s_lshl_b32 s42, s42, 9                ; cb * 512
        s_add_u32 s41, s41, s42
        s_add_u32 s41, s41, %d
        v_lshrrev_b32 v3, 4, v0               ; 2 hi + g'
        v_lshlrev_b32 v3, 3, v3
        v_and_b32 v36, 7, v0
        v_add_u32 v3, v3, v36                 ; pos = 16 hi + 8 g' + n
        v_lshl_add_u32 v3, v3, 4, s41
        v_add_u32 v37, %d, v3
        """ % (H1, REGB))
        a("s_mov_b32 s42, 0x00ff00ff")
        a("s_mov_b32 s43, 0x00ff00ff")
        a("s_mov_b64 exec, s[42:43]")
        a("global_store_dwordx4 v3, %s, %s %s" % (vr(ACC, 4), sp(S_WS), self.st_nt))
        if self.lazyb:
            a("s_mov_b64 exec, -1")
            self.stamp(5)
            a("s_waitcnt vmcnt(0)")
            self.flag_add(F_QPUB, VZ, V1)
        elif self.qack:
            a("global_store_dwordx4 v37, %s, %s sc1" % (vr(ACC, 4), sp(S_WS)))
            a("s_mov_b64 exec, -1")
            self.stamp(5)
            a("s_waitcnt vmcnt(1)")
            if self.qsleep:
                a("s_sleep %d" % self.qsleep)
            self.flag_add(F_QPUB, VZ, V1)
        else:
            a("s_mov_b64 exec, -1")
            self.flag_add(F_QPUB, VZ, V1)
            a("s_mov_b64 exec, s[42:43]")
            a("global_store_dwordx4 v37, %s, %s sc1" % (vr(ACC, 4), sp(S_WS)))
            a("s_mov_b64 exec, -1")
        if not self.qack:
            self.stamp(5)
        SA, OA = 4, 5
        G = 8
        a("""
        s_lshl_b32 s41, s26, 11               ; g * 2048
        s_lshr_b32 s42, s27, 3
        s_lshl_b32 s42, s42, 9                ; head * 512
        s_add_u32 s41, s41, s42
        s_add_u32 s41, s41, %d
        v_lshrrev_b32 v3, 3, v0
        v_lshl_add_u32 %s, v3, 4, s41
        s_lshl_b32 s41, s26, 16
        s_lshr_b32 s42, s27, 1
        s_lshl_b32 s42, s42, 12
        s_add_u32 s41, s41, s42
        s_add_u32 s41, s41, %d
        v_lshl_add_u32 %s, v0, 4, s41
        """ % (ST, vr(SA), H2, vr(OA)))
        a("v_lshlrev_b32 v6, 4, v0")
        self.flag_wait(F_Q, 1, VZ, T, sleep=2)
        self.read_mode(VZ, T)
        self.stamp(6)
        GO = 40
        self.flag_wait(F_OPUB, self.ogate, VZ, T, sleep=0 if self.odelay else 1)
        if self.odelay:
            a("s_sleep %d" % self.odelay)
            self.flag_add(F_O, VZ, V1)
        self.stamp(7)
        self.poll_mixed([(G + 4 * i, SA, 128 * i, "t") for i in range(4)] + [(GO + 4 * i, OA, 1024 * i, "e") for i in range(4)], S_MB, T, cnt=12)
        self.stamp(8)
        MX, LS, WT, AC = 24, 25, 56, 28
        a("v_max3_f32 %s, %s, %s, %s" % (vr(MX), vr(G), vr(G + 4), vr(G + 8)))
        a("v_max_f32 %s, %s, %s" % (vr(MX), vr(MX), vr(G + 12)))
        for k in range(4):
            a("v_and_b32 %s, s%d, %s" % (vr(GO + k), S_EN, vr(GO + k)))
        self.xor_reduce("v_max_f32", [MX], [8, 16, 32], T)
        a("v_mov_b32 %s, 0x%x" % (vr(T + 4), LOG2E))
        a("v_mul_f32 %s, %s, %s" % (vr(T + 5), vr(MX), vr(T + 4)))
        for i in range(4):
            a("v_fma_f32 %s, %s, %s, -%s" % (vr(WT + i), vr(G + 4 * i), vr(T + 4), vr(T + 5)))
        for i in range(4):
            a("v_exp_f32 %s, %s" % (vr(WT + i), vr(WT + i)))
        for k in range(4, 16):
            a("v_and_b32 %s, s%d, %s" % (vr(GO + k), S_EN, vr(GO + k)))
        a("v_mul_f32 %s, %s, %s" % (vr(LS), vr(WT), vr(G + 1)))
        for k in range(4):
            a("v_mul_f32 %s, %s, %s" % (vr(AC + k), vr(WT), vr(GO + k)))
        for i in range(1, 4):
            a("v_fmac_f32 %s, %s, %s" % (vr(LS), vr(WT + i), vr(G + 4 * i + 1)))
            for k in range(4):
                a("v_fmac_f32 %s, %s, %s" % (vr(AC + k), vr(WT + i), vr(GO + 4 * i + k)))
        self.xor_reduce("v_add_f32", [LS, AC, AC + 1, AC + 2, AC + 3], [8, 16, 32], T)
        a("v_rcp_f32 %s, %s" % (vr(T), vr(LS)))
        a("v_mov_b32 v33, 1")
        a("v_mov_b32 v35, 1")
        a("v_fma_f32 %s, -%s, %s, 1.0" % (vr(T + 1), vr(T), vr(LS)))
        a("v_fmac_f32 %s, %s, %s" % (vr(T), vr(T + 1), vr(T)))
        for k in range(4):
            a("v_mul_f32 %s, %s, %s" % (vr(AC + k), vr(AC + k), vr(T)))
        a("v_cvt_pk_bf16_f32 v32, %s, %s" % (vr(AC), vr(AC + 1)))
        a("v_cvt_pk_bf16_f32 v34, %s, %s" % (vr(AC + 2), vr(AC + 3)))
        a("s_mov_b64 exec, 0xff")
        a("ds_write_b128 v6, v[32:35] offset:%d" % L_O)
        a("s_mov_b64 exec, -1")
        self.stamp(9)
        self.end(T)

    def role_c1(self):
        a = self.a
        VZ, V1 = 1, 2
        X = 4
        W = 40
        AF = 104
        SEL = 168
        ACC = 176
        T = 180
        a("L_C1:")
        a("v_mov_b32 v1, 0\nv_mov_b32 v2, 1")
        self.role = "C1"
        a("s_barrier")
        a("s_setprio 3")
        self.mlp_scalars()
        a("""
        v_lshlrev_b32 v42, 4, v0
        s_and_b32 s40, s27, 7
        s_lshl_b32 s41, s40, 7
        v_and_b32 v3, 31, v0
        v_lshl_add_u32 v43, v3, 2, s41
        """)
        a("""
        s_lshl_b32 s42, s50, 7
        s_and_b32 s43, s27, 7
        s_mul_i32 s43, s43, %d
        s_add_u32 s42, s42, s43
        v_lshrrev_b32 v6, 3, v0
        v_mul_u32_u24 v6, %d, v6
        v_and_b32 v7, 7, v0
        v_lshl_add_u32 v6, v7, 4, v6
        v_add_u32 v44, s42, v6
        """ % (64 * 3584, 8 * 3584))
        self.args_ready()
        a("""
        s_lshl_b32 s41, s26, 14
        s_lshl_b32 s42, s27, 9
        s_add_u32 s44, s41, s42
        s_add_u32 s44, s44, %d                ; own outbox of hidden-unit partials
        """ % HB)
        if self.prefill:
            a("""
            s_lshl_b32 s41, s26, 14
            s_lshr_b32 s42, s27, 3
            s_lshl_b32 s42, s42, 12
            s_add_u32 s41, s41, s42
            s_and_b32 s42, s27, 7
            s_lshl_b32 s42, s42, 9
            s_add_u32 s41, s41, s42
            s_add_u32 s41, s41, %d
            v_and_b32 v3, 31, v0
            v_lshl_add_u32 v40, v3, 4, s41
            v_lshl_add_u32 v41, v3, 4, s44
            s_lshl_b32 s41, s26, 11
            s_lshr_b32 s42, s27, 3
            s_lshl_b32 s42, s42, 9
            s_add_u32 s41, s41, s42
            s_add_u32 s41, s41, %d
            v_lshl_add_u32 v45, v3, 4, s41
            v_cmp_gt_u32 vcc, 32, v0
            s_nop 1
            v_cndmask_b32 v40, v41, v40, vcc
            global_load_dwordx4 v[188:191], v40, %s
            """ % (H1, ST, sp(S_WS)))
            if self.prefill >= 2:
                Ls = a.newlabel("I")
                a("""
                s_and_b32 s41, s27, 7
                s_cmp_lg_u32 s41, 0
                s_cbranch_scc1 %s
                global_load_dwordx4 v[188:191], v45, %s
                %s:
                """ % (Ls, sp(S_WS), Ls))
        W1R = 48
        Lb = a.newlabel("B")
        a("s_cmp_lg_u32 s%d, 0" % S_ISB)
        a("s_cbranch_scc1 %s" % Lb)
        self.stamp(1)
        self.end(T)
        a(Lb + ":")
        a("global_load_dwordx4 %s, v42, %s" % (vr(X, 4), sp(S_X)))
        a("global_load_dword %s, v43, %s" % (vr(X + 4), sp(S_X)))
        if self.w1gate:
            self.flag_wait(F_ST, 1, VZ, T)
        for i in range(8):
            a("global_load_dwordx4 %s, v44, %s %s" % (vr(W1R + 4 * i, 4), sp(S_W1), self.nt_w))
            if i < 7:
                a("v_add_u32 v44, 3584, v44")
        a("s_waitcnt vmcnt(8)")
        self.stamp(1)
        self.role = "C1B"
        self.selectors(SEL, T, both_parities=True)
        self.layernorm_rows(X, L_XH, VZ, rows=64)
        self.tags()
        a("v_lshlrev_b32 v3, 4, v0")
        a("v_add_u32 v38, %d, v3" % L_W2)
        XN = X + 8
        for i in range(8):
            for t in range(4):
                a("v_perm_b32 %s, %s, %s, %s" % (vr(AF + 4 * i + t), vr(XN + (i >> 1)), vr(XN + (i >> 1)), vr(SEL + 4 * (i & 1) + t)))
        a("""
        v_lshrrev_b32 v3, 4, v0
        v_lshlrev_b32 v3, 3, v3
        v_and_b32 v36, 7, v0
        v_add_u32 v3, v3, v36
        v_lshl_add_u32 v3, v3, 4, s44
        s_lshr_b32 s41, s27, 3
        s_lshl_b32 s41, s41, 12               ; cbl * 4096
        s_lshl_b32 s42, s26, 14
        s_add_u32 s41, s41, s42
        s_add_u32 s41, s41, %d
        v_lshl_add_u32 v4, v0, 4, s41
        """ % HB)
        a("s_waitcnt vmcnt(0)")
        self.stamp(2)
        for i in range(8):
            a("v_mfma_f32_16x16x32_bf16 %s, %s, %s, %s" % (vr(ACC, 4), vr(AF + 4 * i, 4), vr(W1R + 4 * i, 4), "0" if i == 0 else vr(ACC, 4)))
        a("s_nop 7")
        a("v_permlane32_swap_b32 %s, %s" % (vr(ACC), vr(ACC + 2)))
        a("v_permlane32_swap_b32 %s, %s" % (vr(ACC + 1), vr(ACC + 3)))
        a("s_nop 1")
        a("v_add_f32_dpp %s, %s, %s row_ror:8 row_mask:0xf bank_mask:0xf" % (vr(ACC), vr(ACC + 2), vr(ACC)))
        a("v_add_f32_dpp %s, %s, %s row_ror:8 row_mask:0xf bank_mask:0xf" % (vr(ACC + 1), vr(ACC + 3), vr(ACC + 1)))
        self.stamp(3)
        a("v_mov_b32 %s, s%d" % (vr(ACC + 2), S_T))
        a("v_mov_b32 %s, s%d" % (vr(ACC + 3), S_T + 1))
        a("v_add_u32 v5, %d, v3" % REGB)
        a("s_mov_b32 s42, 0x00ff00ff")
        a("s_mov_b32 s43, 0x00ff00ff")
        a("s_mov_b64 exec, s[42:43]")
        a("global_store_dwordx4 v3, %s, %s %s" % (vr(ACC, 4), sp(S_WS), self.st_nt))
        a("s_mov_b64 exec, -1")
        self.flag_add(F_HPUB, VZ, V1)
        if not self.lazyb:
            a("s_mov_b64 exec, s[42:43]")
            a("global_store_dwordx4 v5, %s, %s sc1" % (vr(ACC, 4), sp(S_WS)))
            a("s_mov_b64 exec, -1")
        G = 8
        self.flag_wait(F_Q, 1, VZ, T, sleep=1)
        self.read_mode(VZ, T)
        if self.lazyb:
            Lloc = a.newlabel("H")
            a("s_cmp_eq_u32 s%d, 0" % S_MODE)
            a("s_cbranch_scc1 %s" % Lloc)
            a("s_mov_b64 exec, s[42:43]")
            a("global_store_dwordx4 v5, %s, %s sc1" % (vr(ACC, 4), sp(S_WS)))
            a("s_mov_b64 exec, -1")
            a(Lloc + ":")
        self.poll([(G + 4 * i, 4, 1024 * i) for i in range(4)], S_MB)
        self.stamp(4)
        for e in range(2):
            a("v_add_f32 %s, %s, %s" % (vr(G + e), vr(G + e), vr(G + 4 + e)))
            a("v_add_f32 %s, %s, %s" % (vr(G + 8 + e), vr(G + 8 + e), vr(G + 12 + e)))
        for e in range(2):
            a("v_add_f32 %s, %s, %s" % (vr(G + e), vr(G + e), vr(G + 8 + e)))
        self.xor_reduce("v_add_f32", [G, G + 1], [32], T)
        a("v_max_f32 %s, 0, %s" % (vr(G), vr(G)))
        a("v_max_f32 %s, 0, %s" % (vr(G + 1), vr(G + 1)))
        a("v_cvt_pk_bf16_f32 %s, %s, %s" % (vr(G), vr(G), vr(G + 1)))
        a("""
        v_and_b32 v5, 7, v0
        v_lshlrev_b32 v5, 4, v5               ; 8 n * 2 B
        v_bfe_u32 v6, v0, 3, 1
        v_lshl_add_u32 v5, v6, 3, v5          ; 4 g' * 2 B
        v_bfe_u32 v6, v0, 4, 1
        v_lshl_add_u32 v5, v6, 2, v5          ; 2 hi * 2 B
        ds_write_b32 v5, %s offset:%d
        v_lshrrev_b32 v5, 3, v0
        v_lshlrev_b32 v5, 4, v5
        ds_read_b128 %s, v5 offset:%d
        """ % (vr(G), L_XH, vr(G + 4, 4), L_XH))
        a("""
        s_and_b32 s41, s27, 7
        s_lshr_b32 s42, s41, 1
        s_lshl_b32 s42, s42, 3
        s_and_b32 s41, s41, 1
        s_lshl_b32 s41, s41, 1
        s_add_u32 s41, s41, s42
        s_lshl_b32 s41, s41, 9
        s_lshl_b32 s42, s26, 14
        s_add_u32 s41, s41, s42
        s_lshr_b32 s42, s27, 3
        s_lshl_b32 s42, s42, 7
        s_add_u32 s41, s41, s42
        s_add_u32 s41, s41, %d
        v_bfe_u32 v3, v0, 4, 1
        v_lshlrev_b32 v3, 11, v3              ; 4 g' * 512
        v_bfe_u32 v5, v0, 2, 1
        v_lshl_add_u32 v3, v5, 9, v3          ; (n >> 2) * 512
        v_lshrrev_b32 v5, 5, v0
        v_lshl_add_u32 v3, v5, 6, v3          ; 4 hi * 16
        v_and_b32 v5, 3, v0
        v_lshl_add_u32 v3, v5, 4, v3
        v_add_u32 v3, s41, v3
        s_waitcnt lgkmcnt(0)
        """ % H3G)
        for i in range(8):
            for t in range(4):
                a("v_perm_b32 %s, %s, %s, %s" % (vr(AF + 4 * i + t), vr(G + 4 + (i >> 1)), vr(G + 4 + (i >> 1)), vr(SEL + 4 * (i & 1) + t)))
        self.flag_wait(F_W2, 1, VZ, T, sleep=1)
        for i in range(8):
            a("ds_read_b128 %s, v38 offset:%d" % (vr(W + 4 * i, 4), 1024 * i))
        for i in range(8):
            a("s_waitcnt lgkmcnt(%d)" % (7 - i))
            a("v_mfma_f32_16x16x32_bf16 %s, %s, %s, %s" % (vr(ACC, 4), vr(AF + 4 * i, 4), vr(W + 4 * i, 4), "0" if i == 0 else vr(ACC, 4)))
        a("s_nop 7")
        a("v_permlane32_swap_b32 %s, %s" % (vr(ACC), vr(ACC + 2)))
        a("v_permlane32_swap_b32 %s, %s" % (vr(ACC + 1), vr(ACC + 3)))
        a("s_nop 1")
        a("v_add_f32_dpp %s, %s, %s row_ror:8 row_mask:0xf bank_mask:0xf" % (vr(ACC), vr(ACC + 2), vr(ACC)))
        a("v_add_f32_dpp %s, %s, %s row_ror:8 row_mask:0xf bank_mask:0xf" % (vr(ACC + 1), vr(ACC + 3), vr(ACC + 1)))
        a("v_mov_b32 %s, s%d" % (vr(ACC + 2), S_T))
        a("v_mov_b32 %s, s%d" % (vr(ACC + 3), S_T + 1))
        a("s_mov_b32 s42, 0x00ff00ff")
        a("s_mov_b32 s43, 0x00ff00ff")
        a("s_mov_b64 exec, s[42:43]")
        self.store_mode(3, ACC)
        a("s_mov_b64 exec, -1")
        self.stamp(5)
        self.end(T)

    def role_c2(self):
        a = self.a
        VZ, V1 = 1, 2
        T = 100
        G = 8
        a("L_C2:")
        a("v_mov_b32 v1, 0\nv_mov_b32 v2, 1")
        self.role = "C2"
        a("s_setprio 3")
        a("v_lshlrev_b32 v3, 2, v0")
        a("ds_write_b32 v3, v1 offset:%d" % L_F)
        self.args_ready()
        a("s_barrier")
        self.mlp_scalars()
        XF, FA, OUTA = 80, 81, 82
        a("""
        s_max_u32 s45, s27, 28
        s_sub_u32 s45, s45, 28
        s_lshl_b32 s45, s45, 3
        s_add_u32 s45, s45, s26               ; column set c'
        s_lshr_b32 s41, s45, 3
        s_lshl_b32 s41, s41, 7                ; 128 (c' >> 3)
        s_and_b32 s42, s45, 3
        s_lshl_b32 s42, s42, 5                ; 32 (c' & 3)
        s_add_u32 s41, s41, s42
        s_bfe_u32 s42, s45, 0x10002
        s_lshl_b32 s42, s42, 2
        s_add_u32 s41, s41, s42
        v_and_b32 v3, 3, v0
        v_lshlrev_b32 v3, 3, v3
        v_bfe_u32 v83, v0, 2, 1
        v_lshl_add_u32 v3, v83, 1, v3
        v_add_u32 v3, s41, v3                 ; first column of the pair
        v_lshlrev_b32 %s, 1, v3               ; byte offset in x / out
        s_lshl_b32 s41, s45, 11
        s_add_u32 s41, s41, %d
        v_lshrrev_b32 v3, 3, v0
        v_lshlrev_b32 v3, 8, v3
        v_and_b32 v83, 7, v0
        v_lshl_add_u32 v3, v83, 4, v3
        v_add_u32 %s, s41, v3
        """ % (vr(OUTA), H3B, vr(FA)))
        Lnf = a.newlabel("NF")
        a("s_cmp_lt_u32 s27, 28")
        a("s_cbranch_scc1 %s" % Lnf)
        a("global_load_dword %s, %s, %s" % (vr(XF), vr(OUTA), sp(S_X)))
        a("global_load_dwordx4 v[84:87], %s, %s sc1" % (vr(FA), sp(S_WS)))
        a("global_load_dwordx4 v[88:91], %s, %s offset:128 sc1" % (vr(FA), sp(S_WS)))
        a(Lnf + ":")
        a("""
        s_lshl_b32 s41, s26, 14
        s_add_u32 s41, s41, %d
        v_lshl_add_u32 v4, v0, 4, s41
        v_add_u32 v5, 0x1000, v4
        v_add_u32 v6, 0x2000, v4
        v_add_u32 v7, 0x3000, v4
        """ % H1)
        qloads = [(G + 16 * hd + 4 * rb, 4 + rb, 1024 * hd) for hd in range(4) for rb in range(4)]
        self.tags()
        self.stamp(1)
        self.flag_wait(F_QPUB, 1, VZ, T, sleep=1)
        self.stamp(2)
        Lslow, Lgot = a.newlabel("Q"), a.newlabel("Q")
        if not self.force_global:
            self.poll(qloads, S_WS, tag=S_T1X, limit=self.atimeout, on_timeout=Lslow, cnt=12, plain_first=bool(self.plain0 & 1))
            a("s_branch %s" % Lgot)
        a(Lslow + ":")
        a("s_waitcnt vmcnt(0)")
        a("s_add_u32 s46, s%d, %d" % (S_WS, REGB))
        a("s_addc_u32 s47, s%d, 0" % (S_WS + 1))
        if self.lazyb:
            a("""
            s_lshl_b32 s41, s26, 14
            s_lshr_b32 s42, s27, 3
            s_lshl_b32 s42, s42, 12
            s_add_u32 s41, s41, s42
            s_and_b32 s42, s27, 7
            s_lshl_b32 s42, s42, 9
            s_add_u32 s41, s41, s42
            s_add_u32 s41, s41, %d
            v_and_b32 v76, 31, v0
            v_lshl_add_u32 v76, v76, 4, s41
            global_load_dwordx4 v[72:75], v76, %s sc1
            s_waitcnt vmcnt(0)
            global_store_dwordx4 v76, v[72:75], s[46:47] sc1
            """ % (H1, sp(S_WS)))
        L = a.newlabel("P")
        LA = a.newlabel("P")
        a("s_mov_b32 s%d, 0" % S_CNT)
        a(L + ":")
        for (vd, va, off) in qloads:
            a("global_load_dwordx4 %s, %s, s[46:47] offset:%d sc1" % (vr(vd, 4), vr(va), off))
        a("s_add_u32 s%d, s%d, 1" % (S_CNT, S_CNT))
        a("s_cmp_gt_u32 s%d, %d" % (S_CNT, POLL_MAX))
        a("s_cbranch_scc1 L_end")
        a("s_waitcnt vmcnt(0)")
        a("v_mov_b32 %s, 0" % vr(T))
        a("v_mov_b32 %s, 0" % vr(T + 1))
        for (vd, va, off) in qloads:
            a("v_xor_b32 %s, s%d, %s" % (vr(T + 2), S_T, vr(vd + 2)))
            a("v_xor_b32 %s, s%d, %s" % (vr(T + 3), S_T + 1, vr(vd + 3)))
            a("v_and_b32 %s, 0xfffffff0, %s" % (vr(T + 3), vr(T + 3)))
            a("v_or3_b32 %s, %s, %s, %s" % (vr(T), vr(T), vr(T + 2), vr(T + 3)))
            a("v_xor_b32 %s, s%d, %s" % (vr(T + 3), S_T1X + 1, vr(vd + 3)))
            a("v_or_b32 %s, %s, %s" % (vr(T + 1), vr(T + 1), vr(T + 3)))
        a("v_cmp_ne_u32 vcc, 0, %s" % vr(T))
        if self.lazyb and not self.force_global:
            Lb_ok = a.newlabel("Q")
            a("s_cbranch_vccz %s" % Lb_ok)
            for (vd, va, off) in qloads:
                a("global_load_dwordx4 %s, %s, %s offset:%d sc1" % (vr(vd, 4), vr(va), sp(S_WS), off))
            for i, (vd, va, off) in enumerate(qloads):
                a("s_waitcnt vmcnt(%d)" % (len(qloads) - 1 - i))
                a("v_cmp_ne_u64 %s, %s, %s" % ("vcc" if i == 0 else sp(S_TMP), vr(vd + 2, 2), sp(S_T1X)))
                if i:
                    a("s_or_b64 vcc, vcc, %s" % sp(S_TMP))
            a("s_cbranch_vccnz %s" % L)
            a("s_branch %s" % Lgot)
            a(Lb_ok + ":")
        else:
            a("s_cbranch_vccnz %s" % L)
        a("v_cmp_ne_u32 vcc, 0, %s" % vr(T + 1))
        a("s_cbranch_vccz %s" % Lgot)
        self.flag_add(F_REM, VZ, V1)
        a(Lgot + ":")
        self.stamp(3)
        for hd in range(4):
            b = G + 16 * hd
            for e in range(2):
                a("v_add_f32 %s, %s, %s" % (vr(b + e), vr(b + e), vr(b + 4 + e)))
                a("v_add_f32 %s, %s, %s" % (vr(b + 8 + e), vr(b + 8 + e), vr(b + 12 + e)))
            for e in range(2):
                a("v_add_f32 %s, %s, %s" % (vr(b + e), vr(b + e), vr(b + 8 + e)))
            a("v_cvt_pk_bf16_f32 %s, %s, %s" % (vr(b), vr(b), vr(b + 1)))
        a("""
        v_lshrrev_b32 v72, 5, v0              ; cb_local
        v_lshlrev_b32 v72, 7, v72             ; 64 columns * 2 B
        v_and_b32 v73, 7, v0
        v_lshl_add_u32 v72, v73, 4, v72       ; 8 n * 2 B
        v_bfe_u32 v73, v0, 3, 1
        v_lshl_add_u32 v72, v73, 3, v72       ; 4 g' * 2 B
        v_bfe_u32 v73, v0, 4, 1
        v_lshl_add_u32 v72, v73, 2, v72       ; 2 s * 2 B
        """)
        for hd in range(4):
            a("ds_write_b32 v72, %s offset:%d" % (vr(G + 16 * hd), L_Q + 320 * hd))
        self.flag_add(F_Q, VZ, V1)
        self.stamp(4)
        SA, GA, BA = 4, 5, 6
        a("""
        s_lshl_b32 s41, s26, 15
        s_lshl_b32 s42, s27, 10
        s_add_u32 s41, s41, s42
        s_add_u32 s41, s41, %d
        v_lshl_add_u32 %s, v0, 4, s41
        s_lshl_b32 s41, s27, 11
        s_lshl_b32 s42, s26, 8
        s_add_u32 s41, s41, s42
        s_add_u32 s41, s41, %d
        v_lshl_add_u32 %s, v0, 4, s41
        """ % (H3S, vr(SA), H3B, vr(BA)))
        self.read_mode(VZ, T)
        if self.sinit:
            for i in range(4):
                a("v_mov_b32 %s, 0" % vr(56 + i))
            for i in range(4):
                a("global_store_dwordx4 %s, v[56:59], %s offset:%d" % (vr(SA), sp(S_WS), 1024 * i))
            a("s_waitcnt vmcnt(0)")
            self.flag_add(F_INIT, VZ, V1)
        GS = 40
        GG, GAD, GW = 24, 44, 48
        a("v_mov_b32 %s, 0" % vr(GS))
        a("v_mov_b32 %s, 0" % vr(GS + 1))
        Lng = a.newlabel("NG")
        a("s_cmp_eq_u32 s49, 0")
        a("s_cbranch_scc1 %s" % Lng)
        a("""
        s_lshl_b32 s41, s26, 14
        s_lshl_b32 s42, s27, 9
        s_add_u32 s41, s41, s42
        s_add_u32 s41, s41, %d
        s_lshr_b32 s42, s49, 3
        v_bfe_u32 v52, v0, 3, 2
        v_cmp_gt_u32 vcc, s42, v52
        v_and_b32 v53, 31, v0
        v_and_b32 v54, 7, v0
        v_cndmask_b32 v53, v54, v53, vcc
        v_lshl_add_u32 %s, v53, 4, s41
        v_mov_b32 v54, 1.0
        v_cndmask_b32 %s, v1, v54, vcc
        """ % (H3G, vr(GAD), vr(GW)))
        def fill_s():
            a("global_load_dwordx4 %s, %s, %s sc1" % (vr(60, 4), vr(SA), sp(S_MB)))
        if self.odelay:
            self.flag_wait(F_O, 1, VZ, T, sleep=1)
        elif self.spf == 1 or not self.ggate:
            self.flag_wait(F_OPUB, 4, VZ, T, sleep=1)
        if self.spf == 1:
            fill_s()
        if self.ggate == 1:
            self.flag_wait(F_WO, 1, VZ, T, sleep=1)
        if self.spf == 4:
            fill_s()
        self.poll([(GG, GAD, 0)], S_MB, cnt=15, plain_first=bool(self.plain0 & 4))
        if self.spf == 3:
            for i in range(4):
                a("global_load_dwordx4 %s, %s, %s offset:%d sc1" % (vr(60 + 4 * i, 4), vr(SA), sp(S_MB), 1024 * i))
        for e in range(2):
            a("v_mul_f32 %s, %s, %s" % (vr(GS + e), vr(GW), vr(GG + e)))
        self.xor_reduce("v_add_f32", [GS, GS + 1], [8, 16], T)
        a(Lng + ":")
        a("v_bfe_u32 v3, v0, 2, 1")
        a("v_bfe_u32 v7, v0, 3, 1")
        a("v_cmp_eq_u32 s[42:43], 1, v3")
        a("v_cmp_eq_u32 s[58:59], 1, v7")
        self.stamp(5)
        if self.sgate:
            self.flag_wait(F_SPUB, 4, VZ, T)
        else:
            L = a.newlabel("O")
            a("s_mov_b32 s%d, 0" % S_CNT)
            a(L + ":")
            a("ds_read_b32 %s, %s offset:%d" % (vr(T), vr(VZ), L_O + 4))
            a("s_add_u32 s%d, s%d, 1" % (S_CNT, S_CNT))
            a("s_cmp_gt_u32 s%d, %d" % (S_CNT, SPIN_MAX))
            a("s_cbranch_scc1 L_end")
            a("s_waitcnt lgkmcnt(0)")
            a("v_readfirstlane_b32 s%d, %s" % (S_TMP, vr(T)))
            a("s_cmp_lg_u32 s%d, 1" % S_TMP)
            a("s_cbranch_scc1 %s" % L)
        if self.sdelay:
            a("s_sleep %d" % self.sdelay)
        self.stamp(6)
        self.poll_mixed([(G, SA, 0, "e")], S_MB, T, cnt=13)
        self.stamp(7)
        for k in range(4):
            a("v_and_b32 %s, s%d, %s" % (vr(G + k), S_EN, vr(G + k)))
        self.xor_reduce("v_add_f32", [G, G + 1, G + 2, G + 3], ["r4", 8, 16, 32], T)
        a("v_cndmask_b32 %s, %s, %s, s[42:43]" % (vr(G), vr(G), vr(G + 2)))
        a("v_cndmask_b32 %s, %s, %s, s[42:43]" % (vr(G + 1), vr(G + 1), vr(G + 3)))
        a("v_mov_b32 %s, s%d" % (vr(G + 2), S_T))
        a("v_mov_b32 %s, s%d" % (vr(G + 3), S_T + 1))
        a("v_cndmask_b32 %s, %s, %s, s[58:59]" % (vr(G), vr(G), vr(GS)))
        a("v_cndmask_b32 %s, %s, %s, s[58:59]" % (vr(G + 1), vr(G + 1), vr(GS + 1)))
        a("s_mov_b64 exec, 0xffff")
        a("global_store_dwordx4 %s, %s, %s sc1" % (vr(BA), vr(G, 4), sp(S_WS)))
        a("s_mov_b64 exec, -1")
        self.stamp(8)
        Lf = a.newlabel("F")
        a("s_cmp_ge_u32 s27, 28")
        a("s_cbranch_scc1 %s" % Lf)
        self.end(T)
        a(Lf + ":")
        self.role = "C2F"
        G = 12
        if self.fstag:
            self.poll_staggered([(G, FA, 0), (G + 4, FA, 128)], [24, 28], [32, 36], S_WS, self.fstag)
            G = 32
        else:
            self.poll([(G, FA, 0), (G + 4, FA, 128)], S_WS, cnt=14)
        self.stamp(9)
        self.xor_reduce("v_add_f32", [G, G + 1, G + 4, G + 5], [8, 16, 32], T)
        a("v_cvt_pk_bf16_f32 %s, %s, %s" % (vr(G), vr(G), vr(G + 1)))
        a("v_cvt_pk_bf16_f32 %s, %s, %s" % (vr(G + 4), vr(G + 4), vr(G + 5)))
        a("v_and_b32 %s, 0xffff0000, %s" % (vr(G + 1), vr(G)))
        a("v_lshlrev_b32 %s, 16, %s" % (vr(G), vr(G)))
        a("v_and_b32 %s, 0xffff0000, %s" % (vr(G + 5), vr(G + 4)))
        a("v_lshlrev_b32 %s, 16, %s" % (vr(G + 4), vr(G + 4)))
        for e in range(2):
            a("v_mul_f32 %s, 0x%x, %s" % (vr(G + 8 + e), LOG2E ^ 0x80000000, vr(G + 4 + e)))
        for e in range(2):
            a("v_exp_f32 %s, %s" % (vr(G + 8 + e), vr(G + 8 + e)))
        a("s_nop 0")
        for e in range(2):
            a("v_add_f32 %s, 1.0, %s" % (vr(G + 8 + e), vr(G + 8 + e)))
        for e in range(2):
            a("v_rcp_f32 %s, %s" % (vr(G + 8 + e), vr(G + 8 + e)))
        a("s_nop 0")
        for e in range(2):
            a("v_mul_f32 %s, %s, %s" % (vr(G + 4 + e), vr(G + 4 + e), vr(G + 8 + e)))
        a("v_cvt_pk_bf16_f32 %s, %s, %s" % (vr(G + 4), vr(G + 4), vr(G + 5)))
        a("v_and_b32 %s, 0xffff0000, %s" % (vr(G + 5), vr(G + 4)))
        a("v_lshlrev_b32 %s, 16, %s" % (vr(G + 4), vr(G + 4)))
        for e in range(2):
            a("v_mul_f32 %s, %s, %s" % (vr(G + e), vr(G + e), vr(G + 4 + e)))
        a("v_cvt_pk_bf16_f32 %s, %s, %s" % (vr(G), vr(G), vr(G + 1)))
        a("v_and_b32 %s, 0xffff0000, %s" % (vr(G + 1), vr(G)))
        a("v_lshlrev_b32 %s, 16, %s" % (vr(G), vr(G)))
        a("v_and_b32 %s, 0xffff0000, %s" % (vr(G + 5), vr(XF)))
        a("v_lshlrev_b32 %s, 16, %s" % (vr(G + 4), vr(XF)))
        for e in range(2):
            a("v_add_f32 %s, %s, %s" % (vr(G + e), vr(G + e), vr(G + 4 + e)))
        a("v_cvt_pk_bf16_f32 %s, %s, %s" % (vr(G), vr(G), vr(G + 1)))
        a("s_mov_b64 exec, 0xff")
        a("global_store_dword %s, %s, %s" % (vr(OUTA), vr(G), sp(S_OUT)))
        Le = a.newlabel("E")
        a("s_cmp_lg_u32 s45, 0")
        a("s_cbranch_scc1 %s" % Le)
        a("s_mov_b64 exec, 1")
        a("v_mov_b32 %s, s%d" % (vr(G + 2), S_T))
        a("v_mov_b32 %s, s%d" % (vr(G + 3), S_T + 1))
        a("global_store_dwordx2 v1, %s, %s offset:%d sc1" % (vr(G + 2, 2), sp(S_WS), EPOCH))
        a(Le + ":")
        a("s_mov_b64 exec, -1")
        self.stamp(10)
        self.end(T)

    def build(self):
        self.prologue()
        self.role_c0()
        self.role_c1()
        self.role_c2()
        self.role_a()
        self.role_l()
        self.a("L_end:\ns_endpgm\nL_code_end:")
        return wrap(self.a.text(), 256, 512, LDS_BYTES, 192, sgpr=96)


def generate(**kw):
    return Gen(**kw).build()


if __name__ == "__main__":
    out = sys.argv[1] if len(sys.argv) > 1 else "cdna_kernels/%s.s" % NAME
    kw = {}
    for arg in sys.argv[2:]:
        k, v = arg.split("=")
        kw[k] = {"True": True, "False": False}.get(v, v)
    open(out, "w").write(generate(**kw))
    print("wrote", out)
```

```python
import sys
from asmgen import Asm, wrap, NAME

REGB = 0x400000
EPOCH = 0x0
H1 = 0x10000
ST = 0x50000
H3B = 0x70000
HB = 0x80000
H2 = 0x100000
H3S = 0x200000
H3G = 0x300000
STAMP_OFF = 256 << 20

L_Q = 0x0000
L_P = 0x0800
L_MX = 0x1800
L_O = 0x1AC0
L_XQ = 0x1880
L_XH = 0x1980
L_F = 0x1A80
L_K = 0x2000
L_V = 0xA000
L_WO = 0x12000
L_W2 = 0x16000
L_W1 = 0x1A000
F_V, F_INIT, F_Q, F_REM, F_K, F_MAX, F_P, F_ST, F_QPUB, F_OPUB, F_O, F_W1, F_SPUB, F_WO, F_W2, F_HPUB = [L_F + 4 * i for i in range(16)]
LDS_BYTES = 0x1E000

S_X, S_K, S_V, S_WQ, S_WO, S_W1, S_W2, S_OUT, S_WS = 4, 6, 8, 10, 12, 16, 18, 20, 24
S_G, S_C, S_W = 26, 27, 28
S_T = 30
S_XCC = 32
S_MODE = 33
S_MB = 34
S_T1X = 36
S_ISB = 38
S_CNT = 39
S_TMP = 40
S_E = 52
S_EM, S_EN = 56, 57
S_STAMP = 60

LOG2E = 0x3fb8aa3b
SCALE = 0x3db504f3
A_TIMEOUT = 8
SPIN_MAX = 1 << 20
POLL_MAX = 1 << 16


def sp(n):
    return "s[%d:%d]" % (n, n + 1)


def vr(n, k=1):
    return "v%d" % n if k == 1 else "v[%d:%d]" % (n, n + k - 1)


class Gen:
    def __init__(self, stamps=False, nt_kv="nt", nt_w="nt", force_global=False, mimic=True, window=16, nb_lo=32, nb_hi=24, order="k2v|o", code_pf=1, dbg=0, ileave=1, hold=0, init=2, w2=40, chk=4, init_late=0, ogate=4, sdelay=0, trace=0, sinit=0, sgate=1, spf=1, ofill=0, scramble=0, qack=1, qsleep=0, ggate=0, fstag=0, kgate=1, w1gate=0, odelay=0, prefill=0, plain0=0, atimeout=A_TIMEOUT, lprio=2, aprio=1, st_nt="", lazyb=1, wb=0, wbc=0):
        self.a = Asm()
        self.window = int(window)
        self.nb_lo = int(nb_lo)
        self.nb_hi = int(nb_hi)
        self.order = order
        self.code_pf = int(code_pf)
        self.dbg = int(dbg)
        self.role = None
        if self.dbg:
            self.stamps = stamps = True
        self.ileave = int(ileave)
        self.hold = int(hold)
        self.init = int(init)
        self.w2 = int(w2)
        self.chk = int(chk)
        self.init_late = int(init_late)
        self.ogate = int(ogate)
        self.sdelay = int(sdelay)
        self.trace = int(trace)
        self.sinit = int(sinit)
        self.sgate = int(sgate)
        self.spf = int(spf)
        self.ofill = int(ofill)
        self.scramble = int(scramble)
        self.qack = int(qack)
        self.qsleep = int(qsleep)
        self.ggate = int(ggate)
        self.fstag = int(fstag)
        self.kgate = int(kgate)
        self.w1gate = int(w1gate)
        self.odelay = int(odelay)
        self.prefill = int(prefill)
        self.plain0 = int(plain0)
        self.atimeout = int(atimeout)
        self.lprio = int(lprio)
        self.st_nt = st_nt
        self.lazyb = int(lazyb)
        self.wb = int(wb)
        self.wbc = int(wbc)
        self.aprio = int(aprio)
        assert 4 * self.nb_lo + 4 * self.nb_hi == 224 and self.nb_lo % 8 == 0 and self.nb_hi % 8 == 0
        self.stamps = stamps
        self.nt_kv = nt_kv
        self.nt_w = nt_w
        self.force_global = force_global
        self.mimic = mimic
        self.nstamp = 0

    def stamp(self, idx):
        if self.stamps:
            self.a("s_memrealtime %s" % sp(S_STAMP + 2 * idx))

    def flag_add(self, flag, vz, vone):
        a = self.a
        a("s_mov_b64 exec, 1")
        a("ds_add_u32 %s, %s offset:%d" % (vr(vz), vr(vone), flag))
        a("s_mov_b64 exec, -1")

    def flag_set(self, flag, val, vz, vt):
        a = self.a
        a("v_mov_b32 %s, %d" % (vr(vt), val))
        a("s_mov_b64 exec, 1")
        a("ds_write_b32 %s, %s offset:%d" % (vr(vz), vr(vt), flag))
        a("s_mov_b64 exec, -1")

    def flag_wait(self, flag, n, vz, vt, sleep=0):
        a = self.a
        L, Lgo = a.newlabel("W"), a.newlabel("W")
        a("s_mov_b32 s%d, 0" % S_CNT)
        a(L + ":")
        a("ds_read_b32 %s, %s offset:%d" % (vr(vt), vr(vz), flag))
        a("s_waitcnt lgkmcnt(0)")
        a("v_readfirstlane_b32 s%d, %s" % (S_TMP, vr(vt)))
        a("s_cmp_ge_u32 s%d, %d" % (S_TMP, n))
        a("s_cbranch_scc1 %s" % Lgo)
        if sleep:
            a("s_sleep %d" % sleep)
        a("s_add_u32 s%d, s%d, 1" % (S_CNT, S_CNT))
        a("s_cmp_lt_u32 s%d, %d" % (S_CNT, SPIN_MAX))
        a("s_cbranch_scc1 %s" % L)
        a("s_branch L_end")
        a(Lgo + ":")

    def store_mode(self, vaddr, vdata, n=4):
        a = self.a
        L1, L2 = a.newlabel("S"), a.newlabel("S")
        op = "global_store_dwordx%d" % n
        a("s_cmp_lg_u32 s%d, 0" % S_MODE)
        a("s_cbranch_scc1 %s" % L1)
        a("%s %s, %s, %s %s" % (op, vr(vaddr), vr(vdata, n), sp(S_MB), self.st_nt))
        a("s_branch %s" % L2)
        a(L1 + ":")
        a("%s %s, %s, %s sc1" % (op, vr(vaddr), vr(vdata, n), sp(S_MB)))
        a(L2 + ":")

    def poll_traced(self, loads, base, first_stamp, npass=4):
        a = self.a
        Lok = a.newlabel("PT")
        n = len(loads)
        for k in range(npass):
            a("s_memrealtime %s" % sp(S_STAMP + 2 * (first_stamp + k)))
            for (vd, va, off) in loads:
                a("global_load_dwordx4 %s, %s, %s offset:%d sc1" % (vr(vd, 4), vr(va), sp(base), off))
            for i, (vd, va, off) in enumerate(loads):
                a("s_waitcnt vmcnt(%d)" % (n - 1 - i))
                dst = "vcc" if i == 0 else sp(S_TMP)
                a("v_cmp_ne_u64 %s, %s, %s" % (dst, vr(vd + 2, 2), sp(S_T)))
                if i:
                    a("s_or_b64 vcc, vcc, %s" % sp(S_TMP))
            a("s_cbranch_vccz %s" % Lok)
        self.poll(loads, base)
        a(Lok + ":")

    def poll(self, loads, base, tag=S_T, limit=POLL_MAX, on_timeout="L_end", cnt=None, plain_first=False):
        a = self.a
        L, Lok = a.newlabel("P"), a.newlabel("P")
        n = len(loads)

        def one_pass(flag):
            for (vd, va, off) in loads:
                a("global_load_dwordx4 %s, %s, %s offset:%d %s" % (vr(vd, 4), vr(va), sp(base), off, flag))
            for i, (vd, va, off) in enumerate(loads):
                a("s_waitcnt vmcnt(%d)" % (n - 1 - i))
                dst = "vcc" if i == 0 else sp(S_TMP)
                a("v_cmp_ne_u64 %s, %s, %s" % (dst, vr(vd + 2, 2), sp(tag)))
                if i:
                    a("s_or_b64 vcc, vcc, %s" % sp(S_TMP))
            a("s_cbranch_vccz %s" % Lok)
        a("s_mov_b32 s%d, 0" % S_CNT)
        if plain_first:
            one_pass("")
        a(L + ":")
        one_pass("sc1")
        a("s_add_u32 s%d, s%d, 1" % (S_CNT, S_CNT))
        a("s_cmp_le_u32 s%d, %d" % (S_CNT, limit))
        a("s_cbranch_scc1 %s" % L)
        a("s_branch %s" % on_timeout)
        a(Lok + ":")
        if cnt is not None and self.stamps:
            a("s_mov_b32 s%d, s%d" % (S_STAMP + 2 * cnt, S_CNT))

    def poll_mixed(self, loads, base, tmp, cnt=None):
        a = self.a
        L, Lok = a.newlabel("P"), a.newlabel("P")
        n = len(loads)
        a("s_mov_b32 s%d, 0" % S_CNT)
        a(L + ":")
        for (vd, va, off, kind) in loads:
            a("global_load_dwordx4 %s, %s, %s offset:%d sc1" % (vr(vd, 4), vr(va), sp(base), off))
        first_t, first_e = True, True
        for i, (vd, va, off, kind) in enumerate(loads):
            a("s_waitcnt vmcnt(%d)" % (n - 1 - i))
            if kind == "t":
                a("v_cmp_ne_u64 %s, %s, %s" % (sp(46) if first_t else sp(S_TMP), vr(vd + 2, 2), sp(S_T)))
                if not first_t:
                    a("s_or_b64 s[46:47], s[46:47], %s" % sp(S_TMP))
                first_t = False
            else:
                for k in range(4):
                    a("v_xor_b32 %s, s%d, %s" % (vr(tmp + 1 + k), S_E + k, vr(vd + k)))
                if first_e:
                    a("v_or3_b32 %s, %s, %s, %s" % (vr(tmp), vr(tmp + 1), vr(tmp + 2), vr(tmp + 3)))
                    a("v_or_b32 %s, %s, %s" % (vr(tmp), vr(tmp), vr(tmp + 4)))
                else:
                    a("v_or3_b32 %s, %s, %s, %s" % (vr(tmp), vr(tmp), vr(tmp + 1), vr(tmp + 2)))
                    a("v_or3_b32 %s, %s, %s, %s" % (vr(tmp), vr(tmp), vr(tmp + 3), vr(tmp + 4)))
                first_e = False
        a("v_and_b32 %s, s%d, %s" % (vr(tmp), S_EM, vr(tmp)))
        a("v_cmp_ne_u32 vcc, 0, %s" % vr(tmp))
        if not first_t:
            a("s_or_b64 vcc, vcc, s[46:47]")
        a("s_cbranch_vccz %s" % Lok)
        a("s_add_u32 s%d, s%d, 1" % (S_CNT, S_CNT))
        a("s_cmp_le_u32 s%d, %d" % (S_CNT, POLL_MAX))
        a("s_cbranch_scc1 %s" % L)
        a("s_branch L_end")
        a(Lok + ":")
        if cnt is not None and self.stamps:
            a("s_mov_b32 s%d, s%d" % (S_STAMP + 2 * cnt, S_CNT))

    def poll_staggered(self, loads, alt, dst, base, sleep):
        a = self.a
        n = len(loads)
        L, LA, LB = a.newlabel("PS"), a.newlabel("PS"), a.newlabel("PS")

        def issue(regs):
            for (vd, (_, va, off)) in zip(regs, loads):
                a("global_load_dwordx4 %s, %s, %s offset:%d sc1" % (vr(vd, 4), vr(va), sp(base), off))

        def check(regs, ok):
            for i, vd in enumerate(regs):
                a("s_waitcnt vmcnt(%d)" % (2 * n - 1 - i))
                dst = "vcc" if i == 0 else sp(S_TMP)
                a("v_cmp_ne_u64 %s, %s, %s" % (dst, vr(vd + 2, 2), sp(S_T)))
                if i:
                    a("s_or_b64 vcc, vcc, %s" % sp(S_TMP))
            a("s_cbranch_vccz %s" % ok)
        ra = [vd for (vd, _, _) in loads]
        a("s_mov_b32 s%d, 0" % S_CNT)
        issue(ra)
        a("s_sleep %d" % sleep)
        a(L + ":")
        issue(alt)
        check(ra, LA)
        issue(ra)
        check(alt, LB)
        a("s_add_u32 s%d, s%d, 1" % (S_CNT, S_CNT))
        a("s_cmp_le_u32 s%d, %d" % (S_CNT, POLL_MAX))
        a("s_cbranch_scc1 %s" % L)
        a("s_branch L_end")
        Ld = a.newlabel("PS")
        a(LB + ":")
        for (x, y) in zip(dst, alt):
            for k in range(2):
                a("v_mov_b32 %s, %s" % (vr(x + k), vr(y + k)))
        a("s_branch %s" % Ld)
        a(LA + ":")
        for (x, y) in zip(dst, ra):
            for k in range(2):
                a("v_mov_b32 %s, %s" % (vr(x + k), vr(y + k)))
        a(Ld + ":")

    def xor_reduce(self, op, regs, steps, tmp):
        a = self.a
        first_dpp = True
        for st in steps:
            if st in (16, 32):
                ins = "v_permlane16_swap_b32" if st == 16 else "v_permlane32_swap_b32"
                for i, r in enumerate(regs):
                    a("v_mov_b32 %s, %s" % (vr(tmp + i), vr(r)))
                if len(regs) < 3:
                    a("s_nop %d" % (2 - len(regs)))
                for i, r in enumerate(regs):
                    a("%s %s, %s" % (ins, vr(r), vr(tmp + i)))
                for i, r in enumerate(regs):
                    a("%s %s, %s, %s" % (op, vr(r), vr(r), vr(tmp + i)))
            else:
                ctl = {1: "quad_perm:[1,0,3,2]", 2: "quad_perm:[2,3,0,1]", "hm": "row_half_mirror", "m": "row_mirror", 8: "row_ror:8", "r4": "row_ror:4"}[st]
                a("s_nop 1" if first_dpp or len(regs) < 3 else "s_nop 0")
                first_dpp = False
                for r in regs:
                    a("%s_dpp %s, %s, %s %s row_mask:0xf bank_mask:0xf" % (op, vr(r), vr(r), vr(r), ctl))

    def read_mode(self, vz, vt):
        a = self.a
        a("ds_read_b32 %s, %s offset:%d" % (vr(vt), vr(vz), F_REM))
        a("s_waitcnt lgkmcnt(0)")
        a("v_readfirstlane_b32 s%d, %s" % (S_MODE, vr(vt)))
        if self.force_global:
            a("s_mov_b32 s%d, 1" % S_MODE)
        a("s_min_u32 s%d, s%d, 1" % (S_MODE, S_MODE))
        a("s_mul_i32 s%d, s%d, %d" % (S_TMP, S_MODE, REGB))
        a("s_add_u32 s%d, s%d, s%d" % (S_MB, S_WS, S_TMP))
        a("s_addc_u32 s%d, s%d, 0" % (S_MB + 1, S_WS + 1))

    def tags(self):
        a = self.a
        a("s_getreg_b32 s32, hwreg(HW_REG_XCC_ID, 0, 4)")
        a("s_waitcnt lgkmcnt(0)")
        a("s_add_u32 s%d, s%d, 0x9E3779B9" % (S_T, S_T))
        a("s_add_u32 s%d, s%d, 0x7F4A7C00" % (S_T + 1, S_T + 1))
        a("s_and_b32 s%d, s%d, 0xFFFFFFE0" % (S_T + 1, S_T + 1))
        a("s_or_b32 s%d, s%d, 0x10" % (S_T + 1, S_T + 1))
        a("s_mov_b32 s%d, s%d" % (S_T1X, S_T))
        a("s_or_b32 s%d, s%d, s%d" % (S_T1X + 1, S_T + 1, S_XCC))
        a("s_and_b32 s%d, s%d, 0x3ff" % (S_E, S_T))
        a("s_bfe_u32 s%d, s%d, 0xA000A" % (S_E + 1, S_T))
        a("s_bfe_u32 s%d, s%d, 0xA0014" % (S_E + 2, S_T))
        a("s_bfe_u32 s%d, s%d, 0xA0008" % (S_E + 3, S_T + 1))
        a("s_movk_i32 s%d, 0x3ff" % S_EM)
        a("s_mov_b32 s%d, 0xfffffc00" % S_EN)

    DBG_MAP = {"A": {0: [(0, True), (1, False)], 1: [(12, False)], 3: [(5, False)], 6: [(7, False)], 7: [(9, False)]},
               "C0": {2: [(14, False)], 4: [(15, False)], 5: [(3, False)], 9: [(8, False)]},
               "C1B": {5: [(13, False)]},
               "C2": {4: [(4, False)], 8: [(10, False)]},
               "C2F": {4: [(4, False)], 8: [(10, False)], 10: [(11, False)]},
               "L": {1: [(2, False)], 3: [(6, False)]}}

    def dump_stamps(self, vt):
        if not self.stamps:
            return
        a = self.a
        if self.dbg:
            a("s_waitcnt lgkmcnt(0)")
            a("s_mov_b64 exec, 1")
            a("v_mov_b32 %s, 0" % vr(vt))
            for st, outs in self.DBG_MAP.get(self.role, {}).items():
                for slot, inv in outs:
                    a("v_mov_b32 %s, s%d" % (vr(vt + 1), S_STAMP + 2 * st))
                    if inv:
                        a("v_not_b32 %s, %s" % (vr(vt + 1), vr(vt + 1)))
                    a("global_atomic_umax %s, %s, s[22:23] offset:%d" % (vr(vt), vr(vt + 1), 4 * slot))
            return
        a("s_waitcnt lgkmcnt(0)")
        a("s_lshl_b32 s%d, s2, 3" % S_TMP)
        a("s_add_u32 s%d, s%d, s%d" % (S_TMP, S_TMP, S_W))
        a("s_lshl_b32 s%d, s%d, 6" % (S_TMP, S_TMP))
        a("s_add_u32 s%d, s%d, %d" % (S_TMP, S_TMP, STAMP_OFF))
        a("s_mov_b64 exec, 1")
        a("v_mov_b32 %s, s%d" % (vr(vt), S_TMP))
        for i in range(16):
            a("v_mov_b32 %s, s%d" % (vr(vt + 1), S_STAMP + 2 * i))
            a("global_store_dword %s, %s, %s offset:%d" % (vr(vt), vr(vt + 1), sp(S_WS), 4 * i))

    def end(self, vt):
        self.dump_stamps(vt)
        self.a("s_endpgm")

    def layernorm_rows(self, base, lds_x, VZ, rows=128):
        a = self.a
        xs, xp = base, base + 4
        f = base + 16
        t = base + 24
        for i in range(4):
            a("v_lshlrev_b32 %s, 16, %s" % (vr(f + 2 * i), vr(xs + i)))
            a("v_and_b32 %s, 0xffff0000, %s" % (vr(f + 2 * i + 1), vr(xs + i)))
        a("v_add_f32 %s, %s, %s" % (vr(t), vr(f), vr(f + 1)))
        a("v_add_f32 %s, %s, %s" % (vr(t + 1), vr(f + 2), vr(f + 3)))
        a("v_add_f32 %s, %s, %s" % (vr(t + 2), vr(f + 4), vr(f + 5)))
        a("v_add_f32 %s, %s, %s" % (vr(t + 3), vr(f + 6), vr(f + 7)))
        a("v_add_f32 %s, %s, %s" % (vr(t), vr(t), vr(t + 1)))
        a("v_add_f32 %s, %s, %s" % (vr(t + 2), vr(t + 2), vr(t + 3)))
        a("v_add_f32 %s, %s, %s" % (vr(t), vr(t), vr(t + 2)))
        self.xor_reduce("v_add_f32", [t], [1, 2, "hm", "m", 16, 32], t + 4)
        a("v_mul_f32 %s, 0x3b000000, %s" % (vr(t), vr(t)))
        for i in range(8):
            a("v_sub_f32 %s, %s, %s" % (vr(f + i), vr(f + i), vr(t)))
        a("v_mul_f32 %s, %s, %s" % (vr(t + 1), vr(f), vr(f)))
        a("v_mul_f32 %s, %s, %s" % (vr(t + 2), vr(f + 1), vr(f + 1)))
        for i in range(2, 8, 2):
            a("v_fmac_f32 %s, %s, %s" % (vr(t + 1), vr(f + i), vr(f + i)))
            a("v_fmac_f32 %s, %s, %s" % (vr(t + 2), vr(f + i + 1), vr(f + i + 1)))
        a("v_add_f32 %s, %s, %s" % (vr(t + 1), vr(t + 1), vr(t + 2)))
        self.xor_reduce("v_add_f32", [t + 1], [1, 2, "hm", "m", 16, 32], t + 4)
        a("v_mul_f32 %s, 0x3b000000, %s" % (vr(t + 1), vr(t + 1)))
        a("v_cvt_pk_bf16_f32 %s, %s, %s" % (vr(t + 2), vr(t), vr(t + 1)))
        a("v_lshlrev_b32 %s, 16, %s" % (vr(t), vr(t + 2)))
        a("v_and_b32 %s, 0xffff0000, %s" % (vr(t + 1), vr(t + 2)))
        a("v_add_f32 %s, 0x3727c5ac, %s" % (vr(t + 1), vr(t + 1)))
        a("v_cvt_pk_bf16_f32 %s, %s, %s" % (vr(t + 1), vr(t + 1), vr(t + 1)))
        a("v_and_b32 %s, 0xffff0000, %s" % (vr(t + 1), vr(t + 1)))
        a("v_sqrt_f32 %s, %s" % (vr(t + 1), vr(t + 1)))
        a("s_nop 0")
        a("v_cvt_pk_bf16_f32 %s, %s, %s" % (vr(t + 1), vr(t + 1), vr(t + 1)))
        a("v_and_b32 %s, 0xffff0000, %s" % (vr(t + 1), vr(t + 1)))
        a("v_rcp_f32 %s, %s" % (vr(t + 2), vr(t + 1)))
        a("v_lshlrev_b32 %s, 16, %s" % (vr(f), vr(xp)))
        a("v_and_b32 %s, 0xffff0000, %s" % (vr(f + 1), vr(xp)))
        a("v_sub_f32 %s, %s, %s" % (vr(f), vr(f), vr(t)))
        a("v_sub_f32 %s, %s, %s" % (vr(f + 1), vr(f + 1), vr(t)))
        a("v_cvt_pk_bf16_f32 %s, %s, %s" % (vr(f), vr(f), vr(f + 1)))
        a("v_and_b32 %s, 0xffff0000, %s" % (vr(f + 1), vr(f)))
        a("v_lshlrev_b32 %s, 16, %s" % (vr(f), vr(f)))
        for i in range(2):
            a("v_mul_f32 %s, %s, %s" % (vr(f + 2 + i), vr(f + i), vr(t + 2)))
        for i in range(2):
            a("v_fma_f32 %s, -%s, %s, %s" % (vr(f + 4 + i), vr(f + 2 + i), vr(t + 1), vr(f + i)))
        for i in range(2):
            a("v_fmac_f32 %s, %s, %s" % (vr(f + 2 + i), vr(f + 4 + i), vr(t + 2)))
        a("v_cvt_pk_bf16_f32 %s, %s, %s" % (vr(f), vr(f + 2), vr(f + 3)))
        if rows == 128:
            a("v_lshlrev_b32 %s, 2, v0" % vr(t))
        else:
            a("v_and_b32 %s, 31, v0" % vr(t))
            a("v_lshlrev_b32 %s, 2, %s" % (vr(t), vr(t)))
        a("ds_write_b32 %s, %s offset:%d" % (vr(t), vr(f), lds_x))
        a("v_lshrrev_b32 %s, 3, v0" % vr(t))
        a("v_lshlrev_b32 %s, %d, %s" % (vr(t), 5 if rows == 128 else 4, vr(t)))
        a("ds_read_b128 %s, %s offset:%d" % (vr(base + 8, 4), vr(t), lds_x))
        if rows == 128:
            a("ds_read_b128 %s, %s offset:%d" % (vr(base + 12, 4), vr(t), lds_x + 16))

    def selectors(self, sel, tmp, both_parities):
        a = self.a
        a("v_and_b32 %s, 15, v0" % vr(tmp))
        a("v_and_b32 %s, 1, %s" % (vr(tmp + 1), vr(tmp)))
        a("v_bfe_u32 %s, %s, 1, 2" % (vr(tmp + 2), vr(tmp)))
        if not both_parities:
            a("v_lshrrev_b32 %s, 3, %s" % (vr(tmp + 3), vr(tmp)))
            a("v_lshl_add_u32 %s, %s, 2, %s" % (vr(tmp + 2), vr(tmp + 3), vr(tmp + 2)))
        a("v_cmp_eq_u32 vcc, 1, %s" % vr(tmp + 1))
        a("v_mov_b32 %s, 0x0c0c0100" % vr(tmp + 3))
        a("v_mov_b32 %s, 0x01000c0c" % vr(tmp + 4))
        a("v_cndmask_b32 %s, %s, %s, vcc" % (vr(tmp + 5), vr(tmp + 3), vr(tmp + 4)))
        a("v_mov_b32 %s, 0x0c0c0302" % vr(tmp + 3))
        a("v_mov_b32 %s, 0x03020c0c" % vr(tmp + 4))
        a("v_cndmask_b32 %s, %s, %s, vcc" % (vr(tmp + 6), vr(tmp + 3), vr(tmp + 4)))
        a("v_mov_b32 %s, 0x0c0c0c0c" % vr(tmp + 3))
        for t in range(4):
            a("v_cmp_eq_u32 vcc, %d, %s" % (t, vr(tmp + 2)))
            a("s_nop 1")
            a("v_cndmask_b32 %s, %s, %s, vcc" % (vr(sel + t), vr(tmp + 3), vr(tmp + 5)))
            a("v_cndmask_b32 %s, %s, %s, vcc" % (vr(sel + 4 + t), vr(tmp + 3), vr(tmp + 6)))

    def tile_gemv(self, W, XN, SEL, AF, ACC, nafter):
        a = self.a
        for i in range(16):
            for t in range(4):
                a("v_perm_b32 %s, %s, %s, %s" % (vr(AF + 4 * i + t), vr(XN + (i >> 1)), vr(XN + (i >> 1)), vr(SEL + 4 * (i & 1) + t)))
        for i in range(16):
            a("s_waitcnt vmcnt(%d)" % (15 - i + nafter))
            a("v_mfma_f32_16x16x32_bf16 %s, %s, %s, %s" % (vr(ACC, 4), vr(AF + 4 * i, 4), vr(W + 4 * i, 4), "0" if i == 0 else vr(ACC, 4)))
        a("s_nop 7")
        a("v_permlane32_swap_b32 %s, %s" % (vr(ACC), vr(ACC + 2)))
        a("v_permlane32_swap_b32 %s, %s" % (vr(ACC + 1), vr(ACC + 3)))
        a("s_nop 1")
        a("v_add_f32_dpp %s, %s, %s row_ror:8 row_mask:0xf bank_mask:0xf" % (vr(ACC), vr(ACC + 2), vr(ACC)))
        a("v_add_f32_dpp %s, %s, %s row_ror:8 row_mask:0xf bank_mask:0xf" % (vr(ACC + 1), vr(ACC + 3), vr(ACC + 1)))


    def prologue(self):
        a = self.a
        a("""
        s_cmp_ge_u32 s2, 256
        s_cbranch_scc1 L_end
        """)
        self.stamp(0)
        a("""
        s_load_dwordx16 s[4:19], s[0:1], 0
        s_load_dwordx4 s[20:23], s[0:1], 64
        s_load_dwordx2 s[24:25], s[0:1], 80
        v_lshrrev_b32 v1, 6, v0
        v_and_b32 v0, 63, v0
        %s
        v_readfirstlane_b32 s28, v1
        v_lshlrev_b32 v37, 4, v0
        s_lshr_b32 s40, s27, 3                ; row block of the Wq tile
        s_cmp_eq_u32 s28, 7
        s_cbranch_scc1 L_L
        s_cmp_eq_u32 s28, 5
        s_cbranch_scc1 L_C1
        s_cmp_eq_u32 s28, 6
        s_cbranch_scc1 L_C2
        s_cmp_lt_u32 s28, 4
        s_cbranch_scc1 L_A
        """ % ("s_lshr_b32 s26, s2, 5\ns_and_b32 s27, s2, 31" if self.scramble else "s_and_b32 s26, s2, 7\ns_lshr_b32 s27, s2, 3"))

    def dispatch_others(self):
        self.a("""
        L_other:
        v_mov_b32 v1, 0
        v_mov_b32 v2, 1
        s_cmp_eq_u32 s28, 7
        s_cbranch_scc1 L_L
        s_cmp_eq_u32 s28, 5
        s_cbranch_scc1 L_C1
        s_cmp_eq_u32 s28, 6
        s_cbranch_scc1 L_C2
        s_branch L_A
        """)

    def mlp_scalars(self):
        self.a("""
        s_cmp_lt_u32 s26, 4
        s_cselect_b32 s49, %d, %d
        s_cmp_lt_u32 s27, s49
        s_cselect_b32 s38, 1, 0
        s_mul_i32 s50, s26, %d
        s_sub_u32 s51, s26, 4
        s_mul_i32 s51, s51, %d
        s_add_u32 s51, s51, %d
        s_cmp_lt_u32 s26, 4
        s_cselect_b32 s50, s50, s51
        s_lshr_b32 s51, s27, 3
        s_add_u32 s50, s50, s51
        """ % (self.nb_lo, self.nb_hi, self.nb_lo // 8, self.nb_hi // 8, self.nb_lo // 2))

    def args_ready(self):
        self.a("s_waitcnt lgkmcnt(0)")
        self.a("s_load_dwordx2 s[30:31], s[24:25], %d" % EPOCH)

    def role_l(self):
        a = self.a
        VZ, V1 = 1, 2
        a(".p2align 8")
        a("L_L:")
        a("v_mov_b32 v1, 0\nv_mov_b32 v2, 1")
        self.role = "L"
        KO, VO = 8, 12
        WOA, WOB, W2A, W1A = 16, 17, 18, 20
        piece = 0x8000 if self.ileave else 0x400
        a("""
        s_lshl_b32 s40, s26, 24
        s_add_u32 s40, s40, 0xF00000
        s_lshl_b32 s41, s27, %d
        s_add_u32 s40, s40, s41               ; first piece of this chunk
        v_lshrrev_b32 v3, 4, v0               ; q4
        v_and_b32 v4, 15, v0                  ; pos
        v_xor_b32 v5, v4, v3
        v_lshl_add_u32 v6, v3, 8, s40
        """ % (10 if self.ileave else 15))
        for q in range(4):
            a("v_xor_b32 v7, %d, v5" % (4 * q))
            a("v_lshl_add_u32 v7, v7, 4, v6")
            a("v_add_u32 %s, %d, v7" % (vr(KO + q), 2 * q * piece))

        def rest_addresses():
            a("v_lshlrev_b32 v7, 1, v3")
            a("v_xor_b32 v7, v7, v4")
            a("v_lshl_add_u32 %s, v7, 4, v6" % vr(VO))
            a("v_xor_b32 v7, 8, v7")
            a("v_lshl_add_u32 v7, v7, 4, v6")
            a("v_add_u32 %s, %d, v7" % (vr(VO + 1), 2 * piece))
            a("""
            s_lshl_b32 s42, s26, 9                ; 512 g
            s_lshr_b32 s43, s27, 3
            s_lshl_b32 s43, s43, 7                ; 128 h
            s_add_u32 s42, s42, s43
            s_bfe_u32 s43, s27, 0x20001
            s_lshl_b32 s43, s43, 5
            s_add_u32 s42, s42, s43
            s_lshl_b32 s42, s42, 10               ; first Wo row of the pair * 1024
            s_and_b32 s43, s27, 1
            s_lshl_b32 s43, s43, 9                ; column half * 512 bytes
            s_add_u32 s42, s42, s43
            v_lshrrev_b32 v6, 3, v0
            v_lshlrev_b32 v6, 11, v6              ; 2 rows * 1024
            v_and_b32 v7, 7, v0
            v_lshl_add_u32 v7, v7, 4, v6
            v_add_u32 %s, s42, v7
            v_add_u32 %s, 0x4000, %s
            s_lshl_b32 s42, s50, 16               ; 64 cbg rows * 1024
            s_and_b32 s43, s27, 7
            s_lshl_b32 s43, s43, 7                ; column block j * 128 bytes
            s_add_u32 s42, s42, s43
            v_lshrrev_b32 v6, 3, v0
            v_lshlrev_b32 v6, 13, v6              ; 8 rows * 1024
            v_and_b32 v7, 7, v0
            v_lshl_add_u32 v6, v7, 4, v6
            v_add_u32 %s, s42, v6
            v_add_u32 v19, 0x1000, %s
            """ % (vr(WOA), vr(WOB), vr(WOA), vr(W2A), vr(W2A)))

        def m0(x):
            return "s_movk_i32 m0, 0x%x\n" % x if x < 0x8000 else "s_mov_b32 m0, 0x%x\n" % x

        def seq(isb):
            ops, flags, gates = [], [], []
            for grp in self.order:
                if grp == "|":
                    gates.append(len(ops))
                elif grp == "k":
                    for w in range(4):
                        for q in range(4):
                            for t in range(2):
                                p = 8 * w + 2 * q + t
                                ops.append((m0(L_K + 1024 * p), "global_load_lds_dwordx4 %s, %s %s" % (vr(KO + q), sp(S_K), self.nt_kv),
                                            "v_add_u32 %s, 0x%x, %s" % (vr(KO + q), (1 if t == 0 else 7) * piece, vr(KO + q))))
                    flags.append((len(ops), F_K))
                elif grp == "v":
                    for w in range(4):
                        for i in range(8):
                            b = (i >> 1) & 1
                            ops.append((m0(L_V + 1024 * (8 * w + i)), "global_load_lds_dwordx4 %s, %s %s" % (vr(VO + b), sp(S_V), self.nt_kv),
                                        "v_add_u32 %s, 0x%x, %s" % (vr(VO + b), (1 if (i & 1) == 0 else 3) * piece, vr(VO + b))))
                        flags.append((len(ops), F_V))
                elif grp == "f":
                    for i in range(4):
                        ops.append(("", "global_load_dwordx4 v[24:27], v23, %s offset:%d sc1" % (sp(S_WS), 1024 * i), ""))
                    ops.append(("", "global_load_dwordx4 v[24:27], v28, %s sc1" % sp(S_WS), ""))
                elif grp == "o":
                    for w in range(4):
                        for i in range(4):
                            off = 128 * w + 1024 * (i >> 1)
                            ops.append((m0(L_WO + (4 * w + i) * 1024 - off),
                                        "global_load_lds_dwordx4 %s, %s offset:%d %s" % (vr(WOA if (i & 1) == 0 else WOB), sp(S_WO), off, self.nt_w), ""))
                    flags.append((len(ops), F_WO))
                elif grp == "2" and isb:
                    for i in range(8):
                        ops.append((m0(L_W2 + 4096 * (i >> 2)),
                                    "global_load_lds_dwordx4 %s, %s offset:%d %s" % (vr(W2A if i < 4 else 19), sp(S_W2), 1024 * (i & 3), self.nt_w), ""))
                    flags.append((len(ops), F_W2))
                elif grp == "1" and isb:
                    for i in range(8):
                        ops.append((m0(L_W1 + 1024 * i), "global_load_lds_dwordx4 %s, %s %s" % (vr(W1A), sp(S_W1), self.nt_w),
                                    "v_add_u32 %s, 3584, %s" % (vr(W1A), vr(W1A))))
                    flags.append((len(ops), F_W1))
            return ops, flags, gates

        W = self.window
        self.args_ready()
        self.stamp(1)
        assert self.order[0] == "k"
        ops0, _, _ = seq(False)
        NE = min(W, 5) if not self.kgate else 0
        for j in range(NE):
            pre, ld, post = ops0[j]
            a(pre)
            a("s_nop 0")
            a(ld)
            a(post)
        a("s_barrier")
        if self.lprio:
            a("s_setprio %d" % self.lprio)
        self.mlp_scalars()
        rest_addresses()
        if self.kgate:
            self.flag_wait(F_ST, 1, VZ, 21)
        if "f" in self.order:
            a("""
            s_lshl_b32 s41, s26, 17
            s_lshl_b32 s42, s27, 12
            s_add_u32 s41, s41, s42
            s_add_u32 s41, s41, %d
            v_lshl_add_u32 v23, v0, 4, s41
            s_lshl_b32 s41, s26, 11
            s_lshr_b32 s42, s27, 3
            s_lshl_b32 s42, s42, 9
            s_add_u32 s41, s41, s42
            s_add_u32 s41, s41, %d
            v_and_b32 v28, 31, v0
            v_lshl_add_u32 v28, v28, 4, s41
            """ % (H2, ST))

        def with_values(flags):
            out, nv = [], 0
            for (e, f) in flags:
                if f == F_V:
                    nv += 1
                    out.append((e, f, nv))
                else:
                    out.append((e, f, 1))
            return out

        def run(ops, flags, gates, W, start, labels=None, check_to=None, first=False):
            n = len(ops)
            pend = [f for f in flags if f[0] > max(0, start - (W - 1)) or first]
            hold = self.hold
            for j in range(start, n):
                pre, ld, post = ops[j]
                if labels and j in labels:
                    a(labels[j] + ":")
                if hold and j == hold:
                    while pend and pend[0][0] <= j:
                        e, f, val = pend.pop(0)
                        a("s_waitcnt vmcnt(%d)" % (j - e))
                        self.flag_set(f, val, VZ, 22)
                    self.flag_wait(F_QPUB, 1, VZ, 21)
                    if isb_cur[0] and self.order[0] == "1":
                        self.flag_wait(F_HPUB, 1, VZ, 21)
                    self.stamp(4)
                if j in gates:
                    while pend and pend[0][0] <= j:
                        e, f, val = pend.pop(0)
                        a("s_waitcnt vmcnt(%d)" % (j - e))
                        self.flag_set(f, val, VZ, 22)
                    self.flag_wait(F_OPUB, 4, VZ, 21)
                chk = check_to is not None and j in check_to
                if chk:
                    a("ds_read_b32 v21, %s offset:%d" % (vr(VZ), F_Q))
                if j >= W and not any(g <= j < g + W for g in gates):
                    a("s_waitcnt vmcnt(%d)" % (W - 1))
                    landed = j - (W - 1)
                    while pend and pend[0][0] <= landed:
                        e, f, val = pend.pop(0)
                        self.flag_set(f, val, VZ, 22)
                if chk:
                    a("s_waitcnt lgkmcnt(0)")
                    a("v_readfirstlane_b32 s%d, v21" % S_TMP)
                    a("s_cmp_lg_u32 s%d, 0" % S_TMP)
                    a("s_cbranch_scc1 %s" % check_to[j])
                a(pre)
                a("s_nop 0")
                a(ld)
                if post:
                    a(post)
            self.stamp(2)
            for (e, f, val) in pend:
                a("s_waitcnt vmcnt(%d)" % (n - e))
                self.flag_set(f, val, VZ, 22)
            self.stamp(3)
            self.end(3)

        isb_cur = [False]

        def emit(isb):
            isb_cur[0] = isb
            ops, flags, gates = seq(isb)
            flags = with_values(flags)
            n = len(ops)
            if not self.w2:
                run(ops, flags, gates, W, NE, first=True)
                return
            points = [j for j in range(W, n - 8) if (j - W) % self.chk == 0]
            labels = {j: a.newlabel("FAST") for j in points}
            run(ops, flags, gates, W, NE, check_to=labels, first=True)
            run(ops, flags, gates, self.w2, points[0], labels=labels)

        Lb = a.newlabel("LB")
        a("s_cmp_lg_u32 s%d, 0" % S_ISB)
        a("s_cbranch_scc1 %s" % Lb)
        emit(False)
        a(Lb + ":")
        emit(True)

    def role_a(self):
        a = self.a
        VZ, V1 = 1, 2
        T = 5
        a("L_A:")
        a("v_mov_b32 v1, 0\nv_mov_b32 v2, 1")
        self.role = "A"
        a("s_barrier")
        self.args_ready()
        a("s_setprio %d" % self.aprio)
        KO, VO, QA = 16, 20, 24
        a("""
        v_lshrrev_b32 v3, 4, v0               ; gg
        v_and_b32 v4, 15, v0                  ; m
        s_lshl_b32 s41, s28, 13
        v_and_b32 v5, 3, v4                   ; b = m & 3
        v_lshrrev_b32 v6, 2, v4               ; a = m >> 2
        v_lshlrev_b32 v7, 11, v6
        v_lshl_add_u32 v7, v5, 8, v7
        v_xor_b32 v8, v3, v5
        v_lshl_add_u32 v7, v8, 4, v7
        v_add_u32 v7, s41, v7
        """)
        for s in range(4):
            a("v_xor_b32 v8, %d, v6" % s)
            a("v_lshl_add_u32 %s, v8, 6, v7" % vr(KO + s))
        a("v_mul_u32_u24 v8, 320, v6")
        a("v_lshl_add_u32 %s, v3, 4, v8" % vr(QA))
        a("""
        v_lshrrev_b32 v8, 2, v4               ; r
        v_and_b32 v9, 3, v4                   ; cq
        v_and_b32 v10, 1, v3
        v_lshl_or_b32 v10, v10, 2, v8         ; sigma
        v_lshl_add_u32 v11, v3, 3, v8         ; 8 gg + r
        v_lshlrev_b32 v11, 8, v11
        v_lshl_add_u32 v11, v9, 3, v11
        v_add_u32 v11, %d, v11
        s_lshl_b32 s42, s28, 1
        """ % L_V)
        for u in range(2):
            a("s_add_u32 s43, s42, %d" % u)
            a("v_xor_b32 v12, s43, v10")
            a("v_lshl_add_u32 %s, v12, 5, v11" % vr(VO + u))
        WOA = 22
        a("s_lshl_b32 s42, s28, 12")
        a("s_add_u32 s42, s42, %d" % L_WO)
        a("v_lshl_add_u32 %s, v0, 4, s42" % vr(WOA))
        SEL = 28
        self.selectors(SEL, T, both_parities=True)
        self.tags()
        TG = 36
        a("v_mov_b32 %s, s%d" % (vr(TG + 2), S_T))
        a("v_mov_b32 %s, s%d" % (vr(TG + 3), S_T + 1))
        OA, SA, STA = 40, 41, 43
        a("""
        s_lshl_b32 s42, s26, 16               ; g * 65536
        s_lshl_b32 s43, s27, 7                ; c * 128
        s_add_u32 s42, s42, s43
        s_add_u32 s42, s42, %d
        v_bfe_u32 v12, v0, 1, 3
        v_lshlrev_b32 v12, 4, v12             ; O granule (n >> 1) * 16
        v_lshlrev_b32 v13, 2, v3              ; 4 h
        v_add_u32 v13, s28, v13               ; pair 4 h + w
        v_lshl_add_u32 v13, v13, 12, v12
        v_add_u32 %s, s42, v13
        s_lshl_b32 s42, s26, 15               ; g * 32768
        s_lshr_b32 s43, s27, 1
        s_lshl_b32 s43, s43, 6                ; (c >> 1) * 64
        s_add_u32 s42, s42, s43
        s_and_b32 s43, s27, 1
        s_lshl_b32 s43, s43, 14               ; 16 b' * 1024
        s_add_u32 s42, s42, s43
        s_lshr_b32 s43, s28, 1
        s_lshl_b32 s43, s43, 13               ; 8 (w >> 1) * 1024
        s_add_u32 s42, s42, s43
        s_and_b32 s43, s28, 1
        s_lshl_b32 s43, s43, 11               ; 2 (w & 1) * 1024
        s_add_u32 s42, s42, s43
        s_add_u32 s42, s42, %d
        v_bfe_u32 v12, v0, 4, 1
        v_lshlrev_b32 v12, 12, v12            ; 4 g' * 1024
        v_bfe_u32 v13, v0, 2, 1
        v_lshl_add_u32 v12, v13, 10, v12      ; (n >> 2) * 1024
        v_and_b32 v13, 3, v0
        v_lshl_add_u32 v12, v13, 4, v12
        v_add_u32 %s, s42, v12
        s_lshl_b32 s42, s26, 11
        s_lshl_b32 s43, s27, 4
        s_add_u32 s42, s42, s43
        s_add_u32 s42, s42, %d
        v_lshl_add_u32 %s, v3, 9, s42
        """ % (H2, vr(OA), H3S, vr(SA), ST, vr(STA)))
        VT, PK = 160, 164
        for k in range(4):
            a("v_mov_b32 %s, s%d" % (vr(VT + k), S_E + k))
        MXW, PWA, PRA, MRA, ORA = 25, 26, 27, 45, 46
        a("""
        v_lshrrev_b32 v12, 2, v4
        v_lshlrev_b32 v12, 4, v12             ; head (l & 15) >> 2, * 16
        s_lshl_b32 s42, s28, 2
        v_add_u32 %s, s42, v12                ; + wave * 4
        v_lshlrev_b32 %s, 4, v0
        s_lshl_b32 s42, s28, 10
        v_add_u32 %s, s42, %s
        v_lshlrev_b32 %s, 4, v3
        v_lshrrev_b32 v12, 3, v0
        v_lshlrev_b32 %s, 4, v12
        """ % (vr(MXW), vr(PRA), vr(PWA), vr(PRA), vr(MRA), vr(ORA)))
        OD = 112
        KF = 48
        QF = 80
        WO = 96
        self.flag_wait(F_K, 1, VZ, T, sleep=2)
        self.stamp(1)
        for t in range(2):
            for s in range(4):
                a("ds_read_b128 %s, %s offset:%d" % (vr(KF + 16 * t + 4 * s, 4), vr(KO + s), L_K + 1024 * t))
        self.flag_wait(F_Q, 1, VZ, T, sleep=1)
        self.stamp(2)
        for s in range(4):
            a("ds_read_b128 %s, %s offset:%d" % (vr(QF + 4 * s, 4), vr(QA), L_Q + 64 * s))
        self.read_mode(VZ, T)
        SC = 112
        for s in range(4):
            for t in range(2):
                a("v_mfma_f32_16x16x32_bf16 %s, %s, %s, %s" % (vr(SC + 4 * t, 4), vr(KF + 16 * t + 4 * s, 4), vr(QF + 4 * s, 4), "0" if s == 0 else vr(SC + 4 * t, 4)))
        a("s_nop 7")
        if self.mimic:
            for i in range(4):
                a("v_cvt_pk_bf16_f32 %s, %s, %s" % (vr(T + i), vr(SC + 2 * i), vr(SC + 2 * i + 1)))
            for i in range(4):
                a("v_lshlrev_b32 %s, 16, %s" % (vr(SC + 2 * i), vr(T + i)))
                a("v_and_b32 %s, 0xffff0000, %s" % (vr(SC + 2 * i + 1), vr(T + i)))
        for i in range(8):
            a("v_mul_f32 %s, 0x%x, %s" % (vr(SC + i), SCALE, vr(SC + i)))
        if self.mimic:
            for i in range(4):
                a("v_cvt_pk_bf16_f32 %s, %s, %s" % (vr(T + i), vr(SC + 2 * i), vr(SC + 2 * i + 1)))
            for i in range(4):
                a("v_lshlrev_b32 %s, 16, %s" % (vr(SC + 2 * i), vr(T + i)))
                a("v_and_b32 %s, 0xffff0000, %s" % (vr(SC + 2 * i + 1), vr(T + i)))
        MX = 44
        a("v_max3_f32 %s, %s, %s, %s" % (vr(T), vr(SC), vr(SC + 1), vr(SC + 2)))
        a("v_max3_f32 %s, %s, %s, %s" % (vr(T + 1), vr(SC + 3), vr(SC + 4), vr(SC + 5)))
        a("v_max3_f32 %s, %s, %s, %s" % (vr(T), vr(T), vr(SC + 6), vr(SC + 7)))
        a("v_max_f32 %s, %s, %s" % (vr(MX), vr(T), vr(T + 1)))
        self.xor_reduce("v_max_f32", [MX], [16, 32], T)
        a("v_mov_b32 %s, 0x%x" % (vr(T + 8), LOG2E))
        a("v_mul_f32 %s, %s, %s" % (vr(T + 9), vr(MX), vr(T + 8)))
        a("s_mov_b64 exec, 0x1111")
        a("ds_write_b32 %s, %s offset:%d" % (vr(MXW), vr(MX), L_MX))
        a("s_mov_b64 exec, -1")
        for i in range(8):
            a("v_fma_f32 %s, %s, %s, -%s" % (vr(SC + i), vr(SC + i), vr(T + 8), vr(T + 9)))
        for i in range(8):
            a("v_exp_f32 %s, %s" % (vr(SC + i), vr(SC + i)))
        PF = 48
        a("s_nop 0")
        for i in range(4):
            a("v_cvt_pk_bf16_f32 %s, %s, %s" % (vr(T + 1 + i), vr(SC + 2 * i), vr(SC + 2 * i + 1)))
        a("ds_write_b128 %s, %s offset:%d" % (vr(PWA), vr(T + 1, 4), L_P))
        self.flag_add(F_P, VZ, V1)
        self.flag_wait(F_P, 4, VZ, T + 6)
        for ks in range(4):
            a("ds_read_b128 %s, %s offset:%d" % (vr(PF + 4 * ks, 4), vr(PRA), L_P + 1024 * ks))
        FW = 120
        a("ds_read_b128 %s, %s offset:%d" % (vr(FW, 4), vr(MRA), L_MX))
        self.stamp(3)
        a("s_waitcnt lgkmcnt(0)")
        a("v_max3_f32 %s, %s, %s, %s" % (vr(MX), vr(FW), vr(FW + 1), vr(FW + 2)))
        a("v_max_f32 %s, %s, %s" % (vr(MX), vr(MX), vr(FW + 3)))
        a("v_mul_f32 %s, %s, %s" % (vr(T + 9), vr(MX), vr(T + 8)))
        for i in range(4):
            a("v_fma_f32 %s, %s, %s, -%s" % (vr(FW + i), vr(FW + i), vr(T + 8), vr(T + 9)))
        for i in range(4):
            a("v_exp_f32 %s, %s" % (vr(FW + i), vr(FW + i)))
        D = 128
        TS = 124
        Lns = a.newlabel("NS")
        a("s_cmp_lg_u32 s28, 0")
        a("s_cbranch_scc1 %s" % Lns)
        ON = 64
        for t in range(4):
            a("v_mov_b32 %s, 0x3f803f80" % vr(ON + t))
        a("s_nop 1")
        for ks in range(4):
            a("v_mfma_f32_16x16x32_bf16 %s, %s, %s, 0" % (vr(D + 4 * ks, 4), vr(PF + 4 * ks, 4), vr(ON, 4)))
        a("v_mov_b32 %s, %s" % (vr(TS), vr(MX)))
        a("v_mov_b32 %s, %s" % (vr(TS + 2), vr(TG + 2)))
        a("v_mov_b32 %s, %s" % (vr(TS + 3), vr(TG + 3)))
        a("s_nop 4")
        a("v_mul_f32 %s, %s, %s" % (vr(TS + 1), vr(FW), vr(D)))
        for ks in range(1, 4):
            a("v_fmac_f32 %s, %s, %s" % (vr(TS + 1), vr(FW + ks), vr(D + 4 * ks)))
        a(Lns + ":")
        wo_first = self.order.index("o") < self.order.index("v")

        def read_wo():
            self.flag_wait(F_WO, 1, VZ, T, sleep=0 if not wo_first else 1)
            for i in range(4):
                a("ds_read_b128 %s, %s offset:%d" % (vr(WO + 4 * i, 4), vr(WOA), 1024 * i))
        if wo_first:
            read_wo()
        self.stamp(4)
        VF = 64
        S_V, S_I = 44, 45
        a("s_mov_b32 s%d, 0" % S_V)
        a("s_mov_b32 s%d, 0" % S_I)
        for ks in range(4):
            Lgo, Lsp = a.newlabel("V"), a.newlabel("V")
            a("s_cmp_ge_u32 s%d, %d" % (S_V, ks + 1))
            a("s_cbranch_scc1 %s" % Lgo)
            a("s_mov_b32 s%d, 0" % S_CNT)
            a(Lsp + ":")
            a("ds_read_b64 %s, %s offset:%d" % (vr(T + 1, 2), vr(VZ), F_V))
            a("s_add_u32 s%d, s%d, 1" % (S_CNT, S_CNT))
            a("s_cmp_gt_u32 s%d, %d" % (S_CNT, SPIN_MAX))
            a("s_cbranch_scc1 L_end")
            a("s_waitcnt lgkmcnt(0)")
            a("v_readfirstlane_b32 s%d, %s" % (S_V, vr(T + 1)))
            a("v_readfirstlane_b32 s%d, %s" % (S_I, vr(T + 2)))
            a("s_cmp_lt_u32 s%d, %d" % (S_V, ks + 1))
            a("s_cbranch_scc1 %s" % Lsp)
            a(Lgo + ":")
            if ks == 3:
                self.stamp(5)
            for u in range(2):
                for jh in range(2):
                    a("ds_read_b64_tr_b16 %s, %s offset:%d" % (vr(VF + 8 * ks + 4 * u + 2 * jh, 2), vr(VO + u), 8192 * ks + 1024 * jh))
            if ks:
                a("s_waitcnt lgkmcnt(4)")
                for u in range(2):
                    a("v_mfma_f32_16x16x32_bf16 %s, %s, %s, 0" % (vr(D + 8 * (ks - 1) + 4 * u, 4), vr(PF + 4 * (ks - 1), 4), vr(VF + 8 * (ks - 1) + 4 * u, 4)))
        for u in range(2):
            a("s_waitcnt lgkmcnt(%d)" % (2 - 2 * u))
            a("v_mfma_f32_16x16x32_bf16 %s, %s, %s, 0" % (vr(D + 24 + 4 * u, 4), vr(PF + 12, 4), vr(VF + 24 + 4 * u, 4)))
        a("v_mul_f32 %s, %s, %s" % (vr(TG), vr(FW), vr(D)))
        a("v_mul_f32 %s, %s, %s" % (vr(TG + 1), vr(FW), vr(D + 4)))
        for ks in range(1, 3):
            a("v_fmac_f32 %s, %s, %s" % (vr(TG), vr(FW + ks), vr(D + 8 * ks)))
            a("v_fmac_f32 %s, %s, %s" % (vr(TG + 1), vr(FW + ks), vr(D + 8 * ks + 4)))
        a("s_nop 1")
        a("v_fmac_f32 %s, %s, %s" % (vr(TG), vr(FW + 3), vr(D + 24)))
        a("v_fmac_f32 %s, %s, %s" % (vr(TG + 1), vr(FW + 3), vr(D + 28)))
        if self.sinit:
            Li = a.newlabel("I")
            a("s_cmp_ge_u32 s%d, 2" % S_I)
            a("s_cbranch_scc1 %s" % Li)
            self.flag_wait(F_INIT, 2, VZ, T)
            a(Li + ":")
        a("v_and_or_b32 %s, %s, s%d, %s" % (vr(PK), vr(TG), S_EN, vr(VT)))
        a("v_and_or_b32 %s, %s, s%d, %s" % (vr(PK + 1), vr(TG + 1), S_EN, vr(VT + 1)))
        a("v_mov_b32_dpp %s, %s quad_perm:[1,1,3,3] row_mask:0xf bank_mask:0xf" % (vr(PK + 2), vr(TG)))
        a("v_mov_b32_dpp %s, %s quad_perm:[1,1,3,3] row_mask:0xf bank_mask:0xf" % (vr(PK + 3), vr(TG + 1)))
        a("v_and_or_b32 %s, %s, s%d, %s" % (vr(PK + 2), vr(PK + 2), S_EN, vr(VT + 2)))
        a("v_and_or_b32 %s, %s, s%d, %s" % (vr(PK + 3), vr(PK + 3), S_EN, vr(VT + 3)))
        a("s_mov_b32 exec_lo, 0x55555555")
        a("s_mov_b32 exec_hi, 0x55555555")
        self.store_mode(OA, PK)
        a("s_mov_b64 exec, -1")
        Lns = a.newlabel("NS")
        a("s_cmp_lg_u32 s28, 0")
        a("s_cbranch_scc1 %s" % Lns)
        a("s_mov_b32 s42, 0x00010001")
        a("s_mov_b32 s43, 0x00010001")
        a("s_mov_b64 exec, s[42:43]")
        self.store_mode(STA, TS)
        a("s_mov_b64 exec, -1")
        a(Lns + ":")
        self.flag_add(F_OPUB, VZ, V1)
        self.stamp(6)
        if not wo_first:
            read_wo()
        AF = 64
        OG = 8
        Lsp = a.newlabel("O")
        a("s_mov_b32 s%d, 0" % S_CNT)
        a(Lsp + ":")
        a("ds_read_b128 %s, %s offset:%d" % (vr(OG, 4), vr(ORA), L_O))
        a("s_add_u32 s%d, s%d, 1" % (S_CNT, S_CNT))
        a("s_cmp_gt_u32 s%d, %d" % (S_CNT, SPIN_MAX))
        a("s_cbranch_scc1 L_end")
        a("s_waitcnt lgkmcnt(0)")
        a("v_and_b32 %s, %s, %s" % (vr(OG + 1), vr(OG + 1), vr(OG + 3)))
        a("v_cmp_ne_u32 vcc, 1, %s" % vr(OG + 1))
        a("s_cbranch_vccnz %s" % Lsp)
        for i in range(4):
            src = OG + 2 * (i >> 1)
            for t in range(4):
                a("v_perm_b32 %s, %s, %s, %s" % (vr(AF + 4 * i + t), vr(src), vr(src), vr(SEL + 4 * (i & 1) + t)))
            if i:
                a("v_mfma_f32_16x16x32_bf16 %s, %s, %s, %s" % (vr(OD, 4), vr(AF + 4 * (i - 1), 4), vr(WO + 4 * (i - 1), 4), "0" if i == 1 else vr(OD, 4)))
        a("s_nop 1")
        a("v_mfma_f32_16x16x32_bf16 %s, %s, %s, %s" % (vr(OD, 4), vr(AF + 12, 4), vr(WO + 12, 4), vr(OD, 4)))
        a("s_nop 7")
        a("v_permlane32_swap_b32 %s, %s" % (vr(OD), vr(OD + 2)))
        a("v_permlane32_swap_b32 %s, %s" % (vr(OD + 1), vr(OD + 3)))
        a("s_mov_b32 s42, 0x00ff00ff")
        a("s_mov_b32 s43, 0")
        a("v_add_f32_dpp %s, %s, %s row_ror:8 row_mask:0xf bank_mask:0xf" % (vr(OD), vr(OD + 2), vr(OD)))
        a("v_add_f32_dpp %s, %s, %s row_ror:8 row_mask:0xf bank_mask:0xf" % (vr(OD + 1), vr(OD + 3), vr(OD + 1)))
        a("s_nop 1")
        a("v_permlane32_swap_b32 %s, %s" % (vr(OD), vr(OD + 2)))
        a("v_permlane32_swap_b32 %s, %s" % (vr(OD + 1), vr(OD + 3)))
        for k in range(4):
            a("v_and_or_b32 %s, %s, s%d, %s" % (vr(PK + k), vr(OD + k), S_EN, vr(VT + k)))
        a("s_mov_b64 exec, s[42:43]")
        self.store_mode(SA, PK)
        a("s_mov_b64 exec, -1")
        if self.sgate:
            self.flag_add(F_SPUB, VZ, V1)
        self.stamp(7)
        self.end(T)

    def role_c0(self):
        a = self.a
        VZ, V1 = 1, 2
        X = 4
        W = 40
        AF = 104
        SEL = 168
        ACC = 176
        T = 180
        self.role = "C0"
        if self.code_pf:
            a("s_getpc_b64 s[52:53]")
            a("L_pc:")
            a("s_lshl_b32 s54, s27, 10")
            a("v_add_u32 v3, s54, v37")
            a("v_min_u32 v3, L_code_end-L_pc-16, v3")
            a("global_load_dwordx4 v[188:191], v3, s[52:53]")
        a("""
        s_lshl_b32 s41, s40, 8
        v_lshl_add_u32 v38, v0, 2, s41
        s_lshl_b32 s41, s40, 20               ; rb * 128 * 8192
        s_lshl_b32 s42, s26, 10               ; g * 512 * 2
        s_add_u32 s41, s41, s42
        s_and_b32 s42, s27, 7
        s_lshl_b32 s42, s42, 7                ; cb * 128
        s_add_u32 s41, s41, s42
        v_lshrrev_b32 v3, 3, v0
        v_lshlrev_b32 v3, 17, v3              ; 16 rows * 8192
        v_and_b32 v36, 7, v0
        v_lshl_add_u32 v3, v36, 4, v3
        v_add_u32 v3, s41, v3
        s_mov_b32 m0, %d
        s_movk_i32 s41, 15
        s_waitcnt lgkmcnt(0)
        global_load_dwordx4 %s, v37, %s
        global_load_dword %s, v38, %s
        L_wq:
        global_load_lds_dwordx4 v3, %s %s
        v_add_u32 v3, 0x2000, v3
        s_addk_i32 m0, 0x400
        s_sub_u32 s41, s41, 1
        s_cbranch_scc0 L_wq
        s_barrier
        L_C0_rest:
        s_setprio 3
        s_load_dwordx2 s[30:31], s[24:25], %d
        v_mov_b32 v1, 0
        v_mov_b32 v2, 1
        """ % (L_W1, vr(X, 4), sp(S_X), vr(X + 4), sp(S_X), sp(S_WQ), self.nt_w, EPOCH))
        self.stamp(1)
        self.selectors(SEL, T, both_parities=True)
        a("s_waitcnt vmcnt(16)")
        if self.kgate == 1:
            self.flag_add(F_ST, VZ, V1)
        self.stamp(2)
        self.layernorm_rows(X, L_XQ, VZ)
        self.tags()
        a("s_waitcnt lgkmcnt(0)")
        if self.kgate == 2:
            self.flag_add(F_ST, VZ, V1)
        self.stamp(3)
        XN = X + 8
        a("v_add_u32 v37, %d, v37" % L_W1)
        for i in range(16):
            for t in range(4):
                a("v_perm_b32 %s, %s, %s, %s" % (vr(AF + 4 * i + t), vr(XN + (i >> 1)), vr(XN + (i >> 1)), vr(SEL + 4 * (i & 1) + t)))
        for q in range(4):
            a("s_waitcnt vmcnt(%d)" % (12 - 4 * q))
            if self.kgate >= 3 and q == self.kgate - 3:
                self.flag_add(F_ST, VZ, V1)
            for i in range(4 * q, 4 * q + 4):
                a("ds_read_b128 %s, v37 offset:%d" % (vr(W + 4 * i, 4), 1024 * i))
            if q:
                for i in range(4 * q - 4, 4 * q):
                    a("s_waitcnt lgkmcnt(%d)" % (4 + (4 * q - 1 - i)))
                    a("v_mfma_f32_16x16x32_bf16 %s, %s, %s, %s" % (vr(ACC, 4), vr(AF + 4 * i, 4), vr(W + 4 * i, 4), "0" if i == 0 else vr(ACC, 4)))
        for i in range(12, 16):
            a("s_waitcnt lgkmcnt(%d)" % (15 - i))
            a("v_mfma_f32_16x16x32_bf16 %s, %s, %s, %s" % (vr(ACC, 4), vr(AF + 4 * i, 4), vr(W + 4 * i, 4), vr(ACC, 4)))
        a("s_nop 7")
        a("v_permlane32_swap_b32 %s, %s" % (vr(ACC), vr(ACC + 2)))
        a("v_permlane32_swap_b32 %s, %s" % (vr(ACC + 1), vr(ACC + 3)))
        a("s_nop 1")
        a("v_add_f32_dpp %s, %s, %s row_ror:8 row_mask:0xf bank_mask:0xf" % (vr(ACC), vr(ACC + 2), vr(ACC)))
        a("v_add_f32_dpp %s, %s, %s row_ror:8 row_mask:0xf bank_mask:0xf" % (vr(ACC + 1), vr(ACC + 3), vr(ACC + 1)))
        self.stamp(4)
        a("v_mov_b32 %s, s%d" % (vr(ACC + 2), S_T1X))
        a("v_mov_b32 %s, s%d" % (vr(ACC + 3), S_T1X + 1))
        a("""
        s_lshl_b32 s41, s26, 14               ; g * 16384
        s_lshr_b32 s42, s27, 3
        s_lshl_b32 s42, s42, 12               ; rb * 4096
        s_add_u32 s41, s41, s42
        s_and_b32 s42, s27, 7
        s_lshl_b32 s42, s42, 9                ; cb * 512
        s_add_u32 s41, s41, s42
        s_add_u32 s41, s41, %d
        v_lshrrev_b32 v3, 4, v0               ; 2 hi + g'
        v_lshlrev_b32 v3, 3, v3
        v_and_b32 v36, 7, v0
        v_add_u32 v3, v3, v36                 ; pos = 16 hi + 8 g' + n
        v_lshl_add_u32 v3, v3, 4, s41
        v_add_u32 v37, %d, v3
        """ % (H1, REGB))
        a("s_mov_b32 s42, 0x00ff00ff")
        a("s_mov_b32 s43, 0x00ff00ff")
        a("s_mov_b64 exec, s[42:43]")
        a("global_store_dwordx4 v3, %s, %s %s" % (vr(ACC, 4), sp(S_WS), self.st_nt))
        if self.lazyb:
            a("s_mov_b64 exec, -1")
            self.stamp(5)
            a("s_waitcnt vmcnt(0)")
            self.flag_add(F_QPUB, VZ, V1)
        elif self.qack:
            a("global_store_dwordx4 v37, %s, %s sc1" % (vr(ACC, 4), sp(S_WS)))
            a("s_mov_b64 exec, -1")
            self.stamp(5)
            a("s_waitcnt vmcnt(1)")
            if self.qsleep:
                a("s_sleep %d" % self.qsleep)
            self.flag_add(F_QPUB, VZ, V1)
        else:
            a("s_mov_b64 exec, -1")
            self.flag_add(F_QPUB, VZ, V1)
            a("s_mov_b64 exec, s[42:43]")
            a("global_store_dwordx4 v37, %s, %s sc1" % (vr(ACC, 4), sp(S_WS)))
            a("s_mov_b64 exec, -1")
        if not self.qack:
            self.stamp(5)
        SA, OA = 4, 5
        G = 8
        a("""
        s_lshl_b32 s41, s26, 11               ; g * 2048
        s_lshr_b32 s42, s27, 3
        s_lshl_b32 s42, s42, 9                ; head * 512
        s_add_u32 s41, s41, s42
        s_add_u32 s41, s41, %d
        v_lshrrev_b32 v3, 3, v0
        v_lshl_add_u32 %s, v3, 4, s41
        s_lshl_b32 s41, s26, 16
        s_lshr_b32 s42, s27, 1
        s_lshl_b32 s42, s42, 12
        s_add_u32 s41, s41, s42
        s_add_u32 s41, s41, %d
        v_lshl_add_u32 %s, v0, 4, s41
        """ % (ST, vr(SA), H2, vr(OA)))
        a("v_lshlrev_b32 v6, 4, v0")
        self.flag_wait(F_Q, 1, VZ, T, sleep=2)
        self.read_mode(VZ, T)
        self.stamp(6)
        GO = 40
        self.flag_wait(F_OPUB, self.ogate, VZ, T, sleep=0 if self.odelay else 1)
        if self.odelay:
            a("s_sleep %d" % self.odelay)
            self.flag_add(F_O, VZ, V1)
        self.stamp(7)
        self.poll_mixed([(G + 4 * i, SA, 128 * i, "t") for i in range(4)] + [(GO + 4 * i, OA, 1024 * i, "e") for i in range(4)], S_MB, T, cnt=12)
        self.stamp(8)
        MX, LS, WT, AC = 24, 25, 56, 28
        a("v_max3_f32 %s, %s, %s, %s" % (vr(MX), vr(G), vr(G + 4), vr(G + 8)))
        a("v_max_f32 %s, %s, %s" % (vr(MX), vr(MX), vr(G + 12)))
        for k in range(4):
            a("v_and_b32 %s, s%d, %s" % (vr(GO + k), S_EN, vr(GO + k)))
        self.xor_reduce("v_max_f32", [MX], [8, 16, 32], T)
        a("v_mov_b32 %s, 0x%x" % (vr(T + 4), LOG2E))
        a("v_mul_f32 %s, %s, %s" % (vr(T + 5), vr(MX), vr(T + 4)))
        for i in range(4):
            a("v_fma_f32 %s, %s, %s, -%s" % (vr(WT + i), vr(G + 4 * i), vr(T + 4), vr(T + 5)))
        for i in range(4):
            a("v_exp_f32 %s, %s" % (vr(WT + i), vr(WT + i)))
        for k in range(4, 16):
            a("v_and_b32 %s, s%d, %s" % (vr(GO + k), S_EN, vr(GO + k)))
        a("v_mul_f32 %s, %s, %s" % (vr(LS), vr(WT), vr(G + 1)))
        for k in range(4):
            a("v_mul_f32 %s, %s, %s" % (vr(AC + k), vr(WT), vr(GO + k)))
        for i in range(1, 4):
            a("v_fmac_f32 %s, %s, %s" % (vr(LS), vr(WT + i), vr(G + 4 * i + 1)))
            for k in range(4):
                a("v_fmac_f32 %s, %s, %s" % (vr(AC + k), vr(WT + i), vr(GO + 4 * i + k)))
        self.xor_reduce("v_add_f32", [LS, AC, AC + 1, AC + 2, AC + 3], [8, 16, 32], T)
        a("v_rcp_f32 %s, %s" % (vr(T), vr(LS)))
        a("v_mov_b32 v33, 1")
        a("v_mov_b32 v35, 1")
        a("v_fma_f32 %s, -%s, %s, 1.0" % (vr(T + 1), vr(T), vr(LS)))
        a("v_fmac_f32 %s, %s, %s" % (vr(T), vr(T + 1), vr(T)))
        for k in range(4):
            a("v_mul_f32 %s, %s, %s" % (vr(AC + k), vr(AC + k), vr(T)))
        a("v_cvt_pk_bf16_f32 v32, %s, %s" % (vr(AC), vr(AC + 1)))
        a("v_cvt_pk_bf16_f32 v34, %s, %s" % (vr(AC + 2), vr(AC + 3)))
        a("s_mov_b64 exec, 0xff")
        a("ds_write_b128 v6, v[32:35] offset:%d" % L_O)
        a("s_mov_b64 exec, -1")
        if self.wb == 1:
            Lw = a.newlabel("WB")
            a("s_cmp_lg_u32 s27, %d" % self.wbc)
            a("s_cbranch_scc1 %s" % Lw)
            a("buffer_wbl2 sc1")
            a(Lw + ":")
        self.stamp(9)
        self.end(T)

    def role_c1(self):
        a = self.a
        VZ, V1 = 1, 2
        X = 4
        W = 40
        AF = 104
        SEL = 168
        ACC = 176
        T = 180
        a("L_C1:")
        a("v_mov_b32 v1, 0\nv_mov_b32 v2, 1")
        self.role = "C1"
        a("s_barrier")
        a("s_setprio 3")
        self.mlp_scalars()
        a("""
        v_lshlrev_b32 v42, 4, v0
        s_and_b32 s40, s27, 7
        s_lshl_b32 s41, s40, 7
        v_and_b32 v3, 31, v0
        v_lshl_add_u32 v43, v3, 2, s41
        """)
        a("""
        s_lshl_b32 s42, s50, 7
        s_and_b32 s43, s27, 7
        s_mul_i32 s43, s43, %d
        s_add_u32 s42, s42, s43
        v_lshrrev_b32 v6, 3, v0
        v_mul_u32_u24 v6, %d, v6
        v_and_b32 v7, 7, v0
        v_lshl_add_u32 v6, v7, 4, v6
        v_add_u32 v44, s42, v6
        """ % (64 * 3584, 8 * 3584))
        self.args_ready()
        a("""
        s_lshl_b32 s41, s26, 14
        s_lshl_b32 s42, s27, 9
        s_add_u32 s44, s41, s42
        s_add_u32 s44, s44, %d                ; own outbox of hidden-unit partials
        """ % HB)
        if self.prefill:
            a("""
            s_lshl_b32 s41, s26, 14
            s_lshr_b32 s42, s27, 3
            s_lshl_b32 s42, s42, 12
            s_add_u32 s41, s41, s42
            s_and_b32 s42, s27, 7
            s_lshl_b32 s42, s42, 9
            s_add_u32 s41, s41, s42
            s_add_u32 s41, s41, %d
            v_and_b32 v3, 31, v0
            v_lshl_add_u32 v40, v3, 4, s41
            v_lshl_add_u32 v41, v3, 4, s44
            s_lshl_b32 s41, s26, 11
            s_lshr_b32 s42, s27, 3
            s_lshl_b32 s42, s42, 9
            s_add_u32 s41, s41, s42
            s_add_u32 s41, s41, %d
            v_lshl_add_u32 v45, v3, 4, s41
            v_cmp_gt_u32 vcc, 32, v0
            s_nop 1
            v_cndmask_b32 v40, v41, v40, vcc
            global_load_dwordx4 v[188:191], v40, %s
            """ % (H1, ST, sp(S_WS)))
            if self.prefill >= 2:
                Ls = a.newlabel("I")
                a("""
                s_and_b32 s41, s27, 7
                s_cmp_lg_u32 s41, 0
                s_cbranch_scc1 %s
                global_load_dwordx4 v[188:191], v45, %s
                %s:
                """ % (Ls, sp(S_WS), Ls))
        W1R = 48
        Lb = a.newlabel("B")
        a("s_cmp_lg_u32 s%d, 0" % S_ISB)
        a("s_cbranch_scc1 %s" % Lb)
        self.stamp(1)
        self.end(T)
        a(Lb + ":")
        a("global_load_dwordx4 %s, v42, %s" % (vr(X, 4), sp(S_X)))
        a("global_load_dword %s, v43, %s" % (vr(X + 4), sp(S_X)))
        if self.w1gate:
            self.flag_wait(F_ST, 1, VZ, T)
        for i in range(8):
            a("global_load_dwordx4 %s, v44, %s %s" % (vr(W1R + 4 * i, 4), sp(S_W1), self.nt_w))
            if i < 7:
                a("v_add_u32 v44, 3584, v44")
        a("s_waitcnt vmcnt(8)")
        self.stamp(1)
        self.role = "C1B"
        self.selectors(SEL, T, both_parities=True)
        self.layernorm_rows(X, L_XH, VZ, rows=64)
        self.tags()
        a("v_lshlrev_b32 v3, 4, v0")
        a("v_add_u32 v38, %d, v3" % L_W2)
        XN = X + 8
        for i in range(8):
            for t in range(4):
                a("v_perm_b32 %s, %s, %s, %s" % (vr(AF + 4 * i + t), vr(XN + (i >> 1)), vr(XN + (i >> 1)), vr(SEL + 4 * (i & 1) + t)))
        a("""
        v_lshrrev_b32 v3, 4, v0
        v_lshlrev_b32 v3, 3, v3
        v_and_b32 v36, 7, v0
        v_add_u32 v3, v3, v36
        v_lshl_add_u32 v3, v3, 4, s44
        s_lshr_b32 s41, s27, 3
        s_lshl_b32 s41, s41, 12               ; cbl * 4096
        s_lshl_b32 s42, s26, 14
        s_add_u32 s41, s41, s42
        s_add_u32 s41, s41, %d
        v_lshl_add_u32 v4, v0, 4, s41
        """ % HB)
        a("s_waitcnt vmcnt(0)")
        self.stamp(2)
        for i in range(8):
            a("v_mfma_f32_16x16x32_bf16 %s, %s, %s, %s" % (vr(ACC, 4), vr(AF + 4 * i, 4), vr(W1R + 4 * i, 4), "0" if i == 0 else vr(ACC, 4)))
        a("s_nop 7")
        a("v_permlane32_swap_b32 %s, %s" % (vr(ACC), vr(ACC + 2)))
        a("v_permlane32_swap_b32 %s, %s" % (vr(ACC + 1), vr(ACC + 3)))
        a("s_nop 1")
        a("v_add_f32_dpp %s, %s, %s row_ror:8 row_mask:0xf bank_mask:0xf" % (vr(ACC), vr(ACC + 2), vr(ACC)))
        a("v_add_f32_dpp %s, %s, %s row_ror:8 row_mask:0xf bank_mask:0xf" % (vr(ACC + 1), vr(ACC + 3), vr(ACC + 1)))
        self.stamp(3)
        a("v_mov_b32 %s, s%d" % (vr(ACC + 2), S_T))
        a("v_mov_b32 %s, s%d" % (vr(ACC + 3), S_T + 1))
        a("v_add_u32 v5, %d, v3" % REGB)
        a("s_mov_b32 s42, 0x00ff00ff")
        a("s_mov_b32 s43, 0x00ff00ff")
        a("s_mov_b64 exec, s[42:43]")
        a("global_store_dwordx4 v3, %s, %s %s" % (vr(ACC, 4), sp(S_WS), self.st_nt))
        a("s_mov_b64 exec, -1")
        self.flag_add(F_HPUB, VZ, V1)
        if not self.lazyb:
            a("s_mov_b64 exec, s[42:43]")
            a("global_store_dwordx4 v5, %s, %s sc1" % (vr(ACC, 4), sp(S_WS)))
            a("s_mov_b64 exec, -1")
        G = 8
        self.flag_wait(F_Q, 1, VZ, T, sleep=1)
        self.read_mode(VZ, T)
        if self.lazyb:
            Lloc = a.newlabel("H")
            a("s_cmp_eq_u32 s%d, 0" % S_MODE)
            a("s_cbranch_scc1 %s" % Lloc)
            a("s_mov_b64 exec, s[42:43]")
            a("global_store_dwordx4 v5, %s, %s sc1" % (vr(ACC, 4), sp(S_WS)))
            a("s_mov_b64 exec, -1")
            a(Lloc + ":")
        self.poll([(G + 4 * i, 4, 1024 * i) for i in range(4)], S_MB)
        self.stamp(4)
        for e in range(2):
            a("v_add_f32 %s, %s, %s" % (vr(G + e), vr(G + e), vr(G + 4 + e)))
            a("v_add_f32 %s, %s, %s" % (vr(G + 8 + e), vr(G + 8 + e), vr(G + 12 + e)))
        for e in range(2):
            a("v_add_f32 %s, %s, %s" % (vr(G + e), vr(G + e), vr(G + 8 + e)))
        self.xor_reduce("v_add_f32", [G, G + 1], [32], T)
        a("v_max_f32 %s, 0, %s" % (vr(G), vr(G)))
        a("v_max_f32 %s, 0, %s" % (vr(G + 1), vr(G + 1)))
        a("v_cvt_pk_bf16_f32 %s, %s, %s" % (vr(G), vr(G), vr(G + 1)))
        a("""
        v_and_b32 v5, 7, v0
        v_lshlrev_b32 v5, 4, v5               ; 8 n * 2 B
        v_bfe_u32 v6, v0, 3, 1
        v_lshl_add_u32 v5, v6, 3, v5          ; 4 g' * 2 B
        v_bfe_u32 v6, v0, 4, 1
        v_lshl_add_u32 v5, v6, 2, v5          ; 2 hi * 2 B
        ds_write_b32 v5, %s offset:%d
        v_lshrrev_b32 v5, 3, v0
        v_lshlrev_b32 v5, 4, v5
        ds_read_b128 %s, v5 offset:%d
        """ % (vr(G), L_XH, vr(G + 4, 4), L_XH))
        a("""
        s_and_b32 s41, s27, 7
        s_lshr_b32 s42, s41, 1
        s_lshl_b32 s42, s42, 3
        s_and_b32 s41, s41, 1
        s_lshl_b32 s41, s41, 1
        s_add_u32 s41, s41, s42
        s_lshl_b32 s41, s41, 9
        s_lshl_b32 s42, s26, 14
        s_add_u32 s41, s41, s42
        s_lshr_b32 s42, s27, 3
        s_lshl_b32 s42, s42, 7
        s_add_u32 s41, s41, s42
        s_add_u32 s41, s41, %d
        v_bfe_u32 v3, v0, 4, 1
        v_lshlrev_b32 v3, 11, v3              ; 4 g' * 512
        v_bfe_u32 v5, v0, 2, 1
        v_lshl_add_u32 v3, v5, 9, v3          ; (n >> 2) * 512
        v_lshrrev_b32 v5, 5, v0
        v_lshl_add_u32 v3, v5, 6, v3          ; 4 hi * 16
        v_and_b32 v5, 3, v0
        v_lshl_add_u32 v3, v5, 4, v3
        v_add_u32 v3, s41, v3
        s_waitcnt lgkmcnt(0)
        """ % H3G)
        for i in range(8):
            for t in range(4):
                a("v_perm_b32 %s, %s, %s, %s" % (vr(AF + 4 * i + t), vr(G + 4 + (i >> 1)), vr(G + 4 + (i >> 1)), vr(SEL + 4 * (i & 1) + t)))
        self.flag_wait(F_W2, 1, VZ, T, sleep=1)
        for i in range(8):
            a("ds_read_b128 %s, v38 offset:%d" % (vr(W + 4 * i, 4), 1024 * i))
        for i in range(8):
            a("s_waitcnt lgkmcnt(%d)" % (7 - i))
            a("v_mfma_f32_16x16x32_bf16 %s, %s, %s, %s" % (vr(ACC, 4), vr(AF + 4 * i, 4), vr(W + 4 * i, 4), "0" if i == 0 else vr(ACC, 4)))
        a("s_nop 7")
        a("v_permlane32_swap_b32 %s, %s" % (vr(ACC), vr(ACC + 2)))
        a("v_permlane32_swap_b32 %s, %s" % (vr(ACC + 1), vr(ACC + 3)))
        a("s_nop 1")
        a("v_add_f32_dpp %s, %s, %s row_ror:8 row_mask:0xf bank_mask:0xf" % (vr(ACC), vr(ACC + 2), vr(ACC)))
        a("v_add_f32_dpp %s, %s, %s row_ror:8 row_mask:0xf bank_mask:0xf" % (vr(ACC + 1), vr(ACC + 3), vr(ACC + 1)))
        a("v_mov_b32 %s, s%d" % (vr(ACC + 2), S_T))
        a("v_mov_b32 %s, s%d" % (vr(ACC + 3), S_T + 1))
        a("s_mov_b32 s42, 0x00ff00ff")
        a("s_mov_b32 s43, 0x00ff00ff")
        a("s_mov_b64 exec, s[42:43]")
        self.store_mode(3, ACC)
        a("s_mov_b64 exec, -1")
        self.stamp(5)
        self.end(T)

    def role_c2(self):
        a = self.a
        VZ, V1 = 1, 2
        T = 100
        G = 8
        a("L_C2:")
        a("v_mov_b32 v1, 0\nv_mov_b32 v2, 1")
        self.role = "C2"
        a("s_setprio 3")
        a("v_lshlrev_b32 v3, 2, v0")
        a("ds_write_b32 v3, v1 offset:%d" % L_F)
        self.args_ready()
        a("s_barrier")
        self.mlp_scalars()
        XF, FA, OUTA = 80, 81, 82
        a("""
        s_max_u32 s45, s27, 28
        s_sub_u32 s45, s45, 28
        s_lshl_b32 s45, s45, 3
        s_add_u32 s45, s45, s26               ; column set c'
        s_lshr_b32 s41, s45, 3
        s_lshl_b32 s41, s41, 7                ; 128 (c' >> 3)
        s_and_b32 s42, s45, 3
        s_lshl_b32 s42, s42, 5                ; 32 (c' & 3)
        s_add_u32 s41, s41, s42
        s_bfe_u32 s42, s45, 0x10002
        s_lshl_b32 s42, s42, 2
        s_add_u32 s41, s41, s42
        v_and_b32 v3, 3, v0
        v_lshlrev_b32 v3, 3, v3
        v_bfe_u32 v83, v0, 2, 1
        v_lshl_add_u32 v3, v83, 1, v3
        v_add_u32 v3, s41, v3                 ; first column of the pair
        v_lshlrev_b32 %s, 1, v3               ; byte offset in x / out
        s_lshl_b32 s41, s45, 11
        s_add_u32 s41, s41, %d
        v_lshrrev_b32 v3, 3, v0
        v_lshlrev_b32 v3, 8, v3
        v_and_b32 v83, 7, v0
        v_lshl_add_u32 v3, v83, 4, v3
        v_add_u32 %s, s41, v3
        """ % (vr(OUTA), H3B, vr(FA)))
        Lnf = a.newlabel("NF")
        a("s_cmp_lt_u32 s27, 28")
        a("s_cbranch_scc1 %s" % Lnf)
        a("global_load_dword %s, %s, %s" % (vr(XF), vr(OUTA), sp(S_X)))
        a("global_load_dwordx4 v[84:87], %s, %s sc1" % (vr(FA), sp(S_WS)))
        a("global_load_dwordx4 v[88:91], %s, %s offset:128 sc1" % (vr(FA), sp(S_WS)))
        a(Lnf + ":")
        a("""
        s_lshl_b32 s41, s26, 14
        s_add_u32 s41, s41, %d
        v_lshl_add_u32 v4, v0, 4, s41
        v_add_u32 v5, 0x1000, v4
        v_add_u32 v6, 0x2000, v4
        v_add_u32 v7, 0x3000, v4
        """ % H1)
        qloads = [(G + 16 * hd + 4 * rb, 4 + rb, 1024 * hd) for hd in range(4) for rb in range(4)]
        self.tags()
        self.stamp(1)
        self.flag_wait(F_QPUB, 1, VZ, T, sleep=1)
        self.stamp(2)
        Lslow, Lgot = a.newlabel("Q"), a.newlabel("Q")
        if not self.force_global:
            self.poll(qloads, S_WS, tag=S_T1X, limit=self.atimeout, on_timeout=Lslow, cnt=12, plain_first=bool(self.plain0 & 1))
            a("s_branch %s" % Lgot)
        a(Lslow + ":")
        a("s_waitcnt vmcnt(0)")
        a("s_add_u32 s46, s%d, %d" % (S_WS, REGB))
        a("s_addc_u32 s47, s%d, 0" % (S_WS + 1))
        if self.lazyb:
            a("""
            s_lshl_b32 s41, s26, 14
            s_lshr_b32 s42, s27, 3
            s_lshl_b32 s42, s42, 12
            s_add_u32 s41, s41, s42
            s_and_b32 s42, s27, 7
            s_lshl_b32 s42, s42, 9
            s_add_u32 s41, s41, s42
            s_add_u32 s41, s41, %d
            v_and_b32 v76, 31, v0
            v_lshl_add_u32 v76, v76, 4, s41
            global_load_dwordx4 v[72:75], v76, %s sc1
            s_waitcnt vmcnt(0)
            global_store_dwordx4 v76, v[72:75], s[46:47] sc1
            """ % (H1, sp(S_WS)))
        L = a.newlabel("P")
        LA = a.newlabel("P")
        a("s_mov_b32 s%d, 0" % S_CNT)
        a(L + ":")
        for (vd, va, off) in qloads:
            a("global_load_dwordx4 %s, %s, s[46:47] offset:%d sc1" % (vr(vd, 4), vr(va), off))
        a("s_add_u32 s%d, s%d, 1" % (S_CNT, S_CNT))
        a("s_cmp_gt_u32 s%d, %d" % (S_CNT, POLL_MAX))
        a("s_cbranch_scc1 L_end")
        a("s_waitcnt vmcnt(0)")
        a("v_mov_b32 %s, 0" % vr(T))
        a("v_mov_b32 %s, 0" % vr(T + 1))
        for (vd, va, off) in qloads:
            a("v_xor_b32 %s, s%d, %s" % (vr(T + 2), S_T, vr(vd + 2)))
            a("v_xor_b32 %s, s%d, %s" % (vr(T + 3), S_T + 1, vr(vd + 3)))
            a("v_and_b32 %s, 0xfffffff0, %s" % (vr(T + 3), vr(T + 3)))
            a("v_or3_b32 %s, %s, %s, %s" % (vr(T), vr(T), vr(T + 2), vr(T + 3)))
            a("v_xor_b32 %s, s%d, %s" % (vr(T + 3), S_T1X + 1, vr(vd + 3)))
            a("v_or_b32 %s, %s, %s" % (vr(T + 1), vr(T + 1), vr(T + 3)))
        a("v_cmp_ne_u32 vcc, 0, %s" % vr(T))
        if self.lazyb and not self.force_global:
            Lb_ok = a.newlabel("Q")
            a("s_cbranch_vccz %s" % Lb_ok)
            for (vd, va, off) in qloads:
                a("global_load_dwordx4 %s, %s, %s offset:%d sc1" % (vr(vd, 4), vr(va), sp(S_WS), off))
            for i, (vd, va, off) in enumerate(qloads):
                a("s_waitcnt vmcnt(%d)" % (len(qloads) - 1 - i))
                a("v_cmp_ne_u64 %s, %s, %s" % ("vcc" if i == 0 else sp(S_TMP), vr(vd + 2, 2), sp(S_T1X)))
                if i:
                    a("s_or_b64 vcc, vcc, %s" % sp(S_TMP))
            a("s_cbranch_vccnz %s" % L)
            a("s_branch %s" % Lgot)
            a(Lb_ok + ":")
        else:
            a("s_cbranch_vccnz %s" % L)
        a("v_cmp_ne_u32 vcc, 0, %s" % vr(T + 1))
        a("s_cbranch_vccz %s" % Lgot)
        self.flag_add(F_REM, VZ, V1)
        a(Lgot + ":")
        self.stamp(3)
        for hd in range(4):
            b = G + 16 * hd
            for e in range(2):
                a("v_add_f32 %s, %s, %s" % (vr(b + e), vr(b + e), vr(b + 4 + e)))
                a("v_add_f32 %s, %s, %s" % (vr(b + 8 + e), vr(b + 8 + e), vr(b + 12 + e)))
            for e in range(2):
                a("v_add_f32 %s, %s, %s" % (vr(b + e), vr(b + e), vr(b + 8 + e)))
            a("v_cvt_pk_bf16_f32 %s, %s, %s" % (vr(b), vr(b), vr(b + 1)))
        a("""
        v_lshrrev_b32 v72, 5, v0              ; cb_local
        v_lshlrev_b32 v72, 7, v72             ; 64 columns * 2 B
        v_and_b32 v73, 7, v0
        v_lshl_add_u32 v72, v73, 4, v72       ; 8 n * 2 B
        v_bfe_u32 v73, v0, 3, 1
        v_lshl_add_u32 v72, v73, 3, v72       ; 4 g' * 2 B
        v_bfe_u32 v73, v0, 4, 1
        v_lshl_add_u32 v72, v73, 2, v72       ; 2 s * 2 B
        """)
        for hd in range(4):
            a("ds_write_b32 v72, %s offset:%d" % (vr(G + 16 * hd), L_Q + 320 * hd))
        self.flag_add(F_Q, VZ, V1)
        self.stamp(4)
        SA, GA, BA = 4, 5, 6
        a("""
        s_lshl_b32 s41, s26, 15
        s_lshl_b32 s42, s27, 10
        s_add_u32 s41, s41, s42
        s_add_u32 s41, s41, %d
        v_lshl_add_u32 %s, v0, 4, s41
        s_lshl_b32 s41, s27, 11
        s_lshl_b32 s42, s26, 8
        s_add_u32 s41, s41, s42
        s_add_u32 s41, s41, %d
        v_lshl_add_u32 %s, v0, 4, s41
        """ % (H3S, vr(SA), H3B, vr(BA)))
        self.read_mode(VZ, T)
        if self.sinit:
            for i in range(4):
                a("v_mov_b32 %s, 0" % vr(56 + i))
            for i in range(4):
                a("global_store_dwordx4 %s, v[56:59], %s offset:%d" % (vr(SA), sp(S_WS), 1024 * i))
            a("s_waitcnt vmcnt(0)")
            self.flag_add(F_INIT, VZ, V1)
        GS = 40
        GG, GAD, GW = 24, 44, 48
        a("v_mov_b32 %s, 0" % vr(GS))
        a("v_mov_b32 %s, 0" % vr(GS + 1))
        Lng = a.newlabel("NG")
        a("s_cmp_eq_u32 s49, 0")
        a("s_cbranch_scc1 %s" % Lng)
        a("""
        s_lshl_b32 s41, s26, 14
        s_lshl_b32 s42, s27, 9
        s_add_u32 s41, s41, s42
        s_add_u32 s41, s41, %d
        s_lshr_b32 s42, s49, 3
        v_bfe_u32 v52, v0, 3, 2
        v_cmp_gt_u32 vcc, s42, v52
        v_and_b32 v53, 31, v0
        v_and_b32 v54, 7, v0
        v_cndmask_b32 v53, v54, v53, vcc
        v_lshl_add_u32 %s, v53, 4, s41
        v_mov_b32 v54, 1.0
        v_cndmask_b32 %s, v1, v54, vcc
        """ % (H3G, vr(GAD), vr(GW)))
        def fill_s():
            a("global_load_dwordx4 %s, %s, %s sc1" % (vr(60, 4), vr(SA), sp(S_MB)))
        if self.odelay:
            self.flag_wait(F_O, 1, VZ, T, sleep=1)
        elif self.spf == 1 or not self.ggate:
            self.flag_wait(F_OPUB, 4, VZ, T, sleep=1)
        if self.spf == 1:
            fill_s()
        if self.ggate == 1:
            self.flag_wait(F_WO, 1, VZ, T, sleep=1)
        if self.spf == 4:
            fill_s()
        self.poll([(GG, GAD, 0)], S_MB, cnt=15, plain_first=bool(self.plain0 & 4))
        if self.spf == 3:
            for i in range(4):
                a("global_load_dwordx4 %s, %s, %s offset:%d sc1" % (vr(60 + 4 * i, 4), vr(SA), sp(S_MB), 1024 * i))
        for e in range(2):
            a("v_mul_f32 %s, %s, %s" % (vr(GS + e), vr(GW), vr(GG + e)))
        self.xor_reduce("v_add_f32", [GS, GS + 1], [8, 16], T)
        a(Lng + ":")
        a("v_bfe_u32 v3, v0, 2, 1")
        a("v_bfe_u32 v7, v0, 3, 1")
        a("v_cmp_eq_u32 s[42:43], 1, v3")
        a("v_cmp_eq_u32 s[58:59], 1, v7")
        self.stamp(5)
        if self.sgate:
            self.flag_wait(F_SPUB, 4, VZ, T)
        else:
            L = a.newlabel("O")
            a("s_mov_b32 s%d, 0" % S_CNT)
            a(L + ":")
            a("ds_read_b32 %s, %s offset:%d" % (vr(T), vr(VZ), L_O + 4))
            a("s_add_u32 s%d, s%d, 1" % (S_CNT, S_CNT))
            a("s_cmp_gt_u32 s%d, %d" % (S_CNT, SPIN_MAX))
            a("s_cbranch_scc1 L_end")
            a("s_waitcnt lgkmcnt(0)")
            a("v_readfirstlane_b32 s%d, %s" % (S_TMP, vr(T)))
            a("s_cmp_lg_u32 s%d, 1" % S_TMP)
            a("s_cbranch_scc1 %s" % L)
        if self.sdelay:
            a("s_sleep %d" % self.sdelay)
        self.stamp(6)
        self.poll_mixed([(G, SA, 0, "e")], S_MB, T, cnt=13)
        self.stamp(7)
        for k in range(4):
            a("v_and_b32 %s, s%d, %s" % (vr(G + k), S_EN, vr(G + k)))
        self.xor_reduce("v_add_f32", [G, G + 1, G + 2, G + 3], ["r4", 8, 16, 32], T)
        a("v_cndmask_b32 %s, %s, %s, s[42:43]" % (vr(G), vr(G), vr(G + 2)))
        a("v_cndmask_b32 %s, %s, %s, s[42:43]" % (vr(G + 1), vr(G + 1), vr(G + 3)))
        a("v_mov_b32 %s, s%d" % (vr(G + 2), S_T))
        a("v_mov_b32 %s, s%d" % (vr(G + 3), S_T + 1))
        a("v_cndmask_b32 %s, %s, %s, s[58:59]" % (vr(G), vr(G), vr(GS)))
        a("v_cndmask_b32 %s, %s, %s, s[58:59]" % (vr(G + 1), vr(G + 1), vr(GS + 1)))
        a("s_mov_b64 exec, 0xffff")
        a("global_store_dwordx4 %s, %s, %s sc1" % (vr(BA), vr(G, 4), sp(S_WS)))
        a("s_mov_b64 exec, -1")
        if self.wb == 2:
            Lw = a.newlabel("WB")
            a("s_cmp_lg_u32 s27, %d" % self.wbc)
            a("s_cbranch_scc1 %s" % Lw)
            a("buffer_wbl2 sc1")
            a(Lw + ":")
        self.stamp(8)
        Lf = a.newlabel("F")
        a("s_cmp_ge_u32 s27, 28")
        a("s_cbranch_scc1 %s" % Lf)
        self.end(T)
        a(Lf + ":")
        self.role = "C2F"
        G = 12
        if self.fstag:
            self.poll_staggered([(G, FA, 0), (G + 4, FA, 128)], [24, 28], [32, 36], S_WS, self.fstag)
            G = 32
        else:
            self.poll([(G, FA, 0), (G + 4, FA, 128)], S_WS, cnt=14)
        self.stamp(9)
        self.xor_reduce("v_add_f32", [G, G + 1, G + 4, G + 5], [8, 16, 32], T)
        a("v_cvt_pk_bf16_f32 %s, %s, %s" % (vr(G), vr(G), vr(G + 1)))
        a("v_cvt_pk_bf16_f32 %s, %s, %s" % (vr(G + 4), vr(G + 4), vr(G + 5)))
        a("v_and_b32 %s, 0xffff0000, %s" % (vr(G + 1), vr(G)))
        a("v_lshlrev_b32 %s, 16, %s" % (vr(G), vr(G)))
        a("v_and_b32 %s, 0xffff0000, %s" % (vr(G + 5), vr(G + 4)))
        a("v_lshlrev_b32 %s, 16, %s" % (vr(G + 4), vr(G + 4)))
        for e in range(2):
            a("v_mul_f32 %s, 0x%x, %s" % (vr(G + 8 + e), LOG2E ^ 0x80000000, vr(G + 4 + e)))
        for e in range(2):
            a("v_exp_f32 %s, %s" % (vr(G + 8 + e), vr(G + 8 + e)))
        a("s_nop 0")
        for e in range(2):
            a("v_add_f32 %s, 1.0, %s" % (vr(G + 8 + e), vr(G + 8 + e)))
        for e in range(2):
            a("v_rcp_f32 %s, %s" % (vr(G + 8 + e), vr(G + 8 + e)))
        a("s_nop 0")
        for e in range(2):
            a("v_mul_f32 %s, %s, %s" % (vr(G + 4 + e), vr(G + 4 + e), vr(G + 8 + e)))
        a("v_cvt_pk_bf16_f32 %s, %s, %s" % (vr(G + 4), vr(G + 4), vr(G + 5)))
        a("v_and_b32 %s, 0xffff0000, %s" % (vr(G + 5), vr(G + 4)))
        a("v_lshlrev_b32 %s, 16, %s" % (vr(G + 4), vr(G + 4)))
        for e in range(2):
            a("v_mul_f32 %s, %s, %s" % (vr(G + e), vr(G + e), vr(G + 4 + e)))
        a("v_cvt_pk_bf16_f32 %s, %s, %s" % (vr(G), vr(G), vr(G + 1)))
        a("v_and_b32 %s, 0xffff0000, %s" % (vr(G + 1), vr(G)))
        a("v_lshlrev_b32 %s, 16, %s" % (vr(G), vr(G)))
        a("v_and_b32 %s, 0xffff0000, %s" % (vr(G + 5), vr(XF)))
        a("v_lshlrev_b32 %s, 16, %s" % (vr(G + 4), vr(XF)))
        for e in range(2):
            a("v_add_f32 %s, %s, %s" % (vr(G + e), vr(G + e), vr(G + 4 + e)))
        a("v_cvt_pk_bf16_f32 %s, %s, %s" % (vr(G), vr(G), vr(G + 1)))
        a("s_mov_b64 exec, 0xff")
        a("global_store_dword %s, %s, %s" % (vr(OUTA), vr(G), sp(S_OUT)))
        Le = a.newlabel("E")
        a("s_cmp_lg_u32 s45, 0")
        a("s_cbranch_scc1 %s" % Le)
        a("s_mov_b64 exec, 1")
        a("v_mov_b32 %s, s%d" % (vr(G + 2), S_T))
        a("v_mov_b32 %s, s%d" % (vr(G + 3), S_T + 1))
        a("global_store_dwordx2 v1, %s, %s offset:%d sc1" % (vr(G + 2, 2), sp(S_WS), EPOCH))
        a(Le + ":")
        a("s_mov_b64 exec, -1")
        self.stamp(10)
        self.end(T)

    def build(self):
        self.prologue()
        self.role_c0()
        self.role_c1()
        self.role_c2()
        self.role_a()
        self.role_l()
        self.a("L_end:\ns_endpgm\nL_code_end:")
        return wrap(self.a.text(), 256, 512, LDS_BYTES, 192, sgpr=96)


def generate(**kw):
    return Gen(**kw).build()


if __name__ == "__main__":
    out = sys.argv[1] if len(sys.argv) > 1 else "cdna_kernels/%s.s" % NAME
    kw = {}
    for arg in sys.argv[2:]:
        k, v = arg.split("=")
        kw[k] = {"True": True, "False": False}.get(v, v)
    open(out, "w").write(generate(**kw))
    print("wrote", out)
```
